```python
import torch

def _softmax(x, axis=-1):
    return torch.softmax(x, dim=axis)
def _gelu(x):
    return torch.nn.functional.gelu(x, approximate="tanh")
def _silu(x):
    return torch.nn.functional.silu(x)
def _sigmoid(x):
    return torch.sigmoid(x)
def _layernorm(x, axis=-1, eps=1e-5):
    m = x.mean(dim=axis, keepdim=True)
    v = x.var(dim=axis, keepdim=True, unbiased=False)
    return (x - m) / torch.sqrt(v + eps)
def _scatter_add(tgt, idx, src, axis=0):
    return tgt.clone().index_add_(axis, idx, src)
def _segment_sum(src, seg, n):
    out = torch.zeros((n,) + src.shape[1:], dtype=src.dtype)
    return out.index_add_(0, seg, src)
def _pad(x, pw):
    flat = tuple(v for pair in reversed(pw) for v in pair)
    return torch.nn.functional.pad(x, flat)

kernel_name = 'gated_mix__sliding_local_dilated__swiglu_ffn__prompt'

def setup_inputs():

    _w = (lambda a: (lambda t: t.to(torch.bfloat16) if t.is_floating_point() else t)(torch.as_tensor(a)))
    def _A_setup():
        B, S, D = 1, 2048, 448
        return {
            "x": _w((lambda *s: torch.randn(*s, dtype=torch.bfloat16) * 0.05)(B, S, D)),
            "wqkv": _w((lambda *s: torch.randn(*s, dtype=torch.bfloat16) * 0.8)(D, 3 * D)),
            "wo": _w((lambda *s: torch.randn(*s, dtype=torch.bfloat16) * 0.05)(D, D)),
        }
    _A_in = _A_setup()

    def _B_setup():
        B, S, D, F = 1, 2048, 448, 1792
        return {
            "x": _w((lambda *s: torch.randn(*s, dtype=torch.bfloat16) * 0.05)(B, S, D)),
            "w_gate": _w((lambda *s: torch.randn(*s, dtype=torch.bfloat16) * 0.2)(D, F)),
            "w_up": _w((lambda *s: torch.randn(*s, dtype=torch.bfloat16) * 0.2)(D, F)),
            "w_down": _w((lambda *s: torch.randn(*s, dtype=torch.bfloat16) * 0.2)(F, D)),
        }
    _B_in = _B_setup()

    return {
        "A_x": _A_in["x"],
        "A_wqkv": _A_in["wqkv"],
        "A_wo": _A_in["wo"],
        "B_x": _B_in["x"],
        "B_w_gate": _B_in["w_gate"],
        "B_w_up": _B_in["w_up"],
        "B_w_down": _B_in["w_down"],
        "gate_w": _w((lambda *s: torch.randn(*s, dtype=torch.bfloat16) * 0.05)(448) * 16.0),
    }

def reference(A_x, A_wqkv, A_wo, B_x, B_w_gate, B_w_up, B_w_down, gate_w):
    def _A_ref(x, wqkv, wo):
        B, S, D = x.shape
        H = 16; Dh = D // H
        W, dil = 8, 2
        qkv = (lambda x, *d: x.permute(*d))((x @ wqkv).reshape(B, S, 3, H, Dh), 2, 0, 3, 1, 4)
        q, k, v = qkv[0], qkv[1], qkv[2]
        scale = Dh ** -0.5
        pos = torch.arange(S)
        off = torch.arange(W) * dil
        idx = pos[:, None] - off[None, :]
        mask = idx >= 0
        idx_c = torch.where(mask, idx, 0).reshape(-1)
        kg = k[:, :, idx_c, :].reshape(B, H, S, W, Dh)
        vg = v[:, :, idx_c, :].reshape(B, H, S, W, Dh)
        logits = torch.einsum("bhsd,bhswd->bhsw", q, kg) * scale
        logits = torch.where(mask[None, None, :, :], logits, -1e9)
        attn = _softmax(logits, axis=-1)
        o = torch.einsum("bhsw,bhswd->bhsd", attn, vg)
        return (lambda x, *d: x.permute(*d))(o, 0, 2, 1, 3).reshape(B, S, D) @ wo

    def _B_ref(x, w_gate, w_up, w_down):
        g = _silu(x @ w_gate)
        u = x @ w_up
        return (g * u) @ w_down

    x = A_x
    g = _sigmoid((x * gate_w).sum(-1, keepdims=True))
    a = _A_ref(x, A_wqkv, A_wo)
    b = _B_ref(x, B_w_gate, B_w_up, B_w_down)
    return g * a + (1 - g) * b
```

```python
import re
TRANS=("v_exp_f32","v_log_f32","v_rcp_f32","v_rsq_f32","v_sqrt_f32","v_sin_f32","v_cos_f32")
def regs_of(tok):
    tok=tok.strip()
    tok=tok.lstrip("-")
    m=re.fullmatch(r"abs\((.*)\)",tok)
    if m: tok=m.group(1)
    m=re.fullmatch(r"([vas])(\d+)",tok)
    if m: return {(m.group(1),int(m.group(2)))}
    m=re.fullmatch(r"([vas])\[(\d+):(\d+)\]",tok)
    if m: return {(m.group(1),i) for i in range(int(m.group(2)),int(m.group(3))+1)}
    if tok=="vcc": return {("s","vcc")}
    if tok=="exec": return {("s","exec")}
    if tok=="m0": return {("s","m0")}
    return set()
class Ins:
    __slots__=("text","op","rd","wr","cls","tag","waittags","lgkm","srcC","ab","data","note","flush")
    def __init__(s,text,tag=None):
        s.text=text; s.tag=tag; s.waittags=None; s.lgkm=None; s.srcC=set(); s.ab=set(); s.data=set(); s.note=None; s.flush=False
        s.rd=set(); s.wr=set()
        t=text.strip()
        if t.endswith(":") or t.startswith(".") or t.startswith(";") or not t:
            s.op=t; s.cls="label" if t.endswith(":") else "dir"; return
        p=t.split(None,1); s.op=p[0]; rest=p[1] if len(p)>1 else ""
        ops=[x.strip() for x in rest.split(",")]
        mods=""
        if ops:
            q=ops[-1].split()
            if q: ops[-1]=q[0]; mods=" ".join(q[1:])
        R=[regs_of(o) for o in ops]
        op=s.op.replace("_e64","").replace("_e32","")
        if op.startswith("v_mfma"):
            s.cls="mfma"; s.wr=R[0]; s.ab=R[1]|R[2]; s.srcC=R[3]; s.rd=s.ab|s.srcC
        elif op.startswith("v_permlane"):
            s.cls="valu"; s.wr=R[0]|R[1]; s.rd=R[0]|R[1]
        elif op.startswith("v_cmp"):
            s.cls="valu"; s.wr=R[0]; s.rd=set().union(*R[1:])
        elif op.startswith("v_"):
            s.cls="valu"; s.wr=R[0]; s.rd=set().union(*R[1:]) if len(R)>1 else set()
            if op in("v_fmac_f32",): s.rd|=R[0]
            if op=="v_cndmask_b32" and len(R)==3: s.rd|={("s","vcc")}
            if op in ("v_add_co_u32","v_addc_co_u32"): s.wr|=R[1]
        elif op.startswith("ds_read") or op.startswith("ds_bpermute") or op.startswith("ds_swizzle"):
            s.cls="ds"; s.wr=R[0]; s.rd=set().union(*R[1:])
        elif op.startswith("ds_write"):
            s.cls="ds"; s.rd=set().union(*R)
        elif op.startswith("buffer_load"):
            s.cls="vm"
            if "lds" in mods.split():
                s.rd=set().union(*R)|{("s","m0")}
            else:
                s.wr=R[0]; s.rd=set().union(*R[1:])
        elif op.startswith("global_load"):
            s.cls="vm"; s.wr=R[0]; s.rd=set().union(*R[1:])
        elif op.startswith("buffer_store") or op.startswith("buffer_atomic"):
            s.cls="vm"; s.rd=set().union(*R)
            if "x4" in op or "x3" in op: s.data=R[0]
            if op.startswith("buffer_atomic") and "sc0" in mods.split(): s.wr=R[0]
        elif op.startswith("global_store"):
            s.cls="vm"; s.rd=set().union(*R)
            if "x4" in op or "x3" in op: s.data=R[1]
        elif op.startswith("s_load") or op.startswith("s_memtime") or op.startswith("s_memrealtime"):
            s.cls="smem"; s.wr=R[0]; s.rd=set().union(*R[1:]) if len(R)>1 else set()
        elif op in("s_waitcnt","s_barrier","s_nop","s_endpgm","s_sleep","s_setprio") or op.startswith("s_cbranch") or op=="s_branch":
            s.cls="ctl"
            if op in("s_cbranch_vccz","s_cbranch_vccnz"): s.rd={("s","vcc")}
        elif op.startswith("s_cmp"):
            s.cls="salu"; s.rd=set().union(*R)
        elif op.startswith("s_"):
            s.cls="salu"; s.wr=R[0]; s.rd=set().union(*R[1:]) if len(R)>1 else set()
            if op in("s_addk_i32","s_mulk_i32"): s.rd|=R[0]
            if "saveexec" in op: s.wr|={("s","exec")}
        else:
            raise ValueError("unknown op "+t)
    def states(s):
        if s.cls in("label","dir"): return 0
        if s.op=="s_nop": return int(s.text.split()[1])+1
        return 1
def I(text,tag=None): return Ins(text,tag)
def WAIT(vm=None,lgkm=None):
    i=Ins("s_waitcnt vmcnt(0)"); i.waittags=vm; i.lgkm=lgkm; return i
def isvg(r): return r[0] in("v","a")
def need(p,c):
    n=0
    pop=p.op.replace("_e64","").replace("_e32",""); cop=c.op.replace("_e64","").replace("_e32","")
    if p.cls=="valu":
        vw={r for r in p.wr if isvg(r)}; sw={r for r in p.wr if r[0]=="s"}
        if c.cls=="mfma" and vw&c.rd: n=max(n,2)
        if cop.startswith("v_permlane") and vw&c.rd: n=max(n,2)
        if "dpp" in c.text or "row_" in c.text:
            if vw&c.rd: n=max(n,2)
        if pop in TRANS and c.cls=="valu" and cop not in TRANS and vw&c.rd: n=max(n,1)
        if c.cls=="valu" and sw&c.rd: n=max(n,2)
        if cop in("v_readfirstlane_b32","v_readlane_b32") and vw&c.rd: n=max(n,1)
        if c.cls=="vm" and sw&c.rd: n=max(n,5)
        if c.cls in("salu","ctl") and sw&c.rd: n=max(n,2)
    if p.cls=="mfma":
        big = "32x32" in p.op
        a,b,w=(12,10,7) if big else (8,6,3)
        if c.cls=="mfma":
            if p.wr&c.ab: n=max(n,a)
            if p.wr&c.srcC and (p.wr!=c.srcC or p.op!=c.op): n=max(n,b)
            if p.wr&c.wr and not (p.wr==c.srcC): n=max(n,b)
        elif c.cls in("valu","vm","ds"):
            if p.wr&(c.rd|c.wr): n=max(n,a)
            if c.cls=="valu" and p.srcC&c.wr: n=max(n,w)
    if p.cls=="salu" and ("s","m0") in p.wr and c.cls=="vm" and ("s","m0") in c.rd: n=max(n,1)
    if p.cls=="vm" and p.data:
        if c.cls=="valu" and p.data&c.wr: n=max(n,2)
        elif p.data&c.wr: n=max(n,1)
    return n
def finalize(ins, name=""):
    out=[]; vmq=[]; dsq=[]; smq=set(); nops=0
    for x in ins:
        if x.flush: vmq=[]
        if x.op=="s_waitcnt" and (x.waittags is not None or x.lgkm is not None):
            parts=[]
            if x.waittags is not None:
                if x.waittags==0: n=0
                else:
                    tg=set(x.waittags); idx=[k for k,(t,_) in enumerate(vmq) if t in tg]
                    n=len(vmq)-1-idx[-1] if idx else None
                if n is not None:
                    n=min(n,63); parts.append(f"vmcnt({n})")
            if x.lgkm is not None: parts.append(f"lgkmcnt({x.lgkm})")
            if not parts: continue
            x.text="s_waitcnt "+" ".join(parts)
        if x.op=="s_waitcnt":
            m=re.search(r"vmcnt\((\d+)\)",x.text)
            if m:
                n=int(m.group(1)); vmq=vmq[len(vmq)-n:] if n<len(vmq) and n>0 else ([] if n==0 else vmq)
            m=re.search(r"lgkmcnt\((\d+)\)",x.text)
            if m:
                n=int(m.group(1)); dsq=dsq[len(dsq)-n:] if n<len(dsq) and n>0 else ([] if n==0 else dsq)
                if n==0: smq=set()
        if x.cls not in("label","dir"):
            touch=x.rd|x.wr
            for (t,w) in vmq:
                if w&touch: raise Exception(f"{name}: use of pending vm dest {sorted(w&touch)[:2]} in: {x.text}")
            for w in dsq:
                if w&touch: raise Exception(f"{name}: use of pending ds dest {sorted(w&touch)[:2]} in: {x.text}")
            if smq&touch: raise Exception(f"{name}: use of pending smem dest in: {x.text}")
            d=0; req=0
            for p in reversed(out):
                if d>=12: break
                if p.cls not in("label","dir"):
                    req=max(req,need(p,x)-d)
                d+=p.states()
            if req>0:
                out.append(Ins(f"s_nop {req-1}")); nops+=1
        out.append(x)
        if x.cls=="vm": vmq.append((x.tag,set(x.wr)))
        if x.cls=="ds": dsq.append(set(x.wr))
        if x.cls=="smem": smq|=x.wr
        if len(vmq)>63: pass
    return out,nops
def weave(mf, fillers):
    gaps=[[] for _ in mf]
    for k,(pos,x) in enumerate(sorted(enumerate(fillers),key=lambda e:(e[1][0],e[0]))):
        p,x=x
        gaps[max(0,min(len(mf)-1,int(p)))].append(x)
    o=[]
    for m,g in zip(mf,gaps):
        o.append(m); o+=g
    return o
def spread(lst,a,b):
    n=len(lst)
    return [(a+(b-a)*k/n,x) for k,x in enumerate(lst)]
```

```python
import sys, math
from isa import *
NAME="gated_mix__sliding_local_dilated__swiglu_ffn__prompt"
OPT=dict(stamp=0, epi_p0=14, epi_p1=24, sigA=13, pollB_after=4, pollO_after=10)
for a in sys.argv[2:]:
    k,v=a.split("="); OPT[k]=int(v)
H0=0x100000; NT=130; S0=0x80000; SSTR=2176*4; STAMP0=0xC00000; WSN=0x1000000
OOB=0x80000000
X,WA,WU,WD,WO,WS,OUT,DBG,GW=4,8,12,16,20,24,28,32,36
def srd(b): return f"s[{b}:{b+3}]"
def vr(b,n=1): return f"v{b}" if n==1 else f"v[{b}:{b+n-1}]"
def ar(b,n=1): return f"a{b}" if n==1 else f"a[{b}:{b+n-1}]"
P=[]
def e(t,tag=None):
    x=I(t,tag); P.append(x); return x
_l=[0]
def lab(p="L"):
    _l[0]+=1; return f"{p}{_l[0]}"
def mksrd(b,src,n,bias=0):
    if bias:
        e(f"s_sub_u32 s{b}, s{src}, {bias}"); e(f"s_subb_u32 s{b+1}, s{src+1}, 0")
    else:
        e(f"s_mov_b64 s[{b}:{b+1}], s[{src}:{src+1}]")
    e(f"s_mov_b32 s{b+2}, {n+bias}"); e(f"s_mov_b32 s{b+3}, 0x20000")
def mfma(d,a,b,c): return I(f"v_mfma_f32_16x16x32_bf16 {d}, {a}, {b}, {c}")
sW,sXCD,sJ,sI=62,63,64,65
sT=[66,67,68,69,70,71]
sSTB=98
nstamp=[0]
def stamp(idx):
    if not OPT['stamp']: return []
    o=[I("s_memrealtime s[94:95]"),I("s_memtime s[96:97]"),I("s_waitcnt lgkmcnt(0)"),
       I("v_mov_b32 v254, s94"),I("v_mov_b32 v255, s96"),
       I(f"buffer_store_dwordx2 v[254:255], v253, {srd(WS)}, s{sSTB} offen offset:{idx*8}","stamp")]
    return o
def spin(addrv, off, cmpval, srdb, res=12):
    L=lab("SP"); D=lab("SD")
    e("s_mov_b32 s92, 0")
    e(L+":")
    e(f"buffer_load_dword v{res}, v{addrv}, {srd(srdb)}, 0 offen offset:{off} sc1","poll")
    e("s_waitcnt vmcnt(0)")
    e(f"v_cmp_ne_u32 vcc, {cmpval}, v{res}")
    e(f"s_cbranch_vccz {D}")
    e("s_add_u32 s92, s92, 1")
    e("s_cmp_lt_u32 s92, 0x40000")
    e("s_sleep 1")
    e(f"s_cbranch_scc1 {L}")
    e(D+":")
def check_or_spin(addrv, off, cmpval, srdb, res):
    D=lab("CK")
    e(f"v_cmp_ne_u32 vcc, {cmpval}, v{res}")
    e(f"s_cbranch_vccz {D}")
    spin(addrv,off,cmpval,srdb,res)
    e(D+":")

def common_prologue():
    e("s_cmp_ge_u32 s2, 256"); e("s_cbranch_scc1 L_exit")
    e("s_load_dwordx16 s[40:55], s[0:1], 0")
    e("s_load_dwordx4 s[56:59], s[0:1], 64")
    e("s_load_dwordx2 s[60:61], s[0:1], 80")
    e("v_lshrrev_b32 v1, 6, v0")
    e(f"s_and_b32 s{sXCD}, s2, 7"); e(f"s_lshr_b32 s{sJ}, s2, 3")
    e(f"v_readfirstlane_b32 s{sW}, v1")
    e("v_and_b32 v0, 63, v0")
    if OPT['stamp']:
        e(f"s_lshl_b32 s{sSTB}, s2, 2"); e(f"s_add_u32 s{sSTB}, s{sSTB}, s{sW}"); e(f"s_lshl_b32 s{sSTB}, s{sSTB}, 8")
        e(f"s_add_u32 s{sSTB}, s{sSTB}, {STAMP0}")
        e(f"v_mov_b32 v253, {OOB}"); e("v_cmp_eq_u32 vcc, 0, v0"); e("v_cndmask_b32 v253, v253, v0, vcc")
    e(f"s_cmp_lt_u32 s{sJ}, 8"); e("s_cbranch_scc1 L_attn")
    e(f"s_cmp_eq_u32 s{sJ}, 8"); e("s_cbranch_scc1 L_spare")

def dma(voff,sr,soff,imm,tag): return I(f"buffer_load_dwordx4 v{voff}, {srd(sr)}, {soff} offen offset:{imm} lds",tag)

def ffn():
    sSL,sTT,sT2,sN=72,73,74,75
    sSeg1,sSeg2,sXb=76,77,78
    sXo=[None,79,80,81,82]
    sW1o=83; sW2o=[None,84,85,86]
    sHst,sHld,sC=87,88,89
    vX,vW,vXR,vWR,vW2,vH,vH4,vFl,vOne,vPoll,vPA=1,2,(3,4),(5,6),7,8,9,10,11,12,13
    ACC=lambda p,q,t: 16+80*p+(q*5+t)*4
    def XF(i): return ar(4*i,4) if i<64 else vr(176+4*(i-64),4)
    AF=lambda buf,q: 200+16*buf+4*q
    t0,t1,t2_,t3=sT[:4]
    e(f"s_sub_u32 s{sI}, s{sJ}, 9")
    e(f"s_and_b32 s{t0}, s{sXCD}, 3"); e(f"s_cmp_eq_u32 s{t0}, 3"); e(f"s_cselect_b32 s{t0}, 22, 23")
    e(f"s_cmp_ge_u32 s{sI}, s{t0}"); e("s_cbranch_scc1 L_exit")
    e(f"s_mul_i32 s{t0}, s{sXCD}, 23"); e(f"s_add_u32 s{sI}, s{sI}, s{t0}")
    e(f"s_lshr_b32 s{t0}, s{sXCD}, 2"); e(f"s_sub_u32 s{sI}, s{sI}, s{t0}")
    e(f"s_mul_i32 s{sT2}, s{sI}, 9363"); e(f"s_lshr_b32 s{sT2}, s{sT2}, 16")
    e(f"s_mul_i32 s{t0}, s{sT2}, 7"); e(f"s_sub_u32 s{sN}, s{sI}, s{t0}")
    e(f"s_sub_u32 s{t0}, s{sI}, 98"); e(f"s_mul_i32 s{t1}, s{t0}, 10923"); e(f"s_lshr_b32 s{t1}, s{t1}, 16")
    e(f"s_mul_i32 s{t2_}, s{t1}, 6"); e(f"s_sub_u32 s{t0}, s{t0}, s{t2_}"); e(f"s_add_u32 s{t0}, s{t0}, 7")
    e(f"s_cmp_lt_u32 s{sI}, 98"); e(f"s_cselect_b32 s{sSL}, s{sT2}, s{t1}"); e(f"s_cselect_b32 s{sTT}, s{sN}, s{t0}")
    e("v_lshrrev_b32 v14, 3, v0")
    e("v_and_b32 v15, 7, v0")
    e(f"s_and_b32 s{t0}, s{sW}, 1"); e(f"s_lshl_b32 s{t1}, s{t0}, 2")
    e("v_lshrrev_b32 v12, 1, v14"); e(f"v_or_b32 v13, s{t1}, v12"); e("v_xor_b32 v13, v13, v15"); e("v_lshlrev_b32 v13, 4, v13")
    e(f"s_mul_i32 s{t2_}, s{sTT}, 160"); e(f"s_lshl_b32 s{t3}, s{sW}, 3"); e(f"s_add_u32 s{t2_}, s{t2_}, s{t3}")
    e(f"v_add_u32 v{vX}, s{t2_}, v14"); e(f"v_mul_u32_u24 v{vX}, 896, v{vX}"); e(f"v_add_u32 v{vX}, v{vX}, v13")
    e(f"s_lshl_b32 s{t0}, s{t0}, 1")
    e("v_and_b32 v13, 1, v12"); e(f"v_or_b32 v13, s{t0}, v13"); e("v_lshlrev_b32 v13, 1, v13"); e("v_xor_b32 v13, v13, v15"); e("v_lshlrev_b32 v13, 4, v13")
    e(f"v_add_u32 v{vW}, s{t3}, v14"); e(f"v_mul_u32_u24 v{vW}, 3584, v{vW}"); e(f"v_add_u32 v{vW}, v{vW}, v13")
    e(f"s_lshl_b32 s{t0}, s{sSL}, 8"); e(f"v_add_u32 v{vW}, s{t0}, v{vW}")
    e(f"s_lshl_b32 s{sSeg2}, s{sW}, 12")
    e(f"s_lshl_b32 s{sXb}, s{sW}, 10"); e(f"s_add_u32 s{sXb}, s{sXb}, 65536")
    for j in range(1,5): e(f"s_mov_b32 s{sXo[j]}, {32*j*896}")
    e(f"s_mov_b32 s{sW1o}, {32*3584-1024}")
    e("s_waitcnt lgkmcnt(0)")
    mksrd(X,40,1835008); mksrd(WA,48,1605632); mksrd(WU,50,1605632,2048)
    if OPT['stamp']: mksrd(WS,60,WSN); P.extend(stamp(0))
    def xdma(c):
        o=[]
        for j in range(5):
            o.append(I(f"s_add_u32 m0, s{sXb}, {(c%4)*20480+j*4096}"))
            o.append(dma(vX,X,"0" if j==0 else f"s{sXo[j]}",0,f"x{c}"))
        o.append(I(f"v_add_u32 v{vX}, 128, v{vX}"))
        return o
    def wdma(s):
        o=[I(f"s_add_u32 m0, s{sSeg2}, {(s%4)*16384}")]
        for m in range(2):
            for j in range(2):
                o.append(dma(vW,WA if m==0 else WU,"0" if j==0 else f"s{sW1o}",(2*m+j)*1024,f"w{s}"))
        d = 64*3584 if s!=6 else (128-6*64*3584)&0xffffffff
        o.append(I(f"v_add_u32 v{vW}, {d}, v{vW}"))
        return o
    for s in range(4):
        P.extend(xdma(s)); P.extend(wdma(s))
    if not OPT['stamp']: mksrd(WS,60,WSN)
    mksrd(WD,52,1605632); mksrd(WO,44,401408); mksrd(OUT,56,1835008); mksrd(DBG,58,256)
    e("v_lshrrev_b32 v14, 4, v0")
    e("v_and_b32 v15, 15, v0")
    e("v_lshrrev_b32 v12, 1, v15"); e("v_xor_b32 v12, v12, v14"); e("v_lshlrev_b32 v12, 4, v12")
    e("v_lshlrev_b32 v13, 7, v15"); e("v_add_u32 v12, v12, v13")
    e(f"s_lshr_b32 s{t0}, s{sW}, 1"); e(f"s_mul_i32 s{t0}, s{t0}, 10240"); e(f"s_add_u32 s{t0}, s{t0}, 65536")
    e(f"v_add_u32 v{vXR[0]}, s{t0}, v12"); e(f"v_xor_b32 v{vXR[1]}, 64, v{vXR[0]}")
    e("v_bfe_u32 v12, v0, 2, 2")
    e("v_lshrrev_b32 v13, 1, v12"); e("v_and_b32 v15, 1, v14"); e("v_lshlrev_b32 v15, 1, v15"); e("v_or_b32 v13, v13, v15")
    e(f"s_and_b32 s{t0}, s{sW}, 1"); e(f"s_lshl_b32 s{t0}, s{t0}, 1"); e(f"v_xor_b32 v13, s{t0}, v13"); e("v_lshlrev_b32 v13, 5, v13")
    e("v_lshlrev_b32 v15, 12, v14"); e("v_add_u32 v13, v13, v15"); e("v_lshlrev_b32 v15, 7, v12"); e("v_add_u32 v13, v13, v15")
    e("v_and_b32 v15, 3, v0"); e("v_lshlrev_b32 v15, 3, v15"); e(f"v_add_u32 v{vWR[0]}, v13, v15"); e(f"v_xor_b32 v{vWR[1]}, 32, v{vWR[0]}")
    e("v_lshrrev_b32 v12, 3, v0"); e("v_and_b32 v13, 6, v12"); e("v_and_b32 v15, 7, v0"); e("v_xor_b32 v13, v13, v15"); e("v_lshlrev_b32 v13, 4, v13")
    e("v_mul_u32_u24 v12, 896, v12"); e(f"v_add_u32 v{vW2}, v12, v13")
    e(f"s_lshr_b32 s{t0}, s{sW}, 1"); e(f"s_mul_i32 s{t0}, s{t0}, 28"); e(f"s_and_b32 s{t1}, s{sW}, 1"); e(f"s_add_u32 s{t0}, s{t0}, s{t1}")
    e(f"s_mul_i32 s{t1}, s{t0}, {32*896}"); e(f"s_lshl_b32 s{t2_}, s{sN}, 7"); e(f"s_add_u32 s{t1}, s{t1}, s{t2_}"); e(f"v_add_u32 v{vW2}, s{t1}, v{vW2}")
    e(f"s_mul_i32 s{t0}, s{t0}, {NT}"); e(f"s_mul_i32 s{t1}, s{sT2}, 5"); e(f"s_add_u32 s{t0}, s{t0}, s{t1}"); e(f"s_lshl_b32 s{t0}, s{t0}, 10"); e(f"s_add_u32 s{sHld}, s{t0}, {H0}")
    e(f"s_lshl_b32 s{t0}, s{sSL}, 2"); e(f"s_and_b32 s{t1}, s{sW}, 1"); e(f"s_add_u32 s{t0}, s{t0}, s{t1}"); e(f"s_mul_i32 s{t0}, s{t0}, {NT}")
    e(f"s_mul_i32 s{t1}, s{sTT}, 10"); e(f"s_add_u32 s{t0}, s{t0}, s{t1}"); e(f"s_lshr_b32 s{t1}, s{sW}, 1"); e(f"s_mul_i32 s{t1}, s{t1}, 5"); e(f"s_add_u32 s{t0}, s{t0}, s{t1}")
    e(f"s_lshl_b32 s{t0}, s{t0}, 10"); e(f"s_add_u32 s{sHst}, s{t0}, {H0}")
    e(f"v_lshlrev_b32 v{vH}, 4, v0"); e(f"v_add_u32 v{vH4}, 4096, v{vH}")
    e(f"s_mul_i32 s{sSeg1}, s{sW}, 24576"); e(f"s_add_u32 s{sSeg1}, s{sSeg1}, 65536")
    for j in range(1,4): e(f"s_mov_b32 s{sW2o[j]}, {6144*j}")
    e(f"s_mov_b32 s{sC}, 0xbfb8aa3b")
    e(f"s_lshl_b32 s{t0}, s{sTT}, 9"); e(f"s_cmp_eq_u32 s{sW}, 0"); e(f"s_cselect_b32 s{t0}, s{t0}, {OOB}")
    e(f"v_mov_b32 v{vFl}, {OOB}"); e(f"v_mov_b32 v12, s{t0}"); e("v_cmp_eq_u32 vcc, 0, v0"); e(f"v_cndmask_b32 v{vFl}, v{vFl}, v12, vcc")
    e(f"v_mov_b32 v{vOne}, 1")
    e(f"s_lshr_b32 s{t0}, s{sT2}, 1"); e(f"s_lshl_b32 s{t0}, s{t0}, 9"); e(f"v_mov_b32 v{vPA}, s{t0}")
    e("v_mov_b32 v15, 0")
    def reads(Pn):
        p,s,ks=Pn//14,Pn//2,Pn%2
        o=[]
        if p==0:
            if s==3: o.append(I(f"v_add_u32 v{vXR[ks]}, 61440, v{vXR[ks]}"))
            for t in range(5): o.append(I(f"ds_read_b128 {XF(Pn*5+t)}, v{vXR[ks]} offset:{(s%4 if s!=3 else 0)*20480+t*2048}"))
            if s==3: o.append(I(f"v_subrev_u32 v{vXR[ks]}, 61440, v{vXR[ks]}"))
        tr=[]
        for q in range(4):
            for a in range(2):
                tr.append(I(f"ds_read_b64_tr_b16 {vr(AF(Pn%2,q)+2*a,2)}, v{vWR[q&1]} offset:{(s%4)*16384+(2*(q>>1)+ks)*1024+a*512}"))
        return tr[:2]+o+tr[2:]
    def epi(p,t):
        T=[232+k for k in range(8)]; O=240+4*(t%2)
        G=[ACC(p,k>>2,t)+(k&3) for k in range(8)]; U=[ACC(p,2+(k>>2),t)+(k&3) for k in range(8)]
        o=[]
        for k in range(8): o.append(I(f"v_mul_f32 v{T[k]}, s{sC}, v{G[k]}"))
        for k in range(8):
            o.append(I(f"v_exp_f32 v{T[k]}, v{T[k]}")); o.append(I(f"v_mul_f32 v{U[k]}, v{G[k]}, v{U[k]}"))
        for k in range(8): o.append(I(f"v_add_f32 v{T[k]}, 1.0, v{T[k]}"))
        for k in range(8):
            o.append(I(f"v_rcp_f32 v{T[k]}, v{T[k]}"))
            if k>=1: o.append(I(f"v_mul_f32 v{T[k-1]}, v{T[k-1]}, v{U[k-1]}"))
            if k>=3 and k%2==1: o.append(I(f"v_cvt_pk_bf16_f32 v{O+(k-3)//2}, v{T[k-3]}, v{T[k-2]}"))
        o.append(I(f"v_mul_f32 v{T[7]}, v{T[7]}, v{U[7]}"))
        o.append(I(f"v_cvt_pk_bf16_f32 v{O+3}, v{T[6]}, v{T[7]}"))
        o.append(I(f"buffer_store_dwordx4 {vr(O,4)}, v{vH if t<4 else vH4}, {srd(WS)}, s{sHst} offen offset:{(t%4)*1024} sc1",f"st{p}"))
        return o
    def blkloc(b):
        if b<6: return (sSeg1,b*4096)
        if b<10: return (sSeg2,((b+4)%4)*16384)
        if b<16: return (sSeg1,(b-10)*4096)
        return (sSeg2,((b-10+4)%4)*16384)
    w2issued=[0]
    def w2dma(b):
        assert b==w2issued[0]; w2issued[0]+=1
        sg,off=blkloc(b)
        o=[I(f"s_add_u32 m0, s{sg}, {off}")]
        for pi in range(4): o.append(dma(vW2,WD if b<14 else WO,"0" if pi==0 else f"s{sW2o[pi]}",pi*1024,f"b{b}"))
        if b==6: o.append(I(f"v_add_u32 v{vW2}, {(64*896-6*114688)&0xffffffff}, v{vW2}"))
        elif b==13: o.append(I(f"v_add_u32 v{vW2}, s{sT[4]}, v{vW2}"))
        elif b<13: o.append(I(f"v_add_u32 v{vW2}, 114688, v{vW2}"))
        elif b<17: o.append(I(f"v_add_u32 v{vW2}, {28*896}, v{vW2}"))
        return o
    e(f"s_lshr_b32 s{t0}, s{sW}, 1"); e(f"s_mul_i32 s{t0}, s{t0}, 28"); e(f"s_and_b32 s{t1}, s{sW}, 1"); e(f"s_add_u32 s{t0}, s{t0}, s{t1}"); e(f"s_add_u32 s{t0}, s{t0}, 26")
    e(f"s_mul_i32 s{t0}, s{t0}, {32*896}"); e(f"s_mul_i32 s{t1}, s{sW}, {112*896}"); e(f"s_sub_u32 s{sT[4]}, s{t1}, s{t0}")
    P.append(WAIT(vm=["x0","w0"])); e("s_barrier")
    P.extend(stamp(1))
    P.extend(reads(0)); P.append(WAIT(lgkm=0))
    epiA=[]
    for t in range(5): epiA+=epi(0,t)
    p0,p1=OPT['epi_p0'],OPT['epi_p1']
    w2sched={6:[0],7:[1],8:[2],9:[3],10:[4],11:[5,6],12:[7,8],13:[9]}
    w2sched={6:[0],7:[1],8:[2],9:[3],10:[4,5],11:[6,7],12:[8],13:[9]}
    for Pn in range(28):
        p,s,ks=Pn//14,Pn//2,Pn%2
        mf=[]
        for q in range(4):
            for t in range(5):
                d=vr(ACC(p,q,t),4)
                mf.append(mfma(d,vr(AF(Pn%2,q),4),XF((Pn%14)*5+t),"0" if Pn%14==0 else d))
        f=[]
        if Pn<27: f+=spread(reads(Pn+1),0,13 if p==0 and Pn<13 else 12)
        if ks==1:
            dm=[]
            if s+4<=6: dm+=xdma(s+4)
            if s+4<=13: dm+=wdma(s+4)
            for b in w2sched.get(s,[]): dm+=w2dma(b)
            if s==4: dm.append(I(f"buffer_load_dword v14, v15, {srd(DBG)}, 0 offen sc1","clr"))
            if dm: f+=spread(dm,1.5,19.9)
        if p0<=Pn<p1:
            n=len(epiA); k0=n*(Pn-p0)//(p1-p0); k1=n*(Pn+1-p0)//(p1-p0)
            f+=spread(epiA[k0:k1],0.7,19.9)
        P.extend(weave(mf,f))
        if Pn==13: P.extend(stamp(2))
        if ks==0:
            tags=[f"w{s+1}",f"x{s+1}"]
            if s==OPT['sigA']: tags+=["st0","clr"]
            P.append(WAIT(vm=tags,lgkm=0));
            if s==OPT['sigA']: check_or_spin(15,0,1,DBG,14)
            e("s_barrier")
            if s==OPT['sigA']:
                e(f"buffer_atomic_add v{vOne}, v{vFl}, {srd(WS)}, 0 offen","sigA")
        elif Pn<27: P.append(WAIT(lgkm=0))
    P.extend(stamp(3))
    e(f"buffer_load_dword v{vPoll}, v{vPA}, {srd(WS)}, 0 offen sc1","pollA")
    e(f"s_add_u32 s{sHst}, s{sHst}, {2*NT*1024}")
    R1,R2=176,180
    e("v_lshrrev_b32 v14, 4, v0")
    e("v_bfe_u32 v15, v0, 2, 2")
    e("v_and_b32 v184, 1, v14"); e("v_lshl_add_u32 v184, v184, 2, v15")
    e("v_lshrrev_b32 v185, 1, v14"); e("v_lshlrev_b32 v185, 10, v185"); e("v_lshl_add_u32 v185, v184, 7, v185")
    e("v_and_b32 v186, 3, v0"); e("v_lshl_add_u32 v185, v186, 3, v185")
    e("v_lshrrev_b32 v184, 1, v184")
    for q in range(4):
        e(f"s_add_u32 s{t0}, s{sW}, {q}"); e(f"s_and_b32 s{t0}, s{t0}, 3")
        e(f"v_xor_b32 v186, s{t0}, v184"); e(f"v_lshl_add_u32 v186, v186, 5, v185")
        e(f"v_add_u32 v{R1+q}, s{sSeg1}, v186"); e(f"v_add_u32 v{R2+q}, s{sSeg2}, v186")
    for t in range(5): P.extend(epi(1,t))
    P.extend(stamp(4))
    HS=lambda b: (b%12)*20
    def hload(b):
        o=[]
        for t in range(5):
            o.append(I(f"buffer_load_dwordx4 {ar(HS(b)+4*t,4)}, v{vH if t<4 else vH4}, {srd(WS)}, s{sHld} offen offset:{(t%4)*1024} sc1",f"h{b}"))
        if b==6: o.append(I(f"s_sub_u32 s{sHld}, s{sHld}, {(24-2)*NT*1024}"))
        elif b==13: o.append(I(f"s_add_u32 s{sHld}, s{sHld}, s{sT[5]}"))
        elif b<13: o.append(I(f"s_add_u32 s{sHld}, s{sHld}, {4*NT*1024}"))
        else: o.append(I(f"s_add_u32 s{sHld}, s{sHld}, {NT*1024}"))
        return o
    e(f"s_lshr_b32 s{t0}, s{sW}, 1"); e(f"s_mul_i32 s{t0}, s{t0}, 28"); e(f"s_and_b32 s{t1}, s{sW}, 1"); e(f"s_add_u32 s{t0}, s{t0}, s{t1}")
    e(f"s_lshl_b32 s{t1}, s{sW}, 2"); e(f"s_add_u32 s{t1}, s{t1}, 30"); e(f"s_sub_u32 s{t0}, s{t1}, s{t0}"); e(f"s_mul_i32 s{sT[5]}, s{t0}, {NT*1024}")
    LY=lab("PY"); LM=lab("PM")
    P.append(WAIT(vm=["pollA"]))
    e(f"v_cmp_ne_u32 vcc, 14, v{vPoll}")
    e(f"s_cbranch_vccnz {LY}")
    for b in range(4):
        for x in hload(b):
            x.wr=set(); x.cls="raw" if x.cls=="vm" else x.cls; P.append(x)
    e("s_waitcnt vmcnt(20)").cls="raw"; P[-1].op="raw"
    e("s_barrier")
    x=e(f"buffer_atomic_add v{vOne}, v{vFl}, {srd(WS)}, 0 offen offset:256"); x.cls="raw"
    e(f"s_branch {LM}")
    e(LY+":")
    P.append(WAIT(vm=["st1"])); e("s_barrier")
    e(f"buffer_atomic_add v{vOne}, v{vFl}, {srd(WS)}, 0 offen offset:256","sigB")
    spin(vPA,0,14,WS,vPoll)
    for b in range(4): P.extend(hload(b))
    e(LM+":")
    for b in range(4,7): P.extend(hload(b))
    P.extend(stamp(5))
    e(f"s_mul_i32 s{t0}, s{sT2}, 80"); e(f"s_add_u32 s{t1}, s{t0}, 79"); e(f"s_lshr_b32 s{t2_}, s{t0}, 7"); e(f"s_lshr_b32 s{t1}, s{t1}, 7"); e(f"s_min_u32 s{t1}, s{t1}, 15")
    for r in (t2_,t1):
        e(f"s_lshl_b32 s{r}, s{r}, 2"); e(f"s_add_u32 s{r}, s{r}, s{sW}"); e(f"s_add_u32 s{r}, s{r}, 32"); e(f"s_lshl_b32 s{r}, s{r}, 8")
    vPO,vS,vSA,vO=187,188,193,194
    e(f"v_mov_b32 v{vPO}, s{t2_}"); e(f"v_mov_b32 v14, s{t1}"); e("v_cmp_lt_u32 vcc, 31, v0"); e(f"v_cndmask_b32 v{vPO}, v{vPO}, v14, vcc")
    e("v_and_b32 v14, 15, v0"); e(f"v_add_u32 v14, s{t0}, v14")
    e(f"s_mul_i32 s{t1}, s{sW}, {SSTR}"); e(f"s_add_u32 s{t1}, s{t1}, {S0}"); e(f"v_lshlrev_b32 v{vSA}, 2, v14"); e(f"v_add_u32 v{vSA}, s{t1}, v{vSA}")
    e("v_mul_u32_u24 v14, 896, v14"); e("v_lshrrev_b32 v15, 4, v0"); e("v_lshl_add_u32 v14, v15, 3, v14")
    e(f"s_lshl_b32 s{t1}, s{sN}, 7"); e(f"s_lshl_b32 s{t2_}, s{sW}, 5"); e(f"s_add_u32 s{t1}, s{t1}, s{t2_}"); e(f"v_add_u32 v{vO}, s{t1}, v14")
    def treads(b):
        sg,off=blkloc(b); base=R1 if sg==sSeg1 else R2
        return [I(f"ds_read_b64_tr_b16 {vr(AF(b%2,q)+2*a,2)}, v{base+q} offset:{off+a*2048}") for q in range(4) for a in range(2)]
    P.append(WAIT(vm=["b0"])); P.extend(treads(0))
    for b in range(18):
        mf=[]
        for q in range(4):
            for t in range(5):
                d=vr(ACC(0,q,t),4)
                mf.append(mfma(d,vr(AF(b%2,q),4),ar(HS(b)+4*t,4),"0" if b==0 else d))
        P.append(WAIT(vm=[f"h{b}",f"b{b+1}"],lgkm=0))
        if b==14:
            for q in range(4):
                for t in range(5):
                    for r in range(4): e(f"v_mul_f32 v{ACC(0,q,t)+r}, v{vS+t}, v{ACC(0,q,t)+r}")
        f=[]
        if b<17: f+=spread(treads(b+1),0,9)
        if b+10<18: f+=spread(w2dma(b+10),1.5,12)
        P.extend(weave(mf,f))
        if b==OPT['pollB_after']:
            spin(vPA,256,14,WS,vPoll); P.extend(stamp(6))
            for bb in range(7,14):
                assert bb-12<=b
                P.extend(hload(bb))
        if b==OPT['pollO_after']:
            spin(vPO,0,1,WS,vPoll); P.extend(stamp(7))
            for t in range(5): e(f"buffer_load_dword v{vS+t}, v{vSA}, {srd(WS)}, 0 offen offset:{t*64} sc1","s")
            for bb in range(14,18): P.extend(hload(bb))
    P.extend(stamp(8))
    e(f"v_add_u32 v14, s{sSeg1}, v{vH}")
    for q in range(1,4):
        e(f"s_sub_u32 s{t0}, s{sW}, {q}"); e(f"s_and_b32 s{t0}, s{t0}, 3"); e(f"s_mul_i32 s{t0}, s{t0}, 24576"); e(f"s_add_u32 s{t0}, s{t0}, {65536+(q-1)*5120}")
        e(f"v_add_u32 v{R2+q}, s{t0}, v{vH}")
    for q in range(1,4):
        for t in range(5): e(f"ds_write_b128 v14, {vr(ACC(0,q,t),4)} offset:{(q-1)*5120+t*1024}")
    P.append(WAIT(lgkm=0)); e("s_barrier")
    for t in range(5):
        for q in range(1,4): e(f"ds_read_b128 {vr(ACC(1,q,t),4)}, v{R2+q} offset:{t*1024}")
    for j in range(1,5): e(f"s_mov_b32 s{sXo[j]}, {16*j*896}")
    for t in range(5):
        e(f"s_waitcnt lgkmcnt({12-3*t})")
        d=ACC(0,0,t)
        for r in range(4): e(f"v_add_f32 v{ACC(1,1,t)+r}, v{ACC(1,1,t)+r}, v{ACC(1,2,t)+r}")
        for r in range(4): e(f"v_add_f32 v{d+r}, v{d+r}, v{ACC(1,3,t)+r}")
        for r in range(4): e(f"v_add_f32 v{d+r}, v{d+r}, v{ACC(1,1,t)+r}")
        e(f"v_cvt_pk_bf16_f32 v{d}, v{d}, v{d+1}"); e(f"v_cvt_pk_bf16_f32 v{d+1}, v{d+2}, v{d+3}")
        e(f"buffer_store_dwordx2 {vr(d,2)}, v{vO}, {srd(OUT)}, {'0' if t==0 else 's%d'%sXo[t]} offen","out")
    P.extend(stamp(9))
    e("s_endpgm")

def attn():
    sAT,sHG=72,73
    sXb,sWb=74,75
    sWo={(0,0):76,(0,1):77,(1,0):78,(1,1):79,(2,0):80,(2,1):81}
    sK,sD0,sD1,sO,sC=82,83,84,85,86
    mE,mM0,mM1,mZ=88,90,100,68
    t0,t1=66,67; t2_,t3=70,71
    vX=[1,2,3,4,5]; vW=6; vXR=(7,8); vR0=(9,10); vR1=(11,12); vRq=(13,14); vPad=15
    vA=(224,225)
    TBL=159744; XB=98304
    Q=lambda u,tl: 16+(u*2+tl)*4
    K=lambda t,tl: 80+(t*2+tl)*4
    V=lambda d,t: 152+d*36+t*4
    XA=lambda buf,t: buf*36+4*t
    WF=lambda buf,m,tl: 72+buf*24+(2*m+tl)*4
    e("L_attn:")
    e(f"s_lshr_b32 s{sAT}, s{sXCD}, 2"); e(f"s_lshl_b32 s{sAT}, s{sAT}, 3"); e(f"s_add_u32 s{sAT}, s{sAT}, s{sJ}"); e(f"s_and_b32 s{sHG}, s{sXCD}, 3")
    e("v_lshrrev_b32 v230, 3, v0"); e("v_and_b32 v231, 7, v0")
    e(f"s_and_b32 s{t0}, s{sW}, 1"); e(f"s_lshl_b32 s{t1}, s{t0}, 2")
    e("v_lshrrev_b32 v232, 1, v230"); e(f"v_or_b32 v232, s{t1}, v232"); e("v_xor_b32 v232, v232, v231"); e("v_lshlrev_b32 v232, 4, v232")
    e(f"s_lshl_b32 s{t2_}, s{sAT}, 7"); e(f"s_lshl_b32 s{t3}, s{sW}, 3"); e(f"s_add_u32 s{t2_}, s{t2_}, s{t3}")
    e(f"v_add_u32 v{vX[0]}, s{t2_}, v230"); e(f"v_mul_u32_u24 v{vX[0]}, 896, v{vX[0]}"); e(f"v_add_u32 v{vX[0]}, v{vX[0]}, v232")
    for j in range(1,5): e(f"v_add_u32 v{vX[j]}, {32*j*896}, v{vX[0]}")
    e(f"s_cmp_lt_u32 s{t2_}, 16"); e(f"s_cselect_b32 s{t0}, {OOB}, 0"); e(f"v_or_b32 v{vX[0]}, s{t0}, v{vX[0]}")
    e(f"s_cmp_ge_u32 s{sW}, 2"); e(f"s_cselect_b32 s{t0}, {OOB}, 0"); e(f"v_or_b32 v{vX[4]}, s{t0}, v{vX[4]}")
    e("v_lshrrev_b32 v230, 4, v0"); e("v_and_b32 v231, 15, v0")
    e(f"s_and_b32 s{t0}, s{sW}, 2"); e(f"s_lshl_b32 s{t0}, s{t0}, 1"); e(f"v_or_b32 v232, s{t0}, v230"); e("v_lshlrev_b32 v232, 1, v232"); e("v_xor_b32 v232, v232, v231")
    e(f"s_lshl_b32 s{t0}, s{sW}, 2"); e(f"v_add_u32 v{vW}, s{t0}, v230"); e(f"v_mul_u32_u24 v{vW}, 2688, v{vW}")
    e(f"v_lshl_add_u32 v{vW}, v232, 4, v{vW}"); e(f"s_mul_i32 s{t0}, s{sHG}, 224"); e(f"v_add_u32 v{vW}, s{t0}, v{vW}")
    e(f"v_mov_b32 v233, {OOB}"); e("v_cmp_lt_u32 vcc, 13, v232"); e(f"v_cndmask_b32 v{vW}, v{vW}, v233, vcc")
    e(f"s_lshl_b32 s{sXb}, s{sW}, 10"); e(f"s_add_u32 s{sXb}, s{sXb}, {XB}")
    e(f"s_mul_i32 s{sWb}, s{sW}, 6144")
    for (m,j),r in sWo.items():
        imm=((2*m+j)%4)*1024
        e(f"s_mov_b32 s{r}, {4096+m*896+16*j*2688-imm}")
    e(f"s_lshl_b32 s{t0}, s{sW}, 6"); e(f"v_add_u32 v234, s{t0}, v0"); e("v_lshlrev_b32 v235, 2, v234")
    e("s_waitcnt lgkmcnt(0)")
    mksrd(GW,54,896); mksrd(X,40,1835008,14336); mksrd(WA,42,1204224,4096)
    if OPT['stamp']: mksrd(WS,60,WSN); P.extend(stamp(0))
    e(f"buffer_load_dword v236, v235, {srd(GW)}, 0 offen","gw")
    def xdma(c):
        o=[I(f"s_mov_b32 s{sK}, {128*c}")]
        for j in range(5):
            o.append(I(f"s_add_u32 m0, s{sXb}, {(c%3)*20480+j*4096}"))
            o.append(dma(vX[j],X,f"s{sK}",0,f"x{c}"))
        return o
    def wdma(k):
        o=[]
        for m in range(3):
            if m!=1: o.append(I(f"s_add_u32 m0, s{sWb}, {(k%4)*24576+(4096 if m==2 else 0)}"))
            for j in range(2): o.append(dma(vW,WA,f"s{sWo[(m,j)]}",((2*m+j)%4)*1024,f"w{k}"))
        o.append(I(f"v_add_u32 v{vW}, {32*2688}, v{vW}"))
        return o
    for z in (xdma(0),wdma(0),wdma(1),xdma(1),wdma(2),wdma(3),xdma(2)): P.extend(z)
    if not OPT['stamp']: mksrd(WS,60,WSN)
    mksrd(DBG,58,256)
    e("v_lshrrev_b32 v230, 4, v0"); e("v_and_b32 v231, 15, v0")
    e("v_lshrrev_b32 v232, 1, v231"); e("v_xor_b32 v232, v232, v230"); e("v_lshlrev_b32 v232, 4, v232")
    e("v_lshl_add_u32 v232, v231, 7, v232"); e(f"v_add_u32 v{vXR[0]}, {XB}, v232"); e(f"v_xor_b32 v{vXR[1]}, 64, v{vXR[0]}")
    e("v_bfe_u32 v232, v0, 2, 2"); e("v_and_b32 v233, 3, v0")
    e("v_and_b32 v237, 1, v230"); e("v_lshl_add_u32 v238, v237, 2, v232"); e("v_lshlrev_b32 v238, 2, v238")
    e("v_mul_u32_u24 v237, 12288, v237"); e("v_lshrrev_b32 v239, 1, v230"); e("v_lshl_add_u32 v237, v239, 10, v237"); e("v_lshl_add_u32 v237, v232, 8, v237")
    e(f"s_mul_i32 s{t0}, s{sW}, 7")
    e(f"v_add_u32 v239, s{t0}, v233")
    e("v_xor_b32 v240, v239, v238"); e(f"v_lshl_add_u32 v{vR0[0]}, v240, 3, v237")
    e("v_add_u32 v239, 4, v239")
    e("v_and_b32 v240, 3, v239"); e("v_or_b32 v240, 28, v240"); e("v_cmp_eq_u32 vcc, 3, v233"); e("v_cndmask_b32 v239, v239, v240, vcc")
    e("v_xor_b32 v240, v239, v238"); e(f"v_lshl_add_u32 v{vR1[0]}, v240, 3, v237")
    e(f"v_cndmask_b32 v{vPad}, 0, 1, vcc")
    e(f"v_add_u32 v{vR0[1]}, 49152, v{vR0[0]}"); e(f"v_add_u32 v{vR1[1]}, 49152, v{vR1[0]}")
    e("v_lshl_add_u32 v240, v230, 3, v232"); e("v_lshlrev_b32 v240, 3, v240"); e(f"v_add_u32 v240, {TBL}, v240")
    e(f"v_cndmask_b32 v{vRq[0]}, v{vR1[0]}, v240, vcc"); e(f"v_cndmask_b32 v{vRq[1]}, v{vR1[1]}, v240, vcc")
    P.append(WAIT(vm=["gw"]))
    e("v_and_b32 v244, 0xffff, v236"); e("v_mov_b32 v245, 0"); e("v_lshrrev_b32 v246, 16, v236"); e("v_mov_b32 v247, 0")
    e("v_lshlrev_b32 v234, 4, v234"); e(f"v_add_u32 v234, {TBL}, v234")
    e("ds_write_b128 v234, v[244:247]")
    def reads(k):
        sl=k%4; h=sl//2; buf=k%2
        pre=[]; tr=[]
        for a in range(2):
            imm=(sl%2)*24576+a*6144
            pre.append(I(f"s_mov_b32 s{(sD0,sD1)[a]}, {(256*k+32*a-imm)&0xffffffff}"))
            pre.append(I(f"v_mad_i32_i24 v{vA[a]}, v{vPad}, s{(sD0,sD1)[a]}, v{vRq[h]}"))
        for m in range(3):
            for tl in range(2):
                for a in range(2):
                    ad = vR0[h] if tl==0 else (vA[a] if m==0 else vR1[h])
                    tr.append(I(f"ds_read_b64_tr_b16 {ar(WF(buf,m,tl)+2*a,2)}, v{ad} offset:{(sl%2)*24576+a*6144+m*2048}"))
        xs=[I(f"ds_read_b128 {ar(XA(buf,t),4)}, v{vXR[k%2]} offset:{((k//2)%3)*20480+t*2048}") for t in range(9)]
        return pre+tr[:2]+xs+tr[2:]
    P.append(WAIT(vm=["x0","w0"],lgkm=0)); e("s_barrier")
    P.extend(stamp(1))
    P.extend(reads(0)); P.append(WAIT(vm=["w1"],lgkm=0)); e("s_barrier")
    for k in range(14):
        buf=k%2; mf=[]
        c=lambda d: "0" if k==0 else d
        for tl in range(2):
            for u in range(8): d=vr(Q(u,tl),4); mf.append(mfma(d,ar(WF(buf,0,tl),4),ar(XA(buf,u+1),4),c(d)))
        for tl in range(2):
            for t in range(9): d=vr(K(t,tl),4); mf.append(mfma(d,ar(WF(buf,1,tl),4),ar(XA(buf,t),4),c(d)))
        for tl in range(2):
            for t in range(9): d=vr(V(tl,t),4); mf.append(mfma(d,ar(XA(buf,t),4),ar(WF(buf,2,tl),4),c(d)))
        f=[]
        if k<13: f+=spread(reads(k+1),0,36)
        dm=[]
        if k+4<=13: dm+=wdma(k+4)
        if k%2==1 and (k-1)//2+3<=6: dm+=xdma((k-1)//2+3)
        if k==8:
            dm.append(I("v_mov_b32 v249, 0")); dm.append(I(f"buffer_load_dword v248, v249, {srd(DBG)}, 0 offen sc1","clr"))
        if dm: f+=spread(dm,1.5,50)
        P.extend(weave(mf,f))
        if k<13:
            P.append(WAIT(vm=[f"w{k+2}",f"x{(k+2)//2}"],lgkm=0)); e("s_barrier")
    P.extend(stamp(2))
    g,i=230,231
    e("v_lshrrev_b32 v230, 4, v0"); e("v_and_b32 v231, 15, v0")
    e("v_and_b32 v232, 1, v231"); e(f"v_cmp_eq_u32 s[{mE}:{mE+1}], 0, v232")
    e("v_lshl_add_u32 v233, v230, 2, v232"); e(f"v_cmp_le_u32 s[{mM0}:{mM0+1}], v233, v231")
    e("v_add_u32 v233, 2, v233"); e(f"v_cmp_le_u32 s[{mM1}:{mM1+1}], v233, v231")
    e("v_mov_b32 v234, 0xffff0000"); e("v_mov_b32 v235, 0xffff"); e(f"v_cndmask_b32 v234, v234, v235, s[{mE}:{mE+1}]")
    cA0,cB0,cA1,cB1,vBP,vH,vNeg=1,2,3,4,5,6,7
    e(f"v_cndmask_b32 v{cA0}, 0, v234, s[{mM0}:{mM0+1}]"); e(f"v_xor_b32 v{cB0}, v{cA0}, v234")
    e(f"v_cndmask_b32 v{cA1}, 0, v234, s[{mM1}:{mM1+1}]"); e(f"v_xor_b32 v{cB1}, v{cA1}, v234")
    e(f"v_or_b32 v{vBP}, 48, v231"); e(f"v_lshlrev_b32 v{vBP}, 2, v{vBP}")
    e(f"v_lshlrev_b32 v{vH}, 4, v0"); e(f"v_add_u32 v8, 4096, v{vH}")
    e(f"v_mov_b32 v{vNeg}, 0xf149f2ca")
    e(f"s_cmp_eq_u32 s{sAT}, 0"); e(f"s_cselect_b64 s[{mZ}:{mZ+1}], -1, 0")
    cs=28**-0.5*math.log2(math.e)
    import struct
    f2u=lambda x: struct.unpack("<I",struct.pack("<f",x))[0]
    e(f"s_mov_b32 s{sC}, {f2u(cs):#x}"); e(f"s_mov_b32 s{sK}, 0xbfb8aa3b")
    e(f"s_lshl_b32 s{t0}, s{sHG}, 2"); e(f"s_add_u32 s{t0}, s{t0}, s{sW}"); e(f"s_add_u32 s{t0}, s{t0}, 56"); e(f"s_mul_i32 s{t0}, s{t0}, {NT}")
    e(f"s_lshl_b32 s{t1}, s{sAT}, 3"); e(f"s_add_u32 s{t0}, s{t0}, s{t1}"); e(f"s_lshl_b32 s{t0}, s{t0}, 10"); e(f"s_add_u32 s{sO}, s{t0}, {H0}")
    U=range(8)
    Z=lambda u: 224+u
    A=lambda u: 232+u; B=lambda u: 240+u; M=lambda u: 170+u; T=lambda u: 178+u; L=lambda u: 206+u; T2=lambda u: 214+u
    for u in U: e(f"ds_bpermute_b32 v{Z(u)}, v{vBP}, v{Q(u,1)}")
    def pack4(d,a,b):
        e(f"v_cvt_pk_bf16_f32 v{d}, v{a}, v{a+1}"); e(f"v_cvt_pk_bf16_f32 v{d+1}, v{a+2}, v{a+3}")
        e(f"v_cvt_pk_bf16_f32 v{d+2}, v{b}, v{b+1}"); e(f"v_cvt_pk_bf16_f32 v{d+3}, v{b+2}, v{b+3}")
    for t in range(9): pack4(K(t,0),K(t,0),K(t,1))
    for u in U: pack4(Q(u,0),Q(u,0),Q(u,1))
    P.append(WAIT(lgkm=0))
    SP=lambda u: K(u,1); SO=lambda u: Q(u,1)
    sm=[]
    for u in U:
        sm.append(mfma(vr(SP(u),4),vr(K(u,0),4),vr(Q(u,0),4),"0")); sm.append(mfma(vr(SO(u),4),vr(K(u+1,0),4),vr(Q(u,0),4),"0"))
    vp=[]
    for d in range(2):
        for t in range(9):
            vp.append(I(f"v_cvt_pk_bf16_f32 v{V(d,0)+2*t}, v{V(d,t)}, v{V(d,t)+1}")); vp.append(I(f"v_cvt_pk_bf16_f32 v{V(d,0)+2*t+1}, v{V(d,t)+2}, v{V(d,t)+3}"))
    P.extend(weave(sm,spread(vp,0,16)))
    for u in U: e(f"v_mul_f32 v{Z(u)}, s{sK}, v{Z(u)}")
    for u in U: e(f"v_exp_f32 v{Z(u)}, v{Z(u)}")
    for u in U: e(f"v_add_f32 v{Z(u)}, 1.0, v{Z(u)}")
    for u in U: e(f"v_rcp_f32 v{Z(u)}, v{Z(u)}")
    sE=f"s[{mE}:{mE+1}]"
    for u in U:
        e(f"v_cndmask_b32 v{A(u)}, v{SO(u)+1}, v{SO(u)}, {sE}"); e(f"v_cndmask_b32 v{B(u)}, v{SO(u)+3}, v{SO(u)+2}, {sE}")
        e(f"v_cndmask_b32 v{M(u)}, v{SP(u)+1}, v{SP(u)}, {sE}"); e(f"v_cndmask_b32 v{T(u)}, v{SP(u)+3}, v{SP(u)+2}, {sE}")
    e(f"v_cndmask_b32 v{M(0)}, v{M(0)}, v{vNeg}, s[{mZ}:{mZ+1}]"); e(f"v_cndmask_b32 v{T(0)}, v{T(0)}, v{vNeg}, s[{mZ}:{mZ+1}]")
    for u in U:
        e(f"v_cndmask_b32 v{A(u)}, v{M(u)}, v{A(u)}, s[{mM0}:{mM0+1}]"); e(f"v_cndmask_b32 v{B(u)}, v{T(u)}, v{B(u)}, s[{mM1}:{mM1+1}]")
    def allred(R,op):
        for sw in ("v_permlane32_swap_b32","v_permlane16_swap_b32"):
            for u in U: e(f"v_mov_b32 v{T(u)}, v{R(u)}")
            for u in U: e(f"{sw} v{R(u)}, v{T(u)}")
            for u in U: e(f"{op} v{R(u)}, v{R(u)}, v{T(u)}")
    for u in U: e(f"v_max_f32 v{M(u)}, v{A(u)}, v{B(u)}")
    allred(M,"v_max_f32")
    for u in U: e(f"v_mul_f32 v{M(u)}, s{sC}, v{M(u)}")
    for u in U:
        e(f"v_fma_f32 v{A(u)}, v{A(u)}, s{sC}, -v{M(u)}"); e(f"v_fma_f32 v{B(u)}, v{B(u)}, s{sC}, -v{M(u)}")
    for u in U:
        e(f"v_exp_f32 v{A(u)}, v{A(u)}"); e(f"v_exp_f32 v{B(u)}, v{B(u)}")
    for u in U: e(f"v_add_f32 v{L(u)}, v{A(u)}, v{B(u)}")
    allred(L,"v_add_f32")
    for u in U: e(f"v_rcp_f32 v{L(u)}, v{L(u)}")
    for u in U: e(f"v_mul_f32 v{L(u)}, v{L(u)}, v{Z(u)}")
    for u in U:
        e(f"v_mul_f32 v{A(u)}, v{A(u)}, v{L(u)}"); e(f"v_mul_f32 v{B(u)}, v{B(u)}, v{L(u)}")
    for u in U:
        e(f"v_cvt_pk_bf16_f32 v{A(u)}, v{A(u)}, v{A(u)}"); e(f"v_cvt_pk_bf16_f32 v{B(u)}, v{B(u)}, v{B(u)}")
    PQ=lambda u: Q(u,0)
    for u in U:
        e(f"v_and_b32 v{PQ(u)}, v{cB0}, v{A(u)}"); e(f"v_and_b32 v{PQ(u)+1}, v{cB1}, v{B(u)}")
        e(f"v_and_b32 v{PQ(u)+2}, v{cA0}, v{A(u)}"); e(f"v_and_b32 v{PQ(u)+3}, v{cA1}, v{B(u)}")
    pm=[]
    for u in U:
        pm.append(mfma(vr(SP(u),4),vr(V(0,0)+2*u,4),vr(PQ(u),4),"0")); pm.append(mfma(vr(SO(u),4),vr(V(1,0)+2*u,4),vr(PQ(u),4),"0"))
    sv=[]
    for u in U: sv.append(I(f"v_sub_f32 v{Z(u)}, 1.0, v{Z(u)}"))
    for k in range(1,4):
        sv.append(I(f"v_cmp_eq_u32 vcc, {k*16}, v9")); sv.append(I("s_nop 0"))
        sv.append(I(f"v_cndmask_b32 v{Z(0)}, v{Z(0)}, v{Z(k)}, vcc")); sv.append(I(f"v_cndmask_b32 v{Z(4)}, v{Z(4)}, v{Z(4+k)}, vcc"))
    e("v_and_b32 v9, 48, v0")
    P.extend(weave(pm,spread(sv,0,16)))
    e(f"s_mul_i32 s{t0}, s{sHG}, {SSTR}"); e(f"s_lshl_b32 s{t1}, s{sAT}, 9"); e(f"s_add_u32 s{t0}, s{t0}, s{t1}"); e(f"s_add_u32 s{t0}, s{t0}, {S0}")
    e(f"s_cmp_eq_u32 s{sW}, 0"); e(f"s_cselect_b32 s{t0}, s{t0}, {OOB}")
    e("v_lshlrev_b32 v10, 2, v0"); e(f"v_add_u32 v10, s{t0}, v10")
    for u in U:
        pack4(PQ(u),SP(u),SO(u))
        e(f"buffer_store_dwordx4 {vr(PQ(u),4)}, v{vH if u<4 else 8}, {srd(WS)}, s{sO} offen offset:{(u%4)*1024} sc1","st")
    e(f"buffer_store_dword v{Z(0)}, v10, {srd(WS)}, 0 offen sc1","st"); e(f"buffer_store_dword v{Z(4)}, v10, {srd(WS)}, 0 offen offset:256 sc1","st")
    e(f"s_lshl_b32 s{t0}, s{sAT}, 2"); e(f"s_add_u32 s{t0}, s{t0}, s{sHG}"); e(f"s_add_u32 s{t0}, s{t0}, 32"); e(f"s_lshl_b32 s{t0}, s{t0}, 8")
    e(f"s_cmp_eq_u32 s{sW}, 0"); e(f"s_cselect_b32 s{t0}, s{t0}, {OOB}")
    e(f"v_mov_b32 v11, {OOB}"); e(f"v_mov_b32 v12, s{t0}"); e("v_cmp_eq_u32 vcc, 0, v0"); e("v_cndmask_b32 v11, v11, v12, vcc"); e("v_mov_b32 v13, 1")
    P.extend(stamp(3))
    P.append(WAIT(vm=0))
    check_or_spin(249,0,1,DBG,248)
    e("s_barrier")
    e(f"buffer_atomic_add v13, v11, {srd(WS)}, 0 offen","sig")
    P.extend(stamp(4))
    e("s_endpgm")

def spare():
    e("L_spare:")
    e("s_getpc_b64 s[66:67]")
    e("L_pc:")
    e("s_sub_u32 s66, s66, L_pc-"+NAME+"_kernel"); e("s_subb_u32 s67, s67, 0")
    e(f"s_lshl_b32 s68, s{sW}, 13"); e("v_lshlrev_b32 v1, 7, v0"); e("v_add_u32 v1, s68, v1")
    e("v_min_u32 v2, L_end-"+NAME+"_kernel-4, v1")
    e("global_load_dword v3, v2, s[66:67]","pf")
    e("v_add_u32 v1, 32768, v1"); e("v_min_u32 v2, L_end-"+NAME+"_kernel-4, v1")
    e("global_load_dword v4, v2, s[66:67]","pf")
    e("s_waitcnt lgkmcnt(0)")
    e("s_cmp_eq_u32 s2, 64"); e("s_cbranch_scc0 L_exit")
    e(f"s_cmp_eq_u32 s{sW}, 0"); e("s_cbranch_scc0 L_exit")
    mksrd(WS,60,WSN); mksrd(DBG,58,256)
    e("v_lshlrev_b32 v5, 8, v0"); e("v_mov_b32 v6, 0"); e("v_add_u32 v7, 16384, v5"); e("v_mov_b32 v8, 1")
    e(f"buffer_store_dword v6, v5, {srd(WS)}, 0 offen sc1"); e(f"buffer_store_dword v6, v7, {srd(WS)}, 0 offen sc1")
    e("s_waitcnt vmcnt(0)")
    e(f"buffer_store_dword v8, v5, {srd(DBG)}, 0 offen sc1")
    e("L_exit:")
    e("s_endpgm")
    e("L_end:")

def main():
    global P
    head=open("cdna_kernels/"+NAME+".s.ref").read().split("; Override launch")[0]
    txt=[]; nops=0
    for part in ((common_prologue,ffn),(attn,),(spare,)):
        P.clear()
        if part[0] is not common_prologue:
            pass
        for f in part: f()
        o,n=finalize(list(P),part[-1].__name__); nops+=n
        txt+=[x.text if x.cls=="label" else "    "+x.text for x in o]
    out=head+"; generated by gen/gen.py (hand-designed schedule, python emitter)\n; @launch grid=(256,1,1) block=(256,1,1) lds=163840\n"
    out+='.amdgcn_target "amdgcn-amd-amdhsa--gfx950"\n.text\n'
    out+=f".globl {NAME}_kernel\n.p2align 8\n.type {NAME}_kernel,@function\n{NAME}_kernel:\n"
    out+="\n".join(txt)+"\n"
    out+=f""".section .rodata,"a"
.p2align 6
.amdhsa_kernel {NAME}_kernel
  .amdhsa_next_free_vgpr 512
  .amdhsa_next_free_sgpr 102
  .amdhsa_accum_offset 256
  .amdhsa_group_segment_fixed_size 0
  .amdhsa_kernarg_size 88
  .amdhsa_user_sgpr_count 2
  .amdhsa_user_sgpr_kernarg_segment_ptr 1
  .amdhsa_system_sgpr_workgroup_id_x 1
.end_amdhsa_kernel
"""
    open(sys.argv[1],"w").write(out)
    print("instructions",len(txt),"auto nops",nops)
main()
```

```python
import re
TRANS=("v_exp_f32","v_log_f32","v_rcp_f32","v_rsq_f32","v_sqrt_f32","v_sin_f32","v_cos_f32")
def regs_of(tok):
    tok=tok.strip()
    tok=tok.lstrip("-")
    m=re.fullmatch(r"abs\((.*)\)",tok)
    if m: tok=m.group(1)
    m=re.fullmatch(r"([vas])(\d+)",tok)
    if m: return {(m.group(1),int(m.group(2)))}
    m=re.fullmatch(r"([vas])\[(\d+):(\d+)\]",tok)
    if m: return {(m.group(1),i) for i in range(int(m.group(2)),int(m.group(3))+1)}
    if tok=="vcc": return {("s","vcc")}
    if tok=="exec": return {("s","exec")}
    if tok=="m0": return {("s","m0")}
    return set()
class Ins:
    __slots__=("text","op","rd","wr","cls","tag","waittags","lgkm","srcC","ab","data","note","flush")
    def __init__(s,text,tag=None):
        s.text=text; s.tag=tag; s.waittags=None; s.lgkm=None; s.srcC=set(); s.ab=set(); s.data=set(); s.note=None; s.flush=False
        s.rd=set(); s.wr=set()
        t=text.strip()
        if t.endswith(":") or t.startswith(".") or t.startswith(";") or not t:
            s.op=t; s.cls="label" if t.endswith(":") else "dir"; return
        p=t.split(None,1); s.op=p[0]; rest=p[1] if len(p)>1 else ""
        ops=[x.strip() for x in rest.split(",")]
        mods=""
        if ops:
            q=ops[-1].split()
            if q: ops[-1]=q[0]; mods=" ".join(q[1:])
        R=[regs_of(o) for o in ops]
        op=s.op.replace("_e64","").replace("_e32","")
        if op.startswith("v_mfma"):
            s.cls="mfma"; s.wr=R[0]; s.ab=R[1]|R[2]; s.srcC=R[3]; s.rd=s.ab|s.srcC
        elif op.startswith("v_permlane"):
            s.cls="valu"; s.wr=R[0]|R[1]; s.rd=R[0]|R[1]
        elif op.startswith("v_cmp"):
            s.cls="valu"; s.wr=R[0]; s.rd=set().union(*R[1:])
        elif op.startswith("v_"):
            s.cls="valu"; s.wr=R[0]; s.rd=set().union(*R[1:]) if len(R)>1 else set()
            if op in("v_fmac_f32",): s.rd|=R[0]
            if op=="v_cndmask_b32" and len(R)==3: s.rd|={("s","vcc")}
            if op in ("v_add_co_u32","v_addc_co_u32"): s.wr|=R[1]
        elif op.startswith("ds_read") or op.startswith("ds_bpermute") or op.startswith("ds_swizzle"):
            s.cls="ds"; s.wr=R[0]; s.rd=set().union(*R[1:])
        elif op.startswith("ds_write"):
            s.cls="ds"; s.rd=set().union(*R)
        elif op.startswith("buffer_load"):
            s.cls="vm"
            if "lds" in mods.split():
                s.rd=set().union(*R)|{("s","m0")}
            else:
                s.wr=R[0]; s.rd=set().union(*R[1:])
        elif op.startswith("global_load"):
            s.cls="vm"; s.wr=R[0]; s.rd=set().union(*R[1:])
        elif op.startswith("buffer_store") or op.startswith("buffer_atomic"):
            s.cls="vm"; s.rd=set().union(*R)
            if "x4" in op or "x3" in op: s.data=R[0]
            if op.startswith("buffer_atomic") and "sc0" in mods.split(): s.wr=R[0]
        elif op.startswith("global_store"):
            s.cls="vm"; s.rd=set().union(*R)
            if "x4" in op or "x3" in op: s.data=R[1]
        elif op.startswith("s_load") or op.startswith("s_memtime") or op.startswith("s_memrealtime"):
            s.cls="smem"; s.wr=R[0]; s.rd=set().union(*R[1:]) if len(R)>1 else set()
        elif op in("s_waitcnt","s_barrier","s_nop","s_endpgm","s_sleep","s_setprio") or op.startswith("s_cbranch") or op=="s_branch":
            s.cls="ctl"
            if op in("s_cbranch_vccz","s_cbranch_vccnz"): s.rd={("s","vcc")}
        elif op.startswith("s_cmp"):
            s.cls="salu"; s.rd=set().union(*R)
        elif op.startswith("s_"):
            s.cls="salu"; s.wr=R[0]; s.rd=set().union(*R[1:]) if len(R)>1 else set()
            if op in("s_addk_i32","s_mulk_i32"): s.rd|=R[0]
            if "saveexec" in op: s.wr|={("s","exec")}
        else:
            raise ValueError("unknown op "+t)
    def states(s):
        if s.cls in("label","dir"): return 0
        if s.op=="s_nop": return int(s.text.split()[1])+1
        return 1
def I(text,tag=None): return Ins(text,tag)
def WAIT(vm=None,lgkm=None):
    i=Ins("s_waitcnt vmcnt(0)"); i.waittags=vm; i.lgkm=lgkm; return i
def isvg(r): return r[0] in("v","a")
def need(p,c):
    n=0
    pop=p.op.replace("_e64","").replace("_e32",""); cop=c.op.replace("_e64","").replace("_e32","")
    if p.cls=="valu":
        vw={r for r in p.wr if isvg(r)}; sw={r for r in p.wr if r[0]=="s"}
        if c.cls=="mfma" and vw&c.rd: n=max(n,2)
        if cop.startswith("v_permlane") and vw&c.rd: n=max(n,2)
        if "dpp" in c.text or "row_" in c.text:
            if vw&c.rd: n=max(n,2)
        if pop in TRANS and c.cls=="valu" and cop not in TRANS and vw&c.rd: n=max(n,1)
        if c.cls=="valu" and sw&c.rd: n=max(n,2)
        if cop in("v_readfirstlane_b32","v_readlane_b32") and vw&c.rd: n=max(n,1)
        if c.cls=="vm" and sw&c.rd: n=max(n,5)
        if c.cls in("salu","ctl") and sw&c.rd: n=max(n,2)
    if p.cls=="mfma":
        big = "32x32" in p.op
        a,b,w=(12,10,7) if big else (8,6,3)
        if c.cls=="mfma":
            if p.wr&c.ab: n=max(n,a)
            if p.wr&c.srcC and (p.wr!=c.srcC or p.op!=c.op): n=max(n,b)
            if p.wr&c.wr and not (p.wr==c.srcC): n=max(n,b)
        elif c.cls in("valu","vm","ds"):
            if p.wr&(c.rd|c.wr): n=max(n,a)
            if c.cls=="valu" and p.srcC&c.wr: n=max(n,w)
    if p.cls=="salu" and ("s","m0") in p.wr and c.cls=="vm" and ("s","m0") in c.rd: n=max(n,1)
    if p.cls=="vm" and p.data:
        if c.cls=="valu" and p.data&c.wr: n=max(n,2)
        elif p.data&c.wr: n=max(n,1)
    return n
def finalize(ins, name=""):
    out=[]; vmq=[]; dsq=[]; smq=set(); nops=0
    lastidx={}
    for k,x in enumerate(ins):
        if x.cls=="vm" and x.tag: lastidx[x.tag]=k
    for kk,x in enumerate(ins):
        if x.op=="s_waitcnt" and x.waittags not in (None,0):
            for t in x.waittags:
                if lastidx.get(t,-1)>kk: raise Exception(f"{name}: wait on tag {t} before all its ops are issued")
        if x.flush: vmq=[]
        if x.op=="s_waitcnt" and (x.waittags is not None or x.lgkm is not None):
            parts=[]
            if x.waittags is not None:
                if x.waittags==0: n=0
                else:
                    tg=set(x.waittags); idx=[k for k,(t,_) in enumerate(vmq) if t in tg]
                    n=len(vmq)-1-idx[-1] if idx else None
                if n is not None:
                    n=min(n,63); parts.append(f"vmcnt({n})")
            if x.lgkm is not None: parts.append(f"lgkmcnt({x.lgkm})")
            if not parts: continue
            x.text="s_waitcnt "+" ".join(parts)
        if x.op=="s_waitcnt":
            m=re.search(r"vmcnt\((\d+)\)",x.text)
            if m:
                n=int(m.group(1)); vmq=vmq[len(vmq)-n:] if n<len(vmq) and n>0 else ([] if n==0 else vmq)
            m=re.search(r"lgkmcnt\((\d+)\)",x.text)
            if m:
                n=int(m.group(1)); dsq=dsq[len(dsq)-n:] if n<len(dsq) and n>0 else ([] if n==0 else dsq)
                if n==0: smq=set()
        if x.cls not in("label","dir"):
            touch=x.rd|x.wr
            for (t,w) in vmq:
                if w&touch: raise Exception(f"{name}: use of pending vm dest {sorted(w&touch)[:2]} in: {x.text}")
            for w in dsq:
                if w&touch: raise Exception(f"{name}: use of pending ds dest {sorted(w&touch)[:2]} in: {x.text}")
            if smq&touch: raise Exception(f"{name}: use of pending smem dest in: {x.text}")
            d=0; req=0
            for p in reversed(out):
                if d>=12: break
                if p.cls not in("label","dir"):
                    req=max(req,need(p,x)-d)
                d+=p.states()
            if req>0:
                out.append(Ins(f"s_nop {req-1}")); nops+=1
        out.append(x)
        if x.cls=="vm": vmq.append((x.tag,set(x.wr)))
        if x.cls=="ds": dsq.append(set(x.wr))
        if x.cls=="smem": smq|=x.wr
        if len(vmq)>63: pass
    return out,nops
def weave(mf, fillers):
    gaps=[[] for _ in mf]
    for k,(pos,x) in enumerate(sorted(enumerate(fillers),key=lambda e:(e[1][0],e[0]))):
        p,x=x
        gaps[max(0,min(len(mf)-1,int(p)))].append(x)
    o=[]
    for m,g in zip(mf,gaps):
        o.append(m); o+=g
    return o
def spread(lst,a,b):
    n=len(lst)
    return [(a+(b-a)*k/n,x) for k,x in enumerate(lst)]

def cost(x):
    op=x.op.replace("_e64","").replace("_e32","")
    if x.cls in("label","dir"): return 0
    if op in TRANS: return 2
    if x.cls=="vm": return 2
    return 1
def conflict(a,b):
    if a.wr&(b.rd|b.wr) or a.rd&b.wr: return True
    if a.cls=="vm" and b.cls=="vm": return True
    return False
class Pool:
    def __init__(s,ins,look=20): s.q=list(ins); s.look=look; s.last={}
    def take(s,room,gap):
        for k,x in enumerate(s.q[:s.look]):
            if cost(x)>room: continue
            if any(conflict(y,x) for y in s.q[:k]): continue
            if any(s.last.get(r,-9)>=gap for r in x.rd): continue
            s.q.pop(k)
            for r in x.wr: s.last[r]=gap
            return x
        return None
_gapno=[0]
def pack(mf, fixed, pool=None, cap=2, lo=0):
    gaps=[[] for _ in mf]
    for (_, (p,x)) in sorted(enumerate(fixed),key=lambda e:(e[1][0],e[0])):
        gaps[max(0,min(len(mf)-1,int(p)))].append(x)
    o=[]
    for k,(m,g) in enumerate(zip(mf,gaps)):
        _gapno[0]+=1
        o.append(m); o+=g
        room=cap-sum(cost(x) for x in g)
        while pool is not None and k>=lo and room>0:
            x=pool.take(room,_gapno[0])
            if x is None: break
            o.append(x); room-=cost(x)
    return o
```

```python
import sys, math
from isa import *
NAME="gated_mix__sliding_local_dilated__swiglu_ffn__prompt"
OPT=dict(arate=12, hsc1=1, stamp=0, rate=5, cap=2, look=3, sigA_tile=1, sigB_blk=3, pollA_blk=5, chain=1, pf=1)
for a in sys.argv[2:]:
    k,v=a.split("="); OPT[k]=int(v)
H0=0x100000; NT=130; S0=0x80000; SSTR=2176*4; STAMP0=0xC00000; WSN=0x1000000
OOB=0x80000000
X,WA,WU,WD,WO,WS,OUT,DBG,GW=4,8,12,16,20,24,28,32,36
def srd(b): return f"s[{b}:{b+3}]"
def vr(b,n=1): return f"v{b}" if n==1 else f"v[{b}:{b+n-1}]"
def ar(b,n=1): return f"a{b}" if n==1 else f"a[{b}:{b+n-1}]"
P=[]
def e(t,tag=None):
    x=I(t,tag); P.append(x); return x
_l=[0]
def lab(p="L"):
    _l[0]+=1; return f"{p}{_l[0]}"
def mksrd(b,src,n,bias=0):
    if bias:
        e(f"s_sub_u32 s{b}, s{src}, {bias}"); e(f"s_subb_u32 s{b+1}, s{src+1}, 0")
    else:
        e(f"s_mov_b64 s[{b}:{b+1}], s[{src}:{src+1}]")
    e(f"s_mov_b32 s{b+2}, {n+bias}"); e(f"s_mov_b32 s{b+3}, 0x20000")
def mfma(d,a,b,c): return I(f"v_mfma_f32_16x16x32_bf16 {d}, {a}, {b}, {c}")
sW,sXCD,sJ,sI=62,63,64,65
sT=[66,67,68,69,70,71]
sSTB=98
nstamp=[0]
def stamp(idx,last=False):
    if not OPT['stamp']: return []
    o=[I("s_memrealtime s[94:95]"),I("s_memtime s[96:97]"),I("s_waitcnt lgkmcnt(0)"),
       I(f"v_writelane_b32 v254, s94, {idx}"),I(f"v_writelane_b32 v255, s96, {idx}")]
    if last: o+=[I("v_lshlrev_b32 v253, 3, v0"),I(f"buffer_store_dwordx2 v[254:255], v253, {srd(WS)}, s{sSTB} offen","stamp")]
    return o
def spin(addrv, off, cmpval, srdb, res=12):
    L=lab("SP"); D=lab("SD")
    e("s_mov_b32 s92, 0")
    e(L+":")
    e(f"buffer_load_dword v{res}, v{addrv}, {srd(srdb)}, 0 offen offset:{off} sc1","poll")
    e("s_waitcnt vmcnt(0)")
    e(f"v_cmp_ne_u32 vcc, {cmpval}, v{res}")
    e(f"s_cbranch_vccz {D}")
    e("s_add_u32 s92, s92, 1")
    e("s_cmp_lt_u32 s92, 0x40000")
    e("s_sleep 1")
    e(f"s_cbranch_scc1 {L}")
    e(D+":")
def check_or_spin(addrv, off, cmpval, srdb, res):
    D=lab("CK")
    e(f"v_cmp_ne_u32 vcc, {cmpval}, v{res}")
    e(f"s_cbranch_vccz {D}")
    n0=len(P)
    spin(addrv,off,cmpval,srdb,res)
    for x in P[n0:]:
        if x.cls=="vm": x.cls="raw"; x.wr=set()
        if x.op=="s_waitcnt": x.op="raw"
    e(D+":")

def common_prologue():
    e("s_cmp_ge_u32 s2, 256"); e("s_cbranch_scc1 L_exit")
    e("s_load_dwordx16 s[40:55], s[0:1], 0")
    e("s_load_dwordx4 s[56:59], s[0:1], 64")
    e("s_load_dwordx2 s[60:61], s[0:1], 80")
    e("v_lshrrev_b32 v1, 6, v0")
    e(f"s_and_b32 s{sXCD}, s2, 7"); e(f"s_lshr_b32 s{sJ}, s2, 3")
    e(f"v_readfirstlane_b32 s{sW}, v1")
    e("v_and_b32 v0, 63, v0")
    if OPT['stamp']:
        e(f"s_lshl_b32 s{sSTB}, s2, 2"); e(f"s_add_u32 s{sSTB}, s{sSTB}, s{sW}"); e(f"s_lshl_b32 s{sSTB}, s{sSTB}, 9")
        e(f"s_add_u32 s{sSTB}, s{sSTB}, {STAMP0}")
        e("v_mov_b32 v254, 0"); e("v_mov_b32 v255, 0")
    e(f"s_cmp_lt_u32 s{sJ}, 8"); e("s_cbranch_scc1 L_attn")
    e(f"s_cmp_eq_u32 s{sJ}, 8"); e("s_cbranch_scc1 L_spare")

def dma(voff,sr,soff,imm,tag): return I(f"buffer_load_dwordx4 v{voff}, {srd(sr)}, {soff} offen offset:{imm} lds",tag)

def ffn():
    sSL,sTT,sT2,sN=72,73,74,75
    sSeg1,sSeg2,sXb=76,77,78
    sXo=[None,79,80,81,82]
    sW1o=83; sW2o=[None,84,85,86]
    sHst,sHld,sC=87,88,89
    vX,vW,vXR,vWR,vW2,vH,vH4,vFl,vOne,vPoll,vPA=1,2,(3,4),(5,6),7,8,9,10,11,12,13
    ACC=lambda p,q,t: 16+80*p+(q*5+t)*4
    def XF(i): return ar(4*i,4) if i<64 else vr(176+4*(i-64),4)
    AF=lambda buf,q: 200+16*buf+4*q
    t0,t1,t2_,t3=sT[:4]
    e(f"s_sub_u32 s{sI}, s{sJ}, 9")
    e(f"s_and_b32 s{t0}, s{sXCD}, 3"); e(f"s_cmp_eq_u32 s{t0}, 3"); e(f"s_cselect_b32 s{t0}, 22, 23")
    e(f"s_cmp_ge_u32 s{sI}, s{t0}"); e("s_cbranch_scc1 L_spare")
    e(f"s_mul_i32 s{t0}, s{sXCD}, 23"); e(f"s_add_u32 s{sI}, s{sI}, s{t0}")
    e(f"s_lshr_b32 s{t0}, s{sXCD}, 2"); e(f"s_sub_u32 s{sI}, s{sI}, s{t0}")
    e(f"s_mul_i32 s{sT2}, s{sI}, 9363"); e(f"s_lshr_b32 s{sT2}, s{sT2}, 16")
    e(f"s_mul_i32 s{t0}, s{sT2}, 7"); e(f"s_sub_u32 s{sN}, s{sI}, s{t0}")
    e(f"s_sub_u32 s{t0}, s{sI}, 98"); e(f"s_mul_i32 s{t1}, s{t0}, 10923"); e(f"s_lshr_b32 s{t1}, s{t1}, 16")
    e(f"s_mul_i32 s{t2_}, s{t1}, 6"); e(f"s_sub_u32 s{t0}, s{t0}, s{t2_}"); e(f"s_add_u32 s{t0}, s{t0}, 7")
    e(f"s_cmp_lt_u32 s{sI}, 98"); e(f"s_cselect_b32 s{sSL}, s{sT2}, s{t1}"); e(f"s_cselect_b32 s{sTT}, s{sN}, s{t0}")
    e("v_lshrrev_b32 v14, 3, v0")
    e("v_and_b32 v15, 7, v0")
    e(f"s_and_b32 s{t0}, s{sW}, 1"); e(f"s_lshl_b32 s{t1}, s{t0}, 2")
    e("v_lshrrev_b32 v12, 1, v14"); e(f"v_or_b32 v13, s{t1}, v12"); e("v_xor_b32 v13, v13, v15")
    e(f"s_mul_i32 s{t2_}, s{sTT}, 160"); e(f"s_lshl_b32 s{t3}, s{sW}, 3"); e(f"s_add_u32 s{t2_}, s{t2_}, s{t3}")
    e(f"v_add_u32 v{vX}, s{t2_}, v14"); e(f"v_mul_u32_u24 v{vX}, 896, v{vX}"); e(f"v_lshl_add_u32 v{vX}, v13, 4, v{vX}")
    e(f"s_lshl_b32 s{t0}, s{t0}, 2")
    e("v_and_b32 v13, 2, v14"); e(f"v_or_b32 v13, s{t0}, v13"); e("v_xor_b32 v13, v13, v15")
    e(f"v_add_u32 v{vW}, s{t3}, v14"); e(f"v_mul_u32_u24 v{vW}, 3584, v{vW}"); e(f"v_lshl_add_u32 v{vW}, v13, 4, v{vW}")
    e(f"s_lshl_b32 s{t0}, s{sSL}, 8"); e(f"v_add_u32 v{vW}, s{t0}, v{vW}")
    e(f"s_lshl_b32 s{sSeg2}, s{sW}, 12")
    e(f"s_lshl_b32 s{sXb}, s{sW}, 10"); e(f"s_add_u32 s{sXb}, s{sXb}, 65536")
    for j in range(1,5): e(f"s_mov_b32 s{sXo[j]}, {32*j*896}")
    e(f"s_mov_b32 s{sW1o}, {32*3584-1024}")
    for b,n in ((X,1835008),(WA,1605632),(WU,1605632+2048)):
        e(f"s_mov_b32 s{b+2}, {n}"); e(f"s_mov_b32 s{b+3}, 0x20000")
    e("s_waitcnt lgkmcnt(0)")
    e(f"s_mov_b64 s[{X}:{X+1}], s[40:41]"); e(f"s_mov_b64 s[{WA}:{WA+1}], s[48:49]")
    e(f"s_sub_u32 s{WU}, s50, 2048"); e(f"s_subb_u32 s{WU+1}, s51, 0")
    P.extend(stamp(0))
    def xdma(c):
        o=[]
        for j in range(5):
            o.append([I(f"s_add_u32 m0, s{sXb}, {(c%4)*20480+j*4096}"), dma(vX,X,"0" if j==0 else f"s{sXo[j]}",0,f"x{c}")])
        o[-1].append(I(f"v_add_u32 v{vX}, 128, v{vX}"))
        return o
    def wdma(s):
        o=[]
        for j in range(2):
            for m in range(2):
                o.append([dma(vW,WA if m==0 else WU,"0" if j==0 else f"s{sW1o}",(2*m+j)*1024,f"w{s}")])
        o[0].insert(0,I(f"s_add_u32 m0, s{sSeg2}, {(s%4)*16384}"))
        d = 64*3584 if s!=6 else (128-6*64*3584)&0xffffffff
        o[-1].append(I(f"v_add_u32 v{vW}, {d}, v{vW}"))
        return o
    def blkloc(b):
        if b>=10: b-=10
        if b<6: return (sSeg1,b*4096)
        return (sSeg2,((b+4)%4)*16384)
    def w2dma(b):
        sg,off=blkloc(b)
        o=[[dma(vW2,WD if b<14 else WO,"0" if pi==0 else f"s{sW2o[pi]}",pi*1024,f"b{b}")] for pi in range(4)]
        o[0].insert(0,I(f"s_add_u32 m0, s{sg}, {off}"))
        if b==6: o[-1].append(I(f"v_add_u32 v{vW2}, {(64*896-6*114688)&0xffffffff}, v{vW2}"))
        elif b==13: o[-1].append(I(f"v_add_u32 v{vW2}, s{sT[4]}, v{vW2}"))
        elif b<13: o[-1].append(I(f"v_add_u32 v{vW2}, 114688, v{vW2}"))
        elif b<17: o[-1].append(I(f"v_add_u32 v{vW2}, {28*896}, v{vW2}"))
        return o
    flat=lambda L:[x for it in L for x in it]
    for s in range(2):
        P.extend(flat(xdma(s))); P.extend(flat(wdma(s)))
    mksrd(WS,60,WSN); mksrd(WD,52,1605632); mksrd(WO,44,401408); mksrd(OUT,56,1835008); mksrd(DBG,58,256)
    e("v_lshrrev_b32 v14, 4, v0")
    e("v_and_b32 v15, 15, v0")
    e("v_lshrrev_b32 v12, 1, v15"); e("v_xor_b32 v12, v12, v14"); e("v_lshlrev_b32 v12, 4, v12")
    e("v_lshl_add_u32 v12, v15, 7, v12")
    e(f"s_lshr_b32 s{t0}, s{sW}, 1"); e(f"s_mul_i32 s{t0}, s{t0}, 10240"); e(f"s_add_u32 s{t0}, s{t0}, 65536")
    e(f"v_add_u32 v{vXR[0]}, s{t0}, v12"); e(f"v_xor_b32 v{vXR[1]}, 64, v{vXR[0]}")
    e("v_bfe_u32 v12, v0, 2, 2")
    e("v_lshrrev_b32 v13, 1, v12"); e("v_and_b32 v15, 1, v14"); e("v_lshlrev_b32 v15, 1, v15"); e("v_or_b32 v13, v13, v15")
    e(f"s_and_b32 s{t0}, s{sW}, 1"); e(f"s_lshl_b32 s{t0}, s{t0}, 1"); e(f"v_xor_b32 v13, s{t0}, v13"); e("v_lshlrev_b32 v13, 5, v13")
    e("v_lshl_add_u32 v13, v14, 12, v13"); e("v_lshl_add_u32 v13, v12, 7, v13")
    e("v_and_b32 v15, 3, v0"); e(f"v_lshl_add_u32 v{vWR[0]}, v15, 3, v13"); e(f"v_xor_b32 v{vWR[1]}, 32, v{vWR[0]}")
    e("v_lshrrev_b32 v12, 3, v0"); e("v_and_b32 v13, 6, v12"); e("v_and_b32 v15, 7, v0"); e("v_xor_b32 v13, v13, v15")
    e("v_mul_u32_u24 v12, 896, v12"); e(f"v_lshl_add_u32 v{vW2}, v13, 4, v12")
    e(f"s_lshr_b32 s{t0}, s{sW}, 1"); e(f"s_mul_i32 s{t0}, s{t0}, 28"); e(f"s_and_b32 s{t1}, s{sW}, 1"); e(f"s_add_u32 s{t3}, s{t0}, s{t1}")
    e(f"s_mul_i32 s{t1}, s{t3}, {32*896}"); e(f"s_lshl_b32 s{t2_}, s{sN}, 7"); e(f"s_add_u32 s{t2_}, s{t1}, s{t2_}"); e(f"v_add_u32 v{vW2}, s{t2_}, v{vW2}")
    e(f"s_mul_i32 s{t0}, s{sW}, {112*896}"); e(f"s_sub_u32 s{t0}, s{t0}, s{t1}"); e(f"s_sub_u32 s{sT[4]}, s{t0}, {26*32*896}")
    e(f"s_lshl_b32 s{t1}, s{sW}, 2"); e(f"s_add_u32 s{t1}, s{t1}, 30"); e(f"s_sub_u32 s{t0}, s{t1}, s{t3}"); e(f"s_mul_i32 s{sT[5]}, s{t0}, {NT*1024}")
    e(f"s_mul_i32 s{t0}, s{t3}, {NT}"); e(f"s_mul_i32 s{t1}, s{sT2}, 5"); e(f"s_add_u32 s{t0}, s{t0}, s{t1}"); e(f"s_lshl_b32 s{t0}, s{t0}, 10"); e(f"s_add_u32 s{sHld}, s{t0}, {H0}")
    e(f"s_lshl_b32 s{t2_}, s{sTT}, 1"); e(f"s_lshr_b32 s{t1}, s{sW}, 1"); e(f"s_add_u32 s{t2_}, s{t2_}, s{t1}")
    e(f"s_lshl_b32 s{t0}, s{sSL}, 2"); e(f"s_and_b32 s{t3}, s{sW}, 1"); e(f"s_add_u32 s{t0}, s{t0}, s{t3}"); e(f"s_mul_i32 s{t0}, s{t0}, {NT}")
    e(f"s_mul_i32 s{t1}, s{t2_}, 5"); e(f"s_add_u32 s{t0}, s{t0}, s{t1}")
    e(f"s_lshl_b32 s{t0}, s{t0}, 10"); e(f"s_add_u32 s{sHst}, s{t0}, {H0}")
    e(f"s_lshl_b32 s{t0}, s{t2_}, 3"); e(f"s_add_u32 s{t0}, s{t0}, s{t3}"); e(f"s_cmp_ge_u32 s{sSL}, 7"); e(f"s_cselect_b32 s{t1}, 2, 0"); e(f"s_add_u32 s{t0}, s{t0}, s{t1}"); e(f"s_lshl_b32 s{t0}, s{t0}, 7")
    e(f"v_mov_b32 v{vFl}, {OOB}"); e(f"v_mov_b32 v12, s{t0}"); e("v_cmp_eq_u32 vcc, 0, v0")
    e(f"v_lshlrev_b32 v{vH}, 4, v0"); e(f"v_add_u32 v{vH4}, 4096, v{vH}")
    e(f"v_cndmask_b32 v{vFl}, v{vFl}, v12, vcc")
    e(f"s_mul_i32 s{sSeg1}, s{sW}, 24576"); e(f"s_add_u32 s{sSeg1}, s{sSeg1}, 65536")
    for j in range(1,4): e(f"s_mov_b32 s{sW2o[j]}, {6144*j}")
    e(f"s_mov_b32 s{sC}, 0xbfb8aa3b")
    e(f"v_mov_b32 v{vOne}, 1")
    e(f"s_lshl_b32 s{t0}, s{sT2}, 3"); e(f"s_add_u32 s{t0}, s{t0}, s{sW}"); e(f"s_lshl_b32 s{t0}, s{t0}, 7"); e(f"v_mov_b32 v{vPA}, s{t0}")
    e("v_mov_b32 v15, 0")
    CH=OPT['chain']
    def reads(Pn):
        p,s,h=Pn//14,Pn//2,Pn%2
        o=[]
        for ks in ((0,1) if CH else (h,)):
            if p==0 and (h==0 or not CH):
                if s==3: o.append(I(f"v_add_u32 v{vXR[ks]}, 61440, v{vXR[ks]}"))
                for t in range(5): o.append(I(f"ds_read_b128 {XF((2*s+ks)*5+t)}, v{vXR[ks]} offset:{(s%4 if s!=3 else 0)*20480+t*2048}"))
                if s==3: o.append(I(f"v_subrev_u32 v{vXR[ks]}, 61440, v{vXR[ks]}"))
        tr=[]
        for j in range(4):
            if CH: m,ks,tl=j>>1,j&1,h
            else: m,ks,tl=j>>1,h,j&1
            for a in range(2):
                tr.append(I(f"ds_read_b64_tr_b16 {vr(AF(h,j)+2*a,2)}, v{vWR[tl]} offset:{(s%4)*16384+(2*m+ks)*1024+a*512}"))
        return tr[:4]+o+tr[4:]
    def epi(p,t):
        T=[232+k for k in range(8)]; O=240+4*(t%2)
        G=[ACC(p,k>>2,t)+(k&3) for k in range(8)]; U=[ACC(p,2+(k>>2),t)+(k&3) for k in range(8)]
        o=[]
        for k in range(8): o.append(I(f"v_mul_f32 v{T[k]}, s{sC}, v{G[k]}"))
        for k in range(8):
            o.append(I(f"v_exp_f32 v{T[k]}, v{T[k]}")); o.append(I(f"v_mul_f32 v{U[k]}, v{G[k]}, v{U[k]}"))
        for k in range(8): o.append(I(f"v_add_f32 v{T[k]}, 1.0, v{T[k]}"))
        for k in range(8):
            o.append(I(f"v_rcp_f32 v{G[k]}, v{T[k]}"))
            if k>=1: o.append(I(f"v_mul_f32 v{U[k-1]}, v{G[k-1]}, v{U[k-1]}"))
            if k>=3 and k%2==1: o.append(I(f"v_cvt_pk_bf16_f32 v{O+(k-3)//2}, v{U[k-3]}, v{U[k-2]}"))
        o.append(I(f"v_mul_f32 v{U[7]}, v{G[7]}, v{U[7]}"))
        o.append(I(f"v_cvt_pk_bf16_f32 v{O+3}, v{U[6]}, v{U[7]}"))
        o.append(I(f"buffer_store_dwordx4 {vr(O,4)}, v{vH if t<4 else vH4}, {srd(WS)}, s{sHst} offen offset:{(t%4)*1024} sc1",f"st{p}"))
        return o
    P.append(WAIT(vm=["x0","w0"])); e("s_barrier")
    P.extend(stamp(1))
    P.extend(reads(0)); P.append(WAIT(lgkm=0))
    pool=Pool(flat([epi(0,t) for t in range(5)]))
    dq=[]
    for s in range(2,14):
        if s<=6: dq.append((max(0,2*(s-4)+1),xdma(s)))
        dq.append((max(0,2*(s-4)+1),wdma(s)))
        if s==8: dq.append((0,[[I(f"buffer_load_dword v14, v15, {srd(DBG)}, 0 offen sc1","clr")]]))
    w2q=[(13 if b<6 else 2*(b+4)+1,w2dma(b)) for b in range(10)]
    cur=[]
    for Pn in range(28):
        p,s,h=Pn//14,Pn//2,Pn%2
        mf=[]
        for jq in range(2 if CH else 4):
            for t in range(5):
                for ks in ((0,1) if CH else (h,)):
                    q = (2*jq+h) if CH else jq
                    j = (2*jq+ks) if CH else jq
                    d=vr(ACC(p,q,t),4)
                    mf.append(mfma(d,vr(AF(h,j),4),XF((2*(s%7)+ks)*5+t),"0" if (s%7==0 and ks==0) else d))
        f=[]
        if Pn<27:
            rd=reads(Pn+1); f+=spread(rd,0,min(15,max(8,len(rd))))
        items=[]
        while len(items)<OPT['rate']:
            if not cur:
                if dq and dq[0][0]<=Pn: cur=dq.pop(0)[1]
                elif w2q and w2q[0][0]<=Pn: cur=w2q.pop(0)[1]
                else: break
            items.append(cur.pop(0))
        n=len(items)
        for k,it in enumerate(items):
            pos=1+k*20/max(n,OPT['rate'])
            for x in it:
                f.append((pos-1 if x.cls=="salu" else (pos+1 if x.cls=="valu" else pos),x))
        P.extend(pack(mf,f,pool if p==1 else None,OPT['cap'],lo=(2 if Pn==14 else 0)))
        if Pn==13: P.extend(stamp(2))
        if h==0:
            P.append(WAIT(vm=[f"w{s+1}",f"x{s+1}"],lgkm=0)); e("s_barrier")
            P.extend(stamp(32+s))
        elif Pn<27: P.append(WAIT(lgkm=0))
    assert not dq
    print("left: epiA ops",len(pool.q),"w2 items",len(w2q))
    P.extend(stamp(3))
    P.extend(pool.q)
    P.extend(flat(cur))
    for _,g_ in w2q: P.extend(flat(g_))
    e(f"s_add_u32 s{sHst}, s{sHst}, {2*NT*1024}")
    for t in range(5):
        P.extend(epi(1,t))
        if t==OPT['sigA_tile']:
            P.append(WAIT(vm=["st0","clr"])); check_or_spin(15,0,1,DBG,14)
            e(f"buffer_atomic_add v{vOne}, v{vFl}, {srd(WS)}, 0 offen","sigA")
    P.extend(stamp(4))
    R1,R2=176,180
    e("v_lshrrev_b32 v14, 4, v0")
    e("v_bfe_u32 v15, v0, 2, 2")
    e("v_and_b32 v184, 1, v14"); e("v_lshl_add_u32 v184, v184, 2, v15")
    e("v_lshrrev_b32 v185, 1, v14"); e("v_lshlrev_b32 v185, 10, v185"); e("v_lshl_add_u32 v185, v184, 7, v185")
    e("v_and_b32 v186, 3, v0"); e("v_lshl_add_u32 v185, v186, 3, v185")
    e("v_lshrrev_b32 v184, 1, v184")
    for q in range(4):
        e(f"s_add_u32 s{t0}, s{sW}, {q}"); e(f"s_and_b32 s{t0}, s{t0}, 3")
        e(f"v_xor_b32 v186, s{t0}, v184"); e(f"v_lshl_add_u32 v186, v186, 5, v185")
        e(f"v_add_u32 v{R1+q}, s{sSeg1}, v186"); e(f"v_add_u32 v{R2+q}, s{sSeg2}, v186")
    NSL=10
    def HS(b,t):
        k=b%NSL
        return ar(128+k*20+4*t,4) if k<6 else vr(96+(k-6)*20+4*t,4)
    def AW(b,q,a=None):
        if b<8: return ar(16*b+4*q,4) if a is None else ar(16*b+4*q+2*a,2)
        return vr(AF(b%2,q),4) if a is None else vr(AF(b%2,q)+2*a,2)
    def hload(b):
        o=[]
        for t in range(5):
            o.append([I(f"buffer_load_dwordx4 {HS(b,t)}, v{vH if t<4 else vH4}, {srd(WS)}, s{sHld} offen offset:{(t%4)*1024}{' sc1' if OPT['hsc1'] else ''}",f"h{b}")])
        if b==6: o[-1].append(I(f"s_sub_u32 s{sHld}, s{sHld}, {(24-2)*NT*1024}"))
        elif b==13: o[-1].append(I(f"s_add_u32 s{sHld}, s{sHld}, s{sT[5]}"))
        elif b<13: o[-1].append(I(f"s_add_u32 s{sHld}, s{sHld}, {4*NT*1024}"))
        else: o[-1].append(I(f"s_add_u32 s{sHld}, s{sHld}, {NT*1024}"))
        return o
    def treads(b):
        sg,off=blkloc(b); base=R1 if sg==sSeg1 else R2
        return [I(f"ds_read_b64_tr_b16 {AW(b,q,a)}, v{base+q} offset:{off+a*2048}") for q in range(4) for a in range(2)]
    P.append(WAIT(vm=["b1"])); P.extend(treads(0))
    for j in range(8):
        if j<7:
            P.append(WAIT(vm=[f"b{j+1}"])); P.extend(treads(j+1)); P.append(WAIT(lgkm=8))
        else: P.append(WAIT(lgkm=0))
        P.extend(flat(w2dma(10+j)))
        if j==OPT['sigB_blk']:
            P.append(WAIT(vm=["st1"])); e(f"buffer_atomic_add v{vOne}, v{vFl}, {srd(WS)}, 0 offen offset:512","sigB"); P.extend(stamp(10))
        if j==OPT['pollA_blk']: e(f"buffer_load_dword v{vPoll}, v{vPA}, {srd(WS)}, 0 offen sc1","pollA")
    e(f"s_mul_i32 s{t0}, s{sT2}, 80"); e(f"s_add_u32 s{t1}, s{t0}, 79"); e(f"s_lshr_b32 s{t2_}, s{t0}, 7"); e(f"s_lshr_b32 s{t1}, s{t1}, 7"); e(f"s_min_u32 s{t1}, s{t1}, 15")
    for r in (t2_,t1):
        e(f"s_lshl_b32 s{r}, s{r}, 2"); e(f"s_add_u32 s{r}, s{r}, s{sW}"); e(f"s_add_u32 s{r}, s{r}, 208"); e(f"s_lshl_b32 s{r}, s{r}, 7")
    vPO,vS,vSA,vO=187,188,193,194
    e(f"v_mov_b32 v{vPO}, s{t2_}"); e(f"v_mov_b32 v14, s{t1}"); e("v_cmp_lt_u32 vcc, 31, v0")
    e("v_and_b32 v15, 15, v0"); e(f"v_add_u32 v15, s{t0}, v15")
    e(f"v_cndmask_b32 v{vPO}, v{vPO}, v14, vcc")
    e(f"s_mul_i32 s{t1}, s{sW}, {SSTR}"); e(f"s_add_u32 s{t1}, s{t1}, {S0}"); e(f"v_lshlrev_b32 v{vSA}, 2, v15"); e(f"v_add_u32 v{vSA}, s{t1}, v{vSA}")
    e("v_mul_u32_u24 v14, 896, v15"); e("v_lshrrev_b32 v15, 4, v0"); e("v_lshl_add_u32 v14, v15, 3, v14")
    e(f"s_lshl_b32 s{t1}, s{sN}, 7"); e(f"s_lshl_b32 s{t2_}, s{sW}, 5"); e(f"s_add_u32 s{t1}, s{t1}, s{t2_}"); e(f"v_add_u32 v{vO}, s{t1}, v14")
    P.append(WAIT(vm=["pollA"])); check_or_spin(vPA,0,7,WS,vPoll)
    P.extend(stamp(11))
    LK=OPT['look']
    for b in range(LK): P.extend(flat(hload(b)))
    P.extend(stamp(5))
    for b in range(18):
        mf=[]
        for q in range(4):
            for t in range(5):
                d=vr(ACC(0,q,t),4)
                mf.append(mfma(d,AW(b,q),HS(b,t),"0" if b==0 else d))
        nb=b+LK
        tags=[f"h{b}",f"b{b+1}"]
        if nb==7: tags.append("pollB")
        if nb==14: tags.append("pollO")
        P.append(WAIT(vm=tags,lgkm=0))
        if nb==7: check_or_spin(vPA,512,7,WS,vPoll); P.extend(stamp(6))
        if nb==14:
            check_or_spin(vPO,0,4,WS,vPoll); P.extend(stamp(7))
            for t in range(5): e(f"buffer_load_dword v{vS+t}, v{vSA}, {srd(WS)}, 0 offen offset:{t*64} sc1","s")
        P.extend(stamp(12+b))
        if b==14:
            for q in range(4):
                for t in range(5):
                    for r in range(4): e(f"v_mul_f32 v{ACC(0,q,t)+r}, v{vS+t}, v{ACC(0,q,t)+r}")
        f=[]
        if 8<=b+1<18: f+=spread(treads(b+1),1,14)
        if nb<18:
            for k,it in enumerate(hload(nb)):
                for x in it: f.append((k*4+(0 if x.cls=="vm" else 1),x))
        if nb+2==7: f.append((19,I(f"buffer_load_dword v{vPoll}, v{vPA}, {srd(WS)}, 0 offen offset:512 sc1","pollB")))
        if nb+2==14: f.append((19,I(f"buffer_load_dword v{vPoll}, v{vPO}, {srd(WS)}, 0 offen sc1","pollO")))
        P.extend(pack(mf,f))
    P.extend(stamp(8))
    e(f"v_add_u32 v14, s{sSeg1}, v{vH}")
    for q in range(1,4):
        e(f"s_sub_u32 s{t0}, s{sW}, {q}"); e(f"s_and_b32 s{t0}, s{t0}, 3"); e(f"s_mul_i32 s{t0}, s{t0}, 24576"); e(f"s_add_u32 s{t0}, s{t0}, {65536+(q-1)*5120}")
        e(f"v_add_u32 v{R2+q}, s{t0}, v{vH}")
    for q in range(1,4):
        for t in range(5): e(f"ds_write_b128 v14, {vr(ACC(0,q,t),4)} offset:{(q-1)*5120+t*1024}")
    P.append(WAIT(lgkm=0)); e("s_barrier")
    for t in range(5):
        for q in range(1,4): e(f"ds_read_b128 {vr(ACC(1,q,t),4)}, v{R2+q} offset:{t*1024}")
    for j in range(1,5): e(f"s_mov_b32 s{sXo[j]}, {16*j*896}")
    for t in range(5):
        e(f"s_waitcnt lgkmcnt({12-3*t})")
        d=ACC(0,0,t)
        for r in range(4): e(f"v_add_f32 v{ACC(1,1,t)+r}, v{ACC(1,1,t)+r}, v{ACC(1,2,t)+r}")
        for r in range(4): e(f"v_add_f32 v{d+r}, v{d+r}, v{ACC(1,3,t)+r}")
        for r in range(4): e(f"v_add_f32 v{d+r}, v{d+r}, v{ACC(1,1,t)+r}")
        e(f"v_cvt_pk_bf16_f32 v{d}, v{d}, v{d+1}"); e(f"v_cvt_pk_bf16_f32 v{d+1}, v{d+2}, v{d+3}")
        e(f"buffer_store_dwordx2 {vr(d,2)}, v{vO}, {srd(OUT)}, {'0' if t==0 else 's%d'%sXo[t]} offen","out")
    P.extend(stamp(9,True))
    e("s_endpgm")

def attn():
    sAT,sHG=72,73
    sXb,sWb=74,75
    sWo={(0,0):76,(0,1):77,(1,0):78,(1,1):79,(2,0):80,(2,1):81}
    sK,sD0,sD1,sO,sC=82,83,84,85,86
    mE,mM0,mM1,mZ=88,90,100,68
    t0,t1=66,67; t2_,t3=70,71
    vX=[1,2,3,4,5]; vW=6; vXR=(7,8); vR0=(9,10); vR1=(11,12); vRq=(13,14); vPad=15
    vA=(224,225)
    TBL=159744; XB=98304
    Q=lambda u,tl: 16+(u*2+tl)*4
    K=lambda t,tl: 80+(t*2+tl)*4
    V=lambda d,t: 152+d*36+t*4
    XA=lambda buf,t: buf*36+4*t
    WF=lambda buf,m,tl: 72+buf*24+(2*m+tl)*4
    e("L_attn:")
    e(f"s_lshr_b32 s{sAT}, s{sXCD}, 2"); e(f"s_lshl_b32 s{sAT}, s{sAT}, 3"); e(f"s_add_u32 s{sAT}, s{sAT}, s{sJ}"); e(f"s_and_b32 s{sHG}, s{sXCD}, 3")
    e("v_lshrrev_b32 v230, 3, v0"); e("v_and_b32 v231, 7, v0")
    e(f"s_and_b32 s{t0}, s{sW}, 1"); e(f"s_lshl_b32 s{t1}, s{t0}, 2")
    e("v_lshrrev_b32 v232, 1, v230"); e(f"v_or_b32 v232, s{t1}, v232"); e("v_xor_b32 v232, v232, v231"); e("v_lshlrev_b32 v232, 4, v232")
    e(f"s_lshl_b32 s{t2_}, s{sAT}, 7"); e(f"s_lshl_b32 s{t3}, s{sW}, 3"); e(f"s_add_u32 s{t2_}, s{t2_}, s{t3}")
    e(f"v_add_u32 v{vX[0]}, s{t2_}, v230"); e(f"v_mul_u32_u24 v{vX[0]}, 896, v{vX[0]}"); e(f"v_add_u32 v{vX[0]}, v{vX[0]}, v232")
    for j in range(1,5): e(f"v_add_u32 v{vX[j]}, {32*j*896}, v{vX[0]}")
    e(f"s_cmp_lt_u32 s{t2_}, 16"); e(f"s_cselect_b32 s{t0}, {OOB}, 0"); e(f"v_or_b32 v{vX[0]}, s{t0}, v{vX[0]}")
    e(f"s_cmp_ge_u32 s{sW}, 2"); e(f"s_cselect_b32 s{t0}, {OOB}, 0"); e(f"v_or_b32 v{vX[4]}, s{t0}, v{vX[4]}")
    e("v_lshrrev_b32 v230, 4, v0"); e("v_and_b32 v231, 15, v0")
    e(f"s_and_b32 s{t0}, s{sW}, 2"); e(f"s_lshl_b32 s{t0}, s{t0}, 1"); e(f"v_or_b32 v232, s{t0}, v230"); e("v_lshlrev_b32 v232, 1, v232"); e("v_xor_b32 v232, v232, v231")
    e(f"s_lshl_b32 s{t0}, s{sW}, 2"); e(f"v_add_u32 v{vW}, s{t0}, v230"); e(f"v_mul_u32_u24 v{vW}, 2688, v{vW}")
    e(f"v_lshl_add_u32 v{vW}, v232, 4, v{vW}"); e(f"s_mul_i32 s{t0}, s{sHG}, 224"); e(f"v_add_u32 v{vW}, s{t0}, v{vW}")
    e(f"v_mov_b32 v233, {OOB}"); e("v_cmp_lt_u32 vcc, 13, v232"); e(f"v_cndmask_b32 v{vW}, v{vW}, v233, vcc")
    e(f"s_lshl_b32 s{sXb}, s{sW}, 10"); e(f"s_add_u32 s{sXb}, s{sXb}, {XB}")
    e(f"s_mul_i32 s{sWb}, s{sW}, 6144")
    for (m,j),r in sWo.items():
        imm=((2*m+j)%4)*1024
        e(f"s_mov_b32 s{r}, {4096+m*896+16*j*2688-imm}")
    e(f"s_lshl_b32 s{t0}, s{sW}, 6"); e(f"v_add_u32 v234, s{t0}, v0"); e("v_lshlrev_b32 v235, 2, v234")
    e("s_waitcnt lgkmcnt(0)")
    mksrd(GW,54,896); mksrd(X,40,1835008,14336); mksrd(WA,42,1204224,4096)
    P.extend(stamp(0))
    e(f"buffer_load_dword v236, v235, {srd(GW)}, 0 offen","gw")
    def xdma(c):
        o=[I(f"s_mov_b32 s{sK}, {128*c}")]
        for j in range(5):
            o.append(I(f"s_add_u32 m0, s{sXb}, {(c%3)*20480+j*4096}"))
            o.append(dma(vX[j],X,f"s{sK}",0,f"x{c}"))
        return o
    def wdma(k):
        o=[]
        for m in range(3):
            if m!=1: o.append(I(f"s_add_u32 m0, s{sWb}, {(k%4)*24576+(4096 if m==2 else 0)}"))
            for j in range(2): o.append(dma(vW,WA,f"s{sWo[(m,j)]}",((2*m+j)%4)*1024,f"w{k}"))
        o.append(I(f"v_add_u32 v{vW}, {32*2688}, v{vW}"))
        return o
    for z in (xdma(0),wdma(0),wdma(1)): P.extend(z)
    aq=[(0,xdma(1)),(0,wdma(2)),(0,wdma(3)),(0,xdma(2))]
    for k in range(4,14):
        aq.append((k-4,wdma(k)))
        if k%2==1 and (k+1)//2<=6: aq.append((2*((k+1)//2-3)+1,xdma((k+1)//2)))
    acur=[]
    mksrd(WS,60,WSN); mksrd(DBG,58,256)
    e("v_lshrrev_b32 v230, 4, v0"); e("v_and_b32 v231, 15, v0")
    e("v_lshrrev_b32 v232, 1, v231"); e("v_xor_b32 v232, v232, v230"); e("v_lshlrev_b32 v232, 4, v232")
    e("v_lshl_add_u32 v232, v231, 7, v232"); e(f"v_add_u32 v{vXR[0]}, {XB}, v232"); e(f"v_xor_b32 v{vXR[1]}, 64, v{vXR[0]}")
    e("v_bfe_u32 v232, v0, 2, 2"); e("v_and_b32 v233, 3, v0")
    e("v_and_b32 v237, 1, v230"); e("v_lshl_add_u32 v238, v237, 2, v232"); e("v_lshlrev_b32 v238, 2, v238")
    e("v_mul_u32_u24 v237, 12288, v237"); e("v_lshrrev_b32 v239, 1, v230"); e("v_lshl_add_u32 v237, v239, 10, v237"); e("v_lshl_add_u32 v237, v232, 8, v237")
    e(f"s_mul_i32 s{t0}, s{sW}, 7")
    e(f"v_add_u32 v239, s{t0}, v233")
    e("v_xor_b32 v240, v239, v238"); e(f"v_lshl_add_u32 v{vR0[0]}, v240, 3, v237")
    e("v_add_u32 v239, 4, v239")
    e("v_and_b32 v240, 3, v239"); e("v_or_b32 v240, 28, v240"); e("v_cmp_eq_u32 vcc, 3, v233"); e("v_cndmask_b32 v239, v239, v240, vcc")
    e("v_xor_b32 v240, v239, v238"); e(f"v_lshl_add_u32 v{vR1[0]}, v240, 3, v237")
    e(f"v_cndmask_b32 v{vPad}, 0, 1, vcc")
    e(f"v_add_u32 v{vR0[1]}, 49152, v{vR0[0]}"); e(f"v_add_u32 v{vR1[1]}, 49152, v{vR1[0]}")
    e("v_lshl_add_u32 v240, v230, 3, v232"); e("v_lshlrev_b32 v240, 3, v240"); e(f"v_add_u32 v240, {TBL}, v240")
    e(f"v_cndmask_b32 v{vRq[0]}, v{vR1[0]}, v240, vcc"); e(f"v_cndmask_b32 v{vRq[1]}, v{vR1[1]}, v240, vcc")
    P.append(WAIT(vm=["gw"]))
    e("v_and_b32 v244, 0xffff, v236"); e("v_mov_b32 v245, 0"); e("v_lshrrev_b32 v246, 16, v236"); e("v_mov_b32 v247, 0")
    e("v_lshlrev_b32 v234, 4, v234"); e(f"v_add_u32 v234, {TBL}, v234")
    e("ds_write_b128 v234, v[244:247]")
    def reads(k):
        sl=k%4; h=sl//2; buf=k%2
        pre=[]; tr=[]
        for a in range(2):
            imm=(sl%2)*24576+a*6144
            pre.append(I(f"s_mov_b32 s{(sD0,sD1)[a]}, {(256*k+32*a-imm)&0xffffffff}"))
            pre.append(I(f"v_mad_i32_i24 v{vA[a]}, v{vPad}, s{(sD0,sD1)[a]}, v{vRq[h]}"))
        for m in range(3):
            for tl in range(2):
                for a in range(2):
                    ad = vR0[h] if tl==0 else (vA[a] if m==0 else vR1[h])
                    tr.append(I(f"ds_read_b64_tr_b16 {ar(WF(buf,m,tl)+2*a,2)}, v{ad} offset:{(sl%2)*24576+a*6144+m*2048}"))
        xs=[I(f"ds_read_b128 {ar(XA(buf,t),4)}, v{vXR[k%2]} offset:{((k//2)%3)*20480+t*2048}") for t in range(9)]
        return pre+tr[:2]+xs+tr[2:]
    P.append(WAIT(vm=["x0","w0"],lgkm=0)); e("s_barrier")
    P.extend(stamp(1))
    P.extend(reads(0)); P.append(WAIT(vm=["w1"],lgkm=0)); e("s_barrier")
    for k in range(14):
        buf=k%2; mf=[]
        c=lambda d: "0" if k==0 else d
        for tl in range(2):
            for u in range(8): d=vr(Q(u,tl),4); mf.append(mfma(d,ar(WF(buf,0,tl),4),ar(XA(buf,u+1),4),c(d)))
        for tl in range(2):
            for t in range(9): d=vr(K(t,tl),4); mf.append(mfma(d,ar(WF(buf,1,tl),4),ar(XA(buf,t),4),c(d)))
        for tl in range(2):
            for t in range(9): d=vr(V(tl,t),4); mf.append(mfma(d,ar(XA(buf,t),4),ar(WF(buf,2,tl),4),c(d)))
        f=[]
        if k<13: f+=spread(reads(k+1),0,36)
        dm=[]; nd=0
        while nd<OPT['arate']:
            if not acur:
                if aq and aq[0][0]<=k: acur=list(aq.pop(0)[1])
                else: break
            x=acur.pop(0); dm.append(x); nd+=(x.cls=="vm")
            while acur and acur[0].cls=="valu": dm.append(acur.pop(0))
        if k==8:
            dm.append(I("v_mov_b32 v249, 0")); dm.append(I(f"buffer_load_dword v248, v249, {srd(DBG)}, 0 offen sc1","clr"))
        pos=0; nd=0
        for x in dm:
            if x.cls=="vm": nd+=1
            f.append((4.3*nd-(2 if x.cls=="vm" else (1 if x.cls=="valu" else -1)),x))
        P.extend(pack(mf,f))
        if k<13:
            P.append(WAIT(vm=[f"w{k+2}",f"x{(k+2)//2}"],lgkm=0)); e("s_barrier"); P.extend(stamp(32+k))
    P.extend(stamp(2))
    g,i=230,231
    e("v_lshrrev_b32 v230, 4, v0"); e("v_and_b32 v231, 15, v0")
    e("v_and_b32 v232, 1, v231"); e(f"v_cmp_eq_u32 s[{mE}:{mE+1}], 0, v232")
    e("v_lshl_add_u32 v233, v230, 2, v232"); e(f"v_cmp_le_u32 s[{mM0}:{mM0+1}], v233, v231")
    e("v_add_u32 v233, 2, v233"); e(f"v_cmp_le_u32 s[{mM1}:{mM1+1}], v233, v231")
    e("v_mov_b32 v234, 0xffff0000"); e("v_mov_b32 v235, 0xffff"); e(f"v_cndmask_b32 v234, v234, v235, s[{mE}:{mE+1}]")
    cA0,cB0,cA1,cB1,vBP,vH,vNeg=1,2,3,4,5,6,7
    e(f"v_cndmask_b32 v{cA0}, 0, v234, s[{mM0}:{mM0+1}]"); e(f"v_xor_b32 v{cB0}, v{cA0}, v234")
    e(f"v_cndmask_b32 v{cA1}, 0, v234, s[{mM1}:{mM1+1}]"); e(f"v_xor_b32 v{cB1}, v{cA1}, v234")
    e(f"v_or_b32 v{vBP}, 48, v231"); e(f"v_lshlrev_b32 v{vBP}, 2, v{vBP}")
    e(f"v_lshlrev_b32 v{vH}, 4, v0"); e(f"v_add_u32 v8, 4096, v{vH}")
    e(f"v_mov_b32 v{vNeg}, 0xf149f2ca")
    e(f"s_cmp_eq_u32 s{sAT}, 0"); e(f"s_cselect_b64 s[{mZ}:{mZ+1}], -1, 0")
    cs=28**-0.5*math.log2(math.e)
    import struct
    f2u=lambda x: struct.unpack("<I",struct.pack("<f",x))[0]
    e(f"s_mov_b32 s{sC}, {f2u(cs):#x}"); e(f"s_mov_b32 s{sK}, 0xbfb8aa3b")
    e(f"s_lshl_b32 s{t0}, s{sHG}, 2"); e(f"s_add_u32 s{t0}, s{t0}, s{sW}"); e(f"s_add_u32 s{t0}, s{t0}, 56"); e(f"s_mul_i32 s{t0}, s{t0}, {NT}")
    e(f"s_lshl_b32 s{t1}, s{sAT}, 3"); e(f"s_add_u32 s{t0}, s{t0}, s{t1}"); e(f"s_lshl_b32 s{t0}, s{t0}, 10"); e(f"s_add_u32 s{sO}, s{t0}, {H0}")
    U=range(8)
    Z=lambda u: 224+u
    A=lambda u: 232+u; B=lambda u: 240+u; M=lambda u: 170+u; T=lambda u: 178+u; L=lambda u: 206+u; T2=lambda u: 214+u
    for u in U: e(f"ds_bpermute_b32 v{Z(u)}, v{vBP}, v{Q(u,1)}")
    def pack4(d,a,b):
        e(f"v_cvt_pk_bf16_f32 v{d}, v{a}, v{a+1}"); e(f"v_cvt_pk_bf16_f32 v{d+1}, v{a+2}, v{a+3}")
        e(f"v_cvt_pk_bf16_f32 v{d+2}, v{b}, v{b+1}"); e(f"v_cvt_pk_bf16_f32 v{d+3}, v{b+2}, v{b+3}")
    for t in range(9): pack4(K(t,0),K(t,0),K(t,1))
    for u in U: pack4(Q(u,0),Q(u,0),Q(u,1))
    P.append(WAIT(lgkm=0))
    SP=lambda u: K(u,1); SO=lambda u: Q(u,1)
    sm=[]
    for u in U:
        sm.append(mfma(vr(SP(u),4),vr(K(u,0),4),vr(Q(u,0),4),"0")); sm.append(mfma(vr(SO(u),4),vr(K(u+1,0),4),vr(Q(u,0),4),"0"))
    vp=[]
    for d in range(2):
        for t in range(9):
            vp.append(I(f"v_cvt_pk_bf16_f32 v{V(d,0)+2*t}, v{V(d,t)}, v{V(d,t)+1}")); vp.append(I(f"v_cvt_pk_bf16_f32 v{V(d,0)+2*t+1}, v{V(d,t)+2}, v{V(d,t)+3}"))
    P.extend(weave(sm,spread(vp,0,16)))
    for u in U: e(f"v_mul_f32 v{Z(u)}, s{sK}, v{Z(u)}")
    for u in U: e(f"v_exp_f32 v{Z(u)}, v{Z(u)}")
    for u in U: e(f"v_add_f32 v{Z(u)}, 1.0, v{Z(u)}")
    for u in U: e(f"v_rcp_f32 v{Z(u)}, v{Z(u)}")
    sE=f"s[{mE}:{mE+1}]"
    for u in U:
        e(f"v_cndmask_b32 v{A(u)}, v{SO(u)+1}, v{SO(u)}, {sE}"); e(f"v_cndmask_b32 v{B(u)}, v{SO(u)+3}, v{SO(u)+2}, {sE}")
        e(f"v_cndmask_b32 v{M(u)}, v{SP(u)+1}, v{SP(u)}, {sE}"); e(f"v_cndmask_b32 v{T(u)}, v{SP(u)+3}, v{SP(u)+2}, {sE}")
    e(f"v_cndmask_b32 v{M(0)}, v{M(0)}, v{vNeg}, s[{mZ}:{mZ+1}]"); e(f"v_cndmask_b32 v{T(0)}, v{T(0)}, v{vNeg}, s[{mZ}:{mZ+1}]")
    for u in U:
        e(f"v_cndmask_b32 v{A(u)}, v{M(u)}, v{A(u)}, s[{mM0}:{mM0+1}]"); e(f"v_cndmask_b32 v{B(u)}, v{T(u)}, v{B(u)}, s[{mM1}:{mM1+1}]")
    def allred(R,op):
        for sw in ("v_permlane32_swap_b32","v_permlane16_swap_b32"):
            for u in U: e(f"v_mov_b32 v{T(u)}, v{R(u)}")
            for u in U: e(f"{sw} v{R(u)}, v{T(u)}")
            for u in U: e(f"{op} v{R(u)}, v{R(u)}, v{T(u)}")
    for u in U: e(f"v_max_f32 v{M(u)}, v{A(u)}, v{B(u)}")
    allred(M,"v_max_f32")
    for u in U: e(f"v_mul_f32 v{M(u)}, s{sC}, v{M(u)}")
    for u in U:
        e(f"v_fma_f32 v{A(u)}, v{A(u)}, s{sC}, -v{M(u)}"); e(f"v_fma_f32 v{B(u)}, v{B(u)}, s{sC}, -v{M(u)}")
    for u in U:
        e(f"v_exp_f32 v{A(u)}, v{A(u)}"); e(f"v_exp_f32 v{B(u)}, v{B(u)}")
    for u in U: e(f"v_add_f32 v{L(u)}, v{A(u)}, v{B(u)}")
    allred(L,"v_add_f32")
    for u in U: e(f"v_rcp_f32 v{L(u)}, v{L(u)}")
    for u in U: e(f"v_mul_f32 v{L(u)}, v{L(u)}, v{Z(u)}")
    for u in U:
        e(f"v_mul_f32 v{A(u)}, v{A(u)}, v{L(u)}"); e(f"v_mul_f32 v{B(u)}, v{B(u)}, v{L(u)}")
    for u in U:
        e(f"v_cvt_pk_bf16_f32 v{A(u)}, v{A(u)}, v{A(u)}"); e(f"v_cvt_pk_bf16_f32 v{B(u)}, v{B(u)}, v{B(u)}")
    PQ=lambda u: Q(u,0)
    for u in U:
        e(f"v_and_b32 v{PQ(u)}, v{cB0}, v{A(u)}"); e(f"v_and_b32 v{PQ(u)+1}, v{cB1}, v{B(u)}")
        e(f"v_and_b32 v{PQ(u)+2}, v{cA0}, v{A(u)}"); e(f"v_and_b32 v{PQ(u)+3}, v{cA1}, v{B(u)}")
    pm=[]
    for u in U:
        pm.append(mfma(vr(SP(u),4),vr(V(0,0)+2*u,4),vr(PQ(u),4),"0")); pm.append(mfma(vr(SO(u),4),vr(V(1,0)+2*u,4),vr(PQ(u),4),"0"))
    sv=[]
    for u in U: sv.append(I(f"v_sub_f32 v{Z(u)}, 1.0, v{Z(u)}"))
    for k in range(1,4):
        sv.append(I(f"v_cmp_eq_u32 vcc, {k*16}, v9")); sv.append(I("s_nop 0"))
        sv.append(I(f"v_cndmask_b32 v{Z(0)}, v{Z(0)}, v{Z(k)}, vcc")); sv.append(I(f"v_cndmask_b32 v{Z(4)}, v{Z(4)}, v{Z(4+k)}, vcc"))
    e("v_and_b32 v9, 48, v0")
    P.extend(weave(pm,spread(sv,0,16)))
    e(f"s_mul_i32 s{t0}, s{sHG}, {SSTR}"); e(f"s_lshl_b32 s{t1}, s{sAT}, 9"); e(f"s_add_u32 s{t0}, s{t0}, s{t1}"); e(f"s_add_u32 s{t0}, s{t0}, {S0}")
    e(f"s_cmp_eq_u32 s{sW}, 0"); e(f"s_cselect_b32 s{t0}, s{t0}, {OOB}")
    e("v_lshlrev_b32 v10, 2, v0"); e(f"v_add_u32 v10, s{t0}, v10")
    for u in U:
        pack4(PQ(u),SP(u),SO(u))
        e(f"buffer_store_dwordx4 {vr(PQ(u),4)}, v{vH if u<4 else 8}, {srd(WS)}, s{sO} offen offset:{(u%4)*1024} sc1","st")
    e(f"buffer_store_dword v{Z(0)}, v10, {srd(WS)}, 0 offen sc1","st"); e(f"buffer_store_dword v{Z(4)}, v10, {srd(WS)}, 0 offen offset:256 sc1","st")
    e(f"s_lshl_b32 s{t0}, s{sAT}, 2"); e(f"s_add_u32 s{t0}, s{t0}, s{sHG}"); e(f"s_add_u32 s{t0}, s{t0}, 208"); e(f"s_lshl_b32 s{t0}, s{t0}, 7")
    e(f"v_mov_b32 v11, {OOB}"); e(f"v_mov_b32 v12, s{t0}"); e("v_cmp_eq_u32 vcc, 0, v0"); e("v_cndmask_b32 v11, v11, v12, vcc"); e("v_mov_b32 v13, 1")
    P.extend(stamp(3))
    P.append(WAIT(vm=0))
    check_or_spin(249,0,1,DBG,248)
    e(f"buffer_atomic_add v13, v11, {srd(WS)}, 0 offen","sig")
    P.extend(stamp(4,True))
    e("s_endpgm")

def spare():
    e("L_spare:")
    e("s_getpc_b64 s[66:67]")
    e("L_pc:")
    e("s_sub_u32 s66, s66, L_pc-"+NAME+"_kernel"); e("s_subb_u32 s67, s67, 0")
    e(f"s_lshl_b32 s68, s{sW}, 13"); e("v_lshlrev_b32 v1, 7, v0"); e("v_add_u32 v1, s68, v1")
    e("v_min_u32 v2, L_end-"+NAME+"_kernel-4, v1")
    e("global_load_dword v3, v2, s[66:67]","pf")
    e("v_add_u32 v1, 32768, v1"); e("v_min_u32 v2, L_end-"+NAME+"_kernel-4, v1")
    e("global_load_dword v4, v2, s[66:67]","pf")
    e("s_waitcnt lgkmcnt(0)")
    e("s_cmp_eq_u32 s2, 64"); e("s_cbranch_scc0 L_exit")
    e(f"s_cmp_eq_u32 s{sW}, 0"); e("s_cbranch_scc0 L_exit")
    mksrd(WS,60,WSN); mksrd(DBG,58,256)
    e("v_lshlrev_b32 v5, 8, v0"); e("v_mov_b32 v6, 0"); e("v_lshlrev_b32 v7, 7, v0"); e("v_mov_b32 v8, 1")
    for k in range(5):
        e(f"buffer_store_dword v6, v7, {srd(WS)}, 0 offen sc1"); e("v_add_u32 v7, 8192, v7")
    e("s_waitcnt vmcnt(0)")
    e(f"buffer_store_dword v8, v5, {srd(DBG)}, 0 offen sc1")
    e("L_exit:")
    e("s_endpgm")
    e("L_end:")

def main():
    global P
    head=open("cdna_kernels/"+NAME+".s.ref").read().split("; Override launch")[0]
    txt=[]; nops=0
    for part in ((common_prologue,ffn),(attn,),(spare,)):
        P.clear()
        if part[0] is not common_prologue:
            pass
        for f in part: f()
        o,n=finalize(list(P),part[-1].__name__); nops+=n
        txt+=[x.text if x.cls=="label" else "    "+x.text for x in o]
    out=head+"; generated by gen/gen.py (hand-designed schedule, python emitter)\n; @launch grid=(256,1,1) block=(256,1,1) lds=163840\n"
    out+='.amdgcn_target "amdgcn-amd-amdhsa--gfx950"\n.text\n'
    out+=f".globl {NAME}_kernel\n.p2align 8\n.type {NAME}_kernel,@function\n{NAME}_kernel:\n"
    out+="\n".join(txt)+"\n"
    out+=f""".section .rodata,"a"
.p2align 6
.amdhsa_kernel {NAME}_kernel
  .amdhsa_next_free_vgpr 512
  .amdhsa_next_free_sgpr 102
  .amdhsa_accum_offset 256
  .amdhsa_group_segment_fixed_size 0
  .amdhsa_kernarg_size 88
  .amdhsa_user_sgpr_count 2
  .amdhsa_user_sgpr_kernarg_segment_ptr 1
  .amdhsa_system_sgpr_workgroup_id_x 1
.end_amdhsa_kernel
"""
    open(sys.argv[1],"w").write(out)
    print("instructions",len(txt),"auto nops",nops)
main()
```

```python
import sys, math
from isa import *
NAME="gated_mix__sliding_local_dilated__swiglu_ffn__prompt"
OPT=dict(outpol=0, probe=-2, pwg=100, arate=12, hsc1=1, stamp=0, rate=5, cap=2, look=3, sigA_tile=1, sigB_blk=3, pollA_blk=5, chain=1, pf=1)
for a in sys.argv[2:]:
    k,v=a.split("="); OPT[k]=int(v)
H0=0x100000; NT=130; S0=0x80000; SSTR=2176*4; STAMP0=0xC00000; WSN=0x1000000
OOB=0x80000000
X,WA,WU,WD,WO,WS,OUT,DBG,GW=4,8,12,16,20,24,28,32,36
def srd(b): return f"s[{b}:{b+3}]"
def vr(b,n=1): return f"v{b}" if n==1 else f"v[{b}:{b+n-1}]"
def ar(b,n=1): return f"a{b}" if n==1 else f"a[{b}:{b+n-1}]"
P=[]
def e(t,tag=None):
    x=I(t,tag); P.append(x); return x
_l=[0]
def lab(p="L"):
    _l[0]+=1; return f"{p}{_l[0]}"
def mksrd(b,src,n,bias=0):
    if bias:
        e(f"s_sub_u32 s{b}, s{src}, {bias}"); e(f"s_subb_u32 s{b+1}, s{src+1}, 0")
    else:
        e(f"s_mov_b64 s[{b}:{b+1}], s[{src}:{src+1}]")
    e(f"s_mov_b32 s{b+2}, {n+bias}"); e(f"s_mov_b32 s{b+3}, 0x20000")
def mfma(d,a,b,c): return I(f"v_mfma_f32_16x16x32_bf16 {d}, {a}, {b}, {c}")
sW,sXCD,sJ,sI=62,63,64,65
sT=[66,67,68,69,70,71]
sSTB=98
nstamp=[0]
def stamp(idx,last=False):
    if OPT['probe']!=-2:
        o=[]
        if idx==OPT['probe']: o+=[I("s_memrealtime s[94:95]"),I("s_waitcnt lgkmcnt(0)"),I("s_sub_u32 s97, s94, s96")]
        if last:
            L=lab("PR"); D=lab("PD")
            o+=[I(f"s_cmp_eq_u32 s2, {OPT['pwg']}"),I(f"s_cbranch_scc0 {D}"),I("s_add_u32 s97, s97, 4000"),I(L+":"),I("s_memrealtime s[94:95]"),I("s_waitcnt lgkmcnt(0)"),
                I("s_sub_u32 s94, s94, s96"),I("s_cmp_lt_u32 s94, s97"),I(f"s_cbranch_scc1 {L}"),I(D+":")]
        return o
    if not OPT['stamp']: return []
    o=[I("s_memrealtime s[94:95]"),I("s_memtime s[96:97]"),I("s_waitcnt lgkmcnt(0)"),
       I(f"v_writelane_b32 v254, s94, {idx}"),I(f"v_writelane_b32 v255, s96, {idx}")]
    if last: o+=[I("v_lshlrev_b32 v253, 3, v0"),I(f"buffer_store_dwordx2 v[254:255], v253, {srd(WS)}, s{sSTB} offen","stamp")]
    return o
def spin(addrv, off, cmpval, srdb, res=12):
    L=lab("SP"); D=lab("SD")
    e("s_mov_b32 s92, 0")
    e(L+":")
    e(f"buffer_load_dword v{res}, v{addrv}, {srd(srdb)}, 0 offen offset:{off} sc1","poll")
    e("s_waitcnt vmcnt(0)")
    e(f"v_cmp_ne_u32 vcc, {cmpval}, v{res}")
    e(f"s_cbranch_vccz {D}")
    e("s_add_u32 s92, s92, 1")
    e("s_cmp_lt_u32 s92, 0x40000")
    e("s_sleep 1")
    e(f"s_cbranch_scc1 {L}")
    e(D+":")
def check_or_spin(addrv, off, cmpval, srdb, res):
    D=lab("CK")
    e(f"v_cmp_ne_u32 vcc, {cmpval}, v{res}")
    e(f"s_cbranch_vccz {D}")
    n0=len(P)
    spin(addrv,off,cmpval,srdb,res)
    for x in P[n0:]:
        if x.cls=="vm": x.cls="raw"; x.wr=set()
        if x.op=="s_waitcnt": x.op="raw"
    e(D+":")

def common_prologue():
    e("s_cmp_ge_u32 s2, 256"); e("s_cbranch_scc1 L_exit")
    if OPT['probe']!=-2:
        e("s_memrealtime s[94:95]"); e("s_waitcnt lgkmcnt(0)"); e("s_mov_b32 s96, s94"); e("s_mov_b32 s97, 0")
    e("s_load_dwordx16 s[40:55], s[0:1], 0")
    e("s_load_dwordx4 s[56:59], s[0:1], 64")
    e("s_load_dwordx2 s[60:61], s[0:1], 80")
    e("v_lshrrev_b32 v1, 6, v0")
    e(f"s_and_b32 s{sXCD}, s2, 7"); e(f"s_lshr_b32 s{sJ}, s2, 3")
    e(f"v_readfirstlane_b32 s{sW}, v1")
    e("v_and_b32 v0, 63, v0")
    if OPT['stamp']:
        e(f"s_lshl_b32 s{sSTB}, s2, 2"); e(f"s_add_u32 s{sSTB}, s{sSTB}, s{sW}"); e(f"s_lshl_b32 s{sSTB}, s{sSTB}, 9")
        e(f"s_add_u32 s{sSTB}, s{sSTB}, {STAMP0}")
        e("v_mov_b32 v254, 0"); e("v_mov_b32 v255, 0")
    e(f"s_cmp_lt_u32 s{sJ}, 8"); e("s_cbranch_scc1 L_attn")
    e(f"s_cmp_eq_u32 s{sJ}, 8"); e("s_cbranch_scc1 L_spare")

def dma(voff,sr,soff,imm,tag): return I(f"buffer_load_dwordx4 v{voff}, {srd(sr)}, {soff} offen offset:{imm} lds",tag)

def ffn():
    sSL,sTT,sT2,sN=72,73,74,75
    sSeg1,sSeg2,sXb=76,77,78
    sXo=[None,79,80,81,82]
    sW1o=83; sW2o=[None,84,85,86]
    sHst,sHld,sC=87,88,89
    vX,vW,vXR,vWR,vW2,vH,vH4,vFl,vOne,vPoll,vPA=1,2,(3,4),(5,6),7,8,9,10,11,12,13
    ACC=lambda p,q,t: 16+80*p+(q*5+t)*4
    def XF(i): return ar(4*i,4) if i<64 else vr(176+4*(i-64),4)
    AF=lambda buf,q: 200+16*buf+4*q
    t0,t1,t2_,t3=sT[:4]
    e(f"s_sub_u32 s{sI}, s{sJ}, 9")
    e(f"s_and_b32 s{t0}, s{sXCD}, 3"); e(f"s_cmp_eq_u32 s{t0}, 3"); e(f"s_cselect_b32 s{t0}, 22, 23")
    e(f"s_cmp_ge_u32 s{sI}, s{t0}"); e("s_cbranch_scc1 L_spare")
    e(f"s_mul_i32 s{t0}, s{sXCD}, 23"); e(f"s_add_u32 s{sI}, s{sI}, s{t0}")
    e(f"s_lshr_b32 s{t0}, s{sXCD}, 2"); e(f"s_sub_u32 s{sI}, s{sI}, s{t0}")
    e(f"s_mul_i32 s{sT2}, s{sI}, 9363"); e(f"s_lshr_b32 s{sT2}, s{sT2}, 16")
    e(f"s_mul_i32 s{t0}, s{sT2}, 7"); e(f"s_sub_u32 s{sN}, s{sI}, s{t0}")
    e(f"s_sub_u32 s{t0}, s{sI}, 98"); e(f"s_mul_i32 s{t1}, s{t0}, 10923"); e(f"s_lshr_b32 s{t1}, s{t1}, 16")
    e(f"s_mul_i32 s{t2_}, s{t1}, 6"); e(f"s_sub_u32 s{t0}, s{t0}, s{t2_}"); e(f"s_add_u32 s{t0}, s{t0}, 7")
    e(f"s_cmp_lt_u32 s{sI}, 98"); e(f"s_cselect_b32 s{sSL}, s{sT2}, s{t1}"); e(f"s_cselect_b32 s{sTT}, s{sN}, s{t0}")
    e("v_lshrrev_b32 v14, 3, v0")
    e("v_and_b32 v15, 7, v0")
    e(f"s_and_b32 s{t0}, s{sW}, 1"); e(f"s_lshl_b32 s{t1}, s{t0}, 2")
    e("v_lshrrev_b32 v12, 1, v14"); e(f"v_or_b32 v13, s{t1}, v12"); e("v_xor_b32 v13, v13, v15")
    e(f"s_mul_i32 s{t2_}, s{sTT}, 160"); e(f"s_lshl_b32 s{t3}, s{sW}, 3"); e(f"s_add_u32 s{t2_}, s{t2_}, s{t3}")
    e(f"v_add_u32 v{vX}, s{t2_}, v14"); e(f"v_mul_u32_u24 v{vX}, 896, v{vX}"); e(f"v_lshl_add_u32 v{vX}, v13, 4, v{vX}")
    e(f"s_lshl_b32 s{t0}, s{t0}, 2")
    e("v_and_b32 v13, 2, v14"); e(f"v_or_b32 v13, s{t0}, v13"); e("v_xor_b32 v13, v13, v15")
    e(f"v_add_u32 v{vW}, s{t3}, v14"); e(f"v_mul_u32_u24 v{vW}, 3584, v{vW}"); e(f"v_lshl_add_u32 v{vW}, v13, 4, v{vW}")
    e(f"s_lshl_b32 s{t0}, s{sSL}, 8"); e(f"v_add_u32 v{vW}, s{t0}, v{vW}")
    e(f"s_lshl_b32 s{sSeg2}, s{sW}, 12")
    e(f"s_lshl_b32 s{sXb}, s{sW}, 10"); e(f"s_add_u32 s{sXb}, s{sXb}, 65536")
    for j in range(1,5): e(f"s_mov_b32 s{sXo[j]}, {32*j*896}")
    e(f"s_mov_b32 s{sW1o}, {32*3584-1024}")
    for b,n in ((X,1835008),(WA,1605632),(WU,1605632+2048)):
        e(f"s_mov_b32 s{b+2}, {n}"); e(f"s_mov_b32 s{b+3}, 0x20000")
    e("s_waitcnt lgkmcnt(0)")
    e(f"s_mov_b64 s[{X}:{X+1}], s[40:41]"); e(f"s_mov_b64 s[{WA}:{WA+1}], s[48:49]")
    e(f"s_sub_u32 s{WU}, s50, 2048"); e(f"s_subb_u32 s{WU+1}, s51, 0")
    P.extend(stamp(0))
    def xdma(c):
        o=[]
        for j in range(5):
            o.append([I(f"s_add_u32 m0, s{sXb}, {(c%4)*20480+j*4096}"), dma(vX,X,"0" if j==0 else f"s{sXo[j]}",0,f"x{c}")])
        o[-1].append(I(f"v_add_u32 v{vX}, 128, v{vX}"))
        return o
    def wdma(s):
        o=[]
        for j in range(2):
            for m in range(2):
                o.append([dma(vW,WA if m==0 else WU,"0" if j==0 else f"s{sW1o}",(2*m+j)*1024,f"w{s}")])
        o[0].insert(0,I(f"s_add_u32 m0, s{sSeg2}, {(s%4)*16384}"))
        d = 64*3584 if s!=6 else (128-6*64*3584)&0xffffffff
        o[-1].append(I(f"v_add_u32 v{vW}, {d}, v{vW}"))
        return o
    def blkloc(b):
        if b>=10: b-=10
        if b<6: return (sSeg1,b*4096)
        return (sSeg2,((b+4)%4)*16384)
    def w2dma(b):
        sg,off=blkloc(b)
        o=[[dma(vW2,WD if b<14 else WO,"0" if pi==0 else f"s{sW2o[pi]}",pi*1024,f"b{b}")] for pi in range(4)]
        o[0].insert(0,I(f"s_add_u32 m0, s{sg}, {off}"))
        if b==6: o[-1].append(I(f"v_add_u32 v{vW2}, {(64*896-6*114688)&0xffffffff}, v{vW2}"))
        elif b==13: o[-1].append(I(f"v_add_u32 v{vW2}, s{sT[4]}, v{vW2}"))
        elif b<13: o[-1].append(I(f"v_add_u32 v{vW2}, 114688, v{vW2}"))
        elif b<17: o[-1].append(I(f"v_add_u32 v{vW2}, {28*896}, v{vW2}"))
        return o
    flat=lambda L:[x for it in L for x in it]
    for s in range(2):
        P.extend(flat(xdma(s))); P.extend(flat(wdma(s)))
    mksrd(WS,60,WSN); mksrd(WD,52,1605632); mksrd(WO,44,401408); mksrd(OUT,56,1835008); mksrd(DBG,58,256)
    e("v_lshrrev_b32 v14, 4, v0")
    e("v_and_b32 v15, 15, v0")
    e("v_lshrrev_b32 v12, 1, v15"); e("v_xor_b32 v12, v12, v14"); e("v_lshlrev_b32 v12, 4, v12")
    e("v_lshl_add_u32 v12, v15, 7, v12")
    e(f"s_lshr_b32 s{t0}, s{sW}, 1"); e(f"s_mul_i32 s{t0}, s{t0}, 10240"); e(f"s_add_u32 s{t0}, s{t0}, 65536")
    e(f"v_add_u32 v{vXR[0]}, s{t0}, v12"); e(f"v_xor_b32 v{vXR[1]}, 64, v{vXR[0]}")
    e("v_bfe_u32 v12, v0, 2, 2")
    e("v_lshrrev_b32 v13, 1, v12"); e("v_and_b32 v15, 1, v14"); e("v_lshlrev_b32 v15, 1, v15"); e("v_or_b32 v13, v13, v15")
    e(f"s_and_b32 s{t0}, s{sW}, 1"); e(f"s_lshl_b32 s{t0}, s{t0}, 1"); e(f"v_xor_b32 v13, s{t0}, v13"); e("v_lshlrev_b32 v13, 5, v13")
    e("v_lshl_add_u32 v13, v14, 12, v13"); e("v_lshl_add_u32 v13, v12, 7, v13")
    e("v_and_b32 v15, 3, v0"); e(f"v_lshl_add_u32 v{vWR[0]}, v15, 3, v13"); e(f"v_xor_b32 v{vWR[1]}, 32, v{vWR[0]}")
    e("v_lshrrev_b32 v12, 3, v0"); e("v_and_b32 v13, 6, v12"); e("v_and_b32 v15, 7, v0"); e("v_xor_b32 v13, v13, v15")
    e("v_mul_u32_u24 v12, 896, v12"); e(f"v_lshl_add_u32 v{vW2}, v13, 4, v12")
    e(f"s_lshr_b32 s{t0}, s{sW}, 1"); e(f"s_mul_i32 s{t0}, s{t0}, 28"); e(f"s_and_b32 s{t1}, s{sW}, 1"); e(f"s_add_u32 s{t3}, s{t0}, s{t1}")
    e(f"s_mul_i32 s{t1}, s{t3}, {32*896}"); e(f"s_lshl_b32 s{t2_}, s{sN}, 7"); e(f"s_add_u32 s{t2_}, s{t1}, s{t2_}"); e(f"v_add_u32 v{vW2}, s{t2_}, v{vW2}")
    e(f"s_mul_i32 s{t0}, s{sW}, {112*896}"); e(f"s_sub_u32 s{t0}, s{t0}, s{t1}"); e(f"s_sub_u32 s{sT[4]}, s{t0}, {26*32*896}")
    e(f"s_lshl_b32 s{t1}, s{sW}, 2"); e(f"s_add_u32 s{t1}, s{t1}, 30"); e(f"s_sub_u32 s{t0}, s{t1}, s{t3}"); e(f"s_mul_i32 s{sT[5]}, s{t0}, {NT*1024}")
    e(f"s_mul_i32 s{t0}, s{t3}, {NT}"); e(f"s_mul_i32 s{t1}, s{sT2}, 5"); e(f"s_add_u32 s{t0}, s{t0}, s{t1}"); e(f"s_lshl_b32 s{t0}, s{t0}, 10"); e(f"s_add_u32 s{sHld}, s{t0}, {H0}")
    e(f"s_lshl_b32 s{t2_}, s{sTT}, 1"); e(f"s_lshr_b32 s{t1}, s{sW}, 1"); e(f"s_add_u32 s{t2_}, s{t2_}, s{t1}")
    e(f"s_lshl_b32 s{t0}, s{sSL}, 2"); e(f"s_and_b32 s{t3}, s{sW}, 1"); e(f"s_add_u32 s{t0}, s{t0}, s{t3}"); e(f"s_mul_i32 s{t0}, s{t0}, {NT}")
    e(f"s_mul_i32 s{t1}, s{t2_}, 5"); e(f"s_add_u32 s{t0}, s{t0}, s{t1}")
    e(f"s_lshl_b32 s{t0}, s{t0}, 10"); e(f"s_add_u32 s{sHst}, s{t0}, {H0}")
    e(f"s_lshl_b32 s{t0}, s{t2_}, 3"); e(f"s_add_u32 s{t0}, s{t0}, s{t3}"); e(f"s_cmp_ge_u32 s{sSL}, 7"); e(f"s_cselect_b32 s{t1}, 2, 0"); e(f"s_add_u32 s{t0}, s{t0}, s{t1}"); e(f"s_lshl_b32 s{t0}, s{t0}, 7")
    e(f"v_mov_b32 v{vFl}, {OOB}"); e(f"v_mov_b32 v12, s{t0}"); e("v_cmp_eq_u32 vcc, 0, v0")
    e(f"v_lshlrev_b32 v{vH}, 4, v0"); e(f"v_add_u32 v{vH4}, 4096, v{vH}")
    e(f"v_cndmask_b32 v{vFl}, v{vFl}, v12, vcc")
    e(f"s_mul_i32 s{sSeg1}, s{sW}, 24576"); e(f"s_add_u32 s{sSeg1}, s{sSeg1}, 65536")
    for j in range(1,4): e(f"s_mov_b32 s{sW2o[j]}, {6144*j}")
    e(f"s_mov_b32 s{sC}, 0xbfb8aa3b")
    e(f"v_mov_b32 v{vOne}, 1")
    e(f"s_lshl_b32 s{t0}, s{sT2}, 3"); e(f"s_add_u32 s{t0}, s{t0}, s{sW}"); e(f"s_lshl_b32 s{t0}, s{t0}, 7"); e(f"v_mov_b32 v{vPA}, s{t0}")
    e("v_mov_b32 v15, 0")
    CH=OPT['chain']
    def reads(Pn):
        p,s,h=Pn//14,Pn//2,Pn%2
        o=[]
        for ks in ((0,1) if CH else (h,)):
            if p==0 and (h==0 or not CH):
                if s==3: o.append(I(f"v_add_u32 v{vXR[ks]}, 61440, v{vXR[ks]}"))
                for t in range(5): o.append(I(f"ds_read_b128 {XF((2*s+ks)*5+t)}, v{vXR[ks]} offset:{(s%4 if s!=3 else 0)*20480+t*2048}"))
                if s==3: o.append(I(f"v_subrev_u32 v{vXR[ks]}, 61440, v{vXR[ks]}"))
        tr=[]
        for j in range(4):
            if CH: m,ks,tl=j>>1,j&1,h
            else: m,ks,tl=j>>1,h,j&1
            for a in range(2):
                tr.append(I(f"ds_read_b64_tr_b16 {vr(AF(h,j)+2*a,2)}, v{vWR[tl]} offset:{(s%4)*16384+(2*m+ks)*1024+a*512}"))
        return tr[:4]+o+tr[4:]
    def epi(p,t):
        T=[232+k for k in range(8)]; O=240+4*(t%2)
        G=[ACC(p,k>>2,t)+(k&3) for k in range(8)]; U=[ACC(p,2+(k>>2),t)+(k&3) for k in range(8)]
        o=[]
        for k in range(8): o.append(I(f"v_mul_f32 v{T[k]}, s{sC}, v{G[k]}"))
        for k in range(8):
            o.append(I(f"v_exp_f32 v{T[k]}, v{T[k]}")); o.append(I(f"v_mul_f32 v{U[k]}, v{G[k]}, v{U[k]}"))
        for k in range(8): o.append(I(f"v_add_f32 v{T[k]}, 1.0, v{T[k]}"))
        for k in range(8):
            o.append(I(f"v_rcp_f32 v{G[k]}, v{T[k]}"))
            if k>=1: o.append(I(f"v_mul_f32 v{U[k-1]}, v{G[k-1]}, v{U[k-1]}"))
            if k>=3 and k%2==1: o.append(I(f"v_cvt_pk_bf16_f32 v{O+(k-3)//2}, v{U[k-3]}, v{U[k-2]}"))
        o.append(I(f"v_mul_f32 v{U[7]}, v{G[7]}, v{U[7]}"))
        o.append(I(f"v_cvt_pk_bf16_f32 v{O+3}, v{U[6]}, v{U[7]}"))
        o.append(I(f"buffer_store_dwordx4 {vr(O,4)}, v{vH if t<4 else vH4}, {srd(WS)}, s{sHst} offen offset:{(t%4)*1024} sc1",f"st{p}"))
        return o
    P.append(WAIT(vm=["x0","w0"])); e("s_barrier")
    P.extend(stamp(1))
    P.extend(reads(0)); P.append(WAIT(lgkm=0))
    pool=Pool(flat([epi(0,t) for t in range(5)]))
    dq=[]
    for s in range(2,14):
        if s<=6: dq.append((max(0,2*(s-4)+1),xdma(s)))
        dq.append((max(0,2*(s-4)+1),wdma(s)))
        if s==8: dq.append((0,[[I(f"buffer_load_dword v14, v15, {srd(DBG)}, 0 offen sc1","clr")]]))
    w2q=[(13 if b<6 else 2*(b+4)+1,w2dma(b)) for b in range(10)]
    cur=[]
    for Pn in range(28):
        p,s,h=Pn//14,Pn//2,Pn%2
        mf=[]
        for jq in range(2 if CH else 4):
            for t in range(5):
                for ks in ((0,1) if CH else (h,)):
                    q = (2*jq+h) if CH else jq
                    j = (2*jq+ks) if CH else jq
                    d=vr(ACC(p,q,t),4)
                    mf.append(mfma(d,vr(AF(h,j),4),XF((2*(s%7)+ks)*5+t),"0" if (s%7==0 and ks==0) else d))
        f=[]
        if Pn<27:
            rd=reads(Pn+1); f+=spread(rd,0,min(15,max(8,len(rd))))
        items=[]
        while len(items)<OPT['rate']:
            if not cur:
                if dq and dq[0][0]<=Pn: cur=dq.pop(0)[1]
                elif w2q and w2q[0][0]<=Pn: cur=w2q.pop(0)[1]
                else: break
            items.append(cur.pop(0))
        n=len(items)
        for k,it in enumerate(items):
            pos=1+k*20/max(n,OPT['rate'])
            for x in it:
                f.append((pos-1 if x.cls=="salu" else (pos+1 if x.cls=="valu" else pos),x))
        P.extend(pack(mf,f,pool if p==1 else None,OPT['cap'],lo=(2 if Pn==14 else 0)))
        if Pn==13: P.extend(stamp(2))
        if h==0:
            P.append(WAIT(vm=[f"w{s+1}",f"x{s+1}"],lgkm=0)); e("s_barrier")
            P.extend(stamp(32+s))
        elif Pn<27: P.append(WAIT(lgkm=0))
    assert not dq
    print("left: epiA ops",len(pool.q),"w2 items",len(w2q))
    P.extend(stamp(3))
    P.extend(pool.q)
    P.extend(flat(cur))
    for _,g_ in w2q: P.extend(flat(g_))
    e(f"s_add_u32 s{sHst}, s{sHst}, {2*NT*1024}")
    for t in range(5):
        P.extend(epi(1,t))
        if t==OPT['sigA_tile']:
            P.append(WAIT(vm=["st0","clr"])); check_or_spin(15,0,1,DBG,14)
            e(f"buffer_atomic_add v{vOne}, v{vFl}, {srd(WS)}, 0 offen","sigA")
    P.extend(stamp(4))
    R1,R2=176,180
    e("v_lshrrev_b32 v14, 4, v0")
    e("v_bfe_u32 v15, v0, 2, 2")
    e("v_and_b32 v184, 1, v14"); e("v_lshl_add_u32 v184, v184, 2, v15")
    e("v_lshrrev_b32 v185, 1, v14"); e("v_lshlrev_b32 v185, 10, v185"); e("v_lshl_add_u32 v185, v184, 7, v185")
    e("v_and_b32 v186, 3, v0"); e("v_lshl_add_u32 v185, v186, 3, v185")
    e("v_lshrrev_b32 v184, 1, v184")
    for q in range(4):
        e(f"s_add_u32 s{t0}, s{sW}, {q}"); e(f"s_and_b32 s{t0}, s{t0}, 3")
        e(f"v_xor_b32 v186, s{t0}, v184"); e(f"v_lshl_add_u32 v186, v186, 5, v185")
        e(f"v_add_u32 v{R1+q}, s{sSeg1}, v186"); e(f"v_add_u32 v{R2+q}, s{sSeg2}, v186")
    NSL=10
    def HS(b,t):
        k=b%NSL
        return ar(128+k*20+4*t,4) if k<6 else vr(96+(k-6)*20+4*t,4)
    def AW(b,q,a=None):
        if b<8: return ar(16*b+4*q,4) if a is None else ar(16*b+4*q+2*a,2)
        return vr(AF(b%2,q),4) if a is None else vr(AF(b%2,q)+2*a,2)
    def hload(b):
        o=[]
        for t in range(5):
            o.append([I(f"buffer_load_dwordx4 {HS(b,t)}, v{vH if t<4 else vH4}, {srd(WS)}, s{sHld} offen offset:{(t%4)*1024}{' sc1' if OPT['hsc1'] else ''}",f"h{b}")])
        if b==6: o[-1].append(I(f"s_sub_u32 s{sHld}, s{sHld}, {(24-2)*NT*1024}"))
        elif b==13: o[-1].append(I(f"s_add_u32 s{sHld}, s{sHld}, s{sT[5]}"))
        elif b<13: o[-1].append(I(f"s_add_u32 s{sHld}, s{sHld}, {4*NT*1024}"))
        else: o[-1].append(I(f"s_add_u32 s{sHld}, s{sHld}, {NT*1024}"))
        return o
    def treads(b):
        sg,off=blkloc(b); base=R1 if sg==sSeg1 else R2
        return [I(f"ds_read_b64_tr_b16 {AW(b,q,a)}, v{base+q} offset:{off+a*2048}") for q in range(4) for a in range(2)]
    P.append(WAIT(vm=["b1"])); P.extend(treads(0))
    for j in range(8):
        if j<7:
            P.append(WAIT(vm=[f"b{j+1}"])); P.extend(treads(j+1)); P.append(WAIT(lgkm=8))
        else: P.append(WAIT(lgkm=0))
        P.extend(flat(w2dma(10+j)))
        if j==OPT['sigB_blk']:
            P.append(WAIT(vm=["st1"])); e(f"buffer_atomic_add v{vOne}, v{vFl}, {srd(WS)}, 0 offen offset:512","sigB"); P.extend(stamp(10))
        if j==OPT['pollA_blk']: e(f"buffer_load_dword v{vPoll}, v{vPA}, {srd(WS)}, 0 offen sc1","pollA")
    e(f"s_mul_i32 s{t0}, s{sT2}, 80"); e(f"s_add_u32 s{t1}, s{t0}, 79"); e(f"s_lshr_b32 s{t2_}, s{t0}, 7"); e(f"s_lshr_b32 s{t1}, s{t1}, 7"); e(f"s_min_u32 s{t1}, s{t1}, 15")
    for r in (t2_,t1):
        e(f"s_lshl_b32 s{r}, s{r}, 2"); e(f"s_add_u32 s{r}, s{r}, s{sW}"); e(f"s_add_u32 s{r}, s{r}, 208"); e(f"s_lshl_b32 s{r}, s{r}, 7")
    vPO,vS,vSA,vO=187,188,193,194
    e(f"v_mov_b32 v{vPO}, s{t2_}"); e(f"v_mov_b32 v14, s{t1}"); e("v_cmp_lt_u32 vcc, 31, v0")
    e("v_and_b32 v15, 15, v0"); e(f"v_add_u32 v15, s{t0}, v15")
    e(f"v_cndmask_b32 v{vPO}, v{vPO}, v14, vcc")
    e(f"s_mul_i32 s{t1}, s{sW}, {SSTR}"); e(f"s_add_u32 s{t1}, s{t1}, {S0}"); e(f"v_lshlrev_b32 v{vSA}, 2, v15"); e(f"v_add_u32 v{vSA}, s{t1}, v{vSA}")
    e("v_mul_u32_u24 v14, 896, v15"); e("v_lshrrev_b32 v15, 4, v0"); e("v_lshl_add_u32 v14, v15, 3, v14")
    e(f"s_lshl_b32 s{t1}, s{sN}, 7"); e(f"s_lshl_b32 s{t2_}, s{sW}, 5"); e(f"s_add_u32 s{t1}, s{t1}, s{t2_}"); e(f"v_add_u32 v{vO}, s{t1}, v14")
    P.append(WAIT(vm=["pollA"])); check_or_spin(vPA,0,7,WS,vPoll)
    P.extend(stamp(11))
    LK=OPT['look']
    for b in range(LK): P.extend(flat(hload(b)))
    P.extend(stamp(5))
    for b in range(18):
        mf=[]
        for q in range(4):
            for t in range(5):
                d=vr(ACC(0,q,t),4)
                mf.append(mfma(d,AW(b,q),HS(b,t),"0" if b==0 else d))
        nb=b+LK
        tags=[f"h{b}",f"b{b+1}"]
        if nb==7: tags.append("pollB")
        if nb==14: tags.append("pollO")
        P.append(WAIT(vm=tags,lgkm=0))
        if nb==7: check_or_spin(vPA,512,7,WS,vPoll); P.extend(stamp(6))
        if nb==14:
            check_or_spin(vPO,0,4,WS,vPoll); P.extend(stamp(7))
            for t in range(5): e(f"buffer_load_dword v{vS+t}, v{vSA}, {srd(WS)}, 0 offen offset:{t*64} sc1","s")
        P.extend(stamp(12+b))
        if b==14:
            for q in range(4):
                for t in range(5):
                    for r in range(4): e(f"v_mul_f32 v{ACC(0,q,t)+r}, v{vS+t}, v{ACC(0,q,t)+r}")
        f=[]
        if 8<=b+1<18: f+=spread(treads(b+1),1,14)
        if nb<18:
            for k,it in enumerate(hload(nb)):
                for x in it: f.append((k*4+(0 if x.cls=="vm" else 1),x))
        if nb+2==7: f.append((19,I(f"buffer_load_dword v{vPoll}, v{vPA}, {srd(WS)}, 0 offen offset:512 sc1","pollB")))
        if nb+2==14: f.append((19,I(f"buffer_load_dword v{vPoll}, v{vPO}, {srd(WS)}, 0 offen sc1","pollO")))
        P.extend(pack(mf,f))
    P.extend(stamp(8))
    e(f"v_add_u32 v14, s{sSeg1}, v{vH}")
    for q in range(1,4):
        e(f"s_sub_u32 s{t0}, s{sW}, {q}"); e(f"s_and_b32 s{t0}, s{t0}, 3"); e(f"s_mul_i32 s{t0}, s{t0}, 24576"); e(f"s_add_u32 s{t0}, s{t0}, {65536+(q-1)*5120}")
        e(f"v_add_u32 v{R2+q}, s{t0}, v{vH}")
    for q in range(1,4):
        for t in range(5): e(f"ds_write_b128 v14, {vr(ACC(0,q,t),4)} offset:{(q-1)*5120+t*1024}")
    P.append(WAIT(lgkm=0)); e("s_barrier")
    for t in range(5):
        for q in range(1,4): e(f"ds_read_b128 {vr(ACC(1,q,t),4)}, v{R2+q} offset:{t*1024}")
    for j in range(1,5): e(f"s_mov_b32 s{sXo[j]}, {16*j*896}")
    for t in range(5):
        e(f"s_waitcnt lgkmcnt({12-3*t})")
        d=ACC(0,0,t)
        for r in range(4): e(f"v_add_f32 v{ACC(1,1,t)+r}, v{ACC(1,1,t)+r}, v{ACC(1,2,t)+r}")
        for r in range(4): e(f"v_add_f32 v{d+r}, v{d+r}, v{ACC(1,3,t)+r}")
        for r in range(4): e(f"v_add_f32 v{d+r}, v{d+r}, v{ACC(1,1,t)+r}")
        e(f"v_cvt_pk_bf16_f32 v{d}, v{d}, v{d+1}"); e(f"v_cvt_pk_bf16_f32 v{d+1}, v{d+2}, v{d+3}")
        e(f"buffer_store_dwordx2 {vr(d,2)}, v{vO}, {srd(OUT)}, {'0' if t==0 else 's%d'%sXo[t]} offen{['',' sc1',' nt',' sc0 sc1',' sc1 nt'][OPT['outpol']]}","out")
    P.extend(stamp(9,True))
    e("s_endpgm")

def attn():
    sAT,sHG=72,73
    sXb,sWb=74,75
    sWo={(0,0):76,(0,1):77,(1,0):78,(1,1):79,(2,0):80,(2,1):81}
    sK,sD0,sD1,sO,sC=82,83,84,85,86
    mE,mM0,mM1,mZ=88,90,100,68
    t0,t1=66,67; t2_,t3=70,71
    vX=[1,2,3,4,5]; vW=6; vXR=(7,8); vR0=(9,10); vR1=(11,12); vRq=(13,14); vPad=15
    vA=(224,225)
    TBL=159744; XB=98304
    Q=lambda u,tl: 16+(u*2+tl)*4
    K=lambda t,tl: 80+(t*2+tl)*4
    V=lambda d,t: 152+d*36+t*4
    XA=lambda buf,t: buf*36+4*t
    WF=lambda buf,m,tl: 72+buf*24+(2*m+tl)*4
    e("L_attn:")
    e(f"s_lshr_b32 s{sAT}, s{sXCD}, 2"); e(f"s_lshl_b32 s{sAT}, s{sAT}, 3"); e(f"s_add_u32 s{sAT}, s{sAT}, s{sJ}"); e(f"s_and_b32 s{sHG}, s{sXCD}, 3")
    e("v_lshrrev_b32 v230, 3, v0"); e("v_and_b32 v231, 7, v0")
    e(f"s_and_b32 s{t0}, s{sW}, 1"); e(f"s_lshl_b32 s{t1}, s{t0}, 2")
    e("v_lshrrev_b32 v232, 1, v230"); e(f"v_or_b32 v232, s{t1}, v232"); e("v_xor_b32 v232, v232, v231"); e("v_lshlrev_b32 v232, 4, v232")
    e(f"s_lshl_b32 s{t2_}, s{sAT}, 7"); e(f"s_lshl_b32 s{t3}, s{sW}, 3"); e(f"s_add_u32 s{t2_}, s{t2_}, s{t3}")
    e(f"v_add_u32 v{vX[0]}, s{t2_}, v230"); e(f"v_mul_u32_u24 v{vX[0]}, 896, v{vX[0]}"); e(f"v_add_u32 v{vX[0]}, v{vX[0]}, v232")
    for j in range(1,5): e(f"v_add_u32 v{vX[j]}, {32*j*896}, v{vX[0]}")
    e(f"s_cmp_lt_u32 s{t2_}, 16"); e(f"s_cselect_b32 s{t0}, {OOB}, 0"); e(f"v_or_b32 v{vX[0]}, s{t0}, v{vX[0]}")
    e(f"s_cmp_ge_u32 s{sW}, 2"); e(f"s_cselect_b32 s{t0}, {OOB}, 0"); e(f"v_or_b32 v{vX[4]}, s{t0}, v{vX[4]}")
    e("v_lshrrev_b32 v230, 4, v0"); e("v_and_b32 v231, 15, v0")
    e(f"s_and_b32 s{t0}, s{sW}, 2"); e(f"s_lshl_b32 s{t0}, s{t0}, 1"); e(f"v_or_b32 v232, s{t0}, v230"); e("v_lshlrev_b32 v232, 1, v232"); e("v_xor_b32 v232, v232, v231")
    e(f"s_lshl_b32 s{t0}, s{sW}, 2"); e(f"v_add_u32 v{vW}, s{t0}, v230"); e(f"v_mul_u32_u24 v{vW}, 2688, v{vW}")
    e(f"v_lshl_add_u32 v{vW}, v232, 4, v{vW}"); e(f"s_mul_i32 s{t0}, s{sHG}, 224"); e(f"v_add_u32 v{vW}, s{t0}, v{vW}")
    e(f"v_mov_b32 v233, {OOB}"); e("v_cmp_lt_u32 vcc, 13, v232"); e(f"v_cndmask_b32 v{vW}, v{vW}, v233, vcc")
    e(f"s_lshl_b32 s{sXb}, s{sW}, 10"); e(f"s_add_u32 s{sXb}, s{sXb}, {XB}")
    e(f"s_mul_i32 s{sWb}, s{sW}, 6144")
    for (m,j),r in sWo.items():
        imm=((2*m+j)%4)*1024
        e(f"s_mov_b32 s{r}, {4096+m*896+16*j*2688-imm}")
    e(f"s_lshl_b32 s{t0}, s{sW}, 6"); e(f"v_add_u32 v234, s{t0}, v0"); e("v_lshlrev_b32 v235, 2, v234")
    e("s_waitcnt lgkmcnt(0)")
    mksrd(GW,54,896); mksrd(X,40,1835008,14336); mksrd(WA,42,1204224,4096)
    P.extend(stamp(0))
    e(f"buffer_load_dword v236, v235, {srd(GW)}, 0 offen","gw")
    def xdma(c):
        o=[I(f"s_mov_b32 s{sK}, {128*c}")]
        for j in range(5):
            o.append(I(f"s_add_u32 m0, s{sXb}, {(c%3)*20480+j*4096}"))
            o.append(dma(vX[j],X,f"s{sK}",0,f"x{c}"))
        return o
    def wdma(k):
        o=[]
        for m in range(3):
            if m!=1: o.append(I(f"s_add_u32 m0, s{sWb}, {(k%4)*24576+(4096 if m==2 else 0)}"))
            for j in range(2): o.append(dma(vW,WA,f"s{sWo[(m,j)]}",((2*m+j)%4)*1024,f"w{k}"))
        o.append(I(f"v_add_u32 v{vW}, {32*2688}, v{vW}"))
        return o
    for z in (xdma(0),wdma(0),wdma(1)): P.extend(z)
    aq=[(0,xdma(1)),(0,wdma(2)),(0,wdma(3)),(0,xdma(2))]
    for k in range(4,14):
        aq.append((k-4,wdma(k)))
        if k%2==1 and (k+1)//2<=6: aq.append((2*((k+1)//2-3)+1,xdma((k+1)//2)))
    acur=[]
    mksrd(WS,60,WSN); mksrd(DBG,58,256)
    e("v_lshrrev_b32 v230, 4, v0"); e("v_and_b32 v231, 15, v0")
    e("v_lshrrev_b32 v232, 1, v231"); e("v_xor_b32 v232, v232, v230"); e("v_lshlrev_b32 v232, 4, v232")
    e("v_lshl_add_u32 v232, v231, 7, v232"); e(f"v_add_u32 v{vXR[0]}, {XB}, v232"); e(f"v_xor_b32 v{vXR[1]}, 64, v{vXR[0]}")
    e("v_bfe_u32 v232, v0, 2, 2"); e("v_and_b32 v233, 3, v0")
    e("v_and_b32 v237, 1, v230"); e("v_lshl_add_u32 v238, v237, 2, v232"); e("v_lshlrev_b32 v238, 2, v238")
    e("v_mul_u32_u24 v237, 12288, v237"); e("v_lshrrev_b32 v239, 1, v230"); e("v_lshl_add_u32 v237, v239, 10, v237"); e("v_lshl_add_u32 v237, v232, 8, v237")
    e(f"s_mul_i32 s{t0}, s{sW}, 7")
    e(f"v_add_u32 v239, s{t0}, v233")
    e("v_xor_b32 v240, v239, v238"); e(f"v_lshl_add_u32 v{vR0[0]}, v240, 3, v237")
    e("v_add_u32 v239, 4, v239")
    e("v_and_b32 v240, 3, v239"); e("v_or_b32 v240, 28, v240"); e("v_cmp_eq_u32 vcc, 3, v233"); e("v_cndmask_b32 v239, v239, v240, vcc")
    e("v_xor_b32 v240, v239, v238"); e(f"v_lshl_add_u32 v{vR1[0]}, v240, 3, v237")
    e(f"v_cndmask_b32 v{vPad}, 0, 1, vcc")
    e(f"v_add_u32 v{vR0[1]}, 49152, v{vR0[0]}"); e(f"v_add_u32 v{vR1[1]}, 49152, v{vR1[0]}")
    e("v_lshl_add_u32 v240, v230, 3, v232"); e("v_lshlrev_b32 v240, 3, v240"); e(f"v_add_u32 v240, {TBL}, v240")
    e(f"v_cndmask_b32 v{vRq[0]}, v{vR1[0]}, v240, vcc"); e(f"v_cndmask_b32 v{vRq[1]}, v{vR1[1]}, v240, vcc")
    P.append(WAIT(vm=["gw"]))
    e("v_and_b32 v244, 0xffff, v236"); e("v_mov_b32 v245, 0"); e("v_lshrrev_b32 v246, 16, v236"); e("v_mov_b32 v247, 0")
    e("v_lshlrev_b32 v234, 4, v234"); e(f"v_add_u32 v234, {TBL}, v234")
    e("ds_write_b128 v234, v[244:247]")
    def reads(k):
        sl=k%4; h=sl//2; buf=k%2
        pre=[]; tr=[]
        for a in range(2):
            imm=(sl%2)*24576+a*6144
            pre.append(I(f"s_mov_b32 s{(sD0,sD1)[a]}, {(256*k+32*a-imm)&0xffffffff}"))
            pre.append(I(f"v_mad_i32_i24 v{vA[a]}, v{vPad}, s{(sD0,sD1)[a]}, v{vRq[h]}"))
        for m in range(3):
            for tl in range(2):
                for a in range(2):
                    ad = vR0[h] if tl==0 else (vA[a] if m==0 else vR1[h])
                    tr.append(I(f"ds_read_b64_tr_b16 {ar(WF(buf,m,tl)+2*a,2)}, v{ad} offset:{(sl%2)*24576+a*6144+m*2048}"))
        xs=[I(f"ds_read_b128 {ar(XA(buf,t),4)}, v{vXR[k%2]} offset:{((k//2)%3)*20480+t*2048}") for t in range(9)]
        return pre+tr[:2]+xs+tr[2:]
    P.append(WAIT(vm=["x0","w0"],lgkm=0)); e("s_barrier")
    P.extend(stamp(1))
    P.extend(reads(0)); P.append(WAIT(vm=["w1"],lgkm=0)); e("s_barrier")
    for k in range(14):
        buf=k%2; mf=[]
        c=lambda d: "0" if k==0 else d
        for tl in range(2):
            for u in range(8): d=vr(Q(u,tl),4); mf.append(mfma(d,ar(WF(buf,0,tl),4),ar(XA(buf,u+1),4),c(d)))
        for tl in range(2):
            for t in range(9): d=vr(K(t,tl),4); mf.append(mfma(d,ar(WF(buf,1,tl),4),ar(XA(buf,t),4),c(d)))
        for tl in range(2):
            for t in range(9): d=vr(V(tl,t),4); mf.append(mfma(d,ar(XA(buf,t),4),ar(WF(buf,2,tl),4),c(d)))
        f=[]
        if k<13: f+=spread(reads(k+1),0,36)
        dm=[]; nd=0
        while nd<OPT['arate']:
            if not acur:
                if aq and aq[0][0]<=k: acur=list(aq.pop(0)[1])
                else: break
            x=acur.pop(0); dm.append(x); nd+=(x.cls=="vm")
            while acur and acur[0].cls=="valu": dm.append(acur.pop(0))
        if k==8:
            dm.append(I("v_mov_b32 v249, 0")); dm.append(I(f"buffer_load_dword v248, v249, {srd(DBG)}, 0 offen sc1","clr"))
        pos=0; nd=0
        for x in dm:
            if x.cls=="vm": nd+=1
            f.append((4.3*nd-(2 if x.cls=="vm" else (1 if x.cls=="valu" else -1)),x))
        P.extend(pack(mf,f))
        if k<13:
            P.append(WAIT(vm=[f"w{k+2}",f"x{(k+2)//2}"],lgkm=0)); e("s_barrier"); P.extend(stamp(32+k))
    P.extend(stamp(2))
    g,i=230,231
    e("v_lshrrev_b32 v230, 4, v0"); e("v_and_b32 v231, 15, v0")
    e("v_and_b32 v232, 1, v231"); e(f"v_cmp_eq_u32 s[{mE}:{mE+1}], 0, v232")
    e("v_lshl_add_u32 v233, v230, 2, v232"); e(f"v_cmp_le_u32 s[{mM0}:{mM0+1}], v233, v231")
    e("v_add_u32 v233, 2, v233"); e(f"v_cmp_le_u32 s[{mM1}:{mM1+1}], v233, v231")
    e("v_mov_b32 v234, 0xffff0000"); e("v_mov_b32 v235, 0xffff"); e(f"v_cndmask_b32 v234, v234, v235, s[{mE}:{mE+1}]")
    cA0,cB0,cA1,cB1,vBP,vH,vNeg=1,2,3,4,5,6,7
    e(f"v_cndmask_b32 v{cA0}, 0, v234, s[{mM0}:{mM0+1}]"); e(f"v_xor_b32 v{cB0}, v{cA0}, v234")
    e(f"v_cndmask_b32 v{cA1}, 0, v234, s[{mM1}:{mM1+1}]"); e(f"v_xor_b32 v{cB1}, v{cA1}, v234")
    e(f"v_or_b32 v{vBP}, 48, v231"); e(f"v_lshlrev_b32 v{vBP}, 2, v{vBP}")
    e(f"v_lshlrev_b32 v{vH}, 4, v0"); e(f"v_add_u32 v8, 4096, v{vH}")
    e(f"v_mov_b32 v{vNeg}, 0xf149f2ca")
    e(f"s_cmp_eq_u32 s{sAT}, 0"); e(f"s_cselect_b64 s[{mZ}:{mZ+1}], -1, 0")
    cs=28**-0.5*math.log2(math.e)
    import struct
    f2u=lambda x: struct.unpack("<I",struct.pack("<f",x))[0]
    e(f"s_mov_b32 s{sC}, {f2u(cs):#x}"); e(f"s_mov_b32 s{sK}, 0xbfb8aa3b")
    e(f"s_lshl_b32 s{t0}, s{sHG}, 2"); e(f"s_add_u32 s{t0}, s{t0}, s{sW}"); e(f"s_add_u32 s{t0}, s{t0}, 56"); e(f"s_mul_i32 s{t0}, s{t0}, {NT}")
    e(f"s_lshl_b32 s{t1}, s{sAT}, 3"); e(f"s_add_u32 s{t0}, s{t0}, s{t1}"); e(f"s_lshl_b32 s{t0}, s{t0}, 10"); e(f"s_add_u32 s{sO}, s{t0}, {H0}")
    U=range(8)
    Z=lambda u: 224+u
    A=lambda u: 232+u; B=lambda u: 240+u; M=lambda u: 170+u; T=lambda u: 178+u; L=lambda u: 206+u; T2=lambda u: 214+u
    for u in U: e(f"ds_bpermute_b32 v{Z(u)}, v{vBP}, v{Q(u,1)}")
    def pack4(d,a,b):
        e(f"v_cvt_pk_bf16_f32 v{d}, v{a}, v{a+1}"); e(f"v_cvt_pk_bf16_f32 v{d+1}, v{a+2}, v{a+3}")
        e(f"v_cvt_pk_bf16_f32 v{d+2}, v{b}, v{b+1}"); e(f"v_cvt_pk_bf16_f32 v{d+3}, v{b+2}, v{b+3}")
    for t in range(9): pack4(K(t,0),K(t,0),K(t,1))
    for u in U: pack4(Q(u,0),Q(u,0),Q(u,1))
    P.append(WAIT(lgkm=0))
    SP=lambda u: K(u,1); SO=lambda u: Q(u,1)
    sm=[]
    for u in U:
        sm.append(mfma(vr(SP(u),4),vr(K(u,0),4),vr(Q(u,0),4),"0")); sm.append(mfma(vr(SO(u),4),vr(K(u+1,0),4),vr(Q(u,0),4),"0"))
    vp=[]
    for d in range(2):
        for t in range(9):
            vp.append(I(f"v_cvt_pk_bf16_f32 v{V(d,0)+2*t}, v{V(d,t)}, v{V(d,t)+1}")); vp.append(I(f"v_cvt_pk_bf16_f32 v{V(d,0)+2*t+1}, v{V(d,t)+2}, v{V(d,t)+3}"))
    P.extend(weave(sm,spread(vp,0,16)))
    for u in U: e(f"v_mul_f32 v{Z(u)}, s{sK}, v{Z(u)}")
    for u in U: e(f"v_exp_f32 v{Z(u)}, v{Z(u)}")
    for u in U: e(f"v_add_f32 v{Z(u)}, 1.0, v{Z(u)}")
    for u in U: e(f"v_rcp_f32 v{Z(u)}, v{Z(u)}")
    sE=f"s[{mE}:{mE+1}]"
    for u in U:
        e(f"v_cndmask_b32 v{A(u)}, v{SO(u)+1}, v{SO(u)}, {sE}"); e(f"v_cndmask_b32 v{B(u)}, v{SO(u)+3}, v{SO(u)+2}, {sE}")
        e(f"v_cndmask_b32 v{M(u)}, v{SP(u)+1}, v{SP(u)}, {sE}"); e(f"v_cndmask_b32 v{T(u)}, v{SP(u)+3}, v{SP(u)+2}, {sE}")
    e(f"v_cndmask_b32 v{M(0)}, v{M(0)}, v{vNeg}, s[{mZ}:{mZ+1}]"); e(f"v_cndmask_b32 v{T(0)}, v{T(0)}, v{vNeg}, s[{mZ}:{mZ+1}]")
    for u in U:
        e(f"v_cndmask_b32 v{A(u)}, v{M(u)}, v{A(u)}, s[{mM0}:{mM0+1}]"); e(f"v_cndmask_b32 v{B(u)}, v{T(u)}, v{B(u)}, s[{mM1}:{mM1+1}]")
    def allred(R,op):
        for sw in ("v_permlane32_swap_b32","v_permlane16_swap_b32"):
            for u in U: e(f"v_mov_b32 v{T(u)}, v{R(u)}")
            for u in U: e(f"{sw} v{R(u)}, v{T(u)}")
            for u in U: e(f"{op} v{R(u)}, v{R(u)}, v{T(u)}")
    for u in U: e(f"v_max_f32 v{M(u)}, v{A(u)}, v{B(u)}")
    allred(M,"v_max_f32")
    for u in U: e(f"v_mul_f32 v{M(u)}, s{sC}, v{M(u)}")
    for u in U:
        e(f"v_fma_f32 v{A(u)}, v{A(u)}, s{sC}, -v{M(u)}"); e(f"v_fma_f32 v{B(u)}, v{B(u)}, s{sC}, -v{M(u)}")
    for u in U:
        e(f"v_exp_f32 v{A(u)}, v{A(u)}"); e(f"v_exp_f32 v{B(u)}, v{B(u)}")
    for u in U: e(f"v_add_f32 v{L(u)}, v{A(u)}, v{B(u)}")
    allred(L,"v_add_f32")
    for u in U: e(f"v_rcp_f32 v{L(u)}, v{L(u)}")
    for u in U: e(f"v_mul_f32 v{L(u)}, v{L(u)}, v{Z(u)}")
    for u in U:
        e(f"v_mul_f32 v{A(u)}, v{A(u)}, v{L(u)}"); e(f"v_mul_f32 v{B(u)}, v{B(u)}, v{L(u)}")
    for u in U:
        e(f"v_cvt_pk_bf16_f32 v{A(u)}, v{A(u)}, v{A(u)}"); e(f"v_cvt_pk_bf16_f32 v{B(u)}, v{B(u)}, v{B(u)}")
    PQ=lambda u: Q(u,0)
    for u in U:
        e(f"v_and_b32 v{PQ(u)}, v{cB0}, v{A(u)}"); e(f"v_and_b32 v{PQ(u)+1}, v{cB1}, v{B(u)}")
        e(f"v_and_b32 v{PQ(u)+2}, v{cA0}, v{A(u)}"); e(f"v_and_b32 v{PQ(u)+3}, v{cA1}, v{B(u)}")
    pm=[]
    for u in U:
        pm.append(mfma(vr(SP(u),4),vr(V(0,0)+2*u,4),vr(PQ(u),4),"0")); pm.append(mfma(vr(SO(u),4),vr(V(1,0)+2*u,4),vr(PQ(u),4),"0"))
    sv=[]
    for u in U: sv.append(I(f"v_sub_f32 v{Z(u)}, 1.0, v{Z(u)}"))
    for k in range(1,4):
        sv.append(I(f"v_cmp_eq_u32 vcc, {k*16}, v9")); sv.append(I("s_nop 0"))
        sv.append(I(f"v_cndmask_b32 v{Z(0)}, v{Z(0)}, v{Z(k)}, vcc")); sv.append(I(f"v_cndmask_b32 v{Z(4)}, v{Z(4)}, v{Z(4+k)}, vcc"))
    e("v_and_b32 v9, 48, v0")
    P.extend(weave(pm,spread(sv,0,16)))
    e(f"s_mul_i32 s{t0}, s{sHG}, {SSTR}"); e(f"s_lshl_b32 s{t1}, s{sAT}, 9"); e(f"s_add_u32 s{t0}, s{t0}, s{t1}"); e(f"s_add_u32 s{t0}, s{t0}, {S0}")
    e(f"s_cmp_eq_u32 s{sW}, 0"); e(f"s_cselect_b32 s{t0}, s{t0}, {OOB}")
    e("v_lshlrev_b32 v10, 2, v0"); e(f"v_add_u32 v10, s{t0}, v10")
    for u in U:
        pack4(PQ(u),SP(u),SO(u))
        e(f"buffer_store_dwordx4 {vr(PQ(u),4)}, v{vH if u<4 else 8}, {srd(WS)}, s{sO} offen offset:{(u%4)*1024} sc1","st")
    e(f"buffer_store_dword v{Z(0)}, v10, {srd(WS)}, 0 offen sc1","st"); e(f"buffer_store_dword v{Z(4)}, v10, {srd(WS)}, 0 offen offset:256 sc1","st")
    e(f"s_lshl_b32 s{t0}, s{sAT}, 2"); e(f"s_add_u32 s{t0}, s{t0}, s{sHG}"); e(f"s_add_u32 s{t0}, s{t0}, 208"); e(f"s_lshl_b32 s{t0}, s{t0}, 7")
    e(f"v_mov_b32 v11, {OOB}"); e(f"v_mov_b32 v12, s{t0}"); e("v_cmp_eq_u32 vcc, 0, v0"); e("v_cndmask_b32 v11, v11, v12, vcc"); e("v_mov_b32 v13, 1")
    P.extend(stamp(3))
    P.append(WAIT(vm=0))
    check_or_spin(249,0,1,DBG,248)
    e(f"buffer_atomic_add v13, v11, {srd(WS)}, 0 offen","sig")
    P.extend(stamp(4,True))
    e("s_endpgm")

def spare():
    e("L_spare:")
    e("s_getpc_b64 s[66:67]")
    e("L_pc:")
    e("s_sub_u32 s66, s66, L_pc-"+NAME+"_kernel"); e("s_subb_u32 s67, s67, 0")
    e(f"s_lshl_b32 s68, s{sW}, 13"); e("v_lshlrev_b32 v1, 7, v0"); e("v_add_u32 v1, s68, v1")
    e("v_min_u32 v2, L_end-"+NAME+"_kernel-4, v1")
    e("global_load_dword v3, v2, s[66:67]","pf")
    e("v_add_u32 v1, 32768, v1"); e("v_min_u32 v2, L_end-"+NAME+"_kernel-4, v1")
    e("global_load_dword v4, v2, s[66:67]","pf")
    e("s_waitcnt lgkmcnt(0)")
    e("s_cmp_eq_u32 s2, 64"); e("s_cbranch_scc0 L_exit")
    e(f"s_cmp_eq_u32 s{sW}, 0"); e("s_cbranch_scc0 L_exit")
    mksrd(WS,60,WSN); mksrd(DBG,58,256)
    e("v_lshlrev_b32 v5, 8, v0"); e("v_mov_b32 v6, 0"); e("v_lshlrev_b32 v7, 7, v0"); e("v_mov_b32 v8, 1")
    for k in range(5):
        e(f"buffer_store_dword v6, v7, {srd(WS)}, 0 offen sc1"); e("v_add_u32 v7, 8192, v7")
    e("s_waitcnt vmcnt(0)")
    e(f"buffer_store_dword v8, v5, {srd(DBG)}, 0 offen sc1")
    e("L_exit:")
    e("s_endpgm")
    e("L_end:")

def main():
    global P
    head=open("cdna_kernels/"+NAME+".s.ref").read().split("; Override launch")[0]
    txt=[]; nops=0
    for part in ((common_prologue,ffn),(attn,),(spare,)):
        P.clear()
        if part[0] is not common_prologue:
            pass
        for f in part: f()
        o,n=finalize(list(P),part[-1].__name__); nops+=n
        txt+=[x.text if x.cls=="label" else "    "+x.text for x in o]
    out=head+"; generated by gen/gen.py (hand-designed schedule, python emitter)\n; @launch grid=(256,1,1) block=(256,1,1) lds=163840\n"
    out+='.amdgcn_target "amdgcn-amd-amdhsa--gfx950"\n.text\n'
    out+=f".globl {NAME}_kernel\n.p2align 8\n.type {NAME}_kernel,@function\n{NAME}_kernel:\n"
    out+="\n".join(txt)+"\n"
    out+=f""".section .rodata,"a"
.p2align 6
.amdhsa_kernel {NAME}_kernel
  .amdhsa_next_free_vgpr 512
  .amdhsa_next_free_sgpr 102
  .amdhsa_accum_offset 256
  .amdhsa_group_segment_fixed_size 0
  .amdhsa_kernarg_size 88
  .amdhsa_user_sgpr_count 2
  .amdhsa_user_sgpr_kernarg_segment_ptr 1
  .amdhsa_system_sgpr_workgroup_id_x 1
.end_amdhsa_kernel
"""
    open(sys.argv[1],"w").write(out)
    print("instructions",len(txt),"auto nops",nops)
main()
```

```python
import re
TRANS=("v_exp_f32","v_log_f32","v_rcp_f32","v_rsq_f32","v_sqrt_f32","v_sin_f32","v_cos_f32")
def regs_of(tok):
    tok=tok.strip()
    tok=tok.lstrip("-")
    m=re.fullmatch(r"abs\((.*)\)",tok)
    if m: tok=m.group(1)
    m=re.fullmatch(r"([vas])(\d+)",tok)
    if m: return {(m.group(1),int(m.group(2)))}
    m=re.fullmatch(r"([vas])\[(\d+):(\d+)\]",tok)
    if m: return {(m.group(1),i) for i in range(int(m.group(2)),int(m.group(3))+1)}
    if tok=="vcc": return {("s","vcc")}
    if tok=="exec": return {("s","exec")}
    if tok=="m0": return {("s","m0")}
    return set()
class Ins:
    __slots__=("text","op","rd","wr","cls","tag","waittags","lgkm","srcC","ab","data","note","flush")
    def __init__(s,text,tag=None):
        s.text=text; s.tag=tag; s.waittags=None; s.lgkm=None; s.srcC=set(); s.ab=set(); s.data=set(); s.note=None; s.flush=False
        s.rd=set(); s.wr=set()
        t=text.strip()
        if t.endswith(":") or t.startswith(".") or t.startswith(";") or not t:
            s.op=t; s.cls="label" if t.endswith(":") else "dir"; return
        p=t.split(None,1); s.op=p[0]; rest=p[1] if len(p)>1 else ""
        ops=[x.strip() for x in rest.split(",")]
        mods=""
        if ops:
            q=ops[-1].split()
            if q: ops[-1]=q[0]; mods=" ".join(q[1:])
        R=[regs_of(o) for o in ops]
        op=s.op.replace("_e64","").replace("_e32","")
        if op.startswith("v_mfma"):
            s.cls="mfma"; s.wr=R[0]; s.ab=R[1]|R[2]; s.srcC=R[3]; s.rd=s.ab|s.srcC
        elif op.startswith("v_permlane"):
            s.cls="valu"; s.wr=R[0]|R[1]; s.rd=R[0]|R[1]
        elif op.startswith("v_cmp"):
            s.cls="valu"; s.wr=R[0]; s.rd=set().union(*R[1:])
        elif op.startswith("v_"):
            s.cls="valu"; s.wr=R[0]; s.rd=set().union(*R[1:]) if len(R)>1 else set()
            if op in("v_fmac_f32",): s.rd|=R[0]
            if op=="v_cndmask_b32" and len(R)==3: s.rd|={("s","vcc")}
            if op in ("v_add_co_u32","v_addc_co_u32"): s.wr|=R[1]
        elif op.startswith("ds_read") or op.startswith("ds_bpermute") or op.startswith("ds_swizzle"):
            s.cls="ds"; s.wr=R[0]; s.rd=set().union(*R[1:])
        elif op.startswith("ds_write"):
            s.cls="ds"; s.rd=set().union(*R)
        elif op.startswith("buffer_load"):
            s.cls="vm"
            if "lds" in mods.split():
                s.rd=set().union(*R)|{("s","m0")}
            else:
                s.wr=R[0]; s.rd=set().union(*R[1:])
        elif op.startswith("global_load"):
            s.cls="vm"; s.wr=R[0]; s.rd=set().union(*R[1:])
        elif op.startswith("buffer_store") or op.startswith("buffer_atomic"):
            s.cls="vm"; s.rd=set().union(*R)
            if "x4" in op or "x3" in op: s.data=R[0]
            if op.startswith("buffer_atomic") and "sc0" in mods.split(): s.wr=R[0]
        elif op.startswith("global_store"):
            s.cls="vm"; s.rd=set().union(*R)
            if "x4" in op or "x3" in op: s.data=R[1]
        elif op.startswith("s_load") or op.startswith("s_memtime") or op.startswith("s_memrealtime"):
            s.cls="smem"; s.wr=R[0]; s.rd=set().union(*R[1:]) if len(R)>1 else set()
        elif op in("s_waitcnt","s_barrier","s_nop","s_endpgm","s_sleep","s_setprio") or op.startswith("s_cbranch") or op=="s_branch":
            s.cls="ctl"
            if op in("s_cbranch_vccz","s_cbranch_vccnz"): s.rd={("s","vcc")}
        elif op.startswith("s_cmp"):
            s.cls="salu"; s.rd=set().union(*R)
        elif op.startswith("s_"):
            s.cls="salu"; s.wr=R[0]; s.rd=set().union(*R[1:]) if len(R)>1 else set()
            if op in("s_addk_i32","s_mulk_i32"): s.rd|=R[0]
            if "saveexec" in op: s.wr|={("s","exec")}
        else:
            raise ValueError("unknown op "+t)
    def states(s):
        if s.cls in("label","dir"): return 0
        if s.op=="s_nop": return int(s.text.split()[1])+1
        return 1
def I(text,tag=None): return Ins(text,tag)
def ATOM(*texts):
    xs=[Ins(t) for t in texts]; a=xs[0]
    for x in xs[1:]:
        assert x.cls=="salu"
        a.rd|=x.rd; a.wr|=x.wr
    a.text="\n    ".join(texts); a.note=len(xs)
    return a
def WAIT(vm=None,lgkm=None):
    i=Ins("s_waitcnt vmcnt(0)"); i.waittags=vm; i.lgkm=lgkm; return i
def isvg(r): return r[0] in("v","a")
def need(p,c):
    n=0
    pop=p.op.replace("_e64","").replace("_e32",""); cop=c.op.replace("_e64","").replace("_e32","")
    if p.cls=="valu":
        vw={r for r in p.wr if isvg(r)}; sw={r for r in p.wr if r[0]=="s"}
        if c.cls=="mfma" and vw&c.rd: n=max(n,2)
        if cop.startswith("v_permlane") and vw&c.rd: n=max(n,2)
        if "dpp" in c.text or "row_" in c.text:
            if vw&c.rd: n=max(n,2)
        if pop in TRANS and c.cls=="valu" and cop not in TRANS and vw&c.rd: n=max(n,1)
        if c.cls=="valu" and sw&c.rd: n=max(n,2)
        if cop in("v_readfirstlane_b32","v_readlane_b32") and vw&c.rd: n=max(n,1)
        if c.cls=="vm" and sw&c.rd: n=max(n,5)
        if c.cls in("salu","ctl") and sw&c.rd: n=max(n,2)
    if p.cls=="mfma":
        big = "32x32" in p.op
        a,b,w=(12,10,7) if big else (8,6,3)
        if c.cls=="mfma":
            if p.wr&c.ab: n=max(n,a)
            if p.wr&c.srcC and (p.wr!=c.srcC or p.op!=c.op): n=max(n,b)
            if p.wr&c.wr and not (p.wr==c.srcC): n=max(n,b)
        elif c.cls in("valu","vm","ds"):
            if p.wr&(c.rd|c.wr): n=max(n,a)
            if c.cls=="valu" and p.srcC&c.wr: n=max(n,w)
    if p.cls=="salu" and ("s","m0") in p.wr and c.cls=="vm" and ("s","m0") in c.rd: n=max(n,1)
    if p.cls=="vm" and p.data:
        if c.cls=="valu" and p.data&c.wr: n=max(n,2)
        elif p.data&c.wr: n=max(n,1)
    return n
def finalize(ins, name=""):
    out=[]; vmq=[]; dsq=[]; smq=set(); nops=0
    lastidx={}
    for k,x in enumerate(ins):
        if x.cls=="vm" and x.tag: lastidx[x.tag]=k
    for kk,x in enumerate(ins):
        if x.op=="s_waitcnt" and x.waittags not in (None,0):
            for t in x.waittags:
                if lastidx.get(t,-1)>kk: raise Exception(f"{name}: wait on tag {t} before all its ops are issued")
        if x.flush: vmq=[]
        if x.op=="s_waitcnt" and (x.waittags is not None or x.lgkm is not None):
            parts=[]
            if x.waittags is not None:
                if x.waittags==0: n=0
                else:
                    tg=set(x.waittags); idx=[k for k,(t,_) in enumerate(vmq) if t in tg]
                    n=len(vmq)-1-idx[-1] if idx else None
                if n is not None:
                    n=min(n,63); parts.append(f"vmcnt({n})")
            if x.lgkm is not None: parts.append(f"lgkmcnt({x.lgkm})")
            if not parts: continue
            x.text="s_waitcnt "+" ".join(parts)
        if x.op=="s_waitcnt":
            m=re.search(r"vmcnt\((\d+)\)",x.text)
            if m:
                n=int(m.group(1)); vmq=vmq[len(vmq)-n:] if n<len(vmq) and n>0 else ([] if n==0 else vmq)
            m=re.search(r"lgkmcnt\((\d+)\)",x.text)
            if m:
                n=int(m.group(1)); dsq=dsq[len(dsq)-n:] if n<len(dsq) and n>0 else ([] if n==0 else dsq)
                if n==0: smq=set()
        if x.cls not in("label","dir"):
            touch=x.rd|x.wr
            for (t,w) in vmq:
                if w&touch: raise Exception(f"{name}: use of pending vm dest {sorted(w&touch)[:2]} in: {x.text}")
            for w in dsq:
                if w&touch: raise Exception(f"{name}: use of pending ds dest {sorted(w&touch)[:2]} in: {x.text}")
            if smq&touch: raise Exception(f"{name}: use of pending smem dest in: {x.text}")
            d=0; req=0
            for p in reversed(out):
                if d>=12: break
                if p.cls not in("label","dir"):
                    req=max(req,need(p,x)-d)
                d+=p.states()
            if req>0:
                out.append(Ins(f"s_nop {req-1}")); nops+=1
        out.append(x)
        if x.cls=="vm": vmq.append((x.tag,set(x.wr)))
        if x.cls=="ds": dsq.append(set(x.wr))
        if x.cls=="smem": smq|=x.wr
        if len(vmq)>63: pass
    return out,nops
def weave(mf, fillers):
    gaps=[[] for _ in mf]
    for k,(pos,x) in enumerate(sorted(enumerate(fillers),key=lambda e:(e[1][0],e[0]))):
        p,x=x
        gaps[max(0,min(len(mf)-1,int(p)))].append(x)
    o=[]
    for m,g in zip(mf,gaps):
        o.append(m); o+=g
    return o
def spread(lst,a,b):
    n=len(lst)
    return [(a+(b-a)*k/n,x) for k,x in enumerate(lst)]

def cost(x):
    op=x.op.replace("_e64","").replace("_e32","")
    if x.cls in("label","dir"): return 0
    if x.note: return x.note
    if op in TRANS: return 2
    if x.cls=="vm": return 2
    return 1
def conflict(a,b):
    if a.wr&(b.rd|b.wr) or a.rd&b.wr: return True
    if a.cls=="vm" and b.cls=="vm": return True
    return False
class Pool:
    def __init__(s,ins,look=20): s.q=list(ins); s.look=look; s.last={}
    def take(s,room,gap):
        for k,x in enumerate(s.q[:s.look]):
            if cost(x)>room: continue
            if any(conflict(y,x) for y in s.q[:k]): continue
            if any(s.last.get(r,-9)>=gap for r in x.rd): continue
            s.q.pop(k)
            for r in x.wr: s.last[r]=gap
            return x
        return None
_gapno=[0]
def pack(mf, fixed, pool=None, cap=2, lo=0):
    gaps=[[] for _ in mf]
    for (_, (p,x)) in sorted(enumerate(fixed),key=lambda e:(e[1][0],e[0])):
        gaps[max(0,min(len(mf)-1,int(p)))].append(x)
    o=[]
    for k,(m,g) in enumerate(zip(mf,gaps)):
        _gapno[0]+=1
        o.append(m); o+=g
        room=cap-sum(cost(x) for x in g)
        while pool is not None and k>=lo and room>0:
            x=pool.take(room,_gapno[0])
            if x is None: break
            o.append(x); room-=cost(x)
    return o
```

```python
import sys, math
from isa import *
NAME="gated_mix__sliding_local_dilated__swiglu_ffn__prompt"
OPT=dict(apf=1, apfk=9, qlead=1, nst=8, nq=4, sAt=0, rot3=1, cp=14, w2p0=13, sigA=14, pA=3, pB=3, gB=5, pO=8, gO=11, rot=7, arot=7, rot2=7, outpol=0, probe=-2, pwg=100, arate=12, hsc1=1, stamp=0, rate=5, cap=2, look=3, sigA_tile=1, sigB_blk=3, pollA_blk=5, chain=1, pf=0)
for a in sys.argv[2:]:
    k,v=a.split("="); OPT[k]=int(v)
H0=0x100000; NT=130; S0=0x80000; SSTR=2176*4; STAMP0=0xC00000; WSN=0x1000000
OOB=0x80000000
X,WA,WU,WD,WO,WS,OUT,DBG,GW=4,8,12,16,20,24,28,32,36
def srd(b): return f"s[{b}:{b+3}]"
def vr(b,n=1): return f"v{b}" if n==1 else f"v[{b}:{b+n-1}]"
def ar(b,n=1): return f"a{b}" if n==1 else f"a[{b}:{b+n-1}]"
P=[]
def e(t,tag=None):
    x=I(t,tag); P.append(x); return x
_l=[0]
def lab(p="L"):
    _l[0]+=1; return f"{p}{_l[0]}"
def mksrd(b,src,n,bias=0):
    if bias:
        e(f"s_sub_u32 s{b}, s{src}, {bias}"); e(f"s_subb_u32 s{b+1}, s{src+1}, 0")
    else:
        e(f"s_mov_b64 s[{b}:{b+1}], s[{src}:{src+1}]")
    e(f"s_mov_b32 s{b+2}, {n+bias}"); e(f"s_mov_b32 s{b+3}, 0x20000")
def mfma(d,a,b,c): return I(f"v_mfma_f32_16x16x32_bf16 {d}, {a}, {b}, {c}")
sW,sXCD,sJ,sI=62,63,64,65
sT=[66,67,68,69,70,71]
sSTB=98
nstamp=[0]
def stamp(idx,last=False):
    if OPT['probe']!=-2:
        o=[]
        if idx==OPT['probe']: o+=[I("s_memrealtime s[94:95]"),I("s_waitcnt lgkmcnt(0)"),I("s_sub_u32 s97, s94, s96")]
        if last:
            L=lab("PR"); D=lab("PD")
            o+=[I(f"s_cmp_eq_u32 s2, {OPT['pwg']}"),I(f"s_cbranch_scc0 {D}"),I("s_add_u32 s97, s97, 4000"),I(L+":"),I("s_memrealtime s[94:95]"),I("s_waitcnt lgkmcnt(0)"),
                I("s_sub_u32 s94, s94, s96"),I("s_cmp_lt_u32 s94, s97"),I(f"s_cbranch_scc1 {L}"),I(D+":")]
        return o
    if not OPT['stamp']: return []
    o=[I("s_memrealtime s[94:95]"),I("s_memtime s[96:97]"),I("s_waitcnt lgkmcnt(0)"),
       I(f"v_writelane_b32 v254, s94, {idx}"),I(f"v_writelane_b32 v255, s96, {idx}")]
    if last: o+=[I("v_lshlrev_b32 v253, 3, v0"),I(f"buffer_store_dwordx2 v[254:255], v253, {srd(WS)}, s{sSTB} offen","stamp")]
    return o
def spin(addrv, off, cmpval, srdb, res=12):
    L=lab("SP"); D=lab("SD")
    e("s_mov_b32 s92, 0")
    e(L+":")
    e(f"buffer_load_dword v{res}, v{addrv}, {srd(srdb)}, 0 offen offset:{off} sc1","poll")
    e("s_waitcnt vmcnt(0)")
    e(f"v_cmp_ne_u32 vcc, {cmpval}, v{res}")
    e(f"s_cbranch_vccz {D}")
    e("s_add_u32 s92, s92, 1")
    e("s_cmp_lt_u32 s92, 0x40000")
    e("s_sleep 1")
    e(f"s_cbranch_scc1 {L}")
    e(D+":")
def check_or_spin(addrv, off, cmpval, srdb, res):
    D=lab("CK")
    e(f"v_cmp_ne_u32 vcc, {cmpval}, v{res}")
    e(f"s_cbranch_vccz {D}")
    n0=len(P)
    spin(addrv,off,cmpval,srdb,res)
    for x in P[n0:]:
        if x.cls=="vm": x.cls="raw"; x.wr=set()
        if x.op=="s_waitcnt": x.op="raw"
    e(D+":")

def common_prologue():
    e("s_cmp_ge_u32 s2, 256"); e("s_cbranch_scc1 L_exit")
    if OPT['probe']!=-2:
        e("s_memrealtime s[94:95]"); e("s_waitcnt lgkmcnt(0)"); e("s_mov_b32 s96, s94"); e("s_mov_b32 s97, 0")
    e("s_load_dwordx16 s[40:55], s[0:1], 0")
    e("s_load_dwordx4 s[56:59], s[0:1], 64")
    e("s_load_dwordx2 s[60:61], s[0:1], 80")
    e("v_lshrrev_b32 v1, 6, v0")
    e(f"s_and_b32 s{sXCD}, s2, 7"); e(f"s_lshr_b32 s{sJ}, s2, 3")
    e(f"v_readfirstlane_b32 s{sW}, v1")
    e("v_and_b32 v0, 63, v0")
    if OPT['stamp']:
        e(f"s_lshl_b32 s{sSTB}, s2, 2"); e(f"s_add_u32 s{sSTB}, s{sSTB}, s{sW}"); e(f"s_lshl_b32 s{sSTB}, s{sSTB}, 9")
        e(f"s_add_u32 s{sSTB}, s{sSTB}, {STAMP0}")
        e("v_mov_b32 v254, 0"); e("v_mov_b32 v255, 0")
    e(f"s_mov_b32 s{sI}, s{sXCD}")
    e(f"s_cmp_eq_u32 s{sJ}, 0"); e("s_cbranch_scc1 L_spare")
    e(f"s_cmp_lt_u32 s{sJ}, 9"); e("s_cbranch_scc1 L_attn")

def dma(voff,sr,soff,imm,tag): return I(f"buffer_load_dwordx4 v{voff}, {srd(sr)}, {soff} offen offset:{imm} lds",tag)

def ffn():
    sSL,sTT,sT2,sN=72,73,74,75
    sSeg1,sSeg2,sXb=76,77,78
    sXo=[None,79,80,81,82]
    sW1o=83; sW2o=[None,84,85,86]
    sHst,sHld,sC=87,88,89
    vX,vW,vXR,vWR,vW2,vH,vH4,vFl,vOne,vPoll,vPA=1,2,(3,4),(5,6),7,8,9,10,11,12,13
    ACC=lambda p,q,t: 16+80*p+(q*5+t)*4
    def XF(i): return vr(176+4*i,4) if i<6 else ar(4*(i-6),4)
    AF=lambda buf,q: 200+16*buf+4*q
    t0,t1,t2_,t3=sT[:4]
    e(f"s_lshr_b32 s{t1}, s{sXCD}, 2"); e(f"s_add_u32 s{sI}, s{t1}, 8")
    e(f"s_and_b32 s{t0}, s{sXCD}, 3"); e(f"s_cmp_eq_u32 s{t0}, 3"); e(f"s_cselect_b32 s{t0}, 10, 9")
    e(f"s_cmp_lt_u32 s{sJ}, s{t0}"); e("s_cbranch_scc1 L_spare")
    e(f"s_sub_u32 s{sI}, s{sJ}, s{t0}")
    e(f"s_mul_i32 s{t0}, s{sXCD}, 23"); e(f"s_add_u32 s{sI}, s{sI}, s{t0}")
    e(f"s_sub_u32 s{sI}, s{sI}, s{t1}")
    e(f"s_mul_i32 s{sT2}, s{sI}, 9363"); e(f"s_lshr_b32 s{sT2}, s{sT2}, 16")
    e(f"s_mul_i32 s{t0}, s{sT2}, 7"); e(f"s_sub_u32 s{sN}, s{sI}, s{t0}")
    e(f"s_sub_u32 s{t0}, s{sI}, 98"); e(f"s_mul_i32 s{t1}, s{t0}, 10923"); e(f"s_lshr_b32 s{t1}, s{t1}, 16")
    e(f"s_mul_i32 s{t2_}, s{t1}, 6"); e(f"s_sub_u32 s{t0}, s{t0}, s{t2_}"); e(f"s_add_u32 s{t0}, s{t0}, 7")
    e(f"s_cmp_lt_u32 s{sI}, 98"); e(f"s_cselect_b32 s{sSL}, s{sT2}, s{t1}"); e(f"s_cselect_b32 s{sTT}, s{sN}, s{t0}")
    e("v_lshrrev_b32 v14, 3, v0")
    e("v_and_b32 v15, 7, v0")
    e(f"s_and_b32 s{t0}, s{sW}, 1"); e(f"s_lshl_b32 s{t1}, s{t0}, 2")
    e("v_lshrrev_b32 v12, 1, v14"); e(f"v_or_b32 v13, s{t1}, v12"); e("v_xor_b32 v13, v13, v15")
    e(f"s_mul_i32 s{t2_}, s{sTT}, 160"); e(f"s_lshl_b32 s{t3}, s{sW}, 3"); e(f"s_add_u32 s{t2_}, s{t2_}, s{t3}")
    e(f"v_add_u32 v{vX}, s{t2_}, v14"); e(f"v_mul_u32_u24 v{vX}, 896, v{vX}"); e(f"v_lshl_add_u32 v{vX}, v13, 4, v{vX}")
    e(f"s_lshl_b32 s{t0}, s{t0}, 2")
    e("v_and_b32 v13, 2, v14"); e(f"v_or_b32 v13, s{t0}, v13"); e("v_xor_b32 v13, v13, v15")
    e(f"v_add_u32 v{vW}, s{t3}, v14"); e(f"v_mul_u32_u24 v{vW}, 3584, v{vW}"); e(f"v_lshl_add_u32 v{vW}, v13, 4, v{vW}")
    e(f"s_lshl_b32 s{t0}, s{sSL}, 8"); e(f"v_add_u32 v{vW}, s{t0}, v{vW}")
    sWr,sD,sNX,sNW,sWr2,sNW2,sNH=90,91,93,99,100,101,3
    def mod7(dst,src,tmp,R):
        e(f"s_mul_i32 s{tmp}, s{src}, 9363"); e(f"s_lshr_b32 s{tmp}, s{tmp}, 16"); e(f"s_mul_i32 s{tmp}, s{tmp}, 7"); e(f"s_sub_u32 s{dst}, s{src}, s{tmp}")
        if R==1: e(f"s_mov_b32 s{dst}, 0")
        elif R==2: e(f"s_and_b32 s{dst}, s{src}, 1"); e(f"s_mul_i32 s{dst}, s{dst}, 3")
        elif R==4: e(f"s_and_b32 s{dst}, s{src}, 3"); e(f"s_lshl_b32 s{dst}, s{dst}, 1")
    e(f"s_lshl_b32 s{t0}, s{sSL}, 1"); e(f"s_add_u32 s{t0}, s{sTT}, s{t0}"); mod7(t0,t0,t1,OPT['rot'])
    e(f"s_sub_u32 s{sWr}, 6, s{t0}"); e(f"s_lshl_b32 s{t1}, s{t0}, 7"); e(f"v_add_u32 v{vX}, s{t1}, v{vX}")
    e(f"s_mul_i32 s{t1}, s{t0}, {64*3584}"); e(f"v_add_u32 v{vW}, s{t1}, v{vW}")
    e(f"s_mov_b32 s{sNX}, -768"); e(f"s_mov_b32 s{sNW}, {-6*64*3584}")
    e(f"s_lshl_b32 s{sSeg2}, s{sW}, 12")
    e(f"s_lshl_b32 s{sXb}, s{sW}, 10"); e(f"s_add_u32 s{sXb}, s{sXb}, 65536")
    for j in range(1,5): e(f"s_mov_b32 s{sXo[j]}, {32*j*896}")
    e(f"s_mov_b32 s{sW1o}, {32*3584-1024}")
    for b,n in ((X,1835008),(WA,1605632),(WU,1605632+2048)):
        e(f"s_mov_b32 s{b+2}, {n}"); e(f"s_mov_b32 s{b+3}, 0x20000")
    e("s_waitcnt lgkmcnt(0)")
    e(f"s_mov_b64 s[{X}:{X+1}], s[40:41]"); e(f"s_mov_b64 s[{WA}:{WA+1}], s[48:49]")
    e(f"s_sub_u32 s{WU}, s50, 2048"); e(f"s_subb_u32 s{WU+1}, s51, 0")
    P.extend(stamp(0))
    def xdma(c):
        o=[]
        for j in range(5):
            o.append([I(f"s_add_u32 m0, s{sXb}, {(c%4)*20480+j*4096}"), dma(vX,X,"0" if j==0 else f"s{sXo[j]}",0,f"x{c}")])
        o[-1]+=[ATOM(f"s_cmp_eq_u32 s{sWr}, {c}",f"s_cselect_b32 s{sD}, s{sNX}, 128"),I(f"v_add_u32 v{vX}, s{sD}, v{vX}")]
        return o
    def wdma(s):
        o=[]
        for j in range(2):
            for m in range(2):
                o.append([dma(vW,WA if m==0 else WU,"0" if j==0 else f"s{sW1o}",(2*m+j)*1024,f"w{s}")])
        o[0].insert(0,I(f"s_add_u32 m0, s{sSeg2}, {(s%4)*16384}"))
        o[-1]+=[ATOM(f"s_cmp_eq_u32 s{sWr}, {s%7}",f"s_cselect_b32 s{sD}, s{sNW}, {64*3584}"),I(f"v_add_u32 v{vW}, s{sD}, v{vW}")]
        if s==6: o[-1].append(I(f"v_add_u32 v{vW}, 128, v{vW}"))
        return o
    def blkloc(b):
        if b>=10: b-=10
        if b<6: return (sSeg1,b*4096)
        return (sSeg2,((b+4)%4)*16384)
    def w2dma(b):
        sg,off=blkloc(b)
        o=[[dma(vW2,WD if b<14 else WO,"0" if pi==0 else f"s{sW2o[pi]}",pi*1024,f"b{b}")] for pi in range(4)]
        o[0].insert(0,I(f"s_add_u32 m0, s{sg}, {off}"))
        if b==13: o[-1].append(I(f"v_mov_b32 v{vW2}, v248"))
        elif b<13:
            o[-1]+=[ATOM(f"s_cmp_eq_u32 s{sWr2}, {b%7}",f"s_cselect_b32 s{sD}, s{sNW2}, 114688"),I(f"v_add_u32 v{vW2}, s{sD}, v{vW2}")]
            if b==6: o[-1].append(I(f"v_add_u32 v{vW2}, {64*896}, v{vW2}"))
        elif b<17: o[-1]+=[ATOM(f"s_cmp_eq_u32 s38, {b-14}",f"s_cselect_b32 s{sD}, s36, {28*896}"),I(f"v_add_u32 v{vW2}, s{sD}, v{vW2}")]
        return o
    flat=lambda L:[x for it in L for x in it]
    for s in range(2):
        P.extend(flat(xdma(s))); P.extend(flat(wdma(s)))
    mksrd(WS,60,WSN); mksrd(WD,52,1605632); mksrd(WO,44,401408); mksrd(OUT,56,1835008); mksrd(DBG,58,256)
    e("v_lshrrev_b32 v14, 4, v0")
    e("v_and_b32 v15, 15, v0")
    e("v_lshrrev_b32 v12, 1, v15"); e("v_xor_b32 v12, v12, v14"); e("v_lshlrev_b32 v12, 4, v12")
    e("v_lshl_add_u32 v12, v15, 7, v12")
    e(f"s_lshr_b32 s{t0}, s{sW}, 1"); e(f"s_mul_i32 s{t0}, s{t0}, 10240"); e(f"s_add_u32 s{t0}, s{t0}, 65536")
    e(f"v_add_u32 v{vXR[0]}, s{t0}, v12"); e(f"v_xor_b32 v{vXR[1]}, 64, v{vXR[0]}")
    e("v_bfe_u32 v12, v0, 2, 2")
    e("v_lshrrev_b32 v13, 1, v12"); e("v_and_b32 v15, 1, v14"); e("v_lshlrev_b32 v15, 1, v15"); e("v_or_b32 v13, v13, v15")
    e(f"s_and_b32 s{t0}, s{sW}, 1"); e(f"s_lshl_b32 s{t0}, s{t0}, 1"); e(f"v_xor_b32 v13, s{t0}, v13"); e("v_lshlrev_b32 v13, 5, v13")
    e("v_lshl_add_u32 v13, v14, 12, v13"); e("v_lshl_add_u32 v13, v12, 7, v13")
    e("v_and_b32 v15, 3, v0"); e(f"v_lshl_add_u32 v{vWR[0]}, v15, 3, v13"); e(f"v_xor_b32 v{vWR[1]}, 32, v{vWR[0]}")
    e("v_lshrrev_b32 v12, 3, v0"); e("v_and_b32 v13, 6, v12"); e("v_and_b32 v15, 7, v0"); e("v_xor_b32 v13, v13, v15")
    e("v_mul_u32_u24 v12, 896, v12"); e(f"v_lshl_add_u32 v{vW2}, v13, 4, v12")
    e(f"s_lshr_b32 s{t0}, s{sW}, 1"); e(f"s_mul_i32 s{t0}, s{t0}, 28"); e(f"s_and_b32 s{t1}, s{sW}, 1"); e(f"s_add_u32 s{t3}, s{t0}, s{t1}")
    e(f"s_lshl_b32 s{t2_}, s{sN}, 7"); e(f"v_add_u32 v{vW2}, s{t2_}, v{vW2}")
    sWr3,sH3=38,39
    e(f"s_add_u32 s{t0}, s{sT2}, s{sN}"); e(f"s_and_b32 s{t0}, s{t0}, {3 if OPT['rot3'] else 0}"); e(f"s_sub_u32 s{sWr3}, 3, s{t0}")
    e(f"s_lshl_b32 s{t1}, s{sW}, 2"); e(f"s_add_u32 s{sH3}, s{t0}, s{t1}")
    e(f"s_mul_i32 s{t0}, s{sH3}, {28*896}"); e(f"v_add_u32 v248, s{t0}, v{vW2}")
    e(f"s_mov_b32 s36, {-3*28*896}"); e(f"s_mov_b32 s37, {-3*NT*1024}")
    e(f"s_lshl_b32 s{t0}, s{sT2}, 1"); e(f"s_add_u32 s{t0}, s{t0}, s{sN}")
    mod7(t0,t0,t1,OPT['rot2']); e(f"s_sub_u32 s{sWr2}, 6, s{t0}"); e(f"s_lshl_b32 s{t0}, s{t0}, 2"); e(f"s_add_u32 s{t3}, s{t3}, s{t0}")
    e(f"s_mul_i32 s{t1}, s{t3}, {32*896}"); e(f"v_add_u32 v{vW2}, s{t1}, v{vW2}")
    e(f"s_mov_b32 s{sNW2}, {-6*114688}"); e(f"s_mov_b32 s{sNH}, {-24*NT*1024}")
    e(f"s_mul_i32 s{t1}, s{sT2}, 5")
    e(f"s_add_u32 s{t0}, s{sH3}, 56"); e(f"s_mul_i32 s{t0}, s{t0}, {NT}"); e(f"s_add_u32 s{t0}, s{t0}, s{t1}"); e(f"s_lshl_b32 s{t0}, s{t0}, 10"); e(f"s_add_u32 s{sT[5]}, s{t0}, {H0}")
    e(f"s_mul_i32 s{t0}, s{t3}, {NT}"); e(f"s_add_u32 s{t0}, s{t0}, s{t1}"); e(f"s_lshl_b32 s{t0}, s{t0}, 10"); e(f"s_add_u32 s{sHld}, s{t0}, {H0}")
    e(f"s_lshl_b32 s{t2_}, s{sTT}, 1"); e(f"s_lshr_b32 s{t1}, s{sW}, 1"); e(f"s_add_u32 s{t2_}, s{t2_}, s{t1}")
    e(f"s_lshl_b32 s{t0}, s{sSL}, 2"); e(f"s_and_b32 s{t3}, s{sW}, 1"); e(f"s_add_u32 s{t0}, s{t0}, s{t3}"); e(f"s_mul_i32 s{t0}, s{t0}, {NT}")
    e(f"s_mul_i32 s{t1}, s{t2_}, 5"); e(f"s_add_u32 s{t0}, s{t0}, s{t1}")
    e(f"s_lshl_b32 s{t0}, s{t0}, 10"); e(f"s_add_u32 s{sHst}, s{t0}, {H0}")
    e(f"s_lshl_b32 s{t0}, s{t2_}, 3"); e(f"s_add_u32 s{t0}, s{t0}, s{t3}"); e(f"s_cmp_ge_u32 s{sSL}, 7"); e(f"s_cselect_b32 s{t1}, 2, 0"); e(f"s_add_u32 s{t0}, s{t0}, s{t1}"); e(f"s_lshl_b32 s{t0}, s{t0}, 7")
    e(f"v_mov_b32 v{vFl}, {OOB}"); e(f"v_mov_b32 v12, s{t0}"); e("v_cmp_eq_u32 vcc, 0, v0")
    e(f"v_lshlrev_b32 v{vH}, 4, v0"); e(f"v_add_u32 v{vH4}, 4096, v{vH}")
    e(f"v_cndmask_b32 v{vFl}, v{vFl}, v12, vcc")
    e(f"s_mul_i32 s{sSeg1}, s{sW}, 24576"); e(f"s_add_u32 s{sSeg1}, s{sSeg1}, 65536")
    for j in range(1,4): e(f"s_mov_b32 s{sW2o[j]}, {6144*j}")
    e(f"s_mov_b32 s{sC}, 0xbfb8aa3b")
    e(f"v_mov_b32 v{vOne}, 1")
    e(f"s_lshl_b32 s{t0}, s{sT2}, 3"); e(f"s_add_u32 s{t0}, s{t0}, s{sW}"); e(f"s_lshl_b32 s{t0}, s{t0}, 7"); e(f"v_mov_b32 v{vPA}, s{t0}")
    e("v_mov_b32 v15, 0")
    CH=OPT['chain']
    def reads(Pn):
        p,s,h=Pn//14,Pn//2,Pn%2
        o=[]
        for ks in ((0,1) if CH else (h,)):
            if p==0 and (h==0 or not CH):
                if s==3: o.append(I(f"v_add_u32 v{vXR[ks]}, 61440, v{vXR[ks]}"))
                for t in range(5): o.append(I(f"ds_read_b128 {XF((2*s+ks)*5+t)}, v{vXR[ks]} offset:{(s%4 if s!=3 else 0)*20480+t*2048}"))
                if s==3: o.append(I(f"v_subrev_u32 v{vXR[ks]}, 61440, v{vXR[ks]}"))
        tr=[]
        for j in range(4):
            if CH: m,ks,tl=j>>1,j&1,h
            else: m,ks,tl=j>>1,h,j&1
            for a in range(2):
                tr.append(I(f"ds_read_b64_tr_b16 {vr(AF(h,j)+2*a,2)}, v{vWR[tl]} offset:{(s%4)*16384+(2*m+ks)*1024+a*512}"))
        return tr[:4]+o+tr[4:]
    def epi(p,t):
        T=[232+k for k in range(8)]; O=240+4*(t%2)
        G=[ACC(p,k>>2,t)+(k&3) for k in range(8)]; U=[ACC(p,2+(k>>2),t)+(k&3) for k in range(8)]
        o=[]
        for k in range(8): o.append(I(f"v_mul_f32 v{T[k]}, s{sC}, v{G[k]}"))
        for k in range(8):
            o.append(I(f"v_exp_f32 v{T[k]}, v{T[k]}")); o.append(I(f"v_mul_f32 v{U[k]}, v{G[k]}, v{U[k]}"))
        for k in range(8): o.append(I(f"v_add_f32 v{T[k]}, 1.0, v{T[k]}"))
        for k in range(8):
            o.append(I(f"v_rcp_f32 v{G[k]}, v{T[k]}"))
            if k>=1: o.append(I(f"v_mul_f32 v{U[k-1]}, v{G[k-1]}, v{U[k-1]}"))
            if k>=3 and k%2==1: o.append(I(f"v_cvt_pk_bf16_f32 v{O+(k-3)//2}, v{U[k-3]}, v{U[k-2]}"))
        o.append(I(f"v_mul_f32 v{U[7]}, v{G[7]}, v{U[7]}"))
        o.append(I(f"v_cvt_pk_bf16_f32 v{O+3}, v{U[6]}, v{U[7]}"))
        o.append(I(f"buffer_store_dwordx4 {vr(O,4)}, v{vH if t<4 else vH4}, {srd(WS)}, s{sHst} offen offset:{(t%4)*1024} sc1",f"st{p}"))
        return o
    R1,R2=176,180
    vPO,vS,vSA,vO,vRW=187,192,188,189,190
    n0=len(P)
    e("v_lshrrev_b32 v196, 4, v0")
    e("v_bfe_u32 v197, v0, 2, 2")
    e("v_and_b32 v184, 1, v196"); e("v_lshl_add_u32 v184, v184, 2, v197")
    e("v_lshrrev_b32 v185, 1, v196"); e("v_lshlrev_b32 v185, 10, v185"); e("v_lshl_add_u32 v185, v184, 7, v185")
    e("v_and_b32 v186, 3, v0"); e("v_lshl_add_u32 v185, v186, 3, v185")
    e("v_lshrrev_b32 v184, 1, v184")
    for q in range(4):
        e(f"s_add_u32 s{t0}, s{sW}, {q}"); e(f"s_and_b32 s{t0}, s{t0}, 3")
        e(f"v_xor_b32 v186, s{t0}, v184"); e(f"v_lshl_add_u32 v186, v186, 5, v185")
        e(f"v_add_u32 v{R1+q}, s{sSeg1}, v186"); e(f"v_add_u32 v{R2+q}, s{sSeg2}, v186")
    e(f"s_mul_i32 s{t0}, s{sT2}, 80"); e(f"s_add_u32 s{t1}, s{t0}, 79"); e(f"s_lshr_b32 s{t2_}, s{t0}, 7"); e(f"s_lshr_b32 s{t1}, s{t1}, 7"); e(f"s_min_u32 s{t1}, s{t1}, 15")
    for r in (t2_,t1):
        e(f"s_lshl_b32 s{r}, s{r}, 2"); e(f"s_add_u32 s{r}, s{r}, s{sW}"); e(f"s_add_u32 s{r}, s{r}, 208"); e(f"s_lshl_b32 s{r}, s{r}, 7")
    e(f"s_sub_u32 s{t1}, s{t1}, s{t2_}"); e("v_lshrrev_b32 v198, 5, v0"); e(f"v_mul_u32_u24 v198, s{t1}, v198"); e(f"v_add_u32 v{vPO}, s{t2_}, v198")
    e("v_and_b32 v197, 15, v0"); e(f"v_add_u32 v197, s{t0}, v197")
    e(f"s_mul_i32 s{t1}, s{sW}, {SSTR}"); e(f"s_add_u32 s{t1}, s{t1}, {S0}"); e(f"v_lshlrev_b32 v{vSA}, 2, v197"); e(f"v_add_u32 v{vSA}, s{t1}, v{vSA}")
    e("v_mul_u32_u24 v197, 896, v197"); e("v_lshl_add_u32 v197, v196, 3, v197")
    e(f"s_lshl_b32 s{t1}, s{sN}, 7"); e(f"s_lshl_b32 s{t2_}, s{sW}, 5"); e(f"s_add_u32 s{t1}, s{t1}, s{t2_}"); e(f"v_add_u32 v{vO}, s{t1}, v197")
    e(f"v_add_u32 v{vRW}, s{sSeg1}, v{vH}")
    for q in range(1,4):
        e(f"s_sub_u32 s{t0}, s{sW}, {q}"); e(f"s_and_b32 s{t0}, s{t0}, 3"); e(f"s_mul_i32 s{t0}, s{t0}, 24576"); e(f"s_add_u32 s{t0}, s{t0}, {65536+(q-1)*5120}")
        e(f"v_add_u32 v{183+q}, s{t0}, v{vH}")
    for j in range(1,5): e(f"s_mov_b32 s{39+j}, {16*j*896}")
    e(f"s_add_u32 s{t0}, s{sSeg2}, 147456"); e(f"v_add_u32 v249, s{t0}, v{vH}")
    for q in range(4): e(f"ds_write_b128 v249, {vr(176+4*q,4)} offset:{q*1024}")
    setup2=P[n0:]; del P[n0:]
    unpark=[I(f"ds_read_b128 {vr(176+4*q,4)}, v249 offset:{q*1024}") for q in range(4)]
    P.extend(setup2)
    P.append(WAIT(vm=["x0","w0"],lgkm=0)); e("s_barrier")
    P.extend(stamp(1))
    P.extend(reads(0)); P.append(WAIT(lgkm=0))
    pool=Pool(flat([epi(0,t) for t in range(5)]))
    dq=[]
    for s in range(2,14):
        if s<=6: dq.append((max(0,2*(s-4)+1),xdma(s)))
        dq.append((max(0,2*(s-4)+1),wdma(s)))
        if s==8: dq.append((0,[[I(f"buffer_load_dword v14, v15, {srd(DBG)}, 0 offen sc1","clr")]]))
    w2q=[(max(OPT['w2p0'],(13 if b<2 else 17) if b<6 else 2*(b+4)+1),w2dma(b)) for b in range(10)]
    cur=[]
    for Pn in range(28):
        p,s,h=Pn//14,Pn//2,Pn%2
        mf=[]
        for jq in range(2 if CH else 4):
            for t in range(5):
                for ks in ((0,1) if CH else (h,)):
                    q = (2*jq+h) if CH else jq
                    j = (2*jq+ks) if CH else jq
                    d=vr(ACC(p,q,t),4)
                    mf.append(mfma(d,vr(AF(h,j),4),XF((2*(s%7)+ks)*5+t),"0" if (s%7==0 and ks==0) else d))
        f=[]
        if Pn<27:
            rd=reads(Pn+1); f+=spread(rd,0,min(15,max(8,len(rd))))
        items=[]
        while len(items)<OPT['rate']:
            if not cur:
                if dq and dq[0][0]<=Pn: cur=dq.pop(0)[1]
                elif w2q and w2q[0][0]<=Pn: cur=w2q.pop(0)[1]
                else: break
            items.append(cur.pop(0))
        n=len(items)
        for k,it in enumerate(items):
            pos=1+k*20/max(n,OPT['rate'])
            for x in it:
                f.append((pos-1 if x.cls=="salu" else (pos+1 if x.cls=="valu" else pos),x))
        if Pn==16: f+=spread(unpark,8,12)
        P.extend(pack(mf,f,pool if p==1 else None,OPT['cap']+(1 if Pn<OPT['cp'] else 0),lo=(2 if Pn==14 else 0)))
        if Pn==13: P.extend(stamp(2))
        if h==0:
            P.append(WAIT(vm=[f"w{s+1}",f"x{s+1}"]+(["st0","clr"] if s==OPT['sigA'] else []),lgkm=0)); e("s_barrier")
            if s==OPT['sigA']:
                check_or_spin(15,0,1,DBG,14)
                e(f"buffer_atomic_add v{vOne}, v{vFl}, {srd(WS)}, 0 offen","sigA")
            P.extend(stamp(32+s))
        elif Pn<27: P.append(WAIT(lgkm=0))
    assert not dq
    print("left: epiA ops",len(pool.q),"w2 items",len(w2q))
    P.extend(stamp(3))
    P.extend(pool.q)
    P.extend(flat(cur))
    for _,g_ in w2q: P.extend(flat(g_))
    e(f"s_add_u32 s{sHst}, s{sHst}, {2*NT*1024}")
    NST=OPT['nst']; NQ=OPT['nq']; B0=18-NQ
    def AW(b,q,a=None):
        if b<NST: return ar(16*b+4*q,4) if a is None else ar(16*b+4*q+2*a,2)
        return vr(AF(b%2,q),4) if a is None else vr(AF(b%2,q)+2*a,2)
    def treads(b):
        sg,off=blkloc(b); base=R1 if sg==sSeg1 else R2
        return [I(f"ds_read_b64_tr_b16 {AW(b,q,a)}, v{base+q} offset:{off+a*2048}") for q in range(4) for a in range(2)]
    S=[]
    if NST: S+=[WAIT(vm=["b0"])]+treads(0)
    for j in range(NST):
        if j+1<NST: S+=[WAIT(vm=[f"b{j+1}"])]+treads(j+1)+[WAIT(lgkm=8)]
        else: S+=[WAIT(lgkm=0)]
        S+=flat(w2dma(10+j))
    E=[]
    for t in range(5):
        E+=epi(1,t)+stamp(46+t)
        if t==OPT['sAt'] and OPT['sigA']>13: E.append("sigA")
        if t==OPT['pA']: E.append(I(f"buffer_load_dword v{vPoll}, v{vPA}, {srd(WS)}, 0 offen sc1","pollA"))
    k0=0
    for k,x in enumerate(E):
        if x=="sigA":
            P.append(WAIT(vm=["st0","clr"])); check_or_spin(15,0,1,DBG,14)
            e(f"buffer_atomic_add v{vOne}, v{vFl}, {srd(WS)}, 0 offen","sigA")
        else: P.append(x)
        k1=len(S)*(k+1)//len(E); P.extend(S[k0:k1]); k0=k1
    P.extend(stamp(4))
    NSL=10 if NST else 12
    def HS(b,t):
        k=b%NSL
        if not NST: return ar(k*20+4*t,4)
        return ar(128+k*20+4*t,4) if k<6 else vr(96+(k-6)*20+4*t,4)
    def hload(b):
        o=[]
        for t in range(5):
            o.append([I(f"buffer_load_dwordx4 {HS(b,t)}, v{vH if t<4 else vH4}, {srd(WS)}, s{sHld} offen offset:{(t%4)*1024}{' sc1' if OPT['hsc1'] else ''}",f"h{b}")])
        if b==13: o[-1].append(I(f"s_mov_b32 s{sHld}, s{sT[5]}"))
        elif b<13:
            o[-1]+=[ATOM(f"s_cmp_eq_u32 s{sWr2}, {b%7}",f"s_cselect_b32 s{sD}, s{sNH}, {4*NT*1024}",f"s_add_u32 s{sHld}, s{sHld}, s{sD}")]
            if b==6: o[-1].append(I(f"s_add_u32 s{sHld}, s{sHld}, {2*NT*1024}"))
        elif b<17: o[-1]+=[ATOM(f"s_cmp_eq_u32 s38, {b-14}",f"s_cselect_b32 s{sD}, s37, {NT*1024}",f"s_add_u32 s{sHld}, s{sHld}, s{sD}")]
        return o
    P.append(WAIT(vm=["pollA","b0"])); check_or_spin(vPA,0,7,WS,vPoll)
    P.extend(stamp(11))
    LK=OPT['look']
    if not NST: P.extend(treads(0))
    for b in range(LK): P.extend(flat(hload(b)))
    P.append(WAIT(vm=["st1"])); e(f"buffer_atomic_add v{vOne}, v{vFl}, {srd(WS)}, 0 offen offset:512","sigB")
    P.extend(stamp(5))
    hn,wn=LK,10+NST
    order=(1,2,3,0)
    def scale(q): return [I(f"v_mul_f32 v{ACC(0,q,t)+r}, v{vS+t}, v{ACC(0,q,t)+r}") for t in range(5) for r in range(4)]
    def qreads(k):
        o=[]
        for bb in range(B0,18):
            sg,off=blkloc(bb); base=R1 if sg==sSeg1 else R2
            o+=[I(f"ds_read_b64_tr_b16 {vr(AF((k+B0)%2,bb-B0)+2*a,2)}, v{base+order[k]} offset:{off+a*2048}") for a in range(2)]
        return o
    def place(items,nm):
        f=[]; n=len(items)
        for k,it in enumerate(items):
            pos=k*nm/max(n,5)
            seen=False
            for x in it:
                if x.cls=="vm": seen=True; f.append((pos+0.5,x))
                else: f.append((pos+(0.9 if seen else 0.1),x))
        return f
    for b in range(B0):
        mf=[]
        for q in order:
            for t in range(5):
                d=vr(ACC(0,q,t),4)
                mf.append(mfma(d,AW(b,q),HS(b,t),"0" if b==0 else d))
        tags=[f"h{b}"]+([f"b{b+1}"] if b<B0-1 else ["b17"])+(["s"] if b==13 else [])
        if b==OPT['gB']: tags.append("pollB")
        if b==OPT['gO']: tags.append("pollO")
        P.append(WAIT(vm=tags,lgkm=0))
        if b==OPT['gB']: check_or_spin(vPA,512,7,WS,vPoll); P.extend(stamp(6))
        if b==OPT['gO']:
            check_or_spin(vPO,0,4,WS,vPoll); P.extend(stamp(7))
            for t in range(5): e(f"buffer_load_dword v{vS+t}, v{vSA}, {srd(WS)}, 0 offen offset:{t*64} sc1","s")
        P.extend(stamp(12+b))
        items=[]
        if b==OPT['pB']: items.append([I(f"buffer_load_dword v{vPoll}, v{vPA}, {srd(WS)}, 0 offen offset:512 sc1","pollB")])
        if b==OPT['pO']: items.append([I(f"buffer_load_dword v{vPoll}, v{vPO}, {srd(WS)}, 0 offen sc1","pollO")])
        while len(items)<=6:
            ok = hn<18 and (hn<7 or b>=OPT['gB']) and (hn<14 or b>=OPT['gO'])
            if ok and (hn-b<=LK or (hn>=B0 and 17-hn>=B0-1-b-OPT['qlead'])): items+=hload(hn); hn+=1
            elif wn<18 and wn-10<=b: items+=w2dma(wn); wn+=1
            else: break
        f=place(items,20)
        if b+1>=NST: f+=spread(treads(b+1) if b<B0-1 else qreads(0),1,14)
        if b==13: f+=spread(scale(order[0])+([] if NQ==4 else scale(order[1])),8 if NQ==4 else 9,19.9)
        if b==14: f=f+[(0,x) for x in []]
        if b==14:
            mf2=pack(mf,f+spread(scale(order[2]),0,4.9)+spread(scale(order[3]),5,9.9)); P.extend(mf2)
        else: P.extend(pack(mf,f))
    assert hn==18 and wn==18,(hn,wn)
    for k in range(4):
        q=order[k]; mf=[]
        for t in range(5):
            for bb in range(B0,18):
                d=vr(ACC(0,q,t),4); mf.append(mfma(d,vr(AF((k+B0)%2,bb-B0),4),HS(bb,t),d))
        P.append(WAIT(vm=["h17"],lgkm=0))
        P.extend(stamp(26+k) if NQ==4 or k>=2 else [])
        f=[]; nm=len(mf)
        if k<3:
            f+=spread(qreads(k+1),0,nm*0.4)
            if NQ==4: f+=spread(scale(order[k+1]),4,19.9)
        if k>0:
            qq=order[k-1]
            f+=spread([I(f"ds_write_b128 v{vRW}, {vr(ACC(0,qq,t),4)} offset:{(qq-1)*5120+t*1024}") for t in range(5)],3,nm-1)
        P.extend(pack(mf,f))
    P.extend(stamp(8))
    P.append(WAIT(lgkm=0)); e("s_barrier")
    for t in range(5):
        for q in range(1,4): e(f"ds_read_b128 {vr(ACC(1,q,t),4)}, v{183+q} offset:{t*1024}")
    for t in range(5):
        e(f"s_waitcnt lgkmcnt({12-3*t})")
        d=ACC(0,0,t)
        for r in range(4): e(f"v_add_f32 v{ACC(1,1,t)+r}, v{ACC(1,1,t)+r}, v{ACC(1,2,t)+r}")
        for r in range(4): e(f"v_add_f32 v{d+r}, v{d+r}, v{ACC(1,3,t)+r}")
        for r in range(4): e(f"v_add_f32 v{d+r}, v{d+r}, v{ACC(1,1,t)+r}")
        e(f"v_cvt_pk_bf16_f32 v{d}, v{d}, v{d+1}"); e(f"v_cvt_pk_bf16_f32 v{d+1}, v{d+2}, v{d+3}")
        e(f"buffer_store_dwordx2 {vr(d,2)}, v{vO}, {srd(OUT)}, {'0' if t==0 else 's%d'%(39+t)} offen{['',' sc1',' nt',' sc0 sc1',' sc1 nt'][OPT['outpol']]}","out")
    P.extend(stamp(9,True))
    e("s_endpgm")

def attn():
    sAT,sHG=72,73
    sXb,sWb=74,75
    sWo={(0,0):76,(0,1):77,(1,0):78,(1,1):79,(2,0):80,(2,1):81}
    sK,sD0,sD1,sO,sC=82,83,84,85,86
    mE,mM0,mM1,mZ=88,90,100,68
    t0,t1=66,67; t2_,t3=70,71
    vX=[1,2,3,4,5]; vW=6; vXR=(7,8); vR0=(9,10); vR1=(11,12); vRq=(13,14); vPad=15
    vA=(224,225)
    TBL=159744; XB=98304
    Q=lambda u,tl: 16+(u*2+tl)*4
    K=lambda t,tl: 80+(t*2+tl)*4
    V=lambda d,t: 152+d*36+t*4
    XA=lambda buf,t: buf*36+4*t
    WF=lambda buf,m,tl: 72+buf*24+(2*m+tl)*4
    e("L_attn:")
    e(f"s_lshr_b32 s{sAT}, s{sXCD}, 2"); e(f"s_lshl_b32 s{sAT}, s{sAT}, 3"); e(f"s_add_u32 s{sAT}, s{sAT}, s{sJ}"); e(f"s_sub_u32 s{sAT}, s{sAT}, 1"); e(f"s_and_b32 s{sHG}, s{sXCD}, 3")
    e("v_lshrrev_b32 v230, 3, v0"); e("v_and_b32 v231, 7, v0")
    e(f"s_and_b32 s{t0}, s{sW}, 1"); e(f"s_lshl_b32 s{t1}, s{t0}, 2")
    e("v_lshrrev_b32 v232, 1, v230"); e(f"v_or_b32 v232, s{t1}, v232"); e("v_xor_b32 v232, v232, v231"); e("v_lshlrev_b32 v232, 4, v232")
    e(f"s_lshl_b32 s{t2_}, s{sAT}, 7"); e(f"s_lshl_b32 s{t3}, s{sW}, 3"); e(f"s_add_u32 s{t2_}, s{t2_}, s{t3}")
    e(f"v_add_u32 v{vX[0]}, s{t2_}, v230"); e(f"v_mul_u32_u24 v{vX[0]}, 896, v{vX[0]}"); e(f"v_add_u32 v{vX[0]}, v{vX[0]}, v232")
    for j in range(1,5): e(f"v_add_u32 v{vX[j]}, {32*j*896}, v{vX[0]}")
    e(f"s_cmp_lt_u32 s{t2_}, 16"); e(f"s_cselect_b32 s{t0}, {OOB}, 0"); e(f"v_or_b32 v{vX[0]}, s{t0}, v{vX[0]}")
    e(f"s_cmp_ge_u32 s{sW}, 2"); e(f"s_cselect_b32 s{t0}, {OOB}, 0"); e(f"v_or_b32 v{vX[4]}, s{t0}, v{vX[4]}")
    e("v_lshrrev_b32 v230, 4, v0"); e("v_and_b32 v231, 15, v0")
    e(f"s_and_b32 s{t0}, s{sW}, 2"); e(f"s_lshl_b32 s{t0}, s{t0}, 1"); e(f"v_or_b32 v232, s{t0}, v230"); e("v_lshlrev_b32 v232, 1, v232"); e("v_xor_b32 v232, v232, v231")
    e(f"s_lshl_b32 s{t0}, s{sW}, 2"); e(f"v_add_u32 v{vW}, s{t0}, v230"); e(f"v_mul_u32_u24 v{vW}, 2688, v{vW}")
    e(f"v_lshl_add_u32 v{vW}, v232, 4, v{vW}"); e(f"s_mul_i32 s{t0}, s{sHG}, 224"); e(f"v_add_u32 v{vW}, s{t0}, v{vW}")
    e(f"v_mov_b32 v233, {OOB}"); e("v_cmp_lt_u32 vcc, 13, v232"); e(f"v_cndmask_b32 v{vW}, v{vW}, v233, vcc")
    sWr,sD,sNW,sKx,sKt=92,93,99,87,3
    e(f"s_lshl_b32 s{t0}, s{sHG}, 1"); e(f"s_add_u32 s{t0}, s{t0}, s{sAT}")
    if OPT['arot']==7:
        e(f"s_mul_i32 s{t1}, s{t0}, 9363"); e(f"s_lshr_b32 s{t1}, s{t1}, 16"); e(f"s_mul_i32 s{t1}, s{t1}, 7"); e(f"s_sub_u32 s{t0}, s{t0}, s{t1}")
    elif OPT['arot']==2: e(f"s_and_b32 s{t0}, s{t0}, 1"); e(f"s_mul_i32 s{t0}, s{t0}, 3")
    elif OPT['arot']==4: e(f"s_and_b32 s{t0}, s{sAT}, 3"); e(f"s_lshl_b32 s{t0}, s{t0}, 1")
    else: e(f"s_mov_b32 s{t0}, 0")
    e(f"s_sub_u32 s{sWr}, 6, s{t0}"); e(f"s_lshl_b32 s{sKx}, s{t0}, 7"); e(f"s_lshl_b32 s{sKt}, s{t0}, 9")
    e(f"s_mul_i32 s{t1}, s{t0}, {64*2688}"); e(f"v_add_u32 v{vW}, s{t1}, v{vW}"); e(f"s_mov_b32 s{sNW}, {-13*32*2688}")
    e(f"s_lshl_b32 s{sXb}, s{sW}, 10"); e(f"s_add_u32 s{sXb}, s{sXb}, {XB}")
    e(f"s_mul_i32 s{sWb}, s{sW}, 6144")
    for (m,j),r in sWo.items():
        imm=((2*m+j)%4)*1024
        e(f"s_mov_b32 s{r}, {4096+m*896+16*j*2688-imm}")
    e(f"s_lshl_b32 s{t0}, s{sW}, 6"); e(f"v_add_u32 v234, s{t0}, v0"); e("v_lshlrev_b32 v235, 2, v234")
    e("s_waitcnt lgkmcnt(0)")
    mksrd(GW,54,896); mksrd(X,40,1835008,14336); mksrd(WA,42,1204224,4096)
    P.extend(stamp(0))
    e(f"buffer_load_dword v236, v235, {srd(GW)}, 0 offen","gw")
    def xdma(c):
        o=[I(f"s_mov_b32 s{sK}, s{sKx}"),I(f"s_add_u32 s{sKx}, s{sKx}, 128"),ATOM(f"s_cmp_eq_u32 s{sWr}, {c}",f"s_cselect_b32 s{sKx}, 0, s{sKx}")]
        for j in range(5):
            o.append(I(f"s_add_u32 m0, s{sXb}, {(c%3)*20480+j*4096}"))
            o.append(dma(vX[j],X,f"s{sK}",0,f"x{c}"))
        return o
    def wdma(k):
        o=[]
        for m in range(3):
            if m!=1: o.append(I(f"s_add_u32 m0, s{sWb}, {(k%4)*24576+(4096 if m==2 else 0)}"))
            for j in range(2): o.append(dma(vW,WA,f"s{sWo[(m,j)]}",((2*m+j)%4)*1024,f"w{k}"))
        if k%2==1:
            o[-1:-1]=[ATOM(f"s_cmp_eq_u32 s{sWr}, {k//2}",f"s_cselect_b32 s{sD}, s{sNW}, {32*2688}")]
            o.append(I(f"v_add_u32 v{vW}, s{sD}, v{vW}"))
        else: o.append(I(f"v_add_u32 v{vW}, {32*2688}, v{vW}"))
        return o
    for z in (xdma(0),wdma(0),wdma(1)): P.extend(z)
    aq=[(0,xdma(1)),(0,wdma(2)),(0,wdma(3)),(0,xdma(2))]
    for k in range(4,14):
        aq.append((k-4,wdma(k)))
        if k%2==1 and (k+1)//2<=6: aq.append((2*((k+1)//2-3)+1,xdma((k+1)//2)))
    acur=[]
    mksrd(WS,60,WSN); mksrd(DBG,58,256)
    if OPT['apf']:
        mksrd(WO,44,401408); mksrd(WD,52,1605632)
        e(f"s_sub_u32 s{t0}, s{sJ}, 1"); e(f"s_lshl_b32 s{t0}, s{t0}, 2"); e(f"s_add_u32 s{t0}, s{t0}, s{sW}"); e(f"s_lshl_b32 s{t0}, s{t0}, 6")
        e(f"v_add_u32 v227, s{t0}, v0"); e("v_lshlrev_b32 v226, 7, v227"); e(f"s_mov_b32 s36, {2048*128}")
        e("v_mul_u32_u24 v228, 9363, v227"); e("v_lshrrev_b32 v228, 22, v228"); e("v_add_u32 v228, 1, v228"); e("v_mul_u32_u24 v228, 448, v228"); e("v_add_u32 v228, v228, v227"); e("v_lshlrev_b32 v228, 7, v228")
        e("v_cmp_lt_u32 vcc, 1791, v227"); e(f"v_mov_b32 v229, {OOB}"); e("v_cndmask_b32 v227, v228, v229, vcc")
        for j in range(1,4): e(f"s_mov_b32 s{36+j}, {3584*128*j}")
    e("v_lshrrev_b32 v230, 4, v0"); e("v_and_b32 v231, 15, v0")
    e("v_lshrrev_b32 v232, 1, v231"); e("v_xor_b32 v232, v232, v230"); e("v_lshlrev_b32 v232, 4, v232")
    e("v_lshl_add_u32 v232, v231, 7, v232"); e(f"v_add_u32 v{vXR[0]}, {XB}, v232"); e(f"v_xor_b32 v{vXR[1]}, 64, v{vXR[0]}")
    e("v_bfe_u32 v232, v0, 2, 2"); e("v_and_b32 v233, 3, v0")
    e("v_and_b32 v237, 1, v230"); e("v_lshl_add_u32 v238, v237, 2, v232"); e("v_lshlrev_b32 v238, 2, v238")
    e("v_mul_u32_u24 v237, 12288, v237"); e("v_lshrrev_b32 v239, 1, v230"); e("v_lshl_add_u32 v237, v239, 10, v237"); e("v_lshl_add_u32 v237, v232, 8, v237")
    e(f"s_mul_i32 s{t0}, s{sW}, 7")
    e(f"v_add_u32 v239, s{t0}, v233")
    e("v_xor_b32 v240, v239, v238"); e(f"v_lshl_add_u32 v{vR0[0]}, v240, 3, v237")
    e("v_add_u32 v239, 4, v239")
    e("v_and_b32 v240, 3, v239"); e("v_or_b32 v240, 28, v240"); e("v_cmp_eq_u32 vcc, 3, v233"); e("v_cndmask_b32 v239, v239, v240, vcc")
    e("v_xor_b32 v240, v239, v238"); e(f"v_lshl_add_u32 v{vR1[0]}, v240, 3, v237")
    e(f"v_cndmask_b32 v{vPad}, 0, 1, vcc")
    e(f"v_add_u32 v{vR0[1]}, 49152, v{vR0[0]}"); e(f"v_add_u32 v{vR1[1]}, 49152, v{vR1[0]}")
    e("v_lshl_add_u32 v240, v230, 3, v232"); e("v_lshlrev_b32 v240, 3, v240"); e(f"v_add_u32 v240, {TBL}, v240")
    e(f"v_cndmask_b32 v{vRq[0]}, v{vR1[0]}, v240, vcc"); e(f"v_cndmask_b32 v{vRq[1]}, v{vR1[1]}, v240, vcc")
    P.append(WAIT(vm=["gw"]))
    e("v_and_b32 v244, 0xffff, v236"); e("v_mov_b32 v245, 0"); e("v_lshrrev_b32 v246, 16, v236"); e("v_mov_b32 v247, 0")
    e("v_lshlrev_b32 v234, 4, v234"); e(f"v_add_u32 v234, {TBL}, v234")
    e("ds_write_b128 v234, v[244:247]")
    def reads(k):
        sl=k%4; h=sl//2; buf=k%2
        pre=[]; tr=[]
        for a in range(2):
            imm=(sl%2)*24576+a*6144
            pre.append(I(f"s_add_u32 s{(sD0,sD1)[a]}, s{sKt}, {(256*(k%2)+32*a-imm)&0xffffffff}"))
            pre.append(I(f"v_mad_i32_i24 v{vA[a]}, v{vPad}, s{(sD0,sD1)[a]}, v{vRq[h]}"))
        for m in range(3):
            for tl in range(2):
                for a in range(2):
                    ad = vR0[h] if tl==0 else (vA[a] if m==0 else vR1[h])
                    tr.append(I(f"ds_read_b64_tr_b16 {ar(WF(buf,m,tl)+2*a,2)}, v{ad} offset:{(sl%2)*24576+a*6144+m*2048}"))
        xs=[I(f"ds_read_b128 {ar(XA(buf,t),4)}, v{vXR[k%2]} offset:{((k//2)%3)*20480+t*2048}") for t in range(9)]
        if k%2==1: pre+=[I(f"s_add_u32 s{sKt}, s{sKt}, 512"),ATOM(f"s_cmp_eq_u32 s{sWr}, {k//2}",f"s_cselect_b32 s{sKt}, 0, s{sKt}")]
        return pre+tr[:2]+xs+tr[2:]
    P.append(WAIT(vm=["x0","w0"],lgkm=0)); e("s_barrier")
    P.extend(stamp(1))
    P.extend(reads(0)); P.append(WAIT(vm=["w1"],lgkm=0)); e("s_barrier")
    cA0,cB0,cA1,cB1,vNeg,vH,vH4,vSt,vFl=226,227,228,229,230,231,250,251,252
    import struct
    f2u=lambda x: struct.unpack("<I",struct.pack("<f",x))[0]
    n0=len(P)
    e("v_lshrrev_b32 v232, 4, v0"); e("v_and_b32 v233, 15, v0")
    e("v_and_b32 v234, 1, v233"); e(f"v_cmp_eq_u32 s[{mE}:{mE+1}], 0, v234")
    e("v_lshl_add_u32 v235, v232, 2, v234"); e(f"v_cmp_le_u32 s[{mM0}:{mM0+1}], v235, v233")
    e("v_add_u32 v235, 2, v235"); e(f"v_cmp_le_u32 s[{mM1}:{mM1+1}], v235, v233")
    e("v_mov_b32 v236, 0xffff0000"); e("v_mov_b32 v237, 0xffff"); e(f"v_lshlrev_b32 v{vH}, 4, v0"); e(f"v_add_u32 v{vH4}, 4096, v{vH}")
    e(f"v_cndmask_b32 v236, v236, v237, s[{mE}:{mE+1}]")
    e(f"v_cndmask_b32 v{cA0}, 0, v236, s[{mM0}:{mM0+1}]"); e(f"v_xor_b32 v{cB0}, v{cA0}, v236")
    e(f"v_cndmask_b32 v{cA1}, 0, v236, s[{mM1}:{mM1+1}]"); e(f"v_xor_b32 v{cB1}, v{cA1}, v236")
    e(f"v_mov_b32 v{vNeg}, 0xf149f2ca")
    P.append(ATOM(f"s_cmp_eq_u32 s{sAT}, 0",f"s_cselect_b64 s[{mZ}:{mZ+1}], -1, 0"))
    e(f"s_mov_b32 s{sC}, {f2u(28**-0.5*math.log2(math.e)):#x}"); e(f"s_mov_b32 s{sK}, 0xbfb8aa3b")
    e(f"s_lshl_b32 s{t0}, s{sHG}, 2"); e(f"s_add_u32 s{t0}, s{t0}, s{sW}"); e(f"s_add_u32 s{t0}, s{t0}, 56"); e(f"s_mul_i32 s{t0}, s{t0}, {NT}")
    e(f"s_lshl_b32 s{t1}, s{sAT}, 3"); e(f"s_add_u32 s{t0}, s{t0}, s{t1}"); e(f"s_lshl_b32 s{t0}, s{t0}, 10"); e(f"s_add_u32 s{sO}, s{t0}, {H0}")
    e(f"s_mul_i32 s{t0}, s{sHG}, {SSTR}"); e(f"s_lshl_b32 s{t1}, s{sAT}, 9"); e(f"s_add_u32 s{t0}, s{t0}, s{t1}"); e(f"s_add_u32 s{t0}, s{t0}, {S0}")
    P.append(ATOM(f"s_cmp_eq_u32 s{sW}, 0",f"s_cselect_b32 s{t0}, s{t0}, {OOB}"))
    e(f"v_lshlrev_b32 v{vSt}, 2, v0"); e(f"v_add_u32 v{vSt}, s{t0}, v{vSt}")
    e(f"s_lshl_b32 s{t0}, s{sAT}, 2"); e(f"s_add_u32 s{t0}, s{t0}, s{sHG}"); e(f"s_add_u32 s{t0}, s{t0}, 208"); e(f"s_lshl_b32 s{t0}, s{t0}, 7")
    e("v_min_u32 v238, 1, v0"); e("v_lshlrev_b32 v238, 31, v238"); e(f"v_or_b32 v{vFl}, s{t0}, v238")
    apool=Pool(P[n0:]); del P[n0:]
    U=range(8)
    A=lambda u: 232+u; B=lambda u: 240+u; M=lambda u: 170+u; T=lambda u: 178+u; L=lambda u: 206+u
    SP=lambda u: K(u,1); SO=lambda u: Q(u,1); PQ=lambda u: Q(u,0)
    ZC=(224,225)
    def pk(d,a): return I(f"v_cvt_pk_bf16_f32 v{d}, v{a}, v{a+1}")
    def pack4(d,a,b): return [pk(d,a),pk(d+1,a+2),pk(d+2,b),pk(d+3,b+2)]
    def seq(groups,cap=2):
        f=[]; g=0; room=cap
        for mg,ins in groups:
            for x in ins:
                if g<mg: g=mg; room=cap
                if cost(x)>room: g+=1; room=cap
                f.append((g,x)); room-=cost(x)
        return f
    for k in range(14):
        buf=k%2; mf=[]
        c=lambda d: "0" if k==0 else d
        two=lambda n: [(x,tl) for x in range(n) for tl in range(2)] if k==13 else [(x,tl) for tl in range(2) for x in range(n)]
        for u,tl in two(8): d=vr(Q(u,tl),4); mf.append(mfma(d,ar(WF(buf,0,tl),4),ar(XA(buf,u+1),4),c(d)))
        for t,tl in two(9): d=vr(K(t,tl),4); mf.append(mfma(d,ar(WF(buf,1,tl),4),ar(XA(buf,t),4),c(d)))
        for tl in range(2):
            for t in range(9): d=vr(V(tl,t),4); mf.append(mfma(d,ar(XA(buf,t),4),ar(WF(buf,2,tl),4),c(d)))
        f=[]
        if k<13: f+=spread(reads(k+1),0,36)
        dm=[]; nd=0
        while nd<OPT['arate']:
            if not acur:
                if aq and aq[0][0]<=k: acur=list(aq.pop(0)[1])
                else: break
            x=acur.pop(0); dm.append(x); nd+=(x.cls=="vm")
            while acur and acur[0].cls=="valu": dm.append(acur.pop(0))
        if k==8:
            dm.append(I("v_mov_b32 v249, 0")); dm.append(I(f"buffer_load_dword v248, v249, {srd(DBG)}, 0 offen sc1","clr"))
        if OPT['apf'] and OPT['apfk']<=k<OPT['apfk']+3:
            kk=k-OPT['apfk']
            if kk==0: dm+=[I(f"buffer_load_dword a{120+j}, v226, {srd(WO)}, {['0','s36'][j]} offen","pf") for j in range(2)]
            elif OPT['apf']>1: dm+=[I(f"buffer_load_dword a{122+2*(kk-1)+j}, v227, {srd(WD)}, {['0','s37','s38','s39'][2*(kk-1)+j]} offen","pf") for j in range(2)]
        pos=0; nd=0
        for x in dm:
            if x.cls=="vm": nd+=1
            f.append((4.3*nd-(2 if x.cls=="vm" else (1 if x.cls=="valu" else -1)),x))
        if k==13:
            assert not apool.q and not aq and not acur
            for u in U:
                mf.append(mfma(vr(SP(u),4),vr(K(u,0),4),vr(Q(u,0),4),"0")); mf.append(mfma(vr(SO(u),4),vr(K(u+1,0),4),vr(Q(u,0),4),"0"))
            G=[(2*u+5,pack4(Q(u,0),Q(u,0),Q(u,1))) for u in U]
            zc=[]
            for h in range(2):
                q=[Q(4*h+x,1) for x in range(4)]
                zc.append([I(f"v_permlane16_swap_b32 v{q[2]}, v{q[3]}"),I(f"v_permlane16_swap_b32 v{q[0]}, v{q[1]}"),I(f"v_permlane32_swap_b32 v{q[1]}, v{q[3]}"),
                           I(f"v_mul_f32 v{ZC[h]}, s{sK}, v{q[3]}"),I(f"v_exp_f32 v{ZC[h]}, v{ZC[h]}"),I(f"v_add_f32 v{ZC[h]}, 1.0, v{ZC[h]}"),I(f"v_rcp_f32 v{ZC[h]}, v{ZC[h]}")])
            zi=[x for pr in zip(*zc) for x in pr]
            for t in range(9):
                G.append((16+2*t+5,pack4(K(t,0),K(t,0),K(t,1))))
                if t in (1,3,5): G.append((0,zi[:2] if t==1 else (zi[2:4] if t==3 else zi[4:6])))
            G.append((0,zi[6:8]))
            for d in range(2):
                for t in range(9):
                    G.append((34+9*d+t+4,[pk(V(d,0)+2*t,V(d,t)),pk(V(d,0)+2*t+1,V(d,t)+2)]))
                    if d==0 and t in (2,4,6): G.append((0,zi[8+(t-2):10+(t-2)]))
            f+=seq(G)
        P.extend(pack(mf,f,apool if (12 if OPT['apf']>1 else 11)<=k<13 else None))
        if k<13:
            P.append(WAIT(vm=[f"w{k+2}",f"x{(k+2)//2}"],lgkm=0)); e("s_barrier"); P.extend(stamp(32+k))
    P.extend(stamp(2))
    sE=f"s[{mE}:{mE+1}]"
    for u in U:
        e(f"v_cndmask_b32 v{M(u)}, v{SP(u)+1}, v{SP(u)}, {sE}"); e(f"v_cndmask_b32 v{T(u)}, v{SP(u)+3}, v{SP(u)+2}, {sE}")
        e(f"v_cndmask_b32 v{A(u)}, v{SO(u)+1}, v{SO(u)}, {sE}"); e(f"v_cndmask_b32 v{B(u)}, v{SO(u)+3}, v{SO(u)+2}, {sE}")
        if u==0:
            e(f"v_cndmask_b32 v{M(0)}, v{M(0)}, v{vNeg}, s[{mZ}:{mZ+1}]"); e(f"v_cndmask_b32 v{T(0)}, v{T(0)}, v{vNeg}, s[{mZ}:{mZ+1}]")
        e(f"v_cndmask_b32 v{A(u)}, v{M(u)}, v{A(u)}, s[{mM0}:{mM0+1}]"); e(f"v_cndmask_b32 v{B(u)}, v{T(u)}, v{B(u)}, s[{mM1}:{mM1+1}]")
        e(f"v_max_f32 v{M(u)}, v{A(u)}, v{B(u)}")
    def allred(R,op,mid):
        H=(0,4)
        for h in H: e(f"v_permlane32_swap_b32 v{R(h)}, v{R(h+2)}"); e(f"v_permlane32_swap_b32 v{R(h+1)}, v{R(h+3)}")
        for h in H: e(f"{op} v{R(h)}, v{R(h)}, v{R(h+2)}"); e(f"{op} v{R(h+1)}, v{R(h+1)}, v{R(h+3)}")
        for h in H: e(f"v_permlane16_swap_b32 v{R(h)}, v{R(h+1)}")
        for h in H: e(f"{op} v{R(h)}, v{R(h)}, v{R(h+1)}")
        mid(H)
        for h in H: e(f"v_mov_b32 v{R(h+1)}, v{R(h)}")
        for h in H: e(f"v_permlane16_swap_b32 v{R(h)}, v{R(h+1)}")
        for h in H: e(f"v_mov_b32 v{R(h+2)}, v{R(h)}"); e(f"v_mov_b32 v{R(h+3)}, v{R(h+1)}")
        for h in H: e(f"v_permlane32_swap_b32 v{R(h)}, v{R(h+2)}"); e(f"v_permlane32_swap_b32 v{R(h+1)}, v{R(h+3)}")
    def midM(H):
        for h in H: e(f"v_mul_f32 v{M(h)}, s{sC}, v{M(h)}")
    allred(M,"v_max_f32",midM)
    for u in U:
        e(f"v_fma_f32 v{A(u)}, v{A(u)}, s{sC}, -v{M(u)}"); e(f"v_fma_f32 v{B(u)}, v{B(u)}, s{sC}, -v{M(u)}")
    for u in U:
        e(f"v_exp_f32 v{A(u)}, v{A(u)}"); e(f"v_exp_f32 v{B(u)}, v{B(u)}")
        if u: e(f"v_add_f32 v{L(u-1)}, v{A(u-1)}, v{B(u-1)}")
    e(f"v_add_f32 v{L(7)}, v{A(7)}, v{B(7)}")
    def midL(H):
        for h in H: e(f"v_rcp_f32 v{L(h)}, v{L(h)}")
        for h in H: e(f"v_sub_f32 v{T(h)}, 1.0, v{ZC[h//4]}")
        for h in H: e(f"v_mul_f32 v{L(h)}, v{L(h)}, v{ZC[h//4]}")
        e(f"buffer_store_dword v{T(0)}, v{vSt}, {srd(WS)}, 0 offen sc1","st"); e(f"buffer_store_dword v{T(4)}, v{vSt}, {srd(WS)}, 0 offen offset:256 sc1","st")
    allred(L,"v_add_f32",midL)
    def pre(u):
        return [I(f"v_mul_f32 v{A(u)}, v{A(u)}, v{L(u)}"),I(f"v_mul_f32 v{B(u)}, v{B(u)}, v{L(u)}"),
                I(f"v_cvt_pk_bf16_f32 v{A(u)}, v{A(u)}, v{A(u)}"),I(f"v_cvt_pk_bf16_f32 v{B(u)}, v{B(u)}, v{B(u)}"),
                I(f"v_and_b32 v{PQ(u)}, v{cB0}, v{A(u)}"),I(f"v_and_b32 v{PQ(u)+1}, v{cB1}, v{B(u)}"),
                I(f"v_and_b32 v{PQ(u)+2}, v{cA0}, v{A(u)}"),I(f"v_and_b32 v{PQ(u)+3}, v{cA1}, v{B(u)}")]
    def post(u):
        return pack4(PQ(u),SP(u),SO(u))+[I(f"buffer_store_dwordx4 {vr(PQ(u),4)}, v{vH if u<4 else vH4}, {srd(WS)}, s{sO} offen offset:{(u%4)*1024} sc1","st")]
    P.extend(pre(0))
    for u in range(10):
        if u+1<8: a_=pre(u+1)
        else: a_=[]
        P.extend(a_[:2])
        if u<8: P.append(mfma(vr(SP(u),4),vr(V(0,0)+2*u,4),vr(PQ(u),4),"0"))
        P.extend(a_[2:4])
        if u<8: P.append(mfma(vr(SO(u),4),vr(V(1,0)+2*u,4),vr(PQ(u),4),"0"))
        P.extend(a_[4:])
        if u>=2: P.extend(post(u-2))
        elif u==0: e("v_mov_b32 v13, 1")
    P.extend(stamp(3))
    P.append(WAIT(vm=0))
    check_or_spin(249,0,1,DBG,248)
    e(f"buffer_atomic_add v13, v{vFl}, {srd(WS)}, 0 offen","sig")
    P.extend(stamp(4,True))
    e("s_endpgm")

def spare():
    KN=NAME+"_kernel"; sU=72; t0,t1=66,67
    e("L_spare:")
    e("s_getpc_b64 s[68:69]")
    e("L_pc:")
    e(f"s_sub_u32 s68, s68, L_pc-{KN}"); e("s_subb_u32 s69, s69, 0")
    e(f"s_lshl_b32 s70, s{sW}, 13"); e("v_lshlrev_b32 v1, 7, v0"); e("v_add_u32 v2, s70, v1")
    e(f"v_min_u32 v3, L_end-{KN}-4, v2")
    e("global_load_dword v10, v3, s[68:69]","pf")
    e("v_add_u32 v2, 32768, v2"); e(f"v_min_u32 v3, L_end-{KN}-4, v2")
    e("global_load_dword v11, v3, s[68:69]","pf")
    e(f"s_mul_i32 s{sU}, s{sW}, 10"); e(f"s_add_u32 s{sU}, s{sU}, s{sI}")
    e("s_waitcnt lgkmcnt(0)")
    e(f"s_cmp_eq_u32 s{sU}, 0"); e("s_cbranch_scc0 L_noclr")
    mksrd(WS,60,WSN); mksrd(DBG,58,256)
    e("v_lshlrev_b32 v5, 8, v0"); e("v_mov_b32 v6, 0"); e("v_lshlrev_b32 v7, 7, v0"); e("v_mov_b32 v8, 1")
    for k in range(5):
        e(f"buffer_store_dword v6, v7, {srd(WS)}, 0 offen sc1"); e("v_add_u32 v7, 8192, v7")
    e("s_waitcnt vmcnt(0)")
    e(f"buffer_store_dword v8, v5, {srd(DBG)}, 0 offen sc1")
    e("L_noclr:")
    if OPT['pf']:
        vx,vw,vq,vd,vo=1,2,3,4,5
        def oob_if(v,cmp):
            e(cmp); e(f"s_cselect_b32 s{t0}, {OOB}, 0"); e(f"v_or_b32 v{v}, s{t0}, v{v}")
        mksrd(X,40,1835008); mksrd(WU,42,1204224); mksrd(WD,52,1605632); mksrd(WO,44,401408)
        e(f"s_cmp_lt_u32 s{sU}, 24"); e(f"s_cselect_b32 s{WA}, s48, s50"); e(f"s_cselect_b32 s{WA+1}, s49, s51")
        e(f"s_mov_b32 s{WA+2}, 1605632"); e(f"s_mov_b32 s{WA+3}, 0x20000")
        e(f"s_lshl_b32 s{t0}, s{sU}, 6"); e(f"v_add_u32 v6, s{t0}, v0"); e(f"v_mul_u32_u24 v{vx}, 896, v6"); e(f"v_lshlrev_b32 v{vo}, 7, v6")
        oob_if(vx,f"s_cmp_ge_u32 s{sU}, 32"); oob_if(vo,f"s_cmp_ge_u32 s{sU}, 28")
        e(f"s_sub_u32 s{t0}, s{sU}, 8"); e(f"s_and_b32 s{t0}, s{t0}, 15"); e(f"s_lshl_b32 s{t0}, s{t0}, 2")
        e("v_lshrrev_b32 v6, 4, v0"); e(f"v_add_u32 v6, s{t0}, v6"); e(f"v_mul_u32_u24 v{vw}, 3584, v6"); e("v_and_b32 v6, 15, v0"); e(f"v_lshl_add_u32 v{vw}, v6, 8, v{vw}")
        oob_if(vw,f"s_cmp_lt_u32 s{sU}, 8")
        e(f"s_sub_u32 s{t1}, s{sU}, 24"); e(f"s_cmp_lt_u32 s{sU}, 8"); e(f"s_cselect_b32 s{t1}, s{sU}, s{t1}"); e(f"s_lshl_b32 s{t1}, s{t1}, 13")
        e("v_lshlrev_b32 v6, 7, v0"); e(f"v_add_u32 v{vq}, s{t1}, v6")
        e(f"s_sub_u32 s{t1}, s{sU}, 8"); oob_if(vq,f"s_cmp_lt_u32 s{t1}, 24")
        e(f"s_mul_i32 s{t0}, s{sU}, 9363"); e(f"s_lshr_b32 s{t0}, s{t0}, 16"); e(f"s_mul_i32 s{t1}, s{t0}, 7"); e(f"s_sub_u32 s{t1}, s{sU}, s{t1}"); e(f"s_lshl_b32 s{t1}, s{t1}, 13")
        e(f"s_and_b32 s70, s{t0}, 1"); e(f"s_mul_i32 s70, s70, {896*896}"); e(f"s_add_u32 s{t1}, s{t1}, s70")
        e(f"s_lshr_b32 s70, s{t0}, 1"); e(f"s_mul_i32 s70, s70, {128*896}"); e(f"s_add_u32 s{t1}, s{t1}, s70"); e(f"v_add_u32 v{vd}, s{t1}, v6")
        oob_if(vd,f"s_cmp_ge_u32 s{sU}, 28")
        n=[12]
        def ld(v,sr,off):
            e(f"s_mov_b32 s71, {off}"); e(f"buffer_load_dword v{n[0]}, v{v}, {srd(sr)}, s71 offen","pf"); n[0]+=1
        qr=0; dr=0
        def w2round():
            nonlocal dr
            if dr<8: ld(vd,WD,((dr%4)*256+(dr//4)*64)*896)
            elif dr<10: ld(vo,WO,(dr-8)*1792*128)
            dr+=1
        for st in range(2,14):
            if st<7: ld(vx,X,128*st)
            ld(vw,WA,(st%7)*64*3584+(st//7)*128)
            if qr<8: ld(vq,WU,1344*128+qr*131072); qr+=1
            if st>=7: w2round()
        while dr<10: w2round()
    e("L_exit:")
    e("s_endpgm")
    e("L_end:")

def main():
    global P
    head=open("cdna_kernels/"+NAME+".s.ref").read().split("; Override launch")[0]
    txt=[]; nops=0
    for part in ((common_prologue,ffn),(attn,),(spare,)):
        P.clear()
        if part[0] is not common_prologue:
            pass
        for f in part: f()
        o,n=finalize(list(P),part[-1].__name__); nops+=n
        txt+=[x.text if x.cls=="label" else "    "+x.text for x in o]
    out=head+"; generated by gen/gen.py (hand-designed schedule, python emitter)\n; @launch grid=(256,1,1) block=(256,1,1) lds=163840\n"
    out+='.amdgcn_target "amdgcn-amd-amdhsa--gfx950"\n.text\n'
    out+=f".globl {NAME}_kernel\n.p2align 8\n.type {NAME}_kernel,@function\n{NAME}_kernel:\n"
    out+="\n".join(txt)+"\n"
    out+=f""".section .rodata,"a"
.p2align 6
.amdhsa_kernel {NAME}_kernel
  .amdhsa_next_free_vgpr 512
  .amdhsa_next_free_sgpr 102
  .amdhsa_accum_offset 256
  .amdhsa_group_segment_fixed_size 0
  .amdhsa_kernarg_size 88
  .amdhsa_user_sgpr_count 2
  .amdhsa_user_sgpr_kernarg_segment_ptr 1
  .amdhsa_system_sgpr_workgroup_id_x 1
.end_amdhsa_kernel
"""
    open(sys.argv[1],"w").write(out)
    print("instructions",len(txt),"auto nops",nops)
main()
```

```python
import sys, math
from isa import *
NAME="gated_mix__sliding_local_dilated__swiglu_ffn__prompt"
OPT=dict(zz=0, nsb=0, sbp=20, rateB=5, nm=1, pk=1, sigd=8, emode=1, np=2, gAt=0, ecap=6, capc=3, w2g0=20, w2rate=1, gBg=0, pAp=26, lead=9, pah=12, wlag=0, lk2=2, smode=1, sBs=2, attnlast=0, apf=1, apfk=9, qlead=1, nst=8, nq=4, sAt=0, rot3=1, cp=14, w2p0=13, sigA=14, pA=3, pB=3, gB=5, pO=8, gO=11, rot=7, arot=7, rot2=7, outpol=0, probe=-2, pwg=100, arate=12, hsc1=1, stamp=0, rate=5, cap=2, look=3, sigA_tile=1, sigB_blk=3, pollA_blk=5, chain=1, pf=0)
OPT.update(arot=7, lead=12, cp=16, sAt=2, nst=8, pA=10, nm=3)
for a in sys.argv[2:]:
    k,v=a.split("="); OPT[k]=int(v)
H0=0x100000; NT=130; S0=0x80000; SSTR=2176*4; STAMP0=0xC00000; WSN=0x1000000
OOB=0x80000000
X,WA,WU,WD,WO,WS,OUT,DBG,GW=4,8,12,16,20,24,28,32,36
def srd(b): return f"s[{b}:{b+3}]"
def vr(b,n=1): return f"v{b}" if n==1 else f"v[{b}:{b+n-1}]"
def ar(b,n=1): return f"a{b}" if n==1 else f"a[{b}:{b+n-1}]"
P=[]
def e(t,tag=None):
    x=I(t,tag); P.append(x); return x
_l=[0]
def lab(p="L"):
    _l[0]+=1; return f"{p}{_l[0]}"
def mksrd(b,src,n,bias=0):
    if bias:
        e(f"s_sub_u32 s{b}, s{src}, {bias}"); e(f"s_subb_u32 s{b+1}, s{src+1}, 0")
    else:
        e(f"s_mov_b64 s[{b}:{b+1}], s[{src}:{src+1}]")
    e(f"s_mov_b32 s{b+2}, {n+bias}"); e(f"s_mov_b32 s{b+3}, 0x20000")
def mfma(d,a,b,c): return I(f"v_mfma_f32_16x16x32_bf16 {d}, {a}, {b}, {c}")
sW,sXCD,sJ,sI=62,63,64,65
sT=[66,67,68,69,70,71]
sSTB=98
nstamp=[0]
def stamp(idx,last=False):
    if OPT['probe']!=-2:
        o=[]
        if idx==OPT['probe']: o+=[I("s_memrealtime s[94:95]"),I("s_waitcnt lgkmcnt(0)"),I("s_sub_u32 s97, s94, s96")]
        if last:
            L=lab("PR"); D=lab("PD")
            o+=[I(f"s_cmp_eq_u32 s2, {OPT['pwg']}"),I(f"s_cbranch_scc0 {D}"),I("s_add_u32 s97, s97, 4000"),I(L+":"),I("s_memrealtime s[94:95]"),I("s_waitcnt lgkmcnt(0)"),
                I("s_sub_u32 s94, s94, s96"),I("s_cmp_lt_u32 s94, s97"),I(f"s_cbranch_scc1 {L}"),I(D+":")]
        return o
    if not OPT['stamp']: return []
    if OPT['stamp']==2 and idx not in (0,1,2,3,4,5,6,7,8,9,10,11) : return []
    if OPT['stamp']==3 and idx not in (0,9) and not last: return []
    o=[I("s_memrealtime s[94:95]"),I("s_memtime s[96:97]"),I("s_waitcnt lgkmcnt(0)"),
       I(f"v_writelane_b32 v254, s94, {idx}"),I(f"v_writelane_b32 v255, s96, {idx}")]
    if last: o+=[I("v_lshlrev_b32 v253, 3, v0"),I(f"buffer_store_dwordx2 v[254:255], v253, {srd(WS)}, s{sSTB} offen","stamp")]
    return o
def spin(addrv, off, cmpval, srdb, res=12):
    L=lab("SP"); D=lab("SD")
    e("s_mov_b32 s92, 0")
    e(L+":")
    e(f"buffer_load_dword v{res}, v{addrv}, {srd(srdb)}, 0 offen offset:{off} sc1","poll")
    e("s_waitcnt vmcnt(0)")
    e(f"v_cmp_ne_u32 vcc, {cmpval}, v{res}")
    e(f"s_cbranch_vccz {D}")
    e("s_add_u32 s92, s92, 1")
    e("s_cmp_lt_u32 s92, 0x40000")
    e("s_sleep 1")
    e(f"s_cbranch_scc1 {L}")
    e(D+":")
def check_or_spin(addrv, off, cmpval, srdb, res):
    D=lab("CK")
    e(f"v_cmp_ne_u32 vcc, {cmpval}, v{res}")
    e(f"s_cbranch_vccz {D}")
    n0=len(P)
    spin(addrv,off,cmpval,srdb,res)
    for x in P[n0:]:
        if x.cls=="vm": x.cls="raw"; x.wr=set()
        if x.op=="s_waitcnt": x.op="raw"
    e(D+":")

def common_prologue():
    e("s_cmp_ge_u32 s2, 256"); e("s_cbranch_scc1 L_exit")
    if OPT['probe']!=-2:
        e("s_memrealtime s[94:95]"); e("s_waitcnt lgkmcnt(0)"); e("s_mov_b32 s96, s94"); e("s_mov_b32 s97, 0")
    e("s_load_dwordx16 s[40:55], s[0:1], 0")
    e("s_load_dwordx4 s[56:59], s[0:1], 64")
    e("s_load_dwordx2 s[60:61], s[0:1], 80")
    e("v_lshrrev_b32 v1, 6, v0")
    e(f"s_and_b32 s{sXCD}, s2, 7"); e(f"s_lshr_b32 s{sJ}, s2, 3")
    e(f"v_readfirstlane_b32 s{sW}, v1")
    e("v_and_b32 v0, 63, v0")
    if OPT['stamp']:
        e(f"s_lshl_b32 s{sSTB}, s2, 2"); e(f"s_add_u32 s{sSTB}, s{sSTB}, s{sW}"); e(f"s_lshl_b32 s{sSTB}, s{sSTB}, 9")
        e(f"s_add_u32 s{sSTB}, s{sSTB}, {STAMP0}")
        e("v_mov_b32 v254, 0"); e("v_mov_b32 v255, 0")
    e(f"s_mov_b32 s{sI}, s{sXCD}")
    e(f"s_cmp_eq_u32 s{sJ}, 0"); e("s_cbranch_scc1 L_spare")
    e(f"s_cmp_lt_u32 s{sJ}, 9"); e("s_cbranch_scc1 L_attn")

def dma(voff,sr,soff,imm,tag): return I(f"buffer_load_dwordx4 v{voff}, {srd(sr)}, {soff} offen offset:{imm} lds",tag)

def ffn():
    sSL,sTT,sT2,sN=72,73,74,75
    sSeg1,sSeg2,sXb=76,77,78
    sXo=[None,79,80,81,82]
    sW1o=83; sW2o=[None,84,85,86]
    sHst,sHld,sC=87,88,89
    vX,vW,vXR,vWR,vW2,vH,vH4,vFl,vOne,vPoll,vPA=1,2,(3,4),(5,6),7,8,9,10,11,12,13
    ACC=lambda p,q,t: 16+80*p+(q*5+t)*4
    def XF(i): return vr(176+4*i,4) if i<6 else ar(4*(i-6),4)
    AF=lambda buf,q: 200+16*buf+4*q
    t0,t1,t2_,t3=sT[:4]
    e(f"s_lshr_b32 s{t1}, s{sXCD}, 2"); e(f"s_add_u32 s{sI}, s{t1}, 8")
    e(f"s_and_b32 s{t0}, s{sXCD}, 3"); e(f"s_cmp_eq_u32 s{t0}, 3"); e(f"s_cselect_b32 s{t0}, 10, 9")
    e(f"s_cmp_lt_u32 s{sJ}, s{t0}"); e("s_cbranch_scc1 L_spare")
    e(f"s_sub_u32 s{sI}, s{sJ}, s{t0}")
    e(f"s_mul_i32 s{t0}, s{sXCD}, 23"); e(f"s_add_u32 s{sI}, s{sI}, s{t0}")
    e(f"s_sub_u32 s{sI}, s{sI}, s{t1}")
    e(f"s_mul_i32 s{sT2}, s{sI}, 9363"); e(f"s_lshr_b32 s{sT2}, s{sT2}, 16")
    e(f"s_mul_i32 s{t0}, s{sT2}, 7"); e(f"s_sub_u32 s{sN}, s{sI}, s{t0}")
    e(f"s_sub_u32 s{t0}, s{sI}, 98"); e(f"s_mul_i32 s{t1}, s{t0}, 10923"); e(f"s_lshr_b32 s{t1}, s{t1}, 16")
    e(f"s_mul_i32 s{t2_}, s{t1}, 6"); e(f"s_sub_u32 s{t0}, s{t0}, s{t2_}"); e(f"s_add_u32 s{t0}, s{t0}, 7")
    e(f"s_cmp_lt_u32 s{sI}, 98"); e(f"s_cselect_b32 s{sSL}, s{sT2}, s{t1}"); e(f"s_cselect_b32 s{sTT}, s{sN}, s{t0}")
    e("v_lshrrev_b32 v14, 3, v0")
    e("v_and_b32 v15, 7, v0")
    e(f"s_and_b32 s{t0}, s{sW}, 1"); e(f"s_lshl_b32 s{t1}, s{t0}, 2")
    e("v_lshrrev_b32 v12, 1, v14"); e(f"v_or_b32 v13, s{t1}, v12"); e("v_xor_b32 v13, v13, v15")
    e(f"s_mul_i32 s{t2_}, s{sTT}, 160"); e(f"s_lshl_b32 s{t3}, s{sW}, 3"); e(f"s_add_u32 s{t2_}, s{t2_}, s{t3}")
    e(f"v_add_u32 v{vX}, s{t2_}, v14"); e(f"v_mul_u32_u24 v{vX}, 896, v{vX}"); e(f"v_lshl_add_u32 v{vX}, v13, 4, v{vX}")
    e(f"s_lshl_b32 s{t0}, s{t0}, 2")
    e("v_and_b32 v13, 2, v14"); e(f"v_or_b32 v13, s{t0}, v13"); e("v_xor_b32 v13, v13, v15")
    e(f"v_add_u32 v{vW}, s{t3}, v14"); e(f"v_mul_u32_u24 v{vW}, 3584, v{vW}"); e(f"v_lshl_add_u32 v{vW}, v13, 4, v{vW}")
    e(f"s_lshl_b32 s{t0}, s{sSL}, 8"); e(f"v_add_u32 v{vW}, s{t0}, v{vW}")
    sWr,sD,sNX,sNW,sWr2,sNW2,sNH=90,91,93,99,100,101,3
    def mod7(dst,src,tmp,R):
        e(f"s_mul_i32 s{tmp}, s{src}, 9363"); e(f"s_lshr_b32 s{tmp}, s{tmp}, 16"); e(f"s_mul_i32 s{tmp}, s{tmp}, 7"); e(f"s_sub_u32 s{dst}, s{src}, s{tmp}")
        if R==1: e(f"s_mov_b32 s{dst}, 0")
        elif R==2: e(f"s_and_b32 s{dst}, s{src}, 1"); e(f"s_mul_i32 s{dst}, s{dst}, 3")
        elif R==4: e(f"s_and_b32 s{dst}, s{src}, 3"); e(f"s_lshl_b32 s{dst}, s{dst}, 1")
    e(f"s_lshl_b32 s{t0}, s{sSL}, 1"); e(f"s_add_u32 s{t0}, s{sTT}, s{t0}"); mod7(t0,t0,t1,OPT['rot'])
    e(f"s_sub_u32 s{sWr}, 6, s{t0}"); e(f"s_lshl_b32 s{t1}, s{t0}, 7"); e(f"v_add_u32 v{vX}, s{t1}, v{vX}")
    e(f"s_mul_i32 s{t1}, s{t0}, {64*3584}"); e(f"v_add_u32 v{vW}, s{t1}, v{vW}")
    e(f"s_mov_b32 s{sNX}, -768"); e(f"s_mov_b32 s{sNW}, {-6*64*3584}")
    e(f"s_lshl_b32 s{sSeg2}, s{sW}, 12")
    e(f"s_lshl_b32 s{sXb}, s{sW}, 10"); e(f"s_add_u32 s{sXb}, s{sXb}, 65536")
    for j in range(1,5): e(f"s_mov_b32 s{sXo[j]}, {32*j*896}")
    e(f"s_mov_b32 s{sW1o}, {32*3584-1024}")
    for b,n in ((X,1835008),(WA,1605632),(WU,1605632+2048)):
        e(f"s_mov_b32 s{b+2}, {n}"); e(f"s_mov_b32 s{b+3}, 0x20000")
    e("s_waitcnt lgkmcnt(0)")
    e(f"s_mov_b64 s[{X}:{X+1}], s[40:41]"); e(f"s_mov_b64 s[{WA}:{WA+1}], s[48:49]")
    e(f"s_sub_u32 s{WU}, s50, 2048"); e(f"s_subb_u32 s{WU+1}, s51, 0")
    P.extend(stamp(0))
    def xdma(c):
        o=[]
        for j in range(5):
            o.append([I(f"s_add_u32 m0, s{sXb}, {(c%4)*20480+j*4096}"), dma(vX,X,"0" if j==0 else f"s{sXo[j]}",0,f"x{c}")])
        o[-1]+=[ATOM(f"s_cmp_eq_u32 s{sWr}, {c}",f"s_cselect_b32 s{sD}, s{sNX}, 128"),I(f"v_add_u32 v{vX}, s{sD}, v{vX}")]
        return o
    def wdma(s):
        o=[]
        for j in range(2):
            for m in range(2):
                o.append([dma(vW,WA if m==0 else WU,"0" if j==0 else f"s{sW1o}",(2*m+j)*1024,f"w{s}")])
        o[0].insert(0,I(f"s_add_u32 m0, s{sSeg2}, {(s%4)*16384}"))
        o[-1]+=[ATOM(f"s_cmp_eq_u32 s{sWr}, {s%7}",f"s_cselect_b32 s{sD}, s{sNW}, {64*3584}"),I(f"v_add_u32 v{vW}, s{sD}, v{vW}")]
        if s==6: o[-1].append(I(f"v_add_u32 v{vW}, 128, v{vW}"))
        return o
    NSB=OPT['nsb']
    LOC=[((sSeg1,b*4096),13 if b<2 else 17) for b in range(6)]
    LOC+=sorted([((sSeg1,j*4096),OPT['sbp']+j+1) for j in range(NSB)]+[((sSeg2,((j+2)%4)*16384),21+2*j) for j in range(4)],key=lambda z:z[1])
    def blkloc(b): return LOC[b][0] if b<len(LOC) else blkloc(b-10)
    def w2dma(b):
        sg,off=blkloc(b)
        o=[[dma(vW2,WD if b<14 else WO,"0" if pi==0 else f"s{sW2o[pi]}",pi*1024,f"b{b}")] for pi in range(4)]
        o[0].insert(0,I(f"s_add_u32 m0, s{sg}, {off}"))
        if b==13: o[-1].append(I(f"v_mov_b32 v{vW2}, v248"))
        elif b<13:
            o[-1]+=[ATOM(f"s_cmp_eq_u32 s{sWr2}, {b%7}",f"s_cselect_b32 s{sD}, s{sNW2}, 114688"),I(f"v_add_u32 v{vW2}, s{sD}, v{vW2}")]
            if b==6: o[-1].append(I(f"v_add_u32 v{vW2}, {64*896}, v{vW2}"))
        elif b<17: o[-1]+=[ATOM(f"s_cmp_eq_u32 s38, {b-14}",f"s_cselect_b32 s{sD}, s36, {28*896}"),I(f"v_add_u32 v{vW2}, s{sD}, v{vW2}")]
        return o
    flat=lambda L:[x for it in L for x in it]
    for s in range(2):
        P.extend(flat(xdma(s))); P.extend(flat(wdma(s)))
    mksrd(WS,60,WSN); mksrd(WD,52,1605632); mksrd(WO,44,401408); mksrd(OUT,56,1835008); mksrd(DBG,58,256)
    e("v_lshrrev_b32 v14, 4, v0")
    e("v_and_b32 v15, 15, v0")
    e("v_lshrrev_b32 v12, 1, v15"); e("v_xor_b32 v12, v12, v14"); e("v_lshlrev_b32 v12, 4, v12")
    e("v_lshl_add_u32 v12, v15, 7, v12")
    e(f"s_lshr_b32 s{t0}, s{sW}, 1"); e(f"s_mul_i32 s{t0}, s{t0}, 10240"); e(f"s_add_u32 s{t0}, s{t0}, 65536")
    e(f"v_add_u32 v{vXR[0]}, s{t0}, v12"); e(f"v_xor_b32 v{vXR[1]}, 64, v{vXR[0]}")
    e("v_bfe_u32 v12, v0, 2, 2")
    e("v_lshrrev_b32 v13, 1, v12"); e("v_and_b32 v15, 1, v14"); e("v_lshlrev_b32 v15, 1, v15"); e("v_or_b32 v13, v13, v15")
    e(f"s_and_b32 s{t0}, s{sW}, 1"); e(f"s_lshl_b32 s{t0}, s{t0}, 1"); e(f"v_xor_b32 v13, s{t0}, v13"); e("v_lshlrev_b32 v13, 5, v13")
    e("v_lshl_add_u32 v13, v14, 12, v13"); e("v_lshl_add_u32 v13, v12, 7, v13")
    e("v_and_b32 v15, 3, v0"); e(f"v_lshl_add_u32 v{vWR[0]}, v15, 3, v13"); e(f"v_xor_b32 v{vWR[1]}, 32, v{vWR[0]}")
    e("v_lshrrev_b32 v12, 3, v0"); e("v_and_b32 v13, 6, v12"); e("v_and_b32 v15, 7, v0"); e("v_xor_b32 v13, v13, v15")
    e("v_mul_u32_u24 v12, 896, v12"); e(f"v_lshl_add_u32 v{vW2}, v13, 4, v12")
    e(f"s_lshr_b32 s{t0}, s{sW}, 1"); e(f"s_mul_i32 s{t0}, s{t0}, 28"); e(f"s_and_b32 s{t1}, s{sW}, 1"); e(f"s_add_u32 s{t3}, s{t0}, s{t1}")
    e(f"s_lshl_b32 s{t2_}, s{sN}, 7"); e(f"v_add_u32 v{vW2}, s{t2_}, v{vW2}")
    sWr3,sH3=38,39
    e(f"s_add_u32 s{t0}, s{sT2}, s{sN}"); e(f"s_and_b32 s{t0}, s{t0}, {3 if OPT['rot3'] else 0}"); e(f"s_sub_u32 s{sWr3}, 3, s{t0}")
    e(f"s_lshl_b32 s{t1}, s{sW}, 2"); e(f"s_add_u32 s{sH3}, s{t0}, s{t1}")
    e(f"s_mul_i32 s{t0}, s{sH3}, {28*896}"); e(f"v_add_u32 v248, s{t0}, v{vW2}")
    e(f"s_mov_b32 s36, {-3*28*896}"); e(f"s_mov_b32 s37, {-3*NT*1024}")
    e(f"s_lshl_b32 s{t0}, s{sT2}, 1"); e(f"s_add_u32 s{t0}, s{t0}, s{sN}")
    mod7(t0,t0,t1,OPT['rot2']); e(f"s_sub_u32 s{sWr2}, 6, s{t0}"); e(f"s_lshl_b32 s{t0}, s{t0}, 2"); e(f"s_add_u32 s{t3}, s{t3}, s{t0}")
    e(f"s_mul_i32 s{t1}, s{t3}, {32*896}"); e(f"v_add_u32 v{vW2}, s{t1}, v{vW2}")
    e(f"s_mov_b32 s{sNW2}, {-6*114688}"); e(f"s_mov_b32 s{sNH}, {-24*NT*1024}")
    e(f"s_mul_i32 s{t1}, s{sT2}, 5")
    e(f"s_add_u32 s{t0}, s{sH3}, 56"); e(f"s_mul_i32 s{t0}, s{t0}, {NT}"); e(f"s_add_u32 s{t0}, s{t0}, s{t1}"); e(f"s_lshl_b32 s{t0}, s{t0}, 10"); e(f"s_add_u32 s{sT[5]}, s{t0}, {H0}")
    e(f"s_mul_i32 s{t0}, s{t3}, {NT}"); e(f"s_add_u32 s{t0}, s{t0}, s{t1}"); e(f"s_lshl_b32 s{t0}, s{t0}, 10"); e(f"s_add_u32 s{sHld}, s{t0}, {H0}")
    e(f"s_lshl_b32 s{t2_}, s{sTT}, 1"); e(f"s_lshr_b32 s{t1}, s{sW}, 1"); e(f"s_add_u32 s{t2_}, s{t2_}, s{t1}")
    e(f"s_lshl_b32 s{t0}, s{sSL}, 2"); e(f"s_and_b32 s{t3}, s{sW}, 1"); e(f"s_add_u32 s{t0}, s{t0}, s{t3}"); e(f"s_mul_i32 s{t0}, s{t0}, {NT}")
    e(f"s_mul_i32 s{t1}, s{t2_}, 5"); e(f"s_add_u32 s{t0}, s{t0}, s{t1}")
    e(f"s_lshl_b32 s{t0}, s{t0}, 10"); e(f"s_add_u32 s{sHst}, s{t0}, {H0}")
    e(f"s_lshl_b32 s{t0}, s{t2_}, 3"); e(f"s_add_u32 s{t0}, s{t0}, s{t3}"); e(f"s_cmp_ge_u32 s{sSL}, 7"); e(f"s_cselect_b32 s{t1}, 2, 0"); e(f"s_add_u32 s{t0}, s{t0}, s{t1}"); e(f"s_lshl_b32 s{t0}, s{t0}, 7")
    e(f"v_mov_b32 v{vFl}, {OOB}"); e(f"v_mov_b32 v12, s{t0}"); e("v_cmp_eq_u32 vcc, 0, v0")
    e(f"v_lshlrev_b32 v{vH}, 4, v0"); e(f"v_add_u32 v{vH4}, 4096, v{vH}")
    e(f"v_cndmask_b32 v{vFl}, v{vFl}, v12, vcc")
    e(f"s_mul_i32 s{sSeg1}, s{sW}, 24576"); e(f"s_add_u32 s{sSeg1}, s{sSeg1}, 65536")
    for j in range(1,4): e(f"s_mov_b32 s{sW2o[j]}, {6144*j}")
    e(f"s_mov_b32 s{sC}, 0xbfb8aa3b")
    e(f"v_mov_b32 v{vOne}, 1")
    e(f"s_lshl_b32 s{t0}, s{sT2}, 3"); e(f"s_add_u32 s{t0}, s{t0}, s{sW}"); e(f"s_lshl_b32 s{t0}, s{t0}, 7"); e(f"v_mov_b32 v{vPA}, s{t0}")
    e("v_mov_b32 v15, 0")
    CH=OPT['chain']
    def reads(Pn):
        p,s,h=Pn//14,Pn//2,Pn%2
        o=[]
        for ks in ((0,1) if CH else (h,)):
            if p==0 and (h==0 or not CH):
                if s==3: o.append(I(f"v_add_u32 v{vXR[ks]}, 61440, v{vXR[ks]}"))
                for t in range(5): o.append(I(f"ds_read_b128 {XF((2*s+ks)*5+t)}, v{vXR[ks]} offset:{(s%4 if s!=3 else 0)*20480+t*2048}"))
                if s==3: o.append(I(f"v_subrev_u32 v{vXR[ks]}, 61440, v{vXR[ks]}"))
        tr=[]
        for j in range(4):
            if CH: m,ks,tl=j>>1,j&1,h
            else: m,ks,tl=j>>1,h,j&1
            for a in range(2):
                tr.append(I(f"ds_read_b64_tr_b16 {vr(AF(h,j)+2*a,2)}, v{vWR[tl]} offset:{(s%4)*16384+(2*m+ks)*1024+a*512}"))
        return tr[:4]+o+tr[4:]
    def epi(p,t):
        T=[232+k for k in range(8)]; O=240+4*(t%2)
        G=[ACC(p,k>>2,t)+(k&3) for k in range(8)]; U=[ACC(p,2+(k>>2),t)+(k&3) for k in range(8)]
        o=[]
        for k in range(8): o.append(I(f"v_mul_f32 v{T[k]}, s{sC}, v{G[k]}"))
        for k in range(8):
            o.append(I(f"v_exp_f32 v{T[k]}, v{T[k]}")); o.append(I(f"v_mul_f32 v{U[k]}, v{G[k]}, v{U[k]}"))
        for k in range(8): o.append(I(f"v_add_f32 v{T[k]}, 1.0, v{T[k]}"))
        for k in range(8):
            o.append(I(f"v_rcp_f32 v{G[k]}, v{T[k]}"))
            if k>=1: o.append(I(f"v_mul_f32 v{U[k-1]}, v{G[k-1]}, v{U[k-1]}"))
            if k>=3 and k%2==1: o.append(I(f"v_cvt_pk_bf16_f32 v{O+(k-3)//2}, v{U[k-3]}, v{U[k-2]}"))
        o.append(I(f"v_mul_f32 v{U[7]}, v{G[7]}, v{U[7]}"))
        o.append(I(f"v_cvt_pk_bf16_f32 v{O+3}, v{U[6]}, v{U[7]}"))
        o.append(I(f"buffer_store_dwordx4 {vr(O,4)}, v{vH if t<4 else vH4}, {srd(WS)}, s{sHst} offen offset:{(t%4)*1024} sc1",f"st{p}"))
        return o
    R1,R2=176,180
    vPO,vS,vSA,vO,vRW=187,192,188,189,190
    n0=len(P)
    e("v_lshrrev_b32 v196, 4, v0")
    e("v_bfe_u32 v197, v0, 2, 2")
    e("v_and_b32 v184, 1, v196"); e("v_lshl_add_u32 v184, v184, 2, v197")
    e("v_lshrrev_b32 v185, 1, v196"); e("v_lshlrev_b32 v185, 10, v185"); e("v_lshl_add_u32 v185, v184, 7, v185")
    e("v_and_b32 v186, 3, v0"); e("v_lshl_add_u32 v185, v186, 3, v185")
    e("v_lshrrev_b32 v184, 1, v184")
    for q in range(4):
        e(f"s_add_u32 s{t0}, s{sW}, {q}"); e(f"s_and_b32 s{t0}, s{t0}, 3")
        e(f"v_xor_b32 v186, s{t0}, v184"); e(f"v_lshl_add_u32 v186, v186, 5, v185")
        e(f"v_add_u32 v{R1+q}, s{sSeg1}, v186"); e(f"v_add_u32 v{R2+q}, s{sSeg2}, v186")
    e(f"s_mul_i32 s{t0}, s{sT2}, 80"); e(f"s_add_u32 s{t1}, s{t0}, 79"); e(f"s_lshr_b32 s{t2_}, s{t0}, 7"); e(f"s_lshr_b32 s{t1}, s{t1}, 7"); e(f"s_min_u32 s{t1}, s{t1}, 15")
    for r in (t2_,t1):
        e(f"s_lshl_b32 s{r}, s{r}, 2"); e(f"s_add_u32 s{r}, s{r}, s{sW}"); e(f"s_add_u32 s{r}, s{r}, 208"); e(f"s_lshl_b32 s{r}, s{r}, 7")
    e(f"s_sub_u32 s{t1}, s{t1}, s{t2_}"); e("v_lshrrev_b32 v198, 5, v0"); e(f"v_mul_u32_u24 v198, s{t1}, v198"); e(f"v_add_u32 v{vPO}, s{t2_}, v198")
    e("v_and_b32 v197, 15, v0"); e(f"v_add_u32 v197, s{t0}, v197")
    e(f"s_mul_i32 s{t1}, s{sW}, {SSTR}"); e(f"s_add_u32 s{t1}, s{t1}, {S0}"); e(f"v_lshlrev_b32 v{vSA}, 2, v197"); e(f"v_add_u32 v{vSA}, s{t1}, v{vSA}")
    e("v_mul_u32_u24 v197, 896, v197"); e("v_lshl_add_u32 v197, v196, 3, v197")
    e(f"s_lshl_b32 s{t1}, s{sN}, 7"); e(f"s_lshl_b32 s{t2_}, s{sW}, 5"); e(f"s_add_u32 s{t1}, s{t1}, s{t2_}"); e(f"v_add_u32 v{vO}, s{t1}, v197")
    e(f"v_add_u32 v{vRW}, s{sSeg1}, v{vH}")
    for q in range(1,4):
        e(f"s_sub_u32 s{t0}, s{sW}, {q}"); e(f"s_and_b32 s{t0}, s{t0}, 3"); e(f"s_mul_i32 s{t0}, s{t0}, 24576"); e(f"s_add_u32 s{t0}, s{t0}, {65536+(q-1)*5120}")
        e(f"v_add_u32 v{183+q}, s{t0}, v{vH}")
    for j in range(1,5): e(f"s_mov_b32 s{39+j}, {16*j*896}")
    e(f"s_add_u32 s{t0}, s{sSeg2}, 147456"); e(f"v_add_u32 v249, s{t0}, v{vH}")
    for q in range(4): e(f"ds_write_b128 v249, {vr(176+4*q,4)} offset:{q*1024}")
    setup2=P[n0:]; del P[n0:]
    unpark=[I(f"ds_read_b128 {vr(176+4*q,4)}, v249 offset:{q*1024}") for q in range(4)]
    P.extend(setup2)
    P.append(WAIT(vm=["x0","w0"],lgkm=0)); e("s_barrier")
    P.extend(stamp(1))
    P.extend(reads(0)); P.append(WAIT(lgkm=0))
    pool=Pool(flat([epi(0,t) for t in range(5)]))
    dq=[]
    for s in range(2,14):
        if s<=6: dq.append((max(0,2*(s-4)+1),xdma(s)))
        dq.append((max(0,2*(s-4)+1),wdma(s)))
        if s==8: dq.append((0,[[I(f"buffer_load_dword v14, v15, {srd(DBG)}, 0 offen sc1","clr")]]))
    w2q=[(max(OPT['w2p0'],LOC[b][1]),w2dma(b)) for b in range(10+NSB)]
    cur=[]
    def sreads(b):
        sg,off=blkloc(b); base=R1 if sg==sSeg1 else R2
        return [I(f"ds_read_b64_tr_b16 {ar(16*b+4*q+2*a,2)}, v{base+q} offset:{off+a*2048}") for q in range(4) for a in range(2)]
    for Pn in range(28):
        p,s,h=Pn//14,Pn//2,Pn%2
        mf=[]
        for jq in range(2 if CH else 4):
            for t in range(5):
                for ks in ((0,1) if CH else (h,)):
                    q = (2*jq+h) if CH else jq
                    j = (2*jq+ks) if CH else jq
                    d=vr(ACC(p,q,t),4)
                    mf.append(mfma(d,vr(AF(h,j),4),XF((2*(s%7)+ks)*5+t),"0" if (s%7==0 and ks==0) else d))
        f=[]
        if Pn<27:
            rd=reads(Pn+1); f+=spread(rd,0,min(15,max(8,len(rd))))
        items=[]
        RT=OPT['rate'] if Pn<20 else OPT['rateB']
        if OPT['sbp']<=Pn<OPT['sbp']+NSB:
            P.append(WAIT(vm=[f"b{Pn-OPT['sbp']}"])); f+=spread(sreads(Pn-OPT['sbp']),8,16)
        while len(items)<RT:
            if not cur:
                if dq and dq[0][0]<=Pn: cur=dq.pop(0)[1]
                elif w2q and w2q[0][0]<=Pn: cur=w2q.pop(0)[1]
                else: break
            items.append(cur.pop(0))
        n=len(items)
        for k,it in enumerate(items):
            pos=1+k*19/max(n,5)
            for x in it:
                f.append((pos-1 if x.cls=="salu" else (pos+1 if x.cls=="valu" else pos),x))
        if Pn==16: f+=spread(unpark,8,12)
        if OPT['emode']==2 and Pn==OPT['pAp']: f.append((19,I(f"buffer_load_dword v{vPoll}, v{vPA}, {srd(WS)}, 0 offen sc1","pollA")))
        if p==1 and not pool.q and 'epidone' not in OPT: OPT['epidone']=Pn; print("epiA done before period",Pn)
        P.extend(pack(mf,f,pool if p==1 else None,(OPT['capc'] if Pn<OPT['cp'] else OPT['cap']),lo=(2 if Pn==14 else 0)))
        if Pn==13: P.extend(stamp(2))
        if h==0:
            P.append(WAIT(vm=[f"w{s+1}",f"x{s+1}"]+(["st0","clr"] if s==OPT['sigA'] else []),lgkm=0)); e("s_barrier")
            if s==OPT['sigA']:
                check_or_spin(15,0,1,DBG,14)
                e(f"buffer_atomic_add v{vOne}, v{vFl}, {srd(WS)}, 0 offen","sigA")
            P.extend(stamp(32+s))
        elif Pn<27: P.append(WAIT(lgkm=0))
    assert not dq
    print("left: epiA ops",len(pool.q),"w2 items",len(w2q))
    P.extend(stamp(3))
    P.extend(pool.q)
    P.extend(flat(cur))
    for _,g_ in w2q: P.extend(flat(g_))
    e(f"s_add_u32 s{sHst}, s{sHst}, {2*NT*1024}")
    NST=OPT['nst']; NQ=OPT['nq']; B0=18-NQ
    def AW(b,q,a=None):
        if b<NST: return ar(16*b+4*q,4) if a is None else ar(16*b+4*q+2*a,2)
        return vr(AF(b%2,q),4) if a is None else vr(AF(b%2,q)+2*a,2)
    def treads(b):
        sg,off=blkloc(b); base=R1 if sg==sSeg1 else R2
        return [I(f"ds_read_b64_tr_b16 {AW(b,q,a)}, v{base+q} offset:{off+a*2048}") for q in range(4) for a in range(2)]
    if OPT['emode']==2: NST=NSB
    NSL=10 if OPT['emode']==1 and NST else (256-16*max(NST,3 if OPT['nm']==3 else 0))//20
    def HS(b,t):
        k=b%NSL
        if OPT['emode']==2 or not NST: return ar(256-20*NSL+k*20+4*t,4)
        return ar(128+k*20+4*t,4) if k<6 else vr(96+(k-6)*20+4*t,4)
    def hload(b):
        o=[]
        for t in range(5):
            o.append([I(f"buffer_load_dwordx4 {HS(b,t)}, v{vH if t<4 else vH4}, {srd(WS)}, s{sHld} offen offset:{(t%4)*1024}{' sc1' if OPT['hsc1'] else ''}",f"h{b}")])
        if b==13: o[-1].append(I(f"s_mov_b32 s{sHld}, s{sT[5]}"))
        elif b<13:
            o[-1]+=[ATOM(f"s_cmp_eq_u32 s{sWr2}, {b%7}",f"s_cselect_b32 s{sD}, s{sNH}, {4*NT*1024}",f"s_add_u32 s{sHld}, s{sHld}, s{sD}")]
            if b==6: o[-1].append(I(f"s_add_u32 s{sHld}, s{sHld}, {2*NT*1024}"))
        elif b<17: o[-1]+=[ATOM(f"s_cmp_eq_u32 s38, {b-14}",f"s_cselect_b32 s{sD}, s37, {NT*1024}",f"s_add_u32 s{sHld}, s{sHld}, s{sD}")]
        return o
    LEAD=OPT['lead']
    HL=[]
    for b in range(18):
        for t,it in enumerate(hload(b)):
            it[0].tag=f"h{b}_{t}"; HL.append(it)
    epool=None
    if OPT['emode']==1:
        S=[]
        sigB=[WAIT(vm=["st1"]),I(f"buffer_atomic_add v{vOne}, v{vFl}, {srd(WS)}, 0 offen offset:512","sigB")]+stamp(10)
        pollA=I(f"buffer_load_dword v{vPoll}, v{vPA}, {srd(WS)}, 0 offen sc1","pollA")
        if NST: S+=[WAIT(vm=["b0"])]+treads(0)
        for j in range(NST):
            if j+1<NST: S+=[WAIT(vm=[f"b{j+1}"])]+treads(j+1)+[WAIT(lgkm=8)]
            else: S+=[WAIT(lgkm=0)]
            if OPT['pA']==5+j: S.append(pollA)
            S+=flat(w2dma(10+j))
            if OPT['smode'] and j+1==OPT['sBs']: S+=sigB
        E=[]
        for t in range(5):
            E+=epi(1,t)+stamp(46+t)
            if t==OPT['sAt'] and OPT['sigA']>13: E.append("sigA")
            if t==OPT['pA']: E.append(pollA)
        k0=0
        n_in = 0 if OPT['smode'] else len(S)
        if OPT['smode'] and NST: n_in=9+(9 if NST>1 else 0)
        for k,x in enumerate(E):
            if x=="sigA":
                P.append(WAIT(vm=["st0","clr"])); check_or_spin(15,0,1,DBG,14)
                e(f"buffer_atomic_add v{vOne}, v{vFl}, {srd(WS)}, 0 offen","sigA")
            else: P.append(x)
            k1=n_in*(k+1)//len(E); P.extend(S[k0:k1]); k0=k1
        P.extend(stamp(4))
        P.extend(S[k0:])
        P.append(WAIT(vm=["pollA","b0"])); check_or_spin(vPA,0,7,WS,vPoll)
        P.extend(stamp(11))
        if not NST: P.extend(treads(0))
        for l in range(LEAD): P.extend(HL[l])
        if not (OPT['smode'] and 0<OPT['sBs']<=NST): P.extend(sigB)
        P.extend(stamp(5))
    else:
        if not NST: P.extend([WAIT(vm=["b0"])]+treads(0))
        hq=flat(HL[:LEAD]); nh=0
        for t in range(OPT['np']):
            ops=epi(1,t)
            if t==OPT['gAt']:
                P.append(WAIT(vm=["pollA"])); check_or_spin(vPA,0,7,WS,vPoll); P.extend(stamp(11))
            for k,x in enumerate(ops):
                P.append(x)
                if t>=OPT['gAt']:
                    tot=(OPT['np']-OPT['gAt'])*len(ops); pos=(t-OPT['gAt'])*len(ops)+k+1
                    n1=len(hq)*pos//tot; P.extend(hq[nh:n1]); nh=n1
        if OPT['gAt']>=OPT['np']:
            P.append(WAIT(vm=["pollA"])); check_or_spin(vPA,0,7,WS,vPoll); P.extend(stamp(11)); P.extend(hq)
        epool=Pool(flat([epi(1,t) for t in range(OPT['np'],5)]))
        P.extend(stamp(5))
    WQ=[(max(5*(b-10)+OPT['wlag'],OPT['w2g0'] if OPT["emode"]==2 else 0),it) for b in range(10+NST,18) for it in w2dma(b)]
    sigat=None; hn=LEAD
    GB=max(35-LEAD,OPT['gBg'])
    gates={GB:("pollB",vPA,512,7,6), 70-LEAD:("pollO",vPO,0,4,7)}
    polls={g-OPT['pah']:v for g,v in gates.items()}
    NM=OPT['nm']; G0=90-5*NM
    gb=lambda g: divmod(g,5) if g<G0 else (18-NM+(g-G0)%NM,(g-G0)//NM)
    HL[G0:]=[HL[5*gb(g)[0]+gb(g)[1]] for g in range(G0,90)]
    if NM>1:
        for g in range(G0,90):
            b,t=gb(g); x=HL[g][0]; x2=I(x.text.replace(f"s{sHld} offen",f"s{44+b-(18-NM)} offen"),x.tag); HL[g]=[x2]
        extra=[]
        for b in range(18-NM,18):
            extra.append(I(f"s_mov_b32 s{44+b-(18-NM)}, s{sHld}"))
            if b<17: extra+=hload(b)[-1][1:]
        HL[G0-1]=HL[G0-1]+extra
    def AM(b,q,a=None):
        if b<18-NM or NM==1: return AW(b,q,a)
        r=16*(b-(18-NM))+4*q
        return ar(r,4) if a is None else ar(r+2*a,2)
    def mreads(b):
        sg,off=blkloc(b); base=R1 if sg==sSeg1 else R2
        return [I(f"ds_read_b64_tr_b16 {AM(b,q,a)}, v{base+q} offset:{off+a*2048}") for q in range(4) for a in range(2)]
    RQ={}
    for b in range(max(NST,1),18):
        g0=5*(b-1) if b<=18-NM else 5*(18-NM-1)-5*(b-(18-NM))
        for k,x in enumerate(mreads(b)): RQ.setdefault(g0+k//2,[]).append((1.2+2*(k%2),x,f"b{b}"))
    for g in range(90):
        b,t=gb(g)
        mf=[mfma(vr(ACC(0,q,t),4),AM(b,q),HS(b,t),"0" if b==0 else vr(ACC(0,q,t),4)) for q in range(4)]
        tags=[f"h{b}_{t}"]+[x[2] for x in RQ.get(g,[])]
        if g in gates: tags.append(gates[g][0])
        P.append(WAIT(vm=tags,lgkm=0 if (g%5==0 and g<=G0) else None))
        if g in gates:
            tg,av,off,val,si=gates[g]
            check_or_spin(av,off,val,WS,vPoll); P.extend(stamp(si))
        if g%5==0: P.extend(stamp(12+g//5))
        f=[]
        if g in polls:
            tg,av,off,val,si=polls[g]
            f.append((2.5,I(f"buffer_load_dword v{vPoll}, v{av}, {srd(WS)}, 0 offen offset:{off} sc1",tg)))
        nl=0
        for rep in range(2):
            if hn<=g+LEAD and hn<90 and (hn<35 or g>=GB):
                it=HL[hn]; hn+=1; nl+=1; f.append((2*rep,it[0])); f+=[(2*rep+1,x) for x in it[1:]]
        if 90<=g+LEAD<95: f.append((0,I(f"buffer_load_dword v{vS+g+LEAD-90}, v{vSA}, {srd(WS)}, 0 offen offset:{(g+LEAD-90)*64} sc1","s")))
        for rep in range(nl,2):
            if WQ and WQ[0][0]<=g:
                seen=False
                for x in WQ.pop(0)[1]:
                    if x.cls=="vm": seen=True; f.append((2*rep,x))
                    else: f.append((2*rep+1 if seen else 2*rep-0.5,x))
        f+=[(p_,x) for p_,x,_ in RQ.get(g,[])]
        if g>=G0 and t>0:
            k=(g-G0)%NM
            for q in range(1,4):
                if (q-1)*NM//3==k: f.append((q-0.1 if NM==1 else (3 if k==0 else 1),I(f"ds_write_b128 v{vRW}, {vr(ACC(0,q,t-1),4)} offset:{(q-1)*5120+(t-1)*1024}")))
        if epool is not None and sigat is None and not epool.q: sigat=g+OPT['sigd']; print("epiB done before group",g); P.extend(stamp(4))
        if g==sigat:
            P.append(WAIT(vm=["st1"])); e(f"buffer_atomic_add v{vOne}, v{vFl}, {srd(WS)}, 0 offen offset:512","sigB"); P.extend(stamp(10))
        P.extend(pack(mf,f,epool,OPT['ecap']))
    assert not WQ and hn==90
    for q in range(1,4): e(f"ds_write_b128 v{vRW}, {vr(ACC(0,q,4),4)} offset:{(q-1)*5120+4*1024}")
    P.extend(stamp(8))
    P.append(WAIT(vm=["s"],lgkm=0)); e("s_barrier")
    for t in range(5):
        for q in range(1,4): e(f"ds_read_b128 {vr(ACC(1,q,t),4)}, v{183+q} offset:{t*1024}")
    for t in range(5):
        e(f"s_waitcnt lgkmcnt({12-3*t})")
        d=ACC(0,0,t)
        if OPT['pk']:
            for r in (0,2): e(f"v_pk_add_f32 {vr(ACC(1,1,t)+r,2)}, {vr(ACC(1,1,t)+r,2)}, {vr(ACC(1,2,t)+r,2)}")
            for r in (0,2): e(f"v_pk_add_f32 {vr(d+r,2)}, {vr(d+r,2)}, {vr(ACC(1,3,t)+r,2)}")
            for r in (0,2): e(f"v_pk_add_f32 {vr(d+r,2)}, {vr(d+r,2)}, {vr(ACC(1,1,t)+r,2)}")
        else:
            for r in range(4): e(f"v_add_f32 v{ACC(1,1,t)+r}, v{ACC(1,1,t)+r}, v{ACC(1,2,t)+r}")
            for r in range(4): e(f"v_add_f32 v{d+r}, v{d+r}, v{ACC(1,3,t)+r}")
            for r in range(4): e(f"v_add_f32 v{d+r}, v{d+r}, v{ACC(1,1,t)+r}")
        for r in range(4): e(f"v_mul_f32 v{d+r}, v{vS+t}, v{d+r}")
        e(f"v_cvt_pk_bf16_f32 v{d}, v{d}, v{d+1}"); e(f"v_cvt_pk_bf16_f32 v{d+1}, v{d+2}, v{d+3}")
        e(f"buffer_store_dwordx2 {vr(d,2)}, v{vO}, {srd(OUT)}, {'0' if t==0 else 's%d'%(39+t)} offen{['',' sc1',' nt',' sc0 sc1',' sc1 nt'][OPT['outpol']]}","out")
    P.extend(stamp(9,True))
    e("s_endpgm")

def attn():
    sAT,sHG=72,73
    sXb,sWb=74,75
    sWo={(0,0):76,(0,1):77,(1,0):78,(1,1):79,(2,0):80,(2,1):81}
    sK,sD0,sD1,sO,sC=82,83,84,85,86
    mE,mM0,mM1,mZ=88,90,100,68
    t0,t1=66,67; t2_,t3=70,71
    vX=[1,2,3,4,5]; vW=6; vXR=(7,8); vR0=(9,10); vR1=(11,12); vRq=(13,14); vPad=15
    vA=(224,225)
    TBL=159744; XB=98304
    Q=lambda u,tl: 16+(u*2+tl)*4
    K=lambda t,tl: 80+(t*2+tl)*4
    V=lambda d,t: 152+d*36+t*4
    XA=lambda buf,t: buf*36+4*t
    WF=lambda buf,m,tl: 72+buf*24+(2*m+tl)*4
    e("L_attn:")
    e(f"s_lshr_b32 s{sAT}, s{sXCD}, 2"); e(f"s_lshl_b32 s{sAT}, s{sAT}, 3"); e(f"s_add_u32 s{sAT}, s{sAT}, s{sJ}"); e(f"s_sub_u32 s{sAT}, s{sAT}, 1"); e(f"s_and_b32 s{sHG}, s{sXCD}, 3")
    e("v_lshrrev_b32 v230, 3, v0"); e("v_and_b32 v231, 7, v0")
    e(f"s_and_b32 s{t0}, s{sW}, 1"); e(f"s_lshl_b32 s{t1}, s{t0}, 2")
    e("v_lshrrev_b32 v232, 1, v230"); e(f"v_or_b32 v232, s{t1}, v232"); e("v_xor_b32 v232, v232, v231"); e("v_lshlrev_b32 v232, 4, v232")
    e(f"s_lshl_b32 s{t2_}, s{sAT}, 7"); e(f"s_lshl_b32 s{t3}, s{sW}, 3"); e(f"s_add_u32 s{t2_}, s{t2_}, s{t3}")
    e(f"v_add_u32 v{vX[0]}, s{t2_}, v230"); e(f"v_mul_u32_u24 v{vX[0]}, 896, v{vX[0]}"); e(f"v_add_u32 v{vX[0]}, v{vX[0]}, v232")
    for j in range(1,5): e(f"v_add_u32 v{vX[j]}, {32*j*896}, v{vX[0]}")
    e(f"s_cmp_lt_u32 s{t2_}, 16"); e(f"s_cselect_b32 s{t0}, {OOB}, 0"); e(f"v_or_b32 v{vX[0]}, s{t0}, v{vX[0]}")
    e(f"s_cmp_ge_u32 s{sW}, 2"); e(f"s_cselect_b32 s{t0}, {OOB}, 0"); e(f"v_or_b32 v{vX[4]}, s{t0}, v{vX[4]}")
    e("v_lshrrev_b32 v230, 4, v0"); e("v_and_b32 v231, 15, v0")
    e(f"s_and_b32 s{t0}, s{sW}, 2"); e(f"s_lshl_b32 s{t0}, s{t0}, 1"); e(f"v_or_b32 v232, s{t0}, v230"); e("v_lshlrev_b32 v232, 1, v232"); e("v_xor_b32 v232, v232, v231")
    e(f"s_lshl_b32 s{t0}, s{sW}, 2"); e(f"v_add_u32 v{vW}, s{t0}, v230"); e(f"v_mul_u32_u24 v{vW}, 2688, v{vW}")
    e(f"v_lshl_add_u32 v{vW}, v232, 4, v{vW}"); e(f"s_mul_i32 s{t0}, s{sHG}, 224"); e(f"v_add_u32 v{vW}, s{t0}, v{vW}")
    e(f"v_mov_b32 v233, {OOB}"); e("v_cmp_lt_u32 vcc, 13, v232"); e(f"v_cndmask_b32 v{vW}, v{vW}, v233, vcc")
    sWr,sD,sNW,sKx,sKt=92,93,99,87,3
    e(f"s_lshl_b32 s{t0}, s{sHG}, 1"); e(f"s_add_u32 s{t0}, s{t0}, s{sAT}")
    if OPT['arot']==7:
        e(f"s_mul_i32 s{t1}, s{t0}, 9363"); e(f"s_lshr_b32 s{t1}, s{t1}, 16"); e(f"s_mul_i32 s{t1}, s{t1}, 7"); e(f"s_sub_u32 s{t0}, s{t0}, s{t1}")
    elif OPT['arot']==2: e(f"s_and_b32 s{t0}, s{t0}, 1"); e(f"s_mul_i32 s{t0}, s{t0}, 3")
    elif OPT['arot']==4: e(f"s_and_b32 s{t0}, s{sAT}, 3"); e(f"s_lshl_b32 s{t0}, s{t0}, 1")
    else: e(f"s_mov_b32 s{t0}, 0")
    e(f"s_sub_u32 s{sWr}, 6, s{t0}"); e(f"s_lshl_b32 s{sKx}, s{t0}, 7"); e(f"s_lshl_b32 s{sKt}, s{t0}, 9")
    e(f"s_mul_i32 s{t1}, s{t0}, {64*2688}"); e(f"v_add_u32 v{vW}, s{t1}, v{vW}"); e(f"s_mov_b32 s{sNW}, {-13*32*2688}")
    e(f"s_lshl_b32 s{sXb}, s{sW}, 10"); e(f"s_add_u32 s{sXb}, s{sXb}, {XB}")
    e(f"s_mul_i32 s{sWb}, s{sW}, 6144")
    for (m,j),r in sWo.items():
        imm=((2*m+j)%4)*1024
        e(f"s_mov_b32 s{r}, {4096+m*896+16*j*2688-imm}")
    e(f"s_lshl_b32 s{t0}, s{sW}, 6"); e(f"v_add_u32 v234, s{t0}, v0"); e("v_lshlrev_b32 v235, 2, v234")
    e("s_waitcnt lgkmcnt(0)")
    mksrd(GW,54,896); mksrd(X,40,1835008,14336); mksrd(WA,42,1204224,4096)
    P.extend(stamp(0))
    e(f"buffer_load_dword v236, v235, {srd(GW)}, 0 offen","gw")
    def xdma(c):
        o=[I(f"s_mov_b32 s{sK}, s{sKx}"),I(f"s_add_u32 s{sKx}, s{sKx}, 128"),ATOM(f"s_cmp_eq_u32 s{sWr}, {c}",f"s_cselect_b32 s{sKx}, 0, s{sKx}")]
        for j in range(5):
            o.append(I(f"s_add_u32 m0, s{sXb}, {(c%3)*20480+j*4096}"))
            o.append(dma(vX[j],X,f"s{sK}",0,f"x{c}"))
        return o
    def wdma(k):
        o=[]
        for m in range(3):
            if m!=1: o.append(I(f"s_add_u32 m0, s{sWb}, {(k%4)*24576+(4096 if m==2 else 0)}"))
            for j in range(2): o.append(dma(vW,WA,f"s{sWo[(m,j)]}",((2*m+j)%4)*1024,f"w{k}"))
        if k%2==1:
            o[-1:-1]=[ATOM(f"s_cmp_eq_u32 s{sWr}, {k//2}",f"s_cselect_b32 s{sD}, s{sNW}, {32*2688}")]
            o.append(I(f"v_add_u32 v{vW}, s{sD}, v{vW}"))
        else: o.append(I(f"v_add_u32 v{vW}, {32*2688}, v{vW}"))
        return o
    for z in (xdma(0),wdma(0),wdma(1)): P.extend(z)
    aq=[(0,xdma(1)),(0,wdma(2)),(0,wdma(3)),(0,xdma(2))]
    for k in range(4,14):
        aq.append((k-4,wdma(k)))
        if k%2==1 and (k+1)//2<=6: aq.append((2*((k+1)//2-3)+1,xdma((k+1)//2)))
    acur=[]
    mksrd(WS,60,WSN); mksrd(DBG,58,256)
    if OPT['apf']:
        mksrd(WO,44,401408); mksrd(WD,52,1605632)
        e(f"s_sub_u32 s{t0}, s{sJ}, 1"); e(f"s_lshl_b32 s{t0}, s{t0}, 2"); e(f"s_add_u32 s{t0}, s{t0}, s{sW}"); e(f"s_lshl_b32 s{t0}, s{t0}, 6")
        e(f"v_add_u32 v227, s{t0}, v0"); e("v_lshlrev_b32 v226, 7, v227"); e(f"s_mov_b32 s36, {2048*128}")
        e("v_mul_u32_u24 v228, 9363, v227"); e("v_lshrrev_b32 v228, 22, v228"); e("v_add_u32 v228, 1, v228"); e("v_mul_u32_u24 v228, 448, v228"); e("v_add_u32 v228, v228, v227"); e("v_lshlrev_b32 v228, 7, v228")
        e("v_cmp_lt_u32 vcc, 1791, v227"); e(f"v_mov_b32 v229, {OOB}"); e("v_cndmask_b32 v227, v228, v229, vcc")
        for j in range(1,4): e(f"s_mov_b32 s{36+j}, {3584*128*j}")
    e("v_lshrrev_b32 v230, 4, v0"); e("v_and_b32 v231, 15, v0")
    e("v_lshrrev_b32 v232, 1, v231"); e("v_xor_b32 v232, v232, v230"); e("v_lshlrev_b32 v232, 4, v232")
    e("v_lshl_add_u32 v232, v231, 7, v232"); e(f"v_add_u32 v{vXR[0]}, {XB}, v232"); e(f"v_xor_b32 v{vXR[1]}, 64, v{vXR[0]}")
    e("v_bfe_u32 v232, v0, 2, 2"); e("v_and_b32 v233, 3, v0")
    e("v_and_b32 v237, 1, v230"); e("v_lshl_add_u32 v238, v237, 2, v232"); e("v_lshlrev_b32 v238, 2, v238")
    e("v_mul_u32_u24 v237, 12288, v237"); e("v_lshrrev_b32 v239, 1, v230"); e("v_lshl_add_u32 v237, v239, 10, v237"); e("v_lshl_add_u32 v237, v232, 8, v237")
    e(f"s_mul_i32 s{t0}, s{sW}, 7")
    e(f"v_add_u32 v239, s{t0}, v233")
    e("v_xor_b32 v240, v239, v238"); e(f"v_lshl_add_u32 v{vR0[0]}, v240, 3, v237")
    e("v_add_u32 v239, 4, v239")
    e("v_and_b32 v240, 3, v239"); e("v_or_b32 v240, 28, v240"); e("v_cmp_eq_u32 vcc, 3, v233"); e("v_cndmask_b32 v239, v239, v240, vcc")
    e("v_xor_b32 v240, v239, v238"); e(f"v_lshl_add_u32 v{vR1[0]}, v240, 3, v237")
    e(f"v_cndmask_b32 v{vPad}, 0, 1, vcc")
    e(f"v_add_u32 v{vR0[1]}, 49152, v{vR0[0]}"); e(f"v_add_u32 v{vR1[1]}, 49152, v{vR1[0]}")
    e("v_lshl_add_u32 v240, v230, 3, v232"); e("v_lshlrev_b32 v240, 3, v240"); e(f"v_add_u32 v240, {TBL}, v240")
    e(f"v_cndmask_b32 v{vRq[0]}, v{vR1[0]}, v240, vcc"); e(f"v_cndmask_b32 v{vRq[1]}, v{vR1[1]}, v240, vcc")
    P.append(WAIT(vm=["gw"]))
    e("v_and_b32 v244, 0xffff, v236"); e("v_mov_b32 v245, 0"); e("v_lshrrev_b32 v246, 16, v236"); e("v_mov_b32 v247, 0")
    e("v_lshlrev_b32 v234, 4, v234"); e(f"v_add_u32 v234, {TBL}, v234")
    e("ds_write_b128 v234, v[244:247]")
    def reads(k):
        sl=k%4; h=sl//2; buf=k%2
        pre=[]; tr=[]
        for a in range(2):
            imm=(sl%2)*24576+a*6144
            pre.append(I(f"s_add_u32 s{(sD0,sD1)[a]}, s{sKt}, {(256*(k%2)+32*a-imm)&0xffffffff}"))
            pre.append(I(f"v_mad_i32_i24 v{vA[a]}, v{vPad}, s{(sD0,sD1)[a]}, v{vRq[h]}"))
        for m in range(3):
            for tl in range(2):
                for a in range(2):
                    ad = vR0[h] if tl==0 else (vA[a] if m==0 else vR1[h])
                    tr.append(I(f"ds_read_b64_tr_b16 {ar(WF(buf,m,tl)+2*a,2)}, v{ad} offset:{(sl%2)*24576+a*6144+m*2048}"))
        xs=[I(f"ds_read_b128 {ar(XA(buf,t),4)}, v{vXR[k%2]} offset:{((k//2)%3)*20480+t*2048}") for t in range(9)]
        if k%2==1: pre+=[I(f"s_add_u32 s{sKt}, s{sKt}, 512"),ATOM(f"s_cmp_eq_u32 s{sWr}, {k//2}",f"s_cselect_b32 s{sKt}, 0, s{sKt}")]
        return pre+tr[:2]+xs+tr[2:]
    P.append(WAIT(vm=["x0","w0"],lgkm=0)); e("s_barrier")
    P.extend(stamp(1))
    P.extend(reads(0)); P.append(WAIT(vm=["w1"],lgkm=0)); e("s_barrier")
    cA0,cB0,cA1,cB1,vNeg,vH,vH4,vSt,vFl=226,227,228,229,230,231,250,251,252
    import struct
    f2u=lambda x: struct.unpack("<I",struct.pack("<f",x))[0]
    n0=len(P)
    e("v_lshrrev_b32 v232, 4, v0"); e("v_and_b32 v233, 15, v0")
    e("v_and_b32 v234, 1, v233"); e(f"v_cmp_eq_u32 s[{mE}:{mE+1}], 0, v234")
    e("v_lshl_add_u32 v235, v232, 2, v234"); e(f"v_cmp_le_u32 s[{mM0}:{mM0+1}], v235, v233")
    e("v_add_u32 v235, 2, v235"); e(f"v_cmp_le_u32 s[{mM1}:{mM1+1}], v235, v233")
    e("v_mov_b32 v236, 0xffff0000"); e("v_mov_b32 v237, 0xffff"); e(f"v_lshlrev_b32 v{vH}, 4, v0"); e(f"v_add_u32 v{vH4}, 4096, v{vH}")
    e(f"v_cndmask_b32 v236, v236, v237, s[{mE}:{mE+1}]")
    e(f"v_cndmask_b32 v{cA0}, 0, v236, s[{mM0}:{mM0+1}]"); e(f"v_xor_b32 v{cB0}, v{cA0}, v236")
    e(f"v_cndmask_b32 v{cA1}, 0, v236, s[{mM1}:{mM1+1}]"); e(f"v_xor_b32 v{cB1}, v{cA1}, v236")
    e(f"v_mov_b32 v{vNeg}, 0xf149f2ca")
    P.append(ATOM(f"s_cmp_eq_u32 s{sAT}, 0",f"s_cselect_b64 s[{mZ}:{mZ+1}], -1, 0"))
    e(f"s_mov_b32 s{sC}, {f2u(28**-0.5*math.log2(math.e)):#x}"); e(f"s_mov_b32 s{sK}, 0x3fb8aa3b")
    e(f"s_lshl_b32 s{t0}, s{sHG}, 2"); e(f"s_add_u32 s{t0}, s{t0}, s{sW}"); e(f"s_add_u32 s{t0}, s{t0}, 56"); e(f"s_mul_i32 s{t0}, s{t0}, {NT}")
    e(f"s_lshl_b32 s{t1}, s{sAT}, 3"); e(f"s_add_u32 s{t0}, s{t0}, s{t1}"); e(f"s_lshl_b32 s{t0}, s{t0}, 10"); e(f"s_add_u32 s{sO}, s{t0}, {H0}")
    e(f"s_mul_i32 s{t0}, s{sHG}, {SSTR}"); e(f"s_lshl_b32 s{t1}, s{sAT}, 9"); e(f"s_add_u32 s{t0}, s{t0}, s{t1}"); e(f"s_add_u32 s{t0}, s{t0}, {S0}")
    P.append(ATOM(f"s_cmp_eq_u32 s{sW}, 0",f"s_cselect_b32 s{t0}, s{t0}, {OOB}"))
    e(f"v_lshlrev_b32 v{vSt}, 2, v0"); e(f"v_add_u32 v{vSt}, s{t0}, v{vSt}")
    e(f"s_lshl_b32 s{t0}, s{sAT}, 2"); e(f"s_add_u32 s{t0}, s{t0}, s{sHG}"); e(f"s_add_u32 s{t0}, s{t0}, 208"); e(f"s_lshl_b32 s{t0}, s{t0}, 7")
    e("v_min_u32 v238, 1, v0"); e("v_lshlrev_b32 v238, 31, v238"); e(f"v_or_b32 v{vFl}, s{t0}, v238")
    apool=Pool(P[n0:]); del P[n0:]
    U=range(8)
    A=lambda u: 232+u; B=lambda u: 240+u; M=lambda u: 170+u; T=lambda u: 178+u; L=lambda u: 206+u
    SP=lambda u: K(u,1); SO=lambda u: Q(u,1); PQ=lambda u: Q(u,0)
    ZC=(224,225)
    def pk(d,a): return I(f"v_cvt_pk_bf16_f32 v{d}, v{a}, v{a+1}")
    def pack4(d,a,b): return [pk(d,a),pk(d+1,a+2),pk(d+2,b),pk(d+3,b+2)]
    def seq(groups,cap=2):
        f=[]; g=0; room=cap
        for mg,ins in groups:
            for x in ins:
                if g<mg: g=mg; room=cap
                if cost(x)>room: g+=1; room=cap
                f.append((g,x)); room-=cost(x)
        return f
    for k in range(14):
        buf=k%2; mf=[]
        c=lambda d: "0" if k==0 else d
        two=lambda n: [(x,tl) for x in range(n) for tl in range(2)] if k==13 else [(x,tl) for tl in range(2) for x in range(n)]
        for u,tl in two(8): d=vr(Q(u,tl),4); mf.append(mfma(d,ar(WF(buf,0,tl),4),ar(XA(buf,u+1),4),c(d)))
        for t,tl in two(9): d=vr(K(t,tl),4); mf.append(mfma(d,ar(WF(buf,1,tl),4),ar(XA(buf,t),4),c(d)))
        for tl in range(2):
            for t in range(9): d=vr(V(tl,t),4); mf.append(mfma(d,ar(XA(buf,t),4),ar(WF(buf,2,tl),4),c(d)))
        f=[]
        if k<13: f+=spread(reads(k+1),0,36)
        dm=[]; nd=0
        while nd<OPT['arate']:
            if not acur:
                if aq and aq[0][0]<=k: acur=list(aq.pop(0)[1])
                else: break
            x=acur.pop(0); dm.append(x); nd+=(x.cls=="vm")
            while acur and acur[0].cls=="valu": dm.append(acur.pop(0))
        if k==8:
            dm.append(I("v_mov_b32 v249, 0")); dm.append(I(f"buffer_load_dword v248, v249, {srd(DBG)}, 0 offen sc1","clr"))
        if OPT['apf'] and OPT['apfk']<=k<OPT['apfk']+3:
            kk=k-OPT['apfk']
            if kk==0: dm+=[I(f"buffer_load_dword a{120+j}, v226, {srd(WO)}, {['0','s36'][j]} offen","pf") for j in range(2)]
            elif OPT['apf']>1: dm+=[I(f"buffer_load_dword a{122+2*(kk-1)+j}, v227, {srd(WD)}, {['0','s37','s38','s39'][2*(kk-1)+j]} offen","pf") for j in range(2)]
        pos=0; nd=0
        for x in dm:
            if x.cls=="vm": nd+=1
            f.append((4.3*nd-(2 if x.cls=="vm" else (1 if x.cls=="valu" else -1)),x))
        if k==13:
            assert not apool.q and not aq and not acur
            for u in U:
                mf.append(mfma(vr(SP(u),4),vr(K(u,0),4),vr(Q(u,0),4),"0")); mf.append(mfma(vr(SO(u),4),vr(K(u+1,0),4),vr(Q(u,0),4),"0"))
            G=[(2*u+5,pack4(Q(u,0),Q(u,0),Q(u,1))) for u in U]
            zc=[]
            for h in range(2):
                q=[Q(4*h+x,1) for x in range(4)]
                zc.append([I(f"v_permlane16_swap_b32 v{q[2]}, v{q[3]}"),I(f"v_permlane16_swap_b32 v{q[0]}, v{q[1]}"),I(f"v_permlane32_swap_b32 v{q[1]}, v{q[3]}"),
                           I(f"v_mul_f32 v{ZC[h]}, s{sK}, v{q[3]}"),I(f"v_min_f32 v{ZC[h]}, 0x42c80000, v{ZC[h]}"),I(f"v_exp_f32 v{ZC[h]}, v{ZC[h]}"),I(f"v_add_f32 v{1+h}, 1.0, v{ZC[h]}")])
            zi=[x for pr in zip(*zc) for x in pr]
            for t in range(9):
                G.append((16+2*t+5,pack4(K(t,0),K(t,0),K(t,1))))
                if t in (1,3,5): G.append((0,zi[:2] if t==1 else (zi[2:4] if t==3 else zi[4:6])))
            G.append((0,zi[6:8]))
            for d in range(2):
                for t in range(9):
                    G.append((34+9*d+t+4,[pk(V(d,0)+2*t,V(d,t)),pk(V(d,0)+2*t+1,V(d,t)+2)]))
                    if d==0 and t in (2,4,6): G.append((0,zi[8+(t-2):10+(t-2)]))
            f+=seq(G)
        P.extend(pack(mf,f,apool if (12 if OPT['apf']>1 else 11)<=k<13 else None))
        if k<13:
            P.append(WAIT(vm=[f"w{k+2}",f"x{(k+2)//2}"],lgkm=0)); e("s_barrier"); P.extend(stamp(32+k))
    P.extend(stamp(2))
    sE=f"s[{mE}:{mE+1}]"
    for u in U:
        e(f"v_cndmask_b32 v{M(u)}, v{SP(u)+1}, v{SP(u)}, {sE}"); e(f"v_cndmask_b32 v{T(u)}, v{SP(u)+3}, v{SP(u)+2}, {sE}")
        e(f"v_cndmask_b32 v{A(u)}, v{SO(u)+1}, v{SO(u)}, {sE}"); e(f"v_cndmask_b32 v{B(u)}, v{SO(u)+3}, v{SO(u)+2}, {sE}")
        if u==0:
            e(f"v_cndmask_b32 v{M(0)}, v{M(0)}, v{vNeg}, s[{mZ}:{mZ+1}]"); e(f"v_cndmask_b32 v{T(0)}, v{T(0)}, v{vNeg}, s[{mZ}:{mZ+1}]")
        e(f"v_cndmask_b32 v{A(u)}, v{M(u)}, v{A(u)}, s[{mM0}:{mM0+1}]"); e(f"v_cndmask_b32 v{B(u)}, v{T(u)}, v{B(u)}, s[{mM1}:{mM1+1}]")
        e(f"v_max_f32 v{M(u)}, v{A(u)}, v{B(u)}")
    def allred(R,op,mid):
        H=(0,4)
        for h in H: e(f"v_permlane32_swap_b32 v{R(h)}, v{R(h+2)}"); e(f"v_permlane32_swap_b32 v{R(h+1)}, v{R(h+3)}")
        for h in H: e(f"{op} v{R(h)}, v{R(h)}, v{R(h+2)}"); e(f"{op} v{R(h+1)}, v{R(h+1)}, v{R(h+3)}")
        for h in H: e(f"v_permlane16_swap_b32 v{R(h)}, v{R(h+1)}")
        for h in H: e(f"{op} v{R(h)}, v{R(h)}, v{R(h+1)}")
        mid(H)
        for h in H: e(f"v_mov_b32 v{R(h+1)}, v{R(h)}")
        for h in H: e(f"v_permlane16_swap_b32 v{R(h)}, v{R(h+1)}")
        for h in H: e(f"v_mov_b32 v{R(h+2)}, v{R(h)}"); e(f"v_mov_b32 v{R(h+3)}, v{R(h+1)}")
        for h in H: e(f"v_permlane32_swap_b32 v{R(h)}, v{R(h+2)}"); e(f"v_permlane32_swap_b32 v{R(h+1)}, v{R(h+3)}")
    def midM(H):
        for h in H: e(f"v_mul_f32 v{M(h)}, s{sC}, v{M(h)}")
    allred(M,"v_max_f32",midM)
    for u in U:
        e(f"v_fma_f32 v{A(u)}, v{A(u)}, s{sC}, -v{M(u)}"); e(f"v_fma_f32 v{B(u)}, v{B(u)}, s{sC}, -v{M(u)}")
    for u in U:
        e(f"v_exp_f32 v{A(u)}, v{A(u)}"); e(f"v_exp_f32 v{B(u)}, v{B(u)}")
        if u: e(f"v_add_f32 v{L(u-1)}, v{A(u-1)}, v{B(u-1)}")
    e(f"v_add_f32 v{L(7)}, v{A(7)}, v{B(7)}")
    def midL(H):
        for h in H: e(f"v_rcp_f32 v{L(h)}, v{L(h)}")
        for h in H: e(f"v_rcp_f32 v{T(h)}, v{1+h//4}")
        for h in H: e(f"v_mul_f32 v{L(h)}, v{L(h)}, v{ZC[h//4]}")
        e(f"buffer_store_dword v{T(0)}, v{vSt}, {srd(WS)}, 0 offen sc1","st"); e(f"buffer_store_dword v{T(4)}, v{vSt}, {srd(WS)}, 0 offen offset:256 sc1","st")
    allred(L,"v_add_f32",midL)
    def pre(u):
        return [I(f"v_mul_f32 v{A(u)}, v{A(u)}, v{L(u)}"),I(f"v_mul_f32 v{B(u)}, v{B(u)}, v{L(u)}"),
                I(f"v_cvt_pk_bf16_f32 v{A(u)}, v{A(u)}, v{A(u)}"),I(f"v_cvt_pk_bf16_f32 v{B(u)}, v{B(u)}, v{B(u)}"),
                I(f"v_and_b32 v{PQ(u)}, v{cB0}, v{A(u)}"),I(f"v_and_b32 v{PQ(u)+1}, v{cB1}, v{B(u)}"),
                I(f"v_and_b32 v{PQ(u)+2}, v{cA0}, v{A(u)}"),I(f"v_and_b32 v{PQ(u)+3}, v{cA1}, v{B(u)}")]
    def post(u):
        return pack4(PQ(u),SP(u),SO(u))+[I(f"buffer_store_dwordx4 {vr(PQ(u),4)}, v{vH if u<4 else vH4}, {srd(WS)}, s{sO} offen offset:{(u%4)*1024} sc1","st")]
    P.extend(pre(0))
    for u in range(10):
        if u+1<8: a_=pre(u+1)
        else: a_=[]
        P.extend(a_[:2])
        if u<8: P.append(mfma(vr(SP(u),4),vr(V(0,0)+2*u,4),vr(PQ(u),4),"0"))
        P.extend(a_[2:4])
        if u<8: P.append(mfma(vr(SO(u),4),vr(V(1,0)+2*u,4),vr(PQ(u),4),"0"))
        P.extend(a_[4:])
        if u>=2: P.extend(post(u-2))
        elif u==0: e("v_mov_b32 v13, 1")
    P.extend(stamp(3))
    P.append(WAIT(vm=0))
    check_or_spin(249,0,1,DBG,248)
    e(f"buffer_atomic_add v13, v{vFl}, {srd(WS)}, 0 offen","sig")
    P.extend(stamp(4,True))
    e("s_endpgm")

def spare():
    KN=NAME+"_kernel"; sU=72; t0,t1=66,67
    e("L_spare:")
    e("s_getpc_b64 s[68:69]")
    e("L_pc:")
    e(f"s_sub_u32 s68, s68, L_pc-{KN}"); e("s_subb_u32 s69, s69, 0")
    e(f"s_lshl_b32 s70, s{sW}, 13"); e("v_lshlrev_b32 v1, 7, v0"); e("v_add_u32 v2, s70, v1")
    e(f"v_min_u32 v3, L_end-{KN}-4, v2")
    e("global_load_dword v10, v3, s[68:69]","pf")
    e("v_add_u32 v2, 32768, v2"); e(f"v_min_u32 v3, L_end-{KN}-4, v2")
    e("global_load_dword v11, v3, s[68:69]","pf")
    e(f"s_mul_i32 s{sU}, s{sW}, 10"); e(f"s_add_u32 s{sU}, s{sU}, s{sI}")
    e("s_waitcnt lgkmcnt(0)")
    e(f"s_cmp_eq_u32 s{sU}, 0"); e("s_cbranch_scc0 L_noclr")
    mksrd(WS,60,WSN); mksrd(DBG,58,256)
    e("v_lshlrev_b32 v5, 8, v0"); e("v_mov_b32 v6, 0"); e("v_lshlrev_b32 v7, 7, v0"); e("v_mov_b32 v8, 1")
    for k in range(5):
        e(f"buffer_store_dword v6, v7, {srd(WS)}, 0 offen sc1"); e("v_add_u32 v7, 8192, v7")
    e("s_waitcnt vmcnt(0)")
    e(f"buffer_store_dword v8, v5, {srd(DBG)}, 0 offen sc1")
    e("L_noclr:")
    if OPT['pf']:
        vx,vw,vq,vd,vo=1,2,3,4,5
        def oob_if(v,cmp):
            e(cmp); e(f"s_cselect_b32 s{t0}, {OOB}, 0"); e(f"v_or_b32 v{v}, s{t0}, v{v}")
        mksrd(X,40,1835008); mksrd(WU,42,1204224); mksrd(WD,52,1605632); mksrd(WO,44,401408)
        e(f"s_cmp_lt_u32 s{sU}, 24"); e(f"s_cselect_b32 s{WA}, s48, s50"); e(f"s_cselect_b32 s{WA+1}, s49, s51")
        e(f"s_mov_b32 s{WA+2}, 1605632"); e(f"s_mov_b32 s{WA+3}, 0x20000")
        e(f"s_lshl_b32 s{t0}, s{sU}, 6"); e(f"v_add_u32 v6, s{t0}, v0"); e(f"v_mul_u32_u24 v{vx}, 896, v6"); e(f"v_lshlrev_b32 v{vo}, 7, v6")
        oob_if(vx,f"s_cmp_ge_u32 s{sU}, 32"); oob_if(vo,f"s_cmp_ge_u32 s{sU}, 28")
        e(f"s_sub_u32 s{t0}, s{sU}, 8"); e(f"s_and_b32 s{t0}, s{t0}, 15"); e(f"s_lshl_b32 s{t0}, s{t0}, 2")
        e("v_lshrrev_b32 v6, 4, v0"); e(f"v_add_u32 v6, s{t0}, v6"); e(f"v_mul_u32_u24 v{vw}, 3584, v6"); e("v_and_b32 v6, 15, v0"); e(f"v_lshl_add_u32 v{vw}, v6, 8, v{vw}")
        oob_if(vw,f"s_cmp_lt_u32 s{sU}, 8")
        e(f"s_sub_u32 s{t1}, s{sU}, 24"); e(f"s_cmp_lt_u32 s{sU}, 8"); e(f"s_cselect_b32 s{t1}, s{sU}, s{t1}"); e(f"s_lshl_b32 s{t1}, s{t1}, 13")
        e("v_lshlrev_b32 v6, 7, v0"); e(f"v_add_u32 v{vq}, s{t1}, v6")
        e(f"s_sub_u32 s{t1}, s{sU}, 8"); oob_if(vq,f"s_cmp_lt_u32 s{t1}, 24")
        e(f"s_mul_i32 s{t0}, s{sU}, 9363"); e(f"s_lshr_b32 s{t0}, s{t0}, 16"); e(f"s_mul_i32 s{t1}, s{t0}, 7"); e(f"s_sub_u32 s{t1}, s{sU}, s{t1}"); e(f"s_lshl_b32 s{t1}, s{t1}, 13")
        e(f"s_and_b32 s70, s{t0}, 1"); e(f"s_mul_i32 s70, s70, {896*896}"); e(f"s_add_u32 s{t1}, s{t1}, s70")
        e(f"s_lshr_b32 s70, s{t0}, 1"); e(f"s_mul_i32 s70, s70, {128*896}"); e(f"s_add_u32 s{t1}, s{t1}, s70"); e(f"v_add_u32 v{vd}, s{t1}, v6")
        oob_if(vd,f"s_cmp_ge_u32 s{sU}, 28")
        n=[12]
        def ld(v,sr,off):
            e(f"s_mov_b32 s71, {off}"); e(f"buffer_load_dword v{n[0]}, v{v}, {srd(sr)}, s71 offen","pf"); n[0]+=1
        qr=0; dr=0
        def w2round():
            nonlocal dr
            if dr<8: ld(vd,WD,((dr%4)*256+(dr//4)*64)*896)
            elif dr<10: ld(vo,WO,(dr-8)*1792*128)
            dr+=1
        for st in range(2,14):
            if st<7: ld(vx,X,128*st)
            ld(vw,WA,(st%7)*64*3584+(st//7)*128)
            if qr<8: ld(vq,WU,1344*128+qr*131072); qr+=1
            if st>=7: w2round()
        while dr<10: w2round()
    e("L_exit:")
    e("s_endpgm")
    e("L_end:")

def main():
    global P
    head=open("cdna_kernels/"+NAME+".s.ref").read().split("; Override launch")[0]
    txt=[]; nops=0
    for part in ((common_prologue,ffn),(attn,),(spare,)):
        P.clear()
        if part[0] is not common_prologue:
            pass
        for f in part: f()
        o,n=finalize(list(P),part[-1].__name__); nops+=n
        txt+=[x.text if x.cls=="label" else "    "+x.text for x in o]
    out=head+"; generated by gen/gen.py (hand-designed schedule, python emitter)\n; @launch grid=(256,1,1) block=(256,1,1) lds=163840\n"
    out+='.amdgcn_target "amdgcn-amd-amdhsa--gfx950"\n.text\n'
    out+=f".globl {NAME}_kernel\n.p2align 8\n.type {NAME}_kernel,@function\n{NAME}_kernel:\n"
    out+="\n".join(txt)+"\n"
    out+=f""".section .rodata,"a"
.p2align 6
.amdhsa_kernel {NAME}_kernel
  .amdhsa_next_free_vgpr 512
  .amdhsa_next_free_sgpr 102
  .amdhsa_accum_offset 256
  .amdhsa_group_segment_fixed_size 0
  .amdhsa_kernarg_size 88
  .amdhsa_user_sgpr_count 2
  .amdhsa_user_sgpr_kernarg_segment_ptr 1
  .amdhsa_system_sgpr_workgroup_id_x 1
.end_amdhsa_kernel
"""
    open(sys.argv[1],"w").write(out)
    print("instructions",len(txt),"auto nops",nops)
main()
```

```python
import sys, math
from isa import *
NAME="gated_mix__sliding_local_dilated__swiglu_ffn__prompt"
OPT=dict(chainA=1, pke=1, abl=0, ein=0, nin=0, obs=0, wpre=2, zz=0, nsb=0, sbp=20, rateB=5, nm=1, pk=1, sigd=8, emode=1, np=2, gAt=0, ecap=6, capc=3, w2g0=20, w2rate=1, gBg=0, pAp=26, lead=9, pah=12, wlag=0, lk2=2, smode=1, sBs=2, attnlast=0, apf=1, apfk=9, qlead=1, nst=8, nq=4, sAt=0, rot3=1, cp=14, w2p0=13, sigA=14, pA=3, pB=3, gB=5, pO=8, gO=11, rot=7, arot=7, rot2=7, outpol=0, probe=-2, pwg=100, arate=12, hsc1=1, stamp=0, rate=5, cap=2, look=3, sigA_tile=1, sigB_blk=3, pollA_blk=5, chain=1, pf=0)
OPT.update(rot=4, nin=3, arot=7, lead=12, cp=18, sAt=1, nst=8, pA=10, nm=3)
for a in sys.argv[2:]:
    k,v=a.split("="); OPT[k]=int(v)
H0=0x100000; NT=130; S0=0x80000; SSTR=2176*4; STAMP0=0xC00000; WSN=0x1000000
OOB=0x80000000
X,WA,WU,WD,WO,WS,OUT,DBG,GW=4,8,12,16,20,24,28,32,36
def srd(b): return f"s[{b}:{b+3}]"
def vr(b,n=1): return f"v{b}" if n==1 else f"v[{b}:{b+n-1}]"
def ar(b,n=1): return f"a{b}" if n==1 else f"a[{b}:{b+n-1}]"
P=[]
def e(t,tag=None):
    x=I(t,tag); P.append(x); return x
_l=[0]
def lab(p="L"):
    _l[0]+=1; return f"{p}{_l[0]}"
def mksrd(b,src,n,bias=0):
    if bias:
        e(f"s_sub_u32 s{b}, s{src}, {bias}"); e(f"s_subb_u32 s{b+1}, s{src+1}, 0")
    else:
        e(f"s_mov_b64 s[{b}:{b+1}], s[{src}:{src+1}]")
    e(f"s_mov_b32 s{b+2}, {n+bias}"); e(f"s_mov_b32 s{b+3}, 0x20000")
def mfma(d,a,b,c): return I(f"v_mfma_f32_16x16x32_bf16 {d}, {a}, {b}, {c}")
sW,sXCD,sJ,sI=62,63,64,65
sT=[66,67,68,69,70,71]
sSTB=98
nstamp=[0]
def stamp(idx,last=False):
    if OPT['probe']!=-2:
        o=[]
        if idx==OPT['probe']: o+=[I("s_memrealtime s[94:95]"),I("s_waitcnt lgkmcnt(0)"),I("s_sub_u32 s97, s94, s96")]
        if last:
            L=lab("PR"); D=lab("PD")
            o+=[I(f"s_cmp_eq_u32 s2, {OPT['pwg']}"),I(f"s_cbranch_scc0 {D}"),I("s_add_u32 s97, s97, 4000"),I(L+":"),I("s_memrealtime s[94:95]"),I("s_waitcnt lgkmcnt(0)"),
                I("s_sub_u32 s94, s94, s96"),I("s_cmp_lt_u32 s94, s97"),I(f"s_cbranch_scc1 {L}"),I(D+":")]
        return o
    if not OPT['stamp']: return []
    if OPT['stamp']==2 and idx not in (0,1,2,3,4,5,6,7,8,9,10,11) : return []
    if OPT['stamp']==3 and idx not in (0,9) and not last: return []
    o=[I("s_memrealtime s[94:95]"),I("s_memtime s[96:97]"),I("s_waitcnt lgkmcnt(0)"),
       I(f"v_writelane_b32 v254, s94, {idx}"),I(f"v_writelane_b32 v255, s96, {idx}")]
    if last: o+=[I("v_lshlrev_b32 v253, 3, v0"),I(f"buffer_store_dwordx2 v[254:255], v253, {srd(WS)}, s{sSTB} offen","stamp")]
    return o
def spin(addrv, off, cmpval, srdb, res=12):
    L=lab("SP"); D=lab("SD")
    e("s_mov_b32 s92, 0")
    e(L+":")
    e(f"buffer_load_dword v{res}, v{addrv}, {srd(srdb)}, 0 offen offset:{off} sc1","poll")
    e("s_waitcnt vmcnt(0)")
    e(f"v_cmp_ne_u32 vcc, {cmpval}, v{res}")
    e(f"s_cbranch_vccz {D}")
    e("s_add_u32 s92, s92, 1")
    e("s_cmp_lt_u32 s92, 0x40000")
    e("s_sleep 1")
    e(f"s_cbranch_scc1 {L}")
    e(D+":")
def check_or_spin(addrv, off, cmpval, srdb, res):
    D=lab("CK")
    e(f"v_cmp_ne_u32 vcc, {cmpval}, v{res}")
    e(f"s_cbranch_vccz {D}")
    n0=len(P)
    spin(addrv,off,cmpval,srdb,res)
    for x in P[n0:]:
        if x.cls=="vm": x.cls="raw"; x.wr=set()
        if x.op=="s_waitcnt": x.op="raw"
    e(D+":")

def common_prologue():
    e("s_cmp_ge_u32 s2, 256"); e("s_cbranch_scc1 L_exit")
    if OPT['probe']!=-2:
        e("s_memrealtime s[94:95]"); e("s_waitcnt lgkmcnt(0)"); e("s_mov_b32 s96, s94"); e("s_mov_b32 s97, 0")
    e("s_load_dwordx16 s[40:55], s[0:1], 0")
    e("s_load_dwordx4 s[56:59], s[0:1], 64")
    e("s_load_dwordx2 s[60:61], s[0:1], 80")
    e("v_lshrrev_b32 v1, 6, v0")
    e(f"s_and_b32 s{sXCD}, s2, 7"); e(f"s_lshr_b32 s{sJ}, s2, 3")
    e(f"v_readfirstlane_b32 s{sW}, v1")
    e("v_and_b32 v0, 63, v0")
    if OPT['stamp']:
        e(f"s_lshl_b32 s{sSTB}, s2, 2"); e(f"s_add_u32 s{sSTB}, s{sSTB}, s{sW}"); e(f"s_lshl_b32 s{sSTB}, s{sSTB}, 9")
        e(f"s_add_u32 s{sSTB}, s{sSTB}, {STAMP0}")
        e("v_mov_b32 v254, 0"); e("v_mov_b32 v255, 0")
    e(f"s_mov_b32 s{sI}, s{sXCD}")
    e(f"s_cmp_eq_u32 s{sJ}, 0"); e("s_cbranch_scc1 L_spare")
    e(f"s_cmp_lt_u32 s{sJ}, 9"); e("s_cbranch_scc1 L_attn")

def dma(voff,sr,soff,imm,tag): return I(f"buffer_load_dwordx4 v{voff}, {srd(sr)}, {soff} offen offset:{imm} lds",tag)

def ffn():
    sSL,sTT,sT2,sN=72,73,74,75
    sSeg1,sSeg2,sXb=76,77,78
    sXo=[None,79,80,81,82]
    sW1o=83; sW2o=[None,84,85,86]
    sHst,sHld,sC=87,88,89
    vX,vW,vXR,vWR,vW2,vH,vH4,vFl,vOne,vPoll,vPA=1,2,(3,4),(5,6),7,8,9,10,11,12,13
    ACC=lambda p,q,t: 16+80*p+(q*5+t)*4
    def XF(i): return vr(176+4*i,4) if i<6 else ar(4*(i-6),4)
    AF=lambda buf,q: 200+16*buf+4*q
    t0,t1,t2_,t3=sT[:4]
    e(f"s_lshr_b32 s{t1}, s{sXCD}, 2"); e(f"s_add_u32 s{sI}, s{t1}, 8")
    e(f"s_and_b32 s{t0}, s{sXCD}, 3"); e(f"s_cmp_eq_u32 s{t0}, 3"); e(f"s_cselect_b32 s{t0}, 10, 9")
    e(f"s_cmp_lt_u32 s{sJ}, s{t0}"); e("s_cbranch_scc1 L_spare")
    e(f"s_sub_u32 s{sI}, s{sJ}, s{t0}")
    e(f"s_mul_i32 s{t0}, s{sXCD}, 23"); e(f"s_add_u32 s{sI}, s{sI}, s{t0}")
    e(f"s_sub_u32 s{sI}, s{sI}, s{t1}")
    e(f"s_mul_i32 s{sT2}, s{sI}, 9363"); e(f"s_lshr_b32 s{sT2}, s{sT2}, 16")
    e(f"s_mul_i32 s{t0}, s{sT2}, 7"); e(f"s_sub_u32 s{sN}, s{sI}, s{t0}")
    e(f"s_sub_u32 s{t0}, s{sI}, 98"); e(f"s_mul_i32 s{t1}, s{t0}, 10923"); e(f"s_lshr_b32 s{t1}, s{t1}, 16")
    e(f"s_mul_i32 s{t2_}, s{t1}, 6"); e(f"s_sub_u32 s{t0}, s{t0}, s{t2_}"); e(f"s_add_u32 s{t0}, s{t0}, 7")
    e(f"s_cmp_lt_u32 s{sI}, 98"); e(f"s_cselect_b32 s{sSL}, s{sT2}, s{t1}"); e(f"s_cselect_b32 s{sTT}, s{sN}, s{t0}")
    e("v_lshrrev_b32 v14, 3, v0")
    e("v_and_b32 v15, 7, v0")
    e(f"s_and_b32 s{t0}, s{sW}, 1"); e(f"s_lshl_b32 s{t1}, s{t0}, 2")
    e("v_lshrrev_b32 v12, 1, v14"); e(f"v_or_b32 v13, s{t1}, v12"); e("v_xor_b32 v13, v13, v15")
    e(f"s_mul_i32 s{t2_}, s{sTT}, 160"); e(f"s_lshl_b32 s{t3}, s{sW}, 3"); e(f"s_add_u32 s{t2_}, s{t2_}, s{t3}")
    e(f"v_add_u32 v{vX}, s{t2_}, v14"); e(f"v_mul_u32_u24 v{vX}, 896, v{vX}"); e(f"v_lshl_add_u32 v{vX}, v13, 4, v{vX}")
    e(f"s_lshl_b32 s{t0}, s{t0}, 2")
    e("v_and_b32 v13, 2, v14"); e(f"v_or_b32 v13, s{t0}, v13"); e("v_xor_b32 v13, v13, v15")
    e(f"v_add_u32 v{vW}, s{t3}, v14"); e(f"v_mul_u32_u24 v{vW}, 3584, v{vW}"); e(f"v_lshl_add_u32 v{vW}, v13, 4, v{vW}")
    e(f"s_lshl_b32 s{t0}, s{sSL}, 8"); e(f"v_add_u32 v{vW}, s{t0}, v{vW}")
    sWr,sD,sNX,sNW,sWr2,sNW2,sNH=90,91,93,99,100,101,3
    def mod7(dst,src,tmp,R):
        e(f"s_mul_i32 s{tmp}, s{src}, 9363"); e(f"s_lshr_b32 s{tmp}, s{tmp}, 16"); e(f"s_mul_i32 s{tmp}, s{tmp}, 7"); e(f"s_sub_u32 s{dst}, s{src}, s{tmp}")
        if R==1: e(f"s_mov_b32 s{dst}, 0")
        elif R==2: e(f"s_and_b32 s{dst}, s{src}, 1"); e(f"s_mul_i32 s{dst}, s{dst}, 3")
        elif R==4: e(f"s_and_b32 s{dst}, s{src}, 3"); e(f"s_lshl_b32 s{dst}, s{dst}, 1")
    e(f"s_lshl_b32 s{t0}, s{sSL}, 1"); e(f"s_add_u32 s{t0}, s{sTT}, s{t0}"); mod7(t0,t0,t1,OPT['rot'])
    e(f"s_sub_u32 s{sWr}, 6, s{t0}"); e(f"s_lshl_b32 s{t1}, s{t0}, 7"); e(f"v_add_u32 v{vX}, s{t1}, v{vX}")
    e(f"s_mul_i32 s{t1}, s{t0}, {64*3584}"); e(f"v_add_u32 v{vW}, s{t1}, v{vW}")
    e(f"s_mov_b32 s{sNX}, -768"); e(f"s_mov_b32 s{sNW}, {-6*64*3584}")
    e(f"s_lshl_b32 s{sSeg2}, s{sW}, 12")
    e(f"s_lshl_b32 s{sXb}, s{sW}, 10"); e(f"s_add_u32 s{sXb}, s{sXb}, 65536")
    for j in range(1,5): e(f"s_mov_b32 s{sXo[j]}, {32*j*896}")
    e(f"s_mov_b32 s{sW1o}, {32*3584-1024}")
    for b,n in ((X,1835008),(WA,1605632),(WU,1605632+2048)):
        e(f"s_mov_b32 s{b+2}, {n}"); e(f"s_mov_b32 s{b+3}, 0x20000")
    e("s_waitcnt lgkmcnt(0)")
    e(f"s_mov_b64 s[{X}:{X+1}], s[40:41]"); e(f"s_mov_b64 s[{WA}:{WA+1}], s[48:49]")
    e(f"s_sub_u32 s{WU}, s50, 2048"); e(f"s_subb_u32 s{WU+1}, s51, 0")
    P.extend(stamp(0))
    def xdma(c):
        o=[]
        for j in range(5):
            o.append([I(f"s_add_u32 m0, s{sXb}, {(c%4)*20480+j*4096}"), dma(vX,X,"0" if j==0 else f"s{sXo[j]}",0,f"x{c}")])
        o[-1]+=[ATOM(f"s_cmp_eq_u32 s{sWr}, {c}",f"s_cselect_b32 s{sD}, s{sNX}, 128"),I(f"v_add_u32 v{vX}, s{sD}, v{vX}")]
        return o
    def wdma(s):
        o=[]
        for j in range(2):
            for m in range(2):
                o.append([dma(vW,WA if m==0 else WU,"0" if j==0 else f"s{sW1o}",(2*m+j)*1024,f"w{s}")])
        o[0].insert(0,I(f"s_add_u32 m0, s{sSeg2}, {(s%4)*16384}"))
        o[-1]+=[ATOM(f"s_cmp_eq_u32 s{sWr}, {s%7}",f"s_cselect_b32 s{sD}, s{sNW}, {64*3584}"),I(f"v_add_u32 v{vW}, s{sD}, v{vW}")]
        if s==6: o[-1].append(I(f"v_add_u32 v{vW}, 128, v{vW}"))
        return o
    NSB=OPT['nsb']
    LOC=[((sSeg1,b*4096),13 if b<2 else 17) for b in range(6)]
    LOC+=sorted([((sSeg1,j*4096),OPT['sbp']+j+1) for j in range(NSB)]+[((sSeg2,((j+2)%4)*16384),21+2*j) for j in range(4)],key=lambda z:z[1])
    def blkloc(b): return LOC[b][0] if b<len(LOC) else blkloc(b-10)
    def w2dma(b):
        sg,off=blkloc(b)
        o=[[dma(vW2,WD if b<14 else WO,"0" if pi==0 else f"s{sW2o[pi]}",pi*1024,f"b{b}")] for pi in range(4)]
        o[0].insert(0,I(f"s_add_u32 m0, s{sg}, {off}"))
        if b==13: o[-1].append(I(f"v_mov_b32 v{vW2}, v248"))
        elif b<13:
            o[-1]+=[ATOM(f"s_cmp_eq_u32 s{sWr2}, {b%7}",f"s_cselect_b32 s{sD}, s{sNW2}, 114688"),I(f"v_add_u32 v{vW2}, s{sD}, v{vW2}")]
            if b==6: o[-1].append(I(f"v_add_u32 v{vW2}, {64*896}, v{vW2}"))
        elif b<17: o[-1]+=[ATOM(f"s_cmp_eq_u32 s38, {b-14}",f"s_cselect_b32 s{sD}, s36, {28*896}"),I(f"v_add_u32 v{vW2}, s{sD}, v{vW2}")]
        return o
    flat=lambda L:[x for it in L for x in it]
    for s in range(2):
        P.extend(flat(xdma(s))); P.extend(flat(wdma(s)))
    mksrd(WS,60,WSN); mksrd(WD,52,1605632); mksrd(WO,44,401408); mksrd(OUT,56,1835008); mksrd(DBG,58,256)
    e("v_lshrrev_b32 v14, 4, v0")
    e("v_and_b32 v15, 15, v0")
    e("v_lshrrev_b32 v12, 1, v15"); e("v_xor_b32 v12, v12, v14"); e("v_lshlrev_b32 v12, 4, v12")
    e("v_lshl_add_u32 v12, v15, 7, v12")
    e(f"s_lshr_b32 s{t0}, s{sW}, 1"); e(f"s_mul_i32 s{t0}, s{t0}, 10240"); e(f"s_add_u32 s{t0}, s{t0}, 65536")
    e(f"v_add_u32 v{vXR[0]}, s{t0}, v12"); e(f"v_xor_b32 v{vXR[1]}, 64, v{vXR[0]}")
    e("v_bfe_u32 v12, v0, 2, 2")
    e("v_lshrrev_b32 v13, 1, v12"); e("v_and_b32 v15, 1, v14"); e("v_lshlrev_b32 v15, 1, v15"); e("v_or_b32 v13, v13, v15")
    e(f"s_and_b32 s{t0}, s{sW}, 1"); e(f"s_lshl_b32 s{t0}, s{t0}, 1"); e(f"v_xor_b32 v13, s{t0}, v13"); e("v_lshlrev_b32 v13, 5, v13")
    e("v_lshl_add_u32 v13, v14, 12, v13"); e("v_lshl_add_u32 v13, v12, 7, v13")
    e("v_and_b32 v15, 3, v0"); e(f"v_lshl_add_u32 v{vWR[0]}, v15, 3, v13"); e(f"v_xor_b32 v{vWR[1]}, 32, v{vWR[0]}")
    e("v_lshrrev_b32 v12, 3, v0"); e("v_and_b32 v13, 6, v12"); e("v_and_b32 v15, 7, v0"); e("v_xor_b32 v13, v13, v15")
    e("v_mul_u32_u24 v12, 896, v12"); e(f"v_lshl_add_u32 v{vW2}, v13, 4, v12")
    e(f"s_lshr_b32 s{t0}, s{sW}, 1"); e(f"s_mul_i32 s{t0}, s{t0}, 28"); e(f"s_and_b32 s{t1}, s{sW}, 1"); e(f"s_add_u32 s{t3}, s{t0}, s{t1}")
    e(f"s_lshl_b32 s{t2_}, s{sN}, 7"); e(f"v_add_u32 v{vW2}, s{t2_}, v{vW2}")
    sWr3,sH3=38,39
    e(f"s_add_u32 s{t0}, s{sT2}, s{sN}"); e(f"s_and_b32 s{t0}, s{t0}, {3 if OPT['rot3'] else 0}"); e(f"s_sub_u32 s{sWr3}, 3, s{t0}")
    e(f"s_lshl_b32 s{t1}, s{sW}, 2"); e(f"s_add_u32 s{sH3}, s{t0}, s{t1}")
    e(f"s_mul_i32 s{t0}, s{sH3}, {28*896}"); e(f"v_add_u32 v248, s{t0}, v{vW2}")
    e(f"s_mov_b32 s36, {-3*28*896}"); e(f"s_mov_b32 s37, {-3*NT*1024}")
    e(f"s_lshl_b32 s{t0}, s{sT2}, 1"); e(f"s_add_u32 s{t0}, s{t0}, s{sN}")
    mod7(t0,t0,t1,OPT['rot2']); e(f"s_sub_u32 s{sWr2}, 6, s{t0}"); e(f"s_lshl_b32 s{t0}, s{t0}, 2"); e(f"s_add_u32 s{t3}, s{t3}, s{t0}")
    e(f"s_mul_i32 s{t1}, s{t3}, {32*896}"); e(f"v_add_u32 v{vW2}, s{t1}, v{vW2}")
    e(f"s_mov_b32 s{sNW2}, {-6*114688}"); e(f"s_mov_b32 s{sNH}, {-24*NT*1024}")
    e(f"s_mul_i32 s{t1}, s{sT2}, 5")
    e(f"s_add_u32 s{t0}, s{sH3}, 56"); e(f"s_mul_i32 s{t0}, s{t0}, {NT}"); e(f"s_add_u32 s{t0}, s{t0}, s{t1}"); e(f"s_lshl_b32 s{t0}, s{t0}, 10"); e(f"s_add_u32 s{sT[5]}, s{t0}, {H0}")
    e(f"s_mul_i32 s{t0}, s{t3}, {NT}"); e(f"s_add_u32 s{t0}, s{t0}, s{t1}"); e(f"s_lshl_b32 s{t0}, s{t0}, 10"); e(f"s_add_u32 s{sHld}, s{t0}, {H0}")
    e(f"s_lshl_b32 s{t2_}, s{sTT}, 1"); e(f"s_lshr_b32 s{t1}, s{sW}, 1"); e(f"s_add_u32 s{t2_}, s{t2_}, s{t1}")
    e(f"s_lshl_b32 s{t0}, s{sSL}, 2"); e(f"s_and_b32 s{t3}, s{sW}, 1"); e(f"s_add_u32 s{t0}, s{t0}, s{t3}"); e(f"s_mul_i32 s{t0}, s{t0}, {NT}")
    e(f"s_mul_i32 s{t1}, s{t2_}, 5"); e(f"s_add_u32 s{t0}, s{t0}, s{t1}")
    e(f"s_lshl_b32 s{t0}, s{t0}, 10"); e(f"s_add_u32 s{sHst}, s{t0}, {H0}")
    e(f"s_lshl_b32 s{t0}, s{t2_}, 3"); e(f"s_add_u32 s{t0}, s{t0}, s{t3}"); e(f"s_cmp_ge_u32 s{sSL}, 7"); e(f"s_cselect_b32 s{t1}, 2, 0"); e(f"s_add_u32 s{t0}, s{t0}, s{t1}"); e(f"s_lshl_b32 s{t0}, s{t0}, 7")
    e(f"v_mov_b32 v{vFl}, {OOB}"); e(f"v_mov_b32 v12, s{t0}"); e("v_cmp_eq_u32 vcc, 0, v0")
    e(f"v_lshlrev_b32 v{vH}, 4, v0"); e(f"v_add_u32 v{vH4}, 4096, v{vH}")
    e(f"v_cndmask_b32 v{vFl}, v{vFl}, v12, vcc")
    e(f"s_mul_i32 s{sSeg1}, s{sW}, 24576"); e(f"s_add_u32 s{sSeg1}, s{sSeg1}, 65536")
    for j in range(1,4): e(f"s_mov_b32 s{sW2o[j]}, {6144*j}")
    e(f"s_mov_b32 s{sC}, 0xbfb8aa3b")
    e(f"v_mov_b32 v{vOne}, 1")
    e(f"s_lshl_b32 s{t0}, s{sT2}, 3"); e(f"s_add_u32 s{t0}, s{t0}, s{sW}"); e(f"s_lshl_b32 s{t0}, s{t0}, 7"); e(f"v_mov_b32 v{vPA}, s{t0}")
    e("v_mov_b32 v15, 0")
    CH=OPT['chain']
    def reads(Pn):
        p,s,h=Pn//14,Pn//2,Pn%2
        CH=OPT['chain'] and (p==1 or OPT['chainA'])
        o=[]
        for ks in ((0,1) if CH else (h,)):
            if p==0 and (h==0 or not CH):
                if s==3: o.append(I(f"v_add_u32 v{vXR[ks]}, 61440, v{vXR[ks]}"))
                for t in range(5): o.append(I(f"ds_read_b128 {XF((2*s+ks)*5+t)}, v{vXR[ks]} offset:{(s%4 if s!=3 else 0)*20480+t*2048}"))
                if s==3: o.append(I(f"v_subrev_u32 v{vXR[ks]}, 61440, v{vXR[ks]}"))
        tr=[]
        for j in range(4):
            if CH: m,ks,tl=j>>1,j&1,h
            else: m,ks,tl=j>>1,h,j&1
            for a in range(2):
                tr.append(I(f"ds_read_b64_tr_b16 {vr(AF(h,j)+2*a,2)}, v{vWR[tl]} offset:{(s%4)*16384+(2*m+ks)*1024+a*512}"))
        return tr[:4]+o+tr[4:]
    def epi(p,t):
        T=[232+k for k in range(8)]; O=240+4*(t%2)
        G=[ACC(p,k>>2,t)+(k&3) for k in range(8)]; U=[ACC(p,2+(k>>2),t)+(k&3) for k in range(8)]
        o=[]
        st=I(f"buffer_store_dwordx4 {vr(O,4)}, v{vH if t<4 else vH4}, {srd(WS)}, s{sHst} offen offset:{(t%4)*1024} sc1",f"st{p}")
        if p==1 and OPT['pke'] and OPT['emode']!=2:
            for k in range(0,8,2): o.append(I(f"v_pk_mul_f32 {vr(T[k],2)}, {vr(G[k],2)}, s[48:49]"))
            for k in range(8):
                o.append(I(f"v_exp_f32 v{T[k]}, v{T[k]}"))
                if k%2==0: o.append(I(f"v_pk_mul_f32 {vr(U[k],2)}, {vr(G[k],2)}, {vr(U[k],2)}"))
            for k in range(0,8,2): o.append(I(f"v_pk_add_f32 {vr(T[k],2)}, {vr(T[k],2)}, s[50:51]"))
            for k in range(8):
                o.append(I(f"v_rcp_f32 v{G[k]}, v{T[k]}"))
                if k>=3 and k%2==1:
                    o.append(I(f"v_pk_mul_f32 {vr(U[k-3],2)}, {vr(G[k-3],2)}, {vr(U[k-3],2)}"))
                    if k>=5: o.append(I(f"v_cvt_pk_bf16_f32 v{O+(k-5)//2}, v{U[k-5]}, v{U[k-4]}"))
            o.append(I(f"v_cvt_pk_bf16_f32 v{O+2}, v{U[4]}, v{U[5]}"))
            o.append(I(f"v_pk_mul_f32 {vr(U[6],2)}, {vr(G[6],2)}, {vr(U[6],2)}"))
            o.append(I(f"v_cvt_pk_bf16_f32 v{O+3}, v{U[6]}, v{U[7]}"))
            return o+[st]
        for k in range(8): o.append(I(f"v_mul_f32 v{T[k]}, s{sC}, v{G[k]}"))
        for k in range(8):
            o.append(I(f"v_exp_f32 v{T[k]}, v{T[k]}")); o.append(I(f"v_mul_f32 v{U[k]}, v{G[k]}, v{U[k]}"))
        for k in range(8): o.append(I(f"v_add_f32 v{T[k]}, 1.0, v{T[k]}"))
        for k in range(8):
            o.append(I(f"v_rcp_f32 v{G[k]}, v{T[k]}"))
            if k>=1: o.append(I(f"v_mul_f32 v{U[k-1]}, v{G[k-1]}, v{U[k-1]}"))
            if k>=3 and k%2==1: o.append(I(f"v_cvt_pk_bf16_f32 v{O+(k-3)//2}, v{U[k-3]}, v{U[k-2]}"))
        o.append(I(f"v_mul_f32 v{U[7]}, v{G[7]}, v{U[7]}"))
        o.append(I(f"v_cvt_pk_bf16_f32 v{O+3}, v{U[6]}, v{U[7]}"))
        o.append(I(f"buffer_store_dwordx4 {vr(O,4)}, v{vH if t<4 else vH4}, {srd(WS)}, s{sHst} offen offset:{(t%4)*1024} sc1",f"st{p}"))
        return o
    R1,R2=176,180
    vPO,vS,vSA,vO,vRW=187,192,188,189,190
    n0=len(P)
    e("v_lshrrev_b32 v196, 4, v0")
    e("v_bfe_u32 v197, v0, 2, 2")
    e("v_and_b32 v184, 1, v196"); e("v_lshl_add_u32 v184, v184, 2, v197")
    e("v_lshrrev_b32 v185, 1, v196"); e("v_lshlrev_b32 v185, 10, v185"); e("v_lshl_add_u32 v185, v184, 7, v185")
    e("v_and_b32 v186, 3, v0"); e("v_lshl_add_u32 v185, v186, 3, v185")
    e("v_lshrrev_b32 v184, 1, v184")
    for q in range(4):
        e(f"s_add_u32 s{t0}, s{sW}, {q}"); e(f"s_and_b32 s{t0}, s{t0}, 3")
        e(f"v_xor_b32 v186, s{t0}, v184"); e(f"v_lshl_add_u32 v186, v186, 5, v185")
        e(f"v_add_u32 v{R1+q}, s{sSeg1}, v186"); e(f"v_add_u32 v{R2+q}, s{sSeg2}, v186")
    e(f"s_mul_i32 s{t0}, s{sT2}, 80"); e(f"s_add_u32 s{t1}, s{t0}, 79"); e(f"s_lshr_b32 s{t2_}, s{t0}, 7"); e(f"s_lshr_b32 s{t1}, s{t1}, 7"); e(f"s_min_u32 s{t1}, s{t1}, 15")
    for r in (t2_,t1):
        e(f"s_lshl_b32 s{r}, s{r}, 2"); e(f"s_add_u32 s{r}, s{r}, s{sW}"); e(f"s_add_u32 s{r}, s{r}, 208"); e(f"s_lshl_b32 s{r}, s{r}, 7")
    e(f"s_sub_u32 s{t1}, s{t1}, s{t2_}"); e("v_lshrrev_b32 v198, 5, v0"); e(f"v_mul_u32_u24 v198, s{t1}, v198"); e(f"v_add_u32 v{vPO}, s{t2_}, v198")
    e("v_and_b32 v197, 15, v0"); e(f"v_add_u32 v197, s{t0}, v197")
    e(f"s_mul_i32 s{t1}, s{sW}, {SSTR}"); e(f"s_add_u32 s{t1}, s{t1}, {S0}"); e(f"v_lshlrev_b32 v{vSA}, 2, v197"); e(f"v_add_u32 v{vSA}, s{t1}, v{vSA}")
    e("v_mul_u32_u24 v197, 896, v197"); e("v_lshl_add_u32 v197, v196, 3, v197")
    e(f"s_lshl_b32 s{t1}, s{sN}, 7"); e(f"s_lshl_b32 s{t2_}, s{sW}, 5"); e(f"s_add_u32 s{t1}, s{t1}, s{t2_}"); e(f"v_add_u32 v{vO}, s{t1}, v197")
    e(f"v_add_u32 v{vRW}, s{sSeg1}, v{vH}")
    for q in range(1,4):
        e(f"s_sub_u32 s{t0}, s{sW}, {q}"); e(f"s_and_b32 s{t0}, s{t0}, 3"); e(f"s_mul_i32 s{t0}, s{t0}, 24576"); e(f"s_add_u32 s{t0}, s{t0}, {65536+(q-1)*5120}")
        e(f"v_add_u32 v{183+q}, s{t0}, v{vH}")
    for j in range(1,5): e(f"s_mov_b32 s{39+j}, {16*j*896}")
    e(f"s_mov_b32 s48, s{sC}"); e(f"s_mov_b32 s49, s{sC}"); e("s_mov_b32 s50, 1.0"); e("s_mov_b32 s51, 1.0")
    e(f"s_add_u32 s{t0}, s{sSeg2}, 147456"); e(f"v_add_u32 v249, s{t0}, v{vH}")
    for q in range(4): e(f"ds_write_b128 v249, {vr(176+4*q,4)} offset:{q*1024}")
    setup2=P[n0:]; del P[n0:]
    unpark=[I(f"ds_read_b128 {vr(176+4*q,4)}, v249 offset:{q*1024}") for q in range(4)]
    P.extend(setup2)
    P.append(WAIT(vm=["x0","w0"],lgkm=0)); e("s_barrier")
    P.extend(stamp(1))
    P.extend(reads(0)); P.append(WAIT(lgkm=0))
    pool=Pool(flat([epi(0,t) for t in range(5)]))
    dq=[]
    for s in range(2,14):
        if s<=6: dq.append((max(0,2*(s-4)+1),xdma(s)))
        dq.append((max(0,2*(s-4)+1),wdma(s)))
        if s==8: dq.append((0,[[I(f"buffer_load_dword v14, v15, {srd(DBG)}, 0 offen sc1","clr")]]))
    w2q=[(max(OPT['w2p0'],LOC[b][1]),w2dma(b)) for b in range(10+NSB)]
    cur=[]
    def sreads(b):
        sg,off=blkloc(b); base=R1 if sg==sSeg1 else R2
        return [I(f"ds_read_b64_tr_b16 {ar(16*b+4*q+2*a,2)}, v{base+q} offset:{off+a*2048}") for q in range(4) for a in range(2)]
    for Pn in range(28):
        p,s,h=Pn//14,Pn//2,Pn%2
        CH=OPT['chain'] and (p==1 or OPT['chainA'])
        mf=[]
        for jq in range(2 if CH else 4):
            for t in range(5):
                for ks in ((0,1) if CH else (h,)):
                    q = (2*jq+h) if CH else jq
                    j = (2*jq+ks) if CH else jq
                    d=vr(ACC(p,q,t),4)
                    mf.append(mfma(d,vr(AF(h,j),4),XF((2*(s%7)+ks)*5+t),"0" if (s%7==0 and ks==0) else d))
        f=[]
        if Pn<27:
            rd=reads(Pn+1); f+=spread(rd,0,min(15,max(8,len(rd))))
        items=[]
        RT=OPT['rate'] if Pn<20 else OPT['rateB']
        if OPT['sbp']<=Pn<OPT['sbp']+NSB:
            P.append(WAIT(vm=[f"b{Pn-OPT['sbp']}"])); f+=spread(sreads(Pn-OPT['sbp']),8,16)
        while len(items)<RT:
            if not cur:
                if dq and dq[0][0]<=Pn: cur=dq.pop(0)[1]
                elif w2q and w2q[0][0]<=Pn: cur=w2q.pop(0)[1]
                else: break
            items.append(cur.pop(0))
        n=len(items)
        for k,it in enumerate(items):
            pos=1+k*19/max(n,5)
            for x in it:
                f.append((pos-1 if x.cls=="salu" else (pos+1 if x.cls=="valu" else pos),x))
        if Pn==16: f+=spread(unpark,8,12)
        if OPT['emode']>=2 and Pn==OPT['pAp']: f.append((19,I(f"buffer_load_dword v{vPoll}, v{vPA}, {srd(WS)}, 0 offen sc1","pollA")))
        if p==1 and not pool.q and 'epidone' not in OPT: OPT['epidone']=Pn; print("epiA done before period",Pn)
        P.extend(pack(mf,f,pool if p==1 else None,(OPT['capc'] if Pn<OPT['cp'] else OPT['cap']),lo=(2 if Pn==14 else 0)))
        if Pn==13: P.extend(stamp(2))
        if h==0:
            P.append(WAIT(vm=[f"w{s+1}",f"x{s+1}"]+(["st0","clr"] if s==OPT['sigA'] else []),lgkm=0)); e("s_barrier")
            if s==OPT['sigA']:
                check_or_spin(15,0,1,DBG,14)
                e(f"buffer_atomic_add v{vOne}, v{vFl}, {srd(WS)}, 0 offen","sigA")
            P.extend(stamp(32+s))
        elif Pn<27: P.append(WAIT(lgkm=0))
    assert not dq
    print("left: epiA ops",len(pool.q),"w2 items",len(w2q))
    P.extend(stamp(3))
    P.extend(pool.q)
    P.extend(flat(cur))
    for _,g_ in w2q: P.extend(flat(g_))
    e(f"s_add_u32 s{sHst}, s{sHst}, {2*NT*1024}")
    NST=OPT['nst']; NQ=OPT['nq']; B0=18-NQ
    def AW(b,q,a=None):
        if b<NST: return ar(16*b+4*q,4) if a is None else ar(16*b+4*q+2*a,2)
        return vr(AF(b%2,q),4) if a is None else vr(AF(b%2,q)+2*a,2)
    def treads(b):
        sg,off=blkloc(b); base=R1 if sg==sSeg1 else R2
        return [I(f"ds_read_b64_tr_b16 {AW(b,q,a)}, v{base+q} offset:{off+a*2048}") for q in range(4) for a in range(2)]
    if OPT['emode']==2: NST=NSB
    E3=OPT['emode']==3
    NSL=10 if OPT['emode']!=2 and NST else (256-16*max(NST,3 if OPT['nm']==3 else 0))//20
    def HS(b,t):
        k=b%NSL
        if OPT['emode']==2 or not NST: return ar(256-20*NSL+k*20+4*t,4)
        return ar(128+k*20+4*t,4) if k<6 else vr(96+(k-6)*20+4*t,4)
    def hload(b):
        o=[]
        for t in range(5):
            o.append([I(f"buffer_load_dwordx4 {HS(b,t)}, v{vH if t<4 else vH4}, {srd(WS)}, s{sHld} offen offset:{(t%4)*1024}{' sc1' if OPT['hsc1'] else ''}",f"h{b}")])
        if b==13: o[-1].append(I(f"s_mov_b32 s{sHld}, s{sT[5]}"))
        elif b<13:
            o[-1]+=[ATOM(f"s_cmp_eq_u32 s{sWr2}, {b%7}",f"s_cselect_b32 s{sD}, s{sNH}, {4*NT*1024}",f"s_add_u32 s{sHld}, s{sHld}, s{sD}")]
            if b==6: o[-1].append(I(f"s_add_u32 s{sHld}, s{sHld}, {2*NT*1024}"))
        elif b<17: o[-1]+=[ATOM(f"s_cmp_eq_u32 s38, {b-14}",f"s_cselect_b32 s{sD}, s37, {NT*1024}",f"s_add_u32 s{sHld}, s{sHld}, s{sD}")]
        return o
    LEAD=OPT['lead']
    HL=[]
    for b in range(18):
        for t,it in enumerate(hload(b)):
            it[0].tag=f"h{b}_{t}"; HL.append(it)
    epool=None
    if OPT['emode']==1:
        S=[]
        sigB=[WAIT(vm=["st1"]),I(f"buffer_atomic_add v{vOne}, v{vFl}, {srd(WS)}, 0 offen offset:512","sigB")]+stamp(10)
        pollA=I(f"buffer_load_dword v{vPoll}, v{vPA}, {srd(WS)}, 0 offen sc1","pollA")
        if NST: S+=[WAIT(vm=["b0"])]+treads(0)
        for j in range(NST):
            if j+1<NST: S+=[WAIT(vm=[f"b{j+1}"])]+treads(j+1)+[WAIT(lgkm=8)]
            else: S+=[WAIT(lgkm=0)]
            if OPT['pA']==5+j: S.append(pollA)
            S+=flat(w2dma(10+j))
            if j+1==OPT['nin']: mark=len(S)
            if OPT['smode'] and j+1==OPT['sBs']+OPT['nin']: S+=sigB
        E=[]
        for t in range(5):
            E+=epi(1,t)+stamp(46+t)
            if t==OPT['sAt'] and OPT['sigA']>13: E.append("sigA")
            if t==OPT['pA']: E.append(pollA)
        k0=0
        n_in = 0 if OPT['smode'] else len(S)
        if OPT['smode'] and NST: n_in=mark if OPT['nin'] else 9+(9 if NST>1 else 0)
        for k,x in enumerate(E):
            if x=="sigA":
                P.append(WAIT(vm=["st0","clr"])); check_or_spin(15,0,1,DBG,14)
                e(f"buffer_atomic_add v{vOne}, v{vFl}, {srd(WS)}, 0 offen","sigA")
            else: P.append(x)
            k1=min(n_in,n_in*(k+1)//(len(E)-OPT['ein'])); P.extend(S[k0:k1]); k0=k1
        P.extend(stamp(4))
        P.extend(S[k0:])
        P.append(WAIT(vm=["pollA","b0"])); check_or_spin(vPA,0,7,WS,vPoll)
        P.extend(stamp(11))
        if not NST: P.extend(treads(0))
        for l in range(LEAD): P.extend(HL[l])
        if not (OPT['smode'] and 0<OPT['sBs']<=NST): P.extend(sigB)
        P.extend(stamp(5))
    else:
        if not NST: P.extend([WAIT(vm=["b0"])]+treads(0))
        hq=flat(HL[:LEAD]); nh=0
        SR=flat([[WAIT(vm=[f"b{j}"])]+treads(j) for j in range(NST)]) if E3 else []
        for t in range(OPT['np']):
            ops=epi(1,t)
            if t==OPT['pA'] and OPT['pAp']>27: ops.append(I(f"buffer_load_dword v{vPoll}, v{vPA}, {srd(WS)}, 0 offen sc1","pollA"))
            if SR:
                n=len(SR); a0=n*t//5; a1=n*(t+1)//5; mix=[]
                for k,x in enumerate(ops):
                    mix.append(x); mix+=SR[a0+(a1-a0)*k//len(ops):a0+(a1-a0)*(k+1)//len(ops)]
                ops=mix
            if t==OPT['gAt']:
                P.append(WAIT(vm=["pollA"])); check_or_spin(vPA,0,7,WS,vPoll); P.extend(stamp(11))
            for k,x in enumerate(ops):
                P.append(x)
                if t>=OPT['gAt']:
                    tot=(OPT['np']-OPT['gAt'])*len(ops); pos=(t-OPT['gAt'])*len(ops)+k+1
                    n1=len(hq)*pos//tot; P.extend(hq[nh:n1]); nh=n1
        if E3 and OPT['sigd']<0:
            P.extend(stamp(4)); P.append(WAIT(lgkm=0))
            for b in range(10,10+OPT['wpre']): P.extend(flat(w2dma(b)))
            P.append(WAIT(vm=["st1"])); e(f"buffer_atomic_add v{vOne}, v{vFl}, {srd(WS)}, 0 offen offset:512","sigB"); P.extend(stamp(10))
        if OPT['gAt']>=OPT['np']:
            P.append(WAIT(vm=["pollA"])); check_or_spin(vPA,0,7,WS,vPoll); P.extend(stamp(11)); P.extend(hq)
        epool=Pool(flat([epi(1,t) for t in range(OPT['np'],5)]))
        P.extend(stamp(5))
    WQ=[(max(5*(b-10) if b-10>=NST else 0,OPT['w2g0'] if OPT["emode"]>=2 else 0),it) for b in range((10+(OPT['wpre'] if OPT['sigd']<0 else 0)) if E3 else 10+NST,18) for it in w2dma(b)]
    sigat=None if OPT['sigd']>=0 else -1; hn=LEAD
    GB=max(35-LEAD,OPT['gBg'])
    gates={GB:("pollB",vPA,512,7,6), 70-LEAD:("pollO",vPO,0,4,7)}
    polls={g-OPT['pah']:v for g,v in gates.items()}
    NM=OPT['nm']; G0=90-5*NM
    gb=lambda g: divmod(g,5) if g<G0 else (18-NM+(g-G0)%NM,(g-G0)//NM)
    HL[G0:]=[HL[5*gb(g)[0]+gb(g)[1]] for g in range(G0,90)]
    if NM>1:
        for g in range(G0,90):
            b,t=gb(g); x=HL[g][0]; x2=I(x.text.replace(f"s{sHld} offen",f"s{44+b-(18-NM)} offen"),x.tag); HL[g]=[x2]
        extra=[]
        for b in range(18-NM,18):
            extra.append(I(f"s_mov_b32 s{44+b-(18-NM)}, s{sHld}"))
            if b<17: extra+=hload(b)[-1][1:]
        HL[G0-1]=HL[G0-1]+extra
    def AM(b,q,a=None):
        if b<18-NM or NM==1: return AW(b,q,a)
        r=16*(b-(18-NM))+4*q
        return ar(r,4) if a is None else ar(r+2*a,2)
    def mreads(b):
        sg,off=blkloc(b); base=R1 if sg==sSeg1 else R2
        return [I(f"ds_read_b64_tr_b16 {AM(b,q,a)}, v{base+q} offset:{off+a*2048}") for q in range(4) for a in range(2)]
    RQ={}
    for b in range(max(NST,1),18):
        g0=5*(b-1) if b<=18-NM else 5*(18-NM-1)-5*(b-(18-NM))
        for k,x in enumerate(mreads(b)): RQ.setdefault(g0+k//2,[]).append((1.2+2*(k%2),x,f"b{b}"))
    for g in range(90):
        b,t=gb(g)
        mf=[mfma(vr(ACC(0,q,t),4),AM(b,q),HS(b,t),"0" if b==0 else vr(ACC(0,q,t),4)) for q in range(4)]
        tags=[f"h{b}_{t}"]+[x[2] for x in RQ.get(g,[])]
        if g in gates: tags.append(gates[g][0])
        P.append(WAIT(vm=tags,lgkm=0 if (g%5==0 and g<=G0) else None))
        if g in gates:
            tg,av,off,val,si=gates[g]
            check_or_spin(av,off,val,WS,vPoll); P.extend(stamp(si))
        if g%5==0: P.extend(stamp(12+g//5))
        f=[]
        if g in polls:
            tg,av,off,val,si=polls[g]
            f.append((2.5,I(f"buffer_load_dword v{vPoll}, v{av}, {srd(WS)}, 0 offen offset:{off} sc1",tg)))
        nl=0
        for rep in range(2):
            if hn<=g+LEAD and hn<90 and (hn<35 or g>=GB):
                it=HL[hn]; hn+=1; nl+=1; f.append((2*rep,it[0])); f+=[(2*rep+1,x) for x in it[1:]]
        if 90<=g+LEAD<95: f.append((0,I(f"buffer_load_dword v{vS+g+LEAD-90}, v{vSA}, {srd(WS)}, 0 offen offset:{(g+LEAD-90)*64} sc1","s")))
        for rep in range(nl,2):
            if WQ and WQ[0][0]<=g:
                seen=False
                for x in WQ.pop(0)[1]:
                    if x.cls=="vm": seen=True; f.append((2*rep,x))
                    else: f.append((2*rep+1 if seen else 2*rep-0.5,x))
        f+=[(p_,x) for p_,x,_ in RQ.get(g,[])]
        if g>=G0 and t>0:
            k=(g-G0)%NM
            for q in range(1,4):
                if (q-1)*NM//3==k: f.append((q-0.1 if NM==1 else (3 if k==0 else 1),I(f"ds_write_b128 v{vRW}, {vr(ACC(0,q,t-1),4)} offset:{(q-1)*5120+(t-1)*1024}")))
        if epool is not None and sigat is None and not epool.q: sigat=g+OPT['sigd']; print("epiB done before group",g); P.extend(stamp(4))
        if g==sigat:
            P.append(WAIT(vm=["st1"])); e(f"buffer_atomic_add v{vOne}, v{vFl}, {srd(WS)}, 0 offen offset:512","sigB"); P.extend(stamp(10))
        P.extend(pack(mf,f,epool,OPT['ecap']))
    assert not WQ and hn==90
    for q in range(1,4): e(f"ds_write_b128 v{vRW}, {vr(ACC(0,q,4),4)} offset:{(q-1)*5120+4*1024}")
    P.extend(stamp(8))
    P.append(WAIT(vm=["s"],lgkm=0)); e("s_barrier")
    for t in range(5):
        for q in range(1,4): e(f"ds_read_b128 {vr(ACC(1,q,t),4)}, v{183+q} offset:{t*1024}")
    for t in range(5):
        e(f"s_waitcnt lgkmcnt({12-3*t})")
        d=ACC(0,0,t)
        if OPT['pk']:
            for r in (0,2): e(f"v_pk_add_f32 {vr(ACC(1,1,t)+r,2)}, {vr(ACC(1,1,t)+r,2)}, {vr(ACC(1,2,t)+r,2)}")
            for r in (0,2): e(f"v_pk_add_f32 {vr(d+r,2)}, {vr(d+r,2)}, {vr(ACC(1,3,t)+r,2)}")
            for r in (0,2): e(f"v_pk_add_f32 {vr(d+r,2)}, {vr(d+r,2)}, {vr(ACC(1,1,t)+r,2)}")
        else:
            for r in range(4): e(f"v_add_f32 v{ACC(1,1,t)+r}, v{ACC(1,1,t)+r}, v{ACC(1,2,t)+r}")
            for r in range(4): e(f"v_add_f32 v{d+r}, v{d+r}, v{ACC(1,3,t)+r}")
            for r in range(4): e(f"v_add_f32 v{d+r}, v{d+r}, v{ACC(1,1,t)+r}")
        for r in range(4): e(f"v_mul_f32 v{d+r}, v{vS+t}, v{d+r}")
        e(f"v_cvt_pk_bf16_f32 v{d}, v{d}, v{d+1}"); e(f"v_cvt_pk_bf16_f32 v{d+1}, v{d+2}, v{d+3}")
        e(f"buffer_store_dwordx2 {vr(d,2)}, v{vO}, {srd(OUT)}, {'0' if t==0 else 's%d'%(39+t)} offen{['',' sc1',' nt',' sc0 sc1',' sc1 nt'][OPT['outpol']]}","out")
    P.extend(stamp(9,True))
    e("s_endpgm")

def attn():
    sAT,sHG=72,73
    sXb,sWb=74,75
    sWo={(0,0):76,(0,1):77,(1,0):78,(1,1):79,(2,0):80,(2,1):81}
    sK,sD0,sD1,sO,sC=82,83,84,85,86
    mE,mM0,mM1,mZ=88,90,100,68
    t0,t1=66,67; t2_,t3=70,71
    vX=[1,2,3,4,5]; vW=6; vXR=(7,8); vR0=(9,10); vR1=(11,12); vRq=(13,14); vPad=15
    vA=(224,225)
    TBL=159744; XB=98304
    Q=lambda u,tl: 16+(u*2+tl)*4
    K=lambda t,tl: 80+(t*2+tl)*4
    V=lambda d,t: 152+d*36+t*4
    XA=lambda buf,t: buf*36+4*t
    WF=lambda buf,m,tl: 72+buf*24+(2*m+tl)*4
    e("L_attn:")
    e(f"s_lshr_b32 s{sAT}, s{sXCD}, 2"); e(f"s_lshl_b32 s{sAT}, s{sAT}, 3"); e(f"s_add_u32 s{sAT}, s{sAT}, s{sJ}"); e(f"s_sub_u32 s{sAT}, s{sAT}, 1"); e(f"s_and_b32 s{sHG}, s{sXCD}, 3")
    e("v_lshrrev_b32 v230, 3, v0"); e("v_and_b32 v231, 7, v0")
    e(f"s_and_b32 s{t0}, s{sW}, 1"); e(f"s_lshl_b32 s{t1}, s{t0}, 2")
    e("v_lshrrev_b32 v232, 1, v230"); e(f"v_or_b32 v232, s{t1}, v232"); e("v_xor_b32 v232, v232, v231"); e("v_lshlrev_b32 v232, 4, v232")
    e(f"s_lshl_b32 s{t2_}, s{sAT}, 7"); e(f"s_lshl_b32 s{t3}, s{sW}, 3"); e(f"s_add_u32 s{t2_}, s{t2_}, s{t3}")
    e(f"v_add_u32 v{vX[0]}, s{t2_}, v230"); e(f"v_mul_u32_u24 v{vX[0]}, 896, v{vX[0]}"); e(f"v_add_u32 v{vX[0]}, v{vX[0]}, v232")
    for j in range(1,5): e(f"v_add_u32 v{vX[j]}, {32*j*896}, v{vX[0]}")
    e(f"s_cmp_lt_u32 s{t2_}, 16"); e(f"s_cselect_b32 s{t0}, {OOB}, 0"); e(f"v_or_b32 v{vX[0]}, s{t0}, v{vX[0]}")
    e(f"s_cmp_ge_u32 s{sW}, 2"); e(f"s_cselect_b32 s{t0}, {OOB}, 0"); e(f"v_or_b32 v{vX[4]}, s{t0}, v{vX[4]}")
    e("v_lshrrev_b32 v230, 4, v0"); e("v_and_b32 v231, 15, v0")
    e(f"s_and_b32 s{t0}, s{sW}, 2"); e(f"s_lshl_b32 s{t0}, s{t0}, 1"); e(f"v_or_b32 v232, s{t0}, v230"); e("v_lshlrev_b32 v232, 1, v232"); e("v_xor_b32 v232, v232, v231")
    e(f"s_lshl_b32 s{t0}, s{sW}, 2"); e(f"v_add_u32 v{vW}, s{t0}, v230"); e(f"v_mul_u32_u24 v{vW}, 2688, v{vW}")
    e(f"v_lshl_add_u32 v{vW}, v232, 4, v{vW}"); e(f"s_mul_i32 s{t0}, s{sHG}, 224"); e(f"v_add_u32 v{vW}, s{t0}, v{vW}")
    e(f"v_mov_b32 v233, {OOB}"); e("v_cmp_lt_u32 vcc, 13, v232"); e(f"v_cndmask_b32 v{vW}, v{vW}, v233, vcc")
    sWr,sD,sNW,sKx,sKt=92,93,99,87,3
    e(f"s_lshl_b32 s{t0}, s{sHG}, 1"); e(f"s_add_u32 s{t0}, s{t0}, s{sAT}")
    if OPT['arot']==7:
        e(f"s_mul_i32 s{t1}, s{t0}, 9363"); e(f"s_lshr_b32 s{t1}, s{t1}, 16"); e(f"s_mul_i32 s{t1}, s{t1}, 7"); e(f"s_sub_u32 s{t0}, s{t0}, s{t1}")
    elif OPT['arot']==2: e(f"s_and_b32 s{t0}, s{t0}, 1"); e(f"s_mul_i32 s{t0}, s{t0}, 3")
    elif OPT['arot']==4: e(f"s_and_b32 s{t0}, s{sAT}, 3"); e(f"s_lshl_b32 s{t0}, s{t0}, 1")
    else: e(f"s_mov_b32 s{t0}, 0")
    e(f"s_sub_u32 s{sWr}, 6, s{t0}"); e(f"s_lshl_b32 s{sKx}, s{t0}, 7"); e(f"s_lshl_b32 s{sKt}, s{t0}, 9")
    e(f"s_mul_i32 s{t1}, s{t0}, {64*2688}"); e(f"v_add_u32 v{vW}, s{t1}, v{vW}"); e(f"s_mov_b32 s{sNW}, {-13*32*2688}")
    e(f"s_lshl_b32 s{sXb}, s{sW}, 10"); e(f"s_add_u32 s{sXb}, s{sXb}, {XB}")
    e(f"s_mul_i32 s{sWb}, s{sW}, 6144")
    for (m,j),r in sWo.items():
        imm=((2*m+j)%4)*1024
        e(f"s_mov_b32 s{r}, {4096+m*896+16*j*2688-imm}")
    e(f"s_lshl_b32 s{t0}, s{sW}, 6"); e(f"v_add_u32 v234, s{t0}, v0"); e("v_lshlrev_b32 v235, 2, v234")
    e("s_waitcnt lgkmcnt(0)")
    mksrd(GW,54,896); mksrd(X,40,1835008,14336); mksrd(WA,42,1204224,4096)
    P.extend(stamp(0))
    e(f"buffer_load_dword v236, v235, {srd(GW)}, 0 offen","gw")
    def xdma(c):
        o=[I(f"s_mov_b32 s{sK}, s{sKx}"),I(f"s_add_u32 s{sKx}, s{sKx}, 128"),ATOM(f"s_cmp_eq_u32 s{sWr}, {c}",f"s_cselect_b32 s{sKx}, 0, s{sKx}")]
        for j in range(5):
            o.append(I(f"s_add_u32 m0, s{sXb}, {(c%3)*20480+j*4096}"))
            o.append(dma(vX[j],X,f"s{sK}",0,f"x{c}"))
        return o
    def wdma(k):
        o=[]
        for m in range(3):
            if m!=1: o.append(I(f"s_add_u32 m0, s{sWb}, {(k%4)*24576+(4096 if m==2 else 0)}"))
            for j in range(2): o.append(dma(vW,WA,f"s{sWo[(m,j)]}",((2*m+j)%4)*1024,f"w{k}"))
        if k%2==1:
            o[-1:-1]=[ATOM(f"s_cmp_eq_u32 s{sWr}, {k//2}",f"s_cselect_b32 s{sD}, s{sNW}, {32*2688}")]
            o.append(I(f"v_add_u32 v{vW}, s{sD}, v{vW}"))
        else: o.append(I(f"v_add_u32 v{vW}, {32*2688}, v{vW}"))
        return o
    for z in (xdma(0),wdma(0),wdma(1)): P.extend(z)
    aq=[(0,xdma(1)),(0,wdma(2)),(0,wdma(3)),(0,xdma(2))]
    for k in range(4,14):
        aq.append((k-4,wdma(k)))
        if k%2==1 and (k+1)//2<=6: aq.append((2*((k+1)//2-3)+1,xdma((k+1)//2)))
    acur=[]
    mksrd(WS,60,WSN); mksrd(DBG,58,256)
    if OPT['apf']:
        mksrd(WO,44,401408); mksrd(WD,52,1605632)
        e(f"s_sub_u32 s{t0}, s{sJ}, 1"); e(f"s_lshl_b32 s{t0}, s{t0}, 2"); e(f"s_add_u32 s{t0}, s{t0}, s{sW}"); e(f"s_lshl_b32 s{t0}, s{t0}, 6")
        e(f"v_add_u32 v227, s{t0}, v0"); e("v_lshlrev_b32 v226, 7, v227"); e(f"s_mov_b32 s36, {2048*128}")
        e("v_mul_u32_u24 v228, 9363, v227"); e("v_lshrrev_b32 v228, 22, v228"); e("v_add_u32 v228, 1, v228"); e("v_mul_u32_u24 v228, 448, v228"); e("v_add_u32 v228, v228, v227"); e("v_lshlrev_b32 v228, 7, v228")
        e("v_cmp_lt_u32 vcc, 1791, v227"); e(f"v_mov_b32 v229, {OOB}"); e("v_cndmask_b32 v227, v228, v229, vcc")
        for j in range(1,4): e(f"s_mov_b32 s{36+j}, {3584*128*j}")
    e("v_lshrrev_b32 v230, 4, v0"); e("v_and_b32 v231, 15, v0")
    e("v_lshrrev_b32 v232, 1, v231"); e("v_xor_b32 v232, v232, v230"); e("v_lshlrev_b32 v232, 4, v232")
    e("v_lshl_add_u32 v232, v231, 7, v232"); e(f"v_add_u32 v{vXR[0]}, {XB}, v232"); e(f"v_xor_b32 v{vXR[1]}, 64, v{vXR[0]}")
    e("v_bfe_u32 v232, v0, 2, 2"); e("v_and_b32 v233, 3, v0")
    e("v_and_b32 v237, 1, v230"); e("v_lshl_add_u32 v238, v237, 2, v232"); e("v_lshlrev_b32 v238, 2, v238")
    e("v_mul_u32_u24 v237, 12288, v237"); e("v_lshrrev_b32 v239, 1, v230"); e("v_lshl_add_u32 v237, v239, 10, v237"); e("v_lshl_add_u32 v237, v232, 8, v237")
    e(f"s_mul_i32 s{t0}, s{sW}, 7")
    e(f"v_add_u32 v239, s{t0}, v233")
    e("v_xor_b32 v240, v239, v238"); e(f"v_lshl_add_u32 v{vR0[0]}, v240, 3, v237")
    e("v_add_u32 v239, 4, v239")
    e("v_and_b32 v240, 3, v239"); e("v_or_b32 v240, 28, v240"); e("v_cmp_eq_u32 vcc, 3, v233"); e("v_cndmask_b32 v239, v239, v240, vcc")
    e("v_xor_b32 v240, v239, v238"); e(f"v_lshl_add_u32 v{vR1[0]}, v240, 3, v237")
    e(f"v_cndmask_b32 v{vPad}, 0, 1, vcc")
    e(f"v_add_u32 v{vR0[1]}, 49152, v{vR0[0]}"); e(f"v_add_u32 v{vR1[1]}, 49152, v{vR1[0]}")
    e("v_lshl_add_u32 v240, v230, 3, v232"); e("v_lshlrev_b32 v240, 3, v240"); e(f"v_add_u32 v240, {TBL}, v240")
    e(f"v_cndmask_b32 v{vRq[0]}, v{vR1[0]}, v240, vcc"); e(f"v_cndmask_b32 v{vRq[1]}, v{vR1[1]}, v240, vcc")
    P.append(WAIT(vm=["gw"]))
    e("v_and_b32 v244, 0xffff, v236"); e("v_mov_b32 v245, 0"); e("v_lshrrev_b32 v246, 16, v236"); e("v_mov_b32 v247, 0")
    e("v_lshlrev_b32 v234, 4, v234"); e(f"v_add_u32 v234, {TBL}, v234")
    e("ds_write_b128 v234, v[244:247]")
    def reads(k):
        sl=k%4; h=sl//2; buf=k%2
        pre=[]; tr=[]
        for a in range(2):
            imm=(sl%2)*24576+a*6144
            pre.append(I(f"s_add_u32 s{(sD0,sD1)[a]}, s{sKt}, {(256*(k%2)+32*a-imm)&0xffffffff}"))
            pre.append(I(f"v_mad_i32_i24 v{vA[a]}, v{vPad}, s{(sD0,sD1)[a]}, v{vRq[h]}"))
        for m in range(3):
            for tl in range(2):
                for a in range(2):
                    ad = vR0[h] if tl==0 else (vA[a] if m==0 else vR1[h])
                    tr.append(I(f"ds_read_b64_tr_b16 {ar(WF(buf,m,tl)+2*a,2)}, v{ad} offset:{(sl%2)*24576+a*6144+m*2048}"))
        xs=[I(f"ds_read_b128 {ar(XA(buf,t),4)}, v{vXR[k%2]} offset:{((k//2)%3)*20480+t*2048}") for t in range(9)]
        if k%2==1: pre+=[I(f"s_add_u32 s{sKt}, s{sKt}, 512"),ATOM(f"s_cmp_eq_u32 s{sWr}, {k//2}",f"s_cselect_b32 s{sKt}, 0, s{sKt}")]
        return pre+tr[:2]+xs+tr[2:]
    P.append(WAIT(vm=["x0","w0"],lgkm=0)); e("s_barrier")
    P.extend(stamp(1))
    P.extend(reads(0)); P.append(WAIT(vm=["w1"],lgkm=0)); e("s_barrier")
    cA0,cB0,cA1,cB1,vNeg,vH,vH4,vSt,vFl=226,227,228,229,230,231,250,251,252
    import struct
    f2u=lambda x: struct.unpack("<I",struct.pack("<f",x))[0]
    n0=len(P)
    e("v_lshrrev_b32 v232, 4, v0"); e("v_and_b32 v233, 15, v0")
    e("v_and_b32 v234, 1, v233"); e(f"v_cmp_eq_u32 s[{mE}:{mE+1}], 0, v234")
    e("v_lshl_add_u32 v235, v232, 2, v234"); e(f"v_cmp_le_u32 s[{mM0}:{mM0+1}], v235, v233")
    e("v_add_u32 v235, 2, v235"); e(f"v_cmp_le_u32 s[{mM1}:{mM1+1}], v235, v233")
    e("v_mov_b32 v236, 0xffff0000"); e("v_mov_b32 v237, 0xffff"); e(f"v_lshlrev_b32 v{vH}, 4, v0"); e(f"v_add_u32 v{vH4}, 4096, v{vH}")
    e(f"v_cndmask_b32 v236, v236, v237, s[{mE}:{mE+1}]")
    e(f"v_cndmask_b32 v{cA0}, 0, v236, s[{mM0}:{mM0+1}]"); e(f"v_xor_b32 v{cB0}, v{cA0}, v236")
    e(f"v_cndmask_b32 v{cA1}, 0, v236, s[{mM1}:{mM1+1}]"); e(f"v_xor_b32 v{cB1}, v{cA1}, v236")
    e(f"v_mov_b32 v{vNeg}, 0xf149f2ca")
    P.append(ATOM(f"s_cmp_eq_u32 s{sAT}, 0",f"s_cselect_b64 s[{mZ}:{mZ+1}], -1, 0"))
    e(f"s_mov_b32 s{sC}, {f2u(28**-0.5*math.log2(math.e)):#x}"); e(f"s_mov_b32 s{sK}, 0x3fb8aa3b")
    e(f"s_lshl_b32 s{t0}, s{sHG}, 2"); e(f"s_add_u32 s{t0}, s{t0}, s{sW}"); e(f"s_add_u32 s{t0}, s{t0}, 56"); e(f"s_mul_i32 s{t0}, s{t0}, {NT}")
    e(f"s_lshl_b32 s{t1}, s{sAT}, 3"); e(f"s_add_u32 s{t0}, s{t0}, s{t1}"); e(f"s_lshl_b32 s{t0}, s{t0}, 10"); e(f"s_add_u32 s{sO}, s{t0}, {H0}")
    e(f"s_mul_i32 s{t0}, s{sHG}, {SSTR}"); e(f"s_lshl_b32 s{t1}, s{sAT}, 9"); e(f"s_add_u32 s{t0}, s{t0}, s{t1}"); e(f"s_add_u32 s{t0}, s{t0}, {S0}")
    P.append(ATOM(f"s_cmp_eq_u32 s{sW}, 0",f"s_cselect_b32 s{t0}, s{t0}, {OOB}"))
    e(f"v_lshlrev_b32 v{vSt}, 2, v0"); e(f"v_add_u32 v{vSt}, s{t0}, v{vSt}")
    e(f"s_lshl_b32 s{t0}, s{sAT}, 2"); e(f"s_add_u32 s{t0}, s{t0}, s{sHG}"); e(f"s_add_u32 s{t0}, s{t0}, 208"); e(f"s_lshl_b32 s{t0}, s{t0}, 7")
    e("v_min_u32 v238, 1, v0"); e("v_lshlrev_b32 v238, 31, v238"); e(f"v_or_b32 v{vFl}, s{t0}, v238")
    apool=Pool(P[n0:]); del P[n0:]
    U=range(8)
    A=lambda u: 232+u; B=lambda u: 240+u; M=lambda u: 170+u; T=lambda u: 178+u; L=lambda u: 206+u
    SP=lambda u: K(u,1); SO=lambda u: Q(u,1); PQ=lambda u: Q(u,0)
    ZC=(224,225)
    def pk(d,a): return I(f"v_cvt_pk_bf16_f32 v{d}, v{a}, v{a+1}")
    def pack4(d,a,b): return [pk(d,a),pk(d+1,a+2),pk(d+2,b),pk(d+3,b+2)]
    def seq(groups,cap=2):
        f=[]; g=0; room=cap
        for mg,ins in groups:
            for x in ins:
                if g<mg: g=mg; room=cap
                if cost(x)>room: g+=1; room=cap
                f.append((g,x)); room-=cost(x)
        return f
    for k in range(14):
        buf=k%2; mf=[]
        c=lambda d: "0" if k==0 else d
        two=lambda n: [(x,tl) for x in range(n) for tl in range(2)] if k==13 else [(x,tl) for tl in range(2) for x in range(n)]
        for u,tl in two(8): d=vr(Q(u,tl),4); mf.append(mfma(d,ar(WF(buf,0,tl),4),ar(XA(buf,u+1),4),c(d)))
        for t,tl in two(9): d=vr(K(t,tl),4); mf.append(mfma(d,ar(WF(buf,1,tl),4),ar(XA(buf,t),4),c(d)))
        for tl in range(2):
            for t in range(9): d=vr(V(tl,t),4); mf.append(mfma(d,ar(XA(buf,t),4),ar(WF(buf,2,tl),4),c(d)))
        f=[]
        if k<13: f+=spread(reads(k+1),0,36)
        dm=[]; nd=0
        while nd<OPT['arate']:
            if not acur:
                if aq and aq[0][0]<=k: acur=list(aq.pop(0)[1])
                else: break
            x=acur.pop(0); dm.append(x); nd+=(x.cls=="vm")
            while acur and acur[0].cls=="valu": dm.append(acur.pop(0))
        if k==8:
            dm.append(I("v_mov_b32 v249, 0")); dm.append(I(f"buffer_load_dword v248, v249, {srd(DBG)}, 0 offen sc1","clr"))
        if OPT['apf'] and OPT['apfk']<=k<OPT['apfk']+3:
            kk=k-OPT['apfk']
            if kk==0: dm+=[I(f"buffer_load_dword a{120+j}, v226, {srd(WO)}, {['0','s36'][j]} offen","pf") for j in range(2)]
            elif OPT['apf']>1: dm+=[I(f"buffer_load_dword a{122+2*(kk-1)+j}, v227, {srd(WD)}, {['0','s37','s38','s39'][2*(kk-1)+j]} offen","pf") for j in range(2)]
        pos=0; nd=0
        for x in dm:
            if x.cls=="vm": nd+=1
            f.append((4.3*nd-(2 if x.cls=="vm" else (1 if x.cls=="valu" else -1)),x))
        if k==13:
            assert not apool.q and not aq and not acur
            for u in U:
                mf.append(mfma(vr(SP(u),4),vr(K(u,0),4),vr(Q(u,0),4),"0")); mf.append(mfma(vr(SO(u),4),vr(K(u+1,0),4),vr(Q(u,0),4),"0"))
            G=[(2*u+5,pack4(Q(u,0),Q(u,0),Q(u,1))) for u in U]
            zc=[]
            for h in range(2):
                q=[Q(4*h+x,1) for x in range(4)]
                zc.append([I(f"v_permlane16_swap_b32 v{q[2]}, v{q[3]}"),I(f"v_permlane16_swap_b32 v{q[0]}, v{q[1]}"),I(f"v_permlane32_swap_b32 v{q[1]}, v{q[3]}"),
                           I(f"v_mul_f32 v{ZC[h]}, s{sK}, v{q[3]}"),I(f"v_min_f32 v{ZC[h]}, 0x42c80000, v{ZC[h]}"),I(f"v_exp_f32 v{ZC[h]}, v{ZC[h]}"),I(f"v_add_f32 v{1+h}, 1.0, v{ZC[h]}")])
            zi=[x for pr in zip(*zc) for x in pr]
            for t in range(9):
                G.append((16+2*t+5,pack4(K(t,0),K(t,0),K(t,1))))
                if t in (1,3,5): G.append((0,zi[:2] if t==1 else (zi[2:4] if t==3 else zi[4:6])))
            G.append((0,zi[6:8]))
            for d in range(2):
                for t in range(9):
                    G.append((34+9*d+t+4,[pk(V(d,0)+2*t,V(d,t)),pk(V(d,0)+2*t+1,V(d,t)+2)]))
                    if d==0 and t in (2,4,6): G.append((0,zi[8+(t-2):10+(t-2)]))
            f+=seq(G)
        P.extend(pack(mf,f,apool if (12 if OPT['apf']>1 else 11)<=k<13 else None))
        if k<13:
            P.append(WAIT(vm=[f"w{k+2}",f"x{(k+2)//2}"],lgkm=0)); e("s_barrier"); P.extend(stamp(32+k))
    P.extend(stamp(2))
    sE=f"s[{mE}:{mE+1}]"
    for u in U:
        e(f"v_cndmask_b32 v{M(u)}, v{SP(u)+1}, v{SP(u)}, {sE}"); e(f"v_cndmask_b32 v{T(u)}, v{SP(u)+3}, v{SP(u)+2}, {sE}")
        e(f"v_cndmask_b32 v{A(u)}, v{SO(u)+1}, v{SO(u)}, {sE}"); e(f"v_cndmask_b32 v{B(u)}, v{SO(u)+3}, v{SO(u)+2}, {sE}")
        if u==0:
            e(f"v_cndmask_b32 v{M(0)}, v{M(0)}, v{vNeg}, s[{mZ}:{mZ+1}]"); e(f"v_cndmask_b32 v{T(0)}, v{T(0)}, v{vNeg}, s[{mZ}:{mZ+1}]")
        e(f"v_cndmask_b32 v{A(u)}, v{M(u)}, v{A(u)}, s[{mM0}:{mM0+1}]"); e(f"v_cndmask_b32 v{B(u)}, v{T(u)}, v{B(u)}, s[{mM1}:{mM1+1}]")
        e(f"v_max_f32 v{M(u)}, v{A(u)}, v{B(u)}")
    def allred(R,op,mid):
        H=(0,4)
        for h in H: e(f"v_permlane32_swap_b32 v{R(h)}, v{R(h+2)}"); e(f"v_permlane32_swap_b32 v{R(h+1)}, v{R(h+3)}")
        for h in H: e(f"{op} v{R(h)}, v{R(h)}, v{R(h+2)}"); e(f"{op} v{R(h+1)}, v{R(h+1)}, v{R(h+3)}")
        for h in H: e(f"v_permlane16_swap_b32 v{R(h)}, v{R(h+1)}")
        for h in H: e(f"{op} v{R(h)}, v{R(h)}, v{R(h+1)}")
        mid(H)
        for h in H: e(f"v_mov_b32 v{R(h+1)}, v{R(h)}")
        for h in H: e(f"v_permlane16_swap_b32 v{R(h)}, v{R(h+1)}")
        for h in H: e(f"v_mov_b32 v{R(h+2)}, v{R(h)}"); e(f"v_mov_b32 v{R(h+3)}, v{R(h+1)}")
        for h in H: e(f"v_permlane32_swap_b32 v{R(h)}, v{R(h+2)}"); e(f"v_permlane32_swap_b32 v{R(h+1)}, v{R(h+3)}")
    def midM(H):
        for h in H: e(f"v_mul_f32 v{M(h)}, s{sC}, v{M(h)}")
    allred(M,"v_max_f32",midM)
    for u in U:
        e(f"v_fma_f32 v{A(u)}, v{A(u)}, s{sC}, -v{M(u)}"); e(f"v_fma_f32 v{B(u)}, v{B(u)}, s{sC}, -v{M(u)}")
    for u in U:
        e(f"v_exp_f32 v{A(u)}, v{A(u)}"); e(f"v_exp_f32 v{B(u)}, v{B(u)}")
        if u: e(f"v_add_f32 v{L(u-1)}, v{A(u-1)}, v{B(u-1)}")
    e(f"v_add_f32 v{L(7)}, v{A(7)}, v{B(7)}")
    def midL(H):
        for h in H: e(f"v_rcp_f32 v{L(h)}, v{L(h)}")
        for h in H: e(f"v_rcp_f32 v{T(h)}, v{1+h//4}")
        for h in H: e(f"v_mul_f32 v{L(h)}, v{L(h)}, v{ZC[h//4]}")
        e(f"buffer_store_dword v{T(0)}, v{vSt}, {srd(WS)}, 0 offen sc1","st"); e(f"buffer_store_dword v{T(4)}, v{vSt}, {srd(WS)}, 0 offen offset:256 sc1","st")
    allred(L,"v_add_f32",midL)
    def pre(u):
        return [I(f"v_mul_f32 v{A(u)}, v{A(u)}, v{L(u)}"),I(f"v_mul_f32 v{B(u)}, v{B(u)}, v{L(u)}"),
                I(f"v_cvt_pk_bf16_f32 v{A(u)}, v{A(u)}, v{A(u)}"),I(f"v_cvt_pk_bf16_f32 v{B(u)}, v{B(u)}, v{B(u)}"),
                I(f"v_and_b32 v{PQ(u)}, v{cB0}, v{A(u)}"),I(f"v_and_b32 v{PQ(u)+1}, v{cB1}, v{B(u)}"),
                I(f"v_and_b32 v{PQ(u)+2}, v{cA0}, v{A(u)}"),I(f"v_and_b32 v{PQ(u)+3}, v{cA1}, v{B(u)}")]
    def post(u):
        return pack4(PQ(u),SP(u),SO(u))+[I(f"buffer_store_dwordx4 {vr(PQ(u),4)}, v{vH if u<4 else vH4}, {srd(WS)}, s{sO} offen offset:{(u%4)*1024} sc1","st")]
    P.extend(pre(0))
    for u in range(10):
        if u+1<8: a_=pre(u+1)
        else: a_=[]
        P.extend(a_[:2])
        if u<8: P.append(mfma(vr(SP(u),4),vr(V(0,0)+2*u,4),vr(PQ(u),4),"0"))
        P.extend(a_[2:4])
        if u<8: P.append(mfma(vr(SO(u),4),vr(V(1,0)+2*u,4),vr(PQ(u),4),"0"))
        P.extend(a_[4:])
        if u>=2: P.extend(post(u-2))
        elif u==0: e("v_mov_b32 v13, 1")
    P.extend(stamp(3))
    P.append(WAIT(vm=0))
    check_or_spin(249,0,1,DBG,248)
    e(f"buffer_atomic_add v13, v{vFl}, {srd(WS)}, 0 offen","sig")
    P.extend(stamp(4,True))
    e("s_endpgm")

def spare():
    KN=NAME+"_kernel"; sU=72; t0,t1=66,67
    e("L_spare:")
    e("s_getpc_b64 s[68:69]")
    e("L_pc:")
    e(f"s_sub_u32 s68, s68, L_pc-{KN}"); e("s_subb_u32 s69, s69, 0")
    e(f"s_lshl_b32 s70, s{sW}, 13"); e("v_lshlrev_b32 v1, 7, v0"); e("v_add_u32 v2, s70, v1")
    e(f"v_min_u32 v3, L_end-{KN}-4, v2")
    e("global_load_dword v10, v3, s[68:69]","pf")
    e("v_add_u32 v2, 32768, v2"); e(f"v_min_u32 v3, L_end-{KN}-4, v2")
    e("global_load_dword v11, v3, s[68:69]","pf")
    e(f"s_mul_i32 s{sU}, s{sW}, 10"); e(f"s_add_u32 s{sU}, s{sU}, s{sI}")
    e("s_waitcnt lgkmcnt(0)")
    e(f"s_cmp_eq_u32 s{sU}, 0"); e("s_cbranch_scc0 L_noclr")
    mksrd(WS,60,WSN); mksrd(DBG,58,256)
    e("v_lshlrev_b32 v5, 8, v0"); e("v_mov_b32 v6, 0"); e("v_lshlrev_b32 v7, 7, v0"); e("v_mov_b32 v8, 1")
    for k in range(5):
        e(f"buffer_store_dword v6, v7, {srd(WS)}, 0 offen sc1"); e("v_add_u32 v7, 8192, v7")
    e("s_waitcnt vmcnt(0)")
    e(f"buffer_store_dword v8, v5, {srd(DBG)}, 0 offen sc1")
    e("L_noclr:")
    if OPT['pf']:
        vx,vw,vq,vd,vo=1,2,3,4,5
        def oob_if(v,cmp):
            e(cmp); e(f"s_cselect_b32 s{t0}, {OOB}, 0"); e(f"v_or_b32 v{v}, s{t0}, v{v}")
        mksrd(X,40,1835008); mksrd(WU,42,1204224); mksrd(WD,52,1605632); mksrd(WO,44,401408)
        e(f"s_cmp_lt_u32 s{sU}, 24"); e(f"s_cselect_b32 s{WA}, s48, s50"); e(f"s_cselect_b32 s{WA+1}, s49, s51")
        e(f"s_mov_b32 s{WA+2}, 1605632"); e(f"s_mov_b32 s{WA+3}, 0x20000")
        e(f"s_lshl_b32 s{t0}, s{sU}, 6"); e(f"v_add_u32 v6, s{t0}, v0"); e(f"v_mul_u32_u24 v{vx}, 896, v6"); e(f"v_lshlrev_b32 v{vo}, 7, v6")
        oob_if(vx,f"s_cmp_ge_u32 s{sU}, 32"); oob_if(vo,f"s_cmp_ge_u32 s{sU}, 28")
        e(f"s_sub_u32 s{t0}, s{sU}, 8"); e(f"s_and_b32 s{t0}, s{t0}, 15"); e(f"s_lshl_b32 s{t0}, s{t0}, 2")
        e("v_lshrrev_b32 v6, 4, v0"); e(f"v_add_u32 v6, s{t0}, v6"); e(f"v_mul_u32_u24 v{vw}, 3584, v6"); e("v_and_b32 v6, 15, v0"); e(f"v_lshl_add_u32 v{vw}, v6, 8, v{vw}")
        oob_if(vw,f"s_cmp_lt_u32 s{sU}, 8")
        e(f"s_sub_u32 s{t1}, s{sU}, 24"); e(f"s_cmp_lt_u32 s{sU}, 8"); e(f"s_cselect_b32 s{t1}, s{sU}, s{t1}"); e(f"s_lshl_b32 s{t1}, s{t1}, 13")
        e("v_lshlrev_b32 v6, 7, v0"); e(f"v_add_u32 v{vq}, s{t1}, v6")
        e(f"s_sub_u32 s{t1}, s{sU}, 8"); oob_if(vq,f"s_cmp_lt_u32 s{t1}, 24")
        e(f"s_mul_i32 s{t0}, s{sU}, 9363"); e(f"s_lshr_b32 s{t0}, s{t0}, 16"); e(f"s_mul_i32 s{t1}, s{t0}, 7"); e(f"s_sub_u32 s{t1}, s{sU}, s{t1}"); e(f"s_lshl_b32 s{t1}, s{t1}, 13")
        e(f"s_and_b32 s70, s{t0}, 1"); e(f"s_mul_i32 s70, s70, {896*896}"); e(f"s_add_u32 s{t1}, s{t1}, s70")
        e(f"s_lshr_b32 s70, s{t0}, 1"); e(f"s_mul_i32 s70, s70, {128*896}"); e(f"s_add_u32 s{t1}, s{t1}, s70"); e(f"v_add_u32 v{vd}, s{t1}, v6")
        oob_if(vd,f"s_cmp_ge_u32 s{sU}, 28")
        n=[12]
        def ld(v,sr,off):
            e(f"s_mov_b32 s71, {off}"); e(f"buffer_load_dword v{n[0]}, v{v}, {srd(sr)}, s71 offen","pf"); n[0]+=1
        qr=0; dr=0
        def w2round():
            nonlocal dr
            if dr<8: ld(vd,WD,((dr%4)*256+(dr//4)*64)*896)
            elif dr<10: ld(vo,WO,(dr-8)*1792*128)
            dr+=1
        for st in range(2,14):
            if st<7: ld(vx,X,128*st)
            ld(vw,WA,(st%7)*64*3584+(st//7)*128)
            if qr<8: ld(vq,WU,1344*128+qr*131072); qr+=1
            if st>=7: w2round()
        while dr<10: w2round()
    if OPT['stamp'] and OPT['obs']:
        mksrd(WS,60,WSN); mksrd(DBG,58,256)
        P.extend(stamp(0)); e("v_mov_b32 v15, 0"); spin(15,0,1,DBG,14)
        e(f"s_lshl_b32 s66, s{sI}, 1"); e("s_add_u32 s66, s66, 3"); e("s_lshl_b32 s66, s66, 3"); e(f"s_add_u32 s66, s66, s{sW}"); e("s_lshl_b32 s66, s66, 7"); e("v_mov_b32 v13, s66")
        spin(13,0,7,WS,12); P.extend(stamp(1)); spin(13,512,7,WS,12); P.extend(stamp(2,True))
    e("L_exit:")
    e("s_endpgm")
    e("L_end:")

def main():
    global P
    head=open("cdna_kernels/"+NAME+".s.ref").read().split("; Override launch")[0]
    txt=[]; nops=0
    def ablate(o):
        a=OPT['abl']; r=[]
        for x in o:
            if a&1 and x.cls=="vm" and " lds" in x.text: continue
            if a&2 and x.op.startswith("ds_read"): continue
            if a&4 and x.op.startswith("v_mfma"): continue
            r.append(x)
        return r
    for part in ((common_prologue,ffn),(attn,),(spare,)):
        P.clear()
        if part[0] is not common_prologue:
            pass
        for f in part: f()
        o,n=finalize(list(P),part[-1].__name__); nops+=n
        if OPT['abl']: o=ablate(o)
        txt+=[x.text if x.cls=="label" else "    "+x.text for x in o]
    out=head+"; generated by gen/gen.py (hand-designed schedule, python emitter)\n; @launch grid=(256,1,1) block=(256,1,1) lds=163840\n"
    out+='.amdgcn_target "amdgcn-amd-amdhsa--gfx950"\n.text\n'
    out+=f".globl {NAME}_kernel\n.p2align 8\n.type {NAME}_kernel,@function\n{NAME}_kernel:\n"
    out+="\n".join(txt)+"\n"
    out+=f""".section .rodata,"a"
.p2align 6
.amdhsa_kernel {NAME}_kernel
  .amdhsa_next_free_vgpr 512
  .amdhsa_next_free_sgpr 102
  .amdhsa_accum_offset 256
  .amdhsa_group_segment_fixed_size 0
  .amdhsa_kernarg_size 88
  .amdhsa_user_sgpr_count 2
  .amdhsa_user_sgpr_kernarg_segment_ptr 1
  .amdhsa_system_sgpr_workgroup_id_x 1
.end_amdhsa_kernel
"""
    open(sys.argv[1],"w").write(out)
    print("instructions",len(txt),"auto nops",nops)
main()
```

```python
import sys, math
from isa import *
NAME="gated_mix__sliding_local_dilated__swiglu_ffn__prompt"
OPT=dict(stamp=0, probe=-2, pwg=100, obs=0, abl=0, outpol=0,
         rot=4, arot=7, rate=5, cap=2, capc=3, cp=18, chainA=1, w2p0=13, sAt=1, nin=3, sBs=2, pA=10,
         lead=12, pah=12, nm=3, ntt=4, hlead=9, hpah=9, arate=12, apf=0, spf=13, apfk=9, hp13=5, hwin=0, nap=24, amid=4, hin=2, gop=9)
for a in sys.argv[2:]:
    k,v=a.split("="); OPT[k]=int(v)
H0=0x100000; NT=130; S0=0x80000; SSTR=2176*4; STAMP0=0xC00000; WSN=0x1000000
OOB=0x80000000
X,WA,WU,WD,WO,WS,OUT,DBG,GW=4,8,12,16,20,24,28,32,36
def srd(b): return f"s[{b}:{b+3}]"
def vr(b,n=1): return f"v{b}" if n==1 else f"v[{b}:{b+n-1}]"
def ar(b,n=1): return f"a{b}" if n==1 else f"a[{b}:{b+n-1}]"
P=[]
def e(t,tag=None):
    x=I(t,tag); P.append(x); return x
_l=[0]
def lab(p="L"):
    _l[0]+=1; return f"{p}{_l[0]}"
def mksrd(b,src,n,bias=0):
    if bias:
        e(f"s_sub_u32 s{b}, s{src}, {bias}"); e(f"s_subb_u32 s{b+1}, s{src+1}, 0")
    else:
        e(f"s_mov_b64 s[{b}:{b+1}], s[{src}:{src+1}]")
    e(f"s_mov_b32 s{b+2}, {n+bias}"); e(f"s_mov_b32 s{b+3}, 0x20000")
def mfma(d,a,b,c): return I(f"v_mfma_f32_16x16x32_bf16 {d}, {a}, {b}, {c}")
sW,sXCD,sJ,sI=62,63,64,65
sT=[66,67,68,69,70,71]
sSTB=98
nstamp=[0]
def stamp(idx,last=False):
    if OPT['probe']!=-2:
        o=[]
        if idx==OPT['probe']: o+=[I("s_memrealtime s[94:95]"),I("s_waitcnt lgkmcnt(0)"),I("s_sub_u32 s97, s94, s96")]
        if last:
            L=lab("PR"); D=lab("PD")
            o+=[I(f"s_cmp_eq_u32 s2, {OPT['pwg']}"),I(f"s_cbranch_scc0 {D}"),I("s_add_u32 s97, s97, 4000"),I(L+":"),I("s_memrealtime s[94:95]"),I("s_waitcnt lgkmcnt(0)"),
                I("s_sub_u32 s94, s94, s96"),I("s_cmp_lt_u32 s94, s97"),I(f"s_cbranch_scc1 {L}"),I(D+":")]
        return o
    if not OPT['stamp']: return []
    if OPT['stamp']==2 and idx not in (0,1,2,3,4,5,6,7,8,9,10,11,55,56,57,58,59,61) : return []
    if OPT['stamp']==3 and idx not in (0,9) and not last: return []
    o=[I("s_memrealtime s[94:95]"),I("s_memtime s[96:97]"),I("s_waitcnt lgkmcnt(0)"),
       I(f"v_writelane_b32 v254, s94, {idx}"),I(f"v_writelane_b32 v255, s96, {idx}")]
    if last: o+=[I("v_lshlrev_b32 v253, 3, v0"),I(f"buffer_store_dwordx2 v[254:255], v253, {srd(WS)}, s{sSTB} offen","stamp")]
    return o
def spin(addrv, off, cmpval, srdb, res=12, nap=1):
    L=lab("SP"); D=lab("SD")
    e("s_mov_b32 s92, 0")
    e(L+":")
    e(f"buffer_load_dword v{res}, v{addrv}, {srd(srdb)}, 0 offen offset:{off} sc1","poll")
    e("s_waitcnt vmcnt(0)")
    e(f"v_cmp_ne_u32 vcc, {cmpval}, v{res}")
    e(f"s_cbranch_vccz {D}")
    e("s_add_u32 s92, s92, 1")
    e("s_cmp_lt_u32 s92, 0x40000")
    e(f"s_sleep {nap}")
    e(f"s_cbranch_scc1 {L}")
    e(D+":")
def check_or_spin(addrv, off, cmpval, srdb, res):
    D=lab("CK")
    e(f"v_cmp_ne_u32 vcc, {cmpval}, v{res}")
    e(f"s_cbranch_vccz {D}")
    n0=len(P)
    spin(addrv,off,cmpval,srdb,res)
    for x in P[n0:]:
        if x.cls=="vm": x.cls="raw"; x.wr=set()
        if x.op=="s_waitcnt": x.op="raw"
    e(D+":")

def common_prologue():
    e("s_cmp_ge_u32 s2, 256"); e("s_cbranch_scc1 L_exit")
    if OPT['probe']!=-2:
        e("s_memrealtime s[94:95]"); e("s_waitcnt lgkmcnt(0)"); e("s_mov_b32 s96, s94"); e("s_mov_b32 s97, 0")
    e("s_load_dwordx16 s[40:55], s[0:1], 0")
    e("s_load_dwordx4 s[56:59], s[0:1], 64")
    e("s_load_dwordx2 s[60:61], s[0:1], 80")
    e("v_lshrrev_b32 v1, 6, v0")
    e(f"s_and_b32 s{sXCD}, s2, 7"); e(f"s_lshr_b32 s{sJ}, s2, 3")
    e(f"v_readfirstlane_b32 s{sW}, v1")
    e("v_and_b32 v0, 63, v0")
    if OPT['stamp']:
        e(f"s_lshl_b32 s{sSTB}, s2, 2"); e(f"s_add_u32 s{sSTB}, s{sSTB}, s{sW}"); e(f"s_lshl_b32 s{sSTB}, s{sSTB}, 9")
        e(f"s_add_u32 s{sSTB}, s{sSTB}, {STAMP0}")
        e("v_mov_b32 v254, 0"); e("v_mov_b32 v255, 0")
    e(f"s_mov_b32 s{sI}, s{sXCD}")
    e(f"s_cmp_eq_u32 s{sJ}, 0"); e("s_cbranch_scc1 L_spare")
    e(f"s_cmp_lt_u32 s{sJ}, 9"); e("s_cbranch_scc1 L_attn")

def dma(voff,sr,soff,imm,tag): return I(f"buffer_load_dwordx4 v{voff}, {srd(sr)}, {soff} offen offset:{imm} lds",tag)

flat=lambda L:[x for it in L for x in it]
def mod7(dst,src,tmp,R=7):
    e(f"s_mul_i32 s{tmp}, s{src}, 9363"); e(f"s_lshr_b32 s{tmp}, s{tmp}, 16"); e(f"s_mul_i32 s{tmp}, s{tmp}, 7"); e(f"s_sub_u32 s{dst}, s{src}, s{tmp}")
    if R==1: e(f"s_mov_b32 s{dst}, 0")
    elif R==2: e(f"s_and_b32 s{dst}, s{dst}, 1"); e(f"s_mul_i32 s{dst}, s{dst}, 3")
    elif R==4: e(f"s_and_b32 s{dst}, s{dst}, 3"); e(f"s_lshl_b32 s{dst}, s{dst}, 1")

class Down:
    def __init__(c,**kw): c.__dict__.update(kw)
    def setup_w(c,sF0,sT2,sN,t):
        t0,t1,t2,t3=t; a,b,d=c.vt
        e(f"v_lshrrev_b32 v{a}, 3, v0"); e(f"v_and_b32 v{b}, 6, v{a}"); e(f"v_and_b32 v{d}, 7, v0"); e(f"v_xor_b32 v{b}, v{b}, v{d}")
        e(f"v_mul_u32_u24 v{a}, 896, v{a}"); e(f"v_lshl_add_u32 v{c.vW2}, v{b}, 4, v{a}")
        e(f"s_lshr_b32 s{t0}, s{sW}, 1"); e(f"s_mul_i32 s{t0}, s{t0}, 28"); e(f"s_and_b32 s{t1}, s{sW}, 1"); e(f"s_add_u32 s{t3}, s{t0}, s{t1}")
        e(f"s_lshl_b32 s{t2}, s{sN}, 7"); e(f"v_add_u32 v{c.vW2}, s{t2}, v{c.vW2}")
        e(f"s_add_u32 s{t0}, s{sT2}, s{sN}"); e(f"s_and_b32 s{t0}, s{t0}, 3"); e(f"s_sub_u32 s{c.sWr3}, 3, s{t0}")
        e(f"s_lshl_b32 s{t1}, s{sW}, 2"); e(f"s_add_u32 s{t2}, s{t0}, s{t1}")
        e(f"s_mul_i32 s{t0}, s{t2}, {28*896}"); e(f"v_add_u32 v{c.vWo}, s{t0}, v{c.vW2}")
        e(f"s_add_u32 s{t0}, s{t2}, 56"); e(f"s_mul_i32 s{t0}, s{t0}, {NT}"); e(f"s_add_u32 s{t0}, s{t0}, s{sF0}"); e(f"s_lshl_b32 s{t0}, s{t0}, 10"); e(f"s_add_u32 s{c.sHO}, s{t0}, {H0}")
        e(f"s_mov_b32 s{c.sNWo}, {-3*28*896}"); e(f"s_mov_b32 s{c.sNHo}, {-3*NT*1024}")
        e(f"s_lshl_b32 s{t0}, s{sT2}, 1"); e(f"s_add_u32 s{t0}, s{t0}, s{sN}")
        mod7(t0,t0,t1); e(f"s_sub_u32 s{c.sWr2}, 6, s{t0}"); e(f"s_lshl_b32 s{t0}, s{t0}, 2"); e(f"s_add_u32 s{t3}, s{t3}, s{t0}")
        e(f"s_mul_i32 s{t1}, s{t3}, {32*896}"); e(f"v_add_u32 v{c.vW2}, s{t1}, v{c.vW2}")
        e(f"s_mov_b32 s{c.sNW2}, {-6*114688}"); e(f"s_mov_b32 s{c.sNH}, {-24*NT*1024}")
        e(f"s_mul_i32 s{t0}, s{t3}, {NT}"); e(f"s_add_u32 s{t0}, s{t0}, s{sF0}"); e(f"s_lshl_b32 s{t0}, s{t0}, 10"); e(f"s_add_u32 s{c.sHld}, s{t0}, {H0}")
        for j in range(1,4): e(f"s_mov_b32 s{c.sW2o[j]}, {6144*j}")
    def setup_lane(c,dst,sBases,t):
        t0=t[0]; a,b,d=c.vt
        e(f"v_bfe_u32 v{a}, v0, 4, 1"); e(f"v_bfe_u32 v{b}, v0, 2, 2"); e(f"v_lshl_add_u32 v{a}, v{a}, 2, v{b}")
        e(f"v_lshrrev_b32 v{b}, 5, v0"); e(f"v_lshlrev_b32 v{b}, 10, v{b}"); e(f"v_lshl_add_u32 v{b}, v{a}, 7, v{b}")
        e(f"v_and_b32 v{d}, 3, v0"); e(f"v_lshl_add_u32 v{b}, v{d}, 3, v{b}"); e(f"v_lshrrev_b32 v{a}, 1, v{a}")
        for q in range(4):
            e(f"s_add_u32 s{t0}, s{sW}, {q}"); e(f"s_and_b32 s{t0}, s{t0}, 3")
            e(f"v_xor_b32 v{d}, s{t0}, v{a}"); e(f"v_lshl_add_u32 v{d}, v{d}, 5, v{b}")
            for k,sb in enumerate(sBases): e(f"v_add_u32 v{dst[k][q]}, s{sb}, v{d}")
    def setup_io(c,sF0,sN,t):
        t0,t1,t2,t3=t; a,b,d=c.vt; N=c.NTT
        e(f"v_lshrrev_b32 v{a}, 5, v0")
        e(f"s_add_u32 s{t1}, s{sF0}, {N-1}")
        e(f"s_mul_i32 s{t0}, s{sF0}, 13108"); e(f"s_lshr_b32 s{t0}, s{t0}, 16"); e(f"s_mul_i32 s{t2}, s{t1}, 13108"); e(f"s_lshr_b32 s{t2}, s{t2}, 16")
        e(f"s_sub_u32 s{t2}, s{t2}, s{t0}"); e(f"s_lshl_b32 s{t2}, s{t2}, 10"); e(f"s_lshl_b32 s{t0}, s{t0}, 3"); e(f"s_add_u32 s{t0}, s{t0}, s{sW}"); e(f"s_lshl_b32 s{t0}, s{t0}, 7")
        e(f"v_mul_u32_u24 v{b}, s{t2}, v{a}"); e(f"v_add_u32 v{c.vPA}, s{t0}, v{b}")
        e(f"s_lshr_b32 s{t0}, s{sF0}, 3"); e(f"s_lshr_b32 s{t2}, s{t1}, 3"); e(f"s_min_u32 s{t2}, s{t2}, 15")
        e(f"s_sub_u32 s{t2}, s{t2}, s{t0}"); e(f"s_lshl_b32 s{t2}, s{t2}, 9"); e(f"s_lshl_b32 s{t0}, s{t0}, 2"); e(f"s_add_u32 s{t0}, s{t0}, s{sW}"); e(f"s_add_u32 s{t0}, s{t0}, 208"); e(f"s_lshl_b32 s{t0}, s{t0}, 7")
        e(f"v_mul_u32_u24 v{b}, s{t2}, v{a}"); e(f"v_add_u32 v{c.vPO}, s{t0}, v{b}")
        e(f"s_lshl_b32 s{t0}, s{sF0}, 4"); e(f"v_and_b32 v{a}, 15, v0"); e(f"v_add_u32 v{a}, s{t0}, v{a}")
        e(f"s_mul_i32 s{t1}, s{sW}, {SSTR}"); e(f"s_add_u32 s{t1}, s{t1}, {S0}"); e(f"v_lshlrev_b32 v{c.vSA}, 2, v{a}"); e(f"v_add_u32 v{c.vSA}, s{t1}, v{c.vSA}")
        e(f"v_mul_u32_u24 v{a}, 896, v{a}"); e(f"v_lshrrev_b32 v{b}, 4, v0"); e(f"v_lshl_add_u32 v{a}, v{b}, 3, v{a}")
        e(f"s_lshl_b32 s{t1}, s{sN}, 7"); e(f"s_lshl_b32 s{t2}, s{sW}, 5"); e(f"s_add_u32 s{t1}, s{t1}, s{t2}"); e(f"v_add_u32 v{c.vO}, s{t1}, v{a}")
        base,ws,qs=c.red
        e(f"s_mul_i32 s{t0}, s{sW}, {ws}"); e(f"s_add_u32 s{t0}, s{t0}, {base}"); e(f"v_add_u32 v{c.vRW}, s{t0}, v{c.vH}")
        for q in range(1,4):
            e(f"s_sub_u32 s{t0}, s{sW}, {q}"); e(f"s_and_b32 s{t0}, s{t0}, 3"); e(f"s_mul_i32 s{t0}, s{t0}, {ws}"); e(f"s_add_u32 s{t0}, s{t0}, {base+(q-1)*qs}")
            e(f"v_add_u32 v{c.vRR+q-1}, s{t0}, v{c.vH}")
        for j in range(1,N): e(f"s_mov_b32 s{c.sRow+j-1}, {16*j*896}")
    def w2dma(c,b):
        sg,off=c.m0(b)
        o=[[dma(c.vW2,WD if b<14 else WO,"0" if pi==0 else f"s{c.sW2o[pi]}",pi*1024,f"b{b}")] for pi in range(4)]
        o[0].insert(0,I(f"s_add_u32 m0, s{sg}, {off}"))
        if b==13: o[-1].append(I(f"v_mov_b32 v{c.vW2}, v{c.vWo}"))
        elif b<13:
            o[-1]+=[ATOM(f"s_cmp_eq_u32 s{c.sWr2}, {b%7}",f"s_cselect_b32 s{c.sD}, s{c.sNW2}, 114688"),I(f"v_add_u32 v{c.vW2}, s{c.sD}, v{c.vW2}")]
            if b==6: o[-1].append(I(f"v_add_u32 v{c.vW2}, {64*896}, v{c.vW2}"))
        elif b<17: o[-1]+=[ATOM(f"s_cmp_eq_u32 s{c.sWr3}, {b-14}",f"s_cselect_b32 s{c.sD}, s{c.sNWo}, {28*896}"),I(f"v_add_u32 v{c.vW2}, s{c.sD}, v{c.vW2}")]
        return o
    def AW(c,b,q,a=None):
        NM=OPT['nm']
        if b<8: r=c.aSt+16*b+4*q
        elif b>=18-NM and NM>1: r=c.aSt+16*(b-(18-NM))+4*q
        else:
            r=c.AF(b%2,q); return vr(r,4) if a is None else vr(r+2*a,2)
        return ar(r,4) if a is None else ar(r+2*a,2)
    def treads(c,b,rd=None):
        base,off=(rd or c.rd)(b)
        return [I(f"ds_read_b64_tr_b16 {c.AW(b,q,a)}, v{base[q]} offset:{off+a*2048}") for q in range(4) for a in range(2)]
    def HS(c,b,t):
        k=b%c.NSL; na=c.nAS
        return ar(c.aH+(k*c.NTT+t)*4,4) if k<na else vr(c.vHS+((k-na)*c.NTT+t)*4,4)
    def hload(c,b):
        o=[[I(f"buffer_load_dwordx4 {c.HS(b,t)}, v{c.vH if t<4 else c.vH4}, {srd(WS)}, s{c.sHld} offen offset:{(t%4)*1024} sc1",f"h{b}_{t}")] for t in range(c.NTT)]
        if b==13: o[-1].append(I(f"s_mov_b32 s{c.sHld}, s{c.sHO}"))
        elif b<13:
            o[-1]+=[ATOM(f"s_cmp_eq_u32 s{c.sWr2}, {b%7}",f"s_cselect_b32 s{c.sD}, s{c.sNH}, {4*NT*1024}",f"s_add_u32 s{c.sHld}, s{c.sHld}, s{c.sD}")]
            if b==6: o[-1].append(I(f"s_add_u32 s{c.sHld}, s{c.sHld}, {2*NT*1024}"))
        elif b<17: o[-1]+=[ATOM(f"s_cmp_eq_u32 s{c.sWr3}, {b-14}",f"s_cselect_b32 s{c.sD}, s{c.sNHo}, {NT*1024}",f"s_add_u32 s{c.sHld}, s{c.sHld}, s{c.sD}")]
        return o
    def poll(c,tag):
        av,off={"pollA":(c.vPA,0),"pollB":(c.vPA,512),"pollO":(c.vPO,0)}[tag]
        return I(f"buffer_load_dword v{c.vPoll}, v{av}, {srd(WS)}, 0 offen offset:{off} sc1",tag)
    def main(c,WQ,LEAD,PAH,so=0):
        N=c.NTT; NM=OPT['nm']; G0=(18-NM)*N; GT=18*N
        P.append(WAIT(vm=["pollA"])); check_or_spin(c.vPA,0,7,WS,c.vPoll)
        P.extend(stamp(so+11))
        gb=lambda g: divmod(g,N) if g<G0 else (18-NM+(g-G0)%NM,(g-G0)//NM)
        HL=flat([c.hload(b) for b in range(18)])
        HL[G0:]=[HL[N*gb(g)[0]+gb(g)[1]] for g in range(G0,GT)]
        if NM>1:
            for g in range(G0,GT):
                b,t=gb(g); x=HL[g][0]; HL[g]=[I(x.text.replace(f"s{c.sHld} offen",f"s{44+b-(18-NM)} offen"),x.tag)]
            for b in range(18-NM,18):
                HL[G0-1].append(I(f"s_mov_b32 s{44+b-(18-NM)}, s{c.sHld}"))
                if b<17: HL[G0-1]+=c.hload(b)[-1][1:]
        for l in range(LEAD): P.extend(HL[l])
        P.extend(stamp(so+5))
        hn=LEAD
        gates={7*N-LEAD:("pollB",c.vPA,512,7,6), 14*N-LEAD:("pollO",c.vPO,0,4,7)}
        polls={max(0,g-PAH):v[0] for g,v in gates.items()}
        RQ={}
        for b in range(8,18):
            g0=N*(b-1) if b<=18-NM else N*(18-NM-1)-N*(b-(18-NM))
            per=-(-8//N)
            for k,x in enumerate(c.treads(b)): RQ.setdefault(g0+k//per,[]).append((1.2+(k%per)*2.7/per,x,f"b{b}"))
        base,ws,qs=c.red
        wr=lambda q,t: I(f"ds_write_b128 v{c.vRW}, {vr(c.ACC(q,t),4)} offset:{(q-1)*qs+t*1024}")
        for g in range(GT):
            b,t=gb(g)
            mf=[mfma(vr(c.ACC(q,t),4),c.AW(b,q),c.HS(b,t),"0" if b==0 else vr(c.ACC(q,t),4)) for q in range(4)]
            tags=[f"h{b}_{t}"]+[x[2] for x in RQ.get(g,[])]
            if g in gates: tags.append(gates[g][0])
            P.append(WAIT(vm=tags,lgkm=0 if (g%N==0 and g<=G0) else None))
            if g in gates:
                tg,av,off,val,si=gates[g]
                check_or_spin(av,off,val,WS,c.vPoll); P.extend(stamp(so+si))
            if g%N==0 and not so: P.extend(stamp(12+g//N))
            f=[]
            if g in polls: f.append((2.5,c.poll(polls[g])))
            nl=0
            if hn<GT:
                it=HL[hn]; hn+=1; nl=1; f.append((0,it[0])); f+=[(1,x) for x in it[1:]]
            elif g+LEAD<GT+N: f.append((0,I(f"buffer_load_dword v{c.vS+g+LEAD-GT}, v{c.vSA}, {srd(WS)}, 0 offen offset:{(g+LEAD-GT)*64} sc1","s")))
            if WQ and WQ[0][0]<=g:
                seen=False
                for x in WQ.pop(0)[1]:
                    if x.cls=="vm": seen=True; f.append((2,x))
                    else: f.append((3 if seen else 1.5,x))
            f+=[(p_,x) for p_,x,_ in RQ.get(g,[])]
            if g>=G0 and t>0:
                k=(g-G0)%NM
                for q in range(1,4):
                    if (q-1)*NM//3==k: f.append((q-0.1 if NM==1 else (3 if k==0 else 1),wr(q,t-1)))
            P.extend(pack(mf,f))
        assert not WQ
        for q in range(1,4): P.append(wr(q,N-1))
        P.extend(stamp(so+8))
        P.append(WAIT(vm=["s"],lgkm=0)); e("s_barrier")
        R=lambda q,t: c.vRT+((q-1)*N+t)*4
        for t in range(N):
            for q in range(1,4): e(f"ds_read_b128 {vr(R(q,t),4)}, v{c.vRR+q-1} offset:{t*1024}")
        for t in range(N):
            e(f"s_waitcnt lgkmcnt({3*(N-1-t)})")
            d=c.ACC(0,t)
            for r in (0,2): e(f"v_pk_add_f32 {vr(R(1,t)+r,2)}, {vr(R(1,t)+r,2)}, {vr(R(2,t)+r,2)}")
            for r in (0,2): e(f"v_pk_add_f32 {vr(d+r,2)}, {vr(d+r,2)}, {vr(R(3,t)+r,2)}")
            for r in (0,2): e(f"v_pk_add_f32 {vr(d+r,2)}, {vr(d+r,2)}, {vr(R(1,t)+r,2)}")
            for r in range(4): e(f"v_mul_f32 v{d+r}, v{c.vS+t}, v{d+r}")
            e(f"v_cvt_pk_bf16_f32 v{d}, v{d}, v{d+1}"); e(f"v_cvt_pk_bf16_f32 v{d+1}, v{d+2}, v{d+3}")
            e(f"buffer_store_dwordx2 {vr(d,2)}, v{c.vO}, {srd(OUT)}, {'0' if t==0 else 's%d'%(c.sRow+t-1)} offen{['',' sc1',' nt'][OPT['outpol']]}","out")
        P.extend(stamp(so+9,True))
        e("s_endpgm")

def ffn():
    sSL,sTT,sT2,sN=72,73,74,75
    sSeg1,sSeg2,sXb=76,77,78
    sXo=[None,79,80,81,82]
    sW1o=83
    sHst,sHld,sC=87,88,89
    vX,vW,vXR,vWR,vW2,vH,vH4,vFl,vOne,vPoll,vPA=1,2,(3,4),(5,6),7,8,9,10,11,12,13
    ACC=lambda p,q,t: 16+80*p+(q*5+t)*4
    def XF(i): return vr(176+4*i,4) if i<6 else ar(4*(i-6),4)
    AF=lambda buf,q: 200+16*buf+4*q
    t0,t1,t2_,t3=sT[:4]
    e(f"s_lshr_b32 s{t1}, s{sXCD}, 2"); e(f"s_add_u32 s{sI}, s{t1}, 8")
    e(f"s_and_b32 s{t0}, s{sXCD}, 3"); e(f"s_cmp_eq_u32 s{t0}, 3"); e(f"s_cselect_b32 s{t0}, 10, 9")
    e(f"s_cmp_lt_u32 s{sJ}, s{t0}"); e("s_cbranch_scc1 L_spare")
    e(f"s_sub_u32 s{sI}, s{sJ}, s{t0}")
    e(f"s_mul_i32 s{t0}, s{sXCD}, 23"); e(f"s_add_u32 s{sI}, s{sI}, s{t0}")
    e(f"s_sub_u32 s{sI}, s{sI}, s{t1}")
    e(f"s_mul_i32 s{sT2}, s{sI}, 9363"); e(f"s_lshr_b32 s{sT2}, s{sT2}, 16")
    e(f"s_mul_i32 s{t0}, s{sT2}, 7"); e(f"s_sub_u32 s{sN}, s{sI}, s{t0}")
    e(f"s_sub_u32 s{t0}, s{sI}, 98"); e(f"s_mul_i32 s{t1}, s{t0}, 10923"); e(f"s_lshr_b32 s{t1}, s{t1}, 16")
    e(f"s_mul_i32 s{t2_}, s{t1}, 6"); e(f"s_sub_u32 s{t0}, s{t0}, s{t2_}"); e(f"s_add_u32 s{t0}, s{t0}, 7")
    e(f"s_cmp_lt_u32 s{sI}, 98"); e(f"s_cselect_b32 s{sSL}, s{sT2}, s{t1}"); e(f"s_cselect_b32 s{sTT}, s{sN}, s{t0}")
    e("v_lshrrev_b32 v14, 3, v0")
    e("v_and_b32 v15, 7, v0")
    e(f"s_and_b32 s{t0}, s{sW}, 1"); e(f"s_lshl_b32 s{t1}, s{t0}, 2")
    e("v_lshrrev_b32 v12, 1, v14"); e(f"v_or_b32 v13, s{t1}, v12"); e("v_xor_b32 v13, v13, v15")
    e(f"s_mul_i32 s{t2_}, s{sTT}, 160"); e(f"s_lshl_b32 s{t3}, s{sW}, 3"); e(f"s_add_u32 s{t2_}, s{t2_}, s{t3}")
    e(f"v_add_u32 v{vX}, s{t2_}, v14"); e(f"v_mul_u32_u24 v{vX}, 896, v{vX}"); e(f"v_lshl_add_u32 v{vX}, v13, 4, v{vX}")
    e(f"s_lshl_b32 s{t0}, s{t0}, 2")
    e("v_and_b32 v13, 2, v14"); e(f"v_or_b32 v13, s{t0}, v13"); e("v_xor_b32 v13, v13, v15")
    e(f"v_add_u32 v{vW}, s{t3}, v14"); e(f"v_mul_u32_u24 v{vW}, 3584, v{vW}"); e(f"v_lshl_add_u32 v{vW}, v13, 4, v{vW}")
    e(f"s_lshl_b32 s{t0}, s{sSL}, 8"); e(f"v_add_u32 v{vW}, s{t0}, v{vW}")
    sWr,sD,sNX,sNW,sWr2,sNW2,sNH=90,91,93,99,100,101,3
    e(f"s_lshl_b32 s{t0}, s{sSL}, 1"); e(f"s_add_u32 s{t0}, s{sTT}, s{t0}"); mod7(t0,t0,t1,OPT['rot'])
    e(f"s_sub_u32 s{sWr}, 6, s{t0}"); e(f"s_lshl_b32 s{t1}, s{t0}, 7"); e(f"v_add_u32 v{vX}, s{t1}, v{vX}")
    e(f"s_mul_i32 s{t1}, s{t0}, {64*3584}"); e(f"v_add_u32 v{vW}, s{t1}, v{vW}")
    e(f"s_mov_b32 s{sNX}, -768"); e(f"s_mov_b32 s{sNW}, {-6*64*3584}")
    e(f"s_lshl_b32 s{sSeg2}, s{sW}, 12")
    e(f"s_lshl_b32 s{sXb}, s{sW}, 10"); e(f"s_add_u32 s{sXb}, s{sXb}, 65536")
    for j in range(1,5): e(f"s_mov_b32 s{sXo[j]}, {32*j*896}")
    e(f"s_mov_b32 s{sW1o}, {32*3584-1024}")
    for b,n in ((X,1835008),(WA,1605632),(WU,1605632+2048)):
        e(f"s_mov_b32 s{b+2}, {n}"); e(f"s_mov_b32 s{b+3}, 0x20000")
    e("s_waitcnt lgkmcnt(0)")
    e(f"s_mov_b64 s[{X}:{X+1}], s[40:41]"); e(f"s_mov_b64 s[{WA}:{WA+1}], s[48:49]")
    e(f"s_sub_u32 s{WU}, s50, 2048"); e(f"s_subb_u32 s{WU+1}, s51, 0")
    P.extend(stamp(0))
    def xdma(c):
        o=[]
        for j in range(5):
            o.append([I(f"s_add_u32 m0, s{sXb}, {(c%4)*20480+j*4096}"), dma(vX,X,"0" if j==0 else f"s{sXo[j]}",0,f"x{c}")])
        o[-1]+=[ATOM(f"s_cmp_eq_u32 s{sWr}, {c}",f"s_cselect_b32 s{sD}, s{sNX}, 128"),I(f"v_add_u32 v{vX}, s{sD}, v{vX}")]
        return o
    def wdma(s):
        o=[]
        for j in range(2):
            for m in range(2):
                o.append([dma(vW,WA if m==0 else WU,"0" if j==0 else f"s{sW1o}",(2*m+j)*1024,f"w{s}")])
        o[0].insert(0,I(f"s_add_u32 m0, s{sSeg2}, {(s%4)*16384}"))
        o[-1]+=[ATOM(f"s_cmp_eq_u32 s{sWr}, {s%7}",f"s_cselect_b32 s{sD}, s{sNW}, {64*3584}"),I(f"v_add_u32 v{vW}, s{sD}, v{vW}")]
        if s==6: o[-1].append(I(f"v_add_u32 v{vW}, 128, v{vW}"))
        return o
    NTT=OPT['ntt']; R1=[176,177,178,179]; R2=[180,181,182,183]; sF0=39
    LOC=[((sSeg1,b*4096),13 if b<2 else 17) for b in range(6)]+[((sSeg2,((j+2)%4)*16384),21+2*j) for j in range(4)]
    loc=lambda b: LOC[b%10][0]
    D=Down(NTT=NTT,vt=(196,197,198),vW2=vW2,vWo=248,vH=vH,vH4=vH4,vPoll=vPoll,vPA=vPA,vPO=187,vSA=188,vO=189,vRW=190,vRR=184,vS=192,vRT=96,
           sW2o=[None,84,85,86],sWr2=sWr2,sNW2=sNW2,sNH=sNH,sD=sD,sWr3=38,sNWo=36,sNHo=37,sHld=sHld,sHO=sT[5],sRow=40,
           m0=loc,rd=lambda b:(R1 if loc(b)[0]==sSeg1 else R2,loc(b)[1]),red=(65536,24576,5120),
           ACC=lambda q,t:ACC(0,q,t),AF=AF,aSt=0,aH=128,nAS=128//(4*NTT),NSL=128//(4*NTT)+(4 if NTT==5 else 0),vHS=96)
    for s in range(2):
        P.extend(flat(xdma(s))); P.extend(flat(wdma(s)))
    mksrd(WS,60,WSN); mksrd(WD,52,1605632); mksrd(WO,44,401408); mksrd(OUT,56,1835008); mksrd(DBG,58,256)
    e("v_lshrrev_b32 v14, 4, v0")
    e("v_and_b32 v15, 15, v0")
    e("v_lshrrev_b32 v12, 1, v15"); e("v_xor_b32 v12, v12, v14"); e("v_lshlrev_b32 v12, 4, v12")
    e("v_lshl_add_u32 v12, v15, 7, v12")
    e(f"s_lshr_b32 s{t0}, s{sW}, 1"); e(f"s_mul_i32 s{t0}, s{t0}, 10240"); e(f"s_add_u32 s{t0}, s{t0}, 65536")
    e(f"v_add_u32 v{vXR[0]}, s{t0}, v12"); e(f"v_xor_b32 v{vXR[1]}, 64, v{vXR[0]}")
    e("v_bfe_u32 v12, v0, 2, 2")
    e("v_lshrrev_b32 v13, 1, v12"); e("v_and_b32 v15, 1, v14"); e("v_lshlrev_b32 v15, 1, v15"); e("v_or_b32 v13, v13, v15")
    e(f"s_and_b32 s{t0}, s{sW}, 1"); e(f"s_lshl_b32 s{t0}, s{t0}, 1"); e(f"v_xor_b32 v13, s{t0}, v13"); e("v_lshlrev_b32 v13, 5, v13")
    e("v_lshl_add_u32 v13, v14, 12, v13"); e("v_lshl_add_u32 v13, v12, 7, v13")
    e("v_and_b32 v15, 3, v0"); e(f"v_lshl_add_u32 v{vWR[0]}, v15, 3, v13"); e(f"v_xor_b32 v{vWR[1]}, 32, v{vWR[0]}")
    e(f"s_mul_i32 s{sF0}, s{sT2}, {NTT}")
    D.setup_w(sF0,sT2,sN,sT[:4])
    e(f"s_lshl_b32 s{t2_}, s{sTT}, 1"); e(f"s_lshr_b32 s{t1}, s{sW}, 1"); e(f"s_add_u32 s{t2_}, s{t2_}, s{t1}")
    e(f"s_lshl_b32 s{t0}, s{sSL}, 2"); e(f"s_and_b32 s{t3}, s{sW}, 1"); e(f"s_add_u32 s{t0}, s{t0}, s{t3}"); e(f"s_mul_i32 s{t0}, s{t0}, {NT}")
    e(f"s_mul_i32 s{t1}, s{t2_}, 5"); e(f"s_add_u32 s{t0}, s{t0}, s{t1}")
    e(f"s_lshl_b32 s{t0}, s{t0}, 10"); e(f"s_add_u32 s{sHst}, s{t0}, {H0}")
    e(f"s_lshl_b32 s{t0}, s{t2_}, 3"); e(f"s_add_u32 s{t0}, s{t0}, s{t3}"); e(f"s_cmp_ge_u32 s{sSL}, 7"); e(f"s_cselect_b32 s{t1}, 2, 0"); e(f"s_add_u32 s{t0}, s{t0}, s{t1}"); e(f"s_lshl_b32 s{t0}, s{t0}, 7")
    e(f"v_mov_b32 v{vFl}, {OOB}"); e(f"v_mov_b32 v12, s{t0}"); e("v_cmp_eq_u32 vcc, 0, v0")
    e(f"v_lshlrev_b32 v{vH}, 4, v0"); e(f"v_add_u32 v{vH4}, 4096, v{vH}")
    e(f"v_cndmask_b32 v{vFl}, v{vFl}, v12, vcc")
    e(f"s_mul_i32 s{sSeg1}, s{sW}, 24576"); e(f"s_add_u32 s{sSeg1}, s{sSeg1}, 65536")
    e(f"s_mov_b32 s{sC}, 0xbfb8aa3b")
    e(f"v_mov_b32 v{vOne}, 1")
    e("v_mov_b32 v15, 0")
    e(f"s_or_b32 s{t0}, s{sI}, s{sW}"); e(f"v_or_b32 v250, s{t0}, v0"); e("v_lshlrev_b32 v250, 8, v250")
    def reads(Pn):
        p,s,h=Pn//14,Pn//2,Pn%2
        CH=(p==1 or OPT['chainA'])
        o=[]
        for ks in ((0,1) if CH else (h,)):
            if p==0 and (h==0 or not CH):
                if s==3: o.append(I(f"v_add_u32 v{vXR[ks]}, 61440, v{vXR[ks]}"))
                for t in range(5): o.append(I(f"ds_read_b128 {XF((2*s+ks)*5+t)}, v{vXR[ks]} offset:{(s%4 if s!=3 else 0)*20480+t*2048}"))
                if s==3: o.append(I(f"v_subrev_u32 v{vXR[ks]}, 61440, v{vXR[ks]}"))
        tr=[]
        for j in range(4):
            if CH: m,ks,tl=j>>1,j&1,h
            else: m,ks,tl=j>>1,h,j&1
            for a in range(2):
                tr.append(I(f"ds_read_b64_tr_b16 {vr(AF(h,j)+2*a,2)}, v{vWR[tl]} offset:{(s%4)*16384+(2*m+ks)*1024+a*512}"))
        return tr[:4]+o+tr[4:]
    def epi(p,t):
        T=[232+k for k in range(8)]; O=240+4*(t%2)
        G=[ACC(p,k>>2,t)+(k&3) for k in range(8)]; U=[ACC(p,2+(k>>2),t)+(k&3) for k in range(8)]
        o=[]
        st=I(f"buffer_store_dwordx4 {vr(O,4)}, v{vH if t<4 else vH4}, {srd(WS)}, s{sHst} offen offset:{(t%4)*1024} sc1",f"st{p}")
        if p==1:
            for k in range(0,8,2): o.append(I(f"v_pk_mul_f32 {vr(T[k],2)}, {vr(G[k],2)}, s[48:49]"))
            for k in range(8):
                o.append(I(f"v_exp_f32 v{T[k]}, v{T[k]}"))
                if k%2==0: o.append(I(f"v_pk_mul_f32 {vr(U[k],2)}, {vr(G[k],2)}, {vr(U[k],2)}"))
            for k in range(0,8,2): o.append(I(f"v_pk_add_f32 {vr(T[k],2)}, {vr(T[k],2)}, s[50:51]"))
            for k in range(8):
                o.append(I(f"v_rcp_f32 v{G[k]}, v{T[k]}"))
                if k>=3 and k%2==1:
                    o.append(I(f"v_pk_mul_f32 {vr(U[k-3],2)}, {vr(G[k-3],2)}, {vr(U[k-3],2)}"))
                    if k>=5: o.append(I(f"v_cvt_pk_bf16_f32 v{O+(k-5)//2}, v{U[k-5]}, v{U[k-4]}"))
            o.append(I(f"v_cvt_pk_bf16_f32 v{O+2}, v{U[4]}, v{U[5]}"))
            o.append(I(f"v_pk_mul_f32 {vr(U[6],2)}, {vr(G[6],2)}, {vr(U[6],2)}"))
            o.append(I(f"v_cvt_pk_bf16_f32 v{O+3}, v{U[6]}, v{U[7]}"))
            return o+[st]
        for k in range(8): o.append(I(f"v_mul_f32 v{T[k]}, s{sC}, v{G[k]}"))
        for k in range(8):
            o.append(I(f"v_exp_f32 v{T[k]}, v{T[k]}")); o.append(I(f"v_mul_f32 v{U[k]}, v{G[k]}, v{U[k]}"))
        for k in range(8): o.append(I(f"v_add_f32 v{T[k]}, 1.0, v{T[k]}"))
        for k in range(8):
            o.append(I(f"v_rcp_f32 v{G[k]}, v{T[k]}"))
            if k>=1: o.append(I(f"v_mul_f32 v{U[k-1]}, v{G[k-1]}, v{U[k-1]}"))
            if k>=3 and k%2==1: o.append(I(f"v_cvt_pk_bf16_f32 v{O+(k-3)//2}, v{U[k-3]}, v{U[k-2]}"))
        o.append(I(f"v_mul_f32 v{U[7]}, v{G[7]}, v{U[7]}"))
        o.append(I(f"v_cvt_pk_bf16_f32 v{O+3}, v{U[6]}, v{U[7]}"))
        o.append(I(f"buffer_store_dwordx4 {vr(O,4)}, v{vH if t<4 else vH4}, {srd(WS)}, s{sHst} offen offset:{(t%4)*1024} sc1",f"st{p}"))
        return o
    D.setup_lane([R1,R2],[sSeg1,sSeg2],sT[:4]); D.setup_io(sF0,sN,sT[:4])
    e(f"s_mov_b32 s48, s{sC}"); e(f"s_mov_b32 s49, s{sC}"); e("s_mov_b32 s50, 1.0"); e("s_mov_b32 s51, 1.0")
    e(f"s_add_u32 s{t0}, s{sSeg2}, 147456"); e(f"v_add_u32 v249, s{t0}, v{vH}")
    for q in range(4): e(f"ds_write_b128 v249, {vr(176+4*q,4)} offset:{q*1024}")
    unpark=[I(f"ds_read_b128 {vr(176+4*q,4)}, v249 offset:{q*1024}") for q in range(4)]
    P.append(WAIT(vm=["x0","w0"],lgkm=0)); e("s_barrier")
    P.extend(stamp(1))
    P.extend(reads(0)); P.append(WAIT(lgkm=0))
    pool=Pool(flat([epi(0,t) for t in range(5)]))
    dq=[]
    for s in range(2,14):
        if s<=6: dq.append((max(0,2*(s-4)+1),xdma(s)))
        dq.append((max(0,2*(s-4)+1),wdma(s)))
        if s==8: dq.append((0,[[I(f"buffer_load_dword v14, v15, {srd(DBG)}, 0 offen sc1","clr")]]))
    w2q=[(max(OPT['w2p0'],LOC[b][1]),D.w2dma(b)) for b in range(10)]
    cur=[]
    for Pn in range(28):
        p,s,h=Pn//14,Pn//2,Pn%2
        CH=(p==1 or OPT['chainA'])
        mf=[]
        for jq in range(2 if CH else 4):
            for t in range(5):
                for ks in ((0,1) if CH else (h,)):
                    q = (2*jq+h) if CH else jq
                    j = (2*jq+ks) if CH else jq
                    d=vr(ACC(p,q,t),4)
                    mf.append(mfma(d,vr(AF(h,j),4),XF((2*(s%7)+ks)*5+t),"0" if (s%7==0 and ks==0) else d))
        f=[]
        if Pn<27:
            rd=reads(Pn+1); f+=spread(rd,0,min(15,max(8,len(rd))))
        items=[]
        while len(items)<OPT['rate']:
            if not cur:
                if dq and dq[0][0]<=Pn: cur=dq.pop(0)[1]
                elif w2q and w2q[0][0]<=Pn: cur=w2q.pop(0)[1]
                else: break
            items.append(cur.pop(0))
        n=len(items)
        for k,it in enumerate(items):
            pos=1+k*19/max(n,5)
            for x in it:
                f.append((pos-1 if x.cls=="salu" else (pos+1 if x.cls=="valu" else pos),x))
        if Pn==16: f+=spread(unpark,8,12)
        if Pn==OPT['gop'] and NTT==4: f.append((19,I(f"buffer_store_dword v{vOne}, v250, {srd(DBG)}, 0 offen offset:4 sc1","go")))
        P.extend(pack(mf,f,pool if p==1 else None,(OPT['capc'] if Pn<OPT['cp'] else OPT['cap']),lo=(2 if Pn==14 else 0)))
        if Pn==13: P.extend(stamp(2))
        if h==0:
            P.append(WAIT(vm=[f"w{s+1}",f"x{s+1}"],lgkm=0)); e("s_barrier")
            P.extend(stamp(32+s))
        elif Pn<27: P.append(WAIT(lgkm=0))
    assert not dq
    print("left: epiA ops",len(pool.q),"w2 items",len(w2q))
    P.extend(stamp(3))
    P.extend(pool.q)
    P.extend(flat(cur))
    for _,g_ in w2q: P.extend(flat(g_))
    e(f"s_add_u32 s{sHst}, s{sHst}, {2*NT*1024}")
    S=[WAIT(vm=["b0"])]+D.treads(0)
    for j in range(8):
        S+=[WAIT(vm=[f"b{j+1}"])]+D.treads(j+1)+[WAIT(lgkm=8)] if j<7 else [WAIT(lgkm=0)]
        if OPT['pA']==5+j: S.append(D.poll("pollA"))
        S+=flat(D.w2dma(10+j))
        if j+1==OPT['nin']: n_in=len(S)
        if j+1==OPT['sBs']+OPT['nin']:
            S+=[WAIT(vm=["st1"]),I(f"buffer_atomic_add v{vOne}, v{vFl}, {srd(WS)}, 0 offen offset:512","sigB")]+stamp(10)
    E=[]
    for t in range(5):
        E+=epi(1,t)+stamp(46+t)
        if t==OPT['sAt']: E.append("sigA")
    k0=0
    for k,x in enumerate(E):
        if x=="sigA":
            P.append(WAIT(vm=["st0","clr"])); check_or_spin(15,0,1,DBG,14)
            e(f"buffer_atomic_add v{vOne}, v{vFl}, {srd(WS)}, 0 offen","sigA")
        else: P.append(x)
        k1=n_in*(k+1)//len(E); P.extend(S[k0:k1]); k0=k1
    P.extend(stamp(4))
    P.extend(S[k0:])
    D.main([],OPT['lead'],OPT['pah'])

HROW=[118784,49152,118784,65536,81920,139264,49152,0,118784,65536,16384,32768,98304,81920,139264,49152,0,118784]
hR=[[1,2,4,5],[64,65,66,67],[68,69,70,71]]; hsN,hsF0,hsQ=58,59,57
HD=Down(NTT=3,vt=(240,241,242),vW2=3,vWo=6,vH=231,vH4=231,vPoll=12,vPA=72,vPO=73,vSA=74,vO=75,vRW=76,vRR=77,vS=80,vRT=96,
        sW2o=[None,40,41,42],sWr2=43,sNW2=47,sNH=48,sD=49,sWr3=50,sNWo=51,sNHo=52,sHld=53,sHO=54,sRow=55,
        m0=lambda b:(hsQ,HROW[b]),rd=lambda b:(hR[HROW[b]>>16],HROW[b]&0xffff),red=(0,4096,16384),
        ACC=lambda q,t:16+(q*3+t)*4,AF=lambda buf,q:160+16*buf+4*q,aSt=128,aH=0,nAS=10,NSL=10,vHS=0)
def helper_setup(regs):
    t=sT[:4]; t=[66,67,70,71]
    mksrd(WO,44,401408); mksrd(WD,52,1605632); mksrd(OUT,56,1835008)
    e(f"s_mul_i32 s{hsF0}, s{sXCD}, 3"); e(f"s_add_u32 s{hsF0}, s{hsF0}, 104"); e(f"s_add_u32 s61, s{sXCD}, 26"); e(f"s_lshl_b32 s{hsQ}, s{sW}, 12")
    keep=(HD.vW2,HD.vWo); HD.vW2,HD.vWo=regs[0],regs[1]
    HD.setup_w(hsF0,61,hsN,t)
    e(f"s_cmp_gt_u32 s{hsN}, 6"); e(f"s_cselect_b32 s66, {OOB}, 0"); e(f"v_or_b32 v{regs[0]}, s66, v{regs[0]}"); e(f"v_or_b32 v{regs[1]}, s66, v{regs[1]}")
    HD.vW2,HD.vWo=keep
    HD.setup_lane([regs[2:6]],[hsQ],t)
    e("v_lshlrev_b32 v231, 4, v0")
    HD.setup_io(hsF0,hsN,t)
    for j in range(8): e(f"v_accvgpr_write_b32 a{248+j}, v{72+j}")
hwin=[0]
def hstage(b):
    o=[]; w=HROW[b]>>16
    if w!=hwin[0]: o+=[I(f"v_add_u32 v{r}, {((w-hwin[0])<<16)&0xffffffff}, v{r}") for r in hR[0]]; hwin[0]=w
    return o+HD.treads(b,lambda b_:(hR[0],HROW[b_]&0xffff))

def attn():
    sAT,sHG=72,73
    sXb,sWb=74,75
    sWo={(0,0):76,(0,1):77,(1,0):78,(1,1):79,(2,0):80,(2,1):81}
    sK,sD0,sD1,sO,sC=82,83,84,85,86
    mE,mM0,mM1,mZ=88,90,100,68
    t0,t1=66,67; t2_,t3=70,71
    vX=[1,2,3,4,5]; vW=6; vXR=(7,8); vR0=(9,10); vR1=(11,12); vRq=(13,14); vPad=15
    vA=(224,225)
    TBL=159744; XB=98304
    Q=lambda u,tl: 16+(u*2+tl)*4
    K=lambda t,tl: 80+(t*2+tl)*4
    V=lambda d,t: 152+d*36+t*4
    XA=lambda buf,t: buf*36+4*t
    WF=lambda buf,m,tl: 72+buf*24+(2*m+tl)*4
    e("L_attn:")
    e(f"s_lshr_b32 s{sAT}, s{sXCD}, 2"); e(f"s_lshl_b32 s{sAT}, s{sAT}, 3"); e(f"s_add_u32 s{sAT}, s{sAT}, s{sJ}"); e(f"s_sub_u32 s{sAT}, s{sAT}, 1"); e(f"s_and_b32 s{sHG}, s{sXCD}, 3")
    e("v_lshrrev_b32 v230, 3, v0"); e("v_and_b32 v231, 7, v0")
    e(f"s_and_b32 s{t0}, s{sW}, 1"); e(f"s_lshl_b32 s{t1}, s{t0}, 2")
    e("v_lshrrev_b32 v232, 1, v230"); e(f"v_or_b32 v232, s{t1}, v232"); e("v_xor_b32 v232, v232, v231"); e("v_lshlrev_b32 v232, 4, v232")
    e(f"s_lshl_b32 s{t2_}, s{sAT}, 7"); e(f"s_lshl_b32 s{t3}, s{sW}, 3"); e(f"s_add_u32 s{t2_}, s{t2_}, s{t3}")
    e(f"v_add_u32 v{vX[0]}, s{t2_}, v230"); e(f"v_mul_u32_u24 v{vX[0]}, 896, v{vX[0]}"); e(f"v_add_u32 v{vX[0]}, v{vX[0]}, v232")
    for j in range(1,5): e(f"v_add_u32 v{vX[j]}, {32*j*896}, v{vX[0]}")
    e(f"s_cmp_lt_u32 s{t2_}, 16"); e(f"s_cselect_b32 s{t0}, {OOB}, 0"); e(f"v_or_b32 v{vX[0]}, s{t0}, v{vX[0]}")
    e(f"s_cmp_ge_u32 s{sW}, 2"); e(f"s_cselect_b32 s{t0}, {OOB}, 0"); e(f"v_or_b32 v{vX[4]}, s{t0}, v{vX[4]}")
    e("v_lshrrev_b32 v230, 4, v0"); e("v_and_b32 v231, 15, v0")
    e(f"s_and_b32 s{t0}, s{sW}, 2"); e(f"s_lshl_b32 s{t0}, s{t0}, 1"); e(f"v_or_b32 v232, s{t0}, v230"); e("v_lshlrev_b32 v232, 1, v232"); e("v_xor_b32 v232, v232, v231")
    e(f"s_lshl_b32 s{t0}, s{sW}, 2"); e(f"v_add_u32 v{vW}, s{t0}, v230"); e(f"v_mul_u32_u24 v{vW}, 2688, v{vW}")
    e(f"v_lshl_add_u32 v{vW}, v232, 4, v{vW}"); e(f"s_mul_i32 s{t0}, s{sHG}, 224"); e(f"v_add_u32 v{vW}, s{t0}, v{vW}")
    e(f"v_mov_b32 v233, {OOB}"); e("v_cmp_lt_u32 vcc, 13, v232"); e(f"v_cndmask_b32 v{vW}, v{vW}, v233, vcc")
    sWr,sD,sNW,sKx,sKt=92,93,99,87,3
    e(f"s_lshl_b32 s{t0}, s{sHG}, 1"); e(f"s_add_u32 s{t0}, s{t0}, s{sAT}")
    if OPT['arot']==7:
        e(f"s_mul_i32 s{t1}, s{t0}, 9363"); e(f"s_lshr_b32 s{t1}, s{t1}, 16"); e(f"s_mul_i32 s{t1}, s{t1}, 7"); e(f"s_sub_u32 s{t0}, s{t0}, s{t1}")
    elif OPT['arot']==2: e(f"s_and_b32 s{t0}, s{t0}, 1"); e(f"s_mul_i32 s{t0}, s{t0}, 3")
    elif OPT['arot']==4: e(f"s_and_b32 s{t0}, s{sAT}, 3"); e(f"s_lshl_b32 s{t0}, s{t0}, 1")
    else: e(f"s_mov_b32 s{t0}, 0")
    e(f"s_sub_u32 s{sWr}, 6, s{t0}"); e(f"s_lshl_b32 s{sKx}, s{t0}, 7"); e(f"s_lshl_b32 s{sKt}, s{t0}, 9")
    e(f"s_mul_i32 s{t1}, s{t0}, {64*2688}"); e(f"v_add_u32 v{vW}, s{t1}, v{vW}"); e(f"s_mov_b32 s{sNW}, {-13*32*2688}")
    e(f"s_lshl_b32 s{sXb}, s{sW}, 10"); e(f"s_add_u32 s{sXb}, s{sXb}, {XB}")
    e(f"s_mul_i32 s{sWb}, s{sW}, 6144")
    for (m,j),r in sWo.items():
        imm=((2*m+j)%4)*1024
        e(f"s_mov_b32 s{r}, {4096+m*896+16*j*2688-imm}")
    e(f"s_lshl_b32 s{t0}, s{sW}, 6"); e(f"v_add_u32 v234, s{t0}, v0"); e("v_lshlrev_b32 v235, 2, v234")
    e("s_waitcnt lgkmcnt(0)")
    mksrd(GW,54,896); mksrd(X,40,1835008,14336); mksrd(WA,42,1204224,4096)
    P.extend(stamp(0))
    e(f"buffer_load_dword v236, v235, {srd(GW)}, 0 offen","gw")
    def xdma(c):
        o=[I(f"s_mov_b32 s{sK}, s{sKx}"),I(f"s_add_u32 s{sKx}, s{sKx}, 128"),ATOM(f"s_cmp_eq_u32 s{sWr}, {c}",f"s_cselect_b32 s{sKx}, 0, s{sKx}")]
        for j in range(5):
            o.append(I(f"s_add_u32 m0, s{sXb}, {(c%3)*20480+j*4096}"))
            o.append(dma(vX[j],X,f"s{sK}",0,f"x{c}"))
        return o
    def wdma(k):
        o=[]
        for m in range(3):
            if m!=1: o.append(I(f"s_add_u32 m0, s{sWb}, {(k%4)*24576+(4096 if m==2 else 0)}"))
            for j in range(2): o.append(dma(vW,WA,f"s{sWo[(m,j)]}",((2*m+j)%4)*1024,f"w{k}"))
        if k%2==1:
            o[-1:-1]=[ATOM(f"s_cmp_eq_u32 s{sWr}, {k//2}",f"s_cselect_b32 s{sD}, s{sNW}, {32*2688}")]
            o.append(I(f"v_add_u32 v{vW}, s{sD}, v{vW}"))
        else: o.append(I(f"v_add_u32 v{vW}, {32*2688}, v{vW}"))
        return o
    for z in (xdma(0),wdma(0),wdma(1)): P.extend(z)
    aq=[(0,xdma(1)),(0,wdma(2)),(0,wdma(3)),(0,xdma(2))]
    for k in range(4,14):
        aq.append((k-4+(1 if k-4<OPT['amid'] else 0),wdma(k)))
        if k%2==1 and (k+1)//2<=6: aq.append((2*((k+1)//2-3)+1+(1 if 2*((k+1)//2-3)+1<OPT['amid'] else 0),xdma((k+1)//2)))
    acur=[]
    mksrd(WS,60,WSN); mksrd(DBG,58,256)
    HELP=OPT['ntt']==4
    e(f"s_and_b32 s{t0}, s{sXCD}, 3"); e(f"s_cmp_eq_u32 s{t0}, 3"); e(f"s_cselect_b32 s{t0}, 1, 0"); e(f"s_add_u32 s{hsN}, s{sJ}, s{t0}")
    if not HELP: e(f"s_mov_b32 s{hsN}, 7")
    helper_setup([232,233,234+9,245,246,247])
    for j,r in enumerate([232,243,245,246,247,233]): e(f"v_accvgpr_write_b32 a{122+j}, v{r}")
    e(f"s_sub_u32 s{t0}, s{sJ}, 1"); e(f"s_lshl_b32 s{t0}, s{t0}, 2"); e(f"s_add_u32 s{t0}, s{t0}, s{sW}"); e(f"s_lshl_b32 s{t0}, s{t0}, 6")
    e(f"v_add_u32 v227, s{t0}, v0"); e("v_lshlrev_b32 v226, 7, v227"); e(f"s_mov_b32 s36, {2048*128}")
    e("v_lshrrev_b32 v230, 4, v0"); e("v_and_b32 v231, 15, v0")
    e("v_lshrrev_b32 v232, 1, v231"); e("v_xor_b32 v232, v232, v230"); e("v_lshlrev_b32 v232, 4, v232")
    e("v_lshl_add_u32 v232, v231, 7, v232"); e(f"v_add_u32 v{vXR[0]}, {XB}, v232"); e(f"v_xor_b32 v{vXR[1]}, 64, v{vXR[0]}")
    e("v_bfe_u32 v232, v0, 2, 2"); e("v_and_b32 v233, 3, v0")
    e("v_and_b32 v237, 1, v230"); e("v_lshl_add_u32 v238, v237, 2, v232"); e("v_lshlrev_b32 v238, 2, v238")
    e("v_mul_u32_u24 v237, 12288, v237"); e("v_lshrrev_b32 v239, 1, v230"); e("v_lshl_add_u32 v237, v239, 10, v237"); e("v_lshl_add_u32 v237, v232, 8, v237")
    e(f"s_mul_i32 s{t0}, s{sW}, 7")
    e(f"v_add_u32 v239, s{t0}, v233")
    e("v_xor_b32 v240, v239, v238"); e(f"v_lshl_add_u32 v{vR0[0]}, v240, 3, v237")
    e("v_add_u32 v239, 4, v239")
    e("v_and_b32 v240, 3, v239"); e("v_or_b32 v240, 28, v240"); e("v_cmp_eq_u32 vcc, 3, v233"); e("v_cndmask_b32 v239, v239, v240, vcc")
    e("v_xor_b32 v240, v239, v238"); e(f"v_lshl_add_u32 v{vR1[0]}, v240, 3, v237")
    e(f"v_cndmask_b32 v{vPad}, 0, 1, vcc")
    e(f"v_add_u32 v{vR0[1]}, 49152, v{vR0[0]}"); e(f"v_add_u32 v{vR1[1]}, 49152, v{vR1[0]}")
    e("v_lshl_add_u32 v240, v230, 3, v232"); e("v_lshlrev_b32 v240, 3, v240"); e(f"v_add_u32 v240, {TBL}, v240")
    e(f"v_cndmask_b32 v{vRq[0]}, v{vR1[0]}, v240, vcc"); e(f"v_cndmask_b32 v{vRq[1]}, v{vR1[1]}, v240, vcc")
    P.append(WAIT(vm=["gw"]))
    e("v_and_b32 v244, 0xffff, v236"); e("v_mov_b32 v245, 0"); e("v_lshrrev_b32 v246, 16, v236"); e("v_mov_b32 v247, 0")
    e("v_lshlrev_b32 v234, 4, v234"); e(f"v_add_u32 v234, {TBL}, v234")
    e("ds_write_b128 v234, v[244:247]")
    def reads(k):
        sl=k%4; h=sl//2; buf=k%2
        pre=[]; tr=[]
        for a in range(2):
            imm=(sl%2)*24576+a*6144
            pre.append(I(f"s_add_u32 s{(sD0,sD1)[a]}, s{sKt}, {(256*(k%2)+32*a-imm)&0xffffffff}"))
            pre.append(I(f"v_mad_i32_i24 v{vA[a]}, v{vPad}, s{(sD0,sD1)[a]}, v{vRq[h]}"))
        for m in range(3):
            for tl in range(2):
                for a in range(2):
                    ad = vR0[h] if tl==0 else (vA[a] if m==0 else vR1[h])
                    tr.append(I(f"ds_read_b64_tr_b16 {ar(WF(buf,m,tl)+2*a,2)}, v{ad} offset:{(sl%2)*24576+a*6144+m*2048}"))
        xs=[I(f"ds_read_b128 {ar(XA(buf,t),4)}, v{vXR[k%2]} offset:{((k//2)%3)*20480+t*2048}") for t in range(9)]
        if k%2==1: pre+=[I(f"s_add_u32 s{sKt}, s{sKt}, 512"),ATOM(f"s_cmp_eq_u32 s{sWr}, {k//2}",f"s_cselect_b32 s{sKt}, 0, s{sKt}")]
        return pre+tr[:2]+xs+tr[2:]
    P.append(WAIT(vm=["x0","w0"],lgkm=0)); e("s_barrier")
    P.extend(stamp(1))
    P.extend(reads(0))
    if OPT['amid']: P.append(WAIT(lgkm=0))
    else: P.append(WAIT(vm=["w1"],lgkm=0)); e("s_barrier")
    cA0,cB0,cA1,cB1,vNeg,vH,vH4,vSt,vFl=226,227,228,229,230,231,250,251,252
    import struct
    f2u=lambda x: struct.unpack("<I",struct.pack("<f",x))[0]
    n0=len(P)
    e("v_lshrrev_b32 v232, 4, v0"); e("v_and_b32 v233, 15, v0")
    e("v_and_b32 v234, 1, v233"); e(f"v_cmp_eq_u32 s[{mE}:{mE+1}], 0, v234")
    e("v_lshl_add_u32 v235, v232, 2, v234"); e(f"v_cmp_le_u32 s[{mM0}:{mM0+1}], v235, v233")
    e("v_add_u32 v235, 2, v235"); e(f"v_cmp_le_u32 s[{mM1}:{mM1+1}], v235, v233")
    e("v_mov_b32 v236, 0xffff0000"); e("v_mov_b32 v237, 0xffff"); e(f"v_lshlrev_b32 v{vH}, 4, v0"); e(f"v_add_u32 v{vH4}, 4096, v{vH}")
    e(f"v_cndmask_b32 v236, v236, v237, s[{mE}:{mE+1}]")
    e(f"v_cndmask_b32 v{cA0}, 0, v236, s[{mM0}:{mM0+1}]"); e(f"v_xor_b32 v{cB0}, v{cA0}, v236")
    e(f"v_cndmask_b32 v{cA1}, 0, v236, s[{mM1}:{mM1+1}]"); e(f"v_xor_b32 v{cB1}, v{cA1}, v236")
    e(f"v_mov_b32 v{vNeg}, 0xf149f2ca")
    P.append(ATOM(f"s_cmp_eq_u32 s{sAT}, 0",f"s_cselect_b64 s[{mZ}:{mZ+1}], -1, 0"))
    e(f"s_mov_b32 s{sC}, {f2u(28**-0.5*math.log2(math.e)):#x}"); e(f"s_mov_b32 s{sK}, 0x3fb8aa3b")
    e(f"s_lshl_b32 s{t0}, s{sHG}, 2"); e(f"s_add_u32 s{t0}, s{t0}, s{sW}"); e(f"s_add_u32 s{t0}, s{t0}, 56"); e(f"s_mul_i32 s{t0}, s{t0}, {NT}")
    e(f"s_lshl_b32 s{t1}, s{sAT}, 3"); e(f"s_add_u32 s{t0}, s{t0}, s{t1}"); e(f"s_lshl_b32 s{t0}, s{t0}, 10"); e(f"s_add_u32 s{sO}, s{t0}, {H0}")
    e(f"s_mul_i32 s{t0}, s{sHG}, {SSTR}"); e(f"s_lshl_b32 s{t1}, s{sAT}, 9"); e(f"s_add_u32 s{t0}, s{t0}, s{t1}"); e(f"s_add_u32 s{t0}, s{t0}, {S0}")
    P.append(ATOM(f"s_cmp_eq_u32 s{sW}, 0",f"s_cselect_b32 s{t0}, s{t0}, {OOB}"))
    e(f"v_lshlrev_b32 v{vSt}, 2, v0"); e(f"v_add_u32 v{vSt}, s{t0}, v{vSt}")
    e(f"s_lshl_b32 s{t0}, s{sAT}, 2"); e(f"s_add_u32 s{t0}, s{t0}, s{sHG}"); e(f"s_add_u32 s{t0}, s{t0}, 208"); e(f"s_lshl_b32 s{t0}, s{t0}, 7")
    e("v_min_u32 v238, 1, v0"); e("v_lshlrev_b32 v238, 31, v238"); e(f"v_or_b32 v{vFl}, s{t0}, v238")
    apool=Pool(P[n0:]); del P[n0:]
    U=range(8)
    A=lambda u: 232+u; B=lambda u: 240+u; M=lambda u: 170+u; T=lambda u: 178+u; L=lambda u: 206+u
    SP=lambda u: K(u,1); SO=lambda u: Q(u,1); PQ=lambda u: Q(u,0)
    ZC=(224,225)
    def pk(d,a): return I(f"v_cvt_pk_bf16_f32 v{d}, v{a}, v{a+1}")
    def pack4(d,a,b): return [pk(d,a),pk(d+1,a+2),pk(d+2,b),pk(d+3,b+2)]
    def seq(groups,cap=2):
        f=[]; g=0; room=cap
        for mg,ins in groups:
            for x in ins:
                if g<mg: g=mg; room=cap
                if cost(x)>room: g+=1; room=cap
                f.append((g,x)); room-=cost(x)
        return f
    for k in range(14):
        buf=k%2; mf=[]
        c=lambda d: "0" if k==0 else d
        two=lambda n: [(x,tl) for x in range(n) for tl in range(2)] if k==13 else [(x,tl) for tl in range(2) for x in range(n)]
        for u,tl in two(8): d=vr(Q(u,tl),4); mf.append(mfma(d,ar(WF(buf,0,tl),4),ar(XA(buf,u+1),4),c(d)))
        for t,tl in two(9): d=vr(K(t,tl),4); mf.append(mfma(d,ar(WF(buf,1,tl),4),ar(XA(buf,t),4),c(d)))
        for tl in range(2):
            for t in range(9): d=vr(V(tl,t),4); mf.append(mfma(d,ar(XA(buf,t),4),ar(WF(buf,2,tl),4),c(d)))
        f=[]
        if k<OPT['amid']:
            f+=[(25.9,WAIT(vm=[f"w{k+1}",f"x{(k+1)//2}"])),(25.95,I("s_barrier"))]+spread(reads(k+1),26,47)
        elif k<13: f+=spread(reads(k+1),0,36)
        dm=[]; nd=0
        while nd<OPT['arate']:
            if not acur:
                if aq and aq[0][0]<=k: acur=list(aq.pop(0)[1])
                else: break
            x=acur.pop(0); dm.append(x); nd+=(x.cls=="vm")
            while acur and acur[0].cls=="valu": dm.append(acur.pop(0))
        if k==8:
            dm.append(I("v_mov_b32 v249, 0")); dm.append(I(f"buffer_load_dword v248, v249, {srd(DBG)}, 0 offen sc1","clr"))
        if OPT['apf'] and OPT['apfk']<=k<OPT['apfk']+3:
            kk=k-OPT['apfk']
            if kk==0: dm+=[I(f"buffer_load_dword a{120+j}, v226, {srd(WO)}, {['0','s36'][j]} offen","pf") for j in range(2)]
        if HELP:
            if k==8:
                assert all(x.tag[0]!="x" for x in dm+acur+flat([g_ for _,g_ in aq]) if x.cls=="vm")
                f+=spread([I(f"v_accvgpr_read_b32 v{r}, a{122+j}") for j,r in enumerate([HD.vW2]+hR[0])],44,51)
            for b in {9:[0],10:[1],11:[2,3,4],12:[5,6,7],13:list(range(8,8+OPT['hp13']))}.get(k,[]):
                assert not acur
                dm+=flat(HD.w2dma(b))
            sb={10:[0],11:[1],12:[2,3]}.get(k,[])
            if sb: f+=spread([WAIT(vm=[f"b{sb[-1]}"])]+flat([hstage(b) for b in sb]),36.5,50)
        pos=0; nd=0
        for x in dm:
            if x.cls=="vm": nd+=1
            pos=max(pos+0.001,4.3*nd-(2 if x.cls=="vm" else (1 if x.cls=="valu" else -1))); f.append((pos,x))
        if k==13:
            assert not apool.q and not aq and not acur
            for u in U:
                mf.append(mfma(vr(SP(u),4),vr(K(u,0),4),vr(Q(u,0),4),"0")); mf.append(mfma(vr(SO(u),4),vr(K(u+1,0),4),vr(Q(u,0),4),"0"))
            G=[(2*u+5,pack4(Q(u,0),Q(u,0),Q(u,1))) for u in U]
            zc=[]
            for h in range(2):
                q=[Q(4*h+x,1) for x in range(4)]
                zc.append([I(f"v_permlane16_swap_b32 v{q[2]}, v{q[3]}"),I(f"v_permlane16_swap_b32 v{q[0]}, v{q[1]}"),I(f"v_permlane32_swap_b32 v{q[1]}, v{q[3]}"),
                           I(f"v_mul_f32 v{ZC[h]}, s{sK}, v{q[3]}"),I(f"v_min_f32 v{ZC[h]}, 0x42c80000, v{ZC[h]}"),I(f"v_exp_f32 v{ZC[h]}, v{ZC[h]}"),I(f"v_add_f32 v{7+h}, 1.0, v{ZC[h]}")])
            zi=[x for pr in zip(*zc) for x in pr]
            for t in range(9):
                G.append((16+2*t+5,pack4(K(t,0),K(t,0),K(t,1))))
                if t in (1,3,5): G.append((0,zi[:2] if t==1 else (zi[2:4] if t==3 else zi[4:6])))
            G.append((0,zi[6:8]))
            for d in range(2):
                for t in range(9):
                    G.append((34+9*d+t+4,[pk(V(d,0)+2*t,V(d,t)),pk(V(d,0)+2*t+1,V(d,t)+2)]))
                    if d==0 and t in (2,4,6): G.append((0,zi[8+(t-2):10+(t-2)]))
            f+=seq(G)
        P.extend(pack(mf,f,apool if 11<=k<13 else None))
        if k<13:
            if k+1<OPT['amid']: P.append(WAIT(lgkm=0))
            else: P.append(WAIT(vm=[f"w{k+2}",f"x{(k+2)//2}"],lgkm=0)); e("s_barrier")
            P.extend(stamp(32+k))
    P.extend(stamp(2))
    sE=f"s[{mE}:{mE+1}]"
    n_in0=len(P)
    for u in U:
        e(f"v_cndmask_b32 v{M(u)}, v{SP(u)+1}, v{SP(u)}, {sE}"); e(f"v_cndmask_b32 v{T(u)}, v{SP(u)+3}, v{SP(u)+2}, {sE}")
        e(f"v_cndmask_b32 v{A(u)}, v{SO(u)+1}, v{SO(u)}, {sE}"); e(f"v_cndmask_b32 v{B(u)}, v{SO(u)+3}, v{SO(u)+2}, {sE}")
        if u==0:
            e(f"v_cndmask_b32 v{M(0)}, v{M(0)}, v{vNeg}, s[{mZ}:{mZ+1}]"); e(f"v_cndmask_b32 v{T(0)}, v{T(0)}, v{vNeg}, s[{mZ}:{mZ+1}]")
        e(f"v_cndmask_b32 v{A(u)}, v{M(u)}, v{A(u)}, s[{mM0}:{mM0+1}]"); e(f"v_cndmask_b32 v{B(u)}, v{T(u)}, v{B(u)}, s[{mM1}:{mM1+1}]")
        e(f"v_max_f32 v{M(u)}, v{A(u)}, v{B(u)}")
    def allred(R,op,mid):
        H=(0,4)
        for h in H: e(f"v_permlane32_swap_b32 v{R(h)}, v{R(h+2)}"); e(f"v_permlane32_swap_b32 v{R(h+1)}, v{R(h+3)}")
        for h in H: e(f"{op} v{R(h)}, v{R(h)}, v{R(h+2)}"); e(f"{op} v{R(h+1)}, v{R(h+1)}, v{R(h+3)}")
        for h in H: e(f"v_permlane16_swap_b32 v{R(h)}, v{R(h+1)}")
        for h in H: e(f"{op} v{R(h)}, v{R(h)}, v{R(h+1)}")
        mid(H)
        for h in H: e(f"v_mov_b32 v{R(h+1)}, v{R(h)}")
        for h in H: e(f"v_permlane16_swap_b32 v{R(h)}, v{R(h+1)}")
        for h in H: e(f"v_mov_b32 v{R(h+2)}, v{R(h)}"); e(f"v_mov_b32 v{R(h+3)}, v{R(h+1)}")
        for h in H: e(f"v_permlane32_swap_b32 v{R(h)}, v{R(h+2)}"); e(f"v_permlane32_swap_b32 v{R(h+1)}, v{R(h+3)}")
    def midM(H):
        for h in H: e(f"v_mul_f32 v{M(h)}, s{sC}, v{M(h)}")
    allred(M,"v_max_f32",midM)
    for u in U:
        e(f"v_fma_f32 v{A(u)}, v{A(u)}, s{sC}, -v{M(u)}"); e(f"v_fma_f32 v{B(u)}, v{B(u)}, s{sC}, -v{M(u)}")
    for u in U:
        e(f"v_exp_f32 v{A(u)}, v{A(u)}"); e(f"v_exp_f32 v{B(u)}, v{B(u)}")
        if u: e(f"v_add_f32 v{L(u-1)}, v{A(u-1)}, v{B(u-1)}")
    e(f"v_add_f32 v{L(7)}, v{A(7)}, v{B(7)}")
    def midL(H):
        for h in H: e(f"v_rcp_f32 v{L(h)}, v{L(h)}")
        for h in H: e(f"v_rcp_f32 v{T(h)}, v{7+h//4}")
        for h in H: e(f"v_mul_f32 v{L(h)}, v{L(h)}, v{ZC[h//4]}")
        e(f"buffer_store_dword v{T(0)}, v{vSt}, {srd(WS)}, 0 offen sc1","st"); e(f"buffer_store_dword v{T(4)}, v{vSt}, {srd(WS)}, 0 offen offset:256 sc1","st")
    allred(L,"v_add_f32",midL)
    if HELP and OPT['hin']:
        assert OPT['hp13']==5
        body=P[n_in0:]; del P[n_in0:]
        S2=[I(f"v_accvgpr_read_b32 v{HD.vWo}, a127")]+[I(f"v_accvgpr_read_b32 v{r}, a{248+j}") for j,r in enumerate((9,10,11,12,14,15,186,187))]
        S2+=[WAIT(vm=["b7"])]+flat([hstage(b) for b in range(4,8)])+[WAIT(lgkm=0)]
        nr=len(S2); S2+=flat([flat(HD.w2dma(b)) for b in range(13,13+OPT['hin'])])
        k0=0; n1=len(body)//3
        for k,x in enumerate(body):
            P.append(x)
            k1=nr*(k+1)//n1 if k<n1 else nr+(len(S2)-nr)*(k+1-n1)//(len(body)-n1)
            P.extend(S2[k0:k1]); k0=k1
    def pre(u):
        return [I(f"v_mul_f32 v{A(u)}, v{A(u)}, v{L(u)}"),I(f"v_mul_f32 v{B(u)}, v{B(u)}, v{L(u)}"),
                I(f"v_cvt_pk_bf16_f32 v{A(u)}, v{A(u)}, v{A(u)}"),I(f"v_cvt_pk_bf16_f32 v{B(u)}, v{B(u)}, v{B(u)}"),
                I(f"v_and_b32 v{PQ(u)}, v{cB0}, v{A(u)}"),I(f"v_and_b32 v{PQ(u)+1}, v{cB1}, v{B(u)}"),
                I(f"v_and_b32 v{PQ(u)+2}, v{cA0}, v{A(u)}"),I(f"v_and_b32 v{PQ(u)+3}, v{cA1}, v{B(u)}")]
    def post(u):
        return pack4(PQ(u),SP(u),SO(u))+[I(f"buffer_store_dwordx4 {vr(PQ(u),4)}, v{vH if u<4 else vH4}, {srd(WS)}, s{sO} offen offset:{(u%4)*1024} sc1","st")]
    P.extend(pre(0))
    for u in range(10):
        if u+1<8: a_=pre(u+1)
        else: a_=[]
        P.extend(a_[:2])
        if u<8: P.append(mfma(vr(SP(u),4),vr(V(0,0)+2*u,4),vr(PQ(u),4),"0"))
        P.extend(a_[2:4])
        if u<8: P.append(mfma(vr(SO(u),4),vr(V(1,0)+2*u,4),vr(PQ(u),4),"0"))
        P.extend(a_[4:])
        if u>=2: P.extend(post(u-2))
        elif u==0: e("v_mov_b32 v13, 1")
    P.extend(stamp(3))
    nb=8+OPT['hp13']
    P.append(WAIT(vm=["clr"])); check_or_spin(249,0,1,DBG,248)
    if HELP:
        if OPT['hin']:
            for j,r in enumerate((9,10,11,12,14,15,186,187)): e(f"v_mov_b32 v{72+j}, v{r}")
            e("L_help:")
            P.append(HD.poll("pollA")); nb+=OPT['hin']
        else:
            e("L_help:")
            e(f"v_accvgpr_read_b32 v{HD.vWo}, a127")
            for j in range(8): e(f"v_accvgpr_read_b32 v{72+j}, a{248+j}")
            P.append(HD.poll("pollA"))
            P.append(WAIT(vm=["b7"])); P.extend(flat([hstage(b) for b in range(4,8)]))
        for b in range(nb,nb+OPT['hwin']): P.extend(flat(HD.w2dma(b)))
        nb+=OPT['hwin']
        if hwin[0]: P.extend([I(f"v_add_u32 v{r}, {(-hwin[0]<<16)&0xffffffff}, v{r}") for r in hR[0]])
        for w in (1,2):
            for q in range(4): e(f"v_add_u32 v{hR[w][q]}, {w<<16}, v{hR[0][q]}")
    P.append(WAIT(vm=["st"],lgkm=0))
    e(f"buffer_atomic_add v13, v{vFl}, {srd(WS)}, 0 offen","sig")
    if HELP:
        P.extend(stamp(4))
        e(f"s_cmp_gt_u32 s{hsN}, 6"); e("s_cbranch_scc1 L_hexit")
        HD.main([(0 if b<17 else 24,it) for b in range(nb,18) for it in HD.w2dma(b)],OPT['hlead'],OPT['hpah'],so=50)
        e("L_hexit:")
    P.extend(stamp(4,True))
    e("s_endpgm")

def spare():
    KN=NAME+"_kernel"
    e("L_spare:")
    e("s_getpc_b64 s[68:69]")
    e("L_pc:")
    e(f"s_sub_u32 s68, s68, L_pc-{KN}"); e("s_subb_u32 s69, s69, 0")
    e(f"s_lshl_b32 s70, s{sW}, 13"); e("v_lshlrev_b32 v1, 7, v0"); e("v_add_u32 v2, s70, v1")
    e(f"v_min_u32 v3, L_end-{KN}-4, v2")
    e("global_load_dword v10, v3, s[68:69]","pf")
    e("v_add_u32 v2, 32768, v2"); e(f"v_min_u32 v3, L_end-{KN}-4, v2")
    e("global_load_dword v11, v3, s[68:69]","pf")
    e("s_waitcnt lgkmcnt(0)")
    mksrd(WS,60,WSN); mksrd(DBG,58,256)
    e(f"s_or_b32 s70, s2, s{sW}"); e("s_cmp_eq_u32 s70, 0"); e("s_cbranch_scc0 L_noclr")
    e("v_lshlrev_b32 v5, 8, v0"); e("v_mov_b32 v6, 0"); e("v_lshlrev_b32 v7, 7, v0"); e("v_mov_b32 v8, 1")
    for k in range(5):
        e(f"buffer_store_dword v6, v7, {srd(WS)}, 0 offen sc1"); e("v_add_u32 v7, 8192, v7")
    e("s_waitcnt vmcnt(0)")
    e(f"buffer_store_dword v8, v5, {srd(DBG)}, 0 offen sc1")
    e("L_noclr:")
    if OPT['ntt']==4:
        P.extend(stamp(0))
        e(f"s_min_u32 s{hsN}, s{sJ}, 1")
        helper_setup([HD.vW2,9]+hR[0])
        e("v_accvgpr_write_b32 a127, v9")
        e("v_lshlrev_b32 v231, 4, v0"); e(f"v_mov_b32 v252, {OOB}"); e("v_mov_b32 v13, 1"); e("v_mov_b32 v249, 0"); e("v_mov_b32 v248, 0")
        if OPT['gop']>=0: spin(249,4,1,DBG,248,nap=OPT['nap'])
        if OPT['spf']:
            e(f"s_mul_i32 s66, s{sXCD}, 392"); e(f"s_lshl_b32 s67, s{sW}, 6"); e("s_add_u32 s66, s66, s67"); e("v_add_u32 v14, s66, v0")
            for k in range(13):
                e("v_subrev_u32 v15, 3136, v14"); e("v_min_u32 v15, v15, v14"); e("v_lshlrev_b32 v15, 7, v15")
                e(f"buffer_load_dword v{16+k}, v15, {srd(WO)}, 0 offen","pf"); e("v_add_u32 v14, 256, v14")
                if k<OPT['spf']-1: e("s_waitcnt vmcnt(0)")
        hwin[0]=0
        for b in range(8+OPT['hp13']):
            P.extend(flat(HD.w2dma(b)))
            for sb in {1:[0],4:[1],7:[2,3]}.get(b,[]):
                P.append(WAIT(vm=[f"b{sb}"])); P.extend(hstage(sb)); P.append(WAIT(lgkm=0))
        if OPT['hin']:
            e(f"v_mov_b32 v{HD.vWo}, v9")
            P.append(WAIT(vm=["b7"])); P.extend(flat([hstage(b) for b in range(4,8)])); P.append(WAIT(lgkm=0))
            for b in range(13,13+OPT['hin']): P.extend(flat(HD.w2dma(b)))
        assert hwin[0]==HROW[7 if OPT['hin'] else 3]>>16
        spin(249,0,1,DBG,248)
        spin(HD.vPA,0,7,WS,HD.vPoll,nap=OPT['nap'])
        e("s_branch L_help")
    e("L_exit:")
    e("s_endpgm")
    e("L_end:")

def main():
    global P
    head=open("cdna_kernels/"+NAME+".s.ref").read().split("; Override launch")[0]
    txt=[]; nops=0
    def ablate(o):
        a=OPT['abl']; r=[]
        for x in o:
            if a&1 and x.cls=="vm" and " lds" in x.text: continue
            if a&2 and x.op.startswith("ds_read"): continue
            if a&4 and x.op.startswith("v_mfma"): continue
            r.append(x)
        return r
    for part in ((common_prologue,ffn),(attn,),(spare,)):
        P.clear()
        if part[0] is not common_prologue:
            pass
        for f in part: f()
        o,n=finalize(list(P),part[-1].__name__); nops+=n
        if OPT['abl']: o=ablate(o)
        txt+=[x.text if x.cls=="label" else "    "+x.text for x in o]
    out=head+"; generated by gen/gen.py (hand-designed schedule, python emitter)\n; @launch grid=(256,1,1) block=(256,1,1) lds=163840\n"
    out+='.amdgcn_target "amdgcn-amd-amdhsa--gfx950"\n.text\n'
    out+=f".globl {NAME}_kernel\n.p2align 8\n.type {NAME}_kernel,@function\n{NAME}_kernel:\n"
    out+="\n".join(txt)+"\n"
    out+=f""".section .rodata,"a"
.p2align 6
.amdhsa_kernel {NAME}_kernel
  .amdhsa_next_free_vgpr 512
  .amdhsa_next_free_sgpr 102
  .amdhsa_accum_offset 256
  .amdhsa_group_segment_fixed_size 0
  .amdhsa_kernarg_size 88
  .amdhsa_user_sgpr_count 2
  .amdhsa_user_sgpr_kernarg_segment_ptr 1
  .amdhsa_system_sgpr_workgroup_id_x 1
.end_amdhsa_kernel
"""
    open(sys.argv[1],"w").write(out)
    print("instructions",len(txt),"auto nops",nops)
main()
```

```python
import re
TRANS=("v_exp_f32","v_log_f32","v_rcp_f32","v_rsq_f32","v_sqrt_f32","v_sin_f32","v_cos_f32")
def regs_of(tok):
    tok=tok.strip()
    tok=tok.lstrip("-")
    m=re.fullmatch(r"abs\((.*)\)",tok)
    if m: tok=m.group(1)
    m=re.fullmatch(r"([vas])(\d+)",tok)
    if m: return {(m.group(1),int(m.group(2)))}
    m=re.fullmatch(r"([vas])\[(\d+):(\d+)\]",tok)
    if m: return {(m.group(1),i) for i in range(int(m.group(2)),int(m.group(3))+1)}
    if tok=="vcc": return {("s","vcc")}
    if tok=="exec": return {("s","exec")}
    if tok=="m0": return {("s","m0")}
    return set()
class Ins:
    __slots__=("text","op","rd","wr","cls","tag","waittags","lgkm","srcC","ab","data","note","flush")
    def __init__(s,text,tag=None):
        s.text=text; s.tag=tag; s.waittags=None; s.lgkm=None; s.srcC=set(); s.ab=set(); s.data=set(); s.note=None; s.flush=False
        s.rd=set(); s.wr=set()
        t=text.strip()
        if t.endswith(":") or t.startswith(".") or t.startswith(";") or not t:
            s.op=t; s.cls="label" if t.endswith(":") else "dir"; return
        p=t.split(None,1); s.op=p[0]; rest=p[1] if len(p)>1 else ""
        ops=[x.strip() for x in rest.split(",")]
        mods=""
        if ops:
            q=ops[-1].split()
            if q: ops[-1]=q[0]; mods=" ".join(q[1:])
        R=[regs_of(o) for o in ops]
        op=s.op.replace("_e64","").replace("_e32","")
        if op.startswith("v_mfma"):
            s.cls="mfma"; s.wr=R[0]; s.ab=R[1]|R[2]; s.srcC=R[3]; s.rd=s.ab|s.srcC
        elif op.startswith("v_permlane"):
            s.cls="valu"; s.wr=R[0]|R[1]; s.rd=R[0]|R[1]
        elif op.startswith("v_cmp"):
            s.cls="valu"; s.wr=R[0]; s.rd=set().union(*R[1:])
        elif op.startswith("v_"):
            s.cls="valu"; s.wr=R[0]; s.rd=set().union(*R[1:]) if len(R)>1 else set()
            if op in("v_fmac_f32",): s.rd|=R[0]
            if op=="v_cndmask_b32" and len(R)==3: s.rd|={("s","vcc")}
            if op in ("v_add_co_u32","v_addc_co_u32"): s.wr|=R[1]
        elif op.startswith("ds_read") or op.startswith("ds_bpermute") or op.startswith("ds_swizzle"):
            s.cls="ds"; s.wr=R[0]; s.rd=set().union(*R[1:])
        elif op.startswith("ds_write"):
            s.cls="ds"; s.rd=set().union(*R)
        elif op.startswith("buffer_load"):
            s.cls="vm"
            if "lds" in mods.split():
                s.rd=set().union(*R)|{("s","m0")}
            else:
                s.wr=R[0]; s.rd=set().union(*R[1:])
        elif op.startswith("global_load"):
            s.cls="vm"; s.wr=R[0]; s.rd=set().union(*R[1:])
        elif op.startswith("buffer_store") or op.startswith("buffer_atomic"):
            s.cls="vm"; s.rd=set().union(*R)
            if "x4" in op or "x3" in op: s.data=R[0]
            if op.startswith("buffer_atomic") and "sc0" in mods.split(): s.wr=R[0]
        elif op.startswith("global_store"):
            s.cls="vm"; s.rd=set().union(*R)
            if "x4" in op or "x3" in op: s.data=R[1]
        elif op.startswith("s_load") or op.startswith("s_memtime") or op.startswith("s_memrealtime"):
            s.cls="smem"; s.wr=R[0]; s.rd=set().union(*R[1:]) if len(R)>1 else set()
        elif op in("s_waitcnt","s_barrier","s_nop","s_endpgm","s_sleep","s_setprio") or op.startswith("s_cbranch") or op=="s_branch":
            s.cls="ctl"
            if op in("s_cbranch_vccz","s_cbranch_vccnz"): s.rd={("s","vcc")}
        elif op.startswith("s_cmp"):
            s.cls="salu"; s.rd=set().union(*R)
        elif op.startswith("s_"):
            s.cls="salu"; s.wr=R[0]; s.rd=set().union(*R[1:]) if len(R)>1 else set()
            if op in("s_addk_i32","s_mulk_i32"): s.rd|=R[0]
            if "saveexec" in op: s.wr|={("s","exec")}
        else:
            raise ValueError("unknown op "+t)
    def states(s):
        if s.cls in("label","dir"): return 0
        if s.op=="s_nop": return int(s.text.split()[1])+1
        return 1
def I(text,tag=None): return Ins(text,tag)
def ATOM(*texts):
    xs=[Ins(t) for t in texts]; a=xs[0]
    for x in xs[1:]:
        assert x.cls=="salu"
        a.rd|=x.rd; a.wr|=x.wr
    a.text="\n    ".join(texts); a.note=len(xs)
    return a
def WAIT(vm=None,lgkm=None):
    i=Ins("s_waitcnt vmcnt(0)"); i.waittags=vm; i.lgkm=lgkm; return i
def isvg(r): return r[0] in("v","a")
def need(p,c):
    n=0
    pop=p.op.replace("_e64","").replace("_e32",""); cop=c.op.replace("_e64","").replace("_e32","")
    if p.cls=="valu":
        vw={r for r in p.wr if isvg(r)}; sw={r for r in p.wr if r[0]=="s"}
        if c.cls=="mfma" and vw&c.rd: n=max(n,2)
        if cop.startswith("v_permlane") and vw&c.rd: n=max(n,2)
        if "dpp" in c.text or "row_" in c.text:
            if vw&c.rd: n=max(n,2)
        if pop in TRANS and c.cls=="valu" and cop not in TRANS and vw&c.rd: n=max(n,1)
        if c.cls=="valu" and sw&c.rd: n=max(n,2)
        if cop in("v_readfirstlane_b32","v_readlane_b32") and vw&c.rd: n=max(n,1)
        if c.cls=="vm" and sw&c.rd: n=max(n,5)
        if c.cls in("salu","ctl") and sw&c.rd: n=max(n,2)
    if p.cls=="mfma":
        big = "32x32" in p.op
        a,b,w=(12,10,7) if big else (8,6,3)
        if c.cls=="mfma":
            if p.wr&c.ab: n=max(n,a)
            if p.wr&c.srcC and (p.wr!=c.srcC or p.op!=c.op): n=max(n,b)
            if p.wr&c.wr and not (p.wr==c.srcC): n=max(n,b)
        elif c.cls in("valu","vm","ds"):
            if p.wr&(c.rd|c.wr): n=max(n,a)
            if c.cls=="valu" and p.srcC&c.wr: n=max(n,w)
    if p.cls=="salu" and ("s","m0") in p.wr and c.cls=="vm" and ("s","m0") in c.rd: n=max(n,1)
    if p.cls=="vm" and p.data:
        if c.cls=="valu" and p.data&c.wr: n=max(n,2)
        elif p.data&c.wr: n=max(n,1)
    return n
def finalize(ins, name=""):
    out=[]; vmq=[]; dsq=[]; smq=set(); nops=0
    lastidx={}
    for k,x in enumerate(ins):
        if x.cls=="vm" and x.tag: lastidx[x.tag]=k
    for kk,x in enumerate(ins):
        if x.op=="s_waitcnt" and x.waittags not in (None,0):
            for t in x.waittags:
                if lastidx.get(t,-1)>kk: raise Exception(f"{name}: wait on tag {t} before all its ops are issued")
        if x.flush: vmq=[]
        if x.op=="s_waitcnt" and (x.waittags is not None or x.lgkm is not None):
            parts=[]
            if x.waittags is not None:
                if x.waittags==0: n=0
                else:
                    tg=set(x.waittags); idx=[k for k,(t,_) in enumerate(vmq) if t in tg]
                    n=len(vmq)-1-idx[-1] if idx else None
                if n is not None:
                    n=min(n,63); parts.append(f"vmcnt({n})")
            if x.lgkm is not None: parts.append(f"lgkmcnt({x.lgkm})")
            if not parts: continue
            x.text="s_waitcnt "+" ".join(parts)
        if x.op=="s_waitcnt":
            m=re.search(r"vmcnt\((\d+)\)",x.text)
            if m:
                n=int(m.group(1)); vmq=vmq[len(vmq)-n:] if n<len(vmq) and n>0 else ([] if n==0 else vmq)
            m=re.search(r"lgkmcnt\((\d+)\)",x.text)
            if m:
                n=int(m.group(1)); dsq=dsq[len(dsq)-n:] if n<len(dsq) and n>0 else ([] if n==0 else dsq)
                if n==0: smq=set()
        if x.cls not in("label","dir"):
            touch=x.rd|x.wr
            for (t,w) in vmq:
                if w&touch: raise Exception(f"{name}: use of pending vm dest {sorted(w&touch)[:2]} in: {x.text}")
            for w in dsq:
                if w&touch: raise Exception(f"{name}: use of pending ds dest {sorted(w&touch)[:2]} in: {x.text}")
            if smq&touch: raise Exception(f"{name}: use of pending smem dest in: {x.text}")
            d=0; req=0
            for p in reversed(out):
                if d>=12: break
                if p.cls not in("label","dir"):
                    req=max(req,need(p,x)-d)
                d+=p.states()
            if req>0:
                out.append(Ins(f"s_nop {req-1}")); nops+=1
        out.append(x)
        if x.cls=="vm": vmq.append((x.tag,set(x.wr)))
        if x.cls=="ds": dsq.append(set(x.wr))
        if x.cls=="smem": smq|=x.wr
        if len(vmq)>63: pass
    return out,nops
def weave(mf, fillers):
    gaps=[[] for _ in mf]
    for k,(pos,x) in enumerate(sorted(enumerate(fillers),key=lambda e:(e[1][0],e[0]))):
        p,x=x
        gaps[max(0,min(len(mf)-1,int(p)))].append(x)
    o=[]
    for m,g in zip(mf,gaps):
        o.append(m); o+=g
    return o
def spread(lst,a,b):
    n=len(lst)
    return [(a+(b-a)*k/n,x) for k,x in enumerate(lst)]

def cost(x):
    op=x.op.replace("_e64","").replace("_e32","")
    if x.cls in("label","dir"): return 0
    if x.note: return x.note
    if op in TRANS: return 2
    if x.cls=="vm": return 2
    return 1
def conflict(a,b):
    if a.wr&(b.rd|b.wr) or a.rd&b.wr: return True
    if a.cls=="vm" and b.cls=="vm": return True
    return False
class Pool:
    def __init__(s,ins,look=20): s.q=list(ins); s.look=look; s.last={}
    def take(s,room,gap):
        for k,x in enumerate(s.q[:s.look]):
            if cost(x)>room: continue
            if any(conflict(y,x) for y in s.q[:k]): continue
            if any(s.last.get(r,-9)>=gap for r in x.rd): continue
            s.q.pop(k)
            for r in x.wr: s.last[r]=gap
            return x
        return None
_gapno=[0]
def pack(mf, fixed, pool=None, cap=2, lo=0):
    gaps=[[] for _ in mf]
    for (_, (p,x)) in sorted(enumerate(fixed),key=lambda e:(e[1][0],e[0])):
        gaps[max(0,min(len(mf)-1,int(p)))].append(x)
    o=[]
    for k,(m,g) in enumerate(zip(mf,gaps)):
        _gapno[0]+=1
        o.append(m); o+=g
        room=cap-sum(cost(x) for x in g)
        while pool is not None and k>=lo and room>0:
            x=pool.take(room,_gapno[0])
            if x is None: break
            o.append(x); room-=cost(x)
    return o

def kind(x):
    if x.cls in("salu","ctl","smem"): return "S"
    if x.cls in("ds","vm"): return "X"
    return "V"
def gaplen(seq):
    t=4; lastD=-99; prevV=False
    for x in seq:
        k=kind(x)
        if k=="S": t+=4*(x.note or 1); continue
        t=max(t,8)
        if k=="X":
            if prevV: t+=8
            if x.cls=="ds": t=max(t,lastD+8); lastD=t
            t+=4; prevV=False
        else:
            t+=4*cost(x); prevV=True
    return max(16,t)
EST=[0]
def pack2(mf, fixed, pool=None, extra=0, lo=0, tail=None, dsend=None):
    F=[(p,x) for _,(p,x) in sorted(enumerate(fixed),key=lambda e:(e[1][0],e[0]))]
    o=[]; n=len(mf)
    def clash(a,b): return conflict(a,b) or a.cls=="ctl" or b.cls=="ctl" or (a.cls=="ds" and b.cls=="ds")
    for k,m in enumerate(mf):
        _gapno[0]+=1
        S=list(tail) if (tail and k==n-1) else []; X=[]; V=[]
        lim=16+4*extra
        nds=sum(1 for _,x in F if x.cls=="ds")
        progress=True
        while progress:
            progress=False
            for i,(p,x) in enumerate(F):
                if p>=k+1: break
                if any(clash(y,x) for _,y in F[:i]): continue
                kd=kind(x)
                later = X+V if kd=="S" else (V if kd=="X" else [])
                if any(clash(y,x) for y in later): continue
                if kd=="X" and ("s","m0") in x.rd and S and ("s","m0") in S[-1].wr and not X: continue
                if tail and k==n-1 and kd=="X": pass
                trial=(S+[x]+X+V) if kd=="S" else ((S+X+[x]+V) if kd=="X" else (S+X+V+[x]))
                urgent = (k==n-1) or (x.cls=="ds" and dsend is not None and nds>dsend-k)
                if gaplen(trial)>lim and not urgent: continue
                (S if kd=="S" else X if kd=="X" else V).append(x); F.pop(i); progress=True
                if x.cls=="ds": nds-=1
                break
        if tail and k==n-1: assert not any(x.cls=="ds" for x in X), "LDS read behind the period's wait"
        while pool is not None and k>=lo:
            got=None
            for room in (2,1):
                pass
            for i,x in enumerate(pool.q[:pool.look]):
                if any(conflict(y,x) for y in pool.q[:i]): continue
                if any(pool.last.get(r,-9)>=_gapno[0] for r in x.rd): continue
                kd=kind(x)
                trial=(S+[x]+X+V) if kd=="S" else ((S+X+[x]+V) if kd=="X" else (S+X+V+[x]))
                later = X+V if kd=="S" else (V if kd=="X" else [])
                if any(conflict(y,x) for y in later): continue
                if gaplen(trial)>lim: continue
                got=i; break
            if got is None: break
            x=pool.q.pop(got)
            for r in x.wr: pool.last[r]=_gapno[0]
            kd=kind(x); (S if kd=="S" else X if kd=="X" else V).append(x)
        o.append(m); o+=S+X+V
        EST[0]+=gaplen(S+X+V)
    o+=[x for _,x in F]; EST[0]+=4*len(F)
    return o
def estimate(ins):
    tot=0; cur=None
    for x in ins:
        if x.cls in("label","dir"): continue
        if x.cls=="mfma":
            if cur is not None: tot+=gaplen(cur)
            cur=[]
        elif cur is not None: cur.append(x)
    return tot+(gaplen(cur) if cur is not None else 0)
```

```python
import sys, math
from isa import *
NAME="gated_mix__sliding_local_dilated__swiglu_ffn__prompt"
OPT=dict(stamp=0, probe=-2, pwg=100, obs=0, abl=0, outpol=0,
         rot=4, arot=7, rate=5, cap=2, capc=3, cp=16, chainA=1, w2p0=13, sAt=1, nin=3, sBs=2, pA=10,
         lead=12, pah=12, nm=3, ntt=5, hlead=9, hpah=9, arate=12, apf=1, spf=13, apfk=9, hp13=5, hwin=0, nap=24, amid=4, hin=2, gop=-1, p2=1, est=0, tlb=1, stf=0, split0=1, npre=2, pre1=5, early=9, aearly=5)
for a in sys.argv[2:]:
    k,v=a.split("="); OPT[k]=int(v)
H0=0x100000; NT=130; S0=0x80000; SSTR=2176*4; STAMP0=0xC00000; WSN=0x1000000
OOB=0x80000000
X,WA,WU,WD,WO,WS,OUT,DBG,GW=4,8,12,16,20,24,28,32,36
def srd(b): return f"s[{b}:{b+3}]"
def vr(b,n=1): return f"v{b}" if n==1 else f"v[{b}:{b+n-1}]"
def ar(b,n=1): return f"a{b}" if n==1 else f"a[{b}:{b+n-1}]"
P=[]
def e(t,tag=None):
    x=I(t,tag); P.append(x); return x
_l=[0]
def lab(p="L"):
    _l[0]+=1; return f"{p}{_l[0]}"
def mksrd(b,src,n,bias=0):
    if bias:
        e(f"s_sub_u32 s{b}, s{src}, {bias}"); e(f"s_subb_u32 s{b+1}, s{src+1}, 0")
    else:
        e(f"s_mov_b64 s[{b}:{b+1}], s[{src}:{src+1}]")
    e(f"s_mov_b32 s{b+2}, {n+bias}"); e(f"s_mov_b32 s{b+3}, 0x20000")
def mfma(d,a,b,c): return I(f"v_mfma_f32_16x16x32_bf16 {d}, {a}, {b}, {c}")
sW,sXCD,sJ,sI=62,63,64,65
sT=[66,67,68,69,70,71]
sSTB=98
nstamp=[0]
def stamp(idx,last=False):
    if OPT['probe']!=-2:
        o=[]
        if idx==OPT['probe']: o+=[I("s_memrealtime s[94:95]"),I("s_waitcnt lgkmcnt(0)"),I("s_sub_u32 s97, s94, s96")]
        if last:
            L=lab("PR"); D=lab("PD")
            o+=[I(f"s_cmp_eq_u32 s2, {OPT['pwg']}"),I(f"s_cbranch_scc0 {D}"),I("s_add_u32 s97, s97, 4000"),I(L+":"),I("s_memrealtime s[94:95]"),I("s_waitcnt lgkmcnt(0)"),
                I("s_sub_u32 s94, s94, s96"),I("s_cmp_lt_u32 s94, s97"),I(f"s_cbranch_scc1 {L}"),I(D+":")]
        return o
    if not OPT['stamp']: return []
    if OPT['stamp']==2 and idx not in (0,1,2,3,4,5,6,7,8,9,10,11,55,56,57,58,59,61) : return []
    if OPT['stamp']==3 and idx not in (0,9) and not last: return []
    o=[I("s_memrealtime s[94:95]"),I("s_memtime s[96:97]"),I("s_waitcnt lgkmcnt(0)"),
       I(f"v_writelane_b32 v254, s94, {idx}"),I(f"v_writelane_b32 v255, s96, {idx}")]
    if last: o+=[I("v_lshlrev_b32 v253, 3, v0"),I(f"buffer_store_dwordx2 v[254:255], v253, {srd(WS)}, s{sSTB} offen","stamp")]
    return o
def spin(addrv, off, cmpval, srdb, res=12, nap=1):
    L=lab("SP"); D=lab("SD")
    e("s_mov_b32 s92, 0")
    e(L+":")
    e(f"buffer_load_dword v{res}, v{addrv}, {srd(srdb)}, 0 offen offset:{off} sc1","poll")
    e("s_waitcnt vmcnt(0)")
    e(f"v_cmp_ne_u32 vcc, {cmpval}, v{res}")
    e(f"s_cbranch_vccz {D}")
    e("s_add_u32 s92, s92, 1")
    e("s_cmp_lt_u32 s92, 0x40000")
    e(f"s_sleep {nap}")
    e(f"s_cbranch_scc1 {L}")
    e(D+":")
def check_or_spin(addrv, off, cmpval, srdb, res):
    D=lab("CK")
    e(f"v_cmp_ne_u32 vcc, {cmpval}, v{res}")
    e(f"s_cbranch_vccz {D}")
    n0=len(P)
    spin(addrv,off,cmpval,srdb,res)
    for x in P[n0:]:
        if x.cls=="vm": x.cls="raw"; x.wr=set()
        if x.op=="s_waitcnt": x.op="raw"
    e(D+":")

def common_prologue():
    e("s_cmp_ge_u32 s2, 256"); e("s_cbranch_scc1 L_exit")
    if OPT['probe']!=-2:
        e("s_memrealtime s[94:95]"); e("s_waitcnt lgkmcnt(0)"); e("s_mov_b32 s96, s94"); e("s_mov_b32 s97, 0")
    e("s_load_dwordx16 s[40:55], s[0:1], 0")
    e("s_load_dwordx4 s[56:59], s[0:1], 64")
    e("s_load_dwordx2 s[60:61], s[0:1], 80")
    e("v_lshrrev_b32 v1, 6, v0")
    e(f"s_and_b32 s{sXCD}, s2, 7"); e(f"s_lshr_b32 s{sJ}, s2, 3")
    e(f"v_readfirstlane_b32 s{sW}, v1")
    e("v_and_b32 v0, 63, v0")
    if OPT['stamp']:
        e(f"s_lshl_b32 s{sSTB}, s2, 2"); e(f"s_add_u32 s{sSTB}, s{sSTB}, s{sW}"); e(f"s_lshl_b32 s{sSTB}, s{sSTB}, 9")
        e(f"s_add_u32 s{sSTB}, s{sSTB}, {STAMP0}")
        e("v_mov_b32 v254, 0"); e("v_mov_b32 v255, 0")
    e(f"s_mov_b32 s{sI}, s{sXCD}")
    e(f"s_cmp_eq_u32 s{sJ}, 0"); e("s_cbranch_scc1 L_spare")
    e(f"s_cmp_lt_u32 s{sJ}, 9"); e("s_cbranch_scc1 L_attn")

def dma(voff,sr,soff,imm,tag): return I(f"buffer_load_dwordx4 v{voff}, {srd(sr)}, {soff} offen offset:{imm} lds",tag)

flat=lambda L:[x for it in L for x in it]
def mod7(dst,src,tmp,R=7):
    e(f"s_mul_i32 s{tmp}, s{src}, 9363"); e(f"s_lshr_b32 s{tmp}, s{tmp}, 16"); e(f"s_mul_i32 s{tmp}, s{tmp}, 7"); e(f"s_sub_u32 s{dst}, s{src}, s{tmp}")
    if R==1: e(f"s_mov_b32 s{dst}, 0")
    elif R==2: e(f"s_and_b32 s{dst}, s{dst}, 1"); e(f"s_mul_i32 s{dst}, s{dst}, 3")
    elif R==4: e(f"s_and_b32 s{dst}, s{dst}, 3"); e(f"s_lshl_b32 s{dst}, s{dst}, 1")

class Down:
    def __init__(c,**kw): c.__dict__.update(kw)
    def setup_w(c,sF0,sT2,sN,t):
        t0,t1,t2,t3=t; a,b,d=c.vt
        e(f"v_lshrrev_b32 v{a}, 3, v0"); e(f"v_and_b32 v{b}, 6, v{a}"); e(f"v_and_b32 v{d}, 7, v0"); e(f"v_xor_b32 v{b}, v{b}, v{d}")
        e(f"v_mul_u32_u24 v{a}, 896, v{a}"); e(f"v_lshl_add_u32 v{c.vW2}, v{b}, 4, v{a}")
        e(f"s_lshr_b32 s{t0}, s{sW}, 1"); e(f"s_mul_i32 s{t0}, s{t0}, 28"); e(f"s_and_b32 s{t1}, s{sW}, 1"); e(f"s_add_u32 s{t3}, s{t0}, s{t1}")
        e(f"s_lshl_b32 s{t2}, s{sN}, 7"); e(f"v_add_u32 v{c.vW2}, s{t2}, v{c.vW2}")
        e(f"s_add_u32 s{t0}, s{sT2}, s{sN}"); e(f"s_and_b32 s{t0}, s{t0}, 3"); e(f"s_sub_u32 s{c.sWr3}, 3, s{t0}")
        e(f"s_lshl_b32 s{t1}, s{sW}, 2"); e(f"s_add_u32 s{t2}, s{t0}, s{t1}")
        e(f"s_mul_i32 s{t0}, s{t2}, {28*896}"); e(f"v_add_u32 v{c.vWo}, s{t0}, v{c.vW2}")
        e(f"s_add_u32 s{t0}, s{t2}, 56"); e(f"s_mul_i32 s{t0}, s{t0}, {NT}"); e(f"s_add_u32 s{t0}, s{t0}, s{sF0}"); e(f"s_lshl_b32 s{t0}, s{t0}, 10"); e(f"s_add_u32 s{c.sHO}, s{t0}, {H0}")
        e(f"s_mov_b32 s{c.sNWo}, {-3*28*896}"); e(f"s_mov_b32 s{c.sNHo}, {-3*NT*1024}")
        e(f"s_lshl_b32 s{t0}, s{sT2}, 1"); e(f"s_add_u32 s{t0}, s{t0}, s{sN}")
        mod7(t0,t0,t1); e(f"s_sub_u32 s{c.sWr2}, 6, s{t0}"); e(f"s_lshl_b32 s{t0}, s{t0}, 2"); e(f"s_add_u32 s{t3}, s{t3}, s{t0}")
        e(f"s_mul_i32 s{t1}, s{t3}, {32*896}"); e(f"v_add_u32 v{c.vW2}, s{t1}, v{c.vW2}")
        e(f"s_mov_b32 s{c.sNW2}, {-6*114688}"); e(f"s_mov_b32 s{c.sNH}, {-24*NT*1024}")
        e(f"s_mul_i32 s{t0}, s{t3}, {NT}"); e(f"s_add_u32 s{t0}, s{t0}, s{sF0}"); e(f"s_lshl_b32 s{t0}, s{t0}, 10"); e(f"s_add_u32 s{c.sHld}, s{t0}, {H0}")
        for j in range(1,4): e(f"s_mov_b32 s{c.sW2o[j]}, {6144*j}")
    def setup_lane(c,dst,sBases,t):
        t0=t[0]; a,b,d=c.vt
        e(f"v_bfe_u32 v{a}, v0, 4, 1"); e(f"v_bfe_u32 v{b}, v0, 2, 2"); e(f"v_lshl_add_u32 v{a}, v{a}, 2, v{b}")
        e(f"v_lshrrev_b32 v{b}, 5, v0"); e(f"v_lshlrev_b32 v{b}, 10, v{b}"); e(f"v_lshl_add_u32 v{b}, v{a}, 7, v{b}")
        e(f"v_and_b32 v{d}, 3, v0"); e(f"v_lshl_add_u32 v{b}, v{d}, 3, v{b}"); e(f"v_lshrrev_b32 v{a}, 1, v{a}")
        for q in range(4):
            e(f"s_add_u32 s{t0}, s{sW}, {q}"); e(f"s_and_b32 s{t0}, s{t0}, 3")
            e(f"v_xor_b32 v{d}, s{t0}, v{a}"); e(f"v_lshl_add_u32 v{d}, v{d}, 5, v{b}")
            for k,sb in enumerate(sBases): e(f"v_add_u32 v{dst[k][q]}, s{sb}, v{d}")
    def setup_io(c,sF0,sN,t):
        t0,t1,t2,t3=t; a,b,d=c.vt; N=c.NTT
        e(f"v_lshrrev_b32 v{a}, 5, v0")
        e(f"s_add_u32 s{t1}, s{sF0}, {N-1}")
        e(f"s_mul_i32 s{t0}, s{sF0}, 13108"); e(f"s_lshr_b32 s{t0}, s{t0}, 16"); e(f"s_mul_i32 s{t2}, s{t1}, 13108"); e(f"s_lshr_b32 s{t2}, s{t2}, 16")
        e(f"s_sub_u32 s{t2}, s{t2}, s{t0}"); e(f"s_lshl_b32 s{t2}, s{t2}, 10"); e(f"s_lshl_b32 s{t0}, s{t0}, 3"); e(f"s_add_u32 s{t0}, s{t0}, s{sW}"); e(f"s_lshl_b32 s{t0}, s{t0}, 7")
        e(f"v_mul_u32_u24 v{b}, s{t2}, v{a}"); e(f"v_add_u32 v{c.vPA}, s{t0}, v{b}")
        e(f"s_lshr_b32 s{t0}, s{sF0}, 3"); e(f"s_lshr_b32 s{t2}, s{t1}, 3"); e(f"s_min_u32 s{t2}, s{t2}, 15")
        e(f"s_sub_u32 s{t2}, s{t2}, s{t0}"); e(f"s_lshl_b32 s{t2}, s{t2}, 9"); e(f"s_lshl_b32 s{t0}, s{t0}, 2"); e(f"s_add_u32 s{t0}, s{t0}, s{sW}"); e(f"s_add_u32 s{t0}, s{t0}, 208"); e(f"s_lshl_b32 s{t0}, s{t0}, 7")
        e(f"v_mul_u32_u24 v{b}, s{t2}, v{a}"); e(f"v_add_u32 v{c.vPO}, s{t0}, v{b}")
        e(f"s_lshl_b32 s{t0}, s{sF0}, 4"); e(f"v_and_b32 v{a}, 15, v0"); e(f"v_add_u32 v{a}, s{t0}, v{a}")
        e(f"s_mul_i32 s{t1}, s{sW}, {SSTR}"); e(f"s_add_u32 s{t1}, s{t1}, {S0}"); e(f"v_lshlrev_b32 v{c.vSA}, 2, v{a}"); e(f"v_add_u32 v{c.vSA}, s{t1}, v{c.vSA}")
        e(f"v_mul_u32_u24 v{a}, 896, v{a}"); e(f"v_lshrrev_b32 v{b}, 4, v0"); e(f"v_lshl_add_u32 v{a}, v{b}, 3, v{a}")
        e(f"s_lshl_b32 s{t1}, s{sN}, 7"); e(f"s_lshl_b32 s{t2}, s{sW}, 5"); e(f"s_add_u32 s{t1}, s{t1}, s{t2}"); e(f"v_add_u32 v{c.vO}, s{t1}, v{a}")
        base,ws,qs=c.red
        e(f"s_mul_i32 s{t0}, s{sW}, {ws}"); e(f"s_add_u32 s{t0}, s{t0}, {base}"); e(f"v_add_u32 v{c.vRW}, s{t0}, v{c.vH}")
        for q in range(1,4):
            e(f"s_sub_u32 s{t0}, s{sW}, {q}"); e(f"s_and_b32 s{t0}, s{t0}, 3"); e(f"s_mul_i32 s{t0}, s{t0}, {ws}"); e(f"s_add_u32 s{t0}, s{t0}, {base+(q-1)*qs}")
            e(f"v_add_u32 v{c.vRR+q-1}, s{t0}, v{c.vH}")
        for j in range(1,N): e(f"s_mov_b32 s{c.sRow+j-1}, {16*j*896}")
    def w2dma(c,b):
        sg,off=c.m0(b)
        o=[[dma(c.vW2,WD if b<14 else WO,"0" if pi==0 else f"s{c.sW2o[pi]}",pi*1024,f"b{b}")] for pi in range(4)]
        o[0].insert(0,I(f"s_add_u32 m0, s{sg}, {off}"))
        if b==13: o[-1].append(I(f"v_mov_b32 v{c.vW2}, v{c.vWo}"))
        elif b<13:
            o[-1]+=[ATOM(f"s_cmp_eq_u32 s{c.sWr2}, {b%7}",f"s_cselect_b32 s{c.sD}, s{c.sNW2}, 114688"),I(f"v_add_u32 v{c.vW2}, s{c.sD}, v{c.vW2}")]
            if b==6: o[-1].append(I(f"v_add_u32 v{c.vW2}, {64*896}, v{c.vW2}"))
        elif b<17: o[-1]+=[ATOM(f"s_cmp_eq_u32 s{c.sWr3}, {b-14}",f"s_cselect_b32 s{c.sD}, s{c.sNWo}, {28*896}"),I(f"v_add_u32 v{c.vW2}, s{c.sD}, v{c.vW2}")]
        return o
    def AW(c,b,q,a=None):
        NM=OPT['nm']
        if b<8: r=c.aSt+16*b+4*q
        elif b>=18-NM and NM>1: r=c.aSt+16*(b-(18-NM))+4*q
        else:
            r=c.AF(b%2,q); return vr(r,4) if a is None else vr(r+2*a,2)
        return ar(r,4) if a is None else ar(r+2*a,2)
    def treads(c,b,rd=None):
        base,off=(rd or c.rd)(b)
        return [I(f"ds_read_b64_tr_b16 {c.AW(b,q,a)}, v{base[q]} offset:{off+a*2048}") for q in range(4) for a in range(2)]
    def HS(c,b,t):
        k=b%c.NSL; na=c.nAS
        return ar(c.aH+(k*c.NTT+t)*4,4) if k<na else vr(c.vHS+((k-na)*c.NTT+t)*4,4)
    def hload(c,b):
        o=[[I(f"buffer_load_dwordx4 {c.HS(b,t)}, v{c.vH if t<4 else c.vH4}, {srd(WS)}, s{c.sHld} offen offset:{(t%4)*1024} sc1",f"h{b}_{t}")] for t in range(c.NTT)]
        if b==13: o[-1].append(I(f"s_mov_b32 s{c.sHld}, s{c.sHO}"))
        elif b<13:
            o[-1]+=[ATOM(f"s_cmp_eq_u32 s{c.sWr2}, {b%7}",f"s_cselect_b32 s{c.sD}, s{c.sNH}, {4*NT*1024}",f"s_add_u32 s{c.sHld}, s{c.sHld}, s{c.sD}")]
            if b==6: o[-1].append(I(f"s_add_u32 s{c.sHld}, s{c.sHld}, {2*NT*1024}"))
        elif b<17: o[-1]+=[ATOM(f"s_cmp_eq_u32 s{c.sWr3}, {b-14}",f"s_cselect_b32 s{c.sD}, s{c.sNHo}, {NT*1024}",f"s_add_u32 s{c.sHld}, s{c.sHld}, s{c.sD}")]
        return o
    def poll(c,tag):
        av,off={"pollA":(c.vPA,0),"pollB":(c.vPA,512),"pollO":(c.vPO,0)}[tag]
        return I(f"buffer_load_dword v{c.vPoll}, v{av}, {srd(WS)}, 0 offen offset:{off} sc1",tag)
    def main(c,WQ,LEAD,PAH,so=0):
        N=c.NTT; NM=OPT['nm']; G0=(18-NM)*N; GT=18*N
        P.append(WAIT(vm=["pollA"])); check_or_spin(c.vPA,0,7,WS,c.vPoll)
        P.extend(stamp(so+11))
        gb=lambda g: divmod(g,N) if g<G0 else (18-NM+(g-G0)%NM,(g-G0)//NM)
        HL=flat([c.hload(b) for b in range(18)])
        HL[G0:]=[HL[N*gb(g)[0]+gb(g)[1]] for g in range(G0,GT)]
        if NM>1:
            for g in range(G0,GT):
                b,t=gb(g); x=HL[g][0]; HL[g]=[I(x.text.replace(f"s{c.sHld} offen",f"s{44+b-(18-NM)} offen"),x.tag)]
            for b in range(18-NM,18):
                HL[G0-1].append(I(f"s_mov_b32 s{44+b-(18-NM)}, s{c.sHld}"))
                if b<17: HL[G0-1]+=c.hload(b)[-1][1:]
        for l in range(LEAD): P.extend(HL[l])
        P.extend(stamp(so+5))
        hn=LEAD
        gates={7*N-LEAD:("pollB",c.vPA,512,7,6), 14*N-LEAD:("pollO",c.vPO,0,4,7)}
        polls={max(0,g-PAH):v[0] for g,v in gates.items()}
        RQ={}
        for b in range(8,18):
            g0=N*(b-1) if b<=18-NM else N*(18-NM-1)-N*(b-(18-NM))
            per=-(-8//N)
            for k,x in enumerate(c.treads(b)): RQ.setdefault(g0+k//per,[]).append((0.2+(k%per),x,f"b{b}"))
        base,ws,qs=c.red
        wr=lambda q,t: I(f"ds_write_b128 v{c.vRW}, {vr(c.ACC(q,t),4)} offset:{(q-1)*qs+t*1024}")
        def gw(g):
            b,t=gb(g)
            tags=[f"h{b}_{t}"]+[x[2] for x in RQ.get(g,[])]
            if g in gates: tags.append(gates[g][0])
            return WAIT(vm=tags,lgkm=0 if (g%N==0 and g<=G0) else None)
        for g in range(GT):
            b,t=gb(g)
            mf=[mfma(vr(c.ACC(q,t),4),c.AW(b,q),c.HS(b,t),"0" if b==0 else vr(c.ACC(q,t),4)) for q in range(4)]
            if g==0: P.append(gw(0))
            if g in gates:
                tg,av,off,val,si=gates[g]
                check_or_spin(av,off,val,WS,c.vPoll); P.extend(stamp(so+si))
            if g%N==0 and not so: P.extend(stamp(12+g//N))
            f=[]
            if g in polls: f.append((2.5,c.poll(polls[g])))
            nl=0
            if hn<GT:
                it=HL[hn]; hn+=1; nl=1; f.append((0,it[0])); f+=[(1,x) for x in it[1:]]
            elif g+LEAD<GT+N: f.append((0,I(f"buffer_load_dword v{c.vS+g+LEAD-GT}, v{c.vSA}, {srd(WS)}, 0 offen offset:{(g+LEAD-GT)*64} sc1","s")))
            if WQ and WQ[0][0]<=g:
                seen=False
                for x in WQ.pop(0)[1]:
                    if x.cls=="vm": seen=True; f.append((2,x))
                    else: f.append((3 if seen else 1.5,x))
            f+=[(p_,x) for p_,x,_ in RQ.get(g,[])]
            if g>=G0 and t>0:
                k=(g-G0)%NM
                for q in range(1,4):
                    if (q-1)*NM//3==k: f.append((q-0.1 if NM==1 else (3 if k==0 else 1),wr(q,t-1)))
            o=pack2(mf,f)
            if g+1<GT:
                j=max(i for i,x in enumerate(o) if x.cls=="mfma")
                if any(x.cls in("ds","vm") for x in o[j+1:]): o.append(gw(g+1))
                else: o.insert(j+1,gw(g+1))
            P.extend(o)
        assert not WQ
        for q in range(1,4): P.append(wr(q,N-1))
        P.extend(stamp(so+8))
        P.append(WAIT(vm=["s"],lgkm=0)); e("s_barrier")
        R=lambda q,t: c.vRT+((q-1)*N+t)*4
        for t in range(N):
            for q in range(1,4): e(f"ds_read_b128 {vr(R(q,t),4)}, v{c.vRR+q-1} offset:{t*1024}")
        for t in range(N):
            e(f"s_waitcnt lgkmcnt({3*(N-1-t)})")
            d=c.ACC(0,t)
            for r in (0,2): e(f"v_pk_add_f32 {vr(R(1,t)+r,2)}, {vr(R(1,t)+r,2)}, {vr(R(2,t)+r,2)}")
            for r in (0,2): e(f"v_pk_add_f32 {vr(d+r,2)}, {vr(d+r,2)}, {vr(R(3,t)+r,2)}")
            for r in (0,2): e(f"v_pk_add_f32 {vr(d+r,2)}, {vr(d+r,2)}, {vr(R(1,t)+r,2)}")
            for r in range(4): e(f"v_mul_f32 v{d+r}, v{c.vS+t}, v{d+r}")
            e(f"v_cvt_pk_bf16_f32 v{d}, v{d}, v{d+1}"); e(f"v_cvt_pk_bf16_f32 v{d+1}, v{d+2}, v{d+3}")
            e(f"buffer_store_dwordx2 {vr(d,2)}, v{c.vO}, {srd(OUT)}, {'0' if t==0 else 's%d'%(c.sRow+t-1)} offen{['',' sc1',' nt'][OPT['outpol']]}","out")
        P.extend(stamp(so+9,True))
        e("s_endpgm")

def ffn():
    sSL,sTT,sT2,sN=72,73,74,75
    sSeg1,sSeg2,sXb=76,77,78
    sXo=[None,79,80,81,82]
    sW1o=83
    sHst,sHld,sC=87,88,89
    vX,vW,vXR,vWR,vW2,vH,vH4,vFl,vOne,vPoll,vPA=1,2,(3,4),(5,6),7,8,9,10,11,12,13
    ACC=lambda p,q,t: 16+80*p+(q*5+t)*4
    def XF(i): return vr(176+4*i,4) if i<6 else ar(4*(i-6),4)
    AF=lambda buf,q: 200+16*buf+4*q
    t0,t1,t2_,t3=sT[:4]
    e(f"s_lshr_b32 s{t1}, s{sXCD}, 2"); e(f"s_add_u32 s{sI}, s{t1}, 8")
    e(f"s_and_b32 s{t0}, s{sXCD}, 3"); e(f"s_cmp_eq_u32 s{t0}, 3"); e(f"s_cselect_b32 s{t0}, 10, 9")
    e(f"s_cmp_lt_u32 s{sJ}, s{t0}"); e("s_cbranch_scc1 L_spare")
    e(f"s_sub_u32 s{sI}, s{sJ}, s{t0}")
    e(f"s_mul_i32 s{t0}, s{sXCD}, 23"); e(f"s_add_u32 s{sI}, s{sI}, s{t0}")
    e(f"s_sub_u32 s{sI}, s{sI}, s{t1}")
    e(f"s_mul_i32 s{sT2}, s{sI}, 9363"); e(f"s_lshr_b32 s{sT2}, s{sT2}, 16")
    e(f"s_mul_i32 s{t0}, s{sT2}, 7"); e(f"s_sub_u32 s{sN}, s{sI}, s{t0}")
    e(f"s_sub_u32 s{t0}, s{sI}, 98"); e(f"s_mul_i32 s{t1}, s{t0}, 10923"); e(f"s_lshr_b32 s{t1}, s{t1}, 16")
    e(f"s_mul_i32 s{t2_}, s{t1}, 6"); e(f"s_sub_u32 s{t0}, s{t0}, s{t2_}"); e(f"s_add_u32 s{t0}, s{t0}, 7")
    e(f"s_cmp_lt_u32 s{sI}, 98"); e(f"s_cselect_b32 s{sSL}, s{sT2}, s{t1}"); e(f"s_cselect_b32 s{sTT}, s{sN}, s{t0}")
    e("v_lshrrev_b32 v14, 3, v0")
    e("v_and_b32 v15, 7, v0")
    e(f"s_and_b32 s{t0}, s{sW}, 1"); e(f"s_lshl_b32 s{t1}, s{t0}, 2")
    e("v_lshrrev_b32 v12, 1, v14"); e(f"v_or_b32 v13, s{t1}, v12"); e("v_xor_b32 v13, v13, v15")
    e(f"s_mul_i32 s{t2_}, s{sTT}, 160"); e(f"s_lshl_b32 s{t3}, s{sW}, 3"); e(f"s_add_u32 s{t2_}, s{t2_}, s{t3}")
    e(f"v_add_u32 v{vX}, s{t2_}, v14"); e(f"v_mul_u32_u24 v{vX}, 896, v{vX}"); e(f"v_lshl_add_u32 v{vX}, v13, 4, v{vX}")
    e(f"s_lshl_b32 s{t0}, s{t0}, 2")
    e("v_and_b32 v13, 2, v14"); e(f"v_or_b32 v13, s{t0}, v13"); e("v_xor_b32 v13, v13, v15")
    e(f"v_add_u32 v{vW}, s{t3}, v14"); e(f"v_mul_u32_u24 v{vW}, 3584, v{vW}"); e(f"v_lshl_add_u32 v{vW}, v13, 4, v{vW}")
    e(f"s_lshl_b32 s{t0}, s{sSL}, 8"); e(f"v_add_u32 v{vW}, s{t0}, v{vW}")
    sWr,sD,sNX,sNW,sWr2,sNW2,sNH=90,91,93,99,100,101,3
    e(f"s_lshl_b32 s{t0}, s{sSL}, 1"); e(f"s_add_u32 s{t0}, s{sTT}, s{t0}"); mod7(t0,t0,t1,OPT['rot'])
    e(f"s_sub_u32 s{sWr}, 6, s{t0}"); e(f"s_lshl_b32 s{t1}, s{t0}, 7"); e(f"v_add_u32 v{vX}, s{t1}, v{vX}")
    e(f"s_mul_i32 s{t1}, s{t0}, {64*3584}"); e(f"v_add_u32 v{vW}, s{t1}, v{vW}")
    e(f"s_mov_b32 s{sNX}, -768"); e(f"s_mov_b32 s{sNW}, {-6*64*3584}")
    e(f"s_lshl_b32 s{sSeg2}, s{sW}, 12")
    e(f"s_lshl_b32 s{sXb}, s{sW}, 10"); e(f"s_add_u32 s{sXb}, s{sXb}, 65536")
    for j in range(1,5): e(f"s_mov_b32 s{sXo[j]}, {32*j*896}")
    e(f"s_mov_b32 s{sW1o}, {32*3584-1024}")
    for b,n in ((X,1835008),(WA,1605632),(WU,1605632+2048)):
        e(f"s_mov_b32 s{b+2}, {n}"); e(f"s_mov_b32 s{b+3}, 0x20000")
    e("s_waitcnt lgkmcnt(0)")
    e(f"s_mov_b64 s[{X}:{X+1}], s[40:41]"); e(f"s_mov_b64 s[{WA}:{WA+1}], s[48:49]")
    e(f"s_sub_u32 s{WU}, s50, 2048"); e(f"s_subb_u32 s{WU+1}, s51, 0")
    P.extend(stamp(0))
    def xdma(c):
        o=[]
        for j in range(5):
            o.append([I(f"s_add_u32 m0, s{sXb}, {(c%4)*20480+j*4096}"), dma(vX,X,"0" if j==0 else f"s{sXo[j]}",0,f"x{c}")])
        o[-1]+=[ATOM(f"s_cmp_eq_u32 s{sWr}, {c}",f"s_cselect_b32 s{sD}, s{sNX}, 128"),I(f"v_add_u32 v{vX}, s{sD}, v{vX}")]
        return o
    def wdma(s):
        o=[]
        for j in range(2):
            for m in range(2):
                o.append([dma(vW,WA if m==0 else WU,"0" if j==0 else f"s{sW1o}",(2*m+j)*1024,f"w{s}" if (s or j) else "w0a")])
        o[0].insert(0,I(f"s_add_u32 m0, s{sSeg2}, {(s%4)*16384}"))
        o[-1]+=[ATOM(f"s_cmp_eq_u32 s{sWr}, {s%7}",f"s_cselect_b32 s{sD}, s{sNW}, {64*3584}"),I(f"v_add_u32 v{vW}, s{sD}, v{vW}")]
        if s==6: o[-1].append(I(f"v_add_u32 v{vW}, 128, v{vW}"))
        return o
    NTT=OPT['ntt']; R1=[176,177,178,179]; R2=[180,181,182,183]; sF0=39
    LOC=[((sSeg1,b*4096),13 if b<2 else 17) for b in range(6)]+[((sSeg2,((j+2)%4)*16384),21+2*j) for j in range(4)]
    loc=lambda b: LOC[b%10][0]
    D=Down(NTT=NTT,vt=(196,197,198),vW2=vW2,vWo=248,vH=vH,vH4=vH4,vPoll=vPoll,vPA=vPA,vPO=187,vSA=188,vO=189,vRW=190,vRR=184,vS=192,vRT=96,
           sW2o=[None,84,85,86],sWr2=sWr2,sNW2=sNW2,sNH=sNH,sD=sD,sWr3=38,sNWo=36,sNHo=37,sHld=sHld,sHO=sT[5],sRow=40,
           m0=loc,rd=lambda b:(R1 if loc(b)[0]==sSeg1 else R2,loc(b)[1]),red=(65536,24576,5120),
           ACC=lambda q,t:ACC(0,q,t),AF=AF,aSt=0,aH=128,nAS=128//(4*NTT),NSL=128//(4*NTT)+(4 if NTT==5 else 0),vHS=96)
    pro=flat([xdma(s)+wdma(s) for s in range(OPT['npre'])])
    P.extend(flat(pro[:OPT['early']]))
    mksrd(WS,60,WSN); mksrd(WD,52,1605632); mksrd(WO,44,401408); mksrd(OUT,56,1835008); mksrd(DBG,58,256)
    e("v_lshrrev_b32 v14, 4, v0")
    e("v_and_b32 v15, 15, v0")
    e("v_lshrrev_b32 v12, 1, v15"); e("v_xor_b32 v12, v12, v14"); e("v_lshlrev_b32 v12, 4, v12")
    e("v_lshl_add_u32 v12, v15, 7, v12")
    e(f"s_lshr_b32 s{t0}, s{sW}, 1"); e(f"s_mul_i32 s{t0}, s{t0}, 10240"); e(f"s_add_u32 s{t0}, s{t0}, 65536")
    e(f"v_add_u32 v{vXR[0]}, s{t0}, v12"); e(f"v_xor_b32 v{vXR[1]}, 64, v{vXR[0]}")
    e("v_bfe_u32 v12, v0, 2, 2")
    e("v_lshrrev_b32 v13, 1, v12"); e("v_and_b32 v15, 1, v14"); e("v_lshlrev_b32 v15, 1, v15"); e("v_or_b32 v13, v13, v15")
    e(f"s_and_b32 s{t0}, s{sW}, 1"); e(f"s_lshl_b32 s{t0}, s{t0}, 1"); e(f"v_xor_b32 v13, s{t0}, v13"); e("v_lshlrev_b32 v13, 5, v13")
    e("v_lshl_add_u32 v13, v14, 12, v13"); e("v_lshl_add_u32 v13, v12, 7, v13")
    e("v_and_b32 v15, 3, v0"); e(f"v_lshl_add_u32 v{vWR[0]}, v15, 3, v13"); e(f"v_xor_b32 v{vWR[1]}, 32, v{vWR[0]}")
    e(f"s_mul_i32 s{sF0}, s{sT2}, {NTT}")
    D.setup_w(sF0,sT2,sN,sT[:4])
    e(f"s_lshl_b32 s{t2_}, s{sTT}, 1"); e(f"s_lshr_b32 s{t1}, s{sW}, 1"); e(f"s_add_u32 s{t2_}, s{t2_}, s{t1}")
    e(f"s_lshl_b32 s{t0}, s{sSL}, 2"); e(f"s_and_b32 s{t3}, s{sW}, 1"); e(f"s_add_u32 s{t0}, s{t0}, s{t3}"); e(f"s_mul_i32 s{t0}, s{t0}, {NT}")
    e(f"s_mul_i32 s{t1}, s{t2_}, 5"); e(f"s_add_u32 s{t0}, s{t0}, s{t1}")
    e(f"s_lshl_b32 s{t0}, s{t0}, 10"); e(f"s_add_u32 s{sHst}, s{t0}, {H0}")
    e(f"s_lshl_b32 s{t0}, s{t2_}, 3"); e(f"s_add_u32 s{t0}, s{t0}, s{t3}"); e(f"s_cmp_ge_u32 s{sSL}, 7"); e(f"s_cselect_b32 s{t1}, 2, 0"); e(f"s_add_u32 s{t0}, s{t0}, s{t1}"); e(f"s_lshl_b32 s{t0}, s{t0}, 7")
    e(f"v_mov_b32 v{vFl}, {OOB}"); e(f"v_mov_b32 v12, s{t0}"); e("v_cmp_eq_u32 vcc, 0, v0")
    e(f"v_lshlrev_b32 v{vH}, 4, v0"); e(f"v_add_u32 v{vH4}, 4096, v{vH}")
    e(f"v_cndmask_b32 v{vFl}, v{vFl}, v12, vcc")
    e(f"s_mul_i32 s{sSeg1}, s{sW}, 24576"); e(f"s_add_u32 s{sSeg1}, s{sSeg1}, 65536")
    e(f"s_mov_b32 s{sC}, 0xbfb8aa3b")
    e(f"v_mov_b32 v{vOne}, 1")
    e("v_mov_b32 v15, 0")
    e(f"s_or_b32 s{t0}, s{sI}, s{sW}"); e(f"v_or_b32 v250, s{t0}, v0"); e("v_lshlrev_b32 v250, 8, v250")
    def reads(Pn):
        p,s,h=Pn//14,Pn//2,Pn%2
        CH=(p==1 or OPT['chainA']) and not (OPT['split0'] and s==0)
        o=[]
        for ks in ((0,1) if CH else (h,)):
            if p==0 and (h==0 or not CH):
                if s==3: o.append(I(f"v_add_u32 v{vXR[ks]}, 61440, v{vXR[ks]}"))
                for t in range(5): o.append(I(f"ds_read_b128 {XF((2*s+ks)*5+t)}, v{vXR[ks]} offset:{(s%4 if s!=3 else 0)*20480+t*2048}"))
                if s==3: o.append(I(f"v_subrev_u32 v{vXR[ks]}, 61440, v{vXR[ks]}"))
        tr=[]
        for j in range(4):
            if CH: m,ks,tl=j>>1,j&1,h
            else: m,ks,tl=j>>1,h,j&1
            for a in range(2):
                tr.append(I(f"ds_read_b64_tr_b16 {vr(AF(h,j)+2*a,2)}, v{vWR[tl]} offset:{(s%4)*16384+(2*m+ks)*1024+a*512}"))
        return tr[:4]+o+tr[4:]
    def epi(p,t):
        T=[232+k for k in range(8)]; O=240+4*(t%2)
        G=[ACC(p,k>>2,t)+(k&3) for k in range(8)]; U=[ACC(p,2+(k>>2),t)+(k&3) for k in range(8)]
        o=[]
        st=I(f"buffer_store_dwordx4 {vr(O,4)}, v{vH if t<4 else vH4}, {srd(WS)}, s{sHst} offen offset:{(t%4)*1024} {['sc1','sc0 sc1','sc1 nt','sc0 sc1 nt',''][OPT['stf']]}",f"st{p}")
        if p==1:
            for k in range(0,8,2): o.append(I(f"v_pk_mul_f32 {vr(T[k],2)}, {vr(G[k],2)}, s[48:49]"))
            for k in range(8):
                o.append(I(f"v_exp_f32 v{T[k]}, v{T[k]}"))
                if k%2==0: o.append(I(f"v_pk_mul_f32 {vr(U[k],2)}, {vr(G[k],2)}, {vr(U[k],2)}"))
            for k in range(0,8,2): o.append(I(f"v_pk_add_f32 {vr(T[k],2)}, {vr(T[k],2)}, s[50:51]"))
            for k in range(8):
                o.append(I(f"v_rcp_f32 v{G[k]}, v{T[k]}"))
                if k>=3 and k%2==1:
                    o.append(I(f"v_pk_mul_f32 {vr(U[k-3],2)}, {vr(G[k-3],2)}, {vr(U[k-3],2)}"))
                    if k>=5: o.append(I(f"v_cvt_pk_bf16_f32 v{O+(k-5)//2}, v{U[k-5]}, v{U[k-4]}"))
            o.append(I(f"v_cvt_pk_bf16_f32 v{O+2}, v{U[4]}, v{U[5]}"))
            o.append(I(f"v_pk_mul_f32 {vr(U[6],2)}, {vr(G[6],2)}, {vr(U[6],2)}"))
            o.append(I(f"v_cvt_pk_bf16_f32 v{O+3}, v{U[6]}, v{U[7]}"))
            return o+[st]
        for k in range(8): o.append(I(f"v_mul_f32 v{T[k]}, s{sC}, v{G[k]}"))
        for k in range(8):
            o.append(I(f"v_exp_f32 v{T[k]}, v{T[k]}")); o.append(I(f"v_mul_f32 v{U[k]}, v{G[k]}, v{U[k]}"))
        for k in range(8): o.append(I(f"v_add_f32 v{T[k]}, 1.0, v{T[k]}"))
        for k in range(8):
            o.append(I(f"v_rcp_f32 v{G[k]}, v{T[k]}"))
            if k>=1: o.append(I(f"v_mul_f32 v{U[k-1]}, v{G[k-1]}, v{U[k-1]}"))
            if k>=3 and k%2==1: o.append(I(f"v_cvt_pk_bf16_f32 v{O+(k-3)//2}, v{U[k-3]}, v{U[k-2]}"))
        o.append(I(f"v_mul_f32 v{U[7]}, v{G[7]}, v{U[7]}"))
        o.append(I(f"v_cvt_pk_bf16_f32 v{O+3}, v{U[6]}, v{U[7]}"))
        o.append(I(f"buffer_store_dwordx4 {vr(O,4)}, v{vH if t<4 else vH4}, {srd(WS)}, s{sHst} offen offset:{(t%4)*1024} {['sc1','sc0 sc1','sc1 nt','sc0 sc1 nt',''][OPT['stf']]}",f"st{p}"))
        return o
    D.setup_lane([R1,R2],[sSeg1,sSeg2],sT[:4]); D.setup_io(sF0,sN,sT[:4])
    e(f"s_mov_b32 s48, s{sC}"); e(f"s_mov_b32 s49, s{sC}"); e("s_mov_b32 s50, 1.0"); e("s_mov_b32 s51, 1.0")
    e(f"s_add_u32 s{t0}, s{sSeg2}, 147456"); e(f"v_add_u32 v249, s{t0}, v{vH}")
    for q in range(4): e(f"ds_write_b128 v249, {vr(176+4*q,4)} offset:{q*1024}")
    unpark=[I(f"ds_read_b128 {vr(176+4*q,4)}, v249 offset:{q*1024}") for q in range(4)]
    P.extend(flat(pro[OPT['early']:]))
    P.append(WAIT(vm=["x0","w0a"]+([] if OPT['split0'] else ["w0"]),lgkm=0)); e("s_barrier")
    P.extend(stamp(1))
    P.extend(reads(0))
    first=[]
    if OPT['npre']==1:
        first=xdma(1)+wdma(1); P.extend(flat(first[:OPT['pre1']])); first=first[OPT['pre1']:]
    P.append(WAIT(lgkm=0))
    pool=Pool(flat([epi(0,t) for t in range(5)]))
    dq=[]
    for s in range(max(2,OPT['npre']),14):
        if s<=6: dq.append((max(0,2*(s-4)+1),xdma(s)))
        dq.append((max(0,2*(s-4)+1),wdma(s)))
        if s==8: dq.append((0,[[I(f"buffer_load_dword v14, v15, {srd(DBG)}, 0 offen sc1","clr")]]))
    w2q=[(max(OPT['w2p0'],LOC[b][1]),D.w2dma(b)) for b in range(10)]
    cur=first
    for Pn in range(28):
        p,s,h=Pn//14,Pn//2,Pn%2
        CH=(p==1 or OPT['chainA']) and not (OPT['split0'] and s==0)
        mf=[]
        for jq in range(2 if CH else 4):
            for t in range(5):
                for ks in ((0,1) if CH else (h,)):
                    q = (2*jq+h) if CH else jq
                    j = (2*jq+ks) if CH else jq
                    d=vr(ACC(p,q,t),4)
                    mf.append(mfma(d,vr(AF(h,j),4),XF((2*(s%7)+ks)*5+t),"0" if (s%7==0 and ks==0) else d))
        f=[]
        if Pn<27:
            rd=reads(Pn+1)
            if Pn==0 and OPT['split0']:
                xs=[x for x in rd if "b128" in x.op]; tr=[x for x in rd if "b128" not in x.op]
                f+=spread(xs,0,5)+[(7.9,WAIT(vm=["w0"])),(7.95,I("s_barrier"))]+spread(tr,8,16)
            else: f+=spread(rd,0,min(12,len(rd)))
        items=[]
        while len(items)<OPT['rate']:
            if not cur:
                if dq and dq[0][0]<=Pn: cur=dq.pop(0)[1]
                elif w2q and w2q[0][0]<=Pn: cur=w2q.pop(0)[1]
                else: break
            items.append(cur.pop(0))
        n=len(items)
        for k,it in enumerate(items):
            pos=1+k*(19 if Pn else 14)/max(n,5)
            for x in it:
                f.append((pos-1 if x.cls=="salu" else (pos+1 if x.cls=="valu" else pos),x))
        if Pn==16: f+=spread(unpark,8,12)
        if Pn==OPT['gop'] and NTT==4: f.append((19,I(f"buffer_store_dword v{vOne}, v250, {srd(DBG)}, 0 offen offset:4 sc1","go")))
        tl=[]
        if h==0: tl=[WAIT(vm=[f"w{s+1}",f"x{s+1}"],lgkm=0),I("s_barrier")]
        elif Pn<27: tl=[WAIT(lgkm=0)]
        n0=len(P)
        if OPT['p2']:
            P.extend(pack2(mf,f,pool if p==1 else None,(OPT['capc']-2 if Pn<OPT['cp'] and p==1 else 0),lo=(2 if Pn==14 else 0),tail=tl,dsend=16))
        else:
            P.extend(pack(mf,f,pool if p==1 else None,(OPT['capc'] if Pn<OPT['cp'] else OPT['cap']),lo=(2 if Pn==14 else 0))); P.extend(tl)
        if OPT['est']: print("ffn period",Pn,estimate(P[n0:]),"pool",len(pool.q))
        if Pn==13: P.extend(stamp(2))
        if h==0: P.extend(stamp(32+s))
    assert not dq
    print("left: epiA ops",len(pool.q),"w2 items",len(w2q))
    P.extend(stamp(3))
    P.extend(pool.q)
    P.extend(flat(cur))
    for _,g_ in w2q: P.extend(flat(g_))
    e(f"s_add_u32 s{sHst}, s{sHst}, {2*NT*1024}")
    S=[WAIT(vm=["b0"])]+D.treads(0)
    for j in range(8):
        S+=[WAIT(vm=[f"b{j+1}"])]+D.treads(j+1)+[WAIT(lgkm=8)] if j<7 else [WAIT(lgkm=0)]
        if OPT['pA']==5+j: S.append(D.poll("pollA"))
        S+=flat(D.w2dma(10+j))
        if j+1==OPT['nin']: n_in=len(S)
        if j+1==OPT['sBs']+OPT['nin']:
            S+=[WAIT(vm=["st1"]),I(f"buffer_atomic_add v{vOne}, v{vFl}, {srd(WS)}, 0 offen offset:512","sigB")]+stamp(10)
    E=[]
    for t in range(5):
        E+=epi(1,t)+stamp(46+t)
        if t==OPT['sAt']: E.append("sigA")
    k0=0
    for k,x in enumerate(E):
        if x=="sigA":
            P.append(WAIT(vm=["st0","clr"])); check_or_spin(15,0,1,DBG,14)
            e(f"buffer_atomic_add v{vOne}, v{vFl}, {srd(WS)}, 0 offen","sigA")
        else: P.append(x)
        k1=max(k0,n_in*(k+1)//len(E))
        while 0<k1<len(S) and S[k1-1].cls=="ds" and S[k1].cls=="ds": k1+=1
        P.extend(S[k0:k1]); k0=k1
    P.extend(stamp(4))
    P.extend(S[k0:])
    D.main([],OPT['lead'],OPT['pah'])

HROW=[118784,49152,118784,65536,81920,139264,49152,0,118784,65536,16384,32768,98304,81920,139264,49152,0,118784]
hR=[[1,2,4,5],[64,65,66,67],[68,69,70,71]]; hsN,hsF0,hsQ=58,59,57
HD=Down(NTT=3,vt=(240,241,242),vW2=3,vWo=6,vH=231,vH4=231,vPoll=12,vPA=72,vPO=73,vSA=74,vO=75,vRW=76,vRR=77,vS=80,vRT=96,
        sW2o=[None,40,41,42],sWr2=43,sNW2=47,sNH=48,sD=49,sWr3=50,sNWo=51,sNHo=52,sHld=53,sHO=54,sRow=55,
        m0=lambda b:(hsQ,HROW[b]),rd=lambda b:(hR[HROW[b]>>16],HROW[b]&0xffff),red=(0,4096,16384),
        ACC=lambda q,t:16+(q*3+t)*4,AF=lambda buf,q:160+16*buf+4*q,aSt=128,aH=0,nAS=10,NSL=10,vHS=0)
def helper_setup(regs):
    t=sT[:4]; t=[66,67,70,71]
    mksrd(WO,44,401408); mksrd(WD,52,1605632); mksrd(OUT,56,1835008)
    e(f"s_mul_i32 s{hsF0}, s{sXCD}, 3"); e(f"s_add_u32 s{hsF0}, s{hsF0}, 104"); e(f"s_add_u32 s61, s{sXCD}, 26"); e(f"s_lshl_b32 s{hsQ}, s{sW}, 12")
    keep=(HD.vW2,HD.vWo); HD.vW2,HD.vWo=regs[0],regs[1]
    HD.setup_w(hsF0,61,hsN,t)
    e(f"s_cmp_gt_u32 s{hsN}, 6"); e(f"s_cselect_b32 s66, {OOB}, 0"); e(f"v_or_b32 v{regs[0]}, s66, v{regs[0]}"); e(f"v_or_b32 v{regs[1]}, s66, v{regs[1]}")
    HD.vW2,HD.vWo=keep
    HD.setup_lane([regs[2:6]],[hsQ],t)
    e("v_lshlrev_b32 v231, 4, v0")
    HD.setup_io(hsF0,hsN,t)
    for j in range(8): e(f"v_accvgpr_write_b32 a{248+j}, v{72+j}")
hwin=[0]
def hstage(b):
    o=[]; w=HROW[b]>>16
    if w!=hwin[0]: o+=[I(f"v_add_u32 v{r}, {((w-hwin[0])<<16)&0xffffffff}, v{r}") for r in hR[0]]; hwin[0]=w
    return o+HD.treads(b,lambda b_:(hR[0],HROW[b_]&0xffff))

def attn():
    sAT,sHG=72,73
    sXb,sWb=74,75
    sWo={(0,0):76,(0,1):77,(1,0):78,(1,1):79,(2,0):80,(2,1):81}
    sK,sD0,sD1,sO,sC=82,83,84,85,86
    mE,mM0,mM1,mZ=88,90,100,68
    t0,t1=66,67; t2_,t3=70,71
    vX=[1,2,3,4,5]; vW=6; vXR=(7,8); vR0=(9,10); vR1=(11,12); vRq=(13,14); vPad=15
    vA=(224,225)
    TBL=159744; XB=98304
    Q=lambda u,tl: 16+(u*2+tl)*4
    K=lambda t,tl: 80+(t*2+tl)*4
    V=lambda d,t: 152+d*36+t*4
    XA=lambda buf,t: buf*36+4*t
    WF=lambda buf,m,tl: 72+buf*24+(2*m+tl)*4
    e("L_attn:")
    e(f"s_lshr_b32 s{sAT}, s{sXCD}, 2"); e(f"s_lshl_b32 s{sAT}, s{sAT}, 3"); e(f"s_add_u32 s{sAT}, s{sAT}, s{sJ}"); e(f"s_sub_u32 s{sAT}, s{sAT}, 1"); e(f"s_and_b32 s{sHG}, s{sXCD}, 3")
    e("v_lshrrev_b32 v230, 3, v0"); e("v_and_b32 v231, 7, v0")
    e(f"s_and_b32 s{t0}, s{sW}, 1"); e(f"s_lshl_b32 s{t1}, s{t0}, 2")
    e("v_lshrrev_b32 v232, 1, v230"); e(f"v_or_b32 v232, s{t1}, v232"); e("v_xor_b32 v232, v232, v231"); e("v_lshlrev_b32 v232, 4, v232")
    e(f"s_lshl_b32 s{t2_}, s{sAT}, 7"); e(f"s_lshl_b32 s{t3}, s{sW}, 3"); e(f"s_add_u32 s{t2_}, s{t2_}, s{t3}")
    e(f"v_add_u32 v{vX[0]}, s{t2_}, v230"); e(f"v_mul_u32_u24 v{vX[0]}, 896, v{vX[0]}"); e(f"v_add_u32 v{vX[0]}, v{vX[0]}, v232")
    for j in range(1,5): e(f"v_add_u32 v{vX[j]}, {32*j*896}, v{vX[0]}")
    e(f"s_cmp_lt_u32 s{t2_}, 16"); e(f"s_cselect_b32 s{t0}, {OOB}, 0"); e(f"v_or_b32 v{vX[0]}, s{t0}, v{vX[0]}")
    e(f"s_cmp_ge_u32 s{sW}, 2"); e(f"s_cselect_b32 s{t0}, {OOB}, 0"); e(f"v_or_b32 v{vX[4]}, s{t0}, v{vX[4]}")
    e("v_lshrrev_b32 v230, 4, v0"); e("v_and_b32 v231, 15, v0")
    e(f"s_and_b32 s{t0}, s{sW}, 2"); e(f"s_lshl_b32 s{t0}, s{t0}, 1"); e(f"v_or_b32 v232, s{t0}, v230"); e("v_lshlrev_b32 v232, 1, v232"); e("v_xor_b32 v232, v232, v231")
    e(f"s_lshl_b32 s{t0}, s{sW}, 2"); e(f"v_add_u32 v{vW}, s{t0}, v230"); e(f"v_mul_u32_u24 v{vW}, 2688, v{vW}")
    e(f"v_lshl_add_u32 v{vW}, v232, 4, v{vW}"); e(f"s_mul_i32 s{t0}, s{sHG}, 224"); e(f"v_add_u32 v{vW}, s{t0}, v{vW}")
    e(f"v_mov_b32 v233, {OOB}"); e("v_cmp_lt_u32 vcc, 13, v232"); e(f"v_cndmask_b32 v{vW}, v{vW}, v233, vcc")
    sWr,sD,sNW,sKx,sKt=92,93,99,87,3
    e(f"s_lshl_b32 s{t0}, s{sHG}, 1"); e(f"s_add_u32 s{t0}, s{t0}, s{sAT}")
    if OPT['arot']==7:
        e(f"s_mul_i32 s{t1}, s{t0}, 9363"); e(f"s_lshr_b32 s{t1}, s{t1}, 16"); e(f"s_mul_i32 s{t1}, s{t1}, 7"); e(f"s_sub_u32 s{t0}, s{t0}, s{t1}")
    elif OPT['arot']==2: e(f"s_and_b32 s{t0}, s{t0}, 1"); e(f"s_mul_i32 s{t0}, s{t0}, 3")
    elif OPT['arot']==4: e(f"s_and_b32 s{t0}, s{sAT}, 3"); e(f"s_lshl_b32 s{t0}, s{t0}, 1")
    else: e(f"s_mov_b32 s{t0}, 0")
    e(f"s_sub_u32 s{sWr}, 6, s{t0}"); e(f"s_lshl_b32 s{sKx}, s{t0}, 7"); e(f"s_lshl_b32 s{sKt}, s{t0}, 9")
    e(f"s_mul_i32 s{t1}, s{t0}, {64*2688}"); e(f"v_add_u32 v{vW}, s{t1}, v{vW}"); e(f"s_mov_b32 s{sNW}, {-13*32*2688}")
    e(f"s_lshl_b32 s{sXb}, s{sW}, 10"); e(f"s_add_u32 s{sXb}, s{sXb}, {XB}")
    e(f"s_mul_i32 s{sWb}, s{sW}, 6144")
    for (m,j),r in sWo.items():
        imm=((2*m+j)%4)*1024
        e(f"s_mov_b32 s{r}, {4096+m*896+16*j*2688-imm}")
    e(f"s_lshl_b32 s{t0}, s{sW}, 6"); e(f"v_add_u32 v234, s{t0}, v0"); e("v_lshlrev_b32 v235, 2, v234")
    e("s_waitcnt lgkmcnt(0)")
    mksrd(GW,54,896); mksrd(X,40,1835008,14336); mksrd(WA,42,1204224,4096)
    P.extend(stamp(0))
    e(f"buffer_load_dword v236, v235, {srd(GW)}, 0 offen","gw")
    def xdma(c):
        o=[I(f"s_mov_b32 s{sK}, s{sKx}"),I(f"s_add_u32 s{sKx}, s{sKx}, 128"),ATOM(f"s_cmp_eq_u32 s{sWr}, {c}",f"s_cselect_b32 s{sKx}, 0, s{sKx}")]
        for j in range(5):
            o.append(I(f"s_add_u32 m0, s{sXb}, {(c%3)*20480+j*4096}"))
            o.append(dma(vX[j],X,f"s{sK}",0,f"x{c}"))
        return o
    def wdma(k):
        o=[]
        for m in range(3):
            if m!=1: o.append(I(f"s_add_u32 m0, s{sWb}, {(k%4)*24576+(4096 if m==2 else 0)}"))
            for j in range(2): o.append(dma(vW,WA,f"s{sWo[(m,j)]}",((2*m+j)%4)*1024,f"w{k}"))
        if k%2==1:
            o[-1:-1]=[ATOM(f"s_cmp_eq_u32 s{sWr}, {k//2}",f"s_cselect_b32 s{sD}, s{sNW}, {32*2688}")]
            o.append(I(f"v_add_u32 v{vW}, s{sD}, v{vW}"))
        else: o.append(I(f"v_add_u32 v{vW}, {32*2688}, v{vW}"))
        return o
    pro=xdma(0)+wdma(0)+wdma(1)
    cutp=[k for k,x in enumerate(pro) if x.cls=="vm"][OPT['aearly']-1]+1 if OPT['aearly'] else 0
    P.extend(pro[:cutp])
    aq=[(0,xdma(1)),(0,wdma(2)),(0,wdma(3)),(0,xdma(2))]
    for k in range(4,14):
        aq.append((k-4+(1 if k-4<OPT['amid'] else 0),wdma(k)))
        if k%2==1 and (k+1)//2<=6: aq.append((2*((k+1)//2-3)+1+(1 if 2*((k+1)//2-3)+1<OPT['amid'] else 0),xdma((k+1)//2)))
    acur=[]
    mksrd(WS,60,WSN); mksrd(DBG,58,256)
    HELP=OPT['ntt']==4
    e(f"s_and_b32 s{t0}, s{sXCD}, 3"); e(f"s_cmp_eq_u32 s{t0}, 3"); e(f"s_cselect_b32 s{t0}, 1, 0"); e(f"s_add_u32 s{hsN}, s{sJ}, s{t0}")
    if not HELP: e(f"s_mov_b32 s{hsN}, 7")
    helper_setup([232,233,234+9,245,246,247])
    for j,r in enumerate([232,243,245,246,247,233]): e(f"v_accvgpr_write_b32 a{122+j}, v{r}")
    e(f"s_sub_u32 s{t0}, s{sJ}, 1"); e(f"s_lshl_b32 s{t0}, s{t0}, 2"); e(f"s_add_u32 s{t0}, s{t0}, s{sW}"); e(f"s_lshl_b32 s{t0}, s{t0}, 6")
    e(f"v_add_u32 v227, s{t0}, v0"); e("v_lshlrev_b32 v226, 7, v227"); e(f"s_mov_b32 s36, {2048*128}")
    e("v_lshrrev_b32 v230, 4, v0"); e("v_and_b32 v231, 15, v0")
    e("v_lshrrev_b32 v232, 1, v231"); e("v_xor_b32 v232, v232, v230"); e("v_lshlrev_b32 v232, 4, v232")
    e("v_lshl_add_u32 v232, v231, 7, v232"); e(f"v_add_u32 v{vXR[0]}, {XB}, v232"); e(f"v_xor_b32 v{vXR[1]}, 64, v{vXR[0]}")
    e("v_bfe_u32 v232, v0, 2, 2"); e("v_and_b32 v233, 3, v0")
    e("v_and_b32 v237, 1, v230"); e("v_lshl_add_u32 v238, v237, 2, v232"); e("v_lshlrev_b32 v238, 2, v238")
    e("v_mul_u32_u24 v237, 12288, v237"); e("v_lshrrev_b32 v239, 1, v230"); e("v_lshl_add_u32 v237, v239, 10, v237"); e("v_lshl_add_u32 v237, v232, 8, v237")
    e(f"s_mul_i32 s{t0}, s{sW}, 7")
    e(f"v_add_u32 v239, s{t0}, v233")
    e("v_xor_b32 v240, v239, v238"); e(f"v_lshl_add_u32 v{vR0[0]}, v240, 3, v237")
    e("v_add_u32 v239, 4, v239")
    e("v_and_b32 v240, 3, v239"); e("v_or_b32 v240, 28, v240"); e("v_cmp_eq_u32 vcc, 3, v233"); e("v_cndmask_b32 v239, v239, v240, vcc")
    e("v_xor_b32 v240, v239, v238"); e(f"v_lshl_add_u32 v{vR1[0]}, v240, 3, v237")
    e(f"v_cndmask_b32 v{vPad}, 0, 1, vcc")
    e(f"v_add_u32 v{vR0[1]}, 49152, v{vR0[0]}"); e(f"v_add_u32 v{vR1[1]}, 49152, v{vR1[0]}")
    e("v_lshl_add_u32 v240, v230, 3, v232"); e("v_lshlrev_b32 v240, 3, v240"); e(f"v_add_u32 v240, {TBL}, v240")
    e(f"v_cndmask_b32 v{vRq[0]}, v{vR1[0]}, v240, vcc"); e(f"v_cndmask_b32 v{vRq[1]}, v{vR1[1]}, v240, vcc")
    P.append(WAIT(vm=["gw"]))
    e("v_and_b32 v244, 0xffff, v236"); e("v_mov_b32 v245, 0"); e("v_lshrrev_b32 v246, 16, v236"); e("v_mov_b32 v247, 0")
    e("v_lshlrev_b32 v234, 4, v234"); e(f"v_add_u32 v234, {TBL}, v234")
    e("ds_write_b128 v234, v[244:247]")
    def reads(k):
        sl=k%4; h=sl//2; buf=k%2
        pre=[]; tr=[]
        for a in range(2):
            imm=(sl%2)*24576+a*6144
            pre.append(I(f"s_add_u32 s{(sD0,sD1)[a]}, s{sKt}, {(256*(k%2)+32*a-imm)&0xffffffff}"))
            pre.append(I(f"v_mad_i32_i24 v{vA[a]}, v{vPad}, s{(sD0,sD1)[a]}, v{vRq[h]}"))
        for m in range(3):
            for tl in range(2):
                for a in range(2):
                    ad = vR0[h] if tl==0 else (vA[a] if m==0 else vR1[h])
                    tr.append(I(f"ds_read_b64_tr_b16 {ar(WF(buf,m,tl)+2*a,2)}, v{ad} offset:{(sl%2)*24576+a*6144+m*2048}"))
        xs=[I(f"ds_read_b128 {ar(XA(buf,t),4)}, v{vXR[k%2]} offset:{((k//2)%3)*20480+t*2048}") for t in range(9)]
        if k%2==1: pre+=[I(f"s_add_u32 s{sKt}, s{sKt}, 512"),ATOM(f"s_cmp_eq_u32 s{sWr}, {k//2}",f"s_cselect_b32 s{sKt}, 0, s{sKt}")]
        return pre+tr[:2]+xs+tr[2:]
    P.extend(pro[cutp:])
    P.append(WAIT(vm=["x0","w0"],lgkm=0)); e("s_barrier")
    P.extend(stamp(1))
    P.extend(reads(0))
    if OPT['amid']: P.append(WAIT(lgkm=0))
    else: P.append(WAIT(vm=["w1"],lgkm=0)); e("s_barrier")
    cA0,cB0,cA1,cB1,vNeg,vH,vH4,vSt,vFl=226,227,228,229,230,231,250,251,252
    import struct
    f2u=lambda x: struct.unpack("<I",struct.pack("<f",x))[0]
    n0=len(P)
    e("v_lshrrev_b32 v232, 4, v0"); e("v_and_b32 v233, 15, v0")
    e("v_and_b32 v234, 1, v233"); e(f"v_cmp_eq_u32 s[{mE}:{mE+1}], 0, v234")
    e("v_lshl_add_u32 v235, v232, 2, v234"); e(f"v_cmp_le_u32 s[{mM0}:{mM0+1}], v235, v233")
    e("v_add_u32 v235, 2, v235"); e(f"v_cmp_le_u32 s[{mM1}:{mM1+1}], v235, v233")
    e("v_mov_b32 v236, 0xffff0000"); e("v_mov_b32 v237, 0xffff"); e(f"v_lshlrev_b32 v{vH}, 4, v0"); e(f"v_add_u32 v{vH4}, 4096, v{vH}")
    e(f"v_cndmask_b32 v236, v236, v237, s[{mE}:{mE+1}]")
    e(f"v_cndmask_b32 v{cA0}, 0, v236, s[{mM0}:{mM0+1}]"); e(f"v_xor_b32 v{cB0}, v{cA0}, v236")
    e(f"v_cndmask_b32 v{cA1}, 0, v236, s[{mM1}:{mM1+1}]"); e(f"v_xor_b32 v{cB1}, v{cA1}, v236")
    e(f"v_mov_b32 v{vNeg}, 0xf149f2ca")
    P.append(ATOM(f"s_cmp_eq_u32 s{sAT}, 0",f"s_cselect_b64 s[{mZ}:{mZ+1}], -1, 0"))
    e(f"s_mov_b32 s{sC}, {f2u(28**-0.5*math.log2(math.e)):#x}"); e(f"s_mov_b32 s{sK}, 0x3fb8aa3b")
    e(f"s_lshl_b32 s{t0}, s{sHG}, 2"); e(f"s_add_u32 s{t0}, s{t0}, s{sW}"); e(f"s_add_u32 s{t0}, s{t0}, 56"); e(f"s_mul_i32 s{t0}, s{t0}, {NT}")
    e(f"s_lshl_b32 s{t1}, s{sAT}, 3"); e(f"s_add_u32 s{t0}, s{t0}, s{t1}"); e(f"s_lshl_b32 s{t0}, s{t0}, 10"); e(f"s_add_u32 s{sO}, s{t0}, {H0}")
    e(f"s_mul_i32 s{t0}, s{sHG}, {SSTR}"); e(f"s_lshl_b32 s{t1}, s{sAT}, 9"); e(f"s_add_u32 s{t0}, s{t0}, s{t1}"); e(f"s_add_u32 s{t0}, s{t0}, {S0}")
    P.append(ATOM(f"s_cmp_eq_u32 s{sW}, 0",f"s_cselect_b32 s{t0}, s{t0}, {OOB}"))
    e(f"v_lshlrev_b32 v{vSt}, 2, v0"); e(f"v_add_u32 v{vSt}, s{t0}, v{vSt}")
    e(f"s_lshl_b32 s{t0}, s{sAT}, 2"); e(f"s_add_u32 s{t0}, s{t0}, s{sHG}"); e(f"s_add_u32 s{t0}, s{t0}, 208"); e(f"s_lshl_b32 s{t0}, s{t0}, 7")
    e("v_min_u32 v238, 1, v0"); e("v_lshlrev_b32 v238, 31, v238"); e(f"v_or_b32 v{vFl}, s{t0}, v238")
    apool=Pool(P[n0:]); del P[n0:]
    U=range(8)
    A=lambda u: 232+u; B=lambda u: 240+u; M=lambda u: 170+u; T=lambda u: 178+u; L=lambda u: 206+u
    SP=lambda u: K(u,1); SO=lambda u: Q(u,1); PQ=lambda u: Q(u,0)
    ZC=(224,225)
    def pk(d,a): return I(f"v_cvt_pk_bf16_f32 v{d}, v{a}, v{a+1}")
    def pack4(d,a,b): return [pk(d,a),pk(d+1,a+2),pk(d+2,b),pk(d+3,b+2)]
    def seq(groups,cap=2):
        f=[]; g=0; room=cap
        for mg,ins in groups:
            for x in ins:
                if g<mg: g=mg; room=cap
                if cost(x)>room: g+=1; room=cap
                f.append((g,x)); room-=cost(x)
        return f
    for k in range(14):
        buf=k%2; mf=[]
        c=lambda d: "0" if k==0 else d
        two=lambda n: [(x,tl) for x in range(n) for tl in range(2)] if k==13 else [(x,tl) for tl in range(2) for x in range(n)]
        for u,tl in two(8): d=vr(Q(u,tl),4); mf.append(mfma(d,ar(WF(buf,0,tl),4),ar(XA(buf,u+1),4),c(d)))
        for t,tl in two(9): d=vr(K(t,tl),4); mf.append(mfma(d,ar(WF(buf,1,tl),4),ar(XA(buf,t),4),c(d)))
        for tl in range(2):
            for t in range(9): d=vr(V(tl,t),4); mf.append(mfma(d,ar(XA(buf,t),4),ar(WF(buf,2,tl),4),c(d)))
        f=[]
        if k<OPT['amid']:
            f+=[(25.9,WAIT(vm=[f"w{k+1}",f"x{(k+1)//2}"])),(25.95,I("s_barrier"))]+spread(reads(k+1),26,47)
        elif k<13: f+=spread(reads(k+1),0,36)
        dm=[]; nd=0
        while nd<OPT['arate']:
            if not acur:
                if aq and aq[0][0]<=k: acur=list(aq.pop(0)[1])
                else: break
            x=acur.pop(0); dm.append(x); nd+=(x.cls=="vm")
            while acur and acur[0].cls=="valu": dm.append(acur.pop(0))
        if k==8:
            dm.append(I("v_mov_b32 v249, 0")); dm.append(I(f"buffer_load_dword v248, v249, {srd(DBG)}, 0 offen sc1","clr"))
        if OPT['apf'] and OPT['apfk']<=k<OPT['apfk']+3:
            kk=k-OPT['apfk']
            if kk==0: dm+=[I(f"buffer_load_dword a{120+j}, v226, {srd(WO)}, {['0','s36'][j]} offen","pf") for j in range(2)]
        if HELP:
            if k==8:
                assert all(x.tag[0]!="x" for x in dm+acur+flat([g_ for _,g_ in aq]) if x.cls=="vm")
                f+=spread([I(f"v_accvgpr_read_b32 v{r}, a{122+j}") for j,r in enumerate([HD.vW2]+hR[0])],44,51)
            for b in {9:[0],10:[1],11:[2,3,4],12:[5,6,7],13:list(range(8,8+OPT['hp13']))}.get(k,[]):
                assert not acur
                dm+=flat(HD.w2dma(b))
            sb={10:[0],11:[1],12:[2,3]}.get(k,[])
            if sb: f+=spread([WAIT(vm=[f"b{sb[-1]}"])]+flat([hstage(b) for b in sb]),36.5,50)
        pos=0; nd=0
        for x in dm:
            if x.cls=="vm": nd+=1
            pos=max(pos+0.001,4.3*nd-(2 if x.cls=="vm" else (1 if x.cls=="valu" else -1))); f.append((pos,x))
        if k==13:
            assert not apool.q and not aq and not acur
            for u in U:
                mf.append(mfma(vr(SP(u),4),vr(K(u,0),4),vr(Q(u,0),4),"0")); mf.append(mfma(vr(SO(u),4),vr(K(u+1,0),4),vr(Q(u,0),4),"0"))
            G=[(2*u+5,pack4(Q(u,0),Q(u,0),Q(u,1))) for u in U]
            zc=[]
            for h in range(2):
                q=[Q(4*h+x,1) for x in range(4)]
                zc.append([I(f"v_permlane16_swap_b32 v{q[2]}, v{q[3]}"),I(f"v_permlane16_swap_b32 v{q[0]}, v{q[1]}"),I(f"v_permlane32_swap_b32 v{q[1]}, v{q[3]}"),
                           I(f"v_mul_f32 v{ZC[h]}, s{sK}, v{q[3]}"),I(f"v_min_f32 v{ZC[h]}, 0x42c80000, v{ZC[h]}"),I(f"v_exp_f32 v{ZC[h]}, v{ZC[h]}"),I(f"v_add_f32 v{7+h}, 1.0, v{ZC[h]}")])
            zi=[x for pr in zip(*zc) for x in pr]
            for t in range(9):
                G.append((16+2*t+5,pack4(K(t,0),K(t,0),K(t,1))))
                if t in (1,3,5): G.append((0,zi[:2] if t==1 else (zi[2:4] if t==3 else zi[4:6])))
            G.append((0,zi[6:8]))
            for d in range(2):
                for t in range(9):
                    G.append((34+9*d+t+4,[pk(V(d,0)+2*t,V(d,t)),pk(V(d,0)+2*t+1,V(d,t)+2)]))
                    if d==0 and t in (2,4,6): G.append((0,zi[8+(t-2):10+(t-2)]))
            f+=seq(G)
        tl=[]
        if k<13: tl=[WAIT(lgkm=0)] if k+1<OPT['amid'] else [WAIT(vm=[f"w{k+2}",f"x{(k+2)//2}"],lgkm=0),I("s_barrier")]
        n0=len(P)
        if OPT['p2']: P.extend(pack2(mf,f,apool if 11<=k<13 else None,tail=tl,dsend=48))
        else: P.extend(pack(mf,f,apool if 11<=k<13 else None)); P.extend(tl)
        if OPT['est']: print("attn period",k,estimate(P[n0:]))
        if k<13: P.extend(stamp(32+k))
    P.extend(stamp(2))
    sE=f"s[{mE}:{mE+1}]"
    n_in0=len(P)
    for u in U:
        e(f"v_cndmask_b32 v{M(u)}, v{SP(u)+1}, v{SP(u)}, {sE}"); e(f"v_cndmask_b32 v{T(u)}, v{SP(u)+3}, v{SP(u)+2}, {sE}")
        e(f"v_cndmask_b32 v{A(u)}, v{SO(u)+1}, v{SO(u)}, {sE}"); e(f"v_cndmask_b32 v{B(u)}, v{SO(u)+3}, v{SO(u)+2}, {sE}")
        if u==0:
            e(f"v_cndmask_b32 v{M(0)}, v{M(0)}, v{vNeg}, s[{mZ}:{mZ+1}]"); e(f"v_cndmask_b32 v{T(0)}, v{T(0)}, v{vNeg}, s[{mZ}:{mZ+1}]")
        e(f"v_cndmask_b32 v{A(u)}, v{M(u)}, v{A(u)}, s[{mM0}:{mM0+1}]"); e(f"v_cndmask_b32 v{B(u)}, v{T(u)}, v{B(u)}, s[{mM1}:{mM1+1}]")
        e(f"v_max_f32 v{M(u)}, v{A(u)}, v{B(u)}")
    def allred(R,op,mid):
        H=(0,4)
        for h in H: e(f"v_permlane32_swap_b32 v{R(h)}, v{R(h+2)}"); e(f"v_permlane32_swap_b32 v{R(h+1)}, v{R(h+3)}")
        for h in H: e(f"{op} v{R(h)}, v{R(h)}, v{R(h+2)}"); e(f"{op} v{R(h+1)}, v{R(h+1)}, v{R(h+3)}")
        for h in H: e(f"v_permlane16_swap_b32 v{R(h)}, v{R(h+1)}")
        for h in H: e(f"{op} v{R(h)}, v{R(h)}, v{R(h+1)}")
        mid(H)
        for h in H: e(f"v_mov_b32 v{R(h+1)}, v{R(h)}")
        for h in H: e(f"v_permlane16_swap_b32 v{R(h)}, v{R(h+1)}")
        for h in H: e(f"v_mov_b32 v{R(h+2)}, v{R(h)}"); e(f"v_mov_b32 v{R(h+3)}, v{R(h+1)}")
        for h in H: e(f"v_permlane32_swap_b32 v{R(h)}, v{R(h+2)}"); e(f"v_permlane32_swap_b32 v{R(h+1)}, v{R(h+3)}")
    def midM(H):
        for h in H: e(f"v_mul_f32 v{M(h)}, s{sC}, v{M(h)}")
    allred(M,"v_max_f32",midM)
    for u in U:
        e(f"v_fma_f32 v{A(u)}, v{A(u)}, s{sC}, -v{M(u)}"); e(f"v_fma_f32 v{B(u)}, v{B(u)}, s{sC}, -v{M(u)}")
    for u in U:
        e(f"v_exp_f32 v{A(u)}, v{A(u)}"); e(f"v_exp_f32 v{B(u)}, v{B(u)}")
        if u: e(f"v_add_f32 v{L(u-1)}, v{A(u-1)}, v{B(u-1)}")
    e(f"v_add_f32 v{L(7)}, v{A(7)}, v{B(7)}")
    def midL(H):
        for h in H: e(f"v_rcp_f32 v{L(h)}, v{L(h)}")
        for h in H: e(f"v_rcp_f32 v{T(h)}, v{7+h//4}")
        for h in H: e(f"v_mul_f32 v{L(h)}, v{L(h)}, v{ZC[h//4]}")
        e(f"buffer_store_dword v{T(0)}, v{vSt}, {srd(WS)}, 0 offen sc1","st"); e(f"buffer_store_dword v{T(4)}, v{vSt}, {srd(WS)}, 0 offen offset:256 sc1","st")
    allred(L,"v_add_f32",midL)
    if HELP and OPT['hin']:
        assert OPT['hp13']==5
        body=P[n_in0:]; del P[n_in0:]
        S2=[I(f"v_accvgpr_read_b32 v{HD.vWo}, a127")]+[I(f"v_accvgpr_read_b32 v{r}, a{248+j}") for j,r in enumerate((9,10,11,12,14,15,186,187))]
        S2+=[WAIT(vm=["b7"])]+flat([hstage(b) for b in range(4,8)])+[WAIT(lgkm=0)]
        nr=len(S2); S2+=flat([flat(HD.w2dma(b)) for b in range(13,13+OPT['hin'])])
        k0=0; n1=len(body)//3
        for k,x in enumerate(body):
            P.append(x)
            k1=max(k0,nr*(k+1)//n1 if k<n1 else nr+(len(S2)-nr)*(k+1-n1)//(len(body)-n1))
            while 0<k1<len(S2) and (S2[k1].cls=="ds" or (S2[k1-1].cls=="valu" and k1<nr-1)): k1+=1
            P.extend(S2[k0:k1]); k0=k1
    def pre(u):
        return [I(f"v_mul_f32 v{A(u)}, v{A(u)}, v{L(u)}"),I(f"v_mul_f32 v{B(u)}, v{B(u)}, v{L(u)}"),
                I(f"v_cvt_pk_bf16_f32 v{A(u)}, v{A(u)}, v{A(u)}"),I(f"v_cvt_pk_bf16_f32 v{B(u)}, v{B(u)}, v{B(u)}"),
                I(f"v_and_b32 v{PQ(u)}, v{cB0}, v{A(u)}"),I(f"v_and_b32 v{PQ(u)+1}, v{cB1}, v{B(u)}"),
                I(f"v_and_b32 v{PQ(u)+2}, v{cA0}, v{A(u)}"),I(f"v_and_b32 v{PQ(u)+3}, v{cA1}, v{B(u)}")]
    def post(u):
        return pack4(PQ(u),SP(u),SO(u))+[I(f"buffer_store_dwordx4 {vr(PQ(u),4)}, v{vH if u<4 else vH4}, {srd(WS)}, s{sO} offen offset:{(u%4)*1024} sc1","st")]
    P.extend(pre(0))
    for u in range(10):
        if u+1<8: a_=pre(u+1)
        else: a_=[]
        P.extend(a_[:2])
        if u<8: P.append(mfma(vr(SP(u),4),vr(V(0,0)+2*u,4),vr(PQ(u),4),"0"))
        P.extend(a_[2:4])
        if u<8: P.append(mfma(vr(SO(u),4),vr(V(1,0)+2*u,4),vr(PQ(u),4),"0"))
        P.extend(a_[4:])
        if u>=2: P.extend(post(u-2))
        elif u==0: e("v_mov_b32 v13, 1")
    P.extend(stamp(3))
    nb=8+OPT['hp13']
    P.append(WAIT(vm=["clr"])); check_or_spin(249,0,1,DBG,248)
    if HELP:
        if OPT['hin']:
            for j,r in enumerate((9,10,11,12,14,15,186,187)): e(f"v_mov_b32 v{72+j}, v{r}")
            e("L_help:")
            P.append(HD.poll("pollA")); nb+=OPT['hin']
        else:
            e("L_help:")
            e(f"v_accvgpr_read_b32 v{HD.vWo}, a127")
            for j in range(8): e(f"v_accvgpr_read_b32 v{72+j}, a{248+j}")
            P.append(HD.poll("pollA"))
            P.append(WAIT(vm=["b7"])); P.extend(flat([hstage(b) for b in range(4,8)]))
        for b in range(nb,nb+OPT['hwin']): P.extend(flat(HD.w2dma(b)))
        nb+=OPT['hwin']
        if hwin[0]: P.extend([I(f"v_add_u32 v{r}, {(-hwin[0]<<16)&0xffffffff}, v{r}") for r in hR[0]])
        for w in (1,2):
            for q in range(4): e(f"v_add_u32 v{hR[w][q]}, {w<<16}, v{hR[0][q]}")
    P.append(WAIT(vm=["st"],lgkm=0))
    e(f"buffer_atomic_add v13, v{vFl}, {srd(WS)}, 0 offen","sig")
    if HELP:
        P.extend(stamp(4))
        e(f"s_cmp_gt_u32 s{hsN}, 6"); e("s_cbranch_scc1 L_hexit")
        HD.main([(0 if b<17 else 24,it) for b in range(nb,18) for it in HD.w2dma(b)],OPT['hlead'],OPT['hpah'],so=50)
        e("L_hexit:")
    P.extend(stamp(4,True))
    e("s_endpgm")

def spare():
    KN=NAME+"_kernel"
    e("L_spare:")
    e("s_getpc_b64 s[68:69]")
    e("L_pc:")
    e(f"s_sub_u32 s68, s68, L_pc-{KN}"); e("s_subb_u32 s69, s69, 0")
    e(f"s_lshl_b32 s70, s{sW}, 13"); e("v_lshlrev_b32 v1, 7, v0"); e("v_add_u32 v2, s70, v1")
    e(f"v_min_u32 v3, L_end-{KN}-4, v2")
    e("global_load_dword v10, v3, s[68:69]","pf")
    e("v_add_u32 v2, 32768, v2"); e(f"v_min_u32 v3, L_end-{KN}-4, v2")
    e("global_load_dword v11, v3, s[68:69]","pf")
    e("s_waitcnt lgkmcnt(0)")
    mksrd(WS,60,WSN); mksrd(DBG,58,256)
    e(f"s_or_b32 s70, s2, s{sW}"); e("s_cmp_eq_u32 s70, 0"); e("s_cbranch_scc0 L_noclr")
    e("v_lshlrev_b32 v5, 8, v0"); e("v_mov_b32 v6, 0"); e("v_lshlrev_b32 v7, 7, v0"); e("v_mov_b32 v8, 1")
    for k in range(5):
        e(f"buffer_store_dword v6, v7, {srd(WS)}, 0 offen sc1"); e("v_add_u32 v7, 8192, v7")
    e("s_waitcnt vmcnt(0)")
    e(f"buffer_store_dword v8, v5, {srd(DBG)}, 0 offen sc1")
    e("L_noclr:")
    if OPT['tlb']:
        mksrd(WO,44,401408); mksrd(WD,52,1605632); mksrd(OUT,56,1835008)
        e(f"s_cmp_eq_u32 s{sW}, 1"); e("s_cbranch_scc0 L_notlb")
        e(f"v_mul_u32_u24 v20, {NT*1024}, v0"); e("v_lshlrev_b32 v21, 17, v0"); e(f"s_mov_b32 s70, {H0+129*1024}"); e(f"s_mov_b32 s71, {H0+129*1024+64*NT*1024}")
        e(f"buffer_load_dword v22, v20, {srd(WS)}, s70 offen","pf"); e(f"buffer_load_dword v23, v20, {srd(WS)}, s71 offen","pf")
        e(f"s_mov_b32 s70, {S0-128}"); e(f"buffer_load_dword v27, off, {srd(WS)}, s70","pf")
        for k,sr in enumerate((WD,WO,OUT)): e(f"buffer_load_dword v{24+k}, v21, {srd(sr)}, 0 offen","pf")
        e("s_waitcnt vmcnt(0)")
        e("L_notlb:")
    if OPT['ntt']==4:
        P.extend(stamp(0))
        e(f"s_min_u32 s{hsN}, s{sJ}, 1")
        helper_setup([HD.vW2,9]+hR[0])
        e("v_accvgpr_write_b32 a127, v9")
        e("v_lshlrev_b32 v231, 4, v0"); e(f"v_mov_b32 v252, {OOB}"); e("v_mov_b32 v13, 1"); e("v_mov_b32 v249, 0"); e("v_mov_b32 v248, 0")
        if OPT['gop']>=0: spin(249,4,1,DBG,248,nap=OPT['nap'])
        if OPT['spf']:
            e(f"s_mul_i32 s66, s{sXCD}, 392"); e(f"s_lshl_b32 s67, s{sW}, 6"); e("s_add_u32 s66, s66, s67"); e("v_add_u32 v14, s66, v0")
            for k in range(13):
                e("v_subrev_u32 v15, 3136, v14"); e("v_min_u32 v15, v15, v14"); e("v_lshlrev_b32 v15, 7, v15")
                e(f"buffer_load_dword v{16+k}, v15, {srd(WO)}, 0 offen","pf"); e("v_add_u32 v14, 256, v14")
                if k<OPT['spf']-1: e("s_waitcnt vmcnt(0)")
        hwin[0]=0
        for b in range(8+OPT['hp13']):
            P.extend(flat(HD.w2dma(b)))
            for sb in {1:[0],4:[1],7:[2,3]}.get(b,[]):
                P.append(WAIT(vm=[f"b{sb}"])); P.extend(hstage(sb)); P.append(WAIT(lgkm=0))
        if OPT['hin']:
            e(f"v_mov_b32 v{HD.vWo}, v9")
            P.append(WAIT(vm=["b7"])); P.extend(flat([hstage(b) for b in range(4,8)])); P.append(WAIT(lgkm=0))
            for b in range(13,13+OPT['hin']): P.extend(flat(HD.w2dma(b)))
        assert hwin[0]==HROW[7 if OPT['hin'] else 3]>>16
        spin(249,0,1,DBG,248)
        spin(HD.vPA,0,7,WS,HD.vPoll,nap=OPT['nap'])
        e("s_branch L_help")
    e("L_exit:")
    e("s_endpgm")
    e("L_end:")

def main():
    global P
    head=open("cdna_kernels/"+NAME+".s.ref").read().split("; Override launch")[0]
    txt=[]; nops=0
    def ablate(o):
        a=OPT['abl']; r=[]
        for x in o:
            if a&1 and x.cls=="vm" and " lds" in x.text: continue
            if a&2 and x.op.startswith("ds_read"): continue
            if a&4 and x.op.startswith("v_mfma"): continue
            r.append(x)
        return r
    for part in ((common_prologue,ffn),(attn,),(spare,)):
        P.clear()
        if part[0] is not common_prologue:
            pass
        for f in part: f()
        o,n=finalize(list(P),part[-1].__name__); nops+=n
        if OPT['abl']: o=ablate(o)
        txt+=[x.text if x.cls=="label" else "    "+x.text for x in o]
    out=head+"; generated by gen/gen.py (hand-designed schedule, python emitter)\n; @launch grid=(256,1,1) block=(256,1,1) lds=163840\n"
    out+='.amdgcn_target "amdgcn-amd-amdhsa--gfx950"\n.text\n'
    out+=f".globl {NAME}_kernel\n.p2align 8\n.type {NAME}_kernel,@function\n{NAME}_kernel:\n"
    out+="\n".join(txt)+"\n"
    out+=f""".section .rodata,"a"
.p2align 6
.amdhsa_kernel {NAME}_kernel
  .amdhsa_next_free_vgpr 512
  .amdhsa_next_free_sgpr 102
  .amdhsa_accum_offset 256
  .amdhsa_group_segment_fixed_size 0
  .amdhsa_kernarg_size 88
  .amdhsa_user_sgpr_count 2
  .amdhsa_user_sgpr_kernarg_segment_ptr 1
  .amdhsa_system_sgpr_workgroup_id_x 1
.end_amdhsa_kernel
"""
    open(sys.argv[1],"w").write(out)
    print("instructions",len(txt),"auto nops",nops)
main()
```

```python
import sys, math
from isa import *
NAME="gated_mix__sliding_local_dilated__swiglu_ffn__prompt"
OPT=dict(stamp=0, probe=-2, pwg=100, obs=0, abl=0, outpol=0,
         rot=4, arot=7, rate=5, cap=2, capc=3, cp=16, chainA=1, w2p0=13, sAt=1, nin=3, sBs=2, pA=10,
         lead=12, pah=12, nm=3, ntt=5, hlead=9, hpah=9, arate=12, apf=1, spf=1, l2o=0, l2b=1, ech=1, apA=-1, apB=-1, apfk=8, hp13=5, hwin=0, nap=8, amid=4, hin=2, gop=5, p2=1, est=0, tlb=0, stf=0, split0=1, npre=2, pre1=5, early=9, aearly=5)
for a in sys.argv[2:]:
    k,v=a.split("="); OPT[k]=int(v)
H0=0x100000; NT=130; S0=0x80000; SSTR=2176*4; STAMP0=0xC00000; WSN=0x1000000
OOB=0x80000000
X,WA,WU,WD,WO,WS,OUT,DBG,GW=4,8,12,16,20,24,28,32,36
def srd(b): return f"s[{b}:{b+3}]"
def vr(b,n=1): return f"v{b}" if n==1 else f"v[{b}:{b+n-1}]"
def ar(b,n=1): return f"a{b}" if n==1 else f"a[{b}:{b+n-1}]"
P=[]
def e(t,tag=None):
    x=I(t,tag); P.append(x); return x
_l=[0]
def lab(p="L"):
    _l[0]+=1; return f"{p}{_l[0]}"
def mksrd(b,src,n,bias=0):
    if bias:
        e(f"s_sub_u32 s{b}, s{src}, {bias}"); e(f"s_subb_u32 s{b+1}, s{src+1}, 0")
    else:
        e(f"s_mov_b64 s[{b}:{b+1}], s[{src}:{src+1}]")
    e(f"s_mov_b32 s{b+2}, {n+bias}"); e(f"s_mov_b32 s{b+3}, 0x20000")
def mfma(d,a,b,c): return I(f"v_mfma_f32_16x16x32_bf16 {d}, {a}, {b}, {c}")
sW,sXCD,sJ,sI=62,63,64,65
sT=[66,67,68,69,70,71]
sSTB=98
nstamp=[0]
def stamp(idx,last=False):
    if OPT['probe']!=-2:
        o=[]
        if idx==OPT['probe']: o+=[I("s_memrealtime s[94:95]"),I("s_waitcnt lgkmcnt(0)"),I("s_sub_u32 s97, s94, s96")]
        if last:
            L=lab("PR"); D=lab("PD")
            o+=[I(f"s_cmp_eq_u32 s2, {OPT['pwg']}"),I(f"s_cbranch_scc0 {D}"),I("s_add_u32 s97, s97, 4000"),I(L+":"),I("s_memrealtime s[94:95]"),I("s_waitcnt lgkmcnt(0)"),
                I("s_sub_u32 s94, s94, s96"),I("s_cmp_lt_u32 s94, s97"),I(f"s_cbranch_scc1 {L}"),I(D+":")]
        return o
    if not OPT['stamp']: return []
    if OPT['stamp']==2 and idx not in (0,1,2,3,4,5,6,7,8,9,10,11,55,56,57,58,59,61) : return []
    if OPT['stamp']==3 and idx not in (0,9) and not last: return []
    o=[I("s_memrealtime s[94:95]"),I("s_memtime s[96:97]"),I("s_waitcnt lgkmcnt(0)"),
       I(f"v_writelane_b32 v254, s94, {idx}"),I(f"v_writelane_b32 v255, s96, {idx}")]
    if last: o+=[I("v_lshlrev_b32 v253, 3, v0"),I(f"buffer_store_dwordx2 v[254:255], v253, {srd(WS)}, s{sSTB} offen","stamp")]
    return o
def spin(addrv, off, cmpval, srdb, res=12, nap=1):
    L=lab("SP"); D=lab("SD")
    e("s_mov_b32 s92, 0")
    e(L+":")
    e(f"buffer_load_dword v{res}, v{addrv}, {srd(srdb)}, 0 offen offset:{off} sc1","poll")
    e("s_waitcnt vmcnt(0)")
    e(f"v_cmp_ne_u32 vcc, {cmpval}, v{res}")
    e(f"s_cbranch_vccz {D}")
    e("s_add_u32 s92, s92, 1")
    e("s_cmp_lt_u32 s92, 0x40000")
    e(f"s_sleep {nap}")
    e(f"s_cbranch_scc1 {L}")
    e(D+":")
def check_or_spin(addrv, off, cmpval, srdb, res):
    D=lab("CK")
    e(f"v_cmp_ne_u32 vcc, {cmpval}, v{res}")
    e(f"s_cbranch_vccz {D}")
    n0=len(P)
    spin(addrv,off,cmpval,srdb,res)
    for x in P[n0:]:
        if x.cls=="vm": x.cls="raw"; x.wr=set()
        if x.op=="s_waitcnt": x.op="raw"
    e(D+":")

def common_prologue():
    e("s_cmp_ge_u32 s2, 256"); e("s_cbranch_scc1 L_exit")
    if OPT['probe']!=-2:
        e("s_memrealtime s[94:95]"); e("s_waitcnt lgkmcnt(0)"); e("s_mov_b32 s96, s94"); e("s_mov_b32 s97, 0")
    e("s_load_dwordx16 s[40:55], s[0:1], 0")
    e("s_load_dwordx4 s[56:59], s[0:1], 64")
    e("s_load_dwordx2 s[60:61], s[0:1], 80")
    e("v_lshrrev_b32 v1, 6, v0")
    e(f"s_and_b32 s{sXCD}, s2, 7"); e(f"s_lshr_b32 s{sJ}, s2, 3")
    e(f"v_readfirstlane_b32 s{sW}, v1")
    e("v_and_b32 v0, 63, v0")
    if OPT['stamp']:
        e(f"s_lshl_b32 s{sSTB}, s2, 2"); e(f"s_add_u32 s{sSTB}, s{sSTB}, s{sW}"); e(f"s_lshl_b32 s{sSTB}, s{sSTB}, 9")
        e(f"s_add_u32 s{sSTB}, s{sSTB}, {STAMP0}")
        e("v_mov_b32 v254, 0"); e("v_mov_b32 v255, 0")
    e(f"s_mov_b32 s{sI}, s{sXCD}")
    e(f"s_cmp_eq_u32 s{sJ}, 0"); e("s_cbranch_scc1 L_spare")
    e(f"s_cmp_lt_u32 s{sJ}, 9"); e("s_cbranch_scc1 L_attn")

def dma(voff,sr,soff,imm,tag): return I(f"buffer_load_dwordx4 v{voff}, {srd(sr)}, {soff} offen offset:{imm} lds",tag)

flat=lambda L:[x for it in L for x in it]
def mod7(dst,src,tmp,R=7):
    e(f"s_mul_i32 s{tmp}, s{src}, 9363"); e(f"s_lshr_b32 s{tmp}, s{tmp}, 16"); e(f"s_mul_i32 s{tmp}, s{tmp}, 7"); e(f"s_sub_u32 s{dst}, s{src}, s{tmp}")
    if R==1: e(f"s_mov_b32 s{dst}, 0")
    elif R==2: e(f"s_and_b32 s{dst}, s{dst}, 1"); e(f"s_mul_i32 s{dst}, s{dst}, 3")
    elif R==4: e(f"s_and_b32 s{dst}, s{dst}, 3"); e(f"s_lshl_b32 s{dst}, s{dst}, 1")

class Down:
    def __init__(c,**kw): c.__dict__.update(kw)
    def setup_w(c,sF0,sT2,sN,t):
        t0,t1,t2,t3=t; a,b,d=c.vt
        e(f"v_lshrrev_b32 v{a}, 3, v0"); e(f"v_and_b32 v{b}, 6, v{a}"); e(f"v_and_b32 v{d}, 7, v0"); e(f"v_xor_b32 v{b}, v{b}, v{d}")
        e(f"v_mul_u32_u24 v{a}, 896, v{a}"); e(f"v_lshl_add_u32 v{c.vW2}, v{b}, 4, v{a}")
        e(f"s_lshr_b32 s{t0}, s{sW}, 1"); e(f"s_mul_i32 s{t0}, s{t0}, 28"); e(f"s_and_b32 s{t1}, s{sW}, 1"); e(f"s_add_u32 s{t3}, s{t0}, s{t1}")
        e(f"s_lshl_b32 s{t2}, s{sN}, 7"); e(f"v_add_u32 v{c.vW2}, s{t2}, v{c.vW2}")
        e(f"s_add_u32 s{t0}, s{sT2}, s{sN}"); e(f"s_and_b32 s{t0}, s{t0}, 3"); e(f"s_sub_u32 s{c.sWr3}, 3, s{t0}")
        e(f"s_lshl_b32 s{t1}, s{sW}, 2"); e(f"s_add_u32 s{t2}, s{t0}, s{t1}")
        e(f"s_mul_i32 s{t0}, s{t2}, {28*896}"); e(f"v_add_u32 v{c.vWo}, s{t0}, v{c.vW2}")
        e(f"s_add_u32 s{t0}, s{t2}, 56"); e(f"s_mul_i32 s{t0}, s{t0}, {NT}"); e(f"s_add_u32 s{t0}, s{t0}, s{sF0}"); e(f"s_lshl_b32 s{t0}, s{t0}, 10"); e(f"s_add_u32 s{c.sHO}, s{t0}, {H0}")
        e(f"s_mov_b32 s{c.sNWo}, {-3*28*896}"); e(f"s_mov_b32 s{c.sNHo}, {-3*NT*1024}")
        e(f"s_lshl_b32 s{t0}, s{sT2}, 1"); e(f"s_add_u32 s{t0}, s{t0}, s{sN}")
        mod7(t0,t0,t1); e(f"s_sub_u32 s{c.sWr2}, 6, s{t0}"); e(f"s_lshl_b32 s{t0}, s{t0}, 2"); e(f"s_add_u32 s{t3}, s{t3}, s{t0}")
        e(f"s_mul_i32 s{t1}, s{t3}, {32*896}"); e(f"v_add_u32 v{c.vW2}, s{t1}, v{c.vW2}")
        e(f"s_mov_b32 s{c.sNW2}, {-6*114688}"); e(f"s_mov_b32 s{c.sNH}, {-24*NT*1024}")
        e(f"s_mul_i32 s{t0}, s{t3}, {NT}"); e(f"s_add_u32 s{t0}, s{t0}, s{sF0}"); e(f"s_lshl_b32 s{t0}, s{t0}, 10"); e(f"s_add_u32 s{c.sHld}, s{t0}, {H0}")
        for j in range(1,4): e(f"s_mov_b32 s{c.sW2o[j]}, {6144*j}")
    def setup_lane(c,dst,sBases,t):
        t0=t[0]; a,b,d=c.vt
        e(f"v_bfe_u32 v{a}, v0, 4, 1"); e(f"v_bfe_u32 v{b}, v0, 2, 2"); e(f"v_lshl_add_u32 v{a}, v{a}, 2, v{b}")
        e(f"v_lshrrev_b32 v{b}, 5, v0"); e(f"v_lshlrev_b32 v{b}, 10, v{b}"); e(f"v_lshl_add_u32 v{b}, v{a}, 7, v{b}")
        e(f"v_and_b32 v{d}, 3, v0"); e(f"v_lshl_add_u32 v{b}, v{d}, 3, v{b}"); e(f"v_lshrrev_b32 v{a}, 1, v{a}")
        for q in range(4):
            e(f"s_add_u32 s{t0}, s{sW}, {q}"); e(f"s_and_b32 s{t0}, s{t0}, 3")
            e(f"v_xor_b32 v{d}, s{t0}, v{a}"); e(f"v_lshl_add_u32 v{d}, v{d}, 5, v{b}")
            for k,sb in enumerate(sBases): e(f"v_add_u32 v{dst[k][q]}, s{sb}, v{d}")
    def setup_io(c,sF0,sN,t):
        t0,t1,t2,t3=t; a,b,d=c.vt; N=c.NTT
        e(f"v_lshrrev_b32 v{a}, 5, v0")
        e(f"s_add_u32 s{t1}, s{sF0}, {N-1}")
        e(f"s_mul_i32 s{t0}, s{sF0}, 13108"); e(f"s_lshr_b32 s{t0}, s{t0}, 16"); e(f"s_mul_i32 s{t2}, s{t1}, 13108"); e(f"s_lshr_b32 s{t2}, s{t2}, 16")
        e(f"s_sub_u32 s{t2}, s{t2}, s{t0}"); e(f"s_lshl_b32 s{t2}, s{t2}, 10"); e(f"s_lshl_b32 s{t0}, s{t0}, 3"); e(f"s_add_u32 s{t0}, s{t0}, s{sW}"); e(f"s_lshl_b32 s{t0}, s{t0}, 7")
        e(f"v_mul_u32_u24 v{b}, s{t2}, v{a}"); e(f"v_add_u32 v{c.vPA}, s{t0}, v{b}")
        e(f"s_lshr_b32 s{t0}, s{sF0}, 3"); e(f"s_lshr_b32 s{t2}, s{t1}, 3"); e(f"s_min_u32 s{t2}, s{t2}, 15")
        e(f"s_sub_u32 s{t2}, s{t2}, s{t0}"); e(f"s_lshl_b32 s{t2}, s{t2}, 9"); e(f"s_lshl_b32 s{t0}, s{t0}, 2"); e(f"s_add_u32 s{t0}, s{t0}, s{sW}"); e(f"s_add_u32 s{t0}, s{t0}, 208"); e(f"s_lshl_b32 s{t0}, s{t0}, 7")
        e(f"v_mul_u32_u24 v{b}, s{t2}, v{a}"); e(f"v_add_u32 v{c.vPO}, s{t0}, v{b}")
        e(f"s_lshl_b32 s{t0}, s{sF0}, 4"); e(f"v_and_b32 v{a}, 15, v0"); e(f"v_add_u32 v{a}, s{t0}, v{a}")
        e(f"s_mul_i32 s{t1}, s{sW}, {SSTR}"); e(f"s_add_u32 s{t1}, s{t1}, {S0}"); e(f"v_lshlrev_b32 v{c.vSA}, 2, v{a}"); e(f"v_add_u32 v{c.vSA}, s{t1}, v{c.vSA}")
        e(f"v_mul_u32_u24 v{a}, 896, v{a}"); e(f"v_lshrrev_b32 v{b}, 4, v0"); e(f"v_lshl_add_u32 v{a}, v{b}, 3, v{a}")
        e(f"s_lshl_b32 s{t1}, s{sN}, 7"); e(f"s_lshl_b32 s{t2}, s{sW}, 5"); e(f"s_add_u32 s{t1}, s{t1}, s{t2}"); e(f"v_add_u32 v{c.vO}, s{t1}, v{a}")
        base,ws,qs=c.red
        e(f"s_mul_i32 s{t0}, s{sW}, {ws}"); e(f"s_add_u32 s{t0}, s{t0}, {base}"); e(f"v_add_u32 v{c.vRW}, s{t0}, v{c.vH}")
        for q in range(1,4):
            e(f"s_sub_u32 s{t0}, s{sW}, {q}"); e(f"s_and_b32 s{t0}, s{t0}, 3"); e(f"s_mul_i32 s{t0}, s{t0}, {ws}"); e(f"s_add_u32 s{t0}, s{t0}, {base+(q-1)*qs}")
            e(f"v_add_u32 v{c.vRR+q-1}, s{t0}, v{c.vH}")
        for j in range(1,N): e(f"s_mov_b32 s{c.sRow+j-1}, {16*j*896}")
    def w2dma(c,b):
        sg,off=c.m0(b)
        o=[[dma(c.vW2,WD if b<14 else WO,"0" if pi==0 else f"s{c.sW2o[pi]}",pi*1024,f"b{b}")] for pi in range(4)]
        o[0].insert(0,I(f"s_add_u32 m0, s{sg}, {off}"))
        if b==13: o[-1].append(I(f"v_mov_b32 v{c.vW2}, v{c.vWo}"))
        elif b<13:
            o[-1]+=[ATOM(f"s_cmp_eq_u32 s{c.sWr2}, {b%7}",f"s_cselect_b32 s{c.sD}, s{c.sNW2}, 114688"),I(f"v_add_u32 v{c.vW2}, s{c.sD}, v{c.vW2}")]
            if b==6: o[-1].append(I(f"v_add_u32 v{c.vW2}, {64*896}, v{c.vW2}"))
        elif b<17: o[-1]+=[ATOM(f"s_cmp_eq_u32 s{c.sWr3}, {b-14}",f"s_cselect_b32 s{c.sD}, s{c.sNWo}, {28*896}"),I(f"v_add_u32 v{c.vW2}, s{c.sD}, v{c.vW2}")]
        return o
    def AW(c,b,q,a=None):
        r=c.aSt+16*(b%8)+4*q
        return ar(r,4) if a is None else ar(r+2*a,2)
    def treads(c,b,rd=None):
        base,off=(rd or c.rd)(b)
        return [I(f"ds_read_b64_tr_b16 {c.AW(b,q,a)}, v{base[q]} offset:{off+a*2048}") for q in range(4) for a in range(2)]
    def HS(c,b,t):
        k=b%c.NSL; na=c.nAS
        return ar(c.aH+(k*c.NTT+t)*4,4) if k<na else vr(c.vHS+((k-na)*c.NTT+t)*4,4)
    def hload(c,b):
        o=[[I(f"buffer_load_dwordx4 {c.HS(b,t)}, v{c.vH if t<4 else c.vH4}, {srd(WS)}, s{c.sHld} offen offset:{(t%4)*1024} sc1",f"h{b}_{t}")] for t in range(c.NTT)]
        if b==13: o[-1].append(I(f"s_mov_b32 s{c.sHld}, s{c.sHO}"))
        elif b<13:
            o[-1]+=[ATOM(f"s_cmp_eq_u32 s{c.sWr2}, {b%7}",f"s_cselect_b32 s{c.sD}, s{c.sNH}, {4*NT*1024}",f"s_add_u32 s{c.sHld}, s{c.sHld}, s{c.sD}")]
            if b==6: o[-1].append(I(f"s_add_u32 s{c.sHld}, s{c.sHld}, {2*NT*1024}"))
        elif b<17: o[-1]+=[ATOM(f"s_cmp_eq_u32 s{c.sWr3}, {b-14}",f"s_cselect_b32 s{c.sD}, s{c.sNHo}, {NT*1024}",f"s_add_u32 s{c.sHld}, s{c.sHld}, s{c.sD}")]
        return o
    def poll(c,tag):
        av,off={"pollA":(c.vPA,0),"pollB":(c.vPA,512),"pollO":(c.vPO,0)}[tag]
        return I(f"buffer_load_dword v{c.vPoll}, v{av}, {srd(WS)}, 0 offen offset:{off} sc1",tag)
    def main(c,WQ,LEAD,PAH,so=0):
        N=c.NTT; GT=18*N
        steps=[(0,1),(2,3),(4,5),(6,),(7,8),(9,10),(11,12),(13,),(14,),(15,16,17)] if OPT['ech'] else [(b,) for b in range(15)]+[(15,16,17)]
        P.append(WAIT(vm=["pollA"])); check_or_spin(c.vPA,0,7,WS,c.vPoll)
        P.extend(stamp(so+11))
        def setoff(st):
            o=[]
            for k,b in enumerate(st):
                o.append(I(f"s_mov_b32 s{44+k}, s{c.sHld}")); o+=c.hload(b)[-1][1:]
            return o
        HL=[]; start={}; units=[]
        for n,st in enumerate(steps):
            for b in st: start[b]=len(HL)
            for t in range(N):
                units.append((len(HL),st,t))
                for k,b in enumerate(st):
                    x=c.hload(b)[t][0]; HL.append([I(x.text.replace(f"s{c.sHld} offen",f"s{44+k} offen"),x.tag)])
            if n+1<len(steps): HL[-1]+=setoff(steps[n+1])
        P.extend(setoff(steps[0]))
        for l in range(LEAD): P.extend(HL[l])
        P.extend(stamp(so+5))
        hn=LEAD
        ustart=[u[0] for u in units]
        at=lambda g: max(x for x in ustart if x<=max(g,0))
        gates={at(start[7]-LEAD):("pollB",c.vPA,512,7,6), at(start[14]-LEAD):("pollO",c.vPO,0,4,7)}
        polls={at(g-PAH):v[0] for g,v in gates.items()}
        RQ={}
        for n,st in enumerate(steps):
            rd=[(x,f"b{b}") for b in st if b>=8 for x in c.treads(b)]
            if not rd: continue
            g1=start[st[0]]; g0=g1-max(N,(len(rd)+1)//2)
            assert all(start[b-8]+N*len([z for z in steps if b-8 in z][0])<=g0 for b in st if b>=8)
            for k,(x,tg) in enumerate(rd): RQ.setdefault(g0+k*(g1-g0-1)//len(rd),[]).append((x,tg))
        base,ws,qs=c.red
        wr=lambda q,t: I(f"ds_write_b128 v{c.vRW}, {vr(c.ACC(q,t),4)} offset:{(q-1)*qs+t*1024}")
        def uw(u):
            g,st,t=units[u]
            tags=[f"h{b}_{t}" for b in st]+[tg for k in range(len(st)) for _,tg in RQ.get(g+k,[])]
            if g in gates: tags.append(gates[g][0])
            return WAIT(vm=tags,lgkm=0 if t==0 else None)
        P.append(uw(0))
        for u,(g,st,t) in enumerate(units):
            L=len(st)
            mf=[mfma(vr(c.ACC(q,t),4),c.AW(b,q),c.HS(b,t),"0" if b==0 else vr(c.ACC(q,t),4)) for q in range(4) for b in st]
            if g in gates:
                tg,av,off,val,si=gates[g]
                check_or_spin(av,off,val,WS,c.vPoll); P.extend(stamp(so+si))
            if t==0 and not so: P.extend(stamp(12+st[0]))
            f=[]
            if g in polls: f.append((2.5,c.poll(polls[g])))
            for k in range(L):
                if hn<GT:
                    it=HL[hn]; hn+=1; f.append((4*k,it[0])); f+=[(4*k+1,x) for x in it[1:]]
                elif g+k+LEAD<GT+N: f.append((4*k,I(f"buffer_load_dword v{c.vS+g+k+LEAD-GT}, v{c.vSA}, {srd(WS)}, 0 offen offset:{(g+k+LEAD-GT)*64} sc1","s")))
                if WQ and WQ[0][0]<=g+k:
                    seen=False
                    for x in WQ.pop(0)[1]:
                        if x.cls=="vm": seen=True; f.append((4*k+2,x))
                        else: f.append((4*k+(3 if seen else 1.5),x))
                f+=[(4*k+0.2+j,x) for j,(x,_) in enumerate(RQ.get(g+k,[]))]
            if st is steps[-1] and t>0: f+=[(4*q-1 if q==1 else 4*q-3,wr(q,t-1)) for q in range(1,4)]
            o=pack2(mf,f)
            if u+1<len(units):
                j=max(i for i,x in enumerate(o) if x.cls=="mfma")
                if any(x.cls in("ds","vm") for x in o[j+1:]): o.append(uw(u+1))
                else: o.insert(j+1,uw(u+1))
            P.extend(o)
        assert not WQ and hn==GT
        for q in range(1,4): P.append(wr(q,N-1))
        P.extend(stamp(so+8))
        P.append(WAIT(vm=["s"],lgkm=0)); e("s_barrier")
        R=lambda q,t: c.vRT+((q-1)*N+t)*4
        for t in range(N):
            for q in range(1,4): e(f"ds_read_b128 {vr(R(q,t),4)}, v{c.vRR+q-1} offset:{t*1024}")
        for t in range(N):
            e(f"s_waitcnt lgkmcnt({3*(N-1-t)})")
            d=c.ACC(0,t)
            for r in (0,2): e(f"v_pk_add_f32 {vr(R(1,t)+r,2)}, {vr(R(1,t)+r,2)}, {vr(R(2,t)+r,2)}")
            for r in (0,2): e(f"v_pk_add_f32 {vr(d+r,2)}, {vr(d+r,2)}, {vr(R(3,t)+r,2)}")
            for r in (0,2): e(f"v_pk_add_f32 {vr(d+r,2)}, {vr(d+r,2)}, {vr(R(1,t)+r,2)}")
            for r in range(4): e(f"v_mul_f32 v{d+r}, v{c.vS+t}, v{d+r}")
            e(f"v_cvt_pk_bf16_f32 v{d}, v{d}, v{d+1}"); e(f"v_cvt_pk_bf16_f32 v{d+1}, v{d+2}, v{d+3}")
            e(f"buffer_store_dwordx2 {vr(d,2)}, v{c.vO}, {srd(OUT)}, {'0' if t==0 else 's%d'%(c.sRow+t-1)} offen{['',' sc1',' nt'][OPT['outpol']]}","out")
        P.extend(stamp(so+9,True))
        e("s_endpgm")

def ffn():
    sSL,sTT,sT2,sN=72,73,74,75
    sSeg1,sSeg2,sXb=76,77,78
    sXo=[None,79,80,81,82]
    sW1o=83
    sHst,sHld,sC=87,88,89
    vX,vW,vXR,vWR,vW2,vH,vH4,vFl,vOne,vPoll,vPA=1,2,(3,4),(5,6),7,8,9,10,11,12,13
    ACC=lambda p,q,t: 16+80*p+(q*5+t)*4
    def XF(i): return vr(176+4*i,4) if i<6 else ar(4*(i-6),4)
    AF=lambda buf,q: 200+16*buf+4*q
    t0,t1,t2_,t3=sT[:4]
    e(f"s_lshr_b32 s{t1}, s{sXCD}, 2"); e(f"s_add_u32 s{sI}, s{t1}, 8")
    e(f"s_and_b32 s{t0}, s{sXCD}, 3"); e(f"s_cmp_eq_u32 s{t0}, 3"); e(f"s_cselect_b32 s{t0}, 10, 9")
    e(f"s_cmp_lt_u32 s{sJ}, s{t0}"); e("s_cbranch_scc1 L_spare")
    e(f"s_sub_u32 s{sI}, s{sJ}, s{t0}")
    e(f"s_mul_i32 s{t0}, s{sXCD}, 23"); e(f"s_add_u32 s{sI}, s{sI}, s{t0}")
    e(f"s_sub_u32 s{sI}, s{sI}, s{t1}")
    e(f"s_mul_i32 s{sT2}, s{sI}, 9363"); e(f"s_lshr_b32 s{sT2}, s{sT2}, 16")
    e(f"s_mul_i32 s{t0}, s{sT2}, 7"); e(f"s_sub_u32 s{sN}, s{sI}, s{t0}")
    e(f"s_sub_u32 s{t0}, s{sI}, 98"); e(f"s_mul_i32 s{t1}, s{t0}, 10923"); e(f"s_lshr_b32 s{t1}, s{t1}, 16")
    e(f"s_mul_i32 s{t2_}, s{t1}, 6"); e(f"s_sub_u32 s{t0}, s{t0}, s{t2_}"); e(f"s_add_u32 s{t0}, s{t0}, 7")
    e(f"s_cmp_lt_u32 s{sI}, 98"); e(f"s_cselect_b32 s{sSL}, s{sT2}, s{t1}"); e(f"s_cselect_b32 s{sTT}, s{sN}, s{t0}")
    e("v_lshrrev_b32 v14, 3, v0")
    e("v_and_b32 v15, 7, v0")
    e(f"s_and_b32 s{t0}, s{sW}, 1"); e(f"s_lshl_b32 s{t1}, s{t0}, 2")
    e("v_lshrrev_b32 v12, 1, v14"); e(f"v_or_b32 v13, s{t1}, v12"); e("v_xor_b32 v13, v13, v15")
    e(f"s_mul_i32 s{t2_}, s{sTT}, 160"); e(f"s_lshl_b32 s{t3}, s{sW}, 3"); e(f"s_add_u32 s{t2_}, s{t2_}, s{t3}")
    e(f"v_add_u32 v{vX}, s{t2_}, v14"); e(f"v_mul_u32_u24 v{vX}, 896, v{vX}"); e(f"v_lshl_add_u32 v{vX}, v13, 4, v{vX}")
    e(f"s_lshl_b32 s{t0}, s{t0}, 2")
    e("v_and_b32 v13, 2, v14"); e(f"v_or_b32 v13, s{t0}, v13"); e("v_xor_b32 v13, v13, v15")
    e(f"v_add_u32 v{vW}, s{t3}, v14"); e(f"v_mul_u32_u24 v{vW}, 3584, v{vW}"); e(f"v_lshl_add_u32 v{vW}, v13, 4, v{vW}")
    e(f"s_lshl_b32 s{t0}, s{sSL}, 8"); e(f"v_add_u32 v{vW}, s{t0}, v{vW}")
    sWr,sD,sNX,sNW,sWr2,sNW2,sNH=90,91,93,99,100,101,3
    e(f"s_lshl_b32 s{t0}, s{sSL}, 1"); e(f"s_add_u32 s{t0}, s{sTT}, s{t0}"); mod7(t0,t0,t1,OPT['rot'])
    e(f"s_sub_u32 s{sWr}, 6, s{t0}"); e(f"s_lshl_b32 s{t1}, s{t0}, 7"); e(f"v_add_u32 v{vX}, s{t1}, v{vX}")
    e(f"s_mul_i32 s{t1}, s{t0}, {64*3584}"); e(f"v_add_u32 v{vW}, s{t1}, v{vW}")
    e(f"s_mov_b32 s{sNX}, -768"); e(f"s_mov_b32 s{sNW}, {-6*64*3584}")
    e(f"s_lshl_b32 s{sSeg2}, s{sW}, 12")
    e(f"s_lshl_b32 s{sXb}, s{sW}, 10"); e(f"s_add_u32 s{sXb}, s{sXb}, 65536")
    for j in range(1,5): e(f"s_mov_b32 s{sXo[j]}, {32*j*896}")
    e(f"s_mov_b32 s{sW1o}, {32*3584-1024}")
    for b,n in ((X,1835008),(WA,1605632),(WU,1605632+2048)):
        e(f"s_mov_b32 s{b+2}, {n}"); e(f"s_mov_b32 s{b+3}, 0x20000")
    e("s_waitcnt lgkmcnt(0)")
    e(f"s_mov_b64 s[{X}:{X+1}], s[40:41]"); e(f"s_mov_b64 s[{WA}:{WA+1}], s[48:49]")
    e(f"s_sub_u32 s{WU}, s50, 2048"); e(f"s_subb_u32 s{WU+1}, s51, 0")
    P.extend(stamp(0))
    def xdma(c):
        o=[]
        for j in range(5):
            o.append([I(f"s_add_u32 m0, s{sXb}, {(c%4)*20480+j*4096}"), dma(vX,X,"0" if j==0 else f"s{sXo[j]}",0,f"x{c}")])
        o[-1]+=[ATOM(f"s_cmp_eq_u32 s{sWr}, {c}",f"s_cselect_b32 s{sD}, s{sNX}, 128"),I(f"v_add_u32 v{vX}, s{sD}, v{vX}")]
        return o
    def wdma(s):
        o=[]
        for j in range(2):
            for m in range(2):
                o.append([dma(vW,WA if m==0 else WU,"0" if j==0 else f"s{sW1o}",(2*m+j)*1024,f"w{s}" if (s or j) else "w0a")])
        o[0].insert(0,I(f"s_add_u32 m0, s{sSeg2}, {(s%4)*16384}"))
        o[-1]+=[ATOM(f"s_cmp_eq_u32 s{sWr}, {s%7}",f"s_cselect_b32 s{sD}, s{sNW}, {64*3584}"),I(f"v_add_u32 v{vW}, s{sD}, v{vW}")]
        if s==6: o[-1].append(I(f"v_add_u32 v{vW}, 128, v{vW}"))
        return o
    NTT=OPT['ntt']; R1=[176,177,178,179]; R2=[180,181,182,183]; sF0=39
    LOC=[((sSeg1,b*4096),13 if b<2 else 17) for b in range(6)]+[((sSeg2,((j+2)%4)*16384),21+2*j) for j in range(4)]
    loc=lambda b: LOC[b%10][0]
    D=Down(NTT=NTT,vt=(196,197,198),vW2=vW2,vWo=248,vH=vH,vH4=vH4,vPoll=vPoll,vPA=vPA,vPO=187,vSA=188,vO=189,vRW=190,vRR=184,vS=192,vRT=96,
           sW2o=[None,84,85,86],sWr2=sWr2,sNW2=sNW2,sNH=sNH,sD=sD,sWr3=38,sNWo=36,sNHo=37,sHld=sHld,sHO=sT[5],sRow=40,
           m0=loc,rd=lambda b:(R1 if loc(b)[0]==sSeg1 else R2,loc(b)[1]),red=(65536,24576,5120),
           ACC=lambda q,t:ACC(0,q,t),AF=AF,aSt=0,aH=128,nAS=128//(4*NTT),NSL=128//(4*NTT)+(4 if NTT==5 else 0),vHS=96)
    pro=flat([xdma(s)+wdma(s) for s in range(OPT['npre'])])
    P.extend(flat(pro[:OPT['early']]))
    mksrd(WS,60,WSN); mksrd(WD,52,1605632); mksrd(WO,44,401408); mksrd(OUT,56,1835008); mksrd(DBG,58,256)
    e("v_lshrrev_b32 v14, 4, v0")
    e("v_and_b32 v15, 15, v0")
    e("v_lshrrev_b32 v12, 1, v15"); e("v_xor_b32 v12, v12, v14"); e("v_lshlrev_b32 v12, 4, v12")
    e("v_lshl_add_u32 v12, v15, 7, v12")
    e(f"s_lshr_b32 s{t0}, s{sW}, 1"); e(f"s_mul_i32 s{t0}, s{t0}, 10240"); e(f"s_add_u32 s{t0}, s{t0}, 65536")
    e(f"v_add_u32 v{vXR[0]}, s{t0}, v12"); e(f"v_xor_b32 v{vXR[1]}, 64, v{vXR[0]}")
    e("v_bfe_u32 v12, v0, 2, 2")
    e("v_lshrrev_b32 v13, 1, v12"); e("v_and_b32 v15, 1, v14"); e("v_lshlrev_b32 v15, 1, v15"); e("v_or_b32 v13, v13, v15")
    e(f"s_and_b32 s{t0}, s{sW}, 1"); e(f"s_lshl_b32 s{t0}, s{t0}, 1"); e(f"v_xor_b32 v13, s{t0}, v13"); e("v_lshlrev_b32 v13, 5, v13")
    e("v_lshl_add_u32 v13, v14, 12, v13"); e("v_lshl_add_u32 v13, v12, 7, v13")
    e("v_and_b32 v15, 3, v0"); e(f"v_lshl_add_u32 v{vWR[0]}, v15, 3, v13"); e(f"v_xor_b32 v{vWR[1]}, 32, v{vWR[0]}")
    e(f"s_mul_i32 s{sF0}, s{sT2}, {NTT}")
    D.setup_w(sF0,sT2,sN,sT[:4])
    e(f"s_lshl_b32 s{t2_}, s{sTT}, 1"); e(f"s_lshr_b32 s{t1}, s{sW}, 1"); e(f"s_add_u32 s{t2_}, s{t2_}, s{t1}")
    e(f"s_lshl_b32 s{t0}, s{sSL}, 2"); e(f"s_and_b32 s{t3}, s{sW}, 1"); e(f"s_add_u32 s{t0}, s{t0}, s{t3}"); e(f"s_mul_i32 s{t0}, s{t0}, {NT}")
    e(f"s_mul_i32 s{t1}, s{t2_}, 5"); e(f"s_add_u32 s{t0}, s{t0}, s{t1}")
    e(f"s_lshl_b32 s{t0}, s{t0}, 10"); e(f"s_add_u32 s{sHst}, s{t0}, {H0}")
    e(f"s_lshl_b32 s{t0}, s{t2_}, 3"); e(f"s_add_u32 s{t0}, s{t0}, s{t3}"); e(f"s_cmp_ge_u32 s{sSL}, 7"); e(f"s_cselect_b32 s{t1}, 2, 0"); e(f"s_add_u32 s{t0}, s{t0}, s{t1}"); e(f"s_lshl_b32 s{t0}, s{t0}, 7")
    e(f"v_mov_b32 v{vFl}, {OOB}"); e(f"v_mov_b32 v12, s{t0}"); e("v_cmp_eq_u32 vcc, 0, v0")
    e(f"v_lshlrev_b32 v{vH}, 4, v0"); e(f"v_add_u32 v{vH4}, 4096, v{vH}")
    e(f"v_cndmask_b32 v{vFl}, v{vFl}, v12, vcc")
    e(f"s_mul_i32 s{sSeg1}, s{sW}, 24576"); e(f"s_add_u32 s{sSeg1}, s{sSeg1}, 65536")
    e(f"s_mov_b32 s{sC}, 0xbfb8aa3b")
    e(f"v_mov_b32 v{vOne}, 1")
    e("v_mov_b32 v15, 0")
    e(f"s_or_b32 s{t0}, s{sI}, s{sW}"); e(f"v_or_b32 v250, s{t0}, v0"); e("v_lshlrev_b32 v250, 8, v250")
    def reads(Pn):
        p,s,h=Pn//14,Pn//2,Pn%2
        CH=(p==1 or OPT['chainA']) and not (OPT['split0'] and s==0)
        o=[]
        for ks in ((0,1) if CH else (h,)):
            if p==0 and (h==0 or not CH):
                if s==3: o.append(I(f"v_add_u32 v{vXR[ks]}, 61440, v{vXR[ks]}"))
                for t in range(5): o.append(I(f"ds_read_b128 {XF((2*s+ks)*5+t)}, v{vXR[ks]} offset:{(s%4 if s!=3 else 0)*20480+t*2048}"))
                if s==3: o.append(I(f"v_subrev_u32 v{vXR[ks]}, 61440, v{vXR[ks]}"))
        tr=[]
        for j in range(4):
            if CH: m,ks,tl=j>>1,j&1,h
            else: m,ks,tl=j>>1,h,j&1
            for a in range(2):
                tr.append(I(f"ds_read_b64_tr_b16 {vr(AF(h,j)+2*a,2)}, v{vWR[tl]} offset:{(s%4)*16384+(2*m+ks)*1024+a*512}"))
        return tr[:4]+o+tr[4:]
    def epi(p,t):
        T=[232+k for k in range(8)]; O=240+4*(t%2)
        G=[ACC(p,k>>2,t)+(k&3) for k in range(8)]; U=[ACC(p,2+(k>>2),t)+(k&3) for k in range(8)]
        o=[]
        st=I(f"buffer_store_dwordx4 {vr(O,4)}, v{vH if t<4 else vH4}, {srd(WS)}, s{sHst} offen offset:{(t%4)*1024} {['sc1','sc0 sc1','sc1 nt','sc0 sc1 nt',''][OPT['stf']]}",f"st{p}")
        if p==1:
            for k in range(0,8,2): o.append(I(f"v_pk_mul_f32 {vr(T[k],2)}, {vr(G[k],2)}, s[48:49]"))
            for k in range(8):
                o.append(I(f"v_exp_f32 v{T[k]}, v{T[k]}"))
                if k%2==0: o.append(I(f"v_pk_mul_f32 {vr(U[k],2)}, {vr(G[k],2)}, {vr(U[k],2)}"))
            for k in range(0,8,2): o.append(I(f"v_pk_add_f32 {vr(T[k],2)}, {vr(T[k],2)}, s[50:51]"))
            for k in range(8):
                o.append(I(f"v_rcp_f32 v{G[k]}, v{T[k]}"))
                if k>=3 and k%2==1:
                    o.append(I(f"v_pk_mul_f32 {vr(U[k-3],2)}, {vr(G[k-3],2)}, {vr(U[k-3],2)}"))
                    if k>=5: o.append(I(f"v_cvt_pk_bf16_f32 v{O+(k-5)//2}, v{U[k-5]}, v{U[k-4]}"))
            o.append(I(f"v_cvt_pk_bf16_f32 v{O+2}, v{U[4]}, v{U[5]}"))
            o.append(I(f"v_pk_mul_f32 {vr(U[6],2)}, {vr(G[6],2)}, {vr(U[6],2)}"))
            o.append(I(f"v_cvt_pk_bf16_f32 v{O+3}, v{U[6]}, v{U[7]}"))
            return o+[st]
        for k in range(8): o.append(I(f"v_mul_f32 v{T[k]}, s{sC}, v{G[k]}"))
        for k in range(8):
            o.append(I(f"v_exp_f32 v{T[k]}, v{T[k]}")); o.append(I(f"v_mul_f32 v{U[k]}, v{G[k]}, v{U[k]}"))
        for k in range(8): o.append(I(f"v_add_f32 v{T[k]}, 1.0, v{T[k]}"))
        for k in range(8):
            o.append(I(f"v_rcp_f32 v{G[k]}, v{T[k]}"))
            if k>=1: o.append(I(f"v_mul_f32 v{U[k-1]}, v{G[k-1]}, v{U[k-1]}"))
            if k>=3 and k%2==1: o.append(I(f"v_cvt_pk_bf16_f32 v{O+(k-3)//2}, v{U[k-3]}, v{U[k-2]}"))
        o.append(I(f"v_mul_f32 v{U[7]}, v{G[7]}, v{U[7]}"))
        o.append(I(f"v_cvt_pk_bf16_f32 v{O+3}, v{U[6]}, v{U[7]}"))
        o.append(I(f"buffer_store_dwordx4 {vr(O,4)}, v{vH if t<4 else vH4}, {srd(WS)}, s{sHst} offen offset:{(t%4)*1024} {['sc1','sc0 sc1','sc1 nt','sc0 sc1 nt',''][OPT['stf']]}",f"st{p}"))
        return o
    D.setup_lane([R1,R2],[sSeg1,sSeg2],sT[:4]); D.setup_io(sF0,sN,sT[:4])
    e(f"s_mov_b32 s48, s{sC}"); e(f"s_mov_b32 s49, s{sC}"); e("s_mov_b32 s50, 1.0"); e("s_mov_b32 s51, 1.0")
    e(f"s_add_u32 s{t0}, s{sSeg2}, 147456"); e(f"v_add_u32 v249, s{t0}, v{vH}")
    for q in range(4): e(f"ds_write_b128 v249, {vr(176+4*q,4)} offset:{q*1024}")
    unpark=[I(f"ds_read_b128 {vr(176+4*q,4)}, v249 offset:{q*1024}") for q in range(4)]
    P.extend(flat(pro[OPT['early']:]))
    P.append(WAIT(vm=["x0","w0a"]+([] if OPT['split0'] else ["w0"]),lgkm=0)); e("s_barrier")
    P.extend(stamp(1))
    P.extend(reads(0))
    first=[]
    if OPT['npre']==1:
        first=xdma(1)+wdma(1); P.extend(flat(first[:OPT['pre1']])); first=first[OPT['pre1']:]
    P.append(WAIT(lgkm=0))
    pool=Pool(flat([epi(0,t) for t in range(5)]))
    dq=[]
    for s in range(max(2,OPT['npre']),14):
        if s<=6: dq.append((max(0,2*(s-4)+1),xdma(s)))
        dq.append((max(0,2*(s-4)+1),wdma(s)))
        if s==8: dq.append((0,[[I(f"buffer_load_dword v14, v15, {srd(DBG)}, 0 offen sc1","clr")]]))
    w2q=[(max(OPT['w2p0'],LOC[b][1]),D.w2dma(b)) for b in range(10)]
    cur=first
    for Pn in range(28):
        p,s,h=Pn//14,Pn//2,Pn%2
        CH=(p==1 or OPT['chainA']) and not (OPT['split0'] and s==0)
        mf=[]
        for jq in range(2 if CH else 4):
            for t in range(5):
                for ks in ((0,1) if CH else (h,)):
                    q = (2*jq+h) if CH else jq
                    j = (2*jq+ks) if CH else jq
                    d=vr(ACC(p,q,t),4)
                    mf.append(mfma(d,vr(AF(h,j),4),XF((2*(s%7)+ks)*5+t),"0" if (s%7==0 and ks==0) else d))
        f=[]
        if Pn<27:
            rd=reads(Pn+1)
            if Pn==0 and OPT['split0']:
                xs=[x for x in rd if "b128" in x.op]; tr=[x for x in rd if "b128" not in x.op]
                f+=spread(xs,0,5)+[(7.9,WAIT(vm=["w0"])),(7.95,I("s_barrier"))]+spread(tr,8,16)
            else: f+=spread(rd,0,min(12,len(rd)))
        items=[]
        while len(items)<OPT['rate']:
            if not cur:
                if dq and dq[0][0]<=Pn: cur=dq.pop(0)[1]
                elif w2q and w2q[0][0]<=Pn: cur=w2q.pop(0)[1]
                else: break
            items.append(cur.pop(0))
        n=len(items)
        for k,it in enumerate(items):
            pos=1+k*(19 if Pn else 14)/max(n,5)
            for x in it:
                f.append((pos-1 if x.cls=="salu" else (pos+1 if x.cls=="valu" else pos),x))
        if Pn==16: f+=spread(unpark,8,12)
        if Pn==OPT['gop']: f.append((19,I(f"buffer_store_dword v{vOne}, v250, {srd(DBG)}, 0 offen offset:4 sc1","go")))
        tl=[]
        if h==0: tl=[WAIT(vm=[f"w{s+1}",f"x{s+1}"],lgkm=0),I("s_barrier")]
        elif Pn<27: tl=[WAIT(lgkm=0)]
        n0=len(P)
        if OPT['p2']:
            P.extend(pack2(mf,f,pool if p==1 else None,(OPT['capc']-2 if Pn<OPT['cp'] and p==1 else 0),lo=(2 if Pn==14 else 0),tail=tl,dsend=16))
        else:
            P.extend(pack(mf,f,pool if p==1 else None,(OPT['capc'] if Pn<OPT['cp'] else OPT['cap']),lo=(2 if Pn==14 else 0))); P.extend(tl)
        if OPT['est']: print("ffn period",Pn,estimate(P[n0:]),"pool",len(pool.q))
        if Pn==13: P.extend(stamp(2))
        if h==0: P.extend(stamp(32+s))
    assert not dq
    print("left: epiA ops",len(pool.q),"w2 items",len(w2q))
    P.extend(stamp(3))
    P.extend(pool.q)
    P.extend(flat(cur))
    for _,g_ in w2q: P.extend(flat(g_))
    e(f"s_add_u32 s{sHst}, s{sHst}, {2*NT*1024}")
    S=[WAIT(vm=["b0"])]+D.treads(0)
    for j in range(8):
        S+=[WAIT(vm=[f"b{j+1}"])]+D.treads(j+1)+[WAIT(lgkm=8)] if j<7 else [WAIT(lgkm=0)]
        if OPT['pA']==5+j: S.append(D.poll("pollA"))
        S+=flat(D.w2dma(10+j))
        if j+1==OPT['nin']: n_in=len(S)
        if j+1==OPT['sBs']+OPT['nin']:
            S+=[WAIT(vm=["st1"]),I(f"buffer_atomic_add v{vOne}, v{vFl}, {srd(WS)}, 0 offen offset:512","sigB")]+stamp(10)
    E=[]
    for t in range(5):
        E+=epi(1,t)+stamp(46+t)
        if t==OPT['sAt']: E.append("sigA")
    k0=0
    for k,x in enumerate(E):
        if x=="sigA":
            P.append(WAIT(vm=["st0","clr"])); check_or_spin(15,0,1,DBG,14)
            e(f"buffer_atomic_add v{vOne}, v{vFl}, {srd(WS)}, 0 offen","sigA")
        else: P.append(x)
        k1=max(k0,n_in*(k+1)//len(E))
        while 0<k1<len(S) and S[k1-1].cls=="ds" and S[k1].cls=="ds": k1+=1
        P.extend(S[k0:k1]); k0=k1
    P.extend(stamp(4))
    P.extend(S[k0:])
    D.main([],OPT['lead'],OPT['pah'])

HROW=[118784,49152,118784,65536,81920,139264,49152,0,118784,65536,16384,32768,98304,81920,139264,49152,0,118784]
hR=[[1,2,4,5],[64,65,66,67],[68,69,70,71]]; hsN,hsF0,hsQ=58,59,57
HD=Down(NTT=3,vt=(240,241,242),vW2=3,vWo=6,vH=231,vH4=231,vPoll=12,vPA=72,vPO=73,vSA=74,vO=75,vRW=76,vRR=77,vS=80,vRT=96,
        sW2o=[None,40,41,42],sWr2=43,sNW2=47,sNH=48,sD=49,sWr3=50,sNWo=51,sNHo=52,sHld=53,sHO=54,sRow=55,
        m0=lambda b:(hsQ,HROW[b]),rd=lambda b:(hR[HROW[b]>>16],HROW[b]&0xffff),red=(0,4096,16384),
        ACC=lambda q,t:16+(q*3+t)*4,AF=lambda buf,q:160+16*buf+4*q,aSt=128,aH=0,nAS=10,NSL=10,vHS=0)
def helper_setup(regs):
    t=sT[:4]; t=[66,67,70,71]
    mksrd(WO,44,401408); mksrd(WD,52,1605632); mksrd(OUT,56,1835008)
    e(f"s_mul_i32 s{hsF0}, s{sXCD}, 3"); e(f"s_add_u32 s{hsF0}, s{hsF0}, 104"); e(f"s_add_u32 s61, s{sXCD}, 26"); e(f"s_lshl_b32 s{hsQ}, s{sW}, 12")
    keep=(HD.vW2,HD.vWo); HD.vW2,HD.vWo=regs[0],regs[1]
    HD.setup_w(hsF0,61,hsN,t)
    e(f"s_cmp_gt_u32 s{hsN}, 6"); e(f"s_cselect_b32 s66, {OOB}, 0"); e(f"v_or_b32 v{regs[0]}, s66, v{regs[0]}"); e(f"v_or_b32 v{regs[1]}, s66, v{regs[1]}")
    HD.vW2,HD.vWo=keep
    HD.setup_lane([regs[2:6]],[hsQ],t)
    e("v_lshlrev_b32 v231, 4, v0")
    HD.setup_io(hsF0,hsN,t)
    for j in range(8): e(f"v_accvgpr_write_b32 a{248+j}, v{72+j}")
hwin=[0]
def hstage(b):
    o=[]; w=HROW[b]>>16
    if w!=hwin[0]: o+=[I(f"v_add_u32 v{r}, {((w-hwin[0])<<16)&0xffffffff}, v{r}") for r in hR[0]]; hwin[0]=w
    return o+HD.treads(b,lambda b_:(hR[0],HROW[b_]&0xffff))

def attn():
    sAT,sHG=72,73
    sXb,sWb=74,75
    sWo={(0,0):76,(0,1):77,(1,0):78,(1,1):79,(2,0):80,(2,1):81}
    sK,sD0,sD1,sO,sC=82,83,84,85,86
    mE,mM0,mM1,mZ=88,90,100,68
    t0,t1=66,67; t2_,t3=70,71
    vX=[1,2,3,4,5]; vW=6; vXR=(7,8); vR0=(9,10); vR1=(11,12); vRq=(13,14); vPad=15
    vA=(224,225)
    TBL=159744; XB=98304
    Q=lambda u,tl: 16+(u*2+tl)*4
    K=lambda t,tl: 80+(t*2+tl)*4
    V=lambda d,t: 152+d*36+t*4
    XA=lambda buf,t: buf*36+4*t
    WF=lambda buf,m,tl: 72+buf*24+(2*m+tl)*4
    e("L_attn:")
    e(f"s_lshr_b32 s{sAT}, s{sXCD}, 2"); e(f"s_lshl_b32 s{sAT}, s{sAT}, 3"); e(f"s_add_u32 s{sAT}, s{sAT}, s{sJ}"); e(f"s_sub_u32 s{sAT}, s{sAT}, 1"); e(f"s_and_b32 s{sHG}, s{sXCD}, 3")
    e("v_lshrrev_b32 v230, 3, v0"); e("v_and_b32 v231, 7, v0")
    e(f"s_and_b32 s{t0}, s{sW}, 1"); e(f"s_lshl_b32 s{t1}, s{t0}, 2")
    e("v_lshrrev_b32 v232, 1, v230"); e(f"v_or_b32 v232, s{t1}, v232"); e("v_xor_b32 v232, v232, v231"); e("v_lshlrev_b32 v232, 4, v232")
    e(f"s_lshl_b32 s{t2_}, s{sAT}, 7"); e(f"s_lshl_b32 s{t3}, s{sW}, 3"); e(f"s_add_u32 s{t2_}, s{t2_}, s{t3}")
    e(f"v_add_u32 v{vX[0]}, s{t2_}, v230"); e(f"v_mul_u32_u24 v{vX[0]}, 896, v{vX[0]}"); e(f"v_add_u32 v{vX[0]}, v{vX[0]}, v232")
    for j in range(1,5): e(f"v_add_u32 v{vX[j]}, {32*j*896}, v{vX[0]}")
    e(f"s_cmp_lt_u32 s{t2_}, 16"); e(f"s_cselect_b32 s{t0}, {OOB}, 0"); e(f"v_or_b32 v{vX[0]}, s{t0}, v{vX[0]}")
    e(f"s_cmp_ge_u32 s{sW}, 2"); e(f"s_cselect_b32 s{t0}, {OOB}, 0"); e(f"v_or_b32 v{vX[4]}, s{t0}, v{vX[4]}")
    e("v_lshrrev_b32 v230, 4, v0"); e("v_and_b32 v231, 15, v0")
    e(f"s_and_b32 s{t0}, s{sW}, 2"); e(f"s_lshl_b32 s{t0}, s{t0}, 1"); e(f"v_or_b32 v232, s{t0}, v230"); e("v_lshlrev_b32 v232, 1, v232"); e("v_xor_b32 v232, v232, v231")
    e(f"s_lshl_b32 s{t0}, s{sW}, 2"); e(f"v_add_u32 v{vW}, s{t0}, v230"); e(f"v_mul_u32_u24 v{vW}, 2688, v{vW}")
    e(f"v_lshl_add_u32 v{vW}, v232, 4, v{vW}"); e(f"s_mul_i32 s{t0}, s{sHG}, 224"); e(f"v_add_u32 v{vW}, s{t0}, v{vW}")
    e(f"v_mov_b32 v233, {OOB}"); e("v_cmp_lt_u32 vcc, 13, v232"); e(f"v_cndmask_b32 v{vW}, v{vW}, v233, vcc")
    sWr,sD,sNW,sKx,sKt=92,93,99,87,3
    e(f"s_lshl_b32 s{t0}, s{sHG}, 1"); e(f"s_add_u32 s{t0}, s{t0}, s{sAT}")
    if OPT['arot']==7:
        e(f"s_mul_i32 s{t1}, s{t0}, 9363"); e(f"s_lshr_b32 s{t1}, s{t1}, 16"); e(f"s_mul_i32 s{t1}, s{t1}, 7"); e(f"s_sub_u32 s{t0}, s{t0}, s{t1}")
    elif OPT['arot']==2: e(f"s_and_b32 s{t0}, s{t0}, 1"); e(f"s_mul_i32 s{t0}, s{t0}, 3")
    elif OPT['arot']==4: e(f"s_and_b32 s{t0}, s{sAT}, 3"); e(f"s_lshl_b32 s{t0}, s{t0}, 1")
    else: e(f"s_mov_b32 s{t0}, 0")
    e(f"s_sub_u32 s{sWr}, 6, s{t0}"); e(f"s_lshl_b32 s{sKx}, s{t0}, 7"); e(f"s_lshl_b32 s{sKt}, s{t0}, 9")
    e(f"s_mul_i32 s{t1}, s{t0}, {64*2688}"); e(f"v_add_u32 v{vW}, s{t1}, v{vW}"); e(f"s_mov_b32 s{sNW}, {-13*32*2688}")
    e(f"s_lshl_b32 s{sXb}, s{sW}, 10"); e(f"s_add_u32 s{sXb}, s{sXb}, {XB}")
    e(f"s_mul_i32 s{sWb}, s{sW}, 6144")
    for (m,j),r in sWo.items():
        imm=((2*m+j)%4)*1024
        e(f"s_mov_b32 s{r}, {4096+m*896+16*j*2688-imm}")
    e(f"s_lshl_b32 s{t0}, s{sW}, 6"); e(f"v_add_u32 v234, s{t0}, v0"); e("v_lshlrev_b32 v235, 2, v234")
    e("s_waitcnt lgkmcnt(0)")
    mksrd(GW,54,896); mksrd(X,40,1835008,14336); mksrd(WA,42,1204224,4096)
    P.extend(stamp(0))
    e(f"buffer_load_dword v236, v235, {srd(GW)}, 0 offen","gw")
    def xdma(c):
        o=[I(f"s_mov_b32 s{sK}, s{sKx}"),I(f"s_add_u32 s{sKx}, s{sKx}, 128"),ATOM(f"s_cmp_eq_u32 s{sWr}, {c}",f"s_cselect_b32 s{sKx}, 0, s{sKx}")]
        for j in range(5):
            o.append(I(f"s_add_u32 m0, s{sXb}, {(c%3)*20480+j*4096}"))
            o.append(dma(vX[j],X,f"s{sK}",0,f"x{c}"))
        return o
    def wdma(k):
        o=[]
        for m in range(3):
            if m!=1: o.append(I(f"s_add_u32 m0, s{sWb}, {(k%4)*24576+(4096 if m==2 else 0)}"))
            for j in range(2): o.append(dma(vW,WA,f"s{sWo[(m,j)]}",((2*m+j)%4)*1024,f"w{k}"))
        if k%2==1:
            o[-1:-1]=[ATOM(f"s_cmp_eq_u32 s{sWr}, {k//2}",f"s_cselect_b32 s{sD}, s{sNW}, {32*2688}")]
            o.append(I(f"v_add_u32 v{vW}, s{sD}, v{vW}"))
        else: o.append(I(f"v_add_u32 v{vW}, {32*2688}, v{vW}"))
        return o
    pro=xdma(0)+wdma(0)+wdma(1)
    cutp=[k for k,x in enumerate(pro) if x.cls=="vm"][OPT['aearly']-1]+1 if OPT['aearly'] else 0
    P.extend(pro[:cutp])
    aq=[(0,xdma(1)),(0,wdma(2)),(0,wdma(3)),(0,xdma(2))]
    for k in range(4,14):
        aq.append((k-4+(1 if k-4<OPT['amid'] else 0),wdma(k)))
        if k%2==1 and (k+1)//2<=6: aq.append((2*((k+1)//2-3)+1+(1 if 2*((k+1)//2-3)+1<OPT['amid'] else 0),xdma((k+1)//2)))
    acur=[]
    mksrd(WS,60,WSN); mksrd(DBG,58,256)
    HELP=OPT['ntt']==4
    e(f"s_and_b32 s{t0}, s{sXCD}, 3"); e(f"s_cmp_eq_u32 s{t0}, 3"); e(f"s_cselect_b32 s{t0}, 1, 0"); e(f"s_add_u32 s{hsN}, s{sJ}, s{t0}")
    if not HELP: e(f"s_mov_b32 s{hsN}, 7")
    helper_setup([232,233,234+9,245,246,247])
    for j,r in enumerate([232,243,245,246,247,233]): e(f"v_accvgpr_write_b32 a{122+j}, v{r}")
    e(f"s_sub_u32 s{t0}, s{sJ}, 1"); e(f"s_lshl_b32 s{t0}, s{t0}, 2"); e(f"s_add_u32 s{t0}, s{t0}, s{sW}"); e(f"s_lshl_b32 s{t0}, s{t0}, 6")
    e(f"v_add_u32 v227, s{t0}, v0"); e("v_lshlrev_b32 v226, 7, v227"); e(f"s_mov_b32 s36, {2048*128}")
    if OPT['apA']>=0 or OPT['apB']>=0:
        e("v_mul_u32_u24 v228, 9363, v227"); e("v_lshrrev_b32 v228, 22, v228"); e("v_mul_u32_u24 v228, 448, v228"); e("v_add_u32 v228, v228, v227"); e("v_lshlrev_b32 v228, 7, v228")
        e("v_cmp_lt_u32 vcc, 1791, v227"); e(f"v_mov_b32 v229, {OOB}"); e("v_cndmask_b32 v227, v228, v229, vcc"); e(f"v_add_u32 v239, {448*128}, v227"); e("v_accvgpr_write_b32 a128, v239")
        for j in range(1,4): e(f"s_mov_b32 s{36+j}, {3584*128*j}")
    e("v_lshrrev_b32 v230, 4, v0"); e("v_and_b32 v231, 15, v0")
    e("v_lshrrev_b32 v232, 1, v231"); e("v_xor_b32 v232, v232, v230"); e("v_lshlrev_b32 v232, 4, v232")
    e("v_lshl_add_u32 v232, v231, 7, v232"); e(f"v_add_u32 v{vXR[0]}, {XB}, v232"); e(f"v_xor_b32 v{vXR[1]}, 64, v{vXR[0]}")
    e("v_bfe_u32 v232, v0, 2, 2"); e("v_and_b32 v233, 3, v0")
    e("v_and_b32 v237, 1, v230"); e("v_lshl_add_u32 v238, v237, 2, v232"); e("v_lshlrev_b32 v238, 2, v238")
    e("v_mul_u32_u24 v237, 12288, v237"); e("v_lshrrev_b32 v239, 1, v230"); e("v_lshl_add_u32 v237, v239, 10, v237"); e("v_lshl_add_u32 v237, v232, 8, v237")
    e(f"s_mul_i32 s{t0}, s{sW}, 7")
    e(f"v_add_u32 v239, s{t0}, v233")
    e("v_xor_b32 v240, v239, v238"); e(f"v_lshl_add_u32 v{vR0[0]}, v240, 3, v237")
    e("v_add_u32 v239, 4, v239")
    e("v_and_b32 v240, 3, v239"); e("v_or_b32 v240, 28, v240"); e("v_cmp_eq_u32 vcc, 3, v233"); e("v_cndmask_b32 v239, v239, v240, vcc")
    e("v_xor_b32 v240, v239, v238"); e(f"v_lshl_add_u32 v{vR1[0]}, v240, 3, v237")
    e(f"v_cndmask_b32 v{vPad}, 0, 1, vcc")
    e(f"v_add_u32 v{vR0[1]}, 49152, v{vR0[0]}"); e(f"v_add_u32 v{vR1[1]}, 49152, v{vR1[0]}")
    e("v_lshl_add_u32 v240, v230, 3, v232"); e("v_lshlrev_b32 v240, 3, v240"); e(f"v_add_u32 v240, {TBL}, v240")
    e(f"v_cndmask_b32 v{vRq[0]}, v{vR1[0]}, v240, vcc"); e(f"v_cndmask_b32 v{vRq[1]}, v{vR1[1]}, v240, vcc")
    P.append(WAIT(vm=["gw"]))
    e("v_and_b32 v244, 0xffff, v236"); e("v_mov_b32 v245, 0"); e("v_lshrrev_b32 v246, 16, v236"); e("v_mov_b32 v247, 0")
    e("v_lshlrev_b32 v234, 4, v234"); e(f"v_add_u32 v234, {TBL}, v234")
    e("ds_write_b128 v234, v[244:247]")
    def reads(k):
        sl=k%4; h=sl//2; buf=k%2
        pre=[]; tr=[]
        for a in range(2):
            imm=(sl%2)*24576+a*6144
            pre.append(I(f"s_add_u32 s{(sD0,sD1)[a]}, s{sKt}, {(256*(k%2)+32*a-imm)&0xffffffff}"))
            pre.append(I(f"v_mad_i32_i24 v{vA[a]}, v{vPad}, s{(sD0,sD1)[a]}, v{vRq[h]}"))
        for m in range(3):
            for tl in range(2):
                for a in range(2):
                    ad = vR0[h] if tl==0 else (vA[a] if m==0 else vR1[h])
                    tr.append(I(f"ds_read_b64_tr_b16 {ar(WF(buf,m,tl)+2*a,2)}, v{ad} offset:{(sl%2)*24576+a*6144+m*2048}"))
        xs=[I(f"ds_read_b128 {ar(XA(buf,t),4)}, v{vXR[k%2]} offset:{((k//2)%3)*20480+t*2048}") for t in range(9)]
        if k%2==1: pre+=[I(f"s_add_u32 s{sKt}, s{sKt}, 512"),ATOM(f"s_cmp_eq_u32 s{sWr}, {k//2}",f"s_cselect_b32 s{sKt}, 0, s{sKt}")]
        return pre+tr[:2]+xs+tr[2:]
    P.extend(pro[cutp:])
    P.append(WAIT(vm=["x0","w0"],lgkm=0)); e("s_barrier")
    P.extend(stamp(1))
    P.extend(reads(0))
    if OPT['amid']: P.append(WAIT(lgkm=0))
    else: P.append(WAIT(vm=["w1"],lgkm=0)); e("s_barrier")
    cA0,cB0,cA1,cB1,vNeg,vH,vH4,vSt,vFl=226,227,228,229,230,231,250,251,252
    import struct
    f2u=lambda x: struct.unpack("<I",struct.pack("<f",x))[0]
    n0=len(P)
    e("v_lshrrev_b32 v232, 4, v0"); e("v_and_b32 v233, 15, v0")
    e("v_and_b32 v234, 1, v233"); e(f"v_cmp_eq_u32 s[{mE}:{mE+1}], 0, v234")
    e("v_lshl_add_u32 v235, v232, 2, v234"); e(f"v_cmp_le_u32 s[{mM0}:{mM0+1}], v235, v233")
    e("v_add_u32 v235, 2, v235"); e(f"v_cmp_le_u32 s[{mM1}:{mM1+1}], v235, v233")
    e("v_mov_b32 v236, 0xffff0000"); e("v_mov_b32 v237, 0xffff"); e(f"v_lshlrev_b32 v{vH}, 4, v0"); e(f"v_add_u32 v{vH4}, 4096, v{vH}")
    e(f"v_cndmask_b32 v236, v236, v237, s[{mE}:{mE+1}]")
    e(f"v_cndmask_b32 v{cA0}, 0, v236, s[{mM0}:{mM0+1}]"); e(f"v_xor_b32 v{cB0}, v{cA0}, v236")
    e(f"v_cndmask_b32 v{cA1}, 0, v236, s[{mM1}:{mM1+1}]"); e(f"v_xor_b32 v{cB1}, v{cA1}, v236")
    e(f"v_mov_b32 v{vNeg}, 0xf149f2ca")
    P.append(ATOM(f"s_cmp_eq_u32 s{sAT}, 0",f"s_cselect_b64 s[{mZ}:{mZ+1}], -1, 0"))
    e(f"s_mov_b32 s{sC}, {f2u(28**-0.5*math.log2(math.e)):#x}"); e(f"s_mov_b32 s{sK}, 0x3fb8aa3b")
    e(f"s_lshl_b32 s{t0}, s{sHG}, 2"); e(f"s_add_u32 s{t0}, s{t0}, s{sW}"); e(f"s_add_u32 s{t0}, s{t0}, 56"); e(f"s_mul_i32 s{t0}, s{t0}, {NT}")
    e(f"s_lshl_b32 s{t1}, s{sAT}, 3"); e(f"s_add_u32 s{t0}, s{t0}, s{t1}"); e(f"s_lshl_b32 s{t0}, s{t0}, 10"); e(f"s_add_u32 s{sO}, s{t0}, {H0}")
    e(f"s_mul_i32 s{t0}, s{sHG}, {SSTR}"); e(f"s_lshl_b32 s{t1}, s{sAT}, 9"); e(f"s_add_u32 s{t0}, s{t0}, s{t1}"); e(f"s_add_u32 s{t0}, s{t0}, {S0}")
    P.append(ATOM(f"s_cmp_eq_u32 s{sW}, 0",f"s_cselect_b32 s{t0}, s{t0}, {OOB}"))
    e(f"v_lshlrev_b32 v{vSt}, 2, v0"); e(f"v_add_u32 v{vSt}, s{t0}, v{vSt}")
    e(f"s_lshl_b32 s{t0}, s{sAT}, 2"); e(f"s_add_u32 s{t0}, s{t0}, s{sHG}"); e(f"s_add_u32 s{t0}, s{t0}, 208"); e(f"s_lshl_b32 s{t0}, s{t0}, 7")
    e("v_min_u32 v238, 1, v0"); e("v_lshlrev_b32 v238, 31, v238"); e(f"v_or_b32 v{vFl}, s{t0}, v238")
    apool=Pool(P[n0:]); del P[n0:]
    U=range(8)
    A=lambda u: 232+u; B=lambda u: 240+u; M=lambda u: 170+u; T=lambda u: 178+u; L=lambda u: 206+u
    SP=lambda u: K(u,1); SO=lambda u: Q(u,1); PQ=lambda u: Q(u,0)
    ZC=(224,225)
    def pk(d,a): return I(f"v_cvt_pk_bf16_f32 v{d}, v{a}, v{a+1}")
    def pack4(d,a,b): return [pk(d,a),pk(d+1,a+2),pk(d+2,b),pk(d+3,b+2)]
    def seq(groups,cap=2):
        f=[]; g=0; room=cap
        for mg,ins in groups:
            for x in ins:
                if g<mg: g=mg; room=cap
                if cost(x)>room: g+=1; room=cap
                f.append((g,x)); room-=cost(x)
        return f
    for k in range(14):
        buf=k%2; mf=[]
        c=lambda d: "0" if k==0 else d
        two=lambda n: [(x,tl) for x in range(n) for tl in range(2)] if k==13 else [(x,tl) for tl in range(2) for x in range(n)]
        for u,tl in two(8): d=vr(Q(u,tl),4); mf.append(mfma(d,ar(WF(buf,0,tl),4),ar(XA(buf,u+1),4),c(d)))
        for t,tl in two(9): d=vr(K(t,tl),4); mf.append(mfma(d,ar(WF(buf,1,tl),4),ar(XA(buf,t),4),c(d)))
        for tl in range(2):
            for t in range(9): d=vr(V(tl,t),4); mf.append(mfma(d,ar(XA(buf,t),4),ar(WF(buf,2,tl),4),c(d)))
        f=[]
        if k<OPT['amid']:
            f+=[(25.9,WAIT(vm=[f"w{k+1}",f"x{(k+1)//2}"])),(25.95,I("s_barrier"))]+spread(reads(k+1),26,47)
        elif k<13: f+=spread(reads(k+1),0,36)
        dm=[]; nd=0
        while nd<OPT['arate']:
            if not acur:
                if aq and aq[0][0]<=k: acur=list(aq.pop(0)[1])
                else: break
            x=acur.pop(0); dm.append(x); nd+=(x.cls=="vm")
            while acur and acur[0].cls=="valu": dm.append(acur.pop(0))
        if k==8:
            dm.append(I("v_mov_b32 v249, 0")); dm.append(I(f"buffer_load_dword v248, v249, {srd(DBG)}, 0 offen sc1","clr"))
        if OPT['apf'] and OPT['apfk']<=k<OPT['apfk']+3:
            kk=k-OPT['apfk']
            if kk==0: dm+=[I(f"buffer_load_dword a{120+j}, v226, {srd(WO)}, {['0','s36'][j]} offen","pf") for j in range(2)]
        for base,k0,av in ((130,OPT['apA'],227),(134,OPT['apB'],239)):
            if k0>=0 and k0<=k<k0+2:
                if av==239 and k==k0: dm.append(I("v_accvgpr_read_b32 v239, a128"))
                dm+=[I(f"buffer_load_dword a{base+2*(k-k0)+j}, v{av}, {srd(WD)}, {['0','s37','s38','s39'][2*(k-k0)+j]} offen","pf") for j in range(2)]
        if HELP:
            if k==8:
                assert all(x.tag[0]!="x" for x in dm+acur+flat([g_ for _,g_ in aq]) if x.cls=="vm")
                f+=spread([I(f"v_accvgpr_read_b32 v{r}, a{122+j}") for j,r in enumerate([HD.vW2]+hR[0])],44,51)
            for b in {9:[0],10:[1],11:[2,3,4],12:[5,6,7],13:list(range(8,8+OPT['hp13']))}.get(k,[]):
                assert not acur
                dm+=flat(HD.w2dma(b))
            sb={10:[0],11:[1],12:[2,3]}.get(k,[])
            if sb: f+=spread([WAIT(vm=[f"b{sb[-1]}"])]+flat([hstage(b) for b in sb]),36.5,50)
        pos=0; nd=0
        for x in dm:
            if x.cls=="vm": nd+=1
            pos=max(pos+0.001,4.3*nd-(2 if x.cls=="vm" else (1 if x.cls=="valu" else -1))); f.append((pos,x))
        if k==13:
            assert not apool.q and not aq and not acur
            for u in U:
                mf.append(mfma(vr(SP(u),4),vr(K(u,0),4),vr(Q(u,0),4),"0")); mf.append(mfma(vr(SO(u),4),vr(K(u+1,0),4),vr(Q(u,0),4),"0"))
            G=[(2*u+5,pack4(Q(u,0),Q(u,0),Q(u,1))) for u in U]
            zc=[]
            for h in range(2):
                q=[Q(4*h+x,1) for x in range(4)]
                zc.append([I(f"v_permlane16_swap_b32 v{q[2]}, v{q[3]}"),I(f"v_permlane16_swap_b32 v{q[0]}, v{q[1]}"),I(f"v_permlane32_swap_b32 v{q[1]}, v{q[3]}"),
                           I(f"v_mul_f32 v{ZC[h]}, s{sK}, v{q[3]}"),I(f"v_min_f32 v{ZC[h]}, 0x42c80000, v{ZC[h]}"),I(f"v_exp_f32 v{ZC[h]}, v{ZC[h]}"),I(f"v_add_f32 v{7+h}, 1.0, v{ZC[h]}")])
            zi=[x for pr in zip(*zc) for x in pr]
            for t in range(9):
                G.append((16+2*t+5,pack4(K(t,0),K(t,0),K(t,1))))
                if t in (1,3,5): G.append((0,zi[:2] if t==1 else (zi[2:4] if t==3 else zi[4:6])))
            G.append((0,zi[6:8]))
            for d in range(2):
                for t in range(9):
                    G.append((34+9*d+t+4,[pk(V(d,0)+2*t,V(d,t)),pk(V(d,0)+2*t+1,V(d,t)+2)]))
                    if d==0 and t in (2,4,6): G.append((0,zi[8+(t-2):10+(t-2)]))
            f+=seq(G)
        tl=[]
        if k<13: tl=[WAIT(lgkm=0)] if k+1<OPT['amid'] else [WAIT(vm=[f"w{k+2}",f"x{(k+2)//2}"],lgkm=0),I("s_barrier")]
        n0=len(P)
        if OPT['p2']: P.extend(pack2(mf,f,apool if 11<=k<13 else None,tail=tl,dsend=48))
        else: P.extend(pack(mf,f,apool if 11<=k<13 else None)); P.extend(tl)
        if OPT['est']: print("attn period",k,estimate(P[n0:]))
        if k<13: P.extend(stamp(32+k))
    P.extend(stamp(2))
    sE=f"s[{mE}:{mE+1}]"
    n_in0=len(P)
    for u in U:
        e(f"v_cndmask_b32 v{M(u)}, v{SP(u)+1}, v{SP(u)}, {sE}"); e(f"v_cndmask_b32 v{T(u)}, v{SP(u)+3}, v{SP(u)+2}, {sE}")
        e(f"v_cndmask_b32 v{A(u)}, v{SO(u)+1}, v{SO(u)}, {sE}"); e(f"v_cndmask_b32 v{B(u)}, v{SO(u)+3}, v{SO(u)+2}, {sE}")
        if u==0:
            e(f"v_cndmask_b32 v{M(0)}, v{M(0)}, v{vNeg}, s[{mZ}:{mZ+1}]"); e(f"v_cndmask_b32 v{T(0)}, v{T(0)}, v{vNeg}, s[{mZ}:{mZ+1}]")
        e(f"v_cndmask_b32 v{A(u)}, v{M(u)}, v{A(u)}, s[{mM0}:{mM0+1}]"); e(f"v_cndmask_b32 v{B(u)}, v{T(u)}, v{B(u)}, s[{mM1}:{mM1+1}]")
        e(f"v_max_f32 v{M(u)}, v{A(u)}, v{B(u)}")
    def allred(R,op,mid):
        H=(0,4)
        for h in H: e(f"v_permlane32_swap_b32 v{R(h)}, v{R(h+2)}"); e(f"v_permlane32_swap_b32 v{R(h+1)}, v{R(h+3)}")
        for h in H: e(f"{op} v{R(h)}, v{R(h)}, v{R(h+2)}"); e(f"{op} v{R(h+1)}, v{R(h+1)}, v{R(h+3)}")
        for h in H: e(f"v_permlane16_swap_b32 v{R(h)}, v{R(h+1)}")
        for h in H: e(f"{op} v{R(h)}, v{R(h)}, v{R(h+1)}")
        mid(H)
        for h in H: e(f"v_mov_b32 v{R(h+1)}, v{R(h)}")
        for h in H: e(f"v_permlane16_swap_b32 v{R(h)}, v{R(h+1)}")
        for h in H: e(f"v_mov_b32 v{R(h+2)}, v{R(h)}"); e(f"v_mov_b32 v{R(h+3)}, v{R(h+1)}")
        for h in H: e(f"v_permlane32_swap_b32 v{R(h)}, v{R(h+2)}"); e(f"v_permlane32_swap_b32 v{R(h+1)}, v{R(h+3)}")
    def midM(H):
        for h in H: e(f"v_mul_f32 v{M(h)}, s{sC}, v{M(h)}")
    allred(M,"v_max_f32",midM)
    for u in U:
        e(f"v_fma_f32 v{A(u)}, v{A(u)}, s{sC}, -v{M(u)}"); e(f"v_fma_f32 v{B(u)}, v{B(u)}, s{sC}, -v{M(u)}")
    for u in U:
        e(f"v_exp_f32 v{A(u)}, v{A(u)}"); e(f"v_exp_f32 v{B(u)}, v{B(u)}")
        if u: e(f"v_add_f32 v{L(u-1)}, v{A(u-1)}, v{B(u-1)}")
    e(f"v_add_f32 v{L(7)}, v{A(7)}, v{B(7)}")
    def midL(H):
        for h in H: e(f"v_rcp_f32 v{L(h)}, v{L(h)}")
        for h in H: e(f"v_rcp_f32 v{T(h)}, v{7+h//4}")
        for h in H: e(f"v_mul_f32 v{L(h)}, v{L(h)}, v{ZC[h//4]}")
        e(f"buffer_store_dword v{T(0)}, v{vSt}, {srd(WS)}, 0 offen sc1","st"); e(f"buffer_store_dword v{T(4)}, v{vSt}, {srd(WS)}, 0 offen offset:256 sc1","st")
    allred(L,"v_add_f32",midL)
    if HELP and OPT['hin']:
        assert OPT['hp13']==5
        body=P[n_in0:]; del P[n_in0:]
        S2=[I(f"v_accvgpr_read_b32 v{HD.vWo}, a127")]+[I(f"v_accvgpr_read_b32 v{r}, a{248+j}") for j,r in enumerate((9,10,11,12,14,15,186,187))]
        S2+=[WAIT(vm=["b7"])]+flat([hstage(b) for b in range(4,8)])+[WAIT(lgkm=0)]
        nr=len(S2); S2+=flat([flat(HD.w2dma(b)) for b in range(13,13+OPT['hin'])])
        k0=0; n1=len(body)//3
        for k,x in enumerate(body):
            P.append(x)
            k1=max(k0,nr*(k+1)//n1 if k<n1 else nr+(len(S2)-nr)*(k+1-n1)//(len(body)-n1))
            while 0<k1<len(S2) and (S2[k1].cls=="ds" or (S2[k1-1].cls=="valu" and k1<nr-1)): k1+=1
            P.extend(S2[k0:k1]); k0=k1
    def pre(u):
        return [I(f"v_mul_f32 v{A(u)}, v{A(u)}, v{L(u)}"),I(f"v_mul_f32 v{B(u)}, v{B(u)}, v{L(u)}"),
                I(f"v_cvt_pk_bf16_f32 v{A(u)}, v{A(u)}, v{A(u)}"),I(f"v_cvt_pk_bf16_f32 v{B(u)}, v{B(u)}, v{B(u)}"),
                I(f"v_and_b32 v{PQ(u)}, v{cB0}, v{A(u)}"),I(f"v_and_b32 v{PQ(u)+1}, v{cB1}, v{B(u)}"),
                I(f"v_and_b32 v{PQ(u)+2}, v{cA0}, v{A(u)}"),I(f"v_and_b32 v{PQ(u)+3}, v{cA1}, v{B(u)}")]
    def post(u):
        return pack4(PQ(u),SP(u),SO(u))+[I(f"buffer_store_dwordx4 {vr(PQ(u),4)}, v{vH if u<4 else vH4}, {srd(WS)}, s{sO} offen offset:{(u%4)*1024} sc1","st")]
    P.extend(pre(0))
    for u in range(10):
        if u+1<8: a_=pre(u+1)
        else: a_=[]
        P.extend(a_[:2])
        if u<8: P.append(mfma(vr(SP(u),4),vr(V(0,0)+2*u,4),vr(PQ(u),4),"0"))
        P.extend(a_[2:4])
        if u<8: P.append(mfma(vr(SO(u),4),vr(V(1,0)+2*u,4),vr(PQ(u),4),"0"))
        P.extend(a_[4:])
        if u>=2: P.extend(post(u-2))
        elif u==0: e("v_mov_b32 v13, 1")
    P.extend(stamp(3))
    nb=8+OPT['hp13']
    P.append(WAIT(vm=["clr"])); check_or_spin(249,0,1,DBG,248)
    if HELP:
        if OPT['hin']:
            for j,r in enumerate((9,10,11,12,14,15,186,187)): e(f"v_mov_b32 v{72+j}, v{r}")
            e("L_help:")
            P.append(HD.poll("pollA")); nb+=OPT['hin']
        else:
            e("L_help:")
            e(f"v_accvgpr_read_b32 v{HD.vWo}, a127")
            for j in range(8): e(f"v_accvgpr_read_b32 v{72+j}, a{248+j}")
            P.append(HD.poll("pollA"))
            P.append(WAIT(vm=["b7"])); P.extend(flat([hstage(b) for b in range(4,8)]))
        for b in range(nb,nb+OPT['hwin']): P.extend(flat(HD.w2dma(b)))
        nb+=OPT['hwin']
        if hwin[0]: P.extend([I(f"v_add_u32 v{r}, {(-hwin[0]<<16)&0xffffffff}, v{r}") for r in hR[0]])
        for w in (1,2):
            for q in range(4): e(f"v_add_u32 v{hR[w][q]}, {w<<16}, v{hR[0][q]}")
    P.append(WAIT(vm=["st"],lgkm=0))
    e(f"buffer_atomic_add v13, v{vFl}, {srd(WS)}, 0 offen","sig")
    if HELP:
        P.extend(stamp(4))
        e(f"s_cmp_gt_u32 s{hsN}, 6"); e("s_cbranch_scc1 L_hexit")
        HD.main([(0 if b<17 else 24,it) for b in range(nb,18) for it in HD.w2dma(b)],OPT['hlead'],OPT['hpah'],so=50)
        e("L_hexit:")
    P.extend(stamp(4,True))
    if not HELP and (OPT['l2o'] or OPT['l2b']):
        sA,sB,sWv=40,41,42
        e(f"s_mul_i32 s{t0}, s{sXCD}, 23"); e(f"s_lshr_b32 s{t1}, s{sXCD}, 2"); e(f"s_sub_u32 s{t0}, s{t0}, s{t1}"); e(f"s_add_u32 s{t1}, s{t0}, 22")
        for r,d in ((t0,sA),(t1,sB)): e(f"s_mul_i32 s{r}, s{r}, 9363"); e(f"s_lshr_b32 s{d}, s{r}, 16")
        e(f"s_min_u32 s{sB}, s{sB}, 25")
        e(f"s_sub_u32 s{sWv}, s{sJ}, 1"); e(f"s_lshl_b32 s{sWv}, s{sWv}, 2"); e(f"s_add_u32 s{sWv}, s{sWv}, s{sW}")
        e(f"s_sub_u32 s43, s{sB}, s{sA}"); e("s_add_u32 s43, s43, 1"); e("s_mul_i32 s43, s43, 40"); e("s_sub_u32 s43, s43, 1")
        e(f"s_mul_i32 s44, s{sA}, 5")
        def touch(sKap,first,n,step):
            e(f"s_mul_i32 s{t0}, s{sKap}, {NT}"); e(f"s_add_u32 s{t0}, s{t0}, s44"); e(f"s_lshl_b32 s{t0}, s{t0}, 10"); e(f"s_add_u32 s{t0}, s{t0}, {H0}")
            for k in range(n):
                e(f"v_add_u32 v20, {first}, v0") if isinstance(first,str) and k==0 else e(f"v_add_u32 v20, {step if k else first}, v{20 if k else 0}")
                e("v_min_u32 v21, s43, v20"); e("v_lshlrev_b32 v21, 7, v21"); e(f"buffer_load_dword v{24+k}, v21, {srd(WS)}, s{t0} offen sc1","pf")
        if OPT['l2b']:
            LB=lab("NB")
            e(f"s_cmp_ge_u32 s{sWv}, 28"); e(f"s_cbranch_scc1 {LB}")
            e(f"s_lshr_b32 s45, s{sWv}, 1"); e(f"s_and_b32 s46, s{sWv}, 1"); e("s_cmp_ge_u32 s45, 7"); e("s_cselect_b32 s47, 2, 0"); e("s_add_u32 s47, s47, s46")
            e(f"v_min_u32 v22, 4, v0"); e(f"v_add_u32 v22, s{sA}, v22"); e(f"v_min_u32 v22, s{sB}, v22"); e("v_lshlrev_b32 v22, 3, v22"); e("v_add_u32 v22, s47, v22"); e("v_lshlrev_b32 v22, 7, v22")
            spin(22,512,7,WS,23,nap=OPT['nap'])
            e("s_lshl_b32 s45, s45, 2"); e("s_add_u32 s45, s45, s46"); e("s_add_u32 s45, s45, 2")
            touch(45,0,4,64)
            e(LB+":")
        if OPT['l2o']:
            e(f"s_and_b32 s45, s{sWv}, 15"); e("s_lshr_b32 s46, s45, 2")
            e(f"s_lshr_b32 s47, s44, 3"); e(f"s_mul_i32 s48, s{sB}, 5"); e("s_add_u32 s48, s48, 4"); e("s_lshr_b32 s48, s48, 3"); e("s_min_u32 s48, s48, 15")
            e("v_min_u32 v22, 4, v0"); e("v_add_u32 v22, s47, v22"); e("v_min_u32 v22, s48, v22"); e("v_lshlrev_b32 v22, 2, v22"); e("v_add_u32 v22, s46, v22"); e("v_add_u32 v22, 208, v22"); e("v_lshlrev_b32 v22, 7, v22")
            spin(22,0,4,WS,23,nap=OPT['nap'])
            e("s_add_u32 s45, s45, 56"); e(f"s_lshr_b32 s46, s{sWv}, 4"); e("s_lshl_b32 s46, s46, 6")
            touch(45,"s46",2,128)
    e("s_endpgm")

def spare():
    KN=NAME+"_kernel"
    e("L_spare:")
    e("s_getpc_b64 s[68:69]")
    e("L_pc:")
    e(f"s_sub_u32 s68, s68, L_pc-{KN}"); e("s_subb_u32 s69, s69, 0")
    e(f"s_lshl_b32 s70, s{sW}, 13"); e("v_lshlrev_b32 v1, 7, v0"); e("v_add_u32 v2, s70, v1")
    e(f"v_min_u32 v3, L_end-{KN}-4, v2")
    e("global_load_dword v10, v3, s[68:69]","pf")
    e("v_add_u32 v2, 32768, v2"); e(f"v_min_u32 v3, L_end-{KN}-4, v2")
    e("global_load_dword v11, v3, s[68:69]","pf")
    e("s_waitcnt lgkmcnt(0)")
    mksrd(WS,60,WSN); mksrd(DBG,58,256)
    e(f"s_or_b32 s70, s2, s{sW}"); e("s_cmp_eq_u32 s70, 0"); e("s_cbranch_scc0 L_noclr")
    e("v_lshlrev_b32 v5, 8, v0"); e("v_mov_b32 v6, 0"); e("v_lshlrev_b32 v7, 7, v0"); e("v_mov_b32 v8, 1")
    for k in range(5):
        e(f"buffer_store_dword v6, v7, {srd(WS)}, 0 offen sc1"); e("v_add_u32 v7, 8192, v7")
    e("s_waitcnt vmcnt(0)")
    e(f"buffer_store_dword v8, v5, {srd(DBG)}, 0 offen sc1")
    e("L_noclr:")
    if OPT['tlb']:
        mksrd(WO,44,401408); mksrd(WD,52,1605632); mksrd(OUT,56,1835008)
        e(f"s_cmp_eq_u32 s{sW}, 1"); e("s_cbranch_scc0 L_notlb")
        e(f"v_mul_u32_u24 v20, {NT*1024}, v0"); e("v_lshlrev_b32 v21, 17, v0"); e(f"s_mov_b32 s70, {H0+129*1024}"); e(f"s_mov_b32 s71, {H0+129*1024+64*NT*1024}")
        e(f"buffer_load_dword v22, v20, {srd(WS)}, s70 offen","pf"); e(f"buffer_load_dword v23, v20, {srd(WS)}, s71 offen","pf")
        e(f"s_mov_b32 s70, {S0-128}"); e(f"buffer_load_dword v27, off, {srd(WS)}, s70","pf")
        for k,sr in enumerate((WD,WO,OUT)): e(f"buffer_load_dword v{24+k}, v21, {srd(sr)}, 0 offen","pf")
        e("s_waitcnt vmcnt(0)")
        e("L_notlb:")
    if OPT['ntt']==5 and OPT['gop']>=0:
        mksrd(WO,44,401408); mksrd(WD,52,1605632)
        e("v_mov_b32 v249, 0"); spin(249,4,1,DBG,248,nap=OPT['nap'])
        e(f"s_mul_i32 s66, s{sW}, 10"); e(f"s_add_u32 s66, s66, s{sI}"); e("s_lshl_b32 s66, s66, 6"); e("v_add_u32 v20, s66, v0")
        n=30
        for half in range(2):
            for k in range(3):
                e(f"v_add_u32 v21, {2560*k}, v20"); e("v_mul_u32_u24 v22, 9363, v21"); e("v_lshrrev_b32 v22, 22, v22"); e(f"v_add_u32 v22, {half}, v22")
                e("v_mul_u32_u24 v22, 448, v22"); e("v_add_u32 v22, v22, v21"); e("v_lshlrev_b32 v22, 7, v22")
                e(f"buffer_load_dword v{n}, v22, {srd(WD)}, 0 offen","pf"); n+=1
        if OPT['spf']:
            for k in range(2):
                e(f"v_add_u32 v21, {2560*k}, v20"); e("v_lshlrev_b32 v22, 7, v21"); e(f"buffer_load_dword v{n}, v22, {srd(WO)}, 0 offen","pf"); n+=1
    if OPT['ntt']==4:
        P.extend(stamp(0))
        e(f"s_min_u32 s{hsN}, s{sJ}, 1")
        helper_setup([HD.vW2,9]+hR[0])
        e("v_accvgpr_write_b32 a127, v9")
        e("v_lshlrev_b32 v231, 4, v0"); e(f"v_mov_b32 v252, {OOB}"); e("v_mov_b32 v13, 1"); e("v_mov_b32 v249, 0"); e("v_mov_b32 v248, 0")
        if OPT['gop']>=0: spin(249,4,1,DBG,248,nap=OPT['nap'])
        if OPT['spf']:
            e(f"s_mul_i32 s66, s{sXCD}, 392"); e(f"s_lshl_b32 s67, s{sW}, 6"); e("s_add_u32 s66, s66, s67"); e("v_add_u32 v14, s66, v0")
            for k in range(13):
                e("v_subrev_u32 v15, 3136, v14"); e("v_min_u32 v15, v15, v14"); e("v_lshlrev_b32 v15, 7, v15")
                e(f"buffer_load_dword v{16+k}, v15, {srd(WO)}, 0 offen","pf"); e("v_add_u32 v14, 256, v14")
                if k<OPT['spf']-1: e("s_waitcnt vmcnt(0)")
        hwin[0]=0
        for b in range(8+OPT['hp13']):
            P.extend(flat(HD.w2dma(b)))
            for sb in {1:[0],4:[1],7:[2,3]}.get(b,[]):
                P.append(WAIT(vm=[f"b{sb}"])); P.extend(hstage(sb)); P.append(WAIT(lgkm=0))
        if OPT['hin']:
            e(f"v_mov_b32 v{HD.vWo}, v9")
            P.append(WAIT(vm=["b7"])); P.extend(flat([hstage(b) for b in range(4,8)])); P.append(WAIT(lgkm=0))
            for b in range(13,13+OPT['hin']): P.extend(flat(HD.w2dma(b)))
        assert hwin[0]==HROW[7 if OPT['hin'] else 3]>>16
        spin(249,0,1,DBG,248)
        spin(HD.vPA,0,7,WS,HD.vPoll,nap=OPT['nap'])
        e("s_branch L_help")
    e("L_exit:")
    e("s_endpgm")
    e("L_end:")

def main():
    global P
    head=open("cdna_kernels/"+NAME+".s.ref").read().split("; Override launch")[0]
    txt=[]; nops=0
    def ablate(o):
        a=OPT['abl']; r=[]
        for x in o:
            if a&1 and x.cls=="vm" and " lds" in x.text: continue
            if a&2 and x.op.startswith("ds_read"): continue
            if a&4 and x.op.startswith("v_mfma"): continue
            r.append(x)
        return r
    for part in ((common_prologue,ffn),(attn,),(spare,)):
        P.clear()
        if part[0] is not common_prologue:
            pass
        for f in part: f()
        o,n=finalize(list(P),part[-1].__name__); nops+=n
        if OPT['abl']: o=ablate(o)
        txt+=[x.text if x.cls=="label" else "    "+x.text for x in o]
    out=head+"; generated by gen/gen.py (hand-designed schedule, python emitter)\n; @launch grid=(256,1,1) block=(256,1,1) lds=163840\n"
    out+='.amdgcn_target "amdgcn-amd-amdhsa--gfx950"\n.text\n'
    out+=f".globl {NAME}_kernel\n.p2align 8\n.type {NAME}_kernel,@function\n{NAME}_kernel:\n"
    out+="\n".join(txt)+"\n"
    out+=f""".section .rodata,"a"
.p2align 6
.amdhsa_kernel {NAME}_kernel
  .amdhsa_next_free_vgpr 512
  .amdhsa_next_free_sgpr 102
  .amdhsa_accum_offset 256
  .amdhsa_group_segment_fixed_size 0
  .amdhsa_kernarg_size 88
  .amdhsa_user_sgpr_count 2
  .amdhsa_user_sgpr_kernarg_segment_ptr 1
  .amdhsa_system_sgpr_workgroup_id_x 1
.end_amdhsa_kernel
"""
    open(sys.argv[1],"w").write(out)
    print("instructions",len(txt),"auto nops",nops)
main()
```

```python
import sys, math
from isa import *
NAME="gated_mix__sliding_local_dilated__swiglu_ffn__prompt"
OPT=dict(stamp=0, probe=-2, pwg=100, obs=0, abl=0, outpol=0,
         rot=4, arot=7, rate=5, cap=2, capc=3, cp=16, chainA=1, w2p0=13, sAt=1, nin=3, sBs=2, pA=10,
         lead=12, pah=12, nm=3, ntt=5, hlead=9, hpah=9, arate=12, apf=1, spf=1, l2o=0, l2b=1, ech=1, tail2=0, ap1=0, rateA=6, nA=6, apW=-1, apA=-1, apB=-1, apfk=8, hp13=5, hwin=0, nap=8, amid=4, hin=2, gop=5, p2=1, est=0, tlb=0, stf=0, split0=1, npre=2, pre1=5, early=9, aearly=5)
for a in sys.argv[2:]:
    k,v=a.split("="); OPT[k]=int(v)
H0=0x100000; NT=130; S0=0x80000; SSTR=2176*4; STAMP0=0xC00000; WSN=0x1000000
OOB=0x80000000
X,WA,WU,WD,WO,WS,OUT,DBG,GW=4,8,12,16,20,24,28,32,36
def srd(b): return f"s[{b}:{b+3}]"
def vr(b,n=1): return f"v{b}" if n==1 else f"v[{b}:{b+n-1}]"
def ar(b,n=1): return f"a{b}" if n==1 else f"a[{b}:{b+n-1}]"
P=[]
def e(t,tag=None):
    x=I(t,tag); P.append(x); return x
_l=[0]
def lab(p="L"):
    _l[0]+=1; return f"{p}{_l[0]}"
def mksrd(b,src,n,bias=0):
    if bias:
        e(f"s_sub_u32 s{b}, s{src}, {bias}"); e(f"s_subb_u32 s{b+1}, s{src+1}, 0")
    else:
        e(f"s_mov_b64 s[{b}:{b+1}], s[{src}:{src+1}]")
    e(f"s_mov_b32 s{b+2}, {n+bias}"); e(f"s_mov_b32 s{b+3}, 0x20000")
def mfma(d,a,b,c): return I(f"v_mfma_f32_16x16x32_bf16 {d}, {a}, {b}, {c}")
sW,sXCD,sJ,sI=62,63,64,65
sT=[66,67,68,69,70,71]
sSTB=98
nstamp=[0]
def stamp(idx,last=False):
    if OPT['probe']!=-2:
        o=[]
        if idx==OPT['probe']: o+=[I("s_memrealtime s[94:95]"),I("s_waitcnt lgkmcnt(0)"),I("s_sub_u32 s97, s94, s96")]
        if last:
            L=lab("PR"); D=lab("PD")
            o+=[I(f"s_cmp_eq_u32 s2, {OPT['pwg']}"),I(f"s_cbranch_scc0 {D}"),I("s_add_u32 s97, s97, 4000"),I(L+":"),I("s_memrealtime s[94:95]"),I("s_waitcnt lgkmcnt(0)"),
                I("s_sub_u32 s94, s94, s96"),I("s_cmp_lt_u32 s94, s97"),I(f"s_cbranch_scc1 {L}"),I(D+":")]
        return o
    if not OPT['stamp']: return []
    if OPT['stamp']==2 and idx not in (0,1,2,3,4,5,6,7,8,9,10,11,55,56,57,58,59,61) : return []
    if OPT['stamp']==3 and idx not in (0,9) and not last: return []
    o=[I("s_memrealtime s[94:95]"),I("s_memtime s[96:97]"),I("s_waitcnt lgkmcnt(0)"),
       I(f"v_writelane_b32 v254, s94, {idx}"),I(f"v_writelane_b32 v255, s96, {idx}")]
    if last: o+=[I("v_lshlrev_b32 v253, 3, v0"),I(f"buffer_store_dwordx2 v[254:255], v253, {srd(WS)}, s{sSTB} offen","stamp")]
    return o
def spin(addrv, off, cmpval, srdb, res=12, nap=1):
    L=lab("SP"); D=lab("SD")
    e("s_mov_b32 s92, 0")
    e(L+":")
    e(f"buffer_load_dword v{res}, v{addrv}, {srd(srdb)}, 0 offen offset:{off} sc1","poll")
    e("s_waitcnt vmcnt(0)")
    e(f"v_cmp_ne_u32 vcc, {cmpval}, v{res}")
    e(f"s_cbranch_vccz {D}")
    e("s_add_u32 s92, s92, 1")
    e("s_cmp_lt_u32 s92, 0x40000")
    e(f"s_sleep {nap}")
    e(f"s_cbranch_scc1 {L}")
    e(D+":")
def check_or_spin(addrv, off, cmpval, srdb, res):
    D=lab("CK")
    e(f"v_cmp_ne_u32 vcc, {cmpval}, v{res}")
    e(f"s_cbranch_vccz {D}")
    n0=len(P)
    spin(addrv,off,cmpval,srdb,res)
    for x in P[n0:]:
        if x.cls=="vm": x.cls="raw"; x.wr=set()
        if x.op=="s_waitcnt": x.op="raw"
    e(D+":")

def common_prologue():
    e("s_cmp_ge_u32 s2, 256"); e("s_cbranch_scc1 L_exit")
    if OPT['probe']!=-2:
        e("s_memrealtime s[94:95]"); e("s_waitcnt lgkmcnt(0)"); e("s_mov_b32 s96, s94"); e("s_mov_b32 s97, 0")
    e("s_load_dwordx16 s[40:55], s[0:1], 0")
    e("s_load_dwordx4 s[56:59], s[0:1], 64")
    e("s_load_dwordx2 s[60:61], s[0:1], 80")
    e("v_lshrrev_b32 v1, 6, v0")
    e(f"s_and_b32 s{sXCD}, s2, 7"); e(f"s_lshr_b32 s{sJ}, s2, 3")
    e(f"v_readfirstlane_b32 s{sW}, v1")
    e("v_and_b32 v0, 63, v0")
    if OPT['stamp']:
        e(f"s_lshl_b32 s{sSTB}, s2, 2"); e(f"s_add_u32 s{sSTB}, s{sSTB}, s{sW}"); e(f"s_lshl_b32 s{sSTB}, s{sSTB}, 9")
        e(f"s_add_u32 s{sSTB}, s{sSTB}, {STAMP0}")
        e("v_mov_b32 v254, 0"); e("v_mov_b32 v255, 0")
    e(f"s_mov_b32 s{sI}, s{sXCD}")
    e(f"s_cmp_eq_u32 s{sJ}, 0"); e("s_cbranch_scc1 L_spare")
    e(f"s_cmp_lt_u32 s{sJ}, 9"); e("s_cbranch_scc1 L_attn")

def dma(voff,sr,soff,imm,tag): return I(f"buffer_load_dwordx4 v{voff}, {srd(sr)}, {soff} offen offset:{imm} lds",tag)

flat=lambda L:[x for it in L for x in it]
def mod7(dst,src,tmp,R=7):
    e(f"s_mul_i32 s{tmp}, s{src}, 9363"); e(f"s_lshr_b32 s{tmp}, s{tmp}, 16"); e(f"s_mul_i32 s{tmp}, s{tmp}, 7"); e(f"s_sub_u32 s{dst}, s{src}, s{tmp}")
    if R==1: e(f"s_mov_b32 s{dst}, 0")
    elif R==2: e(f"s_and_b32 s{dst}, s{dst}, 1"); e(f"s_mul_i32 s{dst}, s{dst}, 3")
    elif R==4: e(f"s_and_b32 s{dst}, s{dst}, 3"); e(f"s_lshl_b32 s{dst}, s{dst}, 1")

class Down:
    def __init__(c,**kw): c.__dict__.update(kw)
    def setup_w(c,sF0,sT2,sN,t):
        t0,t1,t2,t3=t; a,b,d=c.vt
        e(f"v_lshrrev_b32 v{a}, 3, v0"); e(f"v_and_b32 v{b}, 6, v{a}"); e(f"v_and_b32 v{d}, 7, v0"); e(f"v_xor_b32 v{b}, v{b}, v{d}")
        e(f"v_mul_u32_u24 v{a}, 896, v{a}"); e(f"v_lshl_add_u32 v{c.vW2}, v{b}, 4, v{a}")
        e(f"s_lshr_b32 s{t0}, s{sW}, 1"); e(f"s_mul_i32 s{t0}, s{t0}, 28"); e(f"s_and_b32 s{t1}, s{sW}, 1"); e(f"s_add_u32 s{t3}, s{t0}, s{t1}")
        e(f"s_lshl_b32 s{t2}, s{sN}, 7"); e(f"v_add_u32 v{c.vW2}, s{t2}, v{c.vW2}")
        e(f"s_add_u32 s{t0}, s{sT2}, s{sN}"); e(f"s_and_b32 s{t0}, s{t0}, 3"); e(f"s_sub_u32 s{c.sWr3}, 3, s{t0}")
        e(f"s_lshl_b32 s{t1}, s{sW}, 2"); e(f"s_add_u32 s{t2}, s{t0}, s{t1}")
        e(f"s_mul_i32 s{t0}, s{t2}, {28*896}"); e(f"v_add_u32 v{c.vWo}, s{t0}, v{c.vW2}")
        e(f"s_add_u32 s{t0}, s{t2}, 56"); e(f"s_mul_i32 s{t0}, s{t0}, {NT}"); e(f"s_add_u32 s{t0}, s{t0}, s{sF0}"); e(f"s_lshl_b32 s{t0}, s{t0}, 10"); e(f"s_add_u32 s{c.sHO}, s{t0}, {H0}")
        e(f"s_mov_b32 s{c.sNWo}, {-3*28*896}"); e(f"s_mov_b32 s{c.sNHo}, {-3*NT*1024}")
        e(f"s_lshl_b32 s{t0}, s{sT2}, 1"); e(f"s_add_u32 s{t0}, s{t0}, s{sN}")
        mod7(t0,t0,t1); e(f"s_sub_u32 s{c.sWr2}, 6, s{t0}"); e(f"s_lshl_b32 s{t0}, s{t0}, 2"); e(f"s_add_u32 s{t3}, s{t3}, s{t0}")
        e(f"s_mul_i32 s{t1}, s{t3}, {32*896}"); e(f"v_add_u32 v{c.vW2}, s{t1}, v{c.vW2}")
        e(f"s_mov_b32 s{c.sNW2}, {-6*114688}"); e(f"s_mov_b32 s{c.sNH}, {-24*NT*1024}")
        e(f"s_mul_i32 s{t0}, s{t3}, {NT}"); e(f"s_add_u32 s{t0}, s{t0}, s{sF0}"); e(f"s_lshl_b32 s{t0}, s{t0}, 10"); e(f"s_add_u32 s{c.sHld}, s{t0}, {H0}")
        for j in range(1,4): e(f"s_mov_b32 s{c.sW2o[j]}, {6144*j}")
    def setup_lane(c,dst,sBases,t):
        t0=t[0]; a,b,d=c.vt
        e(f"v_bfe_u32 v{a}, v0, 4, 1"); e(f"v_bfe_u32 v{b}, v0, 2, 2"); e(f"v_lshl_add_u32 v{a}, v{a}, 2, v{b}")
        e(f"v_lshrrev_b32 v{b}, 5, v0"); e(f"v_lshlrev_b32 v{b}, 10, v{b}"); e(f"v_lshl_add_u32 v{b}, v{a}, 7, v{b}")
        e(f"v_and_b32 v{d}, 3, v0"); e(f"v_lshl_add_u32 v{b}, v{d}, 3, v{b}"); e(f"v_lshrrev_b32 v{a}, 1, v{a}")
        for q in range(4):
            e(f"s_add_u32 s{t0}, s{sW}, {q}"); e(f"s_and_b32 s{t0}, s{t0}, 3")
            e(f"v_xor_b32 v{d}, s{t0}, v{a}"); e(f"v_lshl_add_u32 v{d}, v{d}, 5, v{b}")
            for k,sb in enumerate(sBases): e(f"v_add_u32 v{dst[k][q]}, s{sb}, v{d}")
    def setup_io(c,sF0,sN,t):
        t0,t1,t2,t3=t; a,b,d=c.vt; N=c.NTT
        e(f"v_lshrrev_b32 v{a}, 5, v0")
        e(f"s_add_u32 s{t1}, s{sF0}, {N-1}")
        e(f"s_mul_i32 s{t0}, s{sF0}, 13108"); e(f"s_lshr_b32 s{t0}, s{t0}, 16"); e(f"s_mul_i32 s{t2}, s{t1}, 13108"); e(f"s_lshr_b32 s{t2}, s{t2}, 16")
        e(f"s_sub_u32 s{t2}, s{t2}, s{t0}"); e(f"s_lshl_b32 s{t2}, s{t2}, 10"); e(f"s_lshl_b32 s{t0}, s{t0}, 3"); e(f"s_add_u32 s{t0}, s{t0}, s{sW}"); e(f"s_lshl_b32 s{t0}, s{t0}, 7")
        e(f"v_mul_u32_u24 v{b}, s{t2}, v{a}"); e(f"v_add_u32 v{c.vPA}, s{t0}, v{b}")
        e(f"s_lshr_b32 s{t0}, s{sF0}, 3"); e(f"s_lshr_b32 s{t2}, s{t1}, 3"); e(f"s_min_u32 s{t2}, s{t2}, 15")
        e(f"s_sub_u32 s{t2}, s{t2}, s{t0}"); e(f"s_lshl_b32 s{t2}, s{t2}, 9"); e(f"s_lshl_b32 s{t0}, s{t0}, 2"); e(f"s_add_u32 s{t0}, s{t0}, s{sW}"); e(f"s_add_u32 s{t0}, s{t0}, 208"); e(f"s_lshl_b32 s{t0}, s{t0}, 7")
        e(f"v_mul_u32_u24 v{b}, s{t2}, v{a}"); e(f"v_add_u32 v{c.vPO}, s{t0}, v{b}")
        e(f"s_lshl_b32 s{t0}, s{sF0}, 4"); e(f"v_and_b32 v{a}, 15, v0"); e(f"v_add_u32 v{a}, s{t0}, v{a}")
        e(f"s_mul_i32 s{t1}, s{sW}, {SSTR}"); e(f"s_add_u32 s{t1}, s{t1}, {S0}"); e(f"v_lshlrev_b32 v{c.vSA}, 2, v{a}"); e(f"v_add_u32 v{c.vSA}, s{t1}, v{c.vSA}")
        e(f"v_mul_u32_u24 v{a}, 896, v{a}"); e(f"v_lshrrev_b32 v{b}, 4, v0"); e(f"v_lshl_add_u32 v{a}, v{b}, 3, v{a}")
        e(f"s_lshl_b32 s{t1}, s{sN}, 7"); e(f"s_lshl_b32 s{t2}, s{sW}, 5"); e(f"s_add_u32 s{t1}, s{t1}, s{t2}"); e(f"v_add_u32 v{c.vO}, s{t1}, v{a}")
        base,ws,qs=c.red
        e(f"s_mul_i32 s{t0}, s{sW}, {ws}"); e(f"s_add_u32 s{t0}, s{t0}, {base}"); e(f"v_add_u32 v{c.vRW}, s{t0}, v{c.vH}")
        for q in range(1,4):
            e(f"s_sub_u32 s{t0}, s{sW}, {q}"); e(f"s_and_b32 s{t0}, s{t0}, 3"); e(f"s_mul_i32 s{t0}, s{t0}, {ws}"); e(f"s_add_u32 s{t0}, s{t0}, {base+(q-1)*qs}")
            e(f"v_add_u32 v{c.vRR+q-1}, s{t0}, v{c.vH}")
        for j in range(1,N): e(f"s_mov_b32 s{c.sRow+j-1}, {16*j*896}")
    def w2dma(c,b):
        sg,off=c.m0(b)
        o=[[dma(c.vW2,WD if b<14 else WO,"0" if pi==0 else f"s{c.sW2o[pi]}",pi*1024,f"b{b}")] for pi in range(4)]
        o[0].insert(0,I(f"s_add_u32 m0, s{sg}, {off}"))
        if b==13: o[-1].append(I(f"v_mov_b32 v{c.vW2}, v{c.vWo}"))
        elif b<13:
            o[-1]+=[ATOM(f"s_cmp_eq_u32 s{c.sWr2}, {b%7}",f"s_cselect_b32 s{c.sD}, s{c.sNW2}, 114688"),I(f"v_add_u32 v{c.vW2}, s{c.sD}, v{c.vW2}")]
            if b==6: o[-1].append(I(f"v_add_u32 v{c.vW2}, {64*896}, v{c.vW2}"))
        elif b<17: o[-1]+=[ATOM(f"s_cmp_eq_u32 s{c.sWr3}, {b-14}",f"s_cselect_b32 s{c.sD}, s{c.sNWo}, {28*896}"),I(f"v_add_u32 v{c.vW2}, s{c.sD}, v{c.vW2}")]
        return o
    def AW(c,b,q,a=None):
        r=c.aSt+16*(b%8)+4*q
        return ar(r,4) if a is None else ar(r+2*a,2)
    def treads(c,b,rd=None):
        base,off=(rd or c.rd)(b)
        return [I(f"ds_read_b64_tr_b16 {c.AW(b,q,a)}, v{base[q]} offset:{off+a*2048}") for q in range(4) for a in range(2)]
    def HS(c,b,t):
        k=b%c.NSL; na=c.nAS
        return ar(c.aH+(k*c.NTT+t)*4,4) if k<na else vr(c.vHS+((k-na)*c.NTT+t)*4,4)
    def hload(c,b):
        o=[[I(f"buffer_load_dwordx4 {c.HS(b,t)}, v{c.vH if t<4 else c.vH4}, {srd(WS)}, s{c.sHld} offen offset:{(t%4)*1024} sc1",f"h{b}_{t}")] for t in range(c.NTT)]
        if b==13: o[-1].append(I(f"s_mov_b32 s{c.sHld}, s{c.sHO}"))
        elif b<13:
            o[-1]+=[ATOM(f"s_cmp_eq_u32 s{c.sWr2}, {b%7}",f"s_cselect_b32 s{c.sD}, s{c.sNH}, {4*NT*1024}",f"s_add_u32 s{c.sHld}, s{c.sHld}, s{c.sD}")]
            if b==6: o[-1].append(I(f"s_add_u32 s{c.sHld}, s{c.sHld}, {2*NT*1024}"))
        elif b<17: o[-1]+=[ATOM(f"s_cmp_eq_u32 s{c.sWr3}, {b-14}",f"s_cselect_b32 s{c.sD}, s{c.sNHo}, {NT*1024}",f"s_add_u32 s{c.sHld}, s{c.sHld}, s{c.sD}")]
        return o
    def poll(c,tag):
        av,off={"pollA":(c.vPA,0),"pollB":(c.vPA,512),"pollO":(c.vPO,0)}[tag]
        return I(f"buffer_load_dword v{c.vPoll}, v{av}, {srd(WS)}, 0 offen offset:{off} sc1",tag)
    def main(c,WQ,LEAD,PAH,so=0):
        N=c.NTT; GT=18*N
        steps=[(0,1),(2,3),(4,5),(6,),(7,8),(9,10),(11,12),(13,),(14,),(15,16,17)] if OPT['ech'] else [(b,) for b in range(15)]+[(15,16,17)]
        P.append(WAIT(vm=["pollA"])); check_or_spin(c.vPA,0,7,WS,c.vPoll)
        P.extend(stamp(so+11))
        def setoff(st):
            o=[]
            for k,b in enumerate(st):
                o.append(I(f"s_mov_b32 s{44+k}, s{c.sHld}")); o+=c.hload(b)[-1][1:]
            return o
        HL=[]; start={}; units=[]
        for n,st in enumerate(steps):
            for b in st: start[b]=len(HL)
            for t in range(N):
                units.append((len(HL),st,t))
                for k,b in enumerate(st):
                    x=c.hload(b)[t][0]; HL.append([I(x.text.replace(f"s{c.sHld} offen",f"s{44+k} offen"),x.tag)])
            if n+1<len(steps): HL[-1]+=setoff(steps[n+1])
        P.extend(setoff(steps[0]))
        for l in range(LEAD): P.extend(HL[l])
        P.extend(stamp(so+5))
        hn=LEAD
        ustart=[u[0] for u in units]
        at=lambda g: max(x for x in ustart if x<=max(g,0))
        gates={at(start[7]-LEAD):("pollB",c.vPA,512,7,6), at(start[14]-LEAD):("pollO",c.vPO,0,4,7)}
        polls={at(g-PAH):v[0] for g,v in gates.items()}
        RQ={}
        for n,st in enumerate(steps):
            rd=[(x,f"b{b}") for b in st if b>=8 for x in c.treads(b)]
            if not rd: continue
            g1=start[st[0]]; g0=g1-max(N,(len(rd)+1)//2)
            assert all(start[b-8]+N*len([z for z in steps if b-8 in z][0])<=g0 for b in st if b>=8)
            for k,(x,tg) in enumerate(rd): RQ.setdefault(g0+k*(g1-g0-1)//len(rd),[]).append((x,tg))
        base,ws,qs=c.red
        wr=lambda q,t: I(f"ds_write_b128 v{c.vRW}, {vr(c.ACC(q,t),4)} offset:{(q-1)*qs+t*1024}")
        R=lambda q,t: c.vRT+((q-1)*N+t)*4
        rr=lambda t: [I(f"ds_read_b128 {vr(R(q,t),4)}, v{c.vRR+q-1} offset:{t*1024}") for q in range(1,4)]
        NE=N-2 if OPT['tail2'] else 0
        def uw(u):
            g,st,t=units[u]
            tags=[f"h{b}_{t}" for b in st]+[tg for k in range(len(st)) for _,tg in RQ.get(g+k,[])]
            if g in gates: tags.append(gates[g][0])
            return WAIT(vm=tags,lgkm=0 if t==0 else None)
        P.append(uw(0))
        for u,(g,st,t) in enumerate(units):
            L=len(st)
            mf=[mfma(vr(c.ACC(q,t),4),c.AW(b,q),c.HS(b,t),"0" if b==0 else vr(c.ACC(q,t),4)) for q in range(4) for b in st]
            if g in gates:
                tg,av,off,val,si=gates[g]
                check_or_spin(av,off,val,WS,c.vPoll); P.extend(stamp(so+si))
            if t==0 and not so: P.extend(stamp(12+st[0]))
            f=[]
            if g in polls: f.append((2.5,c.poll(polls[g])))
            for k in range(L):
                if hn<GT:
                    it=HL[hn]; hn+=1; f.append((4*k,it[0])); f+=[(4*k+1,x) for x in it[1:]]
                elif g+k+LEAD<GT+N: f.append((4*k,I(f"buffer_load_dword v{c.vS+g+k+LEAD-GT}, v{c.vSA}, {srd(WS)}, 0 offen offset:{(g+k+LEAD-GT)*64} sc1","s")))
                if WQ and WQ[0][0]<=g+k:
                    seen=False
                    for x in WQ.pop(0)[1]:
                        if x.cls=="vm": seen=True; f.append((4*k+2,x))
                        else: f.append((4*k+(3 if seen else 1.5),x))
                f+=[(4*k+0.2+j,x) for j,(x,_) in enumerate(RQ.get(g+k,[]))]
            if st is steps[-1] and t>0: f+=[(4*q-1 if q==1 else 4*q-3,wr(q,t-1)) for q in range(1,4)]
            if NE and u==len(units)-1:
                f=[(k,x) for k,x in enumerate([x for _,x in f if x.cls=="ds"]+flat([rr(tt) for tt in range(NE)]))]+[z for z in f if z[1].cls!="ds"]
            o=pack2(mf,f)
            if NE and u==len(units)-2: o+=[WAIT(lgkm=0),I("s_barrier")]
            if u+1<len(units):
                j=max(i for i,x in enumerate(o) if x.cls=="mfma")
                if any(x.cls in("ds","vm") for x in o[j+1:]): o.append(uw(u+1))
                else: o.insert(j+1,uw(u+1))
            P.extend(o)
        assert not WQ and hn==GT
        for q in range(1,4): P.append(wr(q,N-1))
        P.extend(stamp(so+8))
        def fin(t):
            d=c.ACC(0,t)
            for r in (0,2): e(f"v_pk_add_f32 {vr(R(1,t)+r,2)}, {vr(R(1,t)+r,2)}, {vr(R(2,t)+r,2)}")
            for r in (0,2): e(f"v_pk_add_f32 {vr(d+r,2)}, {vr(d+r,2)}, {vr(R(3,t)+r,2)}")
            for r in (0,2): e(f"v_pk_add_f32 {vr(d+r,2)}, {vr(d+r,2)}, {vr(R(1,t)+r,2)}")
            for r in range(4): e(f"v_mul_f32 v{d+r}, v{c.vS+t}, v{d+r}")
            e(f"v_cvt_pk_bf16_f32 v{d}, v{d}, v{d+1}"); e(f"v_cvt_pk_bf16_f32 v{d+1}, v{d+2}, v{d+3}")
            e(f"buffer_store_dwordx2 {vr(d,2)}, v{c.vO}, {srd(OUT)}, {'0' if t==0 else 's%d'%(c.sRow+t-1)} offen{['',' sc1',' nt'][OPT['outpol']]}","out")
        if NE:
            P.append(WAIT(vm=["s"],lgkm=3))
            for t in range(NE): fin(t)
        P.append(WAIT(vm=["s"],lgkm=0)); e("s_barrier")
        for t in range(NE,N): P.extend(rr(t))
        for t in range(NE,N):
            e(f"s_waitcnt lgkmcnt({3*(N-1-t)})"); fin(t)
        P.extend(stamp(so+9,True))
        e("s_endpgm")

def ffn():
    sSL,sTT,sT2,sN=72,73,74,75
    sSeg1,sSeg2,sXb=76,77,78
    sXo=[None,79,80,81,82]
    sW1o=83
    sHst,sHld,sC=87,88,89
    vX,vW,vXR,vWR,vW2,vH,vH4,vFl,vOne,vPoll,vPA=1,2,(3,4),(5,6),7,8,9,10,11,12,13
    ACC=lambda p,q,t: 16+80*p+(q*5+t)*4
    def XF(i): return vr(176+4*i,4) if i<6 else ar(4*(i-6),4)
    AF=lambda buf,q: 200+16*buf+4*q
    t0,t1,t2_,t3=sT[:4]
    e(f"s_lshr_b32 s{t1}, s{sXCD}, 2"); e(f"s_add_u32 s{sI}, s{t1}, 8")
    e(f"s_and_b32 s{t0}, s{sXCD}, 3"); e(f"s_cmp_eq_u32 s{t0}, 3"); e(f"s_cselect_b32 s{t0}, 10, 9")
    e(f"s_cmp_lt_u32 s{sJ}, s{t0}"); e("s_cbranch_scc1 L_spare")
    e(f"s_sub_u32 s{sI}, s{sJ}, s{t0}")
    e(f"s_mul_i32 s{t0}, s{sXCD}, 23"); e(f"s_add_u32 s{sI}, s{sI}, s{t0}")
    e(f"s_sub_u32 s{sI}, s{sI}, s{t1}")
    e(f"s_mul_i32 s{sT2}, s{sI}, 9363"); e(f"s_lshr_b32 s{sT2}, s{sT2}, 16")
    e(f"s_mul_i32 s{t0}, s{sT2}, 7"); e(f"s_sub_u32 s{sN}, s{sI}, s{t0}")
    e(f"s_sub_u32 s{t0}, s{sI}, 98"); e(f"s_mul_i32 s{t1}, s{t0}, 10923"); e(f"s_lshr_b32 s{t1}, s{t1}, 16")
    e(f"s_mul_i32 s{t2_}, s{t1}, 6"); e(f"s_sub_u32 s{t0}, s{t0}, s{t2_}"); e(f"s_add_u32 s{t0}, s{t0}, 7")
    e(f"s_cmp_lt_u32 s{sI}, 98"); e(f"s_cselect_b32 s{sSL}, s{sT2}, s{t1}"); e(f"s_cselect_b32 s{sTT}, s{sN}, s{t0}")
    e("v_lshrrev_b32 v14, 3, v0")
    e("v_and_b32 v15, 7, v0")
    e(f"s_and_b32 s{t0}, s{sW}, 1"); e(f"s_lshl_b32 s{t1}, s{t0}, 2")
    e("v_lshrrev_b32 v12, 1, v14"); e(f"v_or_b32 v13, s{t1}, v12"); e("v_xor_b32 v13, v13, v15")
    e(f"s_mul_i32 s{t2_}, s{sTT}, 160"); e(f"s_lshl_b32 s{t3}, s{sW}, 3"); e(f"s_add_u32 s{t2_}, s{t2_}, s{t3}")
    e(f"v_add_u32 v{vX}, s{t2_}, v14"); e(f"v_mul_u32_u24 v{vX}, 896, v{vX}"); e(f"v_lshl_add_u32 v{vX}, v13, 4, v{vX}")
    e(f"s_lshl_b32 s{t0}, s{t0}, 2")
    e("v_and_b32 v13, 2, v14"); e(f"v_or_b32 v13, s{t0}, v13"); e("v_xor_b32 v13, v13, v15")
    e(f"v_add_u32 v{vW}, s{t3}, v14"); e(f"v_mul_u32_u24 v{vW}, 3584, v{vW}"); e(f"v_lshl_add_u32 v{vW}, v13, 4, v{vW}")
    e(f"s_lshl_b32 s{t0}, s{sSL}, 8"); e(f"v_add_u32 v{vW}, s{t0}, v{vW}")
    sWr,sD,sNX,sNW,sWr2,sNW2,sNH=90,91,93,99,100,101,3
    e(f"s_lshl_b32 s{t0}, s{sSL}, 1"); e(f"s_add_u32 s{t0}, s{sTT}, s{t0}"); mod7(t0,t0,t1,OPT['rot'])
    e(f"s_sub_u32 s{sWr}, 6, s{t0}"); e(f"s_lshl_b32 s{t1}, s{t0}, 7"); e(f"v_add_u32 v{vX}, s{t1}, v{vX}")
    e(f"s_mul_i32 s{t1}, s{t0}, {64*3584}"); e(f"v_add_u32 v{vW}, s{t1}, v{vW}")
    e(f"s_mov_b32 s{sNX}, -768"); e(f"s_mov_b32 s{sNW}, {-6*64*3584}")
    e(f"s_lshl_b32 s{sSeg2}, s{sW}, 12")
    e(f"s_lshl_b32 s{sXb}, s{sW}, 10"); e(f"s_add_u32 s{sXb}, s{sXb}, 65536")
    for j in range(1,5): e(f"s_mov_b32 s{sXo[j]}, {32*j*896}")
    e(f"s_mov_b32 s{sW1o}, {32*3584-1024}")
    for b,n in ((X,1835008),(WA,1605632),(WU,1605632+2048)):
        e(f"s_mov_b32 s{b+2}, {n}"); e(f"s_mov_b32 s{b+3}, 0x20000")
    e("s_waitcnt lgkmcnt(0)")
    e(f"s_mov_b64 s[{X}:{X+1}], s[40:41]"); e(f"s_mov_b64 s[{WA}:{WA+1}], s[48:49]")
    e(f"s_sub_u32 s{WU}, s50, 2048"); e(f"s_subb_u32 s{WU+1}, s51, 0")
    P.extend(stamp(0))
    def xdma(c):
        o=[]
        for j in range(5):
            o.append([I(f"s_add_u32 m0, s{sXb}, {(c%4)*20480+j*4096}"), dma(vX,X,"0" if j==0 else f"s{sXo[j]}",0,f"x{c}")])
        o[-1]+=[ATOM(f"s_cmp_eq_u32 s{sWr}, {c}",f"s_cselect_b32 s{sD}, s{sNX}, 128"),I(f"v_add_u32 v{vX}, s{sD}, v{vX}")]
        return o
    def wdma(s):
        o=[]
        for j in range(2):
            for m in range(2):
                o.append([dma(vW,WA if m==0 else WU,"0" if j==0 else f"s{sW1o}",(2*m+j)*1024,f"w{s}" if (s or j) else "w0a")])
        o[0].insert(0,I(f"s_add_u32 m0, s{sSeg2}, {(s%4)*16384}"))
        o[-1]+=[ATOM(f"s_cmp_eq_u32 s{sWr}, {s%7}",f"s_cselect_b32 s{sD}, s{sNW}, {64*3584}"),I(f"v_add_u32 v{vW}, s{sD}, v{vW}")]
        if s==6: o[-1].append(I(f"v_add_u32 v{vW}, 128, v{vW}"))
        return o
    NTT=OPT['ntt']; R1=[176,177,178,179]; R2=[180,181,182,183]; sF0=39
    LOC=[((sSeg1,b*4096),13 if b<2 else 17) for b in range(6)]+[((sSeg2,((j+2)%4)*16384),21+2*j) for j in range(4)]
    loc=lambda b: LOC[b%10][0]
    D=Down(NTT=NTT,vt=(196,197,198),vW2=vW2,vWo=248,vH=vH,vH4=vH4,vPoll=vPoll,vPA=vPA,vPO=187,vSA=188,vO=189,vRW=190,vRR=184,vS=192,vRT=96,
           sW2o=[None,84,85,86],sWr2=sWr2,sNW2=sNW2,sNH=sNH,sD=sD,sWr3=38,sNWo=36,sNHo=37,sHld=sHld,sHO=sT[5],sRow=40,
           m0=loc,rd=lambda b:(R1 if loc(b)[0]==sSeg1 else R2,loc(b)[1]),red=(65536,24576,5120),
           ACC=lambda q,t:ACC(0,q,t),AF=AF,aSt=0,aH=128,nAS=128//(4*NTT),NSL=128//(4*NTT)+(4 if NTT==5 else 0),vHS=96)
    pro=flat([xdma(s)+wdma(s) for s in range(OPT['npre'])])
    P.extend(flat(pro[:OPT['early']]))
    mksrd(WS,60,WSN); mksrd(WD,52,1605632); mksrd(WO,44,401408); mksrd(OUT,56,1835008); mksrd(DBG,58,256)
    e("v_lshrrev_b32 v14, 4, v0")
    e("v_and_b32 v15, 15, v0")
    e("v_lshrrev_b32 v12, 1, v15"); e("v_xor_b32 v12, v12, v14"); e("v_lshlrev_b32 v12, 4, v12")
    e("v_lshl_add_u32 v12, v15, 7, v12")
    e(f"s_lshr_b32 s{t0}, s{sW}, 1"); e(f"s_mul_i32 s{t0}, s{t0}, 10240"); e(f"s_add_u32 s{t0}, s{t0}, 65536")
    e(f"v_add_u32 v{vXR[0]}, s{t0}, v12"); e(f"v_xor_b32 v{vXR[1]}, 64, v{vXR[0]}")
    e("v_bfe_u32 v12, v0, 2, 2")
    e("v_lshrrev_b32 v13, 1, v12"); e("v_and_b32 v15, 1, v14"); e("v_lshlrev_b32 v15, 1, v15"); e("v_or_b32 v13, v13, v15")
    e(f"s_and_b32 s{t0}, s{sW}, 1"); e(f"s_lshl_b32 s{t0}, s{t0}, 1"); e(f"v_xor_b32 v13, s{t0}, v13"); e("v_lshlrev_b32 v13, 5, v13")
    e("v_lshl_add_u32 v13, v14, 12, v13"); e("v_lshl_add_u32 v13, v12, 7, v13")
    e("v_and_b32 v15, 3, v0"); e(f"v_lshl_add_u32 v{vWR[0]}, v15, 3, v13"); e(f"v_xor_b32 v{vWR[1]}, 32, v{vWR[0]}")
    e(f"s_mul_i32 s{sF0}, s{sT2}, {NTT}")
    D.setup_w(sF0,sT2,sN,sT[:4])
    e(f"s_lshl_b32 s{t2_}, s{sTT}, 1"); e(f"s_lshr_b32 s{t1}, s{sW}, 1"); e(f"s_add_u32 s{t2_}, s{t2_}, s{t1}")
    e(f"s_lshl_b32 s{t0}, s{sSL}, 2"); e(f"s_and_b32 s{t3}, s{sW}, 1"); e(f"s_add_u32 s{t0}, s{t0}, s{t3}"); e(f"s_mul_i32 s{t0}, s{t0}, {NT}")
    e(f"s_mul_i32 s{t1}, s{t2_}, 5"); e(f"s_add_u32 s{t0}, s{t0}, s{t1}")
    e(f"s_lshl_b32 s{t0}, s{t0}, 10"); e(f"s_add_u32 s{sHst}, s{t0}, {H0}")
    e(f"s_lshl_b32 s{t0}, s{t2_}, 3"); e(f"s_add_u32 s{t0}, s{t0}, s{t3}"); e(f"s_cmp_ge_u32 s{sSL}, 7"); e(f"s_cselect_b32 s{t1}, 2, 0"); e(f"s_add_u32 s{t0}, s{t0}, s{t1}"); e(f"s_lshl_b32 s{t0}, s{t0}, 7")
    e(f"v_mov_b32 v{vFl}, {OOB}"); e(f"v_mov_b32 v12, s{t0}"); e("v_cmp_eq_u32 vcc, 0, v0")
    e(f"v_lshlrev_b32 v{vH}, 4, v0"); e(f"v_add_u32 v{vH4}, 4096, v{vH}")
    e(f"v_cndmask_b32 v{vFl}, v{vFl}, v12, vcc")
    e(f"s_mul_i32 s{sSeg1}, s{sW}, 24576"); e(f"s_add_u32 s{sSeg1}, s{sSeg1}, 65536")
    e(f"s_mov_b32 s{sC}, 0xbfb8aa3b")
    e(f"v_mov_b32 v{vOne}, 1")
    e("v_mov_b32 v15, 0")
    e(f"s_or_b32 s{t0}, s{sI}, s{sW}"); e(f"v_or_b32 v250, s{t0}, v0"); e("v_lshlrev_b32 v250, 8, v250")
    def reads(Pn):
        p,s,h=Pn//14,Pn//2,Pn%2
        CH=(p==1 or OPT['chainA']) and not (OPT['split0'] and s==0)
        o=[]
        for ks in ((0,1) if CH else (h,)):
            if p==0 and (h==0 or not CH):
                if s==3: o.append(I(f"v_add_u32 v{vXR[ks]}, 61440, v{vXR[ks]}"))
                for t in range(5): o.append(I(f"ds_read_b128 {XF((2*s+ks)*5+t)}, v{vXR[ks]} offset:{(s%4 if s!=3 else 0)*20480+t*2048}"))
                if s==3: o.append(I(f"v_subrev_u32 v{vXR[ks]}, 61440, v{vXR[ks]}"))
        tr=[]
        for j in range(4):
            if CH: m,ks,tl=j>>1,j&1,h
            else: m,ks,tl=j>>1,h,j&1
            for a in range(2):
                tr.append(I(f"ds_read_b64_tr_b16 {vr(AF(h,j)+2*a,2)}, v{vWR[tl]} offset:{(s%4)*16384+(2*m+ks)*1024+a*512}"))
        return tr[:4]+o+tr[4:]
    def epi(p,t):
        T=[232+k for k in range(8)]; O=240+4*(t%2)
        G=[ACC(p,k>>2,t)+(k&3) for k in range(8)]; U=[ACC(p,2+(k>>2),t)+(k&3) for k in range(8)]
        o=[]
        st=I(f"buffer_store_dwordx4 {vr(O,4)}, v{vH if t<4 else vH4}, {srd(WS)}, s{sHst} offen offset:{(t%4)*1024} {['sc1','sc0 sc1','sc1 nt','sc0 sc1 nt',''][OPT['stf']]}",f"st{p}")
        if p==1:
            for k in range(0,8,2): o.append(I(f"v_pk_mul_f32 {vr(T[k],2)}, {vr(G[k],2)}, s[48:49]"))
            for k in range(8):
                o.append(I(f"v_exp_f32 v{T[k]}, v{T[k]}"))
                if k%2==0: o.append(I(f"v_pk_mul_f32 {vr(U[k],2)}, {vr(G[k],2)}, {vr(U[k],2)}"))
            for k in range(0,8,2): o.append(I(f"v_pk_add_f32 {vr(T[k],2)}, {vr(T[k],2)}, s[50:51]"))
            for k in range(8):
                o.append(I(f"v_rcp_f32 v{G[k]}, v{T[k]}"))
                if k>=3 and k%2==1:
                    o.append(I(f"v_pk_mul_f32 {vr(U[k-3],2)}, {vr(G[k-3],2)}, {vr(U[k-3],2)}"))
                    if k>=5: o.append(I(f"v_cvt_pk_bf16_f32 v{O+(k-5)//2}, v{U[k-5]}, v{U[k-4]}"))
            o.append(I(f"v_cvt_pk_bf16_f32 v{O+2}, v{U[4]}, v{U[5]}"))
            o.append(I(f"v_pk_mul_f32 {vr(U[6],2)}, {vr(G[6],2)}, {vr(U[6],2)}"))
            o.append(I(f"v_cvt_pk_bf16_f32 v{O+3}, v{U[6]}, v{U[7]}"))
            return o+[st]
        for k in range(8): o.append(I(f"v_mul_f32 v{T[k]}, s{sC}, v{G[k]}"))
        for k in range(8):
            o.append(I(f"v_exp_f32 v{T[k]}, v{T[k]}")); o.append(I(f"v_mul_f32 v{U[k]}, v{G[k]}, v{U[k]}"))
        for k in range(8): o.append(I(f"v_add_f32 v{T[k]}, 1.0, v{T[k]}"))
        for k in range(8):
            o.append(I(f"v_rcp_f32 v{G[k]}, v{T[k]}"))
            if k>=1: o.append(I(f"v_mul_f32 v{U[k-1]}, v{G[k-1]}, v{U[k-1]}"))
            if k>=3 and k%2==1: o.append(I(f"v_cvt_pk_bf16_f32 v{O+(k-3)//2}, v{U[k-3]}, v{U[k-2]}"))
        o.append(I(f"v_mul_f32 v{U[7]}, v{G[7]}, v{U[7]}"))
        o.append(I(f"v_cvt_pk_bf16_f32 v{O+3}, v{U[6]}, v{U[7]}"))
        o.append(I(f"buffer_store_dwordx4 {vr(O,4)}, v{vH if t<4 else vH4}, {srd(WS)}, s{sHst} offen offset:{(t%4)*1024} {['sc1','sc0 sc1','sc1 nt','sc0 sc1 nt',''][OPT['stf']]}",f"st{p}"))
        return o
    D.setup_lane([R1,R2],[sSeg1,sSeg2],sT[:4]); D.setup_io(sF0,sN,sT[:4])
    e(f"s_mov_b32 s48, s{sC}"); e(f"s_mov_b32 s49, s{sC}"); e("s_mov_b32 s50, 1.0"); e("s_mov_b32 s51, 1.0")
    e(f"s_add_u32 s{t0}, s{sSeg2}, 147456"); e(f"v_add_u32 v249, s{t0}, v{vH}")
    for q in range(4): e(f"ds_write_b128 v249, {vr(176+4*q,4)} offset:{q*1024}")
    unpark=[I(f"ds_read_b128 {vr(176+4*q,4)}, v249 offset:{q*1024}") for q in range(4)]
    P.extend(flat(pro[OPT['early']:]))
    P.append(WAIT(vm=["x0","w0a"]+([] if OPT['split0'] else ["w0"]),lgkm=0)); e("s_barrier")
    P.extend(stamp(1))
    P.extend(reads(0))
    first=[]
    if OPT['npre']==1:
        first=xdma(1)+wdma(1); P.extend(flat(first[:OPT['pre1']])); first=first[OPT['pre1']:]
    P.append(WAIT(lgkm=0))
    pool=Pool(flat([epi(0,t) for t in range(5)]))
    dq=[]
    for s in range(max(2,OPT['npre']),14):
        if s<=6: dq.append((max(0,2*(s-4)+1),xdma(s)))
        dq.append((max(0,2*(s-4)+1),wdma(s)))
        if s==8: dq.append((0,[[I(f"buffer_load_dword v14, v15, {srd(DBG)}, 0 offen sc1","clr")]]))
    w2q=[(max(OPT['w2p0'],LOC[b][1]),D.w2dma(b)) for b in range(10)]
    cur=first
    for Pn in range(28):
        p,s,h=Pn//14,Pn//2,Pn%2
        CH=(p==1 or OPT['chainA']) and not (OPT['split0'] and s==0)
        mf=[]
        for jq in range(2 if CH else 4):
            for t in range(5):
                for ks in ((0,1) if CH else (h,)):
                    q = (2*jq+h) if CH else jq
                    j = (2*jq+ks) if CH else jq
                    d=vr(ACC(p,q,t),4)
                    mf.append(mfma(d,vr(AF(h,j),4),XF((2*(s%7)+ks)*5+t),"0" if (s%7==0 and ks==0) else d))
        f=[]
        if Pn<27:
            rd=reads(Pn+1)
            if Pn==0 and OPT['split0']:
                xs=[x for x in rd if "b128" in x.op]; tr=[x for x in rd if "b128" not in x.op]
                f+=spread(xs,0,5)+[(7.9,WAIT(vm=["w0"])),(7.95,I("s_barrier"))]+spread(tr,8,16)
            else: f+=spread(rd,0,min(12,len(rd)))
        items=[]
        while len(items)<(OPT['rateA'] if Pn<OPT['nA'] else OPT['rate']):
            if not cur:
                if dq and dq[0][0]<=Pn: cur=dq.pop(0)[1]
                elif w2q and w2q[0][0]<=Pn: cur=w2q.pop(0)[1]
                else: break
            items.append(cur.pop(0))
        n=len(items)
        for k,it in enumerate(items):
            pos=1+k*(19 if Pn else 14)/max(n,5)
            for x in it:
                f.append((pos-1 if x.cls=="salu" else (pos+1 if x.cls=="valu" else pos),x))
        if Pn==16: f+=spread(unpark,8,12)
        if Pn==OPT['gop']: f.append((19,I(f"buffer_store_dword v{vOne}, v250, {srd(DBG)}, 0 offen offset:4 sc1","go")))
        tl=[]
        if h==0: tl=[WAIT(vm=[f"w{s+1}",f"x{s+1}"],lgkm=0),I("s_barrier")]
        elif Pn<27: tl=[WAIT(lgkm=0)]
        n0=len(P)
        if OPT['p2']:
            P.extend(pack2(mf,f,pool if p==1 else None,(OPT['capc']-2 if Pn<OPT['cp'] and p==1 else 0),lo=(2 if Pn==14 else 0),tail=tl,dsend=16))
        else:
            P.extend(pack(mf,f,pool if p==1 else None,(OPT['capc'] if Pn<OPT['cp'] else OPT['cap']),lo=(2 if Pn==14 else 0))); P.extend(tl)
        if OPT['est']: print("ffn period",Pn,estimate(P[n0:]),"pool",len(pool.q))
        if Pn==13: P.extend(stamp(2))
        if h==0: P.extend(stamp(32+s))
    assert not dq
    print("left: epiA ops",len(pool.q),"w2 items",len(w2q))
    P.extend(stamp(3))
    P.extend(pool.q)
    P.extend(flat(cur))
    for _,g_ in w2q: P.extend(flat(g_))
    e(f"s_add_u32 s{sHst}, s{sHst}, {2*NT*1024}")
    S=[WAIT(vm=["b0"])]+D.treads(0)
    for j in range(8):
        S+=[WAIT(vm=[f"b{j+1}"])]+D.treads(j+1)+[WAIT(lgkm=8)] if j<7 else [WAIT(lgkm=0)]
        if OPT['pA']==5+j: S.append(D.poll("pollA"))
        S+=flat(D.w2dma(10+j))
        if j+1==OPT['nin']: n_in=len(S)
        if j+1==OPT['sBs']+OPT['nin']:
            S+=[WAIT(vm=["st1"]),I(f"buffer_atomic_add v{vOne}, v{vFl}, {srd(WS)}, 0 offen offset:512","sigB")]+stamp(10)
    E=[]
    for t in range(5):
        E+=epi(1,t)+stamp(46+t)
        if t==OPT['sAt']: E.append("sigA")
    k0=0
    for k,x in enumerate(E):
        if x=="sigA":
            P.append(WAIT(vm=["st0","clr"])); check_or_spin(15,0,1,DBG,14)
            e(f"buffer_atomic_add v{vOne}, v{vFl}, {srd(WS)}, 0 offen","sigA")
        else: P.append(x)
        k1=max(k0,n_in*(k+1)//len(E))
        while 0<k1<len(S) and S[k1-1].cls=="ds" and S[k1].cls=="ds": k1+=1
        P.extend(S[k0:k1]); k0=k1
    P.extend(stamp(4))
    P.extend(S[k0:])
    D.main([],OPT['lead'],OPT['pah'])

HROW=[118784,49152,118784,65536,81920,139264,49152,0,118784,65536,16384,32768,98304,81920,139264,49152,0,118784]
hR=[[1,2,4,5],[64,65,66,67],[68,69,70,71]]; hsN,hsF0,hsQ=58,59,57
HD=Down(NTT=3,vt=(240,241,242),vW2=3,vWo=6,vH=231,vH4=231,vPoll=12,vPA=72,vPO=73,vSA=74,vO=75,vRW=76,vRR=77,vS=80,vRT=96,
        sW2o=[None,40,41,42],sWr2=43,sNW2=47,sNH=48,sD=49,sWr3=50,sNWo=51,sNHo=52,sHld=53,sHO=54,sRow=55,
        m0=lambda b:(hsQ,HROW[b]),rd=lambda b:(hR[HROW[b]>>16],HROW[b]&0xffff),red=(0,4096,16384),
        ACC=lambda q,t:16+(q*3+t)*4,AF=lambda buf,q:160+16*buf+4*q,aSt=128,aH=0,nAS=10,NSL=10,vHS=0)
def helper_setup(regs):
    t=sT[:4]; t=[66,67,70,71]
    mksrd(WO,44,401408); mksrd(WD,52,1605632); mksrd(OUT,56,1835008)
    e(f"s_mul_i32 s{hsF0}, s{sXCD}, 3"); e(f"s_add_u32 s{hsF0}, s{hsF0}, 104"); e(f"s_add_u32 s61, s{sXCD}, 26"); e(f"s_lshl_b32 s{hsQ}, s{sW}, 12")
    keep=(HD.vW2,HD.vWo); HD.vW2,HD.vWo=regs[0],regs[1]
    HD.setup_w(hsF0,61,hsN,t)
    e(f"s_cmp_gt_u32 s{hsN}, 6"); e(f"s_cselect_b32 s66, {OOB}, 0"); e(f"v_or_b32 v{regs[0]}, s66, v{regs[0]}"); e(f"v_or_b32 v{regs[1]}, s66, v{regs[1]}")
    HD.vW2,HD.vWo=keep
    HD.setup_lane([regs[2:6]],[hsQ],t)
    e("v_lshlrev_b32 v231, 4, v0")
    HD.setup_io(hsF0,hsN,t)
    for j in range(8): e(f"v_accvgpr_write_b32 a{248+j}, v{72+j}")
hwin=[0]
def hstage(b):
    o=[]; w=HROW[b]>>16
    if w!=hwin[0]: o+=[I(f"v_add_u32 v{r}, {((w-hwin[0])<<16)&0xffffffff}, v{r}") for r in hR[0]]; hwin[0]=w
    return o+HD.treads(b,lambda b_:(hR[0],HROW[b_]&0xffff))

def attn():
    sAT,sHG=72,73
    sXb,sWb=74,75
    sWo={(0,0):76,(0,1):77,(1,0):78,(1,1):79,(2,0):80,(2,1):81}
    sK,sD0,sD1,sO,sC=82,83,84,85,86
    mE,mM0,mM1,mZ=88,90,100,68
    t0,t1=66,67; t2_,t3=70,71
    vX=[1,2,3,4,5]; vW=6; vXR=(7,8); vR0=(9,10); vR1=(11,12); vRq=(13,14); vPad=15
    vA=(224,225)
    TBL=159744; XB=98304
    Q=lambda u,tl: 16+(u*2+tl)*4
    K=lambda t,tl: 80+(t*2+tl)*4
    V=lambda d,t: 152+d*36+t*4
    XA=lambda buf,t: buf*36+4*t
    WF=lambda buf,m,tl: 72+buf*24+(2*m+tl)*4
    e("L_attn:")
    e(f"s_lshr_b32 s{sAT}, s{sXCD}, 2"); e(f"s_lshl_b32 s{sAT}, s{sAT}, 3"); e(f"s_add_u32 s{sAT}, s{sAT}, s{sJ}"); e(f"s_sub_u32 s{sAT}, s{sAT}, 1"); e(f"s_and_b32 s{sHG}, s{sXCD}, 3")
    e("v_lshrrev_b32 v230, 3, v0"); e("v_and_b32 v231, 7, v0")
    e(f"s_and_b32 s{t0}, s{sW}, 1"); e(f"s_lshl_b32 s{t1}, s{t0}, 2")
    e("v_lshrrev_b32 v232, 1, v230"); e(f"v_or_b32 v232, s{t1}, v232"); e("v_xor_b32 v232, v232, v231"); e("v_lshlrev_b32 v232, 4, v232")
    e(f"s_lshl_b32 s{t2_}, s{sAT}, 7"); e(f"s_lshl_b32 s{t3}, s{sW}, 3"); e(f"s_add_u32 s{t2_}, s{t2_}, s{t3}")
    e(f"v_add_u32 v{vX[0]}, s{t2_}, v230"); e(f"v_mul_u32_u24 v{vX[0]}, 896, v{vX[0]}"); e(f"v_add_u32 v{vX[0]}, v{vX[0]}, v232")
    for j in range(1,5): e(f"v_add_u32 v{vX[j]}, {32*j*896}, v{vX[0]}")
    e(f"s_cmp_lt_u32 s{t2_}, 16"); e(f"s_cselect_b32 s{t0}, {OOB}, 0"); e(f"v_or_b32 v{vX[0]}, s{t0}, v{vX[0]}")
    e(f"s_cmp_ge_u32 s{sW}, 2"); e(f"s_cselect_b32 s{t0}, {OOB}, 0"); e(f"v_or_b32 v{vX[4]}, s{t0}, v{vX[4]}")
    e("v_lshrrev_b32 v230, 4, v0"); e("v_and_b32 v231, 15, v0")
    e(f"s_and_b32 s{t0}, s{sW}, 2"); e(f"s_lshl_b32 s{t0}, s{t0}, 1"); e(f"v_or_b32 v232, s{t0}, v230"); e("v_lshlrev_b32 v232, 1, v232"); e("v_xor_b32 v232, v232, v231")
    e(f"s_lshl_b32 s{t0}, s{sW}, 2"); e(f"v_add_u32 v{vW}, s{t0}, v230"); e(f"v_mul_u32_u24 v{vW}, 2688, v{vW}")
    e(f"v_lshl_add_u32 v{vW}, v232, 4, v{vW}"); e(f"s_mul_i32 s{t0}, s{sHG}, 224"); e(f"v_add_u32 v{vW}, s{t0}, v{vW}")
    e(f"v_mov_b32 v233, {OOB}"); e("v_cmp_lt_u32 vcc, 13, v232"); e(f"v_cndmask_b32 v{vW}, v{vW}, v233, vcc")
    sWr,sD,sNW,sKx,sKt=92,93,99,87,3
    e(f"s_lshl_b32 s{t0}, s{sHG}, 1"); e(f"s_add_u32 s{t0}, s{t0}, s{sAT}")
    if OPT['arot']==7:
        e(f"s_mul_i32 s{t1}, s{t0}, 9363"); e(f"s_lshr_b32 s{t1}, s{t1}, 16"); e(f"s_mul_i32 s{t1}, s{t1}, 7"); e(f"s_sub_u32 s{t0}, s{t0}, s{t1}")
    elif OPT['arot']==2: e(f"s_and_b32 s{t0}, s{t0}, 1"); e(f"s_mul_i32 s{t0}, s{t0}, 3")
    elif OPT['arot']==4: e(f"s_and_b32 s{t0}, s{sAT}, 3"); e(f"s_lshl_b32 s{t0}, s{t0}, 1")
    else: e(f"s_mov_b32 s{t0}, 0")
    e(f"s_sub_u32 s{sWr}, 6, s{t0}"); e(f"s_lshl_b32 s{sKx}, s{t0}, 7"); e(f"s_lshl_b32 s{sKt}, s{t0}, 9")
    e(f"s_mul_i32 s{t1}, s{t0}, {64*2688}"); e(f"v_add_u32 v{vW}, s{t1}, v{vW}"); e(f"s_mov_b32 s{sNW}, {-13*32*2688}")
    e(f"s_lshl_b32 s{sXb}, s{sW}, 10"); e(f"s_add_u32 s{sXb}, s{sXb}, {XB}")
    e(f"s_mul_i32 s{sWb}, s{sW}, 6144")
    for (m,j),r in sWo.items():
        imm=((2*m+j)%4)*1024
        e(f"s_mov_b32 s{r}, {4096+m*896+16*j*2688-imm}")
    e(f"s_lshl_b32 s{t0}, s{sW}, 6"); e(f"v_add_u32 v234, s{t0}, v0"); e("v_lshlrev_b32 v235, 2, v234")
    e("s_waitcnt lgkmcnt(0)")
    mksrd(GW,54,896); mksrd(X,40,1835008,14336); mksrd(WA,42,1204224,4096)
    P.extend(stamp(0))
    if OPT['ap1']:
        sV=46
        e(f"s_lshl_b32 s{sV}, s{sAT}, 2"); e(f"s_add_u32 s{sV}, s{sV}, s{sHG}"); e(f"s_lshl_b32 s{sV}, s{sV}, 2"); e(f"s_add_u32 s{sV}, s{sV}, s{sW}")
        e("v_min_u32 v240, 47, v0"); e("v_mul_u32_u24 v241, 21846, v240"); e("v_lshrrev_b32 v241, 16, v241"); e("v_mul_u32_u24 v242, 3, v241"); e("v_sub_u32 v242, v240, v242")
        e(f"s_lshl_b32 s{t0}, s{sV}, 4"); e(f"v_add_u32 v243, s{t0}, v241"); e("v_mul_u32_u24 v243, 896, v243"); e("v_lshl_add_u32 v243, v242, 8, v243"); e("v_add_u32 v243, 128, v243")
        e(f"s_and_b32 s{t0}, s{sV}, 63"); e("v_min_u32 v241, 13, v241"); e("v_lshlrev_b32 v242, 7, v242"); e(f"v_add_u32 v242, s{t0}, v242"); e("v_add_u32 v242, 64, v242")
        e("v_mul_u32_u24 v242, 3584, v242"); e("v_lshl_add_u32 v242, v241, 8, v242")
        e(f"s_cmp_ge_u32 s{sV}, 192"); e(f"s_cselect_b32 s{WU}, s50, s48"); e(f"s_cselect_b32 s{WU+1}, s51, s49")
        e(f"s_cmp_lt_u32 s{sV}, 128"); e(f"s_cselect_b32 s{WU}, s40, s{WU}"); e(f"s_cselect_b32 s{WU+1}, s41, s{WU+1}"); e(f"s_cselect_b64 vcc, -1, 0")
        e(f"s_mov_b32 s{WU+2}, 1605632"); e(f"s_cselect_b32 s{WU+2}, 1835008, s{WU+2}"); e(f"s_mov_b32 s{WU+3}, 0x20000")
        e("v_cndmask_b32 v242, v242, v243, vcc")
        e(f"buffer_load_dword a140, v242, {srd(WU)}, 0 offen","pf")
    e(f"buffer_load_dword v236, v235, {srd(GW)}, 0 offen","gw")
    def xdma(c):
        o=[I(f"s_mov_b32 s{sK}, s{sKx}"),I(f"s_add_u32 s{sKx}, s{sKx}, 128"),ATOM(f"s_cmp_eq_u32 s{sWr}, {c}",f"s_cselect_b32 s{sKx}, 0, s{sKx}")]
        for j in range(5):
            o.append(I(f"s_add_u32 m0, s{sXb}, {(c%3)*20480+j*4096}"))
            o.append(dma(vX[j],X,f"s{sK}",0,f"x{c}"))
        return o
    def wdma(k):
        o=[]
        for m in range(3):
            if m!=1: o.append(I(f"s_add_u32 m0, s{sWb}, {(k%4)*24576+(4096 if m==2 else 0)}"))
            for j in range(2): o.append(dma(vW,WA,f"s{sWo[(m,j)]}",((2*m+j)%4)*1024,f"w{k}"))
        if k%2==1:
            o[-1:-1]=[ATOM(f"s_cmp_eq_u32 s{sWr}, {k//2}",f"s_cselect_b32 s{sD}, s{sNW}, {32*2688}")]
            o.append(I(f"v_add_u32 v{vW}, s{sD}, v{vW}"))
        else: o.append(I(f"v_add_u32 v{vW}, {32*2688}, v{vW}"))
        return o
    pro=xdma(0)+wdma(0)+wdma(1)
    cutp=[k for k,x in enumerate(pro) if x.cls=="vm"][OPT['aearly']-1]+1 if OPT['aearly'] else 0
    P.extend(pro[:cutp])
    aq=[(0,xdma(1)),(0,wdma(2)),(0,wdma(3)),(0,xdma(2))]
    for k in range(4,14):
        aq.append((k-4+(1 if k-4<OPT['amid'] else 0),wdma(k)))
        if k%2==1 and (k+1)//2<=6: aq.append((2*((k+1)//2-3)+1+(1 if 2*((k+1)//2-3)+1<OPT['amid'] else 0),xdma((k+1)//2)))
    acur=[]
    mksrd(WS,60,WSN); mksrd(DBG,58,256)
    HELP=OPT['ntt']==4
    APW=[94,95,96,97] if not (OPT['stamp'] or OPT['probe']!=-2) else [12,13,14,15]
    if OPT['apW']>=0:
        if APW[0]==12: APW=[4+60+0,0,0,0]
    APW=[48,49,50,51]
    if HELP: e(f"s_and_b32 s{t0}, s{sXCD}, 3"); e(f"s_cmp_eq_u32 s{t0}, 3"); e(f"s_cselect_b32 s{t0}, 1, 0"); e(f"s_add_u32 s{hsN}, s{sJ}, s{t0}")
    if HELP:
        helper_setup([232,233,234+9,245,246,247])
        for j,r in enumerate([232,243,245,246,247,233]): e(f"v_accvgpr_write_b32 a{122+j}, v{r}")
    else: mksrd(WO,44,401408); mksrd(WD,52,1605632)
    e(f"s_sub_u32 s{t0}, s{sJ}, 1"); e(f"s_lshl_b32 s{t0}, s{t0}, 2"); e(f"s_add_u32 s{t0}, s{t0}, s{sW}"); e(f"s_lshl_b32 s{t0}, s{t0}, 6")
    e(f"v_add_u32 v227, s{t0}, v0"); e("v_lshlrev_b32 v226, 7, v227"); e(f"s_mov_b32 s36, {2048*128}")
    if OPT['apW']>=0:
        e(f"s_lshl_b32 s{t0}, s{sAT}, 2"); e(f"s_add_u32 s{t0}, s{t0}, s{sHG}"); e(f"s_lshl_b32 s{t0}, s{t0}, 2"); e(f"s_add_u32 s{t0}, s{t0}, s{sW}")
        e(f"s_cmp_ge_u32 s{t0}, 128"); e(f"s_cselect_b32 s{WU}, s{APW[2]}, s{APW[0]}"); e(f"s_cselect_b32 s{WU+1}, s{APW[3]}, s{APW[1]}"); e(f"s_mov_b32 s{WU+2}, 1605632"); e(f"s_mov_b32 s{WU+3}, 0x20000")
        e(f"s_and_b32 s{t0}, s{t0}, 127"); e(f"s_mul_i32 s{t0}, s{t0}, 49"); e("v_min_u32 v238, 48, v0"); e(f"v_add_u32 v238, s{t0}, v238"); e("v_lshlrev_b32 v238, 8, v238"); e("v_add_u32 v238, 128, v238")
        e("v_accvgpr_write_b32 a129, v238")
    if OPT['apA']>=0 or OPT['apB']>=0:
        e("v_mul_u32_u24 v228, 9363, v227"); e("v_lshrrev_b32 v228, 22, v228"); e("v_mul_u32_u24 v228, 448, v228"); e("v_add_u32 v228, v228, v227"); e("v_lshlrev_b32 v228, 7, v228")
        e("v_cmp_lt_u32 vcc, 1791, v227"); e(f"v_mov_b32 v229, {OOB}"); e("v_cndmask_b32 v227, v228, v229, vcc"); e(f"v_add_u32 v239, {448*128}, v227"); e("v_accvgpr_write_b32 a128, v239")
        for j in range(1,4): e(f"s_mov_b32 s{36+j}, {3584*128*j}")
    e("v_lshrrev_b32 v230, 4, v0"); e("v_and_b32 v231, 15, v0")
    e("v_lshrrev_b32 v232, 1, v231"); e("v_xor_b32 v232, v232, v230"); e("v_lshlrev_b32 v232, 4, v232")
    e("v_lshl_add_u32 v232, v231, 7, v232"); e(f"v_add_u32 v{vXR[0]}, {XB}, v232"); e(f"v_xor_b32 v{vXR[1]}, 64, v{vXR[0]}")
    e("v_bfe_u32 v232, v0, 2, 2"); e("v_and_b32 v233, 3, v0")
    e("v_and_b32 v237, 1, v230"); e("v_lshl_add_u32 v238, v237, 2, v232"); e("v_lshlrev_b32 v238, 2, v238")
    e("v_mul_u32_u24 v237, 12288, v237"); e("v_lshrrev_b32 v239, 1, v230"); e("v_lshl_add_u32 v237, v239, 10, v237"); e("v_lshl_add_u32 v237, v232, 8, v237")
    e(f"s_mul_i32 s{t0}, s{sW}, 7")
    e(f"v_add_u32 v239, s{t0}, v233")
    e("v_xor_b32 v240, v239, v238"); e(f"v_lshl_add_u32 v{vR0[0]}, v240, 3, v237")
    e("v_add_u32 v239, 4, v239")
    e("v_and_b32 v240, 3, v239"); e("v_or_b32 v240, 28, v240"); e("v_cmp_eq_u32 vcc, 3, v233"); e("v_cndmask_b32 v239, v239, v240, vcc")
    e("v_xor_b32 v240, v239, v238"); e(f"v_lshl_add_u32 v{vR1[0]}, v240, 3, v237")
    e(f"v_cndmask_b32 v{vPad}, 0, 1, vcc")
    e(f"v_add_u32 v{vR0[1]}, 49152, v{vR0[0]}"); e(f"v_add_u32 v{vR1[1]}, 49152, v{vR1[0]}")
    e("v_lshl_add_u32 v240, v230, 3, v232"); e("v_lshlrev_b32 v240, 3, v240"); e(f"v_add_u32 v240, {TBL}, v240")
    e(f"v_cndmask_b32 v{vRq[0]}, v{vR1[0]}, v240, vcc"); e(f"v_cndmask_b32 v{vRq[1]}, v{vR1[1]}, v240, vcc")
    P.append(WAIT(vm=["gw"]))
    e("v_and_b32 v244, 0xffff, v236"); e("v_mov_b32 v245, 0"); e("v_lshrrev_b32 v246, 16, v236"); e("v_mov_b32 v247, 0")
    e("v_lshlrev_b32 v234, 4, v234"); e(f"v_add_u32 v234, {TBL}, v234")
    e("ds_write_b128 v234, v[244:247]")
    def reads(k):
        sl=k%4; h=sl//2; buf=k%2
        pre=[]; tr=[]
        for a in range(2):
            imm=(sl%2)*24576+a*6144
            pre.append(I(f"s_add_u32 s{(sD0,sD1)[a]}, s{sKt}, {(256*(k%2)+32*a-imm)&0xffffffff}"))
            pre.append(I(f"v_mad_i32_i24 v{vA[a]}, v{vPad}, s{(sD0,sD1)[a]}, v{vRq[h]}"))
        for m in range(3):
            for tl in range(2):
                for a in range(2):
                    ad = vR0[h] if tl==0 else (vA[a] if m==0 else vR1[h])
                    tr.append(I(f"ds_read_b64_tr_b16 {ar(WF(buf,m,tl)+2*a,2)}, v{ad} offset:{(sl%2)*24576+a*6144+m*2048}"))
        xs=[I(f"ds_read_b128 {ar(XA(buf,t),4)}, v{vXR[k%2]} offset:{((k//2)%3)*20480+t*2048}") for t in range(9)]
        if k%2==1: pre+=[I(f"s_add_u32 s{sKt}, s{sKt}, 512"),ATOM(f"s_cmp_eq_u32 s{sWr}, {k//2}",f"s_cselect_b32 s{sKt}, 0, s{sKt}")]
        return pre+tr[:2]+xs+tr[2:]
    P.extend(pro[cutp:])
    P.append(WAIT(vm=["x0","w0"],lgkm=0)); e("s_barrier")
    P.extend(stamp(1))
    P.extend(reads(0))
    if OPT['amid']: P.append(WAIT(lgkm=0))
    else: P.append(WAIT(vm=["w1"],lgkm=0)); e("s_barrier")
    cA0,cB0,cA1,cB1,vNeg,vH,vH4,vSt,vFl=226,227,228,229,230,231,250,251,252
    import struct
    f2u=lambda x: struct.unpack("<I",struct.pack("<f",x))[0]
    n0=len(P)
    e("v_lshrrev_b32 v232, 4, v0"); e("v_and_b32 v233, 15, v0")
    e("v_and_b32 v234, 1, v233"); e(f"v_cmp_eq_u32 s[{mE}:{mE+1}], 0, v234")
    e("v_lshl_add_u32 v235, v232, 2, v234"); e(f"v_cmp_le_u32 s[{mM0}:{mM0+1}], v235, v233")
    e("v_add_u32 v235, 2, v235"); e(f"v_cmp_le_u32 s[{mM1}:{mM1+1}], v235, v233")
    e("v_mov_b32 v236, 0xffff0000"); e("v_mov_b32 v237, 0xffff"); e(f"v_lshlrev_b32 v{vH}, 4, v0"); e(f"v_add_u32 v{vH4}, 4096, v{vH}")
    e(f"v_cndmask_b32 v236, v236, v237, s[{mE}:{mE+1}]")
    e(f"v_cndmask_b32 v{cA0}, 0, v236, s[{mM0}:{mM0+1}]"); e(f"v_xor_b32 v{cB0}, v{cA0}, v236")
    e(f"v_cndmask_b32 v{cA1}, 0, v236, s[{mM1}:{mM1+1}]"); e(f"v_xor_b32 v{cB1}, v{cA1}, v236")
    e(f"v_mov_b32 v{vNeg}, 0xf149f2ca")
    P.append(ATOM(f"s_cmp_eq_u32 s{sAT}, 0",f"s_cselect_b64 s[{mZ}:{mZ+1}], -1, 0"))
    e(f"s_mov_b32 s{sC}, {f2u(28**-0.5*math.log2(math.e)):#x}"); e(f"s_mov_b32 s{sK}, 0x3fb8aa3b")
    e(f"s_lshl_b32 s{t0}, s{sHG}, 2"); e(f"s_add_u32 s{t0}, s{t0}, s{sW}"); e(f"s_add_u32 s{t0}, s{t0}, 56"); e(f"s_mul_i32 s{t0}, s{t0}, {NT}")
    e(f"s_lshl_b32 s{t1}, s{sAT}, 3"); e(f"s_add_u32 s{t0}, s{t0}, s{t1}"); e(f"s_lshl_b32 s{t0}, s{t0}, 10"); e(f"s_add_u32 s{sO}, s{t0}, {H0}")
    e(f"s_mul_i32 s{t0}, s{sHG}, {SSTR}"); e(f"s_lshl_b32 s{t1}, s{sAT}, 9"); e(f"s_add_u32 s{t0}, s{t0}, s{t1}"); e(f"s_add_u32 s{t0}, s{t0}, {S0}")
    P.append(ATOM(f"s_cmp_eq_u32 s{sW}, 0",f"s_cselect_b32 s{t0}, s{t0}, {OOB}"))
    e(f"v_lshlrev_b32 v{vSt}, 2, v0"); e(f"v_add_u32 v{vSt}, s{t0}, v{vSt}")
    e(f"s_lshl_b32 s{t0}, s{sAT}, 2"); e(f"s_add_u32 s{t0}, s{t0}, s{sHG}"); e(f"s_add_u32 s{t0}, s{t0}, 208"); e(f"s_lshl_b32 s{t0}, s{t0}, 7")
    e("v_min_u32 v238, 1, v0"); e("v_lshlrev_b32 v238, 31, v238"); e(f"v_or_b32 v{vFl}, s{t0}, v238")
    apool=Pool(P[n0:]); del P[n0:]
    U=range(8)
    A=lambda u: 232+u; B=lambda u: 240+u; M=lambda u: 170+u; T=lambda u: 178+u; L=lambda u: 206+u
    SP=lambda u: K(u,1); SO=lambda u: Q(u,1); PQ=lambda u: Q(u,0)
    ZC=(224,225)
    def pk(d,a): return I(f"v_cvt_pk_bf16_f32 v{d}, v{a}, v{a+1}")
    def pack4(d,a,b): return [pk(d,a),pk(d+1,a+2),pk(d+2,b),pk(d+3,b+2)]
    def seq(groups,cap=2):
        f=[]; g=0; room=cap
        for mg,ins in groups:
            for x in ins:
                if g<mg: g=mg; room=cap
                if cost(x)>room: g+=1; room=cap
                f.append((g,x)); room-=cost(x)
        return f
    for k in range(14):
        buf=k%2; mf=[]
        c=lambda d: "0" if k==0 else d
        two=lambda n: [(x,tl) for x in range(n) for tl in range(2)] if k==13 else [(x,tl) for tl in range(2) for x in range(n)]
        for u,tl in two(8): d=vr(Q(u,tl),4); mf.append(mfma(d,ar(WF(buf,0,tl),4),ar(XA(buf,u+1),4),c(d)))
        for t,tl in two(9): d=vr(K(t,tl),4); mf.append(mfma(d,ar(WF(buf,1,tl),4),ar(XA(buf,t),4),c(d)))
        for tl in range(2):
            for t in range(9): d=vr(V(tl,t),4); mf.append(mfma(d,ar(XA(buf,t),4),ar(WF(buf,2,tl),4),c(d)))
        f=[]
        if k<OPT['amid']:
            f+=[(25.9,WAIT(vm=[f"w{k+1}",f"x{(k+1)//2}"])),(25.95,I("s_barrier"))]+spread(reads(k+1),26,47)
        elif k<13: f+=spread(reads(k+1),0,36)
        dm=[]; nd=0
        while nd<OPT['arate']:
            if not acur:
                if aq and aq[0][0]<=k: acur=list(aq.pop(0)[1])
                else: break
            x=acur.pop(0); dm.append(x); nd+=(x.cls=="vm")
            while acur and acur[0].cls=="valu": dm.append(acur.pop(0))
        if k==8:
            dm.append(I("v_mov_b32 v249, 0")); dm.append(I(f"buffer_load_dword v248, v249, {srd(DBG)}, 0 offen sc1","clr"))
        if OPT['apf'] and OPT['apfk']<=k<OPT['apfk']+3:
            kk=k-OPT['apfk']
            if kk==0: dm+=[I(f"buffer_load_dword a{120+j}, v226, {srd(WO)}, {['0','s36'][j]} offen","pf") for j in range(2)]
        if k==OPT['apW']: dm+=[I("v_accvgpr_read_b32 v238, a129"),I(f"buffer_load_dword a138, v238, {srd(WU)}, 0 offen","pf")]
        for base,k0,av in ((130,OPT['apA'],227),(134,OPT['apB'],239)):
            if k0>=0 and k0<=k<k0+2:
                if av==239 and k==k0: dm.append(I("v_accvgpr_read_b32 v239, a128"))
                dm+=[I(f"buffer_load_dword a{base+2*(k-k0)+j}, v{av}, {srd(WD)}, {['0','s37','s38','s39'][2*(k-k0)+j]} offen","pf") for j in range(2)]
        if HELP:
            if k==8:
                assert all(x.tag[0]!="x" for x in dm+acur+flat([g_ for _,g_ in aq]) if x.cls=="vm")
                f+=spread([I(f"v_accvgpr_read_b32 v{r}, a{122+j}") for j,r in enumerate([HD.vW2]+hR[0])],44,51)
            for b in {9:[0],10:[1],11:[2,3,4],12:[5,6,7],13:list(range(8,8+OPT['hp13']))}.get(k,[]):
                assert not acur
                dm+=flat(HD.w2dma(b))
            sb={10:[0],11:[1],12:[2,3]}.get(k,[])
            if sb: f+=spread([WAIT(vm=[f"b{sb[-1]}"])]+flat([hstage(b) for b in sb]),36.5,50)
        pos=0; nd=0
        for x in dm:
            if x.cls=="vm": nd+=1
            pos=max(pos+0.001,4.3*nd-(2 if x.cls=="vm" else (1 if x.cls=="valu" else -1))); f.append((pos,x))
        if k==13:
            assert not apool.q and not aq and not acur
            for u in U:
                mf.append(mfma(vr(SP(u),4),vr(K(u,0),4),vr(Q(u,0),4),"0")); mf.append(mfma(vr(SO(u),4),vr(K(u+1,0),4),vr(Q(u,0),4),"0"))
            G=[(2*u+5,pack4(Q(u,0),Q(u,0),Q(u,1))) for u in U]
            zc=[]
            for h in range(2):
                q=[Q(4*h+x,1) for x in range(4)]
                zc.append([I(f"v_permlane16_swap_b32 v{q[2]}, v{q[3]}"),I(f"v_permlane16_swap_b32 v{q[0]}, v{q[1]}"),I(f"v_permlane32_swap_b32 v{q[1]}, v{q[3]}"),
                           I(f"v_mul_f32 v{ZC[h]}, s{sK}, v{q[3]}"),I(f"v_min_f32 v{ZC[h]}, 0x42c80000, v{ZC[h]}"),I(f"v_exp_f32 v{ZC[h]}, v{ZC[h]}"),I(f"v_add_f32 v{7+h}, 1.0, v{ZC[h]}")])
            zi=[x for pr in zip(*zc) for x in pr]
            for t in range(9):
                G.append((16+2*t+5,pack4(K(t,0),K(t,0),K(t,1))))
                if t in (1,3,5): G.append((0,zi[:2] if t==1 else (zi[2:4] if t==3 else zi[4:6])))
            G.append((0,zi[6:8]))
            for d in range(2):
                for t in range(9):
                    G.append((34+9*d+t+4,[pk(V(d,0)+2*t,V(d,t)),pk(V(d,0)+2*t+1,V(d,t)+2)]))
                    if d==0 and t in (2,4,6): G.append((0,zi[8+(t-2):10+(t-2)]))
            f+=seq(G)
        tl=[]
        if k<13: tl=[WAIT(lgkm=0)] if k+1<OPT['amid'] else [WAIT(vm=[f"w{k+2}",f"x{(k+2)//2}"],lgkm=0),I("s_barrier")]
        n0=len(P)
        if OPT['p2']: P.extend(pack2(mf,f,apool if 11<=k<13 else None,tail=tl,dsend=48))
        else: P.extend(pack(mf,f,apool if 11<=k<13 else None)); P.extend(tl)
        if OPT['est']: print("attn period",k,estimate(P[n0:]))
        if k<13: P.extend(stamp(32+k))
    P.extend(stamp(2))
    sE=f"s[{mE}:{mE+1}]"
    n_in0=len(P)
    for u in U:
        e(f"v_cndmask_b32 v{M(u)}, v{SP(u)+1}, v{SP(u)}, {sE}"); e(f"v_cndmask_b32 v{T(u)}, v{SP(u)+3}, v{SP(u)+2}, {sE}")
        e(f"v_cndmask_b32 v{A(u)}, v{SO(u)+1}, v{SO(u)}, {sE}"); e(f"v_cndmask_b32 v{B(u)}, v{SO(u)+3}, v{SO(u)+2}, {sE}")
        if u==0:
            e(f"v_cndmask_b32 v{M(0)}, v{M(0)}, v{vNeg}, s[{mZ}:{mZ+1}]"); e(f"v_cndmask_b32 v{T(0)}, v{T(0)}, v{vNeg}, s[{mZ}:{mZ+1}]")
        e(f"v_cndmask_b32 v{A(u)}, v{M(u)}, v{A(u)}, s[{mM0}:{mM0+1}]"); e(f"v_cndmask_b32 v{B(u)}, v{T(u)}, v{B(u)}, s[{mM1}:{mM1+1}]")
        e(f"v_max_f32 v{M(u)}, v{A(u)}, v{B(u)}")
    def allred(R,op,mid):
        H=(0,4)
        for h in H: e(f"v_permlane32_swap_b32 v{R(h)}, v{R(h+2)}"); e(f"v_permlane32_swap_b32 v{R(h+1)}, v{R(h+3)}")
        for h in H: e(f"{op} v{R(h)}, v{R(h)}, v{R(h+2)}"); e(f"{op} v{R(h+1)}, v{R(h+1)}, v{R(h+3)}")
        for h in H: e(f"v_permlane16_swap_b32 v{R(h)}, v{R(h+1)}")
        for h in H: e(f"{op} v{R(h)}, v{R(h)}, v{R(h+1)}")
        mid(H)
        for h in H: e(f"v_mov_b32 v{R(h+1)}, v{R(h)}")
        for h in H: e(f"v_permlane16_swap_b32 v{R(h)}, v{R(h+1)}")
        for h in H: e(f"v_mov_b32 v{R(h+2)}, v{R(h)}"); e(f"v_mov_b32 v{R(h+3)}, v{R(h+1)}")
        for h in H: e(f"v_permlane32_swap_b32 v{R(h)}, v{R(h+2)}"); e(f"v_permlane32_swap_b32 v{R(h+1)}, v{R(h+3)}")
    def midM(H):
        for h in H: e(f"v_mul_f32 v{M(h)}, s{sC}, v{M(h)}")
    allred(M,"v_max_f32",midM)
    for u in U:
        e(f"v_fma_f32 v{A(u)}, v{A(u)}, s{sC}, -v{M(u)}"); e(f"v_fma_f32 v{B(u)}, v{B(u)}, s{sC}, -v{M(u)}")
    for u in U:
        e(f"v_exp_f32 v{A(u)}, v{A(u)}"); e(f"v_exp_f32 v{B(u)}, v{B(u)}")
        if u: e(f"v_add_f32 v{L(u-1)}, v{A(u-1)}, v{B(u-1)}")
    e(f"v_add_f32 v{L(7)}, v{A(7)}, v{B(7)}")
    def midL(H):
        for h in H: e(f"v_rcp_f32 v{L(h)}, v{L(h)}")
        for h in H: e(f"v_rcp_f32 v{T(h)}, v{7+h//4}")
        for h in H: e(f"v_mul_f32 v{L(h)}, v{L(h)}, v{ZC[h//4]}")
        e(f"buffer_store_dword v{T(0)}, v{vSt}, {srd(WS)}, 0 offen sc1","st"); e(f"buffer_store_dword v{T(4)}, v{vSt}, {srd(WS)}, 0 offen offset:256 sc1","st")
    allred(L,"v_add_f32",midL)
    if HELP and OPT['hin']:
        assert OPT['hp13']==5
        body=P[n_in0:]; del P[n_in0:]
        S2=[I(f"v_accvgpr_read_b32 v{HD.vWo}, a127")]+[I(f"v_accvgpr_read_b32 v{r}, a{248+j}") for j,r in enumerate((9,10,11,12,14,15,186,187))]
        S2+=[WAIT(vm=["b7"])]+flat([hstage(b) for b in range(4,8)])+[WAIT(lgkm=0)]
        nr=len(S2); S2+=flat([flat(HD.w2dma(b)) for b in range(13,13+OPT['hin'])])
        k0=0; n1=len(body)//3
        for k,x in enumerate(body):
            P.append(x)
            k1=max(k0,nr*(k+1)//n1 if k<n1 else nr+(len(S2)-nr)*(k+1-n1)//(len(body)-n1))
            while 0<k1<len(S2) and (S2[k1].cls=="ds" or (S2[k1-1].cls=="valu" and k1<nr-1)): k1+=1
            P.extend(S2[k0:k1]); k0=k1
    def pre(u):
        return [I(f"v_mul_f32 v{A(u)}, v{A(u)}, v{L(u)}"),I(f"v_mul_f32 v{B(u)}, v{B(u)}, v{L(u)}"),
                I(f"v_cvt_pk_bf16_f32 v{A(u)}, v{A(u)}, v{A(u)}"),I(f"v_cvt_pk_bf16_f32 v{B(u)}, v{B(u)}, v{B(u)}"),
                I(f"v_and_b32 v{PQ(u)}, v{cB0}, v{A(u)}"),I(f"v_and_b32 v{PQ(u)+1}, v{cB1}, v{B(u)}"),
                I(f"v_and_b32 v{PQ(u)+2}, v{cA0}, v{A(u)}"),I(f"v_and_b32 v{PQ(u)+3}, v{cA1}, v{B(u)}")]
    def post(u):
        return pack4(PQ(u),SP(u),SO(u))+[I(f"buffer_store_dwordx4 {vr(PQ(u),4)}, v{vH if u<4 else vH4}, {srd(WS)}, s{sO} offen offset:{(u%4)*1024} sc1","st")]
    P.extend(pre(0))
    for u in range(10):
        if u+1<8: a_=pre(u+1)
        else: a_=[]
        P.extend(a_[:2])
        if u<8: P.append(mfma(vr(SP(u),4),vr(V(0,0)+2*u,4),vr(PQ(u),4),"0"))
        P.extend(a_[2:4])
        if u<8: P.append(mfma(vr(SO(u),4),vr(V(1,0)+2*u,4),vr(PQ(u),4),"0"))
        P.extend(a_[4:])
        if u>=2: P.extend(post(u-2))
        elif u==0: e("v_mov_b32 v13, 1")
    P.extend(stamp(3))
    nb=8+OPT['hp13']
    P.append(WAIT(vm=["clr"])); check_or_spin(249,0,1,DBG,248)
    if HELP:
        if OPT['hin']:
            for j,r in enumerate((9,10,11,12,14,15,186,187)): e(f"v_mov_b32 v{72+j}, v{r}")
            e("L_help:")
            P.append(HD.poll("pollA")); nb+=OPT['hin']
        else:
            e("L_help:")
            e(f"v_accvgpr_read_b32 v{HD.vWo}, a127")
            for j in range(8): e(f"v_accvgpr_read_b32 v{72+j}, a{248+j}")
            P.append(HD.poll("pollA"))
            P.append(WAIT(vm=["b7"])); P.extend(flat([hstage(b) for b in range(4,8)]))
        for b in range(nb,nb+OPT['hwin']): P.extend(flat(HD.w2dma(b)))
        nb+=OPT['hwin']
        if hwin[0]: P.extend([I(f"v_add_u32 v{r}, {(-hwin[0]<<16)&0xffffffff}, v{r}") for r in hR[0]])
        for w in (1,2):
            for q in range(4): e(f"v_add_u32 v{hR[w][q]}, {w<<16}, v{hR[0][q]}")
    P.append(WAIT(vm=["st"],lgkm=0))
    e(f"buffer_atomic_add v13, v{vFl}, {srd(WS)}, 0 offen","sig")
    if HELP:
        P.extend(stamp(4))
        e(f"s_cmp_gt_u32 s{hsN}, 6"); e("s_cbranch_scc1 L_hexit")
        HD.main([(0 if b<17 else 24,it) for b in range(nb,18) for it in HD.w2dma(b)],OPT['hlead'],OPT['hpah'],so=50)
        e("L_hexit:")
    P.extend(stamp(4,True))
    if not HELP and (OPT['l2o'] or OPT['l2b']):
        sA,sB,sWv=40,41,42
        e(f"s_mul_i32 s{t0}, s{sXCD}, 23"); e(f"s_lshr_b32 s{t1}, s{sXCD}, 2"); e(f"s_sub_u32 s{t0}, s{t0}, s{t1}"); e(f"s_add_u32 s{t1}, s{t0}, 22")
        for r,d in ((t0,sA),(t1,sB)): e(f"s_mul_i32 s{r}, s{r}, 9363"); e(f"s_lshr_b32 s{d}, s{r}, 16")
        e(f"s_min_u32 s{sB}, s{sB}, 25")
        e(f"s_sub_u32 s{sWv}, s{sJ}, 1"); e(f"s_lshl_b32 s{sWv}, s{sWv}, 2"); e(f"s_add_u32 s{sWv}, s{sWv}, s{sW}")
        e(f"s_sub_u32 s43, s{sB}, s{sA}"); e("s_add_u32 s43, s43, 1"); e("s_mul_i32 s43, s43, 40"); e("s_sub_u32 s43, s43, 1")
        e(f"s_mul_i32 s44, s{sA}, 5")
        def touch(sKap,first,n,step):
            e(f"s_mul_i32 s{t0}, s{sKap}, {NT}"); e(f"s_add_u32 s{t0}, s{t0}, s44"); e(f"s_lshl_b32 s{t0}, s{t0}, 10"); e(f"s_add_u32 s{t0}, s{t0}, {H0}")
            for k in range(n):
                e(f"v_add_u32 v20, {first}, v0") if isinstance(first,str) and k==0 else e(f"v_add_u32 v20, {step if k else first}, v{20 if k else 0}")
                e("v_min_u32 v21, s43, v20"); e("v_lshlrev_b32 v21, 7, v21"); e(f"buffer_load_dword v{24+k}, v21, {srd(WS)}, s{t0} offen sc1","pf")
        if OPT['l2b']:
            LB=lab("NB")
            e(f"s_cmp_ge_u32 s{sWv}, 28"); e(f"s_cbranch_scc1 {LB}")
            e(f"s_lshr_b32 s45, s{sWv}, 1"); e(f"s_and_b32 s46, s{sWv}, 1"); e("s_cmp_ge_u32 s45, 7"); e("s_cselect_b32 s47, 2, 0"); e("s_add_u32 s47, s47, s46")
            e(f"v_min_u32 v22, 4, v0"); e(f"v_add_u32 v22, s{sA}, v22"); e(f"v_min_u32 v22, s{sB}, v22"); e("v_lshlrev_b32 v22, 3, v22"); e("v_add_u32 v22, s47, v22"); e("v_lshlrev_b32 v22, 7, v22")
            spin(22,512,7,WS,23,nap=OPT['nap'])
            e("s_lshl_b32 s45, s45, 2"); e("s_add_u32 s45, s45, s46"); e("s_add_u32 s45, s45, 2")
            touch(45,0,4,64)
            e(LB+":")
        if OPT['l2o']:
            e(f"s_and_b32 s45, s{sWv}, 15"); e("s_lshr_b32 s46, s45, 2")
            e(f"s_lshr_b32 s47, s44, 3"); e(f"s_mul_i32 s48, s{sB}, 5"); e("s_add_u32 s48, s48, 4"); e("s_lshr_b32 s48, s48, 3"); e("s_min_u32 s48, s48, 15")
            e("v_min_u32 v22, 4, v0"); e("v_add_u32 v22, s47, v22"); e("v_min_u32 v22, s48, v22"); e("v_lshlrev_b32 v22, 2, v22"); e("v_add_u32 v22, s46, v22"); e("v_add_u32 v22, 208, v22"); e("v_lshlrev_b32 v22, 7, v22")
            spin(22,0,4,WS,23,nap=OPT['nap'])
            e("s_add_u32 s45, s45, 56"); e(f"s_lshr_b32 s46, s{sWv}, 4"); e("s_lshl_b32 s46, s46, 6")
            touch(45,"s46",2,128)
    e("s_endpgm")

def spare():
    KN=NAME+"_kernel"
    e("L_spare:")
    e("s_getpc_b64 s[68:69]")
    e("L_pc:")
    e(f"s_sub_u32 s68, s68, L_pc-{KN}"); e("s_subb_u32 s69, s69, 0")
    e(f"s_lshl_b32 s70, s{sW}, 13"); e("v_lshlrev_b32 v1, 7, v0"); e("v_add_u32 v2, s70, v1")
    e(f"v_min_u32 v3, L_end-{KN}-4, v2")
    e("global_load_dword v10, v3, s[68:69]","pf")
    e("v_add_u32 v2, 32768, v2"); e(f"v_min_u32 v3, L_end-{KN}-4, v2")
    e("global_load_dword v11, v3, s[68:69]","pf")
    e("s_waitcnt lgkmcnt(0)")
    mksrd(WS,60,WSN); mksrd(DBG,58,256)
    e(f"s_or_b32 s70, s2, s{sW}"); e("s_cmp_eq_u32 s70, 0"); e("s_cbranch_scc0 L_noclr")
    e("v_lshlrev_b32 v5, 8, v0"); e("v_mov_b32 v6, 0"); e("v_lshlrev_b32 v7, 7, v0"); e("v_mov_b32 v8, 1")
    for k in range(5):
        e(f"buffer_store_dword v6, v7, {srd(WS)}, 0 offen sc1"); e("v_add_u32 v7, 8192, v7")
    e("s_waitcnt vmcnt(0)")
    e(f"buffer_store_dword v8, v5, {srd(DBG)}, 0 offen sc1")
    e("L_noclr:")
    if OPT['tlb']:
        mksrd(WO,44,401408); mksrd(WD,52,1605632); mksrd(OUT,56,1835008)
        e(f"s_cmp_eq_u32 s{sW}, 1"); e("s_cbranch_scc0 L_notlb")
        e(f"v_mul_u32_u24 v20, {NT*1024}, v0"); e("v_lshlrev_b32 v21, 17, v0"); e(f"s_mov_b32 s70, {H0+129*1024}"); e(f"s_mov_b32 s71, {H0+129*1024+64*NT*1024}")
        e(f"buffer_load_dword v22, v20, {srd(WS)}, s70 offen","pf"); e(f"buffer_load_dword v23, v20, {srd(WS)}, s71 offen","pf")
        e(f"s_mov_b32 s70, {S0-128}"); e(f"buffer_load_dword v27, off, {srd(WS)}, s70","pf")
        for k,sr in enumerate((WD,WO,OUT)): e(f"buffer_load_dword v{24+k}, v21, {srd(sr)}, 0 offen","pf")
        e("s_waitcnt vmcnt(0)")
        e("L_notlb:")
    if OPT['ntt']==5 and OPT['gop']>=0:
        mksrd(WO,44,401408); mksrd(WD,52,1605632)
        e("v_mov_b32 v249, 0"); spin(249,4,1,DBG,248,nap=OPT['nap'])
        e(f"s_mul_i32 s66, s{sW}, 10"); e(f"s_add_u32 s66, s66, s{sI}"); e("s_lshl_b32 s66, s66, 6"); e("v_add_u32 v20, s66, v0")
        n=30
        for half in range(2):
            for k in range(3):
                e(f"v_add_u32 v21, {2560*k}, v20"); e("v_mul_u32_u24 v22, 9363, v21"); e("v_lshrrev_b32 v22, 22, v22"); e(f"v_add_u32 v22, {half}, v22")
                e("v_mul_u32_u24 v22, 448, v22"); e("v_add_u32 v22, v22, v21"); e("v_lshlrev_b32 v22, 7, v22")
                e(f"buffer_load_dword v{n}, v22, {srd(WD)}, 0 offen","pf"); n+=1
        if OPT['spf']:
            for k in range(2):
                e(f"v_add_u32 v21, {2560*k}, v20"); e("v_lshlrev_b32 v22, 7, v21"); e(f"buffer_load_dword v{n}, v22, {srd(WO)}, 0 offen","pf"); n+=1
    if OPT['ntt']==4:
        P.extend(stamp(0))
        e(f"s_min_u32 s{hsN}, s{sJ}, 1")
        helper_setup([HD.vW2,9]+hR[0])
        e("v_accvgpr_write_b32 a127, v9")
        e("v_lshlrev_b32 v231, 4, v0"); e(f"v_mov_b32 v252, {OOB}"); e("v_mov_b32 v13, 1"); e("v_mov_b32 v249, 0"); e("v_mov_b32 v248, 0")
        if OPT['gop']>=0: spin(249,4,1,DBG,248,nap=OPT['nap'])
        if OPT['spf']:
            e(f"s_mul_i32 s66, s{sXCD}, 392"); e(f"s_lshl_b32 s67, s{sW}, 6"); e("s_add_u32 s66, s66, s67"); e("v_add_u32 v14, s66, v0")
            for k in range(13):
                e("v_subrev_u32 v15, 3136, v14"); e("v_min_u32 v15, v15, v14"); e("v_lshlrev_b32 v15, 7, v15")
                e(f"buffer_load_dword v{16+k}, v15, {srd(WO)}, 0 offen","pf"); e("v_add_u32 v14, 256, v14")
                if k<OPT['spf']-1: e("s_waitcnt vmcnt(0)")
        hwin[0]=0
        for b in range(8+OPT['hp13']):
            P.extend(flat(HD.w2dma(b)))
            for sb in {1:[0],4:[1],7:[2,3]}.get(b,[]):
                P.append(WAIT(vm=[f"b{sb}"])); P.extend(hstage(sb)); P.append(WAIT(lgkm=0))
        if OPT['hin']:
            e(f"v_mov_b32 v{HD.vWo}, v9")
            P.append(WAIT(vm=["b7"])); P.extend(flat([hstage(b) for b in range(4,8)])); P.append(WAIT(lgkm=0))
            for b in range(13,13+OPT['hin']): P.extend(flat(HD.w2dma(b)))
        assert hwin[0]==HROW[7 if OPT['hin'] else 3]>>16
        spin(249,0,1,DBG,248)
        spin(HD.vPA,0,7,WS,HD.vPoll,nap=OPT['nap'])
        e("s_branch L_help")
    e("L_exit:")
    e("s_endpgm")
    e("L_end:")

def main():
    global P
    head=open("cdna_kernels/"+NAME+".s.ref").read().split("; Override launch")[0]
    txt=[]; nops=0
    def ablate(o):
        a=OPT['abl']; r=[]
        for x in o:
            if a&1 and x.cls=="vm" and " lds" in x.text: continue
            if a&2 and x.op.startswith("ds_read"): continue
            if a&4 and x.op.startswith("v_mfma"): continue
            r.append(x)
        return r
    for part in ((common_prologue,ffn),(attn,),(spare,)):
        P.clear()
        if part[0] is not common_prologue:
            pass
        for f in part: f()
        o,n=finalize(list(P),part[-1].__name__); nops+=n
        if OPT['abl']: o=ablate(o)
        txt+=[x.text if x.cls=="label" else "    "+x.text for x in o]
    out=head+"; generated by gen/gen.py (hand-designed schedule, python emitter)\n; @launch grid=(256,1,1) block=(256,1,1) lds=163840\n"
    out+='.amdgcn_target "amdgcn-amd-amdhsa--gfx950"\n.text\n'
    out+=f".globl {NAME}_kernel\n.p2align 8\n.type {NAME}_kernel,@function\n{NAME}_kernel:\n"
    out+="\n".join(txt)+"\n"
    out+=f""".section .rodata,"a"
.p2align 6
.amdhsa_kernel {NAME}_kernel
  .amdhsa_next_free_vgpr 512
  .amdhsa_next_free_sgpr 102
  .amdhsa_accum_offset 256
  .amdhsa_group_segment_fixed_size 0
  .amdhsa_kernarg_size 88
  .amdhsa_user_sgpr_count 2
  .amdhsa_user_sgpr_kernarg_segment_ptr 1
  .amdhsa_system_sgpr_workgroup_id_x 1
.end_amdhsa_kernel
"""
    open(sys.argv[1],"w").write(out)
    print("instructions",len(txt),"auto nops",nops)
main()
```

```python
import sys, math
from isa import *
NAME="gated_mix__sliding_local_dilated__swiglu_ffn__prompt"
OPT=dict(stamp=0, probe=-2, pwg=100, obs=0, abl=0, outpol=0,
         rot=4, arot=7, rate=5, cap=2, capc=3, cp=16, chainA=1, w2p0=13, sAt=1, nin=3, sBs=2, pA=10,
         lead=12, pah=12, nm=3, ntt=5, hlead=9, hpah=9, arate=12, apf=1, spf=1, l2o=0, l2b=1, ech=1, tail2=0, ap1=1, napo=24, skipS=0, rateA=5, nA=6, apW=-1, apA=-1, apB=-1, apfk=10, hp13=5, hwin=0, nap=8, amid=4, hin=2, gop=5, p2=1, est=0, tlb=0, stf=0, split0=1, npre=2, pre1=5, early=9, aearly=5)
for a in sys.argv[2:]:
    k,v=a.split("="); OPT[k]=int(v)
H0=0x100000; NT=130; S0=0x80000; SSTR=2176*4; STAMP0=0xC00000; WSN=0x1000000
OOB=0x80000000
X,WA,WU,WD,WO,WS,OUT,DBG,GW=4,8,12,16,20,24,28,32,36
def srd(b): return f"s[{b}:{b+3}]"
def vr(b,n=1): return f"v{b}" if n==1 else f"v[{b}:{b+n-1}]"
def ar(b,n=1): return f"a{b}" if n==1 else f"a[{b}:{b+n-1}]"
P=[]
def e(t,tag=None):
    x=I(t,tag); P.append(x); return x
_l=[0]
def lab(p="L"):
    _l[0]+=1; return f"{p}{_l[0]}"
def mksrd(b,src,n,bias=0):
    if bias:
        e(f"s_sub_u32 s{b}, s{src}, {bias}"); e(f"s_subb_u32 s{b+1}, s{src+1}, 0")
    else:
        e(f"s_mov_b64 s[{b}:{b+1}], s[{src}:{src+1}]")
    e(f"s_mov_b32 s{b+2}, {n+bias}"); e(f"s_mov_b32 s{b+3}, 0x20000")
def mfma(d,a,b,c): return I(f"v_mfma_f32_16x16x32_bf16 {d}, {a}, {b}, {c}")
sW,sXCD,sJ,sI=62,63,64,65
sT=[66,67,68,69,70,71]
sSTB=98
nstamp=[0]
def stamp(idx,last=False):
    if OPT['probe']!=-2:
        o=[]
        if idx==OPT['probe']: o+=[I("s_memrealtime s[94:95]"),I("s_waitcnt lgkmcnt(0)"),I("s_sub_u32 s97, s94, s96")]
        if last:
            L=lab("PR"); D=lab("PD")
            o+=[I(f"s_cmp_eq_u32 s2, {OPT['pwg']}"),I(f"s_cbranch_scc0 {D}"),I("s_add_u32 s97, s97, 4000"),I(L+":"),I("s_memrealtime s[94:95]"),I("s_waitcnt lgkmcnt(0)"),
                I("s_sub_u32 s94, s94, s96"),I("s_cmp_lt_u32 s94, s97"),I(f"s_cbranch_scc1 {L}"),I(D+":")]
        return o
    if not OPT['stamp']: return []
    if OPT['stamp']==2 and idx not in (0,1,2,3,4,5,6,7,8,9,10,11,55,56,57,58,59,61) : return []
    if OPT['stamp']==3 and idx not in (0,9) and not last: return []
    o=[I("s_memrealtime s[94:95]"),I("s_memtime s[96:97]"),I("s_waitcnt lgkmcnt(0)"),
       I(f"v_writelane_b32 v254, s94, {idx}"),I(f"v_writelane_b32 v255, s96, {idx}")]
    if last: o+=[I("v_lshlrev_b32 v253, 3, v0"),I(f"buffer_store_dwordx2 v[254:255], v253, {srd(WS)}, s{sSTB} offen","stamp")]
    return o
def spin(addrv, off, cmpval, srdb, res=12, nap=1):
    L=lab("SP"); D=lab("SD")
    e("s_mov_b32 s92, 0")
    e(L+":")
    e(f"buffer_load_dword v{res}, v{addrv}, {srd(srdb)}, 0 offen offset:{off} sc1","poll")
    e("s_waitcnt vmcnt(0)")
    e(f"v_cmp_ne_u32 vcc, {cmpval}, v{res}")
    e(f"s_cbranch_vccz {D}")
    e("s_add_u32 s92, s92, 1")
    e("s_cmp_lt_u32 s92, 0x40000")
    e(f"s_sleep {nap}")
    e(f"s_cbranch_scc1 {L}")
    e(D+":")
def check_or_spin(addrv, off, cmpval, srdb, res):
    D=lab("CK")
    e(f"v_cmp_ne_u32 vcc, {cmpval}, v{res}")
    e(f"s_cbranch_vccz {D}")
    n0=len(P)
    spin(addrv,off,cmpval,srdb,res)
    for x in P[n0:]:
        if x.cls=="vm": x.cls="raw"; x.wr=set()
        if x.op=="s_waitcnt": x.op="raw"
    e(D+":")

def common_prologue():
    e("s_cmp_ge_u32 s2, 256"); e("s_cbranch_scc1 L_exit")
    if OPT['probe']!=-2:
        e("s_memrealtime s[94:95]"); e("s_waitcnt lgkmcnt(0)"); e("s_mov_b32 s96, s94"); e("s_mov_b32 s97, 0")
    e("s_load_dwordx16 s[40:55], s[0:1], 0")
    e("s_load_dwordx4 s[56:59], s[0:1], 64")
    e("s_load_dwordx2 s[60:61], s[0:1], 80")
    e("v_lshrrev_b32 v1, 6, v0")
    e(f"s_and_b32 s{sXCD}, s2, 7"); e(f"s_lshr_b32 s{sJ}, s2, 3")
    e(f"v_readfirstlane_b32 s{sW}, v1")
    e("v_and_b32 v0, 63, v0")
    if OPT['stamp']:
        e(f"s_lshl_b32 s{sSTB}, s2, 2"); e(f"s_add_u32 s{sSTB}, s{sSTB}, s{sW}"); e(f"s_lshl_b32 s{sSTB}, s{sSTB}, 9")
        e(f"s_add_u32 s{sSTB}, s{sSTB}, {STAMP0}")
        e("v_mov_b32 v254, 0"); e("v_mov_b32 v255, 0")
    e(f"s_mov_b32 s{sI}, s{sXCD}")
    e(f"s_cmp_eq_u32 s{sJ}, 0"); e("s_cbranch_scc1 L_spare")
    e(f"s_cmp_lt_u32 s{sJ}, 9"); e("s_cbranch_scc1 L_attn")

def dma(voff,sr,soff,imm,tag): return I(f"buffer_load_dwordx4 v{voff}, {srd(sr)}, {soff} offen offset:{imm} lds",tag)

flat=lambda L:[x for it in L for x in it]
def mod7(dst,src,tmp,R=7):
    e(f"s_mul_i32 s{tmp}, s{src}, 9363"); e(f"s_lshr_b32 s{tmp}, s{tmp}, 16"); e(f"s_mul_i32 s{tmp}, s{tmp}, 7"); e(f"s_sub_u32 s{dst}, s{src}, s{tmp}")
    if R==1: e(f"s_mov_b32 s{dst}, 0")
    elif R==2: e(f"s_and_b32 s{dst}, s{dst}, 1"); e(f"s_mul_i32 s{dst}, s{dst}, 3")
    elif R==4: e(f"s_and_b32 s{dst}, s{dst}, 3"); e(f"s_lshl_b32 s{dst}, s{dst}, 1")

class Down:
    def __init__(c,**kw): c.__dict__.update(kw)
    def setup_w(c,sF0,sT2,sN,t):
        t0,t1,t2,t3=t; a,b,d=c.vt
        e(f"v_lshrrev_b32 v{a}, 3, v0"); e(f"v_and_b32 v{b}, 6, v{a}"); e(f"v_and_b32 v{d}, 7, v0"); e(f"v_xor_b32 v{b}, v{b}, v{d}")
        e(f"v_mul_u32_u24 v{a}, 896, v{a}"); e(f"v_lshl_add_u32 v{c.vW2}, v{b}, 4, v{a}")
        e(f"s_lshr_b32 s{t0}, s{sW}, 1"); e(f"s_mul_i32 s{t0}, s{t0}, 28"); e(f"s_and_b32 s{t1}, s{sW}, 1"); e(f"s_add_u32 s{t3}, s{t0}, s{t1}")
        e(f"s_lshl_b32 s{t2}, s{sN}, 7"); e(f"v_add_u32 v{c.vW2}, s{t2}, v{c.vW2}")
        e(f"s_add_u32 s{t0}, s{sT2}, s{sN}"); e(f"s_and_b32 s{t0}, s{t0}, 3"); e(f"s_sub_u32 s{c.sWr3}, 3, s{t0}")
        e(f"s_lshl_b32 s{t1}, s{sW}, 2"); e(f"s_add_u32 s{t2}, s{t0}, s{t1}")
        e(f"s_mul_i32 s{t0}, s{t2}, {28*896}"); e(f"v_add_u32 v{c.vWo}, s{t0}, v{c.vW2}")
        e(f"s_add_u32 s{t0}, s{t2}, 56"); e(f"s_mul_i32 s{t0}, s{t0}, {NT}"); e(f"s_add_u32 s{t0}, s{t0}, s{sF0}"); e(f"s_lshl_b32 s{t0}, s{t0}, 10"); e(f"s_add_u32 s{c.sHO}, s{t0}, {H0}")
        e(f"s_mov_b32 s{c.sNWo}, {-3*28*896}"); e(f"s_mov_b32 s{c.sNHo}, {-3*NT*1024}")
        e(f"s_lshl_b32 s{t0}, s{sT2}, 1"); e(f"s_add_u32 s{t0}, s{t0}, s{sN}")
        mod7(t0,t0,t1); e(f"s_sub_u32 s{c.sWr2}, 6, s{t0}"); e(f"s_lshl_b32 s{t0}, s{t0}, 2"); e(f"s_add_u32 s{t3}, s{t3}, s{t0}")
        e(f"s_mul_i32 s{t1}, s{t3}, {32*896}"); e(f"v_add_u32 v{c.vW2}, s{t1}, v{c.vW2}")
        e(f"s_mov_b32 s{c.sNW2}, {-6*114688}"); e(f"s_mov_b32 s{c.sNH}, {-24*NT*1024}")
        e(f"s_mul_i32 s{t0}, s{t3}, {NT}"); e(f"s_add_u32 s{t0}, s{t0}, s{sF0}"); e(f"s_lshl_b32 s{t0}, s{t0}, 10"); e(f"s_add_u32 s{c.sHld}, s{t0}, {H0}")
        for j in range(1,4): e(f"s_mov_b32 s{c.sW2o[j]}, {6144*j}")
    def setup_lane(c,dst,sBases,t):
        t0=t[0]; a,b,d=c.vt
        e(f"v_bfe_u32 v{a}, v0, 4, 1"); e(f"v_bfe_u32 v{b}, v0, 2, 2"); e(f"v_lshl_add_u32 v{a}, v{a}, 2, v{b}")
        e(f"v_lshrrev_b32 v{b}, 5, v0"); e(f"v_lshlrev_b32 v{b}, 10, v{b}"); e(f"v_lshl_add_u32 v{b}, v{a}, 7, v{b}")
        e(f"v_and_b32 v{d}, 3, v0"); e(f"v_lshl_add_u32 v{b}, v{d}, 3, v{b}"); e(f"v_lshrrev_b32 v{a}, 1, v{a}")
        for q in range(4):
            e(f"s_add_u32 s{t0}, s{sW}, {q}"); e(f"s_and_b32 s{t0}, s{t0}, 3")
            e(f"v_xor_b32 v{d}, s{t0}, v{a}"); e(f"v_lshl_add_u32 v{d}, v{d}, 5, v{b}")
            for k,sb in enumerate(sBases): e(f"v_add_u32 v{dst[k][q]}, s{sb}, v{d}")
    def setup_io(c,sF0,sN,t):
        t0,t1,t2,t3=t; a,b,d=c.vt; N=c.NTT
        e(f"v_lshrrev_b32 v{a}, 5, v0")
        e(f"s_add_u32 s{t1}, s{sF0}, {N-1}")
        e(f"s_mul_i32 s{t0}, s{sF0}, 13108"); e(f"s_lshr_b32 s{t0}, s{t0}, 16"); e(f"s_mul_i32 s{t2}, s{t1}, 13108"); e(f"s_lshr_b32 s{t2}, s{t2}, 16")
        e(f"s_sub_u32 s{t2}, s{t2}, s{t0}"); e(f"s_lshl_b32 s{t2}, s{t2}, 10"); e(f"s_lshl_b32 s{t0}, s{t0}, 3"); e(f"s_add_u32 s{t0}, s{t0}, s{sW}"); e(f"s_lshl_b32 s{t0}, s{t0}, 7")
        e(f"v_mul_u32_u24 v{b}, s{t2}, v{a}"); e(f"v_add_u32 v{c.vPA}, s{t0}, v{b}")
        e(f"s_lshr_b32 s{t0}, s{sF0}, 3"); e(f"s_lshr_b32 s{t2}, s{t1}, 3"); e(f"s_min_u32 s{t2}, s{t2}, 15")
        e(f"s_sub_u32 s{t2}, s{t2}, s{t0}"); e(f"s_lshl_b32 s{t2}, s{t2}, 9"); e(f"s_lshl_b32 s{t0}, s{t0}, 2"); e(f"s_add_u32 s{t0}, s{t0}, s{sW}"); e(f"s_add_u32 s{t0}, s{t0}, 208"); e(f"s_lshl_b32 s{t0}, s{t0}, 7")
        e(f"v_mul_u32_u24 v{b}, s{t2}, v{a}"); e(f"v_add_u32 v{c.vPO}, s{t0}, v{b}")
        e(f"s_lshl_b32 s{t0}, s{sF0}, 4"); e(f"v_and_b32 v{a}, 15, v0"); e(f"v_add_u32 v{a}, s{t0}, v{a}")
        e(f"s_mul_i32 s{t1}, s{sW}, {SSTR}"); e(f"s_add_u32 s{t1}, s{t1}, {S0}"); e(f"v_lshlrev_b32 v{c.vSA}, 2, v{a}"); e(f"v_add_u32 v{c.vSA}, s{t1}, v{c.vSA}")
        e(f"v_mul_u32_u24 v{a}, 896, v{a}"); e(f"v_lshrrev_b32 v{b}, 4, v0"); e(f"v_lshl_add_u32 v{a}, v{b}, 3, v{a}")
        e(f"s_lshl_b32 s{t1}, s{sN}, 7"); e(f"s_lshl_b32 s{t2}, s{sW}, 5"); e(f"s_add_u32 s{t1}, s{t1}, s{t2}"); e(f"v_add_u32 v{c.vO}, s{t1}, v{a}")
        base,ws,qs=c.red
        e(f"s_mul_i32 s{t0}, s{sW}, {ws}"); e(f"s_add_u32 s{t0}, s{t0}, {base}"); e(f"v_add_u32 v{c.vRW}, s{t0}, v{c.vH}")
        for q in range(1,4):
            e(f"s_sub_u32 s{t0}, s{sW}, {q}"); e(f"s_and_b32 s{t0}, s{t0}, 3"); e(f"s_mul_i32 s{t0}, s{t0}, {ws}"); e(f"s_add_u32 s{t0}, s{t0}, {base+(q-1)*qs}")
            e(f"v_add_u32 v{c.vRR+q-1}, s{t0}, v{c.vH}")
        for j in range(1,N): e(f"s_mov_b32 s{c.sRow+j-1}, {16*j*896}")
    def w2dma(c,b):
        sg,off=c.m0(b)
        o=[[dma(c.vW2,WD if b<14 else WO,"0" if pi==0 else f"s{c.sW2o[pi]}",pi*1024,f"b{b}")] for pi in range(4)]
        o[0].insert(0,I(f"s_add_u32 m0, s{sg}, {off}"))
        if b==13: o[-1].append(I(f"v_mov_b32 v{c.vW2}, v{c.vWo}"))
        elif b<13:
            o[-1]+=[ATOM(f"s_cmp_eq_u32 s{c.sWr2}, {b%7}",f"s_cselect_b32 s{c.sD}, s{c.sNW2}, 114688"),I(f"v_add_u32 v{c.vW2}, s{c.sD}, v{c.vW2}")]
            if b==6: o[-1].append(I(f"v_add_u32 v{c.vW2}, {64*896}, v{c.vW2}"))
        elif b<17: o[-1]+=[ATOM(f"s_cmp_eq_u32 s{c.sWr3}, {b-14}",f"s_cselect_b32 s{c.sD}, s{c.sNWo}, {28*896}"),I(f"v_add_u32 v{c.vW2}, s{c.sD}, v{c.vW2}")]
        return o
    def AW(c,b,q,a=None):
        r=c.aSt+16*(b%8)+4*q
        return ar(r,4) if a is None else ar(r+2*a,2)
    def treads(c,b,rd=None):
        base,off=(rd or c.rd)(b)
        return [I(f"ds_read_b64_tr_b16 {c.AW(b,q,a)}, v{base[q]} offset:{off+a*2048}") for q in range(4) for a in range(2)]
    def HS(c,b,t):
        k=b%c.NSL; na=c.nAS
        return ar(c.aH+(k*c.NTT+t)*4,4) if k<na else vr(c.vHS+((k-na)*c.NTT+t)*4,4)
    def hload(c,b):
        o=[[I(f"buffer_load_dwordx4 {c.HS(b,t)}, v{c.vH if t<3 else c.vHt[t-3]}, {srd(WS)}, s{c.sHld} offen offset:{(t%4)*1024} sc1",f"h{b}_{t}")] for t in range(c.NTT)]
        if b==13: o[-1].append(I(f"s_mov_b32 s{c.sHld}, s{c.sHO}"))
        elif b<13:
            o[-1]+=[ATOM(f"s_cmp_eq_u32 s{c.sWr2}, {b%7}",f"s_cselect_b32 s{c.sD}, s{c.sNH}, {4*NT*1024}",f"s_add_u32 s{c.sHld}, s{c.sHld}, s{c.sD}")]
            if b==6: o[-1].append(I(f"s_add_u32 s{c.sHld}, s{c.sHld}, {2*NT*1024}"))
        elif b<17: o[-1]+=[ATOM(f"s_cmp_eq_u32 s{c.sWr3}, {b-14}",f"s_cselect_b32 s{c.sD}, s{c.sNHo}, {NT*1024}",f"s_add_u32 s{c.sHld}, s{c.sHld}, s{c.sD}")]
        return o
    def poll(c,tag):
        av,off={"pollA":(c.vPA,0),"pollB":(c.vPA,512),"pollO":(c.vPO,0)}[tag]
        return I(f"buffer_load_dword v{c.vPoll}, v{av}, {srd(WS)}, 0 offen offset:{off} sc1",tag)
    def main(c,WQ,LEAD,PAH,so=0):
        N=c.NTT; GT=18*N
        steps=[(0,1),(2,3),(4,5),(6,),(7,8),(9,10),(11,12),(13,),(14,),(15,16,17)] if OPT['ech'] else [(b,) for b in range(15)]+[(15,16,17)]
        P.append(WAIT(vm=["pollA"])); check_or_spin(c.vPA,0,7,WS,c.vPoll)
        P.extend(stamp(so+11))
        def setoff(st):
            o=[]
            for k,b in enumerate(st):
                o.append(I(f"s_mov_b32 s{44+k}, s{c.sHld}")); o+=c.hload(b)[-1][1:]
            return o
        HL=[]; start={}; units=[]
        for n,st in enumerate(steps):
            for b in st: start[b]=len(HL)
            for t in range(N):
                units.append((len(HL),st,t))
                for k,b in enumerate(st):
                    x=c.hload(b)[t][0]; HL.append([I(x.text.replace(f"s{c.sHld} offen",f"s{44+k} offen"),x.tag)])
            if n+1<len(steps): HL[-1]+=setoff(steps[n+1])
        P.extend(setoff(steps[0]))
        for l in range(LEAD): P.extend(HL[l])
        P.extend(stamp(so+5))
        hn=LEAD
        ustart=[u[0] for u in units]
        at=lambda g: max(x for x in ustart if x<=max(g,0))
        gates={at(start[7]-LEAD):("pollB",c.vPA,512,7,6), at(start[14]-LEAD):("pollO",c.vPO,0,4,7)}
        polls={at(g-PAH):v[0] for g,v in gates.items()}
        RQ={}
        for n,st in enumerate(steps):
            rd=[(x,f"b{b}") for b in st if b>=8 for x in c.treads(b)]
            if not rd: continue
            g1=start[st[0]]; g0=g1-max(N,(len(rd)+1)//2)
            assert all(start[b-8]+N*len([z for z in steps if b-8 in z][0])<=g0 for b in st if b>=8)
            for k,(x,tg) in enumerate(rd): RQ.setdefault(g0+k*(g1-g0-1)//len(rd),[]).append((x,tg))
        base,ws,qs=c.red
        wr=lambda q,t: I(f"ds_write_b128 v{c.vRW}, {vr(c.ACC(q,t),4)} offset:{(q-1)*qs+t*1024}")
        R=lambda q,t: c.vRT+((q-1)*N+t)*4
        rr=lambda t: [I(f"ds_read_b128 {vr(R(q,t),4)}, v{c.vRR+q-1} offset:{t*1024}") for q in range(1,4)]
        NE=N-2 if OPT['tail2'] else 0
        def uw(u):
            g,st,t=units[u]
            tags=[f"h{b}_{t}" for b in st]+[tg for k in range(len(st)) for _,tg in RQ.get(g+k,[])]
            if g in gates: tags.append(gates[g][0])
            return WAIT(vm=tags,lgkm=0 if t==0 else None)
        P.append(uw(0))
        for u,(g,st,t) in enumerate(units):
            L=len(st)
            mf=[mfma(vr(c.ACC(q,t),4),c.AW(b,q),c.HS(b,t),"0" if b==0 else vr(c.ACC(q,t),4)) for q in range(4) for b in st]
            if g in gates:
                tg,av,off,val,si=gates[g]
                check_or_spin(av,off,val,WS,c.vPoll); P.extend(stamp(so+si))
            if t==0 and not so: P.extend(stamp(12+st[0]))
            f=[]
            if g in polls: f.append((2.5,c.poll(polls[g])))
            for k in range(L):
                if hn<GT:
                    it=HL[hn]; hn+=1; f.append((4*k,it[0])); f+=[(4*k+1,x) for x in it[1:]]
                elif g+k+LEAD<GT+N: f+=([(4*k-0.5,I(f"v_or_b32 v{c.vSA}, s{c.sLast}, v{c.vSA}"))] if g+k+LEAD-GT==3 and N==5 else [])+[(4*k,I(f"buffer_load_dword v{c.vS+g+k+LEAD-GT}, v{c.vSA}, {srd(WS)}, 0 offen offset:{(g+k+LEAD-GT)*64} sc1","s"))]
                if WQ and WQ[0][0]<=g+k:
                    seen=False
                    for x in WQ.pop(0)[1]:
                        if x.cls=="vm": seen=True; f.append((4*k+2,x))
                        else: f.append((4*k+(3 if seen else 1.5),x))
                f+=[(4*k+0.2+j,x) for j,(x,_) in enumerate(RQ.get(g+k,[]))]
            if st is steps[-1] and t>0: f+=[(4*q-1 if q==1 else 4*q-3,wr(q,t-1)) for q in range(1,4)]
            if NE and u==len(units)-1:
                f=[(k,x) for k,x in enumerate([x for _,x in f if x.cls=="ds"]+flat([rr(tt) for tt in range(NE)]))]+[z for z in f if z[1].cls!="ds"]
            o=pack2(mf,f)
            if NE and u==len(units)-2: o+=[WAIT(lgkm=0),I("s_barrier")]
            if u+1<len(units):
                j=max(i for i,x in enumerate(o) if x.cls=="mfma")
                if any(x.cls in("ds","vm") for x in o[j+1:]): o.append(uw(u+1))
                else: o.insert(j+1,uw(u+1))
            P.extend(o)
        assert not WQ and hn==GT
        for q in range(1,4): P.append(wr(q,N-1))
        P.extend(stamp(so+8))
        def fin(t):
            d=c.ACC(0,t)
            for r in (0,2): e(f"v_pk_add_f32 {vr(R(1,t)+r,2)}, {vr(R(1,t)+r,2)}, {vr(R(2,t)+r,2)}")
            for r in (0,2): e(f"v_pk_add_f32 {vr(d+r,2)}, {vr(d+r,2)}, {vr(R(3,t)+r,2)}")
            for r in (0,2): e(f"v_pk_add_f32 {vr(d+r,2)}, {vr(d+r,2)}, {vr(R(1,t)+r,2)}")
            for r in range(4): e(f"v_mul_f32 v{d+r}, v{c.vS+t}, v{d+r}")
            e(f"v_cvt_pk_bf16_f32 v{d}, v{d}, v{d+1}"); e(f"v_cvt_pk_bf16_f32 v{d+1}, v{d+2}, v{d+3}")
            e(f"buffer_store_dwordx2 {vr(d,2)}, v{c.vO}, {srd(OUT)}, {'0' if t==0 else 's%d'%(c.sRow+t-1)} offen{['',' sc1',' nt'][OPT['outpol']]}","out")
        if NE:
            P.append(WAIT(vm=["s"],lgkm=3))
            for t in range(NE): fin(t)
        P.append(WAIT(vm=["s"],lgkm=0)); e("s_barrier")
        for t in range(NE,N): P.extend(rr(t))
        for t in range(NE,N):
            e(f"s_waitcnt lgkmcnt({3*(N-1-t)})"); fin(t)
        P.extend(stamp(so+9,True))
        e("s_endpgm")

def ffn():
    sSL,sTT,sT2,sN=72,73,74,75
    sSeg1,sSeg2,sXb=76,77,78
    sXo=[None,79,80,81,82]
    sW1o=83
    sHst,sHld,sC=87,88,89
    vX,vW,vXR,vWR,vW2,vH,vH4,vFl,vOne,vPoll,vPA=1,2,(3,4),(5,6),7,8,9,10,11,12,13
    ACC=lambda p,q,t: 16+80*p+(q*5+t)*4
    def XF(i): return vr(176+4*i,4) if i<6 else ar(4*(i-6),4)
    AF=lambda buf,q: 200+16*buf+4*q
    t0,t1,t2_,t3=sT[:4]
    e(f"s_lshr_b32 s{t1}, s{sXCD}, 2"); e(f"s_add_u32 s{sI}, s{t1}, 8")
    e(f"s_and_b32 s{t0}, s{sXCD}, 3"); e(f"s_cmp_eq_u32 s{t0}, 3"); e(f"s_cselect_b32 s{t0}, 10, 9")
    e(f"s_cmp_lt_u32 s{sJ}, s{t0}"); e("s_cbranch_scc1 L_spare")
    e(f"s_sub_u32 s{sI}, s{sJ}, s{t0}")
    e(f"s_mul_i32 s{t0}, s{sXCD}, 23"); e(f"s_add_u32 s{sI}, s{sI}, s{t0}")
    e(f"s_sub_u32 s{sI}, s{sI}, s{t1}")
    e(f"s_mul_i32 s{sT2}, s{sI}, 9363"); e(f"s_lshr_b32 s{sT2}, s{sT2}, 16")
    e(f"s_mul_i32 s{t0}, s{sT2}, 7"); e(f"s_sub_u32 s{sN}, s{sI}, s{t0}")
    e(f"s_sub_u32 s{t0}, s{sI}, 98"); e(f"s_mul_i32 s{t1}, s{t0}, 10923"); e(f"s_lshr_b32 s{t1}, s{t1}, 16")
    e(f"s_mul_i32 s{t2_}, s{t1}, 6"); e(f"s_sub_u32 s{t0}, s{t0}, s{t2_}"); e(f"s_add_u32 s{t0}, s{t0}, 7")
    e(f"s_cmp_lt_u32 s{sI}, 98"); e(f"s_cselect_b32 s{sSL}, s{sT2}, s{t1}"); e(f"s_cselect_b32 s{sTT}, s{sN}, s{t0}")
    e("v_lshrrev_b32 v14, 3, v0")
    e("v_and_b32 v15, 7, v0")
    e(f"s_and_b32 s{t0}, s{sW}, 1"); e(f"s_lshl_b32 s{t1}, s{t0}, 2")
    e("v_lshrrev_b32 v12, 1, v14"); e(f"v_or_b32 v13, s{t1}, v12"); e("v_xor_b32 v13, v13, v15")
    e(f"s_mul_i32 s{t2_}, s{sTT}, 160"); e(f"s_lshl_b32 s{t3}, s{sW}, 3"); e(f"s_add_u32 s{t2_}, s{t2_}, s{t3}")
    e(f"v_add_u32 v{vX}, s{t2_}, v14"); e(f"v_mul_u32_u24 v{vX}, 896, v{vX}"); e(f"v_lshl_add_u32 v{vX}, v13, 4, v{vX}")
    e(f"s_lshl_b32 s{t0}, s{t0}, 2")
    e("v_and_b32 v13, 2, v14"); e(f"v_or_b32 v13, s{t0}, v13"); e("v_xor_b32 v13, v13, v15")
    e(f"v_add_u32 v{vW}, s{t3}, v14"); e(f"v_mul_u32_u24 v{vW}, 3584, v{vW}"); e(f"v_lshl_add_u32 v{vW}, v13, 4, v{vW}")
    e(f"s_lshl_b32 s{t0}, s{sSL}, 8"); e(f"v_add_u32 v{vW}, s{t0}, v{vW}")
    sWr,sD,sNX,sNW,sWr2,sNW2,sNH=90,91,93,99,100,101,3
    e(f"s_lshl_b32 s{t0}, s{sSL}, 1"); e(f"s_add_u32 s{t0}, s{sTT}, s{t0}"); mod7(t0,t0,t1,OPT['rot'])
    e(f"s_sub_u32 s{sWr}, 6, s{t0}"); e(f"s_lshl_b32 s{t1}, s{t0}, 7"); e(f"v_add_u32 v{vX}, s{t1}, v{vX}")
    e(f"s_mul_i32 s{t1}, s{t0}, {64*3584}"); e(f"v_add_u32 v{vW}, s{t1}, v{vW}")
    e(f"s_mov_b32 s{sNX}, -768"); e(f"s_mov_b32 s{sNW}, {-6*64*3584}")
    e(f"s_lshl_b32 s{sSeg2}, s{sW}, 12")
    e(f"s_lshl_b32 s{sXb}, s{sW}, 10"); e(f"s_add_u32 s{sXb}, s{sXb}, 65536")
    for j in range(1,5): e(f"s_mov_b32 s{sXo[j]}, {32*j*896}")
    e(f"s_mov_b32 s{sW1o}, {32*3584-1024}")
    for b,n in ((X,1835008),(WA,1605632),(WU,1605632+2048)):
        e(f"s_mov_b32 s{b+2}, {n}"); e(f"s_mov_b32 s{b+3}, 0x20000")
    e("s_waitcnt lgkmcnt(0)")
    e(f"s_mov_b64 s[{X}:{X+1}], s[40:41]"); e(f"s_mov_b64 s[{WA}:{WA+1}], s[48:49]")
    e(f"s_sub_u32 s{WU}, s50, 2048"); e(f"s_subb_u32 s{WU+1}, s51, 0")
    P.extend(stamp(0))
    def xdma(c):
        o=[]
        for j in range(5):
            o.append([I(f"s_add_u32 m0, s{sXb}, {(c%4)*20480+j*4096}"), dma(vX,X,"0" if j==0 else f"s{sXo[j]}",0,f"x{c}")])
        o[-1]+=[ATOM(f"s_cmp_eq_u32 s{sWr}, {c}",f"s_cselect_b32 s{sD}, s{sNX}, 128"),I(f"v_add_u32 v{vX}, s{sD}, v{vX}")]
        return o
    def wdma(s):
        o=[]
        for j in range(2):
            for m in range(2):
                o.append([dma(vW,WA if m==0 else WU,"0" if j==0 else f"s{sW1o}",(2*m+j)*1024,f"w{s}" if (s or j) else "w0a")])
        o[0].insert(0,I(f"s_add_u32 m0, s{sSeg2}, {(s%4)*16384}"))
        o[-1]+=[ATOM(f"s_cmp_eq_u32 s{sWr}, {s%7}",f"s_cselect_b32 s{sD}, s{sNW}, {64*3584}"),I(f"v_add_u32 v{vW}, s{sD}, v{vW}")]
        if s==6: o[-1].append(I(f"v_add_u32 v{vW}, 128, v{vW}"))
        return o
    NTT=OPT['ntt']; R1=[176,177,178,179]; R2=[180,181,182,183]; sF0=39
    LOC=[((sSeg1,b*4096),13 if b<2 else 17) for b in range(6)]+[((sSeg2,((j+2)%4)*16384),21+2*j) for j in range(4)]
    loc=lambda b: LOC[b%10][0]
    D=Down(NTT=NTT,vt=(196,197,198),vW2=vW2,vWo=248,vH=vH,vHt=(251,252),sLast=47,vPoll=vPoll,vPA=vPA,vPO=187,vSA=188,vO=189,vRW=190,vRR=184,vS=192,vRT=96,
           sW2o=[None,84,85,86],sWr2=sWr2,sNW2=sNW2,sNH=sNH,sD=sD,sWr3=38,sNWo=36,sNHo=37,sHld=sHld,sHO=sT[5],sRow=40,
           m0=loc,rd=lambda b:(R1 if loc(b)[0]==sSeg1 else R2,loc(b)[1]),red=(65536,24576,5120),
           ACC=lambda q,t:ACC(0,q,t),AF=AF,aSt=0,aH=128,nAS=128//(4*NTT),NSL=128//(4*NTT)+(4 if NTT==5 else 0),vHS=96)
    pro=flat([xdma(s)+wdma(s) for s in range(OPT['npre'])])
    P.extend(flat(pro[:OPT['early']]))
    mksrd(WS,60,WSN); mksrd(WD,52,1605632); mksrd(WO,44,401408); mksrd(OUT,56,1835008); mksrd(DBG,58,256)
    e("v_lshrrev_b32 v14, 4, v0")
    e("v_and_b32 v15, 15, v0")
    e("v_lshrrev_b32 v12, 1, v15"); e("v_xor_b32 v12, v12, v14"); e("v_lshlrev_b32 v12, 4, v12")
    e("v_lshl_add_u32 v12, v15, 7, v12")
    e(f"s_lshr_b32 s{t0}, s{sW}, 1"); e(f"s_mul_i32 s{t0}, s{t0}, 10240"); e(f"s_add_u32 s{t0}, s{t0}, 65536")
    e(f"v_add_u32 v{vXR[0]}, s{t0}, v12"); e(f"v_xor_b32 v{vXR[1]}, 64, v{vXR[0]}")
    e("v_bfe_u32 v12, v0, 2, 2")
    e("v_lshrrev_b32 v13, 1, v12"); e("v_and_b32 v15, 1, v14"); e("v_lshlrev_b32 v15, 1, v15"); e("v_or_b32 v13, v13, v15")
    e(f"s_and_b32 s{t0}, s{sW}, 1"); e(f"s_lshl_b32 s{t0}, s{t0}, 1"); e(f"v_xor_b32 v13, s{t0}, v13"); e("v_lshlrev_b32 v13, 5, v13")
    e("v_lshl_add_u32 v13, v14, 12, v13"); e("v_lshl_add_u32 v13, v12, 7, v13")
    e("v_and_b32 v15, 3, v0"); e(f"v_lshl_add_u32 v{vWR[0]}, v15, 3, v13"); e(f"v_xor_b32 v{vWR[1]}, 32, v{vWR[0]}")
    e(f"s_mul_i32 s{sF0}, s{sT2}, {NTT}")
    D.setup_w(sF0,sT2,sN,sT[:4])
    e(f"s_lshl_b32 s{t2_}, s{sTT}, 1"); e(f"s_lshr_b32 s{t1}, s{sW}, 1"); e(f"s_add_u32 s{t2_}, s{t2_}, s{t1}")
    e(f"s_lshl_b32 s{t0}, s{sSL}, 2"); e(f"s_and_b32 s{t3}, s{sW}, 1"); e(f"s_add_u32 s{t0}, s{t0}, s{t3}"); e(f"s_mul_i32 s{t0}, s{t0}, {NT}")
    e(f"s_mul_i32 s{t1}, s{t2_}, 5"); e(f"s_add_u32 s{t0}, s{t0}, s{t1}")
    e(f"s_lshl_b32 s{t0}, s{t0}, 10"); e(f"s_add_u32 s{sHst}, s{t0}, {H0}")
    e(f"s_lshl_b32 s{t0}, s{t2_}, 3"); e(f"s_add_u32 s{t0}, s{t0}, s{t3}"); e(f"s_cmp_ge_u32 s{sSL}, 7"); e(f"s_cselect_b32 s{t1}, 2, 0"); e(f"s_add_u32 s{t0}, s{t0}, s{t1}"); e(f"s_lshl_b32 s{t0}, s{t0}, 7")
    e(f"v_mov_b32 v{vFl}, {OOB}"); e(f"v_mov_b32 v12, s{t0}"); e("v_cmp_eq_u32 vcc, 0, v0")
    e(f"v_lshlrev_b32 v{vH}, 4, v0"); e(f"v_add_u32 v{vH4}, 4096, v{vH}")
    e(f"v_cndmask_b32 v{vFl}, v{vFl}, v12, vcc")
    e(f"s_mul_i32 s{sSeg1}, s{sW}, 24576"); e(f"s_add_u32 s{sSeg1}, s{sSeg1}, 65536")
    e(f"s_mov_b32 s{sC}, 0xbfb8aa3b")
    e(f"v_mov_b32 v{vOne}, 1")
    e("v_mov_b32 v15, 0")
    e(f"s_or_b32 s{t0}, s{sI}, s{sW}"); e(f"v_or_b32 v250, s{t0}, v0"); e("v_lshlrev_b32 v250, 8, v250")
    def reads(Pn):
        p,s,h=Pn//14,Pn//2,Pn%2
        CH=(p==1 or OPT['chainA']) and not (OPT['split0'] and s==0)
        o=[]
        for ks in ((0,1) if CH else (h,)):
            if p==0 and (h==0 or not CH):
                if s==3: o.append(I(f"v_add_u32 v{vXR[ks]}, 61440, v{vXR[ks]}"))
                for t in range(5): o.append(I(f"ds_read_b128 {XF((2*s+ks)*5+t)}, v{vXR[ks]} offset:{(s%4 if s!=3 else 0)*20480+t*2048}"))
                if s==3: o.append(I(f"v_subrev_u32 v{vXR[ks]}, 61440, v{vXR[ks]}"))
        tr=[]
        for j in range(4):
            if CH: m,ks,tl=j>>1,j&1,h
            else: m,ks,tl=j>>1,h,j&1
            for a in range(2):
                tr.append(I(f"ds_read_b64_tr_b16 {vr(AF(h,j)+2*a,2)}, v{vWR[tl]} offset:{(s%4)*16384+(2*m+ks)*1024+a*512}"))
        return tr[:4]+o+tr[4:]
    def epi(p,t):
        T=[232+k for k in range(8)]; O=240+4*(t%2)
        G=[ACC(p,k>>2,t)+(k&3) for k in range(8)]; U=[ACC(p,2+(k>>2),t)+(k&3) for k in range(8)]
        o=[]
        st=I(f"buffer_store_dwordx4 {vr(O,4)}, v{vH if t<4 else vH4}, {srd(WS)}, s{sHst} offen offset:{(t%4)*1024} {['sc1','sc0 sc1','sc1 nt','sc0 sc1 nt',''][OPT['stf']]}",f"st{p}")
        if p==1:
            for k in range(0,8,2): o.append(I(f"v_pk_mul_f32 {vr(T[k],2)}, {vr(G[k],2)}, s[48:49]"))
            for k in range(8):
                o.append(I(f"v_exp_f32 v{T[k]}, v{T[k]}"))
                if k%2==0: o.append(I(f"v_pk_mul_f32 {vr(U[k],2)}, {vr(G[k],2)}, {vr(U[k],2)}"))
            for k in range(0,8,2): o.append(I(f"v_pk_add_f32 {vr(T[k],2)}, {vr(T[k],2)}, s[50:51]"))
            for k in range(8):
                o.append(I(f"v_rcp_f32 v{G[k]}, v{T[k]}"))
                if k>=3 and k%2==1:
                    o.append(I(f"v_pk_mul_f32 {vr(U[k-3],2)}, {vr(G[k-3],2)}, {vr(U[k-3],2)}"))
                    if k>=5: o.append(I(f"v_cvt_pk_bf16_f32 v{O+(k-5)//2}, v{U[k-5]}, v{U[k-4]}"))
            o.append(I(f"v_cvt_pk_bf16_f32 v{O+2}, v{U[4]}, v{U[5]}"))
            o.append(I(f"v_pk_mul_f32 {vr(U[6],2)}, {vr(G[6],2)}, {vr(U[6],2)}"))
            o.append(I(f"v_cvt_pk_bf16_f32 v{O+3}, v{U[6]}, v{U[7]}"))
            return o+[st]
        for k in range(8): o.append(I(f"v_mul_f32 v{T[k]}, s{sC}, v{G[k]}"))
        for k in range(8):
            o.append(I(f"v_exp_f32 v{T[k]}, v{T[k]}")); o.append(I(f"v_mul_f32 v{U[k]}, v{G[k]}, v{U[k]}"))
        for k in range(8): o.append(I(f"v_add_f32 v{T[k]}, 1.0, v{T[k]}"))
        for k in range(8):
            o.append(I(f"v_rcp_f32 v{G[k]}, v{T[k]}"))
            if k>=1: o.append(I(f"v_mul_f32 v{U[k-1]}, v{G[k-1]}, v{U[k-1]}"))
            if k>=3 and k%2==1: o.append(I(f"v_cvt_pk_bf16_f32 v{O+(k-3)//2}, v{U[k-3]}, v{U[k-2]}"))
        o.append(I(f"v_mul_f32 v{U[7]}, v{G[7]}, v{U[7]}"))
        o.append(I(f"v_cvt_pk_bf16_f32 v{O+3}, v{U[6]}, v{U[7]}"))
        o.append(I(f"buffer_store_dwordx4 {vr(O,4)}, v{vH if t<4 else vH4}, {srd(WS)}, s{sHst} offen offset:{(t%4)*1024} {['sc1','sc0 sc1','sc1 nt','sc0 sc1 nt',''][OPT['stf']]}",f"st{p}"))
        return o
    D.setup_lane([R1,R2],[sSeg1,sSeg2],sT[:4]); D.setup_io(sF0,sN,sT[:4])
    e(f"s_cmp_ge_u32 s{sF0}, 125"); e(f"s_cselect_b32 s47, {OOB}, 0"); e(f"v_or_b32 v251, s47, v{vH}"); e(f"v_or_b32 v252, s47, v{vH4}")
    e(f"s_mov_b32 s48, s{sC}"); e(f"s_mov_b32 s49, s{sC}"); e("s_mov_b32 s50, 1.0"); e("s_mov_b32 s51, 1.0")
    e(f"s_add_u32 s{t0}, s{sSeg2}, 147456"); e(f"v_add_u32 v249, s{t0}, v{vH}")
    for q in range(4): e(f"ds_write_b128 v249, {vr(176+4*q,4)} offset:{q*1024}")
    unpark=[I(f"ds_read_b128 {vr(176+4*q,4)}, v249 offset:{q*1024}") for q in range(4)]
    P.extend(flat(pro[OPT['early']:]))
    P.append(WAIT(vm=["x0","w0a"]+([] if OPT['split0'] else ["w0"]),lgkm=0)); e("s_barrier")
    P.extend(stamp(1))
    P.extend(reads(0))
    first=[]
    if OPT['npre']==1:
        first=xdma(1)+wdma(1); P.extend(flat(first[:OPT['pre1']])); first=first[OPT['pre1']:]
    P.append(WAIT(lgkm=0))
    pool=Pool(flat([epi(0,t) for t in range(5)]))
    dq=[]
    for s in range(max(2,OPT['npre']),14):
        if s<=6: dq.append((max(0,2*(s-4)+1),xdma(s)))
        dq.append((max(0,2*(s-4)+1),wdma(s)))
        if s==8: dq.append((0,[[I(f"buffer_load_dword v14, v15, {srd(DBG)}, 0 offen sc1","clr")]]))
    w2q=[(max(OPT['w2p0'],LOC[b][1]),D.w2dma(b)) for b in range(10)]
    cur=first
    for Pn in range(28):
        p,s,h=Pn//14,Pn//2,Pn%2
        CH=(p==1 or OPT['chainA']) and not (OPT['split0'] and s==0)
        mf=[]
        for jq in range(2 if CH else 4):
            for t in range(5):
                for ks in ((0,1) if CH else (h,)):
                    q = (2*jq+h) if CH else jq
                    j = (2*jq+ks) if CH else jq
                    d=vr(ACC(p,q,t),4)
                    mf.append(mfma(d,vr(AF(h,j),4),XF((2*(s%7)+ks)*5+t),"0" if (s%7==0 and ks==0) else d))
        f=[]
        if Pn<27:
            rd=reads(Pn+1)
            if Pn==0 and OPT['split0']:
                xs=[x for x in rd if "b128" in x.op]; tr=[x for x in rd if "b128" not in x.op]
                f+=spread(xs,0,5)+[(7.9,WAIT(vm=["w0"])),(7.95,I("s_barrier"))]+spread(tr,8,16)
            else: f+=spread(rd,0,min(12,len(rd)))
        items=[]
        while len(items)<(OPT['rateA'] if Pn<OPT['nA'] else OPT['rate']):
            if not cur:
                if dq and dq[0][0]<=Pn: cur=dq.pop(0)[1]
                elif w2q and w2q[0][0]<=Pn: cur=w2q.pop(0)[1]
                else: break
            items.append(cur.pop(0))
        n=len(items)
        for k,it in enumerate(items):
            pos=1+k*(19 if Pn else 14)/max(n,5)
            for x in it:
                f.append((pos-1 if x.cls=="salu" else (pos+1 if x.cls=="valu" else pos),x))
        if Pn==16: f+=spread(unpark,8,12)
        if Pn==OPT['gop']: f.append((19,I(f"buffer_store_dword v{vOne}, v250, {srd(DBG)}, 0 offen offset:4 sc1","go")))
        tl=[]
        if h==0: tl=[WAIT(vm=[f"w{s+1}",f"x{s+1}"],lgkm=0),I("s_barrier")]
        elif Pn<27: tl=[WAIT(lgkm=0)]
        n0=len(P)
        if OPT['p2']:
            P.extend(pack2(mf,f,pool if p==1 else None,(OPT['capc']-2 if Pn<OPT['cp'] and p==1 else 0),lo=(2 if Pn==14 else 0),tail=tl,dsend=16))
        else:
            P.extend(pack(mf,f,pool if p==1 else None,(OPT['capc'] if Pn<OPT['cp'] else OPT['cap']),lo=(2 if Pn==14 else 0))); P.extend(tl)
        if OPT['est']: print("ffn period",Pn,estimate(P[n0:]),"pool",len(pool.q))
        if Pn==13: P.extend(stamp(2))
        if h==0: P.extend(stamp(32+s))
    assert not dq
    print("left: epiA ops",len(pool.q),"w2 items",len(w2q))
    P.extend(stamp(3))
    P.extend(pool.q)
    P.extend(flat(cur))
    for _,g_ in w2q: P.extend(flat(g_))
    e(f"s_add_u32 s{sHst}, s{sHst}, {2*NT*1024}")
    S=[WAIT(vm=["b0"])]+D.treads(0)
    for j in range(8):
        S+=[WAIT(vm=[f"b{j+1}"])]+D.treads(j+1)+[WAIT(lgkm=8)] if j<7 else [WAIT(lgkm=0)]
        if OPT['pA']==5+j: S.append(D.poll("pollA"))
        S+=[x for x in flat(D.w2dma(10+j)) if not (x.cls=="vm" and j>=8-OPT['skipS'])]
        if j+1==OPT['nin']: n_in=len(S)
        if j+1==OPT['sBs']+OPT['nin']:
            S+=[WAIT(vm=["st1"]),I(f"buffer_atomic_add v{vOne}, v{vFl}, {srd(WS)}, 0 offen offset:512","sigB")]+stamp(10)
    E=[]
    for t in range(5):
        E+=epi(1,t)+stamp(46+t)
        if t==OPT['sAt']: E.append("sigA")
    k0=0
    for k,x in enumerate(E):
        if x=="sigA":
            P.append(WAIT(vm=["st0","clr"])); check_or_spin(15,0,1,DBG,14)
            e(f"buffer_atomic_add v{vOne}, v{vFl}, {srd(WS)}, 0 offen","sigA")
        else: P.append(x)
        k1=max(k0,n_in*(k+1)//len(E))
        while 0<k1<len(S) and S[k1-1].cls=="ds" and S[k1].cls=="ds": k1+=1
        P.extend(S[k0:k1]); k0=k1
    P.extend(stamp(4))
    P.extend(S[k0:])
    D.main([],OPT['lead'],OPT['pah'])

HROW=[118784,49152,118784,65536,81920,139264,49152,0,118784,65536,16384,32768,98304,81920,139264,49152,0,118784]
hR=[[1,2,4,5],[64,65,66,67],[68,69,70,71]]; hsN,hsF0,hsQ=58,59,57
HD=Down(NTT=3,vt=(240,241,242),vW2=3,vWo=6,vH=231,vHt=(231,231),sLast=47,vPoll=12,vPA=72,vPO=73,vSA=74,vO=75,vRW=76,vRR=77,vS=80,vRT=96,
        sW2o=[None,40,41,42],sWr2=43,sNW2=47,sNH=48,sD=49,sWr3=50,sNWo=51,sNHo=52,sHld=53,sHO=54,sRow=55,
        m0=lambda b:(hsQ,HROW[b]),rd=lambda b:(hR[HROW[b]>>16],HROW[b]&0xffff),red=(0,4096,16384),
        ACC=lambda q,t:16+(q*3+t)*4,AF=lambda buf,q:160+16*buf+4*q,aSt=128,aH=0,nAS=10,NSL=10,vHS=0)
def helper_setup(regs):
    t=sT[:4]; t=[66,67,70,71]
    mksrd(WO,44,401408); mksrd(WD,52,1605632); mksrd(OUT,56,1835008)
    e(f"s_mul_i32 s{hsF0}, s{sXCD}, 3"); e(f"s_add_u32 s{hsF0}, s{hsF0}, 104"); e(f"s_add_u32 s61, s{sXCD}, 26"); e(f"s_lshl_b32 s{hsQ}, s{sW}, 12")
    keep=(HD.vW2,HD.vWo); HD.vW2,HD.vWo=regs[0],regs[1]
    HD.setup_w(hsF0,61,hsN,t)
    e(f"s_cmp_gt_u32 s{hsN}, 6"); e(f"s_cselect_b32 s66, {OOB}, 0"); e(f"v_or_b32 v{regs[0]}, s66, v{regs[0]}"); e(f"v_or_b32 v{regs[1]}, s66, v{regs[1]}")
    HD.vW2,HD.vWo=keep
    HD.setup_lane([regs[2:6]],[hsQ],t)
    e("v_lshlrev_b32 v231, 4, v0")
    HD.setup_io(hsF0,hsN,t)
    for j in range(8): e(f"v_accvgpr_write_b32 a{248+j}, v{72+j}")
hwin=[0]
def hstage(b):
    o=[]; w=HROW[b]>>16
    if w!=hwin[0]: o+=[I(f"v_add_u32 v{r}, {((w-hwin[0])<<16)&0xffffffff}, v{r}") for r in hR[0]]; hwin[0]=w
    return o+HD.treads(b,lambda b_:(hR[0],HROW[b_]&0xffff))

def attn():
    sAT,sHG=72,73
    sXb,sWb=74,75
    sWo={(0,0):76,(0,1):77,(1,0):78,(1,1):79,(2,0):80,(2,1):81}
    sK,sD0,sD1,sO,sC=82,83,84,85,86
    mE,mM0,mM1,mZ=88,90,100,68
    t0,t1=66,67; t2_,t3=70,71
    vX=[1,2,3,4,5]; vW=6; vXR=(7,8); vR0=(9,10); vR1=(11,12); vRq=(13,14); vPad=15
    vA=(224,225)
    TBL=159744; XB=98304
    Q=lambda u,tl: 16+(u*2+tl)*4
    K=lambda t,tl: 80+(t*2+tl)*4
    V=lambda d,t: 152+d*36+t*4
    XA=lambda buf,t: buf*36+4*t
    WF=lambda buf,m,tl: 72+buf*24+(2*m+tl)*4
    e("L_attn:")
    e(f"s_lshr_b32 s{sAT}, s{sXCD}, 2"); e(f"s_lshl_b32 s{sAT}, s{sAT}, 3"); e(f"s_add_u32 s{sAT}, s{sAT}, s{sJ}"); e(f"s_sub_u32 s{sAT}, s{sAT}, 1"); e(f"s_and_b32 s{sHG}, s{sXCD}, 3")
    e("v_lshrrev_b32 v230, 3, v0"); e("v_and_b32 v231, 7, v0")
    e(f"s_and_b32 s{t0}, s{sW}, 1"); e(f"s_lshl_b32 s{t1}, s{t0}, 2")
    e("v_lshrrev_b32 v232, 1, v230"); e(f"v_or_b32 v232, s{t1}, v232"); e("v_xor_b32 v232, v232, v231"); e("v_lshlrev_b32 v232, 4, v232")
    e(f"s_lshl_b32 s{t2_}, s{sAT}, 7"); e(f"s_lshl_b32 s{t3}, s{sW}, 3"); e(f"s_add_u32 s{t2_}, s{t2_}, s{t3}")
    e(f"v_add_u32 v{vX[0]}, s{t2_}, v230"); e(f"v_mul_u32_u24 v{vX[0]}, 896, v{vX[0]}"); e(f"v_add_u32 v{vX[0]}, v{vX[0]}, v232")
    for j in range(1,5): e(f"v_add_u32 v{vX[j]}, {32*j*896}, v{vX[0]}")
    e(f"s_cmp_lt_u32 s{t2_}, 16"); e(f"s_cselect_b32 s{t0}, {OOB}, 0"); e(f"v_or_b32 v{vX[0]}, s{t0}, v{vX[0]}")
    e(f"s_cmp_ge_u32 s{sW}, 2"); e(f"s_cselect_b32 s{t0}, {OOB}, 0"); e(f"v_or_b32 v{vX[4]}, s{t0}, v{vX[4]}")
    e("v_lshrrev_b32 v230, 4, v0"); e("v_and_b32 v231, 15, v0")
    e(f"s_and_b32 s{t0}, s{sW}, 2"); e(f"s_lshl_b32 s{t0}, s{t0}, 1"); e(f"v_or_b32 v232, s{t0}, v230"); e("v_lshlrev_b32 v232, 1, v232"); e("v_xor_b32 v232, v232, v231")
    e(f"s_lshl_b32 s{t0}, s{sW}, 2"); e(f"v_add_u32 v{vW}, s{t0}, v230"); e(f"v_mul_u32_u24 v{vW}, 2688, v{vW}")
    e(f"v_lshl_add_u32 v{vW}, v232, 4, v{vW}"); e(f"s_mul_i32 s{t0}, s{sHG}, 224"); e(f"v_add_u32 v{vW}, s{t0}, v{vW}")
    e(f"v_mov_b32 v233, {OOB}"); e("v_cmp_lt_u32 vcc, 13, v232"); e(f"v_cndmask_b32 v{vW}, v{vW}, v233, vcc")
    sWr,sD,sNW,sKx,sKt=92,93,99,87,3
    e(f"s_lshl_b32 s{t0}, s{sHG}, 1"); e(f"s_add_u32 s{t0}, s{t0}, s{sAT}")
    if OPT['arot']==7:
        e(f"s_mul_i32 s{t1}, s{t0}, 9363"); e(f"s_lshr_b32 s{t1}, s{t1}, 16"); e(f"s_mul_i32 s{t1}, s{t1}, 7"); e(f"s_sub_u32 s{t0}, s{t0}, s{t1}")
    elif OPT['arot']==2: e(f"s_and_b32 s{t0}, s{t0}, 1"); e(f"s_mul_i32 s{t0}, s{t0}, 3")
    elif OPT['arot']==4: e(f"s_and_b32 s{t0}, s{sAT}, 3"); e(f"s_lshl_b32 s{t0}, s{t0}, 1")
    else: e(f"s_mov_b32 s{t0}, 0")
    e(f"s_sub_u32 s{sWr}, 6, s{t0}"); e(f"s_lshl_b32 s{sKx}, s{t0}, 7"); e(f"s_lshl_b32 s{sKt}, s{t0}, 9")
    e(f"s_mul_i32 s{t1}, s{t0}, {64*2688}"); e(f"v_add_u32 v{vW}, s{t1}, v{vW}"); e(f"s_mov_b32 s{sNW}, {-13*32*2688}")
    e(f"s_lshl_b32 s{sXb}, s{sW}, 10"); e(f"s_add_u32 s{sXb}, s{sXb}, {XB}")
    e(f"s_mul_i32 s{sWb}, s{sW}, 6144")
    for (m,j),r in sWo.items():
        imm=((2*m+j)%4)*1024
        e(f"s_mov_b32 s{r}, {4096+m*896+16*j*2688-imm}")
    e(f"s_lshl_b32 s{t0}, s{sW}, 6"); e(f"v_add_u32 v234, s{t0}, v0"); e("v_lshlrev_b32 v235, 2, v234")
    e("s_waitcnt lgkmcnt(0)")
    mksrd(GW,54,896); mksrd(X,40,1835008,14336); mksrd(WA,42,1204224,4096)
    P.extend(stamp(0))
    if OPT['ap1']:
        sV=46
        e(f"s_lshl_b32 s{sV}, s{sAT}, 2"); e(f"s_add_u32 s{sV}, s{sV}, s{sHG}"); e(f"s_lshl_b32 s{sV}, s{sV}, 2"); e(f"s_add_u32 s{sV}, s{sV}, s{sW}")
        e("v_min_u32 v240, 47, v0"); e("v_mul_u32_u24 v241, 21846, v240"); e("v_lshrrev_b32 v241, 16, v241"); e("v_mul_u32_u24 v242, 3, v241"); e("v_sub_u32 v242, v240, v242")
        e(f"s_lshl_b32 s{t0}, s{sV}, 4"); e(f"v_add_u32 v243, s{t0}, v241"); e("v_mul_u32_u24 v243, 896, v243"); e("v_lshl_add_u32 v243, v242, 8, v243"); e("v_add_u32 v243, 128, v243")
        e(f"s_and_b32 s{t0}, s{sV}, 63"); e("v_min_u32 v241, 13, v241"); e("v_lshlrev_b32 v242, 7, v242"); e(f"v_add_u32 v242, s{t0}, v242"); e("v_add_u32 v242, 64, v242")
        e("v_mul_u32_u24 v242, 3584, v242"); e("v_lshl_add_u32 v242, v241, 8, v242")
        e(f"s_cmp_ge_u32 s{sV}, 192"); e(f"s_cselect_b32 s{WU}, s50, s48"); e(f"s_cselect_b32 s{WU+1}, s51, s49")
        e(f"s_cmp_lt_u32 s{sV}, 128"); e(f"s_cselect_b32 s{WU}, s40, s{WU}"); e(f"s_cselect_b32 s{WU+1}, s41, s{WU+1}"); e(f"s_cselect_b64 vcc, -1, 0")
        e(f"s_mov_b32 s{WU+2}, 1605632"); e(f"s_cselect_b32 s{WU+2}, 1835008, s{WU+2}"); e(f"s_mov_b32 s{WU+3}, 0x20000")
        e("v_cndmask_b32 v242, v242, v243, vcc")
        e(f"buffer_load_dword a140, v242, {srd(WU)}, 0 offen","pf")
    e(f"buffer_load_dword v236, v235, {srd(GW)}, 0 offen","gw")
    def xdma(c):
        o=[I(f"s_mov_b32 s{sK}, s{sKx}"),I(f"s_add_u32 s{sKx}, s{sKx}, 128"),ATOM(f"s_cmp_eq_u32 s{sWr}, {c}",f"s_cselect_b32 s{sKx}, 0, s{sKx}")]
        for j in range(5):
            o.append(I(f"s_add_u32 m0, s{sXb}, {(c%3)*20480+j*4096}"))
            o.append(dma(vX[j],X,f"s{sK}",0,f"x{c}"))
        return o
    def wdma(k):
        o=[]
        for m in range(3):
            if m!=1: o.append(I(f"s_add_u32 m0, s{sWb}, {(k%4)*24576+(4096 if m==2 else 0)}"))
            for j in range(2): o.append(dma(vW,WA,f"s{sWo[(m,j)]}",((2*m+j)%4)*1024,f"w{k}"))
        if k%2==1:
            o[-1:-1]=[ATOM(f"s_cmp_eq_u32 s{sWr}, {k//2}",f"s_cselect_b32 s{sD}, s{sNW}, {32*2688}")]
            o.append(I(f"v_add_u32 v{vW}, s{sD}, v{vW}"))
        else: o.append(I(f"v_add_u32 v{vW}, {32*2688}, v{vW}"))
        return o
    pro=xdma(0)+wdma(0)+wdma(1)
    cutp=[k for k,x in enumerate(pro) if x.cls=="vm"][OPT['aearly']-1]+1 if OPT['aearly'] else 0
    P.extend(pro[:cutp])
    aq=[(0,xdma(1)),(0,wdma(2)),(0,wdma(3)),(0,xdma(2))]
    for k in range(4,14):
        aq.append((k-4+(1 if k-4<OPT['amid'] else 0),wdma(k)))
        if k%2==1 and (k+1)//2<=6: aq.append((2*((k+1)//2-3)+1+(1 if 2*((k+1)//2-3)+1<OPT['amid'] else 0),xdma((k+1)//2)))
    acur=[]
    mksrd(WS,60,WSN); mksrd(DBG,58,256)
    HELP=OPT['ntt']==4
    APW=[94,95,96,97] if not (OPT['stamp'] or OPT['probe']!=-2) else [12,13,14,15]
    if OPT['apW']>=0:
        if APW[0]==12: APW=[4+60+0,0,0,0]
    APW=[48,49,50,51]
    if HELP: e(f"s_and_b32 s{t0}, s{sXCD}, 3"); e(f"s_cmp_eq_u32 s{t0}, 3"); e(f"s_cselect_b32 s{t0}, 1, 0"); e(f"s_add_u32 s{hsN}, s{sJ}, s{t0}")
    if HELP:
        helper_setup([232,233,234+9,245,246,247])
        for j,r in enumerate([232,243,245,246,247,233]): e(f"v_accvgpr_write_b32 a{122+j}, v{r}")
    else: mksrd(WO,44,401408); mksrd(WD,52,1605632)
    e(f"s_sub_u32 s{t0}, s{sJ}, 1"); e(f"s_lshl_b32 s{t0}, s{t0}, 2"); e(f"s_add_u32 s{t0}, s{t0}, s{sW}"); e(f"s_lshl_b32 s{t0}, s{t0}, 6")
    e(f"v_add_u32 v227, s{t0}, v0"); e("v_lshlrev_b32 v226, 7, v227"); e(f"s_mov_b32 s36, {2048*128}")
    if OPT['apW']>=0:
        e(f"s_lshl_b32 s{t0}, s{sAT}, 2"); e(f"s_add_u32 s{t0}, s{t0}, s{sHG}"); e(f"s_lshl_b32 s{t0}, s{t0}, 2"); e(f"s_add_u32 s{t0}, s{t0}, s{sW}")
        e(f"s_cmp_ge_u32 s{t0}, 128"); e(f"s_cselect_b32 s{WU}, s{APW[2]}, s{APW[0]}"); e(f"s_cselect_b32 s{WU+1}, s{APW[3]}, s{APW[1]}"); e(f"s_mov_b32 s{WU+2}, 1605632"); e(f"s_mov_b32 s{WU+3}, 0x20000")
        e(f"s_and_b32 s{t0}, s{t0}, 127"); e(f"s_mul_i32 s{t0}, s{t0}, 49"); e("v_min_u32 v238, 48, v0"); e(f"v_add_u32 v238, s{t0}, v238"); e("v_lshlrev_b32 v238, 8, v238"); e("v_add_u32 v238, 128, v238")
        e("v_accvgpr_write_b32 a129, v238")
    if OPT['apA']>=0 or OPT['apB']>=0:
        e("v_mul_u32_u24 v228, 9363, v227"); e("v_lshrrev_b32 v228, 22, v228"); e("v_mul_u32_u24 v228, 448, v228"); e("v_add_u32 v228, v228, v227"); e("v_lshlrev_b32 v228, 7, v228")
        e("v_cmp_lt_u32 vcc, 1791, v227"); e(f"v_mov_b32 v229, {OOB}"); e("v_cndmask_b32 v227, v228, v229, vcc"); e(f"v_add_u32 v239, {448*128}, v227"); e("v_accvgpr_write_b32 a128, v239")
        for j in range(1,4): e(f"s_mov_b32 s{36+j}, {3584*128*j}")
    e("v_lshrrev_b32 v230, 4, v0"); e("v_and_b32 v231, 15, v0")
    e("v_lshrrev_b32 v232, 1, v231"); e("v_xor_b32 v232, v232, v230"); e("v_lshlrev_b32 v232, 4, v232")
    e("v_lshl_add_u32 v232, v231, 7, v232"); e(f"v_add_u32 v{vXR[0]}, {XB}, v232"); e(f"v_xor_b32 v{vXR[1]}, 64, v{vXR[0]}")
    e("v_bfe_u32 v232, v0, 2, 2"); e("v_and_b32 v233, 3, v0")
    e("v_and_b32 v237, 1, v230"); e("v_lshl_add_u32 v238, v237, 2, v232"); e("v_lshlrev_b32 v238, 2, v238")
    e("v_mul_u32_u24 v237, 12288, v237"); e("v_lshrrev_b32 v239, 1, v230"); e("v_lshl_add_u32 v237, v239, 10, v237"); e("v_lshl_add_u32 v237, v232, 8, v237")
    e(f"s_mul_i32 s{t0}, s{sW}, 7")
    e(f"v_add_u32 v239, s{t0}, v233")
    e("v_xor_b32 v240, v239, v238"); e(f"v_lshl_add_u32 v{vR0[0]}, v240, 3, v237")
    e("v_add_u32 v239, 4, v239")
    e("v_and_b32 v240, 3, v239"); e("v_or_b32 v240, 28, v240"); e("v_cmp_eq_u32 vcc, 3, v233"); e("v_cndmask_b32 v239, v239, v240, vcc")
    e("v_xor_b32 v240, v239, v238"); e(f"v_lshl_add_u32 v{vR1[0]}, v240, 3, v237")
    e(f"v_cndmask_b32 v{vPad}, 0, 1, vcc")
    e(f"v_add_u32 v{vR0[1]}, 49152, v{vR0[0]}"); e(f"v_add_u32 v{vR1[1]}, 49152, v{vR1[0]}")
    e("v_lshl_add_u32 v240, v230, 3, v232"); e("v_lshlrev_b32 v240, 3, v240"); e(f"v_add_u32 v240, {TBL}, v240")
    e(f"v_cndmask_b32 v{vRq[0]}, v{vR1[0]}, v240, vcc"); e(f"v_cndmask_b32 v{vRq[1]}, v{vR1[1]}, v240, vcc")
    P.append(WAIT(vm=["gw"]))
    e("v_and_b32 v244, 0xffff, v236"); e("v_mov_b32 v245, 0"); e("v_lshrrev_b32 v246, 16, v236"); e("v_mov_b32 v247, 0")
    e("v_lshlrev_b32 v234, 4, v234"); e(f"v_add_u32 v234, {TBL}, v234")
    e("ds_write_b128 v234, v[244:247]")
    def reads(k):
        sl=k%4; h=sl//2; buf=k%2
        pre=[]; tr=[]
        for a in range(2):
            imm=(sl%2)*24576+a*6144
            pre.append(I(f"s_add_u32 s{(sD0,sD1)[a]}, s{sKt}, {(256*(k%2)+32*a-imm)&0xffffffff}"))
            pre.append(I(f"v_mad_i32_i24 v{vA[a]}, v{vPad}, s{(sD0,sD1)[a]}, v{vRq[h]}"))
        for m in range(3):
            for tl in range(2):
                for a in range(2):
                    ad = vR0[h] if tl==0 else (vA[a] if m==0 else vR1[h])
                    tr.append(I(f"ds_read_b64_tr_b16 {ar(WF(buf,m,tl)+2*a,2)}, v{ad} offset:{(sl%2)*24576+a*6144+m*2048}"))
        xs=[I(f"ds_read_b128 {ar(XA(buf,t),4)}, v{vXR[k%2]} offset:{((k//2)%3)*20480+t*2048}") for t in range(9)]
        if k%2==1: pre+=[I(f"s_add_u32 s{sKt}, s{sKt}, 512"),ATOM(f"s_cmp_eq_u32 s{sWr}, {k//2}",f"s_cselect_b32 s{sKt}, 0, s{sKt}")]
        return pre+tr[:2]+xs+tr[2:]
    P.extend(pro[cutp:])
    P.append(WAIT(vm=["x0","w0"],lgkm=0)); e("s_barrier")
    P.extend(stamp(1))
    P.extend(reads(0))
    if OPT['amid']: P.append(WAIT(lgkm=0))
    else: P.append(WAIT(vm=["w1"],lgkm=0)); e("s_barrier")
    cA0,cB0,cA1,cB1,vNeg,vH,vH4,vSt,vFl=226,227,228,229,230,231,250,251,252
    import struct
    f2u=lambda x: struct.unpack("<I",struct.pack("<f",x))[0]
    n0=len(P)
    e("v_lshrrev_b32 v232, 4, v0"); e("v_and_b32 v233, 15, v0")
    e("v_and_b32 v234, 1, v233"); e(f"v_cmp_eq_u32 s[{mE}:{mE+1}], 0, v234")
    e("v_lshl_add_u32 v235, v232, 2, v234"); e(f"v_cmp_le_u32 s[{mM0}:{mM0+1}], v235, v233")
    e("v_add_u32 v235, 2, v235"); e(f"v_cmp_le_u32 s[{mM1}:{mM1+1}], v235, v233")
    e("v_mov_b32 v236, 0xffff0000"); e("v_mov_b32 v237, 0xffff"); e(f"v_lshlrev_b32 v{vH}, 4, v0"); e(f"v_add_u32 v{vH4}, 4096, v{vH}")
    e(f"v_cndmask_b32 v236, v236, v237, s[{mE}:{mE+1}]")
    e(f"v_cndmask_b32 v{cA0}, 0, v236, s[{mM0}:{mM0+1}]"); e(f"v_xor_b32 v{cB0}, v{cA0}, v236")
    e(f"v_cndmask_b32 v{cA1}, 0, v236, s[{mM1}:{mM1+1}]"); e(f"v_xor_b32 v{cB1}, v{cA1}, v236")
    e(f"v_mov_b32 v{vNeg}, 0xf149f2ca")
    P.append(ATOM(f"s_cmp_eq_u32 s{sAT}, 0",f"s_cselect_b64 s[{mZ}:{mZ+1}], -1, 0"))
    e(f"s_mov_b32 s{sC}, {f2u(28**-0.5*math.log2(math.e)):#x}"); e(f"s_mov_b32 s{sK}, 0x3fb8aa3b")
    e(f"s_lshl_b32 s{t0}, s{sHG}, 2"); e(f"s_add_u32 s{t0}, s{t0}, s{sW}"); e(f"s_add_u32 s{t0}, s{t0}, 56"); e(f"s_mul_i32 s{t0}, s{t0}, {NT}")
    e(f"s_lshl_b32 s{t1}, s{sAT}, 3"); e(f"s_add_u32 s{t0}, s{t0}, s{t1}"); e(f"s_lshl_b32 s{t0}, s{t0}, 10"); e(f"s_add_u32 s{sO}, s{t0}, {H0}")
    e(f"s_mul_i32 s{t0}, s{sHG}, {SSTR}"); e(f"s_lshl_b32 s{t1}, s{sAT}, 9"); e(f"s_add_u32 s{t0}, s{t0}, s{t1}"); e(f"s_add_u32 s{t0}, s{t0}, {S0}")
    P.append(ATOM(f"s_cmp_eq_u32 s{sW}, 0",f"s_cselect_b32 s{t0}, s{t0}, {OOB}"))
    e(f"v_lshlrev_b32 v{vSt}, 2, v0"); e(f"v_add_u32 v{vSt}, s{t0}, v{vSt}")
    e(f"s_lshl_b32 s{t0}, s{sAT}, 2"); e(f"s_add_u32 s{t0}, s{t0}, s{sHG}"); e(f"s_add_u32 s{t0}, s{t0}, 208"); e(f"s_lshl_b32 s{t0}, s{t0}, 7")
    e("v_min_u32 v238, 1, v0"); e("v_lshlrev_b32 v238, 31, v238"); e(f"v_or_b32 v{vFl}, s{t0}, v238")
    apool=Pool(P[n0:]); del P[n0:]
    U=range(8)
    A=lambda u: 232+u; B=lambda u: 240+u; M=lambda u: 170+u; T=lambda u: 178+u; L=lambda u: 206+u
    SP=lambda u: K(u,1); SO=lambda u: Q(u,1); PQ=lambda u: Q(u,0)
    ZC=(224,225)
    def pk(d,a): return I(f"v_cvt_pk_bf16_f32 v{d}, v{a}, v{a+1}")
    def pack4(d,a,b): return [pk(d,a),pk(d+1,a+2),pk(d+2,b),pk(d+3,b+2)]
    def seq(groups,cap=2):
        f=[]; g=0; room=cap
        for mg,ins in groups:
            for x in ins:
                if g<mg: g=mg; room=cap
                if cost(x)>room: g+=1; room=cap
                f.append((g,x)); room-=cost(x)
        return f
    for k in range(14):
        buf=k%2; mf=[]
        c=lambda d: "0" if k==0 else d
        two=lambda n: [(x,tl) for x in range(n) for tl in range(2)] if k==13 else [(x,tl) for tl in range(2) for x in range(n)]
        for u,tl in two(8): d=vr(Q(u,tl),4); mf.append(mfma(d,ar(WF(buf,0,tl),4),ar(XA(buf,u+1),4),c(d)))
        for t,tl in two(9): d=vr(K(t,tl),4); mf.append(mfma(d,ar(WF(buf,1,tl),4),ar(XA(buf,t),4),c(d)))
        for tl in range(2):
            for t in range(9): d=vr(V(tl,t),4); mf.append(mfma(d,ar(XA(buf,t),4),ar(WF(buf,2,tl),4),c(d)))
        f=[]
        if k<OPT['amid']:
            f+=[(25.9,WAIT(vm=[f"w{k+1}",f"x{(k+1)//2}"])),(25.95,I("s_barrier"))]+spread(reads(k+1),26,47)
        elif k<13: f+=spread(reads(k+1),0,36)
        dm=[]; nd=0
        while nd<OPT['arate']:
            if not acur:
                if aq and aq[0][0]<=k: acur=list(aq.pop(0)[1])
                else: break
            x=acur.pop(0); dm.append(x); nd+=(x.cls=="vm")
            while acur and acur[0].cls=="valu": dm.append(acur.pop(0))
        if k==8:
            dm.append(I("v_mov_b32 v249, 0")); dm.append(I(f"buffer_load_dword v248, v249, {srd(DBG)}, 0 offen sc1","clr"))
        if OPT['apf'] and OPT['apfk']<=k<OPT['apfk']+3:
            kk=k-OPT['apfk']
            if kk==0: dm+=[I(f"buffer_load_dword a{120+j}, v226, {srd(WO)}, {['0','s36'][j]} offen","pf") for j in range(2)]
        if k==OPT['apW']: dm+=[I("v_accvgpr_read_b32 v238, a129"),I(f"buffer_load_dword a138, v238, {srd(WU)}, 0 offen","pf")]
        for base,k0,av in ((130,OPT['apA'],227),(134,OPT['apB'],239)):
            if k0>=0 and k0<=k<k0+2:
                if av==239 and k==k0: dm.append(I("v_accvgpr_read_b32 v239, a128"))
                dm+=[I(f"buffer_load_dword a{base+2*(k-k0)+j}, v{av}, {srd(WD)}, {['0','s37','s38','s39'][2*(k-k0)+j]} offen","pf") for j in range(2)]
        if HELP:
            if k==8:
                assert all(x.tag[0]!="x" for x in dm+acur+flat([g_ for _,g_ in aq]) if x.cls=="vm")
                f+=spread([I(f"v_accvgpr_read_b32 v{r}, a{122+j}") for j,r in enumerate([HD.vW2]+hR[0])],44,51)
            for b in {9:[0],10:[1],11:[2,3,4],12:[5,6,7],13:list(range(8,8+OPT['hp13']))}.get(k,[]):
                assert not acur
                dm+=flat(HD.w2dma(b))
            sb={10:[0],11:[1],12:[2,3]}.get(k,[])
            if sb: f+=spread([WAIT(vm=[f"b{sb[-1]}"])]+flat([hstage(b) for b in sb]),36.5,50)
        pos=0; nd=0
        for x in dm:
            if x.cls=="vm": nd+=1
            pos=max(pos+0.001,4.3*nd-(2 if x.cls=="vm" else (1 if x.cls=="valu" else -1))); f.append((pos,x))
        if k==13:
            assert not apool.q and not aq and not acur
            for u in U:
                mf.append(mfma(vr(SP(u),4),vr(K(u,0),4),vr(Q(u,0),4),"0")); mf.append(mfma(vr(SO(u),4),vr(K(u+1,0),4),vr(Q(u,0),4),"0"))
            G=[(2*u+5,pack4(Q(u,0),Q(u,0),Q(u,1))) for u in U]
            zc=[]
            for h in range(2):
                q=[Q(4*h+x,1) for x in range(4)]
                zc.append([I(f"v_permlane16_swap_b32 v{q[2]}, v{q[3]}"),I(f"v_permlane16_swap_b32 v{q[0]}, v{q[1]}"),I(f"v_permlane32_swap_b32 v{q[1]}, v{q[3]}"),
                           I(f"v_mul_f32 v{ZC[h]}, s{sK}, v{q[3]}"),I(f"v_min_f32 v{ZC[h]}, 0x42c80000, v{ZC[h]}"),I(f"v_exp_f32 v{ZC[h]}, v{ZC[h]}"),I(f"v_add_f32 v{7+h}, 1.0, v{ZC[h]}")])
            zi=[x for pr in zip(*zc) for x in pr]
            for t in range(9):
                G.append((16+2*t+5,pack4(K(t,0),K(t,0),K(t,1))))
                if t in (1,3,5): G.append((0,zi[:2] if t==1 else (zi[2:4] if t==3 else zi[4:6])))
            G.append((0,zi[6:8]))
            for d in range(2):
                for t in range(9):
                    G.append((34+9*d+t+4,[pk(V(d,0)+2*t,V(d,t)),pk(V(d,0)+2*t+1,V(d,t)+2)]))
                    if d==0 and t in (2,4,6): G.append((0,zi[8+(t-2):10+(t-2)]))
            f+=seq(G)
        tl=[]
        if k<13: tl=[WAIT(lgkm=0)] if k+1<OPT['amid'] else [WAIT(vm=[f"w{k+2}",f"x{(k+2)//2}"],lgkm=0),I("s_barrier")]
        n0=len(P)
        if OPT['p2']: P.extend(pack2(mf,f,apool if 11<=k<13 else None,tail=tl,dsend=48))
        else: P.extend(pack(mf,f,apool if 11<=k<13 else None)); P.extend(tl)
        if OPT['est']: print("attn period",k,estimate(P[n0:]))
        if k<13: P.extend(stamp(32+k))
    P.extend(stamp(2))
    sE=f"s[{mE}:{mE+1}]"
    n_in0=len(P)
    for u in U:
        e(f"v_cndmask_b32 v{M(u)}, v{SP(u)+1}, v{SP(u)}, {sE}"); e(f"v_cndmask_b32 v{T(u)}, v{SP(u)+3}, v{SP(u)+2}, {sE}")
        e(f"v_cndmask_b32 v{A(u)}, v{SO(u)+1}, v{SO(u)}, {sE}"); e(f"v_cndmask_b32 v{B(u)}, v{SO(u)+3}, v{SO(u)+2}, {sE}")
        if u==0:
            e(f"v_cndmask_b32 v{M(0)}, v{M(0)}, v{vNeg}, s[{mZ}:{mZ+1}]"); e(f"v_cndmask_b32 v{T(0)}, v{T(0)}, v{vNeg}, s[{mZ}:{mZ+1}]")
        e(f"v_cndmask_b32 v{A(u)}, v{M(u)}, v{A(u)}, s[{mM0}:{mM0+1}]"); e(f"v_cndmask_b32 v{B(u)}, v{T(u)}, v{B(u)}, s[{mM1}:{mM1+1}]")
        e(f"v_max_f32 v{M(u)}, v{A(u)}, v{B(u)}")
    def allred(R,op,mid):
        H=(0,4)
        for h in H: e(f"v_permlane32_swap_b32 v{R(h)}, v{R(h+2)}"); e(f"v_permlane32_swap_b32 v{R(h+1)}, v{R(h+3)}")
        for h in H: e(f"{op} v{R(h)}, v{R(h)}, v{R(h+2)}"); e(f"{op} v{R(h+1)}, v{R(h+1)}, v{R(h+3)}")
        for h in H: e(f"v_permlane16_swap_b32 v{R(h)}, v{R(h+1)}")
        for h in H: e(f"{op} v{R(h)}, v{R(h)}, v{R(h+1)}")
        mid(H)
        for h in H: e(f"v_mov_b32 v{R(h+1)}, v{R(h)}")
        for h in H: e(f"v_permlane16_swap_b32 v{R(h)}, v{R(h+1)}")
        for h in H: e(f"v_mov_b32 v{R(h+2)}, v{R(h)}"); e(f"v_mov_b32 v{R(h+3)}, v{R(h+1)}")
        for h in H: e(f"v_permlane32_swap_b32 v{R(h)}, v{R(h+2)}"); e(f"v_permlane32_swap_b32 v{R(h+1)}, v{R(h+3)}")
    def midM(H):
        for h in H: e(f"v_mul_f32 v{M(h)}, s{sC}, v{M(h)}")
    allred(M,"v_max_f32",midM)
    for u in U:
        e(f"v_fma_f32 v{A(u)}, v{A(u)}, s{sC}, -v{M(u)}"); e(f"v_fma_f32 v{B(u)}, v{B(u)}, s{sC}, -v{M(u)}")
    for u in U:
        e(f"v_exp_f32 v{A(u)}, v{A(u)}"); e(f"v_exp_f32 v{B(u)}, v{B(u)}")
        if u: e(f"v_add_f32 v{L(u-1)}, v{A(u-1)}, v{B(u-1)}")
    e(f"v_add_f32 v{L(7)}, v{A(7)}, v{B(7)}")
    def midL(H):
        for h in H: e(f"v_rcp_f32 v{L(h)}, v{L(h)}")
        for h in H: e(f"v_rcp_f32 v{T(h)}, v{7+h//4}")
        for h in H: e(f"v_mul_f32 v{L(h)}, v{L(h)}, v{ZC[h//4]}")
        e(f"buffer_store_dword v{T(0)}, v{vSt}, {srd(WS)}, 0 offen sc1","st"); e(f"buffer_store_dword v{T(4)}, v{vSt}, {srd(WS)}, 0 offen offset:256 sc1","st")
    allred(L,"v_add_f32",midL)
    if HELP and OPT['hin']:
        assert OPT['hp13']==5
        body=P[n_in0:]; del P[n_in0:]
        S2=[I(f"v_accvgpr_read_b32 v{HD.vWo}, a127")]+[I(f"v_accvgpr_read_b32 v{r}, a{248+j}") for j,r in enumerate((9,10,11,12,14,15,186,187))]
        S2+=[WAIT(vm=["b7"])]+flat([hstage(b) for b in range(4,8)])+[WAIT(lgkm=0)]
        nr=len(S2); S2+=flat([flat(HD.w2dma(b)) for b in range(13,13+OPT['hin'])])
        k0=0; n1=len(body)//3
        for k,x in enumerate(body):
            P.append(x)
            k1=max(k0,nr*(k+1)//n1 if k<n1 else nr+(len(S2)-nr)*(k+1-n1)//(len(body)-n1))
            while 0<k1<len(S2) and (S2[k1].cls=="ds" or (S2[k1-1].cls=="valu" and k1<nr-1)): k1+=1
            P.extend(S2[k0:k1]); k0=k1
    def pre(u):
        return [I(f"v_mul_f32 v{A(u)}, v{A(u)}, v{L(u)}"),I(f"v_mul_f32 v{B(u)}, v{B(u)}, v{L(u)}"),
                I(f"v_cvt_pk_bf16_f32 v{A(u)}, v{A(u)}, v{A(u)}"),I(f"v_cvt_pk_bf16_f32 v{B(u)}, v{B(u)}, v{B(u)}"),
                I(f"v_and_b32 v{PQ(u)}, v{cB0}, v{A(u)}"),I(f"v_and_b32 v{PQ(u)+1}, v{cB1}, v{B(u)}"),
                I(f"v_and_b32 v{PQ(u)+2}, v{cA0}, v{A(u)}"),I(f"v_and_b32 v{PQ(u)+3}, v{cA1}, v{B(u)}")]
    def post(u):
        return pack4(PQ(u),SP(u),SO(u))+[I(f"buffer_store_dwordx4 {vr(PQ(u),4)}, v{vH if u<4 else vH4}, {srd(WS)}, s{sO} offen offset:{(u%4)*1024} sc1","st")]
    P.extend(pre(0))
    for u in range(10):
        if u+1<8: a_=pre(u+1)
        else: a_=[]
        P.extend(a_[:2])
        if u<8: P.append(mfma(vr(SP(u),4),vr(V(0,0)+2*u,4),vr(PQ(u),4),"0"))
        P.extend(a_[2:4])
        if u<8: P.append(mfma(vr(SO(u),4),vr(V(1,0)+2*u,4),vr(PQ(u),4),"0"))
        P.extend(a_[4:])
        if u>=2: P.extend(post(u-2))
        elif u==0: e("v_mov_b32 v13, 1")
    P.extend(stamp(3))
    nb=8+OPT['hp13']
    P.append(WAIT(vm=["clr"])); check_or_spin(249,0,1,DBG,248)
    if HELP:
        if OPT['hin']:
            for j,r in enumerate((9,10,11,12,14,15,186,187)): e(f"v_mov_b32 v{72+j}, v{r}")
            e("L_help:")
            P.append(HD.poll("pollA")); nb+=OPT['hin']
        else:
            e("L_help:")
            e(f"v_accvgpr_read_b32 v{HD.vWo}, a127")
            for j in range(8): e(f"v_accvgpr_read_b32 v{72+j}, a{248+j}")
            P.append(HD.poll("pollA"))
            P.append(WAIT(vm=["b7"])); P.extend(flat([hstage(b) for b in range(4,8)]))
        for b in range(nb,nb+OPT['hwin']): P.extend(flat(HD.w2dma(b)))
        nb+=OPT['hwin']
        if hwin[0]: P.extend([I(f"v_add_u32 v{r}, {(-hwin[0]<<16)&0xffffffff}, v{r}") for r in hR[0]])
        for w in (1,2):
            for q in range(4): e(f"v_add_u32 v{hR[w][q]}, {w<<16}, v{hR[0][q]}")
    P.append(WAIT(vm=["st"],lgkm=0))
    e(f"buffer_atomic_add v13, v{vFl}, {srd(WS)}, 0 offen","sig")
    if HELP:
        P.extend(stamp(4))
        e(f"s_cmp_gt_u32 s{hsN}, 6"); e("s_cbranch_scc1 L_hexit")
        HD.main([(0 if b<17 else 24,it) for b in range(nb,18) for it in HD.w2dma(b)],OPT['hlead'],OPT['hpah'],so=50)
        e("L_hexit:")
    P.extend(stamp(4,True))
    if not HELP and (OPT['l2o'] or OPT['l2b']):
        sA,sB,sWv=40,41,42
        e(f"s_mul_i32 s{t0}, s{sXCD}, 23"); e(f"s_lshr_b32 s{t1}, s{sXCD}, 2"); e(f"s_sub_u32 s{t0}, s{t0}, s{t1}"); e(f"s_add_u32 s{t1}, s{t0}, 22")
        for r,d in ((t0,sA),(t1,sB)): e(f"s_mul_i32 s{r}, s{r}, 9363"); e(f"s_lshr_b32 s{d}, s{r}, 16")
        e(f"s_min_u32 s{sB}, s{sB}, 25")
        e(f"s_sub_u32 s{sWv}, s{sJ}, 1"); e(f"s_lshl_b32 s{sWv}, s{sWv}, 2"); e(f"s_add_u32 s{sWv}, s{sWv}, s{sW}")
        e(f"s_sub_u32 s43, s{sB}, s{sA}"); e("s_add_u32 s43, s43, 1"); e("s_mul_i32 s43, s43, 40"); e("s_sub_u32 s43, s43, 1")
        e(f"s_mul_i32 s44, s{sA}, 5")
        def touch(sKap,first,n,step):
            e(f"s_mul_i32 s{t0}, s{sKap}, {NT}"); e(f"s_add_u32 s{t0}, s{t0}, s44"); e(f"s_lshl_b32 s{t0}, s{t0}, 10"); e(f"s_add_u32 s{t0}, s{t0}, {H0}")
            for k in range(n):
                e(f"v_add_u32 v20, {first}, v0") if isinstance(first,str) and k==0 else e(f"v_add_u32 v20, {step if k else first}, v{20 if k else 0}")
                e("v_min_u32 v21, s43, v20"); e("v_lshlrev_b32 v21, 7, v21"); e(f"buffer_load_dword v{24+k}, v21, {srd(WS)}, s{t0} offen sc1","pf")
        if OPT['l2b']:
            LB=lab("NB")
            e(f"s_cmp_ge_u32 s{sWv}, 28"); e(f"s_cbranch_scc1 {LB}")
            e(f"s_lshr_b32 s45, s{sWv}, 1"); e(f"s_and_b32 s46, s{sWv}, 1"); e("s_cmp_ge_u32 s45, 7"); e("s_cselect_b32 s47, 2, 0"); e("s_add_u32 s47, s47, s46")
            e(f"v_min_u32 v22, 4, v0"); e(f"v_add_u32 v22, s{sA}, v22"); e(f"v_min_u32 v22, s{sB}, v22"); e("v_lshlrev_b32 v22, 3, v22"); e("v_add_u32 v22, s47, v22"); e("v_lshlrev_b32 v22, 7, v22")
            spin(22,512,7,WS,23,nap=OPT['nap'])
            e("s_lshl_b32 s45, s45, 2"); e("s_add_u32 s45, s45, s46"); e("s_add_u32 s45, s45, 2")
            touch(45,0,4,64)
            e(LB+":")
        if OPT['l2o']:
            e(f"s_and_b32 s45, s{sWv}, 15"); e("s_lshr_b32 s46, s45, 2")
            e(f"s_lshr_b32 s47, s44, 3"); e(f"s_mul_i32 s48, s{sB}, 5"); e("s_add_u32 s48, s48, 4"); e("s_lshr_b32 s48, s48, 3"); e("s_min_u32 s48, s48, 15")
            e("v_min_u32 v22, 4, v0"); e("v_add_u32 v22, s47, v22"); e("v_min_u32 v22, s48, v22"); e("v_lshlrev_b32 v22, 2, v22"); e("v_add_u32 v22, s46, v22"); e("v_add_u32 v22, 208, v22"); e("v_lshlrev_b32 v22, 7, v22")
            e("s_waitcnt vmcnt(0)"); spin(22,0,4,WS,23,nap=OPT['napo'])
            e("s_add_u32 s45, s45, 56"); e(f"s_lshr_b32 s46, s{sWv}, 4"); e("s_lshl_b32 s46, s46, 6")
            touch(45,"s46",2,128)
    e("s_endpgm")

def spare():
    KN=NAME+"_kernel"
    e("L_spare:")
    e("s_getpc_b64 s[68:69]")
    e("L_pc:")
    e(f"s_sub_u32 s68, s68, L_pc-{KN}"); e("s_subb_u32 s69, s69, 0")
    e(f"s_lshl_b32 s70, s{sW}, 13"); e("v_lshlrev_b32 v1, 7, v0"); e("v_add_u32 v2, s70, v1")
    e(f"v_min_u32 v3, L_end-{KN}-4, v2")
    e("global_load_dword v10, v3, s[68:69]","pf")
    e("v_add_u32 v2, 32768, v2"); e(f"v_min_u32 v3, L_end-{KN}-4, v2")
    e("global_load_dword v11, v3, s[68:69]","pf")
    e("s_waitcnt lgkmcnt(0)")
    mksrd(WS,60,WSN); mksrd(DBG,58,256)
    e(f"s_or_b32 s70, s2, s{sW}"); e("s_cmp_eq_u32 s70, 0"); e("s_cbranch_scc0 L_noclr")
    e("v_lshlrev_b32 v5, 8, v0"); e("v_mov_b32 v6, 0"); e("v_lshlrev_b32 v7, 7, v0"); e("v_mov_b32 v8, 1")
    for k in range(5):
        e(f"buffer_store_dword v6, v7, {srd(WS)}, 0 offen sc1"); e("v_add_u32 v7, 8192, v7")
    e("s_waitcnt vmcnt(0)")
    e(f"buffer_store_dword v8, v5, {srd(DBG)}, 0 offen sc1")
    e("L_noclr:")
    if OPT['tlb']:
        mksrd(WO,44,401408); mksrd(WD,52,1605632); mksrd(OUT,56,1835008)
        e(f"s_cmp_eq_u32 s{sW}, 1"); e("s_cbranch_scc0 L_notlb")
        e(f"v_mul_u32_u24 v20, {NT*1024}, v0"); e("v_lshlrev_b32 v21, 17, v0"); e(f"s_mov_b32 s70, {H0+129*1024}"); e(f"s_mov_b32 s71, {H0+129*1024+64*NT*1024}")
        e(f"buffer_load_dword v22, v20, {srd(WS)}, s70 offen","pf"); e(f"buffer_load_dword v23, v20, {srd(WS)}, s71 offen","pf")
        e(f"s_mov_b32 s70, {S0-128}"); e(f"buffer_load_dword v27, off, {srd(WS)}, s70","pf")
        for k,sr in enumerate((WD,WO,OUT)): e(f"buffer_load_dword v{24+k}, v21, {srd(sr)}, 0 offen","pf")
        e("s_waitcnt vmcnt(0)")
        e("L_notlb:")
    if OPT['ntt']==5 and OPT['gop']>=0:
        mksrd(WO,44,401408); mksrd(WD,52,1605632)
        e("v_mov_b32 v249, 0"); spin(249,4,1,DBG,248,nap=OPT['nap'])
        e(f"s_mul_i32 s66, s{sW}, 10"); e(f"s_add_u32 s66, s66, s{sI}"); e("s_lshl_b32 s66, s66, 6"); e("v_add_u32 v20, s66, v0")
        n=30
        for half in range(2):
            for k in range(3):
                e(f"v_add_u32 v21, {2560*k}, v20"); e("v_mul_u32_u24 v22, 9363, v21"); e("v_lshrrev_b32 v22, 22, v22"); e(f"v_add_u32 v22, {half}, v22")
                e("v_mul_u32_u24 v22, 448, v22"); e("v_add_u32 v22, v22, v21"); e("v_lshlrev_b32 v22, 7, v22")
                e(f"buffer_load_dword v{n}, v22, {srd(WD)}, 0 offen","pf"); n+=1
        if OPT['spf']:
            for k in range(2):
                e(f"v_add_u32 v21, {2560*k}, v20"); e("v_lshlrev_b32 v22, 7, v21"); e(f"buffer_load_dword v{n}, v22, {srd(WO)}, 0 offen","pf"); n+=1
    if OPT['ntt']==4:
        P.extend(stamp(0))
        e(f"s_min_u32 s{hsN}, s{sJ}, 1")
        helper_setup([HD.vW2,9]+hR[0])
        e("v_accvgpr_write_b32 a127, v9")
        e("v_lshlrev_b32 v231, 4, v0"); e(f"v_mov_b32 v252, {OOB}"); e("v_mov_b32 v13, 1"); e("v_mov_b32 v249, 0"); e("v_mov_b32 v248, 0")
        if OPT['gop']>=0: spin(249,4,1,DBG,248,nap=OPT['nap'])
        if OPT['spf']:
            e(f"s_mul_i32 s66, s{sXCD}, 392"); e(f"s_lshl_b32 s67, s{sW}, 6"); e("s_add_u32 s66, s66, s67"); e("v_add_u32 v14, s66, v0")
            for k in range(13):
                e("v_subrev_u32 v15, 3136, v14"); e("v_min_u32 v15, v15, v14"); e("v_lshlrev_b32 v15, 7, v15")
                e(f"buffer_load_dword v{16+k}, v15, {srd(WO)}, 0 offen","pf"); e("v_add_u32 v14, 256, v14")
                if k<OPT['spf']-1: e("s_waitcnt vmcnt(0)")
        hwin[0]=0
        for b in range(8+OPT['hp13']):
            P.extend(flat(HD.w2dma(b)))
            for sb in {1:[0],4:[1],7:[2,3]}.get(b,[]):
                P.append(WAIT(vm=[f"b{sb}"])); P.extend(hstage(sb)); P.append(WAIT(lgkm=0))
        if OPT['hin']:
            e(f"v_mov_b32 v{HD.vWo}, v9")
            P.append(WAIT(vm=["b7"])); P.extend(flat([hstage(b) for b in range(4,8)])); P.append(WAIT(lgkm=0))
            for b in range(13,13+OPT['hin']): P.extend(flat(HD.w2dma(b)))
        assert hwin[0]==HROW[7 if OPT['hin'] else 3]>>16
        spin(249,0,1,DBG,248)
        spin(HD.vPA,0,7,WS,HD.vPoll,nap=OPT['nap'])
        e("s_branch L_help")
    e("L_exit:")
    e("s_endpgm")
    e("L_end:")

DESC="""; One launch, 256 workgroups (one per CU, 4 waves, 512 registers each), roles by workgroup id:
;                     stream through an LDS ring and are transposed by ds_read_b64_tr_b16); silu(g)*u goes to d_ws in
;    64 attention   : 128 tokens (+16 halo) x 4 heads, one head per wave; q/k/v by MFMA, the 8 dilated taps are picked
; Hand-offs: write-through stores, vmcnt wait, atomic add on a counter in d_ws (zeroed in this launch, announced through
; d_debug); consumers poll the counter and read with L1-bypassing loads.  Workgroup-to-die placement only affects speed.
"""
def main():
    global P
    head=open("cdna_kernels/"+NAME+".s.ref").read().split("; Override launch")[0]
    txt=[]; nops=0
    def ablate(o):
        a=OPT['abl']; r=[]
        for x in o:
            if a&1 and x.cls=="vm" and " lds" in x.text: continue
            if a&2 and x.op.startswith("ds_read"): continue
            if a&4 and x.op.startswith("v_mfma"): continue
            r.append(x)
        return r
    for part in ((common_prologue,ffn),(attn,),(spare,)):
        P.clear()
        if part[0] is not common_prologue:
            pass
        for f in part: f()
        o,n=finalize(list(P),part[-1].__name__); nops+=n
        if OPT['abl']: o=ablate(o)
        txt+=[x.text if x.cls=="label" else "    "+x.text for x in o]
    out=head+DESC+"; @launch grid=(256,1,1) block=(256,1,1) lds=163840\n"
    out+='.amdgcn_target "amdgcn-amd-amdhsa--gfx950"\n.text\n'
    out+=f".globl {NAME}_kernel\n.p2align 8\n.type {NAME}_kernel,@function\n{NAME}_kernel:\n"
    out+="\n".join(txt)+"\n"
    out+=f""".section .rodata,"a"
.p2align 6
.amdhsa_kernel {NAME}_kernel
  .amdhsa_next_free_vgpr 512
  .amdhsa_next_free_sgpr 102
  .amdhsa_accum_offset 256
  .amdhsa_group_segment_fixed_size 0
  .amdhsa_kernarg_size 88
  .amdhsa_user_sgpr_count 2
  .amdhsa_user_sgpr_kernarg_segment_ptr 1
  .amdhsa_system_sgpr_workgroup_id_x 1
.end_amdhsa_kernel
"""
    open(sys.argv[1],"w").write(out)
    print("instructions",len(txt),"auto nops",nops)
main()
```

```python
import re
TRANS=("v_exp_f32","v_log_f32","v_rcp_f32","v_rsq_f32","v_sqrt_f32","v_sin_f32","v_cos_f32")
def regs_of(tok):
    tok=tok.strip()
    tok=tok.lstrip("-")
    m=re.fullmatch(r"abs\((.*)\)",tok)
    if m: tok=m.group(1)
    m=re.fullmatch(r"([vas])(\d+)",tok)
    if m: return {(m.group(1),int(m.group(2)))}
    m=re.fullmatch(r"([vas])\[(\d+):(\d+)\]",tok)
    if m: return {(m.group(1),i) for i in range(int(m.group(2)),int(m.group(3))+1)}
    if tok=="vcc": return {("s","vcc")}
    if tok=="exec": return {("s","exec")}
    if tok=="m0": return {("s","m0")}
    return set()
class Ins:
    __slots__=("text","op","rd","wr","cls","tag","waittags","lgkm","srcC","ab","data","note","flush")
    def __init__(s,text,tag=None):
        s.text=text; s.tag=tag; s.waittags=None; s.lgkm=None; s.srcC=set(); s.ab=set(); s.data=set(); s.note=None; s.flush=False
        s.rd=set(); s.wr=set()
        t=text.strip()
        if t.endswith(":") or t.startswith(".") or t.startswith(";") or not t:
            s.op=t; s.cls="label" if t.endswith(":") else "dir"; return
        p=t.split(None,1); s.op=p[0]; rest=p[1] if len(p)>1 else ""
        ops=[x.strip() for x in rest.split(",")]
        mods=""
        if ops:
            q=ops[-1].split()
            if q: ops[-1]=q[0]; mods=" ".join(q[1:])
        R=[regs_of(o) for o in ops]
        op=s.op.replace("_e64","").replace("_e32","")
        if op.startswith("v_mfma"):
            s.cls="mfma"; s.wr=R[0]; s.ab=R[1]|R[2]; s.srcC=R[3]; s.rd=s.ab|s.srcC
        elif op.startswith("v_permlane"):
            s.cls="valu"; s.wr=R[0]|R[1]; s.rd=R[0]|R[1]
        elif op.startswith("v_cmp"):
            s.cls="valu"; s.wr=R[0]; s.rd=set().union(*R[1:])
        elif op.startswith("v_"):
            s.cls="valu"; s.wr=R[0]; s.rd=set().union(*R[1:]) if len(R)>1 else set()
            if op in("v_fmac_f32",): s.rd|=R[0]
            if op=="v_cndmask_b32" and len(R)==3: s.rd|={("s","vcc")}
            if op in ("v_add_co_u32","v_addc_co_u32"): s.wr|=R[1]
        elif op.startswith("ds_read") or op.startswith("ds_bpermute") or op.startswith("ds_swizzle"):
            s.cls="ds"; s.wr=R[0]; s.rd=set().union(*R[1:])
        elif op.startswith("ds_write"):
            s.cls="ds"; s.rd=set().union(*R)
        elif op.startswith("buffer_load"):
            s.cls="vm"
            if "lds" in mods.split():
                s.rd=set().union(*R)|{("s","m0")}
            else:
                s.wr=R[0]; s.rd=set().union(*R[1:])
        elif op.startswith("global_load"):
            s.cls="vm"; s.wr=R[0]; s.rd=set().union(*R[1:])
        elif op.startswith("buffer_store") or op.startswith("buffer_atomic"):
            s.cls="vm"; s.rd=set().union(*R)
            if "x4" in op or "x3" in op: s.data=R[0]
            if op.startswith("buffer_atomic") and "sc0" in mods.split(): s.wr=R[0]
        elif op.startswith("global_store"):
            s.cls="vm"; s.rd=set().union(*R)
            if "x4" in op or "x3" in op: s.data=R[1]
        elif op.startswith("s_load") or op.startswith("s_memtime") or op.startswith("s_memrealtime"):
            s.cls="smem"; s.wr=R[0]; s.rd=set().union(*R[1:]) if len(R)>1 else set()
        elif op in("s_waitcnt","s_barrier","s_nop","s_endpgm","s_sleep","s_setprio") or op.startswith("s_cbranch") or op=="s_branch":
            s.cls="ctl"
            if op in("s_cbranch_vccz","s_cbranch_vccnz"): s.rd={("s","vcc")}
        elif op.startswith("s_cmp"):
            s.cls="salu"; s.rd=set().union(*R)
        elif op.startswith("s_"):
            s.cls="salu"; s.wr=R[0]; s.rd=set().union(*R[1:]) if len(R)>1 else set()
            if op in("s_addk_i32","s_mulk_i32","s_bitset1_b32"): s.rd|=R[0]
            if "saveexec" in op: s.wr|={("s","exec")}
        else:
            raise ValueError("unknown op "+t)
    def states(s):
        if s.cls in("label","dir"): return 0
        if s.op=="s_nop": return int(s.text.split()[1])+1
        return 1
def I(text,tag=None): return Ins(text,tag)
def ATOM(*texts):
    xs=[Ins(t) for t in texts]; a=xs[0]
    for x in xs[1:]:
        assert x.cls=="salu"
        a.rd|=x.rd; a.wr|=x.wr
    a.text="\n    ".join(texts); a.note=len(xs)
    return a
def WAIT(vm=None,lgkm=None,side=False):
    i=Ins("s_waitcnt vmcnt(0)"); i.waittags=vm; i.lgkm=lgkm; i.flush=False; i.srcC={"side"} if side else set(); return i
def isvg(r): return r[0] in("v","a")
def need(p,c):
    n=0
    pop=p.op.replace("_e64","").replace("_e32",""); cop=c.op.replace("_e64","").replace("_e32","")
    if p.cls=="valu":
        vw={r for r in p.wr if isvg(r)}; sw={r for r in p.wr if r[0]=="s"}
        if c.cls=="mfma" and vw&c.rd: n=max(n,2)
        if cop.startswith("v_permlane") and vw&c.rd: n=max(n,2)
        if "dpp" in c.text or "row_" in c.text:
            if vw&c.rd: n=max(n,2)
        if pop in TRANS and c.cls=="valu" and cop not in TRANS and vw&c.rd: n=max(n,1)
        if c.cls=="valu" and sw&c.rd: n=max(n,2)
        if cop in("v_readfirstlane_b32","v_readlane_b32") and vw&c.rd: n=max(n,1)
        if c.cls=="vm" and sw&c.rd: n=max(n,5)
        if c.cls in("salu","ctl") and sw&c.rd: n=max(n,2)
    if p.cls=="mfma":
        big = "32x32" in p.op
        a,b,w=(12,10,7) if big else (8,6,3)
        if c.cls=="mfma":
            if p.wr&c.ab: n=max(n,a)
            if p.wr&c.srcC and (p.wr!=c.srcC or p.op!=c.op): n=max(n,b)
            if p.wr&c.wr and not (p.wr==c.srcC): n=max(n,b)
        elif c.cls in("valu","vm","ds"):
            if p.wr&(c.rd|c.wr): n=max(n,a)
            if c.cls=="valu" and p.srcC&c.wr: n=max(n,w)
    if p.cls=="salu" and ("s","m0") in p.wr and c.cls=="vm" and ("s","m0") in c.rd: n=max(n,1)
    if p.cls=="vm" and p.data:
        if c.cls=="valu" and p.data&c.wr: n=max(n,2)
        elif p.data&c.wr: n=max(n,1)
    return n
def finalize(ins, name=""):
    out=[]; vmq=[]; dsq=[]; smq=set(); nops=0
    lastidx={}
    for k,x in enumerate(ins):
        if x.cls=="vm" and x.tag: lastidx[x.tag]=k
    for kk,x in enumerate(ins):
        if x.op=="s_waitcnt" and x.waittags not in (None,0):
            for t in x.waittags:
                if lastidx.get(t,-1)>kk: raise Exception(f"{name}: wait on tag {t} before all its ops are issued")
        if x.flush: vmq=[]
        if x.op=="s_waitcnt" and (x.waittags is not None or x.lgkm is not None):
            parts=[]
            if x.waittags is not None:
                if x.waittags==0: n=0
                else:
                    tg=set(x.waittags); idx=[k for k,(t,_) in enumerate(vmq) if t in tg]
                    n=len(vmq)-1-idx[-1] if idx else None
                if n is not None:
                    n=min(n,63); parts.append(f"vmcnt({n})")
            if x.lgkm is not None: parts.append(f"lgkmcnt({x.lgkm})")
            if not parts: continue
            x.text="s_waitcnt "+" ".join(parts)
        if x.op=="s_waitcnt" and x.srcC:
            out.append(x); continue
        if x.op=="s_waitcnt":
            m=re.search(r"vmcnt\((\d+)\)",x.text)
            if m:
                n=int(m.group(1)); vmq=vmq[len(vmq)-n:] if n<len(vmq) and n>0 else ([] if n==0 else vmq)
            m=re.search(r"lgkmcnt\((\d+)\)",x.text)
            if m:
                n=int(m.group(1)); dsq=dsq[len(dsq)-n:] if n<len(dsq) and n>0 else ([] if n==0 else dsq)
                if n==0: smq=set()
        if x.cls not in("label","dir"):
            touch=x.rd|x.wr
            for (t,w) in vmq:
                if w&touch: raise Exception(f"{name}: use of pending vm dest {sorted(w&touch)[:2]} in: {x.text}")
            for w in dsq:
                if w&touch: raise Exception(f"{name}: use of pending ds dest {sorted(w&touch)[:2]} in: {x.text}")
            if smq&touch: raise Exception(f"{name}: use of pending smem dest in: {x.text}")
            d=0; req=0
            for p in reversed(out):
                if d>=12: break
                if p.cls not in("label","dir"):
                    req=max(req,need(p,x)-d)
                d+=p.states()
            if req>0:
                out.append(Ins(f"s_nop {req-1}")); nops+=1
        out.append(x)
        if x.cls=="vm": vmq.append((x.tag,set(x.wr)))
        if x.cls=="ds": dsq.append(set(x.wr))
        if x.cls=="smem": smq|=x.wr
        if len(vmq)>63: pass
    return out,nops
def weave(mf, fillers):
    gaps=[[] for _ in mf]
    for k,(pos,x) in enumerate(sorted(enumerate(fillers),key=lambda e:(e[1][0],e[0]))):
        p,x=x
        gaps[max(0,min(len(mf)-1,int(p)))].append(x)
    o=[]
    for m,g in zip(mf,gaps):
        o.append(m); o+=g
    return o
def spread(lst,a,b):
    n=len(lst)
    return [(a+(b-a)*k/n,x) for k,x in enumerate(lst)]

def cost(x):
    op=x.op.replace("_e64","").replace("_e32","")
    if x.cls in("label","dir"): return 0
    if x.note: return x.note
    if op in TRANS: return 2
    if x.cls=="vm": return 2
    return 1
def conflict(a,b):
    if a.wr&(b.rd|b.wr) or a.rd&b.wr: return True
    if a.cls=="vm" and b.cls=="vm": return True
    return False
class Pool:
    def __init__(s,ins,look=20): s.q=list(ins); s.look=look; s.last={}
    def take(s,room,gap):
        for k,x in enumerate(s.q[:s.look]):
            if cost(x)>room: continue
            if any(conflict(y,x) for y in s.q[:k]): continue
            if any(s.last.get(r,-9)>=gap for r in x.rd): continue
            s.q.pop(k)
            for r in x.wr: s.last[r]=gap
            return x
        return None
_gapno=[0]
def pack(mf, fixed, pool=None, cap=2, lo=0):
    gaps=[[] for _ in mf]
    for (_, (p,x)) in sorted(enumerate(fixed),key=lambda e:(e[1][0],e[0])):
        gaps[max(0,min(len(mf)-1,int(p)))].append(x)
    o=[]
    for k,(m,g) in enumerate(zip(mf,gaps)):
        _gapno[0]+=1
        o.append(m); o+=g
        room=cap-sum(cost(x) for x in g)
        while pool is not None and k>=lo and room>0:
            x=pool.take(room,_gapno[0])
            if x is None: break
            o.append(x); room-=cost(x)
    return o

def kind(x):
    if x.cls in("salu","ctl","smem"): return "S"
    if x.cls in("ds","vm"): return "X"
    return "V"
def gaplen(seq):
    t=4; lastD=-99; prevV=False
    for x in seq:
        k=kind(x)
        if k=="S": t+=4*(x.note or 1); continue
        t=max(t,8)
        if k=="X":
            if prevV: t+=8
            if x.cls=="ds": t=max(t,lastD+8); lastD=t
            t+=4; prevV=False
        else:
            t+=4*cost(x); prevV=True
    return max(16,t)
EST=[0]
def pack2(mf, fixed, pool=None, extra=0, lo=0, tail=None, dsend=None):
    F=[(p,x) for _,(p,x) in sorted(enumerate(fixed),key=lambda e:(e[1][0],e[0]))]
    o=[]; n=len(mf)
    def clash(a,b): return conflict(a,b) or a.cls=="ctl" or b.cls=="ctl" or (a.cls=="ds" and b.cls=="ds")
    for k,m in enumerate(mf):
        _gapno[0]+=1
        S=list(tail) if (tail and k==n-1) else []; X=[]; V=[]
        lim=16+4*extra
        nds=sum(1 for _,x in F if x.cls=="ds")
        progress=True
        while progress:
            progress=False
            for i,(p,x) in enumerate(F):
                if p>=k+1: break
                if any(clash(y,x) for _,y in F[:i]): continue
                kd=kind(x)
                later = X+V if kd=="S" else (V if kd=="X" else [])
                if any(clash(y,x) for y in later): continue
                if kd=="X" and ("s","m0") in x.rd and S and ("s","m0") in S[-1].wr and not X: continue
                if tail and k==n-1 and kd=="X": pass
                trial=(S+[x]+X+V) if kd=="S" else ((S+X+[x]+V) if kd=="X" else (S+X+V+[x]))
                urgent = (k==n-1) or (x.cls=="ds" and dsend is not None and nds>dsend-k)
                if gaplen(trial)>lim and not urgent: continue
                (S if kd=="S" else X if kd=="X" else V).append(x); F.pop(i); progress=True
                if x.cls=="ds": nds-=1
                break
        if tail and k==n-1: assert not any(x.cls=="ds" for x in X), "LDS read behind the period's wait"
        while pool is not None and k>=lo:
            got=None
            for room in (2,1):
                pass
            for i,x in enumerate(pool.q[:pool.look]):
                if any(conflict(y,x) for y in pool.q[:i]): continue
                if any(pool.last.get(r,-9)>=_gapno[0] for r in x.rd): continue
                kd=kind(x)
                trial=(S+[x]+X+V) if kd=="S" else ((S+X+[x]+V) if kd=="X" else (S+X+V+[x]))
                later = X+V if kd=="S" else (V if kd=="X" else [])
                if any(conflict(y,x) for y in later): continue
                if gaplen(trial)>lim: continue
                got=i; break
            if got is None: break
            x=pool.q.pop(got)
            for r in x.wr: pool.last[r]=_gapno[0]
            kd=kind(x); (S if kd=="S" else X if kd=="X" else V).append(x)
        o.append(m); o+=S+X+V
        EST[0]+=gaplen(S+X+V)
    o+=[x for _,x in F]; EST[0]+=4*len(F)
    return o
def estimate(ins):
    tot=0; cur=None
    for x in ins:
        if x.cls in("label","dir"): continue
        if x.cls=="mfma":
            if cur is not None: tot+=gaplen(cur)
            cur=[]
        elif cur is not None: cur.append(x)
    return tot+(gaplen(cur) if cur is not None else 0)
```

```python
import sys, math
from isa import *
NAME="gated_mix__sliding_local_dilated__swiglu_ffn__prompt"
OPT=dict(stamp=0, probe=-2, pwg=100, obs=0, abl=0, outpol=0,
         rot=4, arot=7, rate=5, cap=2, capc=3, cp=16, chainA=1, w2p0=13, sAt=1, nin=3, sBs=2, pA=10,
         lead=10, pah=10, nm=3, ntt=5, hlead=9, hpah=9, arate=12, apf=1, spf=1, l2o=0, l2b=1, ech=1, tail2=0, ap1=1, nogate=0, paho=10, p2b=0, p2o=0, weave=0, sord=0, napo=24, skipS=0, rateA=5, nA=6, apW=-1, apA=-1, apB=-1, apfk=10, hp13=5, hwin=0, nap=8, amid=4, hin=2, gop=5, p2=1, est=0, tlb=0, stf=0, split0=1, npre=2, pre1=5, early=9, aearly=5)
for a in sys.argv[2:]:
    k,v=a.split("="); OPT[k]=int(v)
H0=0x100000; NT=130; S0=0x80000; SSTR=2176*4; STAMP0=0xC00000; WSN=0x1000000
OOB=0x80000000
X,WA,WU,WD,WO,WS,OUT,DBG,GW=4,8,12,16,20,24,28,32,36
def srd(b): return f"s[{b}:{b+3}]"
def vr(b,n=1): return f"v{b}" if n==1 else f"v[{b}:{b+n-1}]"
def ar(b,n=1): return f"a{b}" if n==1 else f"a[{b}:{b+n-1}]"
P=[]
def e(t,tag=None):
    x=I(t,tag); P.append(x); return x
_l=[0]
def lab(p="L"):
    _l[0]+=1; return f"{p}{_l[0]}"
def mksrd(b,src,n,bias=0):
    if bias:
        e(f"s_sub_u32 s{b}, s{src}, {bias}"); e(f"s_subb_u32 s{b+1}, s{src+1}, 0")
    else:
        e(f"s_mov_b64 s[{b}:{b+1}], s[{src}:{src+1}]")
    e(f"s_mov_b32 s{b+2}, {n+bias}"); e(f"s_mov_b32 s{b+3}, 0x20000")
def mfma(d,a,b,c): return I(f"v_mfma_f32_16x16x32_bf16 {d}, {a}, {b}, {c}")
sW,sXCD,sJ,sI=62,63,64,65
sT=[66,67,68,69,70,71]
sSTB=98
nstamp=[0]
def stamp(idx,last=False):
    if OPT['probe']!=-2:
        o=[]
        if idx==OPT['probe']: o+=[I("s_memrealtime s[94:95]"),I("s_waitcnt lgkmcnt(0)"),I("s_sub_u32 s97, s94, s96")]
        if last:
            L=lab("PR"); D=lab("PD")
            o+=[I(f"s_cmp_eq_u32 s2, {OPT['pwg']}"),I(f"s_cbranch_scc0 {D}"),I("s_add_u32 s97, s97, 4000"),I(L+":"),I("s_memrealtime s[94:95]"),I("s_waitcnt lgkmcnt(0)"),
                I("s_sub_u32 s94, s94, s96"),I("s_cmp_lt_u32 s94, s97"),I(f"s_cbranch_scc1 {L}"),I(D+":")]
        return o
    if not OPT['stamp']: return []
    if OPT['stamp']==2 and idx not in (0,1,2,3,4,5,6,7,8,9,10,11,55,56,57,58,59,61) : return []
    if OPT['stamp']==3 and idx not in (0,9) and not last: return []
    o=[I("s_memrealtime s[94:95]"),I("s_memtime s[96:97]"),I("s_waitcnt lgkmcnt(0)"),
       I(f"v_writelane_b32 v254, s94, {idx}"),I(f"v_writelane_b32 v255, s96, {idx}")]
    if last: o+=[I("v_lshlrev_b32 v253, 3, v0"),I(f"buffer_store_dwordx2 v[254:255], v253, {srd(WS)}, s{sSTB} offen","stamp")]
    return o
def spin(addrv, off, cmpval, srdb, res=12, nap=1):
    L=lab("SP"); D=lab("SD")
    e("s_mov_b32 s92, 0")
    e(L+":")
    e(f"buffer_load_dword v{res}, v{addrv}, {srd(srdb)}, 0 offen offset:{off} sc1","poll")
    e("s_waitcnt vmcnt(0)")
    e(f"v_cmp_ne_u32 vcc, {cmpval}, v{res}")
    e(f"s_cbranch_vccz {D}")
    e("s_add_u32 s92, s92, 1")
    e("s_cmp_lt_u32 s92, 0x40000")
    e(f"s_sleep {nap}")
    e(f"s_cbranch_scc1 {L}")
    e(D+":")
def check_or_spin(addrv, off, cmpval, srdb, res, second=None):
    D=lab("CK")
    e(f"v_cmp_ne_u32 vcc, {cmpval}, v{res}")
    e(f"s_cbranch_vccz {D}")
    if second:
        P.append(WAIT(vm=[second[0]],side=True))
        x=e(f"v_cmp_ne_u32 vcc, {cmpval}, v{second[1]}"); x.rd=set()
        e(f"s_cbranch_vccz {D}")
    n0=len(P)
    spin(addrv,off,cmpval,srdb,res)
    for x in P[n0:]:
        if x.cls=="vm": x.cls="raw"; x.wr=set()
        if x.op=="s_waitcnt": x.op="raw"
    e(D+":")

def common_prologue():
    e("s_cmp_ge_u32 s2, 256"); e("s_cbranch_scc1 L_exit")
    if OPT['probe']!=-2:
        e("s_memrealtime s[94:95]"); e("s_waitcnt lgkmcnt(0)"); e("s_mov_b32 s96, s94"); e("s_mov_b32 s97, 0")
    e("s_load_dwordx16 s[40:55], s[0:1], 0")
    e("s_load_dwordx4 s[56:59], s[0:1], 64")
    e("s_load_dwordx2 s[60:61], s[0:1], 80")
    e("v_lshrrev_b32 v1, 6, v0")
    e(f"s_and_b32 s{sXCD}, s2, 7"); e(f"s_lshr_b32 s{sJ}, s2, 3")
    e(f"v_readfirstlane_b32 s{sW}, v1")
    e("v_and_b32 v0, 63, v0")
    if OPT['stamp']:
        e(f"s_lshl_b32 s{sSTB}, s2, 2"); e(f"s_add_u32 s{sSTB}, s{sSTB}, s{sW}"); e(f"s_lshl_b32 s{sSTB}, s{sSTB}, 9")
        e(f"s_add_u32 s{sSTB}, s{sSTB}, {STAMP0}")
        e("v_mov_b32 v254, 0"); e("v_mov_b32 v255, 0")
    e(f"s_mov_b32 s{sI}, s{sXCD}")
    e(f"s_cmp_eq_u32 s{sJ}, 0"); e("s_cbranch_scc1 L_spare")
    e(f"s_cmp_lt_u32 s{sJ}, 9"); e("s_cbranch_scc1 L_attn")

def dma(voff,sr,soff,imm,tag): return I(f"buffer_load_dwordx4 v{voff}, {srd(sr)}, {soff} offen offset:{imm} lds",tag)

flat=lambda L:[x for it in L for x in it]
def mod7(dst,src,tmp,R=7):
    e(f"s_mul_i32 s{tmp}, s{src}, 9363"); e(f"s_lshr_b32 s{tmp}, s{tmp}, 16"); e(f"s_mul_i32 s{tmp}, s{tmp}, 7"); e(f"s_sub_u32 s{dst}, s{src}, s{tmp}")
    if R==1: e(f"s_mov_b32 s{dst}, 0")
    elif R==2: e(f"s_and_b32 s{dst}, s{dst}, 1"); e(f"s_mul_i32 s{dst}, s{dst}, 3")
    elif R==4: e(f"s_and_b32 s{dst}, s{dst}, 3"); e(f"s_lshl_b32 s{dst}, s{dst}, 1")

class Down:
    def __init__(c,**kw): c.__dict__.update(kw)
    def setup_w(c,sF0,sT2,sN,t):
        t0,t1,t2,t3=t; a,b,d=c.vt
        e(f"v_lshrrev_b32 v{a}, 3, v0"); e(f"v_and_b32 v{b}, 6, v{a}"); e(f"v_and_b32 v{d}, 7, v0"); e(f"v_xor_b32 v{b}, v{b}, v{d}")
        e(f"v_mul_u32_u24 v{a}, 896, v{a}"); e(f"v_lshl_add_u32 v{c.vW2}, v{b}, 4, v{a}")
        e(f"s_lshr_b32 s{t0}, s{sW}, 1"); e(f"s_mul_i32 s{t0}, s{t0}, 28"); e(f"s_and_b32 s{t1}, s{sW}, 1"); e(f"s_add_u32 s{t3}, s{t0}, s{t1}")
        e(f"s_lshl_b32 s{t2}, s{sN}, 7"); e(f"v_add_u32 v{c.vW2}, s{t2}, v{c.vW2}")
        e(f"s_add_u32 s{t0}, s{sT2}, s{sN}"); e(f"s_and_b32 s{t0}, s{t0}, 3"); e(f"s_sub_u32 s{c.sWr3}, 3, s{t0}")
        e(f"s_lshl_b32 s{t1}, s{sW}, 2"); e(f"s_add_u32 s{t2}, s{t0}, s{t1}")
        e(f"s_mul_i32 s{t0}, s{t2}, {28*896}"); e(f"v_add_u32 v{c.vWo}, s{t0}, v{c.vW2}")
        e(f"s_add_u32 s{t0}, s{t2}, 56"); e(f"s_mul_i32 s{t0}, s{t0}, {NT}"); e(f"s_add_u32 s{t0}, s{t0}, s{sF0}"); e(f"s_lshl_b32 s{t0}, s{t0}, 10"); e(f"s_add_u32 s{c.sHO}, s{t0}, {H0}")
        e(f"s_mov_b32 s{c.sNWo}, {-3*28*896}"); e(f"s_mov_b32 s{c.sNHo}, {-3*NT*1024}")
        e(f"s_lshl_b32 s{t0}, s{sT2}, 1"); e(f"s_add_u32 s{t0}, s{t0}, s{sN}")
        mod7(t0,t0,t1); e(f"s_sub_u32 s{c.sWr2}, 6, s{t0}"); e(f"s_lshl_b32 s{t0}, s{t0}, 2"); e(f"s_add_u32 s{t3}, s{t3}, s{t0}")
        e(f"s_mul_i32 s{t1}, s{t3}, {32*896}"); e(f"v_add_u32 v{c.vW2}, s{t1}, v{c.vW2}")
        e(f"s_mov_b32 s{c.sNW2}, {-6*114688}"); e(f"s_mov_b32 s{c.sNH}, {-24*NT*1024}")
        e(f"s_mul_i32 s{t0}, s{t3}, {NT}"); e(f"s_add_u32 s{t0}, s{t0}, s{sF0}"); e(f"s_lshl_b32 s{t0}, s{t0}, 10"); e(f"s_add_u32 s{c.sHld}, s{t0}, {H0}")
        for j in range(1,4): e(f"s_mov_b32 s{c.sW2o[j]}, {6144*j}")
    def setup_lane(c,dst,sBases,t):
        t0=t[0]; a,b,d=c.vt
        e(f"v_bfe_u32 v{a}, v0, 4, 1"); e(f"v_bfe_u32 v{b}, v0, 2, 2"); e(f"v_lshl_add_u32 v{a}, v{a}, 2, v{b}")
        e(f"v_lshrrev_b32 v{b}, 5, v0"); e(f"v_lshlrev_b32 v{b}, 10, v{b}"); e(f"v_lshl_add_u32 v{b}, v{a}, 7, v{b}")
        e(f"v_and_b32 v{d}, 3, v0"); e(f"v_lshl_add_u32 v{b}, v{d}, 3, v{b}"); e(f"v_lshrrev_b32 v{a}, 1, v{a}")
        for q in range(4):
            e(f"s_add_u32 s{t0}, s{sW}, {q}"); e(f"s_and_b32 s{t0}, s{t0}, 3")
            e(f"v_xor_b32 v{d}, s{t0}, v{a}"); e(f"v_lshl_add_u32 v{d}, v{d}, 5, v{b}")
            for k,sb in enumerate(sBases): e(f"v_add_u32 v{dst[k][q]}, s{sb}, v{d}")
    def setup_io(c,sF0,sN,t):
        t0,t1,t2,t3=t; a,b,d=c.vt; N=c.NTT
        e(f"v_lshrrev_b32 v{a}, 5, v0")
        e(f"s_add_u32 s{t1}, s{sF0}, {N-1}")
        e(f"s_mul_i32 s{t0}, s{sF0}, 13108"); e(f"s_lshr_b32 s{t0}, s{t0}, 16"); e(f"s_mul_i32 s{t2}, s{t1}, 13108"); e(f"s_lshr_b32 s{t2}, s{t2}, 16")
        e(f"s_sub_u32 s{t2}, s{t2}, s{t0}"); e(f"s_lshl_b32 s{t2}, s{t2}, 10"); e(f"s_lshl_b32 s{t0}, s{t0}, 3"); e(f"s_add_u32 s{t0}, s{t0}, s{sW}"); e(f"s_lshl_b32 s{t0}, s{t0}, 7")
        e(f"v_mul_u32_u24 v{b}, s{t2}, v{a}"); e(f"v_add_u32 v{c.vPA}, s{t0}, v{b}")
        e(f"s_lshr_b32 s{t0}, s{sF0}, 3"); e(f"s_lshr_b32 s{t2}, s{t1}, 3"); e(f"s_min_u32 s{t2}, s{t2}, 15")
        e(f"s_sub_u32 s{t2}, s{t2}, s{t0}"); e(f"s_lshl_b32 s{t2}, s{t2}, 9"); e(f"s_lshl_b32 s{t0}, s{t0}, 2"); e(f"s_add_u32 s{t0}, s{t0}, s{sW}"); e(f"s_add_u32 s{t0}, s{t0}, 208"); e(f"s_lshl_b32 s{t0}, s{t0}, 7")
        e(f"v_mul_u32_u24 v{b}, s{t2}, v{a}"); e(f"v_add_u32 v{c.vPO}, s{t0}, v{b}")
        e(f"s_lshl_b32 s{t0}, s{sF0}, 4"); e(f"v_and_b32 v{a}, 15, v0"); e(f"v_add_u32 v{a}, s{t0}, v{a}")
        e(f"s_mul_i32 s{t1}, s{sW}, {SSTR}"); e(f"s_add_u32 s{t1}, s{t1}, {S0}"); e(f"v_lshlrev_b32 v{c.vSA}, 2, v{a}"); e(f"v_add_u32 v{c.vSA}, s{t1}, v{c.vSA}")
        e(f"v_mul_u32_u24 v{a}, 896, v{a}"); e(f"v_lshrrev_b32 v{b}, 4, v0"); e(f"v_lshl_add_u32 v{a}, v{b}, 3, v{a}")
        e(f"s_lshl_b32 s{t1}, s{sN}, 7"); e(f"s_lshl_b32 s{t2}, s{sW}, 5"); e(f"s_add_u32 s{t1}, s{t1}, s{t2}"); e(f"v_add_u32 v{c.vO}, s{t1}, v{a}")
        base,ws,qs=c.red
        e(f"s_mul_i32 s{t0}, s{sW}, {ws}"); e(f"s_add_u32 s{t0}, s{t0}, {base}"); e(f"v_add_u32 v{c.vRW}, s{t0}, v{c.vH}")
        for q in range(1,4):
            e(f"s_sub_u32 s{t0}, s{sW}, {q}"); e(f"s_and_b32 s{t0}, s{t0}, 3"); e(f"s_mul_i32 s{t0}, s{t0}, {ws}"); e(f"s_add_u32 s{t0}, s{t0}, {base+(q-1)*qs}")
            e(f"v_add_u32 v{c.vRR+q-1}, s{t0}, v{c.vH}")
        for j in range(1,N): e(f"s_mov_b32 s{c.sRow+j-1}, {16*j*896}")
    def w2dma(c,b):
        sg,off=c.m0(b)
        o=[[dma(c.vW2,WD if b<14 else WO,"0" if pi==0 else f"s{c.sW2o[pi]}",pi*1024,f"b{b}")] for pi in range(4)]
        o[0].insert(0,I(f"s_add_u32 m0, s{sg}, {off}"))
        if b==13: o[-1].append(I(f"v_mov_b32 v{c.vW2}, v{c.vWo}"))
        elif b<13:
            o[-1]+=[ATOM(f"s_cmp_eq_u32 s{c.sWr2}, {b%7}",f"s_cselect_b32 s{c.sD}, s{c.sNW2}, 114688"),I(f"v_add_u32 v{c.vW2}, s{c.sD}, v{c.vW2}")]
            if b==6: o[-1].append(I(f"v_add_u32 v{c.vW2}, {64*896}, v{c.vW2}"))
        elif b<17: o[-1]+=[ATOM(f"s_cmp_eq_u32 s{c.sWr3}, {b-14}",f"s_cselect_b32 s{c.sD}, s{c.sNWo}, {28*896}"),I(f"v_add_u32 v{c.vW2}, s{c.sD}, v{c.vW2}")]
        return o
    def AW(c,b,q,a=None):
        r=c.aSt+16*(b%8)+4*q
        return ar(r,4) if a is None else ar(r+2*a,2)
    def treads(c,b,rd=None):
        base,off=(rd or c.rd)(b)
        return [I(f"ds_read_b64_tr_b16 {c.AW(b,q,a)}, v{base[q]} offset:{off+a*2048}") for q in range(4) for a in range(2)]
    def HS(c,b,t):
        k=b%c.NSL; na=c.nAS
        return ar(c.aH+(k*c.NTT+t)*4,4) if k<na else vr(c.vHS+((k-na)*c.NTT+t)*4,4)
    def hload(c,b):
        o=[[I(f"buffer_load_dwordx4 {c.HS(b,t)}, v{c.vH if t<3 else c.vHt[t-3]}, {srd(WS)}, s{c.sHld} offen offset:{(t%4)*1024} sc1",f"h{b}_{t}")] for t in range(c.NTT)]
        if b==13: o[-1].append(I(f"s_mov_b32 s{c.sHld}, s{c.sHO}"))
        elif b<13:
            o[-1]+=[ATOM(f"s_cmp_eq_u32 s{c.sWr2}, {b%7}",f"s_cselect_b32 s{c.sD}, s{c.sNH}, {4*NT*1024}",f"s_add_u32 s{c.sHld}, s{c.sHld}, s{c.sD}")]
            if b==6: o[-1].append(I(f"s_add_u32 s{c.sHld}, s{c.sHld}, {2*NT*1024}"))
        elif b<17: o[-1]+=[ATOM(f"s_cmp_eq_u32 s{c.sWr3}, {b-14}",f"s_cselect_b32 s{c.sD}, s{c.sNHo}, {NT*1024}",f"s_add_u32 s{c.sHld}, s{c.sHld}, s{c.sD}")]
        return o
    def poll(c,tag):
        av,off={"pollA":(c.vPA,0),"pollB":(c.vPA,512),"pollO":(c.vPO,0)}[tag]
        return I(f"buffer_load_dword v{c.vPoll}, v{av}, {srd(WS)}, 0 offen offset:{off} sc1",tag)
    def main(c,WQ,LEAD,PAH,so=0):
        N=c.NTT; GT=18*N
        steps=[[(b,) for b in range(15)]+[(15,16,17)],
               [(0,1),(2,3),(4,5),(6,),(7,8),(9,10),(11,12),(13,),(14,),(15,16,17)],
               [(0,1,2,3),(4,5,6),(7,8,9,10),(11,12,13),(14,15,16,17)],
               [(0,1),(2,3),(4,5,6),(7,8),(9,10),(11,12,13),(14,15),(16,17)],
               [(0,1),(2,3),(4,5,6),(7,8),(9,10),(11,12,13),(14,15,16,17)]][OPT['ech']]
        if not OPT['nogate']&1: P.append(WAIT(vm=["pollA"])); check_or_spin(c.vPA,0,7,WS,c.vPoll)
        P.extend(stamp(so+11))
        def setoff(st):
            o=[]
            for k,b in enumerate(st):
                o.append(I(f"s_mov_b32 s{44+k}, s{c.sHld}")); o+=c.hload(b)[-1][1:]
            return o
        HL=[]; start={}; units=[]
        for n,st in enumerate(steps):
            for b in st: start[b]=len(HL)
            for t in range(N):
                units.append((len(HL),st,t))
                for k,b in enumerate(st):
                    x=c.hload(b)[t][0]; HL.append([I(x.text.replace(f"s{c.sHld} offen",f"s{44+k} offen"),x.tag)])
            if n+1<len(steps): HL[-1]+=setoff(steps[n+1])
        P.extend(setoff(steps[0]))
        for l in range(LEAD): P.extend(HL[l])
        P.extend(stamp(so+5))
        hn=LEAD
        ustart=[u[0] for u in units]
        at=lambda g: max(x for x in ustart if x<=max(g,0))
        gates={at(start[7]-LEAD):("pollB",c.vPA,512,7,6), at(start[14]-LEAD):("pollO",c.vPO,0,4,7)}
        polls={at(g-(PAH if v[0]=='pollB' else OPT['paho'] or PAH)):v[0] for g,v in gates.items()}
        polls2={at(g-OPT[k]):v[0] for g,v in gates.items() for k in (['p2b'] if v[0]=="pollB" else ['p2o']) if OPT[k]}
        RQ={}
        for n,st in enumerate(steps):
            rd=[(x,f"b{b}") for b in st if b>=8 for x in c.treads(b)]
            if not rd: continue
            g1=start[st[0]]
            g0=max([g1-max(N,(len(rd)+1)//2)]+[start[b-8]+N*len([z for z in steps if b-8 in z][0]) for b in st if b>=8])
            assert 3*(g1-g0-1)>=len(rd)
            for k,(x,tg) in enumerate(rd): RQ.setdefault(g0+k*(g1-g0-1)//len(rd),[]).append((x,tg))
        base,ws,qs=c.red
        wr=lambda q,t: I(f"ds_write_b128 v{c.vRW}, {vr(c.ACC(q,t),4)} offset:{(q-1)*qs+t*1024}")
        R=lambda q,t: c.vRT+((q-1)*N+t)*4
        rr=lambda t: [I(f"ds_read_b128 {vr(R(q,t),4)}, v{c.vRR+q-1} offset:{t*1024}") for q in range(1,4)]
        NE=N-2 if OPT['tail2'] else 0
        def uw(u):
            g,st,t=units[u]
            tags=[f"h{b}_{t}" for b in st]+[tg for k in range(len(st)) for _,tg in RQ.get(g+k,[])]
            if g in gates: tags.append(gates[g][0])
            return WAIT(vm=tags,lgkm=0 if t==0 else None)
        P.append(uw(0))
        for u,(g,st,t) in enumerate(units):
            L=len(st)
            mf=[mfma(vr(c.ACC(q,t),4),c.AW(b,q),c.HS(b,t),"0" if b==0 else vr(c.ACC(q,t),4)) for q in range(4) for b in st]
            if g in gates:
                tg,av,off,val,si=gates[g]
                sec=(tg+"2",c.vPoll2) if OPT['p2b' if tg=="pollB" else 'p2o'] else None
                if not OPT['nogate']&(2 if tg=="pollB" else 4): check_or_spin(av,off,val,WS,c.vPoll,sec)
                P.extend(stamp(so+si))
            if t==0 and not so: P.extend(stamp(12+st[0]))
            f=[]
            if g in polls: f.append((2.5,c.poll(polls[g])))
            if g in polls2:
                x=c.poll(polls2[g]); f.append((2.6,I(x.text.replace(f"dword v{c.vPoll},",f"dword v{c.vPoll2},"),x.tag+"2")))
            for k in range(L):
                if hn<GT:
                    it=HL[hn]; hn+=1; f.append((4*k,it[0])); f+=[(4*k+1,x) for x in it[1:]]
                elif g+k+LEAD<GT+N: f+=([(4*k-0.5,I(f"v_or_b32 v{c.vSA}, s{c.sLast}, v{c.vSA}"))] if g+k+LEAD-GT==3 and N==5 else [])+[(4*k,I(f"buffer_load_dword v{c.vS+g+k+LEAD-GT}, v{c.vSA}, {srd(WS)}, 0 offen offset:{(g+k+LEAD-GT)*64} sc1","s"))]
                if WQ and WQ[0][0]<=g+k:
                    seen=False
                    for x in WQ.pop(0)[1]:
                        if x.cls=="vm": seen=True; f.append((4*k+2,x))
                        else: f.append((4*k+(3 if seen else 1.5),x))
                f+=[(4*k+0.2+j,x) for j,(x,_) in enumerate(RQ.get(g+k,[]))]
            if st is steps[-1] and t>0: f+=[(3+(q-1)*(4*L-4)//3,wr(q,t-1)) for q in range(1,4)]
            if NE and u==len(units)-1:
                f=[(k,x) for k,x in enumerate([x for _,x in f if x.cls=="ds"]+flat([rr(tt) for tt in range(NE)]))]+[z for z in f if z[1].cls!="ds"]
            o=pack2(mf,f)
            if NE and u==len(units)-2: o+=[WAIT(lgkm=0),I("s_barrier")]
            if u+1<len(units):
                j=max(i for i,x in enumerate(o) if x.cls=="mfma")
                if any(x.cls in("ds","vm") for x in o[j+1:]): o.append(uw(u+1))
                else: o.insert(j+1,uw(u+1))
            P.extend(o)
        assert not WQ and hn==GT
        for q in range(1,4): P.append(wr(q,N-1))
        P.extend(stamp(so+8))
        def fin(t):
            d=c.ACC(0,t)
            for r in (0,2): e(f"v_pk_add_f32 {vr(R(1,t)+r,2)}, {vr(R(1,t)+r,2)}, {vr(R(2,t)+r,2)}")
            for r in (0,2): e(f"v_pk_add_f32 {vr(d+r,2)}, {vr(d+r,2)}, {vr(R(3,t)+r,2)}")
            for r in (0,2): e(f"v_pk_add_f32 {vr(d+r,2)}, {vr(d+r,2)}, {vr(R(1,t)+r,2)}")
            for r in range(4): e(f"v_mul_f32 v{d+r}, v{c.vS+t}, v{d+r}")
            e(f"v_cvt_pk_bf16_f32 v{d}, v{d}, v{d+1}"); e(f"v_cvt_pk_bf16_f32 v{d+1}, v{d+2}, v{d+3}")
            e(f"buffer_store_dwordx2 {vr(d,2)}, v{c.vO}, {srd(OUT)}, {'0' if t==0 else 's%d'%(c.sRow+t-1)} offen{['',' sc1',' nt'][OPT['outpol']]}","out")
        if NE:
            P.append(WAIT(vm=["s"],lgkm=3))
            for t in range(NE): fin(t)
        P.append(WAIT(vm=["s"],lgkm=0)); e("s_barrier")
        for t in range(NE,N): P.extend(rr(t))
        for t in range(NE,N):
            e(f"s_waitcnt lgkmcnt({3*(N-1-t)})"); fin(t)
        P.extend(stamp(so+9,True))
        e("s_endpgm")

def ffn():
    sSL,sTT,sT2,sN=72,73,74,75
    sSeg1,sSeg2,sXb=76,77,78
    sXo=[None,79,80,81,82]
    sW1o=83
    sHst,sHld,sC=87,88,89
    vX,vW,vXR,vWR,vW2,vH,vH4,vFl,vOne,vPoll,vPA=1,2,(3,4),(5,6),7,8,9,10,11,12,13
    ACC=lambda p,q,t: 16+80*p+(q*5+t)*4
    def XF(i): return vr(176+4*i,4) if i<6 else ar(4*(i-6),4)
    AF=lambda buf,q: 200+16*buf+4*q
    t0,t1,t2_,t3=sT[:4]
    e(f"s_lshr_b32 s{t1}, s{sXCD}, 2"); e(f"s_add_u32 s{sI}, s{t1}, 8")
    e(f"s_and_b32 s{t0}, s{sXCD}, 3"); e(f"s_cmp_eq_u32 s{t0}, 3"); e(f"s_cselect_b32 s{t0}, 10, 9")
    e(f"s_cmp_lt_u32 s{sJ}, s{t0}"); e("s_cbranch_scc1 L_spare")
    e(f"s_sub_u32 s{sI}, s{sJ}, s{t0}")
    e(f"s_mul_i32 s{t0}, s{sXCD}, 23"); e(f"s_add_u32 s{sI}, s{sI}, s{t0}")
    e(f"s_sub_u32 s{sI}, s{sI}, s{t1}")
    e(f"s_mul_i32 s{sT2}, s{sI}, 9363"); e(f"s_lshr_b32 s{sT2}, s{sT2}, 16")
    e(f"s_mul_i32 s{t0}, s{sT2}, 7"); e(f"s_sub_u32 s{sN}, s{sI}, s{t0}")
    e(f"s_sub_u32 s{t0}, s{sI}, 98"); e(f"s_mul_i32 s{t1}, s{t0}, 10923"); e(f"s_lshr_b32 s{t1}, s{t1}, 16")
    e(f"s_mul_i32 s{t2_}, s{t1}, 6"); e(f"s_sub_u32 s{t0}, s{t0}, s{t2_}"); e(f"s_add_u32 s{t0}, s{t0}, 7")
    e(f"s_cmp_lt_u32 s{sI}, 98"); e(f"s_cselect_b32 s{sSL}, s{sT2}, s{t1}"); e(f"s_cselect_b32 s{sTT}, s{sN}, s{t0}")
    e("v_lshrrev_b32 v14, 3, v0")
    e("v_and_b32 v15, 7, v0")
    e(f"s_and_b32 s{t0}, s{sW}, 1"); e(f"s_lshl_b32 s{t1}, s{t0}, 2")
    e("v_lshrrev_b32 v12, 1, v14"); e(f"v_or_b32 v13, s{t1}, v12"); e("v_xor_b32 v13, v13, v15")
    e(f"s_mul_i32 s{t2_}, s{sTT}, 160"); e(f"s_lshl_b32 s{t3}, s{sW}, 3"); e(f"s_add_u32 s{t2_}, s{t2_}, s{t3}")
    e(f"v_add_u32 v{vX}, s{t2_}, v14"); e(f"v_mul_u32_u24 v{vX}, 896, v{vX}"); e(f"v_lshl_add_u32 v{vX}, v13, 4, v{vX}")
    e(f"s_lshl_b32 s{t0}, s{t0}, 2")
    e("v_and_b32 v13, 2, v14"); e(f"v_or_b32 v13, s{t0}, v13"); e("v_xor_b32 v13, v13, v15")
    e(f"v_add_u32 v{vW}, s{t3}, v14"); e(f"v_mul_u32_u24 v{vW}, 3584, v{vW}"); e(f"v_lshl_add_u32 v{vW}, v13, 4, v{vW}")
    e(f"s_lshl_b32 s{t0}, s{sSL}, 8"); e(f"v_add_u32 v{vW}, s{t0}, v{vW}")
    sWr,sD,sNX,sNW,sWr2,sNW2,sNH=90,91,93,99,100,101,3
    e(f"s_lshl_b32 s{t0}, s{sSL}, 1"); e(f"s_add_u32 s{t0}, s{sTT}, s{t0}"); mod7(t0,t0,t1,OPT['rot'])
    e(f"s_sub_u32 s{sWr}, 6, s{t0}"); e(f"s_lshl_b32 s{t1}, s{t0}, 7"); e(f"v_add_u32 v{vX}, s{t1}, v{vX}")
    e(f"s_mul_i32 s{t1}, s{t0}, {64*3584}"); e(f"v_add_u32 v{vW}, s{t1}, v{vW}")
    e(f"s_mov_b32 s{sNX}, -768"); e(f"s_mov_b32 s{sNW}, {-6*64*3584}")
    e(f"s_lshl_b32 s{sSeg2}, s{sW}, 12")
    e(f"s_lshl_b32 s{sXb}, s{sW}, 10"); e(f"s_add_u32 s{sXb}, s{sXb}, 65536")
    for j in range(1,5): e(f"s_mov_b32 s{sXo[j]}, {32*j*896}")
    e(f"s_mov_b32 s{sW1o}, {32*3584-1024}")
    for b,n in ((X,1835008),(WA,1605632),(WU,1605632+2048)):
        e(f"s_mov_b32 s{b+2}, {n}"); e(f"s_mov_b32 s{b+3}, 0x20000")
    e("s_waitcnt lgkmcnt(0)")
    e(f"s_mov_b64 s[{X}:{X+1}], s[40:41]"); e(f"s_mov_b64 s[{WA}:{WA+1}], s[48:49]")
    e(f"s_sub_u32 s{WU}, s50, 2048"); e(f"s_subb_u32 s{WU+1}, s51, 0")
    P.extend(stamp(0))
    def xdma(c):
        o=[]
        for j in range(5):
            o.append([I(f"s_add_u32 m0, s{sXb}, {(c%4)*20480+j*4096}"), dma(vX,X,"0" if j==0 else f"s{sXo[j]}",0,f"x{c}")])
        o[-1]+=[ATOM(f"s_cmp_eq_u32 s{sWr}, {c}",f"s_cselect_b32 s{sD}, s{sNX}, 128"),I(f"v_add_u32 v{vX}, s{sD}, v{vX}")]
        return o
    def wdma(s):
        o=[]
        for j in range(2):
            for m in range(2):
                o.append([dma(vW,WA if m==0 else WU,"0" if j==0 else f"s{sW1o}",(2*m+j)*1024,f"w{s}" if (s or j) else "w0a")])
        o[0].insert(0,I(f"s_add_u32 m0, s{sSeg2}, {(s%4)*16384}"))
        o[-1]+=[ATOM(f"s_cmp_eq_u32 s{sWr}, {s%7}",f"s_cselect_b32 s{sD}, s{sNW}, {64*3584}"),I(f"v_add_u32 v{vW}, s{sD}, v{vW}")]
        if s==6: o[-1].append(I(f"v_add_u32 v{vW}, 128, v{vW}"))
        return o
    NTT=OPT['ntt']; R1=[176,177,178,179]; R2=[180,181,182,183]; sF0=39
    LOC=[((sSeg1,b*4096),13 if b<2 else 17) for b in range(6)]+[((sSeg2,((j+2)%4)*16384),21+2*j) for j in range(4)]
    loc=lambda b: LOC[b%10][0]
    D=Down(NTT=NTT,vt=(196,197,198),vW2=vW2,vWo=248,vH=vH,vHt=(251,252),sLast=52,vPoll=vPoll,vPoll2=14,vPA=vPA,vPO=187,vSA=188,vO=189,vRW=190,vRR=184,vS=192,vRT=96,
           sW2o=[None,84,85,86],sWr2=sWr2,sNW2=sNW2,sNH=sNH,sD=sD,sWr3=38,sNWo=36,sNHo=37,sHld=sHld,sHO=sT[5],sRow=40,
           m0=loc,rd=lambda b:(R1 if loc(b)[0]==sSeg1 else R2,loc(b)[1]),red=(65536,24576,5120),
           ACC=lambda q,t:ACC(0,q,t),AF=AF,aSt=0,aH=128,nAS=128//(4*NTT),NSL=128//(4*NTT)+(4 if NTT==5 else 0),vHS=96)
    pro=flat([xdma(s)+wdma(s) for s in range(OPT['npre'])])
    P.extend(flat(pro[:OPT['early']]))
    P.extend(stamp(51))
    mksrd(WS,60,WSN); mksrd(WD,52,1605632); mksrd(WO,44,401408); mksrd(OUT,56,1835008); mksrd(DBG,58,256)
    e("v_lshrrev_b32 v14, 4, v0")
    e("v_and_b32 v15, 15, v0")
    e("v_lshrrev_b32 v12, 1, v15"); e("v_xor_b32 v12, v12, v14"); e("v_lshlrev_b32 v12, 4, v12")
    e("v_lshl_add_u32 v12, v15, 7, v12")
    e(f"s_lshr_b32 s{t0}, s{sW}, 1"); e(f"s_mul_i32 s{t0}, s{t0}, 10240"); e(f"s_add_u32 s{t0}, s{t0}, 65536")
    e(f"v_add_u32 v{vXR[0]}, s{t0}, v12"); e(f"v_xor_b32 v{vXR[1]}, 64, v{vXR[0]}")
    e("v_bfe_u32 v12, v0, 2, 2")
    e("v_lshrrev_b32 v13, 1, v12"); e("v_and_b32 v15, 1, v14"); e("v_lshlrev_b32 v15, 1, v15"); e("v_or_b32 v13, v13, v15")
    e(f"s_and_b32 s{t0}, s{sW}, 1"); e(f"s_lshl_b32 s{t0}, s{t0}, 1"); e(f"v_xor_b32 v13, s{t0}, v13"); e("v_lshlrev_b32 v13, 5, v13")
    e("v_lshl_add_u32 v13, v14, 12, v13"); e("v_lshl_add_u32 v13, v12, 7, v13")
    e("v_and_b32 v15, 3, v0"); e(f"v_lshl_add_u32 v{vWR[0]}, v15, 3, v13"); e(f"v_xor_b32 v{vWR[1]}, 32, v{vWR[0]}")
    e(f"s_mul_i32 s{sF0}, s{sT2}, {NTT}")
    D.setup_w(sF0,sT2,sN,sT[:4])
    e(f"s_lshl_b32 s{t2_}, s{sTT}, 1"); e(f"s_lshr_b32 s{t1}, s{sW}, 1"); e(f"s_add_u32 s{t2_}, s{t2_}, s{t1}")
    e(f"s_lshl_b32 s{t0}, s{sSL}, 2"); e(f"s_and_b32 s{t3}, s{sW}, 1"); e(f"s_add_u32 s{t0}, s{t0}, s{t3}"); e(f"s_mul_i32 s{t0}, s{t0}, {NT}")
    e(f"s_mul_i32 s{t1}, s{t2_}, 5"); e(f"s_add_u32 s{t0}, s{t0}, s{t1}")
    e(f"s_lshl_b32 s{t0}, s{t0}, 10"); e(f"s_add_u32 s{sHst}, s{t0}, {H0}")
    e(f"s_lshl_b32 s{t0}, s{t2_}, 3"); e(f"s_add_u32 s{t0}, s{t0}, s{t3}"); e(f"s_cmp_ge_u32 s{sSL}, 7"); e(f"s_cselect_b32 s{t1}, 2, 0"); e(f"s_add_u32 s{t0}, s{t0}, s{t1}"); e(f"s_lshl_b32 s{t0}, s{t0}, 7")
    e(f"v_mov_b32 v{vFl}, {OOB}"); e(f"v_mov_b32 v12, s{t0}"); e("v_cmp_eq_u32 vcc, 0, v0")
    e(f"v_lshlrev_b32 v{vH}, 4, v0"); e(f"v_add_u32 v{vH4}, 4096, v{vH}")
    e(f"v_cndmask_b32 v{vFl}, v{vFl}, v12, vcc")
    e(f"s_mul_i32 s{sSeg1}, s{sW}, 24576"); e(f"s_add_u32 s{sSeg1}, s{sSeg1}, 65536")
    e(f"s_mov_b32 s{sC}, 0xbfb8aa3b")
    e(f"v_mov_b32 v{vOne}, 1")
    e("v_mov_b32 v15, 0")
    e(f"s_or_b32 s{t0}, s{sI}, s{sW}"); e(f"v_or_b32 v250, s{t0}, v0"); e("v_lshlrev_b32 v250, 8, v250")
    def reads(Pn):
        p,s,h=Pn//14,Pn//2,Pn%2
        CH=(p==1 or OPT['chainA']) and not (OPT['split0'] and s==0)
        o=[]
        for ks in ((0,1) if CH else (h,)):
            if p==0 and (h==0 or not CH):
                if s==3: o.append(I(f"v_add_u32 v{vXR[ks]}, 61440, v{vXR[ks]}"))
                for t in range(5): o.append(I(f"ds_read_b128 {XF((2*s+ks)*5+t)}, v{vXR[ks]} offset:{(s%4 if s!=3 else 0)*20480+t*2048}"))
                if s==3: o.append(I(f"v_subrev_u32 v{vXR[ks]}, 61440, v{vXR[ks]}"))
        tr=[]
        for j in range(4):
            if CH: m,ks,tl=j>>1,j&1,h
            else: m,ks,tl=j>>1,h,j&1
            for a in range(2):
                tr.append(I(f"ds_read_b64_tr_b16 {vr(AF(h,j)+2*a,2)}, v{vWR[tl]} offset:{(s%4)*16384+(2*m+ks)*1024+a*512}"))
        return tr[:4]+o+tr[4:]
    def epi(p,t):
        T=[232+k for k in range(8)]; O=240+4*(t%2)
        G=[ACC(p,k>>2,t)+(k&3) for k in range(8)]; U=[ACC(p,2+(k>>2),t)+(k&3) for k in range(8)]
        o=[]
        st=I(f"buffer_store_dwordx4 {vr(O,4)}, v{vH if t<4 else vH4}, {srd(WS)}, s{sHst} offen offset:{(t%4)*1024} {['sc1','sc0 sc1','sc1 nt','sc0 sc1 nt',''][OPT['stf']]}",f"st{p}")
        if p==1:
            for k in range(0,8,2): o.append(I(f"v_pk_mul_f32 {vr(T[k],2)}, {vr(G[k],2)}, s[48:49]"))
            for k in range(8):
                o.append(I(f"v_exp_f32 v{T[k]}, v{T[k]}"))
                if k%2==0: o.append(I(f"v_pk_mul_f32 {vr(U[k],2)}, {vr(G[k],2)}, {vr(U[k],2)}"))
            for k in range(0,8,2): o.append(I(f"v_pk_add_f32 {vr(T[k],2)}, {vr(T[k],2)}, s[50:51]"))
            for k in range(8):
                o.append(I(f"v_rcp_f32 v{G[k]}, v{T[k]}"))
                if k>=3 and k%2==1:
                    o.append(I(f"v_pk_mul_f32 {vr(U[k-3],2)}, {vr(G[k-3],2)}, {vr(U[k-3],2)}"))
                    if k>=5: o.append(I(f"v_cvt_pk_bf16_f32 v{O+(k-5)//2}, v{U[k-5]}, v{U[k-4]}"))
            o.append(I(f"v_cvt_pk_bf16_f32 v{O+2}, v{U[4]}, v{U[5]}"))
            o.append(I(f"v_pk_mul_f32 {vr(U[6],2)}, {vr(G[6],2)}, {vr(U[6],2)}"))
            o.append(I(f"v_cvt_pk_bf16_f32 v{O+3}, v{U[6]}, v{U[7]}"))
            return o+[st]
        for k in range(8): o.append(I(f"v_mul_f32 v{T[k]}, s{sC}, v{G[k]}"))
        for k in range(8):
            o.append(I(f"v_exp_f32 v{T[k]}, v{T[k]}")); o.append(I(f"v_mul_f32 v{U[k]}, v{G[k]}, v{U[k]}"))
        for k in range(8): o.append(I(f"v_add_f32 v{T[k]}, 1.0, v{T[k]}"))
        for k in range(8):
            o.append(I(f"v_rcp_f32 v{G[k]}, v{T[k]}"))
            if k>=1: o.append(I(f"v_mul_f32 v{U[k-1]}, v{G[k-1]}, v{U[k-1]}"))
            if k>=3 and k%2==1: o.append(I(f"v_cvt_pk_bf16_f32 v{O+(k-3)//2}, v{U[k-3]}, v{U[k-2]}"))
        o.append(I(f"v_mul_f32 v{U[7]}, v{G[7]}, v{U[7]}"))
        o.append(I(f"v_cvt_pk_bf16_f32 v{O+3}, v{U[6]}, v{U[7]}"))
        o.append(I(f"buffer_store_dwordx4 {vr(O,4)}, v{vH if t<4 else vH4}, {srd(WS)}, s{sHst} offen offset:{(t%4)*1024} {['sc1','sc0 sc1','sc1 nt','sc0 sc1 nt',''][OPT['stf']]}",f"st{p}"))
        return o
    D.setup_lane([R1,R2],[sSeg1,sSeg2],sT[:4]); D.setup_io(sF0,sN,sT[:4])
    e(f"s_cmp_ge_u32 s{sF0}, 125"); e(f"s_cselect_b32 s52, {OOB}, 0"); e(f"v_or_b32 v251, s52, v{vH}"); e(f"v_or_b32 v252, s52, v{vH4}")
    e(f"s_mov_b32 s48, s{sC}"); e(f"s_mov_b32 s49, s{sC}"); e("s_mov_b32 s50, 1.0"); e("s_mov_b32 s51, 1.0")
    e(f"s_add_u32 s{t0}, s{sSeg2}, 147456"); e(f"v_add_u32 v249, s{t0}, v{vH}")
    for q in range(4): e(f"ds_write_b128 v249, {vr(176+4*q,4)} offset:{q*1024}")
    unpark=[I(f"ds_read_b128 {vr(176+4*q,4)}, v249 offset:{q*1024}") for q in range(4)]
    P.extend(stamp(52))
    P.extend(flat(pro[OPT['early']:]))
    P.extend(stamp(53))
    P.append(WAIT(vm=["x0","w0a"]+([] if OPT['split0'] else ["w0"]),lgkm=0)); e("s_barrier")
    P.extend(stamp(1))
    P.extend(reads(0))
    first=[]
    if OPT['npre']==1:
        first=xdma(1)+wdma(1); P.extend(flat(first[:OPT['pre1']])); first=first[OPT['pre1']:]
    P.append(WAIT(lgkm=0))
    pool=Pool(flat([epi(0,t) for t in range(5)]))
    dq=[]
    for s in range(max(2,OPT['npre']),14):
        if s<=6: dq.append((max(0,2*(s-4)+1),xdma(s)))
        dq.append((max(0,2*(s-4)+1),wdma(s)))
        if s==8: dq.append((0,[[I(f"buffer_load_dword v14, v15, {srd(DBG)}, 0 offen sc1","clr")]]))
    w2q=[(max(OPT['w2p0'],LOC[b][1]),D.w2dma(b)) for b in range(10)]
    cur=first
    for Pn in range(28):
        p,s,h=Pn//14,Pn//2,Pn%2
        CH=(p==1 or OPT['chainA']) and not (OPT['split0'] and s==0)
        mf=[]
        for jq in range(2 if CH else 4):
            for t in range(5):
                for ks in ((0,1) if CH else (h,)):
                    q = (2*jq+h) if CH else jq
                    j = (2*jq+ks) if CH else jq
                    d=vr(ACC(p,q,t),4)
                    mf.append(mfma(d,vr(AF(h,j),4),XF((2*(s%7)+ks)*5+t),"0" if (s%7==0 and ks==0) else d))
        f=[]
        if Pn<27:
            rd=reads(Pn+1)
            if Pn==0 and OPT['split0']:
                xs=[x for x in rd if "b128" in x.op]; tr=[x for x in rd if "b128" not in x.op]
                f+=spread(xs,0,5)+[(7.9,WAIT(vm=["w0"])),(7.95,I("s_barrier"))]+spread(tr,8,16)
            else: f+=spread(rd,0,min(12,len(rd)))
        items=[]
        while len(items)<(OPT['rateA'] if Pn<OPT['nA'] else OPT['rate']):
            if not cur:
                if dq and dq[0][0]<=Pn: cur=dq.pop(0)[1]
                elif w2q and w2q[0][0]<=Pn: cur=w2q.pop(0)[1]
                else: break
            items.append(cur.pop(0))
        n=len(items)
        for k,it in enumerate(items):
            pos=1+k*(19 if Pn else 14)/max(n,5)
            for x in it:
                f.append((pos-1 if x.cls=="salu" else (pos+1 if x.cls=="valu" else pos),x))
        if Pn==16: f+=spread(unpark,8,12)
        if Pn==OPT['gop']: f.append((19,I(f"buffer_store_dword v{vOne}, v250, {srd(DBG)}, 0 offen offset:4 sc1","go")))
        tl=[]
        if h==0: tl=[WAIT(vm=[f"w{s+1}",f"x{s+1}"],lgkm=0),I("s_barrier")]
        elif Pn<27: tl=[WAIT(lgkm=0)]
        n0=len(P)
        if OPT['p2']:
            P.extend(pack2(mf,f,pool if p==1 else None,(OPT['capc']-2 if Pn<OPT['cp'] and p==1 else 0),lo=(2 if Pn==14 else 0),tail=tl,dsend=16))
        else:
            P.extend(pack(mf,f,pool if p==1 else None,(OPT['capc'] if Pn<OPT['cp'] else OPT['cap']),lo=(2 if Pn==14 else 0))); P.extend(tl)
        if OPT['est']: print("ffn period",Pn,estimate(P[n0:]),"pool",len(pool.q))
        if Pn==13: P.extend(stamp(2))
        if h==0: P.extend(stamp(32+s))
    assert not dq
    print("left: epiA ops",len(pool.q),"w2 items",len(w2q))
    P.extend(stamp(3))
    P.extend(pool.q)
    P.extend(flat(cur))
    for _,g_ in w2q: P.extend(flat(g_))
    e(f"s_add_u32 s{sHst}, s{sHst}, {2*NT*1024}")
    S=[WAIT(vm=["b0"])]+D.treads(0); WQ=[]
    for j in range(8):
        S+=[WAIT(vm=[f"b{j+1}"])]+D.treads(j+1)+[WAIT(lgkm=8)] if j<7 else [WAIT(lgkm=0)]
        if OPT['pA']==5+j: S.append(D.poll("pollA"))
        if j>=8-OPT['weave']: WQ+=[(0,it) for it in D.w2dma(10+j)]
        else: S+=[x for x in flat(D.w2dma(10+j)) if not (x.cls=="vm" and j>=8-OPT['skipS'])]
        if j+1==OPT['nin']: n_in=len(S)
        if j+1==OPT['sBs']+OPT['nin']:
            S+=[WAIT(vm=["st1"]),I(f"buffer_atomic_add v{vOne}, v{vFl}, {srd(WS)}, 0 offen offset:512","sigB")]+stamp(10)
    E=[]
    for t in range(5):
        E+=epi(1,t)+stamp(46+t)
        if t==OPT['sAt']: E.append("sigA")
    k0=0
    for k,x in enumerate(E):
        if x=="sigA":
            P.append(WAIT(vm=["st0","clr"])); check_or_spin(15,0,1,DBG,14)
            e(f"buffer_atomic_add v{vOne}, v{vFl}, {srd(WS)}, 0 offen","sigA")
        else: P.append(x)
        k1=max(k0,n_in*(k+1)//len(E))
        while 0<k1<len(S) and S[k1-1].cls=="ds" and S[k1].cls=="ds": k1+=1
        P.extend(S[k0:k1]); k0=k1
    P.extend(stamp(4))
    P.extend(S[k0:])
    D.main(WQ,OPT['lead'],OPT['pah'])

HROW=[118784,49152,118784,65536,81920,139264,49152,0,118784,65536,16384,32768,98304,81920,139264,49152,0,118784]
hR=[[1,2,4,5],[64,65,66,67],[68,69,70,71]]; hsN,hsF0,hsQ=58,59,57
HD=Down(NTT=3,vt=(240,241,242),vW2=3,vWo=6,vH=231,vHt=(231,231),sLast=47,vPoll=12,vPoll2=14,vPA=72,vPO=73,vSA=74,vO=75,vRW=76,vRR=77,vS=80,vRT=96,
        sW2o=[None,40,41,42],sWr2=43,sNW2=47,sNH=48,sD=49,sWr3=50,sNWo=51,sNHo=52,sHld=53,sHO=54,sRow=55,
        m0=lambda b:(hsQ,HROW[b]),rd=lambda b:(hR[HROW[b]>>16],HROW[b]&0xffff),red=(0,4096,16384),
        ACC=lambda q,t:16+(q*3+t)*4,AF=lambda buf,q:160+16*buf+4*q,aSt=128,aH=0,nAS=10,NSL=10,vHS=0)
def helper_setup(regs):
    t=sT[:4]; t=[66,67,70,71]
    mksrd(WO,44,401408); mksrd(WD,52,1605632); mksrd(OUT,56,1835008)
    e(f"s_mul_i32 s{hsF0}, s{sXCD}, 3"); e(f"s_add_u32 s{hsF0}, s{hsF0}, 104"); e(f"s_add_u32 s61, s{sXCD}, 26"); e(f"s_lshl_b32 s{hsQ}, s{sW}, 12")
    keep=(HD.vW2,HD.vWo); HD.vW2,HD.vWo=regs[0],regs[1]
    HD.setup_w(hsF0,61,hsN,t)
    e(f"s_cmp_gt_u32 s{hsN}, 6"); e(f"s_cselect_b32 s66, {OOB}, 0"); e(f"v_or_b32 v{regs[0]}, s66, v{regs[0]}"); e(f"v_or_b32 v{regs[1]}, s66, v{regs[1]}")
    HD.vW2,HD.vWo=keep
    HD.setup_lane([regs[2:6]],[hsQ],t)
    e("v_lshlrev_b32 v231, 4, v0")
    HD.setup_io(hsF0,hsN,t)
    for j in range(8): e(f"v_accvgpr_write_b32 a{248+j}, v{72+j}")
hwin=[0]
def hstage(b):
    o=[]; w=HROW[b]>>16
    if w!=hwin[0]: o+=[I(f"v_add_u32 v{r}, {((w-hwin[0])<<16)&0xffffffff}, v{r}") for r in hR[0]]; hwin[0]=w
    return o+HD.treads(b,lambda b_:(hR[0],HROW[b_]&0xffff))

def attn():
    sAT,sHG=72,73
    sXb,sWb=74,75
    sWo={(0,0):76,(0,1):77,(1,0):78,(1,1):79,(2,0):80,(2,1):81}
    sK,sD0,sD1,sO,sC=82,83,84,85,86
    mE,mM0,mM1,mZ=88,90,100,68
    t0,t1=66,67; t2_,t3=70,71
    vX=[1,2,3,4,5]; vW=6; vXR=(7,8); vR0=(9,10); vR1=(11,12); vRq=(13,14); vPad=15
    vA=(224,225)
    TBL=159744; XB=98304
    Q=lambda u,tl: 16+(u*2+tl)*4
    K=lambda t,tl: 80+(t*2+tl)*4
    V=lambda d,t: 152+d*36+t*4
    XA=lambda buf,t: buf*36+4*t
    WF=lambda buf,m,tl: 72+buf*24+(2*m+tl)*4
    e("L_attn:")
    e(f"s_lshr_b32 s{sAT}, s{sXCD}, 2"); e(f"s_lshl_b32 s{sAT}, s{sAT}, 3"); e(f"s_add_u32 s{sAT}, s{sAT}, s{sJ}"); e(f"s_sub_u32 s{sAT}, s{sAT}, 1"); e(f"s_and_b32 s{sHG}, s{sXCD}, 3")
    e("v_lshrrev_b32 v230, 3, v0"); e("v_and_b32 v231, 7, v0")
    e(f"s_and_b32 s{t0}, s{sW}, 1"); e(f"s_lshl_b32 s{t1}, s{t0}, 2")
    e("v_lshrrev_b32 v232, 1, v230"); e(f"v_or_b32 v232, s{t1}, v232"); e("v_xor_b32 v232, v232, v231"); e("v_lshlrev_b32 v232, 4, v232")
    e(f"s_lshl_b32 s{t2_}, s{sAT}, 7"); e(f"s_lshl_b32 s{t3}, s{sW}, 3"); e(f"s_add_u32 s{t2_}, s{t2_}, s{t3}")
    e(f"v_add_u32 v{vX[0]}, s{t2_}, v230"); e(f"v_mul_u32_u24 v{vX[0]}, 896, v{vX[0]}"); e(f"v_add_u32 v{vX[0]}, v{vX[0]}, v232")
    for j in range(1,5): e(f"v_add_u32 v{vX[j]}, {32*j*896}, v{vX[0]}")
    e(f"s_cmp_lt_u32 s{t2_}, 16"); e(f"s_cselect_b32 s{t0}, {OOB}, 0"); e(f"v_or_b32 v{vX[0]}, s{t0}, v{vX[0]}")
    e(f"s_cmp_ge_u32 s{sW}, 2"); e(f"s_cselect_b32 s{t0}, {OOB}, 0"); e(f"v_or_b32 v{vX[4]}, s{t0}, v{vX[4]}")
    e("v_lshrrev_b32 v230, 4, v0"); e("v_and_b32 v231, 15, v0")
    e(f"s_and_b32 s{t0}, s{sW}, 2"); e(f"s_lshl_b32 s{t0}, s{t0}, 1"); e(f"v_or_b32 v232, s{t0}, v230"); e("v_lshlrev_b32 v232, 1, v232"); e("v_xor_b32 v232, v232, v231")
    e(f"s_lshl_b32 s{t0}, s{sW}, 2"); e(f"v_add_u32 v{vW}, s{t0}, v230"); e(f"v_mul_u32_u24 v{vW}, 2688, v{vW}")
    e(f"v_lshl_add_u32 v{vW}, v232, 4, v{vW}"); e(f"s_mul_i32 s{t0}, s{sHG}, 224"); e(f"v_add_u32 v{vW}, s{t0}, v{vW}")
    e(f"v_mov_b32 v233, {OOB}"); e("v_cmp_lt_u32 vcc, 13, v232"); e(f"v_cndmask_b32 v{vW}, v{vW}, v233, vcc")
    sWr,sD,sNW,sKx,sKt=92,93,99,87,3
    e(f"s_lshl_b32 s{t0}, s{sHG}, 1"); e(f"s_add_u32 s{t0}, s{t0}, s{sAT}")
    if OPT['arot']==7:
        e(f"s_mul_i32 s{t1}, s{t0}, 9363"); e(f"s_lshr_b32 s{t1}, s{t1}, 16"); e(f"s_mul_i32 s{t1}, s{t1}, 7"); e(f"s_sub_u32 s{t0}, s{t0}, s{t1}")
    elif OPT['arot']==2: e(f"s_and_b32 s{t0}, s{t0}, 1"); e(f"s_mul_i32 s{t0}, s{t0}, 3")
    elif OPT['arot']==4: e(f"s_and_b32 s{t0}, s{sAT}, 3"); e(f"s_lshl_b32 s{t0}, s{t0}, 1")
    else: e(f"s_mov_b32 s{t0}, 0")
    e(f"s_sub_u32 s{sWr}, 6, s{t0}"); e(f"s_lshl_b32 s{sKx}, s{t0}, 7"); e(f"s_lshl_b32 s{sKt}, s{t0}, 9")
    e(f"s_mul_i32 s{t1}, s{t0}, {64*2688}"); e(f"v_add_u32 v{vW}, s{t1}, v{vW}"); e(f"s_mov_b32 s{sNW}, {-13*32*2688}")
    e(f"s_lshl_b32 s{sXb}, s{sW}, 10"); e(f"s_add_u32 s{sXb}, s{sXb}, {XB}")
    e(f"s_mul_i32 s{sWb}, s{sW}, 6144")
    for (m,j),r in sWo.items():
        imm=((2*m+j)%4)*1024
        e(f"s_mov_b32 s{r}, {4096+m*896+16*j*2688-imm}")
    e(f"s_lshl_b32 s{t0}, s{sW}, 6"); e(f"v_add_u32 v234, s{t0}, v0"); e("v_lshlrev_b32 v235, 2, v234")
    e("s_waitcnt lgkmcnt(0)")
    mksrd(GW,54,896); mksrd(X,40,1835008,14336); mksrd(WA,42,1204224,4096)
    P.extend(stamp(0))
    if OPT['ap1']:
        sV=46
        e(f"s_lshl_b32 s{sV}, s{sAT}, 2"); e(f"s_add_u32 s{sV}, s{sV}, s{sHG}"); e(f"s_lshl_b32 s{sV}, s{sV}, 2"); e(f"s_add_u32 s{sV}, s{sV}, s{sW}")
        e("v_min_u32 v240, 47, v0"); e("v_mul_u32_u24 v241, 21846, v240"); e("v_lshrrev_b32 v241, 16, v241"); e("v_mul_u32_u24 v242, 3, v241"); e("v_sub_u32 v242, v240, v242")
        e(f"s_lshl_b32 s{t0}, s{sV}, 4"); e(f"v_add_u32 v243, s{t0}, v241"); e("v_mul_u32_u24 v243, 896, v243"); e("v_lshl_add_u32 v243, v242, 8, v243"); e("v_add_u32 v243, 128, v243")
        e(f"s_and_b32 s{t0}, s{sV}, 63"); e("v_min_u32 v241, 13, v241"); e("v_lshlrev_b32 v242, 7, v242"); e(f"v_add_u32 v242, s{t0}, v242"); e("v_add_u32 v242, 64, v242")
        e("v_mul_u32_u24 v242, 3584, v242"); e("v_lshl_add_u32 v242, v241, 8, v242")
        e(f"s_cmp_ge_u32 s{sV}, 192"); e(f"s_cselect_b32 s{WU}, s50, s48"); e(f"s_cselect_b32 s{WU+1}, s51, s49")
        e(f"s_cmp_lt_u32 s{sV}, 128"); e(f"s_cselect_b32 s{WU}, s40, s{WU}"); e(f"s_cselect_b32 s{WU+1}, s41, s{WU+1}"); e(f"s_cselect_b64 vcc, -1, 0")
        e(f"s_mov_b32 s{WU+2}, 1605632"); e(f"s_cselect_b32 s{WU+2}, 1835008, s{WU+2}"); e(f"s_mov_b32 s{WU+3}, 0x20000")
        e("v_cndmask_b32 v242, v242, v243, vcc")
        e(f"buffer_load_dword a140, v242, {srd(WU)}, 0 offen","pf")
    e(f"buffer_load_dword v236, v235, {srd(GW)}, 0 offen","gw")
    def xdma(c):
        o=[I(f"s_mov_b32 s{sK}, s{sKx}"),I(f"s_add_u32 s{sKx}, s{sKx}, 128"),ATOM(f"s_cmp_eq_u32 s{sWr}, {c}",f"s_cselect_b32 s{sKx}, 0, s{sKx}")]
        for j in range(5):
            o.append(I(f"s_add_u32 m0, s{sXb}, {(c%3)*20480+j*4096}"))
            o.append(dma(vX[j],X,f"s{sK}",0,f"x{c}"))
        return o
    def wdma(k):
        o=[]
        for m in range(3):
            if m!=1: o.append(I(f"s_add_u32 m0, s{sWb}, {(k%4)*24576+(4096 if m==2 else 0)}"))
            for j in range(2): o.append(dma(vW,WA,f"s{sWo[(m,j)]}",((2*m+j)%4)*1024,f"w{k}"))
        if k%2==1:
            o[-1:-1]=[ATOM(f"s_cmp_eq_u32 s{sWr}, {k//2}",f"s_cselect_b32 s{sD}, s{sNW}, {32*2688}")]
            o.append(I(f"v_add_u32 v{vW}, s{sD}, v{vW}"))
        else: o.append(I(f"v_add_u32 v{vW}, {32*2688}, v{vW}"))
        return o
    pro=xdma(0)+wdma(0)+wdma(1)
    cutp=[k for k,x in enumerate(pro) if x.cls=="vm"][OPT['aearly']-1]+1 if OPT['aearly'] else 0
    P.extend(pro[:cutp])
    aq=[(0,xdma(1)),(0,wdma(2)),(0,wdma(3)),(0,xdma(2))]
    for k in range(4,14):
        aq.append((k-4+(1 if k-4<OPT['amid'] else 0),wdma(k)))
        if k%2==1 and (k+1)//2<=6: aq.append((2*((k+1)//2-3)+1+(1 if 2*((k+1)//2-3)+1<OPT['amid'] else 0),xdma((k+1)//2)))
    acur=[]
    mksrd(WS,60,WSN); mksrd(DBG,58,256)
    HELP=OPT['ntt']==4
    APW=[94,95,96,97] if not (OPT['stamp'] or OPT['probe']!=-2) else [12,13,14,15]
    if OPT['apW']>=0:
        if APW[0]==12: APW=[4+60+0,0,0,0]
    APW=[48,49,50,51]
    if HELP: e(f"s_and_b32 s{t0}, s{sXCD}, 3"); e(f"s_cmp_eq_u32 s{t0}, 3"); e(f"s_cselect_b32 s{t0}, 1, 0"); e(f"s_add_u32 s{hsN}, s{sJ}, s{t0}")
    if HELP:
        helper_setup([232,233,234+9,245,246,247])
        for j,r in enumerate([232,243,245,246,247,233]): e(f"v_accvgpr_write_b32 a{122+j}, v{r}")
    else: mksrd(WO,44,401408); mksrd(WD,52,1605632)
    e(f"s_sub_u32 s{t0}, s{sJ}, 1"); e(f"s_lshl_b32 s{t0}, s{t0}, 2"); e(f"s_add_u32 s{t0}, s{t0}, s{sW}"); e(f"s_lshl_b32 s{t0}, s{t0}, 6")
    e(f"v_add_u32 v227, s{t0}, v0"); e("v_lshlrev_b32 v226, 7, v227"); e(f"s_mov_b32 s36, {2048*128}")
    if OPT['apW']>=0:
        e(f"s_lshl_b32 s{t0}, s{sAT}, 2"); e(f"s_add_u32 s{t0}, s{t0}, s{sHG}"); e(f"s_lshl_b32 s{t0}, s{t0}, 2"); e(f"s_add_u32 s{t0}, s{t0}, s{sW}")
        e(f"s_cmp_ge_u32 s{t0}, 128"); e(f"s_cselect_b32 s{WU}, s{APW[2]}, s{APW[0]}"); e(f"s_cselect_b32 s{WU+1}, s{APW[3]}, s{APW[1]}"); e(f"s_mov_b32 s{WU+2}, 1605632"); e(f"s_mov_b32 s{WU+3}, 0x20000")
        e(f"s_and_b32 s{t0}, s{t0}, 127"); e(f"s_mul_i32 s{t0}, s{t0}, 49"); e("v_min_u32 v238, 48, v0"); e(f"v_add_u32 v238, s{t0}, v238"); e("v_lshlrev_b32 v238, 8, v238"); e("v_add_u32 v238, 128, v238")
        e("v_accvgpr_write_b32 a129, v238")
    if OPT['apA']>=0 or OPT['apB']>=0:
        e("v_mul_u32_u24 v228, 9363, v227"); e("v_lshrrev_b32 v228, 22, v228"); e("v_mul_u32_u24 v228, 448, v228"); e("v_add_u32 v228, v228, v227"); e("v_lshlrev_b32 v228, 7, v228")
        e("v_cmp_lt_u32 vcc, 1791, v227"); e(f"v_mov_b32 v229, {OOB}"); e("v_cndmask_b32 v227, v228, v229, vcc"); e(f"v_add_u32 v239, {448*128}, v227"); e("v_accvgpr_write_b32 a128, v239")
        for j in range(1,4): e(f"s_mov_b32 s{36+j}, {3584*128*j}")
    e("v_lshrrev_b32 v230, 4, v0"); e("v_and_b32 v231, 15, v0")
    e("v_lshrrev_b32 v232, 1, v231"); e("v_xor_b32 v232, v232, v230"); e("v_lshlrev_b32 v232, 4, v232")
    e("v_lshl_add_u32 v232, v231, 7, v232"); e(f"v_add_u32 v{vXR[0]}, {XB}, v232"); e(f"v_xor_b32 v{vXR[1]}, 64, v{vXR[0]}")
    e("v_bfe_u32 v232, v0, 2, 2"); e("v_and_b32 v233, 3, v0")
    e("v_and_b32 v237, 1, v230"); e("v_lshl_add_u32 v238, v237, 2, v232"); e("v_lshlrev_b32 v238, 2, v238")
    e("v_mul_u32_u24 v237, 12288, v237"); e("v_lshrrev_b32 v239, 1, v230"); e("v_lshl_add_u32 v237, v239, 10, v237"); e("v_lshl_add_u32 v237, v232, 8, v237")
    e(f"s_mul_i32 s{t0}, s{sW}, 7")
    e(f"v_add_u32 v239, s{t0}, v233")
    e("v_xor_b32 v240, v239, v238"); e(f"v_lshl_add_u32 v{vR0[0]}, v240, 3, v237")
    e("v_add_u32 v239, 4, v239")
    e("v_and_b32 v240, 3, v239"); e("v_or_b32 v240, 28, v240"); e("v_cmp_eq_u32 vcc, 3, v233"); e("v_cndmask_b32 v239, v239, v240, vcc")
    e("v_xor_b32 v240, v239, v238"); e(f"v_lshl_add_u32 v{vR1[0]}, v240, 3, v237")
    e(f"v_cndmask_b32 v{vPad}, 0, 1, vcc")
    e(f"v_add_u32 v{vR0[1]}, 49152, v{vR0[0]}"); e(f"v_add_u32 v{vR1[1]}, 49152, v{vR1[0]}")
    e("v_lshl_add_u32 v240, v230, 3, v232"); e("v_lshlrev_b32 v240, 3, v240"); e(f"v_add_u32 v240, {TBL}, v240")
    e(f"v_cndmask_b32 v{vRq[0]}, v{vR1[0]}, v240, vcc"); e(f"v_cndmask_b32 v{vRq[1]}, v{vR1[1]}, v240, vcc")
    P.append(WAIT(vm=["gw"]))
    e("v_and_b32 v244, 0xffff, v236"); e("v_mov_b32 v245, 0"); e("v_lshrrev_b32 v246, 16, v236"); e("v_mov_b32 v247, 0")
    e("v_lshlrev_b32 v234, 4, v234"); e(f"v_add_u32 v234, {TBL}, v234")
    e("ds_write_b128 v234, v[244:247]")
    def reads(k):
        sl=k%4; h=sl//2; buf=k%2
        pre=[]; tr=[]
        for a in range(2):
            imm=(sl%2)*24576+a*6144
            pre.append(I(f"s_add_u32 s{(sD0,sD1)[a]}, s{sKt}, {(256*(k%2)+32*a-imm)&0xffffffff}"))
            pre.append(I(f"v_mad_i32_i24 v{vA[a]}, v{vPad}, s{(sD0,sD1)[a]}, v{vRq[h]}"))
        for m in range(3):
            for tl in range(2):
                for a in range(2):
                    ad = vR0[h] if tl==0 else (vA[a] if m==0 else vR1[h])
                    tr.append(I(f"ds_read_b64_tr_b16 {ar(WF(buf,m,tl)+2*a,2)}, v{ad} offset:{(sl%2)*24576+a*6144+m*2048}"))
        xs=[I(f"ds_read_b128 {ar(XA(buf,t),4)}, v{vXR[k%2]} offset:{((k//2)%3)*20480+t*2048}") for t in range(9)]
        if k%2==1: pre+=[I(f"s_add_u32 s{sKt}, s{sKt}, 512"),ATOM(f"s_cmp_eq_u32 s{sWr}, {k//2}",f"s_cselect_b32 s{sKt}, 0, s{sKt}")]
        return pre+tr[:2]+xs+tr[2:]
    P.extend(pro[cutp:])
    P.append(WAIT(vm=["x0","w0"],lgkm=0)); e("s_barrier")
    P.extend(stamp(1))
    P.extend(reads(0))
    if OPT['amid']: P.append(WAIT(lgkm=0))
    else: P.append(WAIT(vm=["w1"],lgkm=0)); e("s_barrier")
    cA0,cB0,cA1,cB1,vNeg,vH,vH4,vSt,vFl=226,227,228,229,230,231,250,251,252
    import struct
    f2u=lambda x: struct.unpack("<I",struct.pack("<f",x))[0]
    n0=len(P)
    e("v_lshrrev_b32 v232, 4, v0"); e("v_and_b32 v233, 15, v0")
    e("v_and_b32 v234, 1, v233"); e(f"v_cmp_eq_u32 s[{mE}:{mE+1}], 0, v234")
    e("v_lshl_add_u32 v235, v232, 2, v234"); e(f"v_cmp_le_u32 s[{mM0}:{mM0+1}], v235, v233")
    e("v_add_u32 v235, 2, v235"); e(f"v_cmp_le_u32 s[{mM1}:{mM1+1}], v235, v233")
    e("v_mov_b32 v236, 0xffff0000"); e("v_mov_b32 v237, 0xffff"); e(f"v_lshlrev_b32 v{vH}, 4, v0"); e(f"v_add_u32 v{vH4}, 4096, v{vH}")
    e(f"v_cndmask_b32 v236, v236, v237, s[{mE}:{mE+1}]")
    e(f"v_cndmask_b32 v{cA0}, 0, v236, s[{mM0}:{mM0+1}]"); e(f"v_xor_b32 v{cB0}, v{cA0}, v236")
    e(f"v_cndmask_b32 v{cA1}, 0, v236, s[{mM1}:{mM1+1}]"); e(f"v_xor_b32 v{cB1}, v{cA1}, v236")
    e(f"v_mov_b32 v{vNeg}, 0xf149f2ca")
    P.append(ATOM(f"s_cmp_eq_u32 s{sAT}, 0",f"s_cselect_b64 s[{mZ}:{mZ+1}], -1, 0"))
    e(f"s_mov_b32 s{sC}, {f2u(28**-0.5*math.log2(math.e)):#x}"); e(f"s_mov_b32 s{sK}, 0x3fb8aa3b")
    e(f"s_lshl_b32 s{t0}, s{sHG}, 2"); e(f"s_add_u32 s{t0}, s{t0}, s{sW}"); e(f"s_add_u32 s{t0}, s{t0}, 56"); e(f"s_mul_i32 s{t0}, s{t0}, {NT}")
    e(f"s_lshl_b32 s{t1}, s{sAT}, 3"); e(f"s_add_u32 s{t0}, s{t0}, s{t1}"); e(f"s_lshl_b32 s{t0}, s{t0}, 10"); e(f"s_add_u32 s{sO}, s{t0}, {H0}")
    e(f"s_mul_i32 s{t0}, s{sHG}, {SSTR}"); e(f"s_lshl_b32 s{t1}, s{sAT}, 9"); e(f"s_add_u32 s{t0}, s{t0}, s{t1}"); e(f"s_add_u32 s{t0}, s{t0}, {S0}")
    P.append(ATOM(f"s_cmp_eq_u32 s{sW}, 0",f"s_cselect_b32 s{t0}, s{t0}, {OOB}"))
    e(f"v_lshlrev_b32 v{vSt}, 2, v0"); e(f"v_add_u32 v{vSt}, s{t0}, v{vSt}")
    e(f"s_lshl_b32 s{t0}, s{sAT}, 2"); e(f"s_add_u32 s{t0}, s{t0}, s{sHG}"); e(f"s_add_u32 s{t0}, s{t0}, 208"); e(f"s_lshl_b32 s{t0}, s{t0}, 7")
    e("v_min_u32 v238, 1, v0"); e("v_lshlrev_b32 v238, 31, v238"); e(f"v_or_b32 v{vFl}, s{t0}, v238")
    apool=Pool(P[n0:]); del P[n0:]
    U=range(8)
    A=lambda u: 232+u; B=lambda u: 240+u; M=lambda u: 170+u; T=lambda u: 178+u; L=lambda u: 206+u
    SP=lambda u: K(u,1); SO=lambda u: Q(u,1); PQ=lambda u: Q(u,0)
    ZC=(224,225)
    def pk(d,a): return I(f"v_cvt_pk_bf16_f32 v{d}, v{a}, v{a+1}")
    def pack4(d,a,b): return [pk(d,a),pk(d+1,a+2),pk(d+2,b),pk(d+3,b+2)]
    def seq(groups,cap=2):
        f=[]; g=0; room=cap
        for mg,ins in groups:
            for x in ins:
                if g<mg: g=mg; room=cap
                if cost(x)>room: g+=1; room=cap
                f.append((g,x)); room-=cost(x)
        return f
    for k in range(14):
        buf=k%2; mf=[]
        c=lambda d: "0" if k==0 else d
        two=lambda n: [(x,tl) for x in range(n) for tl in range(2)] if k==13 else [(x,tl) for tl in range(2) for x in range(n)]
        for u,tl in two(8): d=vr(Q(u,tl),4); mf.append(mfma(d,ar(WF(buf,0,tl),4),ar(XA(buf,u+1),4),c(d)))
        for t,tl in two(9): d=vr(K(t,tl),4); mf.append(mfma(d,ar(WF(buf,1,tl),4),ar(XA(buf,t),4),c(d)))
        for tl in range(2):
            for t in range(9): d=vr(V(tl,t),4); mf.append(mfma(d,ar(XA(buf,t),4),ar(WF(buf,2,tl),4),c(d)))
        f=[]
        if k<OPT['amid']:
            f+=[(25.9,WAIT(vm=[f"w{k+1}",f"x{(k+1)//2}"])),(25.95,I("s_barrier"))]+spread(reads(k+1),26,47)
        elif k<13: f+=spread(reads(k+1),0,36)
        dm=[]; nd=0
        while nd<OPT['arate']:
            if not acur:
                if aq and aq[0][0]<=k: acur=list(aq.pop(0)[1])
                else: break
            x=acur.pop(0); dm.append(x); nd+=(x.cls=="vm")
            while acur and acur[0].cls=="valu": dm.append(acur.pop(0))
        if k==8:
            dm.append(I("v_mov_b32 v249, 0")); dm.append(I(f"buffer_load_dword v248, v249, {srd(DBG)}, 0 offen sc1","clr"))
        if OPT['apf'] and OPT['apfk']<=k<OPT['apfk']+3:
            kk=k-OPT['apfk']
            if kk==0: dm+=[I(f"buffer_load_dword a{120+j}, v226, {srd(WO)}, {['0','s36'][j]} offen","pf") for j in range(2)]
        if k==OPT['apW']: dm+=[I("v_accvgpr_read_b32 v238, a129"),I(f"buffer_load_dword a138, v238, {srd(WU)}, 0 offen","pf")]
        for base,k0,av in ((130,OPT['apA'],227),(134,OPT['apB'],239)):
            if k0>=0 and k0<=k<k0+2:
                if av==239 and k==k0: dm.append(I("v_accvgpr_read_b32 v239, a128"))
                dm+=[I(f"buffer_load_dword a{base+2*(k-k0)+j}, v{av}, {srd(WD)}, {['0','s37','s38','s39'][2*(k-k0)+j]} offen","pf") for j in range(2)]
        if HELP:
            if k==8:
                assert all(x.tag[0]!="x" for x in dm+acur+flat([g_ for _,g_ in aq]) if x.cls=="vm")
                f+=spread([I(f"v_accvgpr_read_b32 v{r}, a{122+j}") for j,r in enumerate([HD.vW2]+hR[0])],44,51)
            for b in {9:[0],10:[1],11:[2,3,4],12:[5,6,7],13:list(range(8,8+OPT['hp13']))}.get(k,[]):
                assert not acur
                dm+=flat(HD.w2dma(b))
            sb={10:[0],11:[1],12:[2,3]}.get(k,[])
            if sb: f+=spread([WAIT(vm=[f"b{sb[-1]}"])]+flat([hstage(b) for b in sb]),36.5,50)
        pos=0; nd=0
        for x in dm:
            if x.cls=="vm": nd+=1
            pos=max(pos+0.001,4.3*nd-(2 if x.cls=="vm" else (1 if x.cls=="valu" else -1))); f.append((pos,x))
        if k==13:
            assert not apool.q and not aq and not acur
            for u in U:
                mf.append(mfma(vr(SP(u),4),vr(K(u,0),4),vr(Q(u,0),4),"0")); mf.append(mfma(vr(SO(u),4),vr(K(u+1,0),4),vr(Q(u,0),4),"0"))
            G=[(2*u+5,pack4(Q(u,0),Q(u,0),Q(u,1))) for u in U]
            zc=[]
            for h in range(2):
                q=[Q(4*h+x,1) for x in range(4)]
                zc.append([I(f"v_permlane16_swap_b32 v{q[2]}, v{q[3]}"),I(f"v_permlane16_swap_b32 v{q[0]}, v{q[1]}"),I(f"v_permlane32_swap_b32 v{q[1]}, v{q[3]}"),
                           I(f"v_mul_f32 v{ZC[h]}, s{sK}, v{q[3]}"),I(f"v_min_f32 v{ZC[h]}, 0x42c80000, v{ZC[h]}"),I(f"v_exp_f32 v{ZC[h]}, v{ZC[h]}"),I(f"v_add_f32 v{7+h}, 1.0, v{ZC[h]}")])
            zi=[x for pr in zip(*zc) for x in pr]
            for t in range(9):
                G.append((16+2*t+5,pack4(K(t,0),K(t,0),K(t,1))))
                if t in (1,3,5): G.append((0,zi[:2] if t==1 else (zi[2:4] if t==3 else zi[4:6])))
            G.append((0,zi[6:8]))
            for d in range(2):
                for t in range(9):
                    G.append((34+9*d+t+4,[pk(V(d,0)+2*t,V(d,t)),pk(V(d,0)+2*t+1,V(d,t)+2)]))
                    if d==0 and t in (2,4,6): G.append((0,zi[8+(t-2):10+(t-2)]))
            f+=seq(G)
        tl=[]
        if k<13: tl=[WAIT(lgkm=0)] if k+1<OPT['amid'] else [WAIT(vm=[f"w{k+2}",f"x{(k+2)//2}"],lgkm=0),I("s_barrier")]
        n0=len(P)
        if OPT['p2']: P.extend(pack2(mf,f,apool if 11<=k<13 else None,tail=tl,dsend=48))
        else: P.extend(pack(mf,f,apool if 11<=k<13 else None)); P.extend(tl)
        if OPT['est']: print("attn period",k,estimate(P[n0:]))
        if k<13: P.extend(stamp(32+k))
    P.extend(stamp(2))
    sE=f"s[{mE}:{mE+1}]"
    n_in0=len(P)
    for u in U:
        e(f"v_cndmask_b32 v{M(u)}, v{SP(u)+1}, v{SP(u)}, {sE}"); e(f"v_cndmask_b32 v{T(u)}, v{SP(u)+3}, v{SP(u)+2}, {sE}")
        e(f"v_cndmask_b32 v{A(u)}, v{SO(u)+1}, v{SO(u)}, {sE}"); e(f"v_cndmask_b32 v{B(u)}, v{SO(u)+3}, v{SO(u)+2}, {sE}")
        if u==0:
            e(f"v_cndmask_b32 v{M(0)}, v{M(0)}, v{vNeg}, s[{mZ}:{mZ+1}]"); e(f"v_cndmask_b32 v{T(0)}, v{T(0)}, v{vNeg}, s[{mZ}:{mZ+1}]")
        e(f"v_cndmask_b32 v{A(u)}, v{M(u)}, v{A(u)}, s[{mM0}:{mM0+1}]"); e(f"v_cndmask_b32 v{B(u)}, v{T(u)}, v{B(u)}, s[{mM1}:{mM1+1}]")
        e(f"v_max_f32 v{M(u)}, v{A(u)}, v{B(u)}")
    def allred(R,op,mid):
        H=(0,4)
        for h in H: e(f"v_permlane32_swap_b32 v{R(h)}, v{R(h+2)}"); e(f"v_permlane32_swap_b32 v{R(h+1)}, v{R(h+3)}")
        for h in H: e(f"{op} v{R(h)}, v{R(h)}, v{R(h+2)}"); e(f"{op} v{R(h+1)}, v{R(h+1)}, v{R(h+3)}")
        for h in H: e(f"v_permlane16_swap_b32 v{R(h)}, v{R(h+1)}")
        for h in H: e(f"{op} v{R(h)}, v{R(h)}, v{R(h+1)}")
        mid(H)
        for h in H: e(f"v_mov_b32 v{R(h+1)}, v{R(h)}")
        for h in H: e(f"v_permlane16_swap_b32 v{R(h)}, v{R(h+1)}")
        for h in H: e(f"v_mov_b32 v{R(h+2)}, v{R(h)}"); e(f"v_mov_b32 v{R(h+3)}, v{R(h+1)}")
        for h in H: e(f"v_permlane32_swap_b32 v{R(h)}, v{R(h+2)}"); e(f"v_permlane32_swap_b32 v{R(h+1)}, v{R(h+3)}")
    def midM(H):
        for h in H: e(f"v_mul_f32 v{M(h)}, s{sC}, v{M(h)}")
    allred(M,"v_max_f32",midM)
    for u in U:
        e(f"v_fma_f32 v{A(u)}, v{A(u)}, s{sC}, -v{M(u)}"); e(f"v_fma_f32 v{B(u)}, v{B(u)}, s{sC}, -v{M(u)}")
    for u in U:
        e(f"v_exp_f32 v{A(u)}, v{A(u)}"); e(f"v_exp_f32 v{B(u)}, v{B(u)}")
        if u: e(f"v_add_f32 v{L(u-1)}, v{A(u-1)}, v{B(u-1)}")
    e(f"v_add_f32 v{L(7)}, v{A(7)}, v{B(7)}")
    def midL(H):
        for h in H: e(f"v_rcp_f32 v{L(h)}, v{L(h)}")
        for h in H: e(f"v_rcp_f32 v{T(h)}, v{7+h//4}")
        for h in H: e(f"v_mul_f32 v{L(h)}, v{L(h)}, v{ZC[h//4]}")
        e(f"buffer_store_dword v{T(0)}, v{vSt}, {srd(WS)}, 0 offen sc1","st"); e(f"buffer_store_dword v{T(4)}, v{vSt}, {srd(WS)}, 0 offen offset:256 sc1","st")
    allred(L,"v_add_f32",midL)
    if HELP and OPT['hin']:
        assert OPT['hp13']==5
        body=P[n_in0:]; del P[n_in0:]
        S2=[I(f"v_accvgpr_read_b32 v{HD.vWo}, a127")]+[I(f"v_accvgpr_read_b32 v{r}, a{248+j}") for j,r in enumerate((9,10,11,12,14,15,186,187))]
        S2+=[WAIT(vm=["b7"])]+flat([hstage(b) for b in range(4,8)])+[WAIT(lgkm=0)]
        nr=len(S2); S2+=flat([flat(HD.w2dma(b)) for b in range(13,13+OPT['hin'])])
        k0=0; n1=len(body)//3
        for k,x in enumerate(body):
            P.append(x)
            k1=max(k0,nr*(k+1)//n1 if k<n1 else nr+(len(S2)-nr)*(k+1-n1)//(len(body)-n1))
            while 0<k1<len(S2) and (S2[k1].cls=="ds" or (S2[k1-1].cls=="valu" and k1<nr-1)): k1+=1
            P.extend(S2[k0:k1]); k0=k1
    def pre(u):
        return [I(f"v_mul_f32 v{A(u)}, v{A(u)}, v{L(u)}"),I(f"v_mul_f32 v{B(u)}, v{B(u)}, v{L(u)}"),
                I(f"v_cvt_pk_bf16_f32 v{A(u)}, v{A(u)}, v{A(u)}"),I(f"v_cvt_pk_bf16_f32 v{B(u)}, v{B(u)}, v{B(u)}"),
                I(f"v_and_b32 v{PQ(u)}, v{cB0}, v{A(u)}"),I(f"v_and_b32 v{PQ(u)+1}, v{cB1}, v{B(u)}"),
                I(f"v_and_b32 v{PQ(u)+2}, v{cA0}, v{A(u)}"),I(f"v_and_b32 v{PQ(u)+3}, v{cA1}, v{B(u)}")]
    def post(u):
        return pack4(PQ(u),SP(u),SO(u))+[I(f"buffer_store_dwordx4 {vr(PQ(u),4)}, v{vH if u<4 else vH4}, {srd(WS)}, s{sO} offen offset:{(u%4)*1024} sc1","st")]
    P.extend(pre(0))
    for u in range(10):
        if u+1<8: a_=pre(u+1)
        else: a_=[]
        P.extend(a_[:2])
        if u<8: P.append(mfma(vr(SP(u),4),vr(V(0,0)+2*u,4),vr(PQ(u),4),"0"))
        P.extend(a_[2:4])
        if u<8: P.append(mfma(vr(SO(u),4),vr(V(1,0)+2*u,4),vr(PQ(u),4),"0"))
        P.extend(a_[4:])
        if u>=2: P.extend(post(u-2))
        elif u==0: e("v_mov_b32 v13, 1")
    P.extend(stamp(3))
    nb=8+OPT['hp13']
    P.append(WAIT(vm=["clr"])); check_or_spin(249,0,1,DBG,248)
    if HELP:
        if OPT['hin']:
            for j,r in enumerate((9,10,11,12,14,15,186,187)): e(f"v_mov_b32 v{72+j}, v{r}")
            e("L_help:")
            P.append(HD.poll("pollA")); nb+=OPT['hin']
        else:
            e("L_help:")
            e(f"v_accvgpr_read_b32 v{HD.vWo}, a127")
            for j in range(8): e(f"v_accvgpr_read_b32 v{72+j}, a{248+j}")
            P.append(HD.poll("pollA"))
            P.append(WAIT(vm=["b7"])); P.extend(flat([hstage(b) for b in range(4,8)]))
        for b in range(nb,nb+OPT['hwin']): P.extend(flat(HD.w2dma(b)))
        nb+=OPT['hwin']
        if hwin[0]: P.extend([I(f"v_add_u32 v{r}, {(-hwin[0]<<16)&0xffffffff}, v{r}") for r in hR[0]])
        for w in (1,2):
            for q in range(4): e(f"v_add_u32 v{hR[w][q]}, {w<<16}, v{hR[0][q]}")
    P.append(WAIT(vm=["st"],lgkm=0))
    e(f"buffer_atomic_add v13, v{vFl}, {srd(WS)}, 0 offen","sig")
    if HELP:
        P.extend(stamp(4))
        e(f"s_cmp_gt_u32 s{hsN}, 6"); e("s_cbranch_scc1 L_hexit")
        HD.main([(0 if b<17 else 24,it) for b in range(nb,18) for it in HD.w2dma(b)],OPT['hlead'],OPT['hpah'],so=50)
        e("L_hexit:")
    P.extend(stamp(4,True))
    if not HELP and (OPT['l2o'] or OPT['l2b']):
        sA,sB,sWv=40,41,42
        e(f"s_mul_i32 s{t0}, s{sXCD}, 23"); e(f"s_lshr_b32 s{t1}, s{sXCD}, 2"); e(f"s_sub_u32 s{t0}, s{t0}, s{t1}"); e(f"s_add_u32 s{t1}, s{t0}, 22")
        for r,d in ((t0,sA),(t1,sB)): e(f"s_mul_i32 s{r}, s{r}, 9363"); e(f"s_lshr_b32 s{d}, s{r}, 16")
        e(f"s_min_u32 s{sB}, s{sB}, 25")
        e(f"s_sub_u32 s{sWv}, s{sJ}, 1"); e(f"s_lshl_b32 s{sWv}, s{sWv}, 2"); e(f"s_add_u32 s{sWv}, s{sWv}, s{sW}")
        e(f"s_sub_u32 s43, s{sB}, s{sA}"); e("s_add_u32 s43, s43, 1"); e("s_mul_i32 s43, s43, 40"); e("s_sub_u32 s43, s43, 1")
        e(f"s_mul_i32 s44, s{sA}, 5")
        def touch(sKap,first,n,step):
            e(f"s_mul_i32 s{t0}, s{sKap}, {NT}"); e(f"s_add_u32 s{t0}, s{t0}, s44"); e(f"s_lshl_b32 s{t0}, s{t0}, 10"); e(f"s_add_u32 s{t0}, s{t0}, {H0}")
            for k in range(n):
                e(f"v_add_u32 v20, {first}, v0") if isinstance(first,str) and k==0 else e(f"v_add_u32 v20, {step if k else first}, v{20 if k else 0}")
                e("v_min_u32 v21, s43, v20"); e("v_lshlrev_b32 v21, 7, v21"); e(f"buffer_load_dword v{24+k}, v21, {srd(WS)}, s{t0} offen sc1","pf")
        if OPT['l2b']:
            LB=lab("NB")
            e(f"s_cmp_ge_u32 s{sWv}, 28"); e(f"s_cbranch_scc1 {LB}")
            e(f"s_lshr_b32 s45, s{sWv}, 1"); e(f"s_and_b32 s46, s{sWv}, 1"); e("s_cmp_ge_u32 s45, 7"); e("s_cselect_b32 s47, 2, 0"); e("s_add_u32 s47, s47, s46")
            e(f"v_min_u32 v22, 4, v0"); e(f"v_add_u32 v22, s{sA}, v22"); e(f"v_min_u32 v22, s{sB}, v22"); e("v_lshlrev_b32 v22, 3, v22"); e("v_add_u32 v22, s47, v22"); e("v_lshlrev_b32 v22, 7, v22")
            spin(22,512,7,WS,23,nap=OPT['nap'])
            e("s_lshl_b32 s45, s45, 2"); e("s_add_u32 s45, s45, s46"); e("s_add_u32 s45, s45, 2")
            touch(45,0,4,64)
            e(LB+":")
        if OPT['l2o']:
            e(f"s_and_b32 s45, s{sWv}, 15"); e("s_lshr_b32 s46, s45, 2")
            e(f"s_lshr_b32 s47, s44, 3"); e(f"s_mul_i32 s48, s{sB}, 5"); e("s_add_u32 s48, s48, 4"); e("s_lshr_b32 s48, s48, 3"); e("s_min_u32 s48, s48, 15")
            e("v_min_u32 v22, 4, v0"); e("v_add_u32 v22, s47, v22"); e("v_min_u32 v22, s48, v22"); e("v_lshlrev_b32 v22, 2, v22"); e("v_add_u32 v22, s46, v22"); e("v_add_u32 v22, 208, v22"); e("v_lshlrev_b32 v22, 7, v22")
            e("s_waitcnt vmcnt(0)"); spin(22,0,4,WS,23,nap=OPT['napo'])
            e("s_add_u32 s45, s45, 56"); e(f"s_lshr_b32 s46, s{sWv}, 4"); e("s_lshl_b32 s46, s46, 6")
            touch(45,"s46",2,128)
    e("s_endpgm")

OPT_ORDER=[(0,1,2),(0,2,1),(2,0,1)]
def spare():
    KN=NAME+"_kernel"
    e("L_spare:")
    e("s_getpc_b64 s[68:69]")
    e("L_pc:")
    e(f"s_sub_u32 s68, s68, L_pc-{KN}"); e("s_subb_u32 s69, s69, 0")
    e(f"s_lshl_b32 s70, s{sW}, 13"); e("v_lshlrev_b32 v1, 7, v0"); e("v_add_u32 v2, s70, v1")
    e(f"v_min_u32 v3, L_end-{KN}-4, v2")
    e("global_load_dword v10, v3, s[68:69]","pf")
    e("v_add_u32 v2, 32768, v2"); e(f"v_min_u32 v3, L_end-{KN}-4, v2")
    e("global_load_dword v11, v3, s[68:69]","pf")
    e("s_waitcnt lgkmcnt(0)")
    mksrd(WS,60,WSN); mksrd(DBG,58,256)
    e(f"s_or_b32 s70, s2, s{sW}"); e("s_cmp_eq_u32 s70, 0"); e("s_cbranch_scc0 L_noclr")
    e("v_lshlrev_b32 v5, 8, v0"); e("v_mov_b32 v6, 0"); e("v_lshlrev_b32 v7, 7, v0"); e("v_mov_b32 v8, 1")
    for k in range(5):
        e(f"buffer_store_dword v6, v7, {srd(WS)}, 0 offen sc1"); e("v_add_u32 v7, 8192, v7")
    e("s_waitcnt vmcnt(0)")
    e(f"buffer_store_dword v8, v5, {srd(DBG)}, 0 offen sc1")
    e("L_noclr:")
    if OPT['tlb']:
        mksrd(WO,44,401408); mksrd(WD,52,1605632); mksrd(OUT,56,1835008)
        e(f"s_cmp_eq_u32 s{sW}, 1"); e("s_cbranch_scc0 L_notlb")
        e(f"v_mul_u32_u24 v20, {NT*1024}, v0"); e("v_lshlrev_b32 v21, 17, v0"); e(f"s_mov_b32 s70, {H0+129*1024}"); e(f"s_mov_b32 s71, {H0+129*1024+64*NT*1024}")
        e(f"buffer_load_dword v22, v20, {srd(WS)}, s70 offen","pf"); e(f"buffer_load_dword v23, v20, {srd(WS)}, s71 offen","pf")
        e(f"s_mov_b32 s70, {S0-128}"); e(f"buffer_load_dword v27, off, {srd(WS)}, s70","pf")
        for k,sr in enumerate((WD,WO,OUT)): e(f"buffer_load_dword v{24+k}, v21, {srd(sr)}, 0 offen","pf")
        e("s_waitcnt vmcnt(0)")
        e("L_notlb:")
    if OPT['ntt']==5 and OPT['gop']>=0:
        mksrd(WO,44,401408); mksrd(WD,52,1605632)
        e("v_mov_b32 v249, 0"); spin(249,4,1,DBG,248,nap=OPT['nap'])
        e(f"s_mul_i32 s66, s{sW}, 10"); e(f"s_add_u32 s66, s66, s{sI}"); e("s_lshl_b32 s66, s66, 6"); e("v_add_u32 v20, s66, v0")
        n=30
        for part in OPT_ORDER[OPT['sord']]:
            if part<2:
                for k in range(3):
                    e(f"v_add_u32 v21, {2560*k}, v20"); e("v_mul_u32_u24 v22, 9363, v21"); e("v_lshrrev_b32 v22, 22, v22"); e(f"v_add_u32 v22, {part}, v22")
                    e("v_mul_u32_u24 v22, 448, v22"); e("v_add_u32 v22, v22, v21"); e("v_lshlrev_b32 v22, 7, v22")
                    e(f"buffer_load_dword v{n}, v22, {srd(WD)}, 0 offen","pf"); n+=1
            else:
                for k in range(2):
                    e(f"v_add_u32 v21, {2560*k}, v20"); e("v_lshlrev_b32 v22, 7, v21"); e(f"buffer_load_dword v{n}, v22, {srd(WO)}, 0 offen","pf"); n+=1
    if OPT['ntt']==4:
        P.extend(stamp(0))
        e(f"s_min_u32 s{hsN}, s{sJ}, 1")
        helper_setup([HD.vW2,9]+hR[0])
        e("v_accvgpr_write_b32 a127, v9")
        e("v_lshlrev_b32 v231, 4, v0"); e(f"v_mov_b32 v252, {OOB}"); e("v_mov_b32 v13, 1"); e("v_mov_b32 v249, 0"); e("v_mov_b32 v248, 0")
        if OPT['gop']>=0: spin(249,4,1,DBG,248,nap=OPT['nap'])
        if OPT['spf']:
            e(f"s_mul_i32 s66, s{sXCD}, 392"); e(f"s_lshl_b32 s67, s{sW}, 6"); e("s_add_u32 s66, s66, s67"); e("v_add_u32 v14, s66, v0")
            for k in range(13):
                e("v_subrev_u32 v15, 3136, v14"); e("v_min_u32 v15, v15, v14"); e("v_lshlrev_b32 v15, 7, v15")
                e(f"buffer_load_dword v{16+k}, v15, {srd(WO)}, 0 offen","pf"); e("v_add_u32 v14, 256, v14")
                if k<OPT['spf']-1: e("s_waitcnt vmcnt(0)")
        hwin[0]=0
        for b in range(8+OPT['hp13']):
            P.extend(flat(HD.w2dma(b)))
            for sb in {1:[0],4:[1],7:[2,3]}.get(b,[]):
                P.append(WAIT(vm=[f"b{sb}"])); P.extend(hstage(sb)); P.append(WAIT(lgkm=0))
        if OPT['hin']:
            e(f"v_mov_b32 v{HD.vWo}, v9")
            P.append(WAIT(vm=["b7"])); P.extend(flat([hstage(b) for b in range(4,8)])); P.append(WAIT(lgkm=0))
            for b in range(13,13+OPT['hin']): P.extend(flat(HD.w2dma(b)))
        assert hwin[0]==HROW[7 if OPT['hin'] else 3]>>16
        spin(249,0,1,DBG,248)
        spin(HD.vPA,0,7,WS,HD.vPoll,nap=OPT['nap'])
        e("s_branch L_help")
    e("L_exit:")
    e("s_endpgm")
    e("L_end:")

DESC="""; One launch, 256 workgroups (one per CU, 4 waves, 512 registers each), roles by workgroup id:
;                     stream through an LDS ring and are transposed by ds_read_b64_tr_b16); silu(g)*u goes to d_ws in
;    64 attention   : 128 tokens (+16 halo) x 4 heads, one head per wave; q/k/v by MFMA, the 8 dilated taps are picked
; Hand-offs: write-through stores, vmcnt wait, atomic add on a counter in d_ws (zeroed in this launch, announced through
; d_debug); consumers poll the counter and read with L1-bypassing loads.  Workgroup-to-die placement only affects speed.
"""
def main():
    global P
    head=open("cdna_kernels/"+NAME+".s.ref").read().split("; Override launch")[0]
    txt=[]; nops=0
    def ablate(o):
        a=OPT['abl']; r=[]
        for x in o:
            if a&1 and x.cls=="vm" and " lds" in x.text: continue
            if a&2 and x.op.startswith("ds_read"): continue
            if a&4 and x.op.startswith("v_mfma"): continue
            r.append(x)
        return r
    for part in ((common_prologue,ffn),(attn,),(spare,)):
        P.clear()
        if part[0] is not common_prologue:
            pass
        for f in part: f()
        o,n=finalize(list(P),part[-1].__name__); nops+=n
        if OPT['abl']: o=ablate(o)
        txt+=[x.text if x.cls=="label" else "    "+x.text for x in o]
    out=head+DESC+"; @launch grid=(256,1,1) block=(256,1,1) lds=163840\n"
    out+='.amdgcn_target "amdgcn-amd-amdhsa--gfx950"\n.text\n'
    out+=f".globl {NAME}_kernel\n.p2align 8\n.type {NAME}_kernel,@function\n{NAME}_kernel:\n"
    out+="\n".join(txt)+"\n"
    out+=f""".section .rodata,"a"
.p2align 6
.amdhsa_kernel {NAME}_kernel
  .amdhsa_next_free_vgpr 512
  .amdhsa_next_free_sgpr 102
  .amdhsa_accum_offset 256
  .amdhsa_group_segment_fixed_size 0
  .amdhsa_kernarg_size 88
  .amdhsa_user_sgpr_count 2
  .amdhsa_user_sgpr_kernarg_segment_ptr 1
  .amdhsa_system_sgpr_workgroup_id_x 1
.end_amdhsa_kernel
"""
    open(sys.argv[1],"w").write(out)
    print("instructions",len(txt),"auto nops",nops)
main()
```

```python
import sys, math
from isa import *
NAME="gated_mix__sliding_local_dilated__swiglu_ffn__prompt"
OPT=dict(stamp=0, probe=-2, pwg=100, obs=0, abl=0, outpol=0,
         rot=4, arot=7, rate=5, cap=2, capc=3, cp=16, chainA=1, w2p0=13, sAt=1, nin=3, sBs=2, pA=10,
         lead=10, pah=10, nm=3, ntt=5, hlead=9, hpah=9, arate=12, apf=1, spf=1, l2o=0, l2b=1, ech=1, tail2=0, ap1=1, nogate=0, dst=20, paho=10, p2b=0, p2o=0, weave=0, sord=0, napo=24, skipS=0, rateA=5, nA=6, apW=-1, apA=-1, apB=-1, apfk=10, hp13=5, hwin=0, nap=8, amid=4, hin=2, gop=5, p2=1, est=0, tlb=0, stf=0, split0=1, npre=2, pre1=5, early=9, aearly=5)
for a in sys.argv[2:]:
    k,v=a.split("="); OPT[k]=int(v)
H0=0x100000; NT=130; S0=0x80000; SSTR=2176*4; STAMP0=0xC00000; WSN=0x1000000
OOB=0x80000000
X,WA,WU,WD,WO,WS,OUT,DBG,GW=4,8,12,16,20,24,28,32,36
def srd(b): return f"s[{b}:{b+3}]"
def vr(b,n=1): return f"v{b}" if n==1 else f"v[{b}:{b+n-1}]"
def ar(b,n=1): return f"a{b}" if n==1 else f"a[{b}:{b+n-1}]"
P=[]
def e(t,tag=None):
    x=I(t,tag); P.append(x); return x
_l=[0]
def lab(p="L"):
    _l[0]+=1; return f"{p}{_l[0]}"
def mksrd(b,src,n,bias=0):
    if bias:
        e(f"s_sub_u32 s{b}, s{src}, {bias}"); e(f"s_subb_u32 s{b+1}, s{src+1}, 0")
    else:
        e(f"s_mov_b64 s[{b}:{b+1}], s[{src}:{src+1}]")
    e(f"s_mov_b32 s{b+2}, {n+bias}"); e(f"s_mov_b32 s{b+3}, 0x20000")
def mfma(d,a,b,c): return I(f"v_mfma_f32_16x16x32_bf16 {d}, {a}, {b}, {c}")
sW,sXCD,sJ,sI=62,63,64,65
sT=[66,67,68,69,70,71]
sSTB=98
nstamp=[0]
def stamp(idx,last=False):
    if OPT['probe']!=-2:
        o=[]
        if idx==OPT['probe']: o+=[I("s_memrealtime s[94:95]"),I("s_waitcnt lgkmcnt(0)"),I("s_sub_u32 s97, s94, s96")]
        if last:
            L=lab("PR"); D=lab("PD")
            o+=[I(f"s_cmp_eq_u32 s2, {OPT['pwg']}"),I(f"s_cbranch_scc0 {D}"),I("s_add_u32 s97, s97, 4000"),I(L+":"),I("s_memrealtime s[94:95]"),I("s_waitcnt lgkmcnt(0)"),
                I("s_sub_u32 s94, s94, s96"),I("s_cmp_lt_u32 s94, s97"),I(f"s_cbranch_scc1 {L}"),I(D+":")]
        return o
    if not OPT['stamp']: return []
    if OPT['stamp']==2 and idx not in (0,1,2,3,4,5,6,7,8,9,10,11,55,56,57,58,59,61) : return []
    if OPT['stamp']==3 and idx not in (0,9) and not last: return []
    o=[I("s_memrealtime s[94:95]"),I("s_memtime s[96:97]"),I("s_waitcnt lgkmcnt(0)"),
       I(f"v_writelane_b32 v254, s94, {idx}"),I(f"v_writelane_b32 v255, s96, {idx}")]
    if last: o+=[I("v_lshlrev_b32 v253, 3, v0"),I(f"buffer_store_dwordx2 v[254:255], v253, {srd(WS)}, s{sSTB} offen","stamp")]
    return o
def spin(addrv, off, cmpval, srdb, res=12, nap=1):
    L=lab("SP"); D=lab("SD")
    e("s_mov_b32 s92, 0")
    e(L+":")
    e(f"buffer_load_dword v{res}, v{addrv}, {srd(srdb)}, 0 offen offset:{off} sc1","poll")
    e("s_waitcnt vmcnt(0)")
    e(f"v_cmp_ne_u32 vcc, {cmpval}, v{res}")
    e(f"s_cbranch_vccz {D}")
    e("s_add_u32 s92, s92, 1")
    e("s_cmp_lt_u32 s92, 0x40000")
    e(f"s_sleep {nap}")
    e(f"s_cbranch_scc1 {L}")
    e(D+":")
def check_or_spin(addrv, off, cmpval, srdb, res, second=None):
    D=lab("CK")
    e(f"v_cmp_ne_u32 vcc, {cmpval}, v{res}")
    e(f"s_cbranch_vccz {D}")
    if second:
        P.append(WAIT(vm=[second[0]],side=True))
        x=e(f"v_cmp_ne_u32 vcc, {cmpval}, v{second[1]}"); x.rd=set()
        e(f"s_cbranch_vccz {D}")
    n0=len(P)
    spin(addrv,off,cmpval,srdb,res)
    for x in P[n0:]:
        if x.cls=="vm": x.cls="raw"; x.wr=set()
        if x.op=="s_waitcnt": x.op="raw"
    e(D+":")

def common_prologue():
    e("s_cmp_ge_u32 s2, 256"); e("s_cbranch_scc1 L_exit")
    if OPT['probe']!=-2:
        e("s_memrealtime s[94:95]"); e("s_waitcnt lgkmcnt(0)"); e("s_mov_b32 s96, s94"); e("s_mov_b32 s97, 0")
    e("s_load_dwordx16 s[40:55], s[0:1], 0")
    e("s_load_dwordx4 s[56:59], s[0:1], 64")
    e("s_load_dwordx2 s[60:61], s[0:1], 80")
    e("v_lshrrev_b32 v1, 6, v0")
    e(f"s_and_b32 s{sXCD}, s2, 7"); e(f"s_lshr_b32 s{sJ}, s2, 3")
    e(f"v_readfirstlane_b32 s{sW}, v1")
    e("v_and_b32 v0, 63, v0")
    if OPT['stamp']:
        e(f"s_lshl_b32 s{sSTB}, s2, 2"); e(f"s_add_u32 s{sSTB}, s{sSTB}, s{sW}"); e(f"s_lshl_b32 s{sSTB}, s{sSTB}, 9")
        e(f"s_add_u32 s{sSTB}, s{sSTB}, {STAMP0}")
        e("v_mov_b32 v254, 0"); e("v_mov_b32 v255, 0")
    e(f"s_mov_b32 s{sI}, s{sXCD}")
    e(f"s_cmp_eq_u32 s{sJ}, 0"); e("s_cbranch_scc1 L_spare")
    e(f"s_cmp_lt_u32 s{sJ}, 9"); e("s_cbranch_scc1 L_attn")

def dma(voff,sr,soff,imm,tag): return I(f"buffer_load_dwordx4 v{voff}, {srd(sr)}, {soff} offen offset:{imm} lds",tag)

flat=lambda L:[x for it in L for x in it]
def mod7(dst,src,tmp,R=7):
    e(f"s_mul_i32 s{tmp}, s{src}, 9363"); e(f"s_lshr_b32 s{tmp}, s{tmp}, 16"); e(f"s_mul_i32 s{tmp}, s{tmp}, 7"); e(f"s_sub_u32 s{dst}, s{src}, s{tmp}")
    if R==1: e(f"s_mov_b32 s{dst}, 0")
    elif R==2: e(f"s_and_b32 s{dst}, s{dst}, 1"); e(f"s_mul_i32 s{dst}, s{dst}, 3")
    elif R==4: e(f"s_and_b32 s{dst}, s{dst}, 3"); e(f"s_lshl_b32 s{dst}, s{dst}, 1")

class Down:
    def __init__(c,**kw): c.__dict__.update(kw)
    def setup_w(c,sF0,sT2,sN,t):
        t0,t1,t2,t3=t; a,b,d=c.vt
        e(f"v_lshrrev_b32 v{a}, 3, v0"); e(f"v_and_b32 v{b}, 6, v{a}"); e(f"v_and_b32 v{d}, 7, v0"); e(f"v_xor_b32 v{b}, v{b}, v{d}")
        e(f"v_mul_u32_u24 v{a}, 896, v{a}"); e(f"v_lshl_add_u32 v{c.vW2}, v{b}, 4, v{a}")
        e(f"s_lshr_b32 s{t0}, s{sW}, 1"); e(f"s_mul_i32 s{t0}, s{t0}, 28"); e(f"s_and_b32 s{t1}, s{sW}, 1"); e(f"s_add_u32 s{t3}, s{t0}, s{t1}")
        e(f"s_lshl_b32 s{t2}, s{sN}, 7"); e(f"v_add_u32 v{c.vW2}, s{t2}, v{c.vW2}")
        e(f"s_add_u32 s{t0}, s{sT2}, s{sN}"); e(f"s_and_b32 s{t0}, s{t0}, 3"); e(f"s_sub_u32 s{c.sWr3}, 3, s{t0}")
        e(f"s_lshl_b32 s{t1}, s{sW}, 2"); e(f"s_add_u32 s{t2}, s{t0}, s{t1}")
        e(f"s_mul_i32 s{t0}, s{t2}, {28*896}"); e(f"v_add_u32 v{c.vWo}, s{t0}, v{c.vW2}")
        e(f"s_add_u32 s{t0}, s{t2}, 56"); e(f"s_mul_i32 s{t0}, s{t0}, {NT}"); e(f"s_add_u32 s{t0}, s{t0}, s{sF0}"); e(f"s_lshl_b32 s{t0}, s{t0}, 10"); e(f"s_add_u32 s{c.sHO}, s{t0}, {H0}")
        e(f"s_mov_b32 s{c.sNWo}, {-3*28*896}"); e(f"s_mov_b32 s{c.sNHo}, {-3*NT*1024}")
        e(f"s_lshl_b32 s{t0}, s{sT2}, 1"); e(f"s_add_u32 s{t0}, s{t0}, s{sN}")
        mod7(t0,t0,t1); e(f"s_sub_u32 s{c.sWr2}, 6, s{t0}"); e(f"s_lshl_b32 s{t0}, s{t0}, 2"); e(f"s_add_u32 s{t3}, s{t3}, s{t0}")
        e(f"s_mul_i32 s{t1}, s{t3}, {32*896}"); e(f"v_add_u32 v{c.vW2}, s{t1}, v{c.vW2}")
        e(f"s_mov_b32 s{c.sNW2}, {-6*114688}"); e(f"s_mov_b32 s{c.sNH}, {-24*NT*1024}")
        e(f"s_mul_i32 s{t0}, s{t3}, {NT}"); e(f"s_add_u32 s{t0}, s{t0}, s{sF0}"); e(f"s_lshl_b32 s{t0}, s{t0}, 10"); e(f"s_add_u32 s{c.sHld}, s{t0}, {H0}")
        for j in range(1,4): e(f"s_mov_b32 s{c.sW2o[j]}, {6144*j}")
    def setup_lane(c,dst,sBases,t):
        t0=t[0]; a,b,d=c.vt
        e(f"v_bfe_u32 v{a}, v0, 4, 1"); e(f"v_bfe_u32 v{b}, v0, 2, 2"); e(f"v_lshl_add_u32 v{a}, v{a}, 2, v{b}")
        e(f"v_lshrrev_b32 v{b}, 5, v0"); e(f"v_lshlrev_b32 v{b}, 10, v{b}"); e(f"v_lshl_add_u32 v{b}, v{a}, 7, v{b}")
        e(f"v_and_b32 v{d}, 3, v0"); e(f"v_lshl_add_u32 v{b}, v{d}, 3, v{b}"); e(f"v_lshrrev_b32 v{a}, 1, v{a}")
        for q in range(4):
            e(f"s_add_u32 s{t0}, s{sW}, {q}"); e(f"s_and_b32 s{t0}, s{t0}, 3")
            e(f"v_xor_b32 v{d}, s{t0}, v{a}"); e(f"v_lshl_add_u32 v{d}, v{d}, 5, v{b}")
            for k,sb in enumerate(sBases): e(f"v_add_u32 v{dst[k][q]}, s{sb}, v{d}")
    def setup_io(c,sF0,sN,t):
        t0,t1,t2,t3=t; a,b,d=c.vt; N=c.NTT
        e(f"v_lshrrev_b32 v{a}, 5, v0")
        e(f"s_add_u32 s{t1}, s{sF0}, {N-1}")
        e(f"s_mul_i32 s{t0}, s{sF0}, 13108"); e(f"s_lshr_b32 s{t0}, s{t0}, 16"); e(f"s_mul_i32 s{t2}, s{t1}, 13108"); e(f"s_lshr_b32 s{t2}, s{t2}, 16")
        e(f"s_sub_u32 s{t2}, s{t2}, s{t0}"); e(f"s_lshl_b32 s{t2}, s{t2}, 10"); e(f"s_lshl_b32 s{t0}, s{t0}, 3"); e(f"s_add_u32 s{t0}, s{t0}, s{sW}"); e(f"s_lshl_b32 s{t0}, s{t0}, 7")
        e(f"v_mul_u32_u24 v{b}, s{t2}, v{a}"); e(f"v_add_u32 v{c.vPA}, s{t0}, v{b}")
        e(f"s_lshr_b32 s{t0}, s{sF0}, 3"); e(f"s_lshr_b32 s{t2}, s{t1}, 3"); e(f"s_min_u32 s{t2}, s{t2}, 15")
        e(f"s_sub_u32 s{t2}, s{t2}, s{t0}"); e(f"s_lshl_b32 s{t2}, s{t2}, 9"); e(f"s_lshl_b32 s{t0}, s{t0}, 2"); e(f"s_add_u32 s{t0}, s{t0}, s{sW}"); e(f"s_add_u32 s{t0}, s{t0}, 208"); e(f"s_lshl_b32 s{t0}, s{t0}, 7")
        e(f"v_mul_u32_u24 v{b}, s{t2}, v{a}"); e(f"v_add_u32 v{c.vPO}, s{t0}, v{b}")
        e(f"s_lshl_b32 s{t0}, s{sF0}, 4"); e(f"v_and_b32 v{a}, 15, v0"); e(f"v_add_u32 v{a}, s{t0}, v{a}")
        e(f"s_mul_i32 s{t1}, s{sW}, {SSTR}"); e(f"s_add_u32 s{t1}, s{t1}, {S0}"); e(f"v_lshlrev_b32 v{c.vSA}, 2, v{a}"); e(f"v_add_u32 v{c.vSA}, s{t1}, v{c.vSA}")
        e(f"v_mul_u32_u24 v{a}, 896, v{a}"); e(f"v_lshrrev_b32 v{b}, 4, v0"); e(f"v_lshl_add_u32 v{a}, v{b}, 3, v{a}")
        e(f"s_lshl_b32 s{t1}, s{sN}, 7"); e(f"s_lshl_b32 s{t2}, s{sW}, 5"); e(f"s_add_u32 s{t1}, s{t1}, s{t2}"); e(f"v_add_u32 v{c.vO}, s{t1}, v{a}")
        base,ws,qs=c.red
        e(f"s_mul_i32 s{t0}, s{sW}, {ws}"); e(f"s_add_u32 s{t0}, s{t0}, {base}"); e(f"v_add_u32 v{c.vRW}, s{t0}, v{c.vH}")
        for q in range(1,4):
            e(f"s_sub_u32 s{t0}, s{sW}, {q}"); e(f"s_and_b32 s{t0}, s{t0}, 3"); e(f"s_mul_i32 s{t0}, s{t0}, {ws}"); e(f"s_add_u32 s{t0}, s{t0}, {base+(q-1)*qs}")
            e(f"v_add_u32 v{c.vRR+q-1}, s{t0}, v{c.vH}")
        for j in range(1,N): e(f"s_mov_b32 s{c.sRow+j-1}, {16*j*896}")
    def w2dma(c,b):
        sg,off=c.m0(b)
        o=[[dma(c.vW2,WD if b<14 else WO,"0" if pi==0 else f"s{c.sW2o[pi]}",pi*1024,f"b{b}")] for pi in range(4)]
        o[0].insert(0,I(f"s_add_u32 m0, s{sg}, {off}"))
        if b==13: o[-1].append(I(f"v_mov_b32 v{c.vW2}, v{c.vWo}"))
        elif b<13:
            o[-1]+=[ATOM(f"s_cmp_eq_u32 s{c.sWr2}, {b%7}",f"s_cselect_b32 s{c.sD}, s{c.sNW2}, 114688"),I(f"v_add_u32 v{c.vW2}, s{c.sD}, v{c.vW2}")]
            if b==6: o[-1].append(I(f"v_add_u32 v{c.vW2}, {64*896}, v{c.vW2}"))
        elif b<17: o[-1]+=[ATOM(f"s_cmp_eq_u32 s{c.sWr3}, {b-14}",f"s_cselect_b32 s{c.sD}, s{c.sNWo}, {28*896}"),I(f"v_add_u32 v{c.vW2}, s{c.sD}, v{c.vW2}")]
        return o
    def AW(c,b,q,a=None):
        r=c.aSt+16*(b%8)+4*q
        return ar(r,4) if a is None else ar(r+2*a,2)
    def treads(c,b,rd=None):
        base,off=(rd or c.rd)(b)
        return [I(f"ds_read_b64_tr_b16 {c.AW(b,q,a)}, v{base[q]} offset:{off+a*2048}") for q in range(4) for a in range(2)]
    def HS(c,b,t):
        k=b%c.NSL; na=c.nAS
        return ar(c.aH+(k*c.NTT+t)*4,4) if k<na else vr(c.vHS+((k-na)*c.NTT+t)*4,4)
    def hload(c,b):
        o=[[I(f"buffer_load_dwordx4 {c.HS(b,t)}, v{c.vH if t<3 else c.vHt[t-3]}, {srd(WS)}, s{c.sHld} offen offset:{(t%4)*1024} sc1",f"h{b}_{t}")] for t in range(c.NTT)]
        if b==13: o[-1].append(I(f"s_mov_b32 s{c.sHld}, s{c.sHO}"))
        elif b<13:
            o[-1]+=[ATOM(f"s_cmp_eq_u32 s{c.sWr2}, {b%7}",f"s_cselect_b32 s{c.sD}, s{c.sNH}, {4*NT*1024}",f"s_add_u32 s{c.sHld}, s{c.sHld}, s{c.sD}")]
            if b==6: o[-1].append(I(f"s_add_u32 s{c.sHld}, s{c.sHld}, {2*NT*1024}"))
        elif b<17: o[-1]+=[ATOM(f"s_cmp_eq_u32 s{c.sWr3}, {b-14}",f"s_cselect_b32 s{c.sD}, s{c.sNHo}, {NT*1024}",f"s_add_u32 s{c.sHld}, s{c.sHld}, s{c.sD}")]
        return o
    def poll(c,tag):
        av,off={"pollA":(c.vPA,0),"pollB":(c.vPA,512),"pollO":(c.vPO,0)}[tag]
        return I(f"buffer_load_dword v{c.vPoll}, v{av}, {srd(WS)}, 0 offen offset:{off} sc1",tag)
    def main(c,WQ,LEAD,PAH,so=0):
        N=c.NTT; GT=18*N
        steps=[[(b,) for b in range(15)]+[(15,16,17)],
               [(0,1),(2,3),(4,5),(6,),(7,8),(9,10),(11,12),(13,),(14,),(15,16,17)],
               [(0,1,2,3),(4,5,6),(7,8,9,10),(11,12,13),(14,15,16,17)],
               [(0,1),(2,3),(4,5,6),(7,8),(9,10),(11,12,13),(14,15),(16,17)],
               [(0,1),(2,3),(4,5,6),(7,8),(9,10),(11,12,13),(14,15,16,17)]][OPT['ech']]
        if not OPT['nogate']&1: P.append(WAIT(vm=["pollA"])); check_or_spin(c.vPA,0,7,WS,c.vPoll)
        P.extend(stamp(so+11))
        def setoff(st):
            o=[]
            for k,b in enumerate(st):
                o.append(I(f"s_mov_b32 s{44+k}, s{c.sHld}")); o+=c.hload(b)[-1][1:]
            return o
        HL=[]; start={}; units=[]
        for n,st in enumerate(steps):
            for b in st: start[b]=len(HL)
            for t in range(N):
                units.append((len(HL),st,t))
                for k,b in enumerate(st):
                    x=c.hload(b)[t][0]; HL.append([I(x.text.replace(f"s{c.sHld} offen",f"s{44+k} offen"),x.tag)])
            if n+1<len(steps): HL[-1]+=setoff(steps[n+1])
        P.extend(setoff(steps[0]))
        for l in range(LEAD): P.extend(HL[l])
        P.extend(stamp(so+5))
        hn=LEAD
        ustart=[u[0] for u in units]
        at=lambda g: max(x for x in ustart if x<=max(g,0))
        gates={at(start[7]-LEAD):("pollB",c.vPA,512,7,6), at(start[14]-LEAD):("pollO",c.vPO,0,4,7)}
        polls={at(g-(PAH if v[0]=='pollB' else OPT['paho'] or PAH)):v[0] for g,v in gates.items()}
        polls2={at(g-OPT[k]):v[0] for g,v in gates.items() for k in (['p2b'] if v[0]=="pollB" else ['p2o']) if OPT[k]}
        RQ={}
        for n,st in enumerate(steps):
            rd=[(x,f"b{b}") for b in st if b>=8 for x in c.treads(b)]
            if not rd: continue
            g1=start[st[0]]
            g0=max([g1-max(N,(len(rd)+1)//2)]+[start[b-8]+N*len([z for z in steps if b-8 in z][0]) for b in st if b>=8])
            assert 3*(g1-g0-1)>=len(rd)
            for k,(x,tg) in enumerate(rd): RQ.setdefault(g0+k*(g1-g0-1)//len(rd),[]).append((x,tg))
        base,ws,qs=c.red
        wr=lambda q,t: I(f"ds_write_b128 v{c.vRW}, {vr(c.ACC(q,t),4)} offset:{(q-1)*qs+t*1024}")
        R=lambda q,t: c.vRT+((q-1)*N+t)*4
        rr=lambda t: [I(f"ds_read_b128 {vr(R(q,t),4)}, v{c.vRR+q-1} offset:{t*1024}") for q in range(1,4)]
        NE=N-2 if OPT['tail2'] else 0
        def uw(u):
            g,st,t=units[u]
            tags=[f"h{b}_{t}" for b in st]+[tg for k in range(len(st)) for _,tg in RQ.get(g+k,[])]
            if g in gates: tags.append(gates[g][0])
            return WAIT(vm=tags,lgkm=0 if t==0 else None)
        P.append(uw(0))
        for u,(g,st,t) in enumerate(units):
            L=len(st)
            mf=[mfma(vr(c.ACC(q,t),4),c.AW(b,q),c.HS(b,t),"0" if b==0 else vr(c.ACC(q,t),4)) for q in range(4) for b in st]
            if g in gates:
                tg,av,off,val,si=gates[g]
                sec=(tg+"2",c.vPoll2) if OPT['p2b' if tg=="pollB" else 'p2o'] else None
                if not OPT['nogate']&(2 if tg=="pollB" else 4): check_or_spin(av,off,val,WS,c.vPoll,sec)
                P.extend(stamp(so+si))
            if t==0 and not so: P.extend(stamp(12+st[0]))
            f=[]
            if g in polls: f.append((2.5,c.poll(polls[g])))
            if g in polls2:
                x=c.poll(polls2[g]); f.append((2.6,I(x.text.replace(f"dword v{c.vPoll},",f"dword v{c.vPoll2},"),x.tag+"2")))
            for k in range(L):
                if hn<GT:
                    it=HL[hn]; hn+=1; f.append((4*k,it[0])); f+=[(4*k+1,x) for x in it[1:]]
                elif g+k+LEAD<GT+N: f+=([(4*k-0.5,I(f"v_or_b32 v{c.vSA}, s{c.sLast}, v{c.vSA}"))] if g+k+LEAD-GT==3 and N==5 else [])+[(4*k,I(f"buffer_load_dword v{c.vS+g+k+LEAD-GT}, v{c.vSA}, {srd(WS)}, 0 offen offset:{(g+k+LEAD-GT)*64} sc1","s"))]
                if WQ and WQ[0][0]<=g+k:
                    seen=False
                    for x in WQ.pop(0)[1]:
                        if x.cls=="vm": seen=True; f.append((4*k+2,x))
                        else: f.append((4*k+(3 if seen else 1.5),x))
                f+=[(4*k+0.2+j,x) for j,(x,_) in enumerate(RQ.get(g+k,[]))]
            if st is steps[-1] and t>0: f+=[(3+(q-1)*(4*L-4)//3,wr(q,t-1)) for q in range(1,4)]
            if NE and u==len(units)-1:
                f=[(k,x) for k,x in enumerate([x for _,x in f if x.cls=="ds"]+flat([rr(tt) for tt in range(NE)]))]+[z for z in f if z[1].cls!="ds"]
            o=pack2(mf,f)
            if NE and u==len(units)-2: o+=[WAIT(lgkm=0),I("s_barrier")]
            if u+1<len(units):
                j=max(i for i,x in enumerate(o) if x.cls=="mfma")
                if any(x.cls in("ds","vm") for x in o[j+1:]): o.append(uw(u+1))
                else: o.insert(j+1,uw(u+1))
            P.extend(o)
        assert not WQ and hn==GT
        for q in range(1,4): P.append(wr(q,N-1))
        P.extend(stamp(so+8))
        def fin(t):
            d=c.ACC(0,t)
            for r in (0,2): e(f"v_pk_add_f32 {vr(R(1,t)+r,2)}, {vr(R(1,t)+r,2)}, {vr(R(2,t)+r,2)}")
            for r in (0,2): e(f"v_pk_add_f32 {vr(d+r,2)}, {vr(d+r,2)}, {vr(R(3,t)+r,2)}")
            for r in (0,2): e(f"v_pk_add_f32 {vr(d+r,2)}, {vr(d+r,2)}, {vr(R(1,t)+r,2)}")
            for r in range(4): e(f"v_mul_f32 v{d+r}, v{c.vS+t}, v{d+r}")
            e(f"v_cvt_pk_bf16_f32 v{d}, v{d}, v{d+1}"); e(f"v_cvt_pk_bf16_f32 v{d+1}, v{d+2}, v{d+3}")
            e(f"buffer_store_dwordx2 {vr(d,2)}, v{c.vO}, {srd(OUT)}, {'0' if t==0 else 's%d'%(c.sRow+t-1)} offen{['',' sc1',' nt'][OPT['outpol']]}","out")
        if NE:
            P.append(WAIT(vm=["s"],lgkm=3))
            for t in range(NE): fin(t)
        P.append(WAIT(vm=["s"],lgkm=0)); e("s_barrier")
        for t in range(NE,N): P.extend(rr(t))
        for t in range(NE,N):
            e(f"s_waitcnt lgkmcnt({3*(N-1-t)})"); fin(t)
        P.extend(stamp(so+9,True))
        e("s_endpgm")

def ffn():
    sSL,sTT,sT2,sN=72,73,74,75
    sSeg1,sSeg2,sXb=76,77,78
    sXo=[None,79,80,81,82]
    sW1o=83
    sHst,sHld,sC=87,88,89
    vX,vW,vXR,vWR,vW2,vH,vH4,vFl,vOne,vPoll,vPA=1,2,(3,4),(5,6),7,8,9,10,11,12,13
    ACC=lambda p,q,t: 16+80*p+(q*5+t)*4
    def XF(i): return vr(176+4*i,4) if i<6 else ar(4*(i-6),4)
    AF=lambda buf,q: 200+16*buf+4*q
    t0,t1,t2_,t3=sT[:4]
    e(f"s_lshr_b32 s{t1}, s{sXCD}, 2"); e(f"s_add_u32 s{sI}, s{t1}, 8")
    e(f"s_and_b32 s{t0}, s{sXCD}, 3"); e(f"s_cmp_eq_u32 s{t0}, 3"); e(f"s_cselect_b32 s{t0}, 10, 9")
    e(f"s_cmp_lt_u32 s{sJ}, s{t0}"); e("s_cbranch_scc1 L_spare")
    e(f"s_sub_u32 s{sI}, s{sJ}, s{t0}")
    e(f"s_mul_i32 s{t0}, s{sXCD}, 23"); e(f"s_add_u32 s{sI}, s{sI}, s{t0}")
    e(f"s_sub_u32 s{sI}, s{sI}, s{t1}")
    e(f"s_mul_i32 s{sT2}, s{sI}, 9363"); e(f"s_lshr_b32 s{sT2}, s{sT2}, 16")
    e(f"s_mul_i32 s{t0}, s{sT2}, 7"); e(f"s_sub_u32 s{sN}, s{sI}, s{t0}")
    e(f"s_sub_u32 s{t0}, s{sI}, 98"); e(f"s_mul_i32 s{t1}, s{t0}, 10923"); e(f"s_lshr_b32 s{t1}, s{t1}, 16")
    e(f"s_mul_i32 s{t2_}, s{t1}, 6"); e(f"s_sub_u32 s{t0}, s{t0}, s{t2_}"); e(f"s_add_u32 s{t0}, s{t0}, 7")
    e(f"s_cmp_lt_u32 s{sI}, 98"); e(f"s_cselect_b32 s{sSL}, s{sT2}, s{t1}"); e(f"s_cselect_b32 s{sTT}, s{sN}, s{t0}")
    e("v_lshrrev_b32 v14, 3, v0")
    e("v_and_b32 v15, 7, v0")
    e(f"s_and_b32 s{t0}, s{sW}, 1"); e(f"s_lshl_b32 s{t1}, s{t0}, 2")
    e("v_lshrrev_b32 v12, 1, v14"); e(f"v_or_b32 v13, s{t1}, v12"); e("v_xor_b32 v13, v13, v15")
    e(f"s_mul_i32 s{t2_}, s{sTT}, 160"); e(f"s_lshl_b32 s{t3}, s{sW}, 3"); e(f"s_add_u32 s{t2_}, s{t2_}, s{t3}")
    e(f"v_add_u32 v{vX}, s{t2_}, v14"); e(f"v_mul_u32_u24 v{vX}, 896, v{vX}"); e(f"v_lshl_add_u32 v{vX}, v13, 4, v{vX}")
    e(f"s_lshl_b32 s{t0}, s{t0}, 2")
    e("v_and_b32 v13, 2, v14"); e(f"v_or_b32 v13, s{t0}, v13"); e("v_xor_b32 v13, v13, v15")
    e(f"v_add_u32 v{vW}, s{t3}, v14"); e(f"v_mul_u32_u24 v{vW}, 3584, v{vW}"); e(f"v_lshl_add_u32 v{vW}, v13, 4, v{vW}")
    e(f"s_lshl_b32 s{t0}, s{sSL}, 8"); e(f"v_add_u32 v{vW}, s{t0}, v{vW}")
    sWr,sD,sNX,sNW,sWr2,sNW2,sNH=90,91,93,99,100,101,3
    e(f"s_lshl_b32 s{t0}, s{sSL}, 1"); e(f"s_add_u32 s{t0}, s{sTT}, s{t0}"); mod7(t0,t0,t1,OPT['rot'])
    e(f"s_sub_u32 s{sWr}, 6, s{t0}"); e(f"s_lshl_b32 s{t1}, s{t0}, 7"); e(f"v_add_u32 v{vX}, s{t1}, v{vX}")
    e(f"s_mul_i32 s{t1}, s{t0}, {64*3584}"); e(f"v_add_u32 v{vW}, s{t1}, v{vW}")
    e(f"s_mov_b32 s{sNX}, -768"); e(f"s_mov_b32 s{sNW}, {-6*64*3584}")
    e(f"s_lshl_b32 s{sSeg2}, s{sW}, 12")
    e(f"s_lshl_b32 s{sXb}, s{sW}, 10"); e(f"s_add_u32 s{sXb}, s{sXb}, 65536")
    for j in range(1,5): e(f"s_mov_b32 s{sXo[j]}, {32*j*896}")
    e(f"s_mov_b32 s{sW1o}, {32*3584-1024}")
    for b,n in ((X,1835008),(WA,1605632),(WU,1605632+2048)):
        e(f"s_mov_b32 s{b+2}, {n}"); e(f"s_mov_b32 s{b+3}, 0x20000")
    e("s_waitcnt lgkmcnt(0)")
    e(f"s_mov_b64 s[{X}:{X+1}], s[40:41]"); e(f"s_mov_b64 s[{WA}:{WA+1}], s[48:49]")
    e(f"s_sub_u32 s{WU}, s50, 2048"); e(f"s_subb_u32 s{WU+1}, s51, 0")
    P.extend(stamp(0))
    def xdma(c):
        o=[]
        for j in range(5):
            o.append([I(f"s_add_u32 m0, s{sXb}, {(c%4)*20480+j*4096}"), dma(vX,X,"0" if j==0 else f"s{sXo[j]}",0,f"x{c}")])
        o[-1]+=[ATOM(f"s_cmp_eq_u32 s{sWr}, {c}",f"s_cselect_b32 s{sD}, s{sNX}, 128"),I(f"v_add_u32 v{vX}, s{sD}, v{vX}")]
        return o
    def wdma(s):
        o=[]
        for j in range(2):
            for m in range(2):
                o.append([dma(vW,WA if m==0 else WU,"0" if j==0 else f"s{sW1o}",(2*m+j)*1024,f"w{s}" if (s or j) else "w0a")])
        o[0].insert(0,I(f"s_add_u32 m0, s{sSeg2}, {(s%4)*16384}"))
        o[-1]+=[ATOM(f"s_cmp_eq_u32 s{sWr}, {s%7}",f"s_cselect_b32 s{sD}, s{sNW}, {64*3584}"),I(f"v_add_u32 v{vW}, s{sD}, v{vW}")]
        if s==6: o[-1].append(I(f"v_add_u32 v{vW}, 128, v{vW}"))
        return o
    NTT=OPT['ntt']; R1=[176,177,178,179]; R2=[180,181,182,183]; sF0=39
    LOC=[((sSeg1,b*4096),13 if b<2 else 17) for b in range(6)]+[((sSeg2,((j+2)%4)*16384),21+2*j) for j in range(4)]
    loc=lambda b: LOC[b%10][0]
    D=Down(NTT=NTT,vt=(196,197,198),vW2=vW2,vWo=248,vH=vH,vHt=(251,252),sLast=52,vPoll=vPoll,vPoll2=14,vPA=vPA,vPO=187,vSA=188,vO=189,vRW=190,vRR=184,vS=192,vRT=96,
           sW2o=[None,84,85,86],sWr2=sWr2,sNW2=sNW2,sNH=sNH,sD=sD,sWr3=38,sNWo=36,sNHo=37,sHld=sHld,sHO=sT[5],sRow=40,
           m0=loc,rd=lambda b:(R1 if loc(b)[0]==sSeg1 else R2,loc(b)[1]),red=(65536,24576,5120),
           ACC=lambda q,t:ACC(0,q,t),AF=AF,aSt=0,aH=128,nAS=128//(4*NTT),NSL=128//(4*NTT)+(4 if NTT==5 else 0),vHS=96)
    pro=flat([xdma(s)+wdma(s) for s in range(OPT['npre'])])
    P.extend(flat(pro[:OPT['early']]))
    P.extend(stamp(51))
    mksrd(WS,60,WSN); mksrd(WD,52,1605632); mksrd(WO,44,401408); mksrd(OUT,56,1835008); mksrd(DBG,58,256)
    e("v_lshrrev_b32 v14, 4, v0")
    e("v_and_b32 v15, 15, v0")
    e("v_lshrrev_b32 v12, 1, v15"); e("v_xor_b32 v12, v12, v14"); e("v_lshlrev_b32 v12, 4, v12")
    e("v_lshl_add_u32 v12, v15, 7, v12")
    e(f"s_lshr_b32 s{t0}, s{sW}, 1"); e(f"s_mul_i32 s{t0}, s{t0}, 10240"); e(f"s_add_u32 s{t0}, s{t0}, 65536")
    e(f"v_add_u32 v{vXR[0]}, s{t0}, v12"); e(f"v_xor_b32 v{vXR[1]}, 64, v{vXR[0]}")
    e("v_bfe_u32 v12, v0, 2, 2")
    e("v_lshrrev_b32 v13, 1, v12"); e("v_and_b32 v15, 1, v14"); e("v_lshlrev_b32 v15, 1, v15"); e("v_or_b32 v13, v13, v15")
    e(f"s_and_b32 s{t0}, s{sW}, 1"); e(f"s_lshl_b32 s{t0}, s{t0}, 1"); e(f"v_xor_b32 v13, s{t0}, v13"); e("v_lshlrev_b32 v13, 5, v13")
    e("v_lshl_add_u32 v13, v14, 12, v13"); e("v_lshl_add_u32 v13, v12, 7, v13")
    e("v_and_b32 v15, 3, v0"); e(f"v_lshl_add_u32 v{vWR[0]}, v15, 3, v13"); e(f"v_xor_b32 v{vWR[1]}, 32, v{vWR[0]}")
    e(f"s_mul_i32 s{sF0}, s{sT2}, {NTT}")
    D.setup_w(sF0,sT2,sN,sT[:4])
    e(f"s_lshl_b32 s{t2_}, s{sTT}, 1"); e(f"s_lshr_b32 s{t1}, s{sW}, 1"); e(f"s_add_u32 s{t2_}, s{t2_}, s{t1}")
    e(f"s_lshl_b32 s{t0}, s{sSL}, 2"); e(f"s_and_b32 s{t3}, s{sW}, 1"); e(f"s_add_u32 s{t0}, s{t0}, s{t3}"); e(f"s_mul_i32 s{t0}, s{t0}, {NT}")
    e(f"s_mul_i32 s{t1}, s{t2_}, 5"); e(f"s_add_u32 s{t0}, s{t0}, s{t1}")
    e(f"s_lshl_b32 s{t0}, s{t0}, 10"); e(f"s_add_u32 s{sHst}, s{t0}, {H0}")
    e(f"s_lshl_b32 s{t0}, s{t2_}, 3"); e(f"s_add_u32 s{t0}, s{t0}, s{t3}"); e(f"s_cmp_ge_u32 s{sSL}, 7"); e(f"s_cselect_b32 s{t1}, 2, 0"); e(f"s_add_u32 s{t0}, s{t0}, s{t1}"); e(f"s_lshl_b32 s{t0}, s{t0}, 7")
    e(f"v_mov_b32 v{vFl}, {OOB}"); e(f"v_mov_b32 v12, s{t0}"); e("v_cmp_eq_u32 vcc, 0, v0")
    e(f"v_lshlrev_b32 v{vH}, 4, v0"); e(f"v_add_u32 v{vH4}, 4096, v{vH}")
    e(f"v_cndmask_b32 v{vFl}, v{vFl}, v12, vcc")
    e(f"s_mul_i32 s{sSeg1}, s{sW}, 24576"); e(f"s_add_u32 s{sSeg1}, s{sSeg1}, 65536")
    e(f"s_mov_b32 s{sC}, 0xbfb8aa3b")
    e(f"v_mov_b32 v{vOne}, 1")
    e("v_mov_b32 v15, 0")
    e(f"s_or_b32 s{t0}, s{sI}, s{sW}"); e(f"v_or_b32 v250, s{t0}, v0"); e("v_lshlrev_b32 v250, 8, v250")
    def reads(Pn):
        p,s,h=Pn//14,Pn//2,Pn%2
        CH=(p==1 or OPT['chainA']) and not (OPT['split0'] and s==0)
        o=[]
        for ks in ((0,1) if CH else (h,)):
            if p==0 and (h==0 or not CH):
                if s==3: o.append(I(f"v_add_u32 v{vXR[ks]}, 61440, v{vXR[ks]}"))
                for t in range(5): o.append(I(f"ds_read_b128 {XF((2*s+ks)*5+t)}, v{vXR[ks]} offset:{(s%4 if s!=3 else 0)*20480+t*2048}"))
                if s==3: o.append(I(f"v_subrev_u32 v{vXR[ks]}, 61440, v{vXR[ks]}"))
        tr=[]
        for j in range(4):
            if CH: m,ks,tl=j>>1,j&1,h
            else: m,ks,tl=j>>1,h,j&1
            for a in range(2):
                tr.append(I(f"ds_read_b64_tr_b16 {vr(AF(h,j)+2*a,2)}, v{vWR[tl]} offset:{(s%4)*16384+(2*m+ks)*1024+a*512}"))
        return tr[:4]+o+tr[4:]
    def epi(p,t):
        T=[232+k for k in range(8)]; O=240+4*(t%2) if (p or not OPT['dst']) else ACC(0,0,t)
        G=[ACC(p,k>>2,t)+(k&3) for k in range(8)]; U=[ACC(p,2+(k>>2),t)+(k&3) for k in range(8)]
        o=[]
        st=I(f"buffer_store_dwordx4 {vr(O,4)}, v{vH if t<4 else vH4}, {srd(WS)}, s{sHst} offen offset:{(t%4)*1024} {['sc1','sc0 sc1','sc1 nt','sc0 sc1 nt',''][OPT['stf']]}",f"st{p}")
        if p==1:
            for k in range(0,8,2): o.append(I(f"v_pk_mul_f32 {vr(T[k],2)}, {vr(G[k],2)}, s[48:49]"))
            for k in range(8):
                o.append(I(f"v_exp_f32 v{T[k]}, v{T[k]}"))
                if k%2==0: o.append(I(f"v_pk_mul_f32 {vr(U[k],2)}, {vr(G[k],2)}, {vr(U[k],2)}"))
            for k in range(0,8,2): o.append(I(f"v_pk_add_f32 {vr(T[k],2)}, {vr(T[k],2)}, s[50:51]"))
            for k in range(8):
                o.append(I(f"v_rcp_f32 v{G[k]}, v{T[k]}"))
                if k>=3 and k%2==1:
                    o.append(I(f"v_pk_mul_f32 {vr(U[k-3],2)}, {vr(G[k-3],2)}, {vr(U[k-3],2)}"))
                    if k>=5: o.append(I(f"v_cvt_pk_bf16_f32 v{O+(k-5)//2}, v{U[k-5]}, v{U[k-4]}"))
            o.append(I(f"v_cvt_pk_bf16_f32 v{O+2}, v{U[4]}, v{U[5]}"))
            o.append(I(f"v_pk_mul_f32 {vr(U[6],2)}, {vr(G[6],2)}, {vr(U[6],2)}"))
            o.append(I(f"v_cvt_pk_bf16_f32 v{O+3}, v{U[6]}, v{U[7]}"))
            return o+[st]
        for k in range(8): o.append(I(f"v_mul_f32 v{T[k]}, s{sC}, v{G[k]}"))
        for k in range(8):
            o.append(I(f"v_exp_f32 v{T[k]}, v{T[k]}")); o.append(I(f"v_mul_f32 v{U[k]}, v{G[k]}, v{U[k]}"))
        for k in range(8): o.append(I(f"v_add_f32 v{T[k]}, 1.0, v{T[k]}"))
        for k in range(8):
            o.append(I(f"v_rcp_f32 v{G[k]}, v{T[k]}"))
            if k>=1: o.append(I(f"v_mul_f32 v{U[k-1]}, v{G[k-1]}, v{U[k-1]}"))
            if k>=3 and k%2==1: o.append(I(f"v_cvt_pk_bf16_f32 v{O+(k-3)//2}, v{U[k-3]}, v{U[k-2]}"))
        o.append(I(f"v_mul_f32 v{U[7]}, v{G[7]}, v{U[7]}"))
        o.append(I(f"v_cvt_pk_bf16_f32 v{O+3}, v{U[6]}, v{U[7]}"))
        o.append(I(f"buffer_store_dwordx4 {vr(O,4)}, v{vH if t<4 else vH4}, {srd(WS)}, s{sHst} offen offset:{(t%4)*1024} {['sc1','sc0 sc1','sc1 nt','sc0 sc1 nt',''][OPT['stf']]}",f"st{p}"))
        return o
    D.setup_lane([R1,R2],[sSeg1,sSeg2],sT[:4]); D.setup_io(sF0,sN,sT[:4])
    e(f"s_cmp_ge_u32 s{sF0}, 125"); e(f"s_cselect_b32 s52, {OOB}, 0"); e(f"v_or_b32 v251, s52, v{vH}"); e(f"v_or_b32 v252, s52, v{vH4}")
    e(f"s_mov_b32 s48, s{sC}"); e(f"s_mov_b32 s49, s{sC}"); e("s_mov_b32 s50, 1.0"); e("s_mov_b32 s51, 1.0")
    e(f"s_add_u32 s{t0}, s{sSeg2}, 147456"); e(f"v_add_u32 v249, s{t0}, v{vH}")
    for q in range(4): e(f"ds_write_b128 v249, {vr(176+4*q,4)} offset:{q*1024}")
    unpark=[I(f"ds_read_b128 {vr(176+4*q,4)}, v249 offset:{q*1024}") for q in range(4)]
    P.extend(stamp(52))
    P.extend(flat(pro[OPT['early']:]))
    P.extend(stamp(53))
    P.append(WAIT(vm=["x0","w0a"]+([] if OPT['split0'] else ["w0"]),lgkm=0)); e("s_barrier")
    P.extend(stamp(1))
    P.extend(reads(0))
    first=[]
    if OPT['npre']==1:
        first=xdma(1)+wdma(1); P.extend(flat(first[:OPT['pre1']])); first=first[OPT['pre1']:]
    P.append(WAIT(lgkm=0))
    eA=[epi(0,t) for t in range(5)]
    held=[(x[-2],x.pop()) for x in eA] if OPT['dst'] else []
    pool=Pool(flat(eA))
    dq=[]
    for s in range(max(2,OPT['npre']),14):
        if s<=6: dq.append((max(0,2*(s-4)+1),xdma(s)))
        dq.append((max(0,2*(s-4)+1),wdma(s)))
        if s==8: dq.append((0,[[I(f"buffer_load_dword v14, v15, {srd(DBG)}, 0 offen sc1","clr")]]))
    w2q=[(max(OPT['w2p0'],LOC[b][1]),D.w2dma(b)) for b in range(10)]
    cur=first
    for Pn in range(28):
        p,s,h=Pn//14,Pn//2,Pn%2
        CH=(p==1 or OPT['chainA']) and not (OPT['split0'] and s==0)
        mf=[]
        for jq in range(2 if CH else 4):
            for t in range(5):
                for ks in ((0,1) if CH else (h,)):
                    q = (2*jq+h) if CH else jq
                    j = (2*jq+ks) if CH else jq
                    d=vr(ACC(p,q,t),4)
                    mf.append(mfma(d,vr(AF(h,j),4),XF((2*(s%7)+ks)*5+t),"0" if (s%7==0 and ks==0) else d))
        f=[]
        if Pn<27:
            rd=reads(Pn+1)
            if Pn==0 and OPT['split0']:
                xs=[x for x in rd if "b128" in x.op]; tr=[x for x in rd if "b128" not in x.op]
                f+=spread(xs,0,5)+[(7.9,WAIT(vm=["w0"])),(7.95,I("s_barrier"))]+spread(tr,8,16)
            else: f+=spread(rd,0,min(12,len(rd)))
        items=[]
        while len(items)<(OPT['rateA'] if Pn<OPT['nA'] else OPT['rate']):
            if not cur:
                if dq and dq[0][0]<=Pn: cur=dq.pop(0)[1]
                elif w2q and w2q[0][0]<=Pn: cur=w2q.pop(0)[1]
                else: break
            items.append(cur.pop(0))
        n=len(items)
        for k,it in enumerate(items):
            pos=1+k*(19 if Pn else 14)/max(n,5)
            for x in it:
                f.append((pos-1 if x.cls=="salu" else (pos+1 if x.cls=="valu" else pos),x))
        if Pn==16: f+=spread(unpark,8,12)
        if Pn==OPT['gop']: f.append((19,I(f"buffer_store_dword v{vOne}, v250, {srd(DBG)}, 0 offen offset:4 sc1","go")))
        if Pn>=OPT['dst'] and not dq and (w2only:=all(x.tag[0]=="b" for it in cur for x in it if x.cls=="vm")):
            for k in range(2):
                if held and all(y is not held[0][0] for y in pool.q[:400]) and not any(y.wr&held[0][1].rd for y in pool.q): f.append((18-8*(1-k)+1,held.pop(0)[1]))
        tl=[]
        if h==0: tl=[WAIT(vm=[f"w{s+1}",f"x{s+1}"],lgkm=0),I("s_barrier")]
        elif Pn<27: tl=[WAIT(lgkm=0)]
        n0=len(P)
        if OPT['p2']:
            P.extend(pack2(mf,f,pool if p==1 else None,(OPT['capc']-2 if Pn<OPT['cp'] and p==1 else 0),lo=(2 if Pn==14 else 0),tail=tl,dsend=16))
        else:
            P.extend(pack(mf,f,pool if p==1 else None,(OPT['capc'] if Pn<OPT['cp'] else OPT['cap']),lo=(2 if Pn==14 else 0))); P.extend(tl)
        if OPT['est']: print("ffn period",Pn,estimate(P[n0:]),"pool",len(pool.q))
        if Pn==13: P.extend(stamp(2))
        if h==0: P.extend(stamp(32+s))
    assert not dq
    print("left: epiA ops",len(pool.q),"w2 items",len(w2q))
    P.extend(stamp(3))
    P.extend(pool.q)
    P.extend([x[1] for x in held])
    P.extend(flat(cur))
    for _,g_ in w2q: P.extend(flat(g_))
    e(f"s_add_u32 s{sHst}, s{sHst}, {2*NT*1024}")
    S=[WAIT(vm=["b0"])]+D.treads(0); WQ=[]
    for j in range(8):
        S+=[WAIT(vm=[f"b{j+1}"])]+D.treads(j+1)+[WAIT(lgkm=8)] if j<7 else [WAIT(lgkm=0)]
        if OPT['pA']==5+j: S.append(D.poll("pollA"))
        if j>=8-OPT['weave']: WQ+=[(0,it) for it in D.w2dma(10+j)]
        else: S+=[x for x in flat(D.w2dma(10+j)) if not (x.cls=="vm" and j>=8-OPT['skipS'])]
        if j+1==OPT['nin']: n_in=len(S)
        if j+1==OPT['sBs']+OPT['nin']:
            S+=[WAIT(vm=["st1"]),I(f"buffer_atomic_add v{vOne}, v{vFl}, {srd(WS)}, 0 offen offset:512","sigB")]+stamp(10)
    E=[]
    for t in range(5):
        E+=epi(1,t)+stamp(46+t)
        if t==OPT['sAt']: E.append("sigA")
    k0=0
    for k,x in enumerate(E):
        if x=="sigA":
            P.append(WAIT(vm=["st0","clr"])); check_or_spin(15,0,1,DBG,14)
            e(f"buffer_atomic_add v{vOne}, v{vFl}, {srd(WS)}, 0 offen","sigA")
        else: P.append(x)
        k1=max(k0,n_in*(k+1)//len(E))
        while 0<k1<len(S) and S[k1-1].cls=="ds" and S[k1].cls=="ds": k1+=1
        P.extend(S[k0:k1]); k0=k1
    P.extend(stamp(4))
    P.extend(S[k0:])
    D.main(WQ,OPT['lead'],OPT['pah'])

HROW=[118784,49152,118784,65536,81920,139264,49152,0,118784,65536,16384,32768,98304,81920,139264,49152,0,118784]
hR=[[1,2,4,5],[64,65,66,67],[68,69,70,71]]; hsN,hsF0,hsQ=58,59,57
HD=Down(NTT=3,vt=(240,241,242),vW2=3,vWo=6,vH=231,vHt=(231,231),sLast=47,vPoll=12,vPoll2=14,vPA=72,vPO=73,vSA=74,vO=75,vRW=76,vRR=77,vS=80,vRT=96,
        sW2o=[None,40,41,42],sWr2=43,sNW2=47,sNH=48,sD=49,sWr3=50,sNWo=51,sNHo=52,sHld=53,sHO=54,sRow=55,
        m0=lambda b:(hsQ,HROW[b]),rd=lambda b:(hR[HROW[b]>>16],HROW[b]&0xffff),red=(0,4096,16384),
        ACC=lambda q,t:16+(q*3+t)*4,AF=lambda buf,q:160+16*buf+4*q,aSt=128,aH=0,nAS=10,NSL=10,vHS=0)
def helper_setup(regs):
    t=sT[:4]; t=[66,67,70,71]
    mksrd(WO,44,401408); mksrd(WD,52,1605632); mksrd(OUT,56,1835008)
    e(f"s_mul_i32 s{hsF0}, s{sXCD}, 3"); e(f"s_add_u32 s{hsF0}, s{hsF0}, 104"); e(f"s_add_u32 s61, s{sXCD}, 26"); e(f"s_lshl_b32 s{hsQ}, s{sW}, 12")
    keep=(HD.vW2,HD.vWo); HD.vW2,HD.vWo=regs[0],regs[1]
    HD.setup_w(hsF0,61,hsN,t)
    e(f"s_cmp_gt_u32 s{hsN}, 6"); e(f"s_cselect_b32 s66, {OOB}, 0"); e(f"v_or_b32 v{regs[0]}, s66, v{regs[0]}"); e(f"v_or_b32 v{regs[1]}, s66, v{regs[1]}")
    HD.vW2,HD.vWo=keep
    HD.setup_lane([regs[2:6]],[hsQ],t)
    e("v_lshlrev_b32 v231, 4, v0")
    HD.setup_io(hsF0,hsN,t)
    for j in range(8): e(f"v_accvgpr_write_b32 a{248+j}, v{72+j}")
hwin=[0]
def hstage(b):
    o=[]; w=HROW[b]>>16
    if w!=hwin[0]: o+=[I(f"v_add_u32 v{r}, {((w-hwin[0])<<16)&0xffffffff}, v{r}") for r in hR[0]]; hwin[0]=w
    return o+HD.treads(b,lambda b_:(hR[0],HROW[b_]&0xffff))

def attn():
    sAT,sHG=72,73
    sXb,sWb=74,75
    sWo={(0,0):76,(0,1):77,(1,0):78,(1,1):79,(2,0):80,(2,1):81}
    sK,sD0,sD1,sO,sC=82,83,84,85,86
    mE,mM0,mM1,mZ=88,90,100,68
    t0,t1=66,67; t2_,t3=70,71
    vX=[1,2,3,4,5]; vW=6; vXR=(7,8); vR0=(9,10); vR1=(11,12); vRq=(13,14); vPad=15
    vA=(224,225)
    TBL=159744; XB=98304
    Q=lambda u,tl: 16+(u*2+tl)*4
    K=lambda t,tl: 80+(t*2+tl)*4
    V=lambda d,t: 152+d*36+t*4
    XA=lambda buf,t: buf*36+4*t
    WF=lambda buf,m,tl: 72+buf*24+(2*m+tl)*4
    e("L_attn:")
    e(f"s_lshr_b32 s{sAT}, s{sXCD}, 2"); e(f"s_lshl_b32 s{sAT}, s{sAT}, 3"); e(f"s_add_u32 s{sAT}, s{sAT}, s{sJ}"); e(f"s_sub_u32 s{sAT}, s{sAT}, 1"); e(f"s_and_b32 s{sHG}, s{sXCD}, 3")
    e("v_lshrrev_b32 v230, 3, v0"); e("v_and_b32 v231, 7, v0")
    e(f"s_and_b32 s{t0}, s{sW}, 1"); e(f"s_lshl_b32 s{t1}, s{t0}, 2")
    e("v_lshrrev_b32 v232, 1, v230"); e(f"v_or_b32 v232, s{t1}, v232"); e("v_xor_b32 v232, v232, v231"); e("v_lshlrev_b32 v232, 4, v232")
    e(f"s_lshl_b32 s{t2_}, s{sAT}, 7"); e(f"s_lshl_b32 s{t3}, s{sW}, 3"); e(f"s_add_u32 s{t2_}, s{t2_}, s{t3}")
    e(f"v_add_u32 v{vX[0]}, s{t2_}, v230"); e(f"v_mul_u32_u24 v{vX[0]}, 896, v{vX[0]}"); e(f"v_add_u32 v{vX[0]}, v{vX[0]}, v232")
    for j in range(1,5): e(f"v_add_u32 v{vX[j]}, {32*j*896}, v{vX[0]}")
    e(f"s_cmp_lt_u32 s{t2_}, 16"); e(f"s_cselect_b32 s{t0}, {OOB}, 0"); e(f"v_or_b32 v{vX[0]}, s{t0}, v{vX[0]}")
    e(f"s_cmp_ge_u32 s{sW}, 2"); e(f"s_cselect_b32 s{t0}, {OOB}, 0"); e(f"v_or_b32 v{vX[4]}, s{t0}, v{vX[4]}")
    e("v_lshrrev_b32 v230, 4, v0"); e("v_and_b32 v231, 15, v0")
    e(f"s_and_b32 s{t0}, s{sW}, 2"); e(f"s_lshl_b32 s{t0}, s{t0}, 1"); e(f"v_or_b32 v232, s{t0}, v230"); e("v_lshlrev_b32 v232, 1, v232"); e("v_xor_b32 v232, v232, v231")
    e(f"s_lshl_b32 s{t0}, s{sW}, 2"); e(f"v_add_u32 v{vW}, s{t0}, v230"); e(f"v_mul_u32_u24 v{vW}, 2688, v{vW}")
    e(f"v_lshl_add_u32 v{vW}, v232, 4, v{vW}"); e(f"s_mul_i32 s{t0}, s{sHG}, 224"); e(f"v_add_u32 v{vW}, s{t0}, v{vW}")
    e(f"v_mov_b32 v233, {OOB}"); e("v_cmp_lt_u32 vcc, 13, v232"); e(f"v_cndmask_b32 v{vW}, v{vW}, v233, vcc")
    sWr,sD,sNW,sKx,sKt=92,93,99,87,3
    e(f"s_lshl_b32 s{t0}, s{sHG}, 1"); e(f"s_add_u32 s{t0}, s{t0}, s{sAT}")
    if OPT['arot']==7:
        e(f"s_mul_i32 s{t1}, s{t0}, 9363"); e(f"s_lshr_b32 s{t1}, s{t1}, 16"); e(f"s_mul_i32 s{t1}, s{t1}, 7"); e(f"s_sub_u32 s{t0}, s{t0}, s{t1}")
    elif OPT['arot']==2: e(f"s_and_b32 s{t0}, s{t0}, 1"); e(f"s_mul_i32 s{t0}, s{t0}, 3")
    elif OPT['arot']==4: e(f"s_and_b32 s{t0}, s{sAT}, 3"); e(f"s_lshl_b32 s{t0}, s{t0}, 1")
    else: e(f"s_mov_b32 s{t0}, 0")
    e(f"s_sub_u32 s{sWr}, 6, s{t0}"); e(f"s_lshl_b32 s{sKx}, s{t0}, 7"); e(f"s_lshl_b32 s{sKt}, s{t0}, 9")
    e(f"s_mul_i32 s{t1}, s{t0}, {64*2688}"); e(f"v_add_u32 v{vW}, s{t1}, v{vW}"); e(f"s_mov_b32 s{sNW}, {-13*32*2688}")
    e(f"s_lshl_b32 s{sXb}, s{sW}, 10"); e(f"s_add_u32 s{sXb}, s{sXb}, {XB}")
    e(f"s_mul_i32 s{sWb}, s{sW}, 6144")
    for (m,j),r in sWo.items():
        imm=((2*m+j)%4)*1024
        e(f"s_mov_b32 s{r}, {4096+m*896+16*j*2688-imm}")
    e(f"s_lshl_b32 s{t0}, s{sW}, 6"); e(f"v_add_u32 v234, s{t0}, v0"); e("v_lshlrev_b32 v235, 2, v234")
    e("s_waitcnt lgkmcnt(0)")
    mksrd(GW,54,896); mksrd(X,40,1835008,14336); mksrd(WA,42,1204224,4096)
    P.extend(stamp(0))
    if OPT['ap1']:
        sV=46
        e(f"s_lshl_b32 s{sV}, s{sAT}, 2"); e(f"s_add_u32 s{sV}, s{sV}, s{sHG}"); e(f"s_lshl_b32 s{sV}, s{sV}, 2"); e(f"s_add_u32 s{sV}, s{sV}, s{sW}")
        e("v_min_u32 v240, 47, v0"); e("v_mul_u32_u24 v241, 21846, v240"); e("v_lshrrev_b32 v241, 16, v241"); e("v_mul_u32_u24 v242, 3, v241"); e("v_sub_u32 v242, v240, v242")
        e(f"s_lshl_b32 s{t0}, s{sV}, 4"); e(f"v_add_u32 v243, s{t0}, v241"); e("v_mul_u32_u24 v243, 896, v243"); e("v_lshl_add_u32 v243, v242, 8, v243"); e("v_add_u32 v243, 128, v243")
        e(f"s_and_b32 s{t0}, s{sV}, 63"); e("v_min_u32 v241, 13, v241"); e("v_lshlrev_b32 v242, 7, v242"); e(f"v_add_u32 v242, s{t0}, v242"); e("v_add_u32 v242, 64, v242")
        e("v_mul_u32_u24 v242, 3584, v242"); e("v_lshl_add_u32 v242, v241, 8, v242")
        e(f"s_cmp_ge_u32 s{sV}, 192"); e(f"s_cselect_b32 s{WU}, s50, s48"); e(f"s_cselect_b32 s{WU+1}, s51, s49")
        e(f"s_cmp_lt_u32 s{sV}, 128"); e(f"s_cselect_b32 s{WU}, s40, s{WU}"); e(f"s_cselect_b32 s{WU+1}, s41, s{WU+1}"); e(f"s_cselect_b64 vcc, -1, 0")
        e(f"s_mov_b32 s{WU+2}, 1605632"); e(f"s_cselect_b32 s{WU+2}, 1835008, s{WU+2}"); e(f"s_mov_b32 s{WU+3}, 0x20000")
        e("v_cndmask_b32 v242, v242, v243, vcc")
        e(f"buffer_load_dword a140, v242, {srd(WU)}, 0 offen","pf")
    e(f"buffer_load_dword v236, v235, {srd(GW)}, 0 offen","gw")
    def xdma(c):
        o=[I(f"s_mov_b32 s{sK}, s{sKx}"),I(f"s_add_u32 s{sKx}, s{sKx}, 128"),ATOM(f"s_cmp_eq_u32 s{sWr}, {c}",f"s_cselect_b32 s{sKx}, 0, s{sKx}")]
        for j in range(5):
            o.append(I(f"s_add_u32 m0, s{sXb}, {(c%3)*20480+j*4096}"))
            o.append(dma(vX[j],X,f"s{sK}",0,f"x{c}"))
        return o
    def wdma(k):
        o=[]
        for m in range(3):
            if m!=1: o.append(I(f"s_add_u32 m0, s{sWb}, {(k%4)*24576+(4096 if m==2 else 0)}"))
            for j in range(2): o.append(dma(vW,WA,f"s{sWo[(m,j)]}",((2*m+j)%4)*1024,f"w{k}"))
        if k%2==1:
            o[-1:-1]=[ATOM(f"s_cmp_eq_u32 s{sWr}, {k//2}",f"s_cselect_b32 s{sD}, s{sNW}, {32*2688}")]
            o.append(I(f"v_add_u32 v{vW}, s{sD}, v{vW}"))
        else: o.append(I(f"v_add_u32 v{vW}, {32*2688}, v{vW}"))
        return o
    pro=xdma(0)+wdma(0)+wdma(1)
    cutp=[k for k,x in enumerate(pro) if x.cls=="vm"][OPT['aearly']-1]+1 if OPT['aearly'] else 0
    P.extend(pro[:cutp])
    aq=[(0,xdma(1)),(0,wdma(2)),(0,wdma(3)),(0,xdma(2))]
    for k in range(4,14):
        aq.append((k-4+(1 if k-4<OPT['amid'] else 0),wdma(k)))
        if k%2==1 and (k+1)//2<=6: aq.append((2*((k+1)//2-3)+1+(1 if 2*((k+1)//2-3)+1<OPT['amid'] else 0),xdma((k+1)//2)))
    acur=[]
    mksrd(WS,60,WSN); mksrd(DBG,58,256)
    HELP=OPT['ntt']==4
    APW=[94,95,96,97] if not (OPT['stamp'] or OPT['probe']!=-2) else [12,13,14,15]
    if OPT['apW']>=0:
        if APW[0]==12: APW=[4+60+0,0,0,0]
    APW=[48,49,50,51]
    if HELP: e(f"s_and_b32 s{t0}, s{sXCD}, 3"); e(f"s_cmp_eq_u32 s{t0}, 3"); e(f"s_cselect_b32 s{t0}, 1, 0"); e(f"s_add_u32 s{hsN}, s{sJ}, s{t0}")
    if HELP:
        helper_setup([232,233,234+9,245,246,247])
        for j,r in enumerate([232,243,245,246,247,233]): e(f"v_accvgpr_write_b32 a{122+j}, v{r}")
    else: mksrd(WO,44,401408); mksrd(WD,52,1605632)
    e(f"s_sub_u32 s{t0}, s{sJ}, 1"); e(f"s_lshl_b32 s{t0}, s{t0}, 2"); e(f"s_add_u32 s{t0}, s{t0}, s{sW}"); e(f"s_lshl_b32 s{t0}, s{t0}, 6")
    e(f"v_add_u32 v227, s{t0}, v0"); e("v_lshlrev_b32 v226, 7, v227"); e(f"s_mov_b32 s36, {2048*128}")
    if OPT['apW']>=0:
        e(f"s_lshl_b32 s{t0}, s{sAT}, 2"); e(f"s_add_u32 s{t0}, s{t0}, s{sHG}"); e(f"s_lshl_b32 s{t0}, s{t0}, 2"); e(f"s_add_u32 s{t0}, s{t0}, s{sW}")
        e(f"s_cmp_ge_u32 s{t0}, 128"); e(f"s_cselect_b32 s{WU}, s{APW[2]}, s{APW[0]}"); e(f"s_cselect_b32 s{WU+1}, s{APW[3]}, s{APW[1]}"); e(f"s_mov_b32 s{WU+2}, 1605632"); e(f"s_mov_b32 s{WU+3}, 0x20000")
        e(f"s_and_b32 s{t0}, s{t0}, 127"); e(f"s_mul_i32 s{t0}, s{t0}, 49"); e("v_min_u32 v238, 48, v0"); e(f"v_add_u32 v238, s{t0}, v238"); e("v_lshlrev_b32 v238, 8, v238"); e("v_add_u32 v238, 128, v238")
        e("v_accvgpr_write_b32 a129, v238")
    if OPT['apA']>=0 or OPT['apB']>=0:
        e("v_mul_u32_u24 v228, 9363, v227"); e("v_lshrrev_b32 v228, 22, v228"); e("v_mul_u32_u24 v228, 448, v228"); e("v_add_u32 v228, v228, v227"); e("v_lshlrev_b32 v228, 7, v228")
        e("v_cmp_lt_u32 vcc, 1791, v227"); e(f"v_mov_b32 v229, {OOB}"); e("v_cndmask_b32 v227, v228, v229, vcc"); e(f"v_add_u32 v239, {448*128}, v227"); e("v_accvgpr_write_b32 a128, v239")
        for j in range(1,4): e(f"s_mov_b32 s{36+j}, {3584*128*j}")
    e("v_lshrrev_b32 v230, 4, v0"); e("v_and_b32 v231, 15, v0")
    e("v_lshrrev_b32 v232, 1, v231"); e("v_xor_b32 v232, v232, v230"); e("v_lshlrev_b32 v232, 4, v232")
    e("v_lshl_add_u32 v232, v231, 7, v232"); e(f"v_add_u32 v{vXR[0]}, {XB}, v232"); e(f"v_xor_b32 v{vXR[1]}, 64, v{vXR[0]}")
    e("v_bfe_u32 v232, v0, 2, 2"); e("v_and_b32 v233, 3, v0")
    e("v_and_b32 v237, 1, v230"); e("v_lshl_add_u32 v238, v237, 2, v232"); e("v_lshlrev_b32 v238, 2, v238")
    e("v_mul_u32_u24 v237, 12288, v237"); e("v_lshrrev_b32 v239, 1, v230"); e("v_lshl_add_u32 v237, v239, 10, v237"); e("v_lshl_add_u32 v237, v232, 8, v237")
    e(f"s_mul_i32 s{t0}, s{sW}, 7")
    e(f"v_add_u32 v239, s{t0}, v233")
    e("v_xor_b32 v240, v239, v238"); e(f"v_lshl_add_u32 v{vR0[0]}, v240, 3, v237")
    e("v_add_u32 v239, 4, v239")
    e("v_and_b32 v240, 3, v239"); e("v_or_b32 v240, 28, v240"); e("v_cmp_eq_u32 vcc, 3, v233"); e("v_cndmask_b32 v239, v239, v240, vcc")
    e("v_xor_b32 v240, v239, v238"); e(f"v_lshl_add_u32 v{vR1[0]}, v240, 3, v237")
    e(f"v_cndmask_b32 v{vPad}, 0, 1, vcc")
    e(f"v_add_u32 v{vR0[1]}, 49152, v{vR0[0]}"); e(f"v_add_u32 v{vR1[1]}, 49152, v{vR1[0]}")
    e("v_lshl_add_u32 v240, v230, 3, v232"); e("v_lshlrev_b32 v240, 3, v240"); e(f"v_add_u32 v240, {TBL}, v240")
    e(f"v_cndmask_b32 v{vRq[0]}, v{vR1[0]}, v240, vcc"); e(f"v_cndmask_b32 v{vRq[1]}, v{vR1[1]}, v240, vcc")
    P.append(WAIT(vm=["gw"]))
    e("v_and_b32 v244, 0xffff, v236"); e("v_mov_b32 v245, 0"); e("v_lshrrev_b32 v246, 16, v236"); e("v_mov_b32 v247, 0")
    e("v_lshlrev_b32 v234, 4, v234"); e(f"v_add_u32 v234, {TBL}, v234")
    e("ds_write_b128 v234, v[244:247]")
    def reads(k):
        sl=k%4; h=sl//2; buf=k%2
        pre=[]; tr=[]
        for a in range(2):
            imm=(sl%2)*24576+a*6144
            pre.append(I(f"s_add_u32 s{(sD0,sD1)[a]}, s{sKt}, {(256*(k%2)+32*a-imm)&0xffffffff}"))
            pre.append(I(f"v_mad_i32_i24 v{vA[a]}, v{vPad}, s{(sD0,sD1)[a]}, v{vRq[h]}"))
        for m in range(3):
            for tl in range(2):
                for a in range(2):
                    ad = vR0[h] if tl==0 else (vA[a] if m==0 else vR1[h])
                    tr.append(I(f"ds_read_b64_tr_b16 {ar(WF(buf,m,tl)+2*a,2)}, v{ad} offset:{(sl%2)*24576+a*6144+m*2048}"))
        xs=[I(f"ds_read_b128 {ar(XA(buf,t),4)}, v{vXR[k%2]} offset:{((k//2)%3)*20480+t*2048}") for t in range(9)]
        if k%2==1: pre+=[I(f"s_add_u32 s{sKt}, s{sKt}, 512"),ATOM(f"s_cmp_eq_u32 s{sWr}, {k//2}",f"s_cselect_b32 s{sKt}, 0, s{sKt}")]
        return pre+tr[:2]+xs+tr[2:]
    P.extend(pro[cutp:])
    P.append(WAIT(vm=["x0","w0"],lgkm=0)); e("s_barrier")
    P.extend(stamp(1))
    P.extend(reads(0))
    if OPT['amid']: P.append(WAIT(lgkm=0))
    else: P.append(WAIT(vm=["w1"],lgkm=0)); e("s_barrier")
    cA0,cB0,cA1,cB1,vNeg,vH,vH4,vSt,vFl=226,227,228,229,230,231,250,251,252
    import struct
    f2u=lambda x: struct.unpack("<I",struct.pack("<f",x))[0]
    n0=len(P)
    e("v_lshrrev_b32 v232, 4, v0"); e("v_and_b32 v233, 15, v0")
    e("v_and_b32 v234, 1, v233"); e(f"v_cmp_eq_u32 s[{mE}:{mE+1}], 0, v234")
    e("v_lshl_add_u32 v235, v232, 2, v234"); e(f"v_cmp_le_u32 s[{mM0}:{mM0+1}], v235, v233")
    e("v_add_u32 v235, 2, v235"); e(f"v_cmp_le_u32 s[{mM1}:{mM1+1}], v235, v233")
    e("v_mov_b32 v236, 0xffff0000"); e("v_mov_b32 v237, 0xffff"); e(f"v_lshlrev_b32 v{vH}, 4, v0"); e(f"v_add_u32 v{vH4}, 4096, v{vH}")
    e(f"v_cndmask_b32 v236, v236, v237, s[{mE}:{mE+1}]")
    e(f"v_cndmask_b32 v{cA0}, 0, v236, s[{mM0}:{mM0+1}]"); e(f"v_xor_b32 v{cB0}, v{cA0}, v236")
    e(f"v_cndmask_b32 v{cA1}, 0, v236, s[{mM1}:{mM1+1}]"); e(f"v_xor_b32 v{cB1}, v{cA1}, v236")
    e(f"v_mov_b32 v{vNeg}, 0xf149f2ca")
    P.append(ATOM(f"s_cmp_eq_u32 s{sAT}, 0",f"s_cselect_b64 s[{mZ}:{mZ+1}], -1, 0"))
    e(f"s_mov_b32 s{sC}, {f2u(28**-0.5*math.log2(math.e)):#x}"); e(f"s_mov_b32 s{sK}, 0x3fb8aa3b")
    e(f"s_lshl_b32 s{t0}, s{sHG}, 2"); e(f"s_add_u32 s{t0}, s{t0}, s{sW}"); e(f"s_add_u32 s{t0}, s{t0}, 56"); e(f"s_mul_i32 s{t0}, s{t0}, {NT}")
    e(f"s_lshl_b32 s{t1}, s{sAT}, 3"); e(f"s_add_u32 s{t0}, s{t0}, s{t1}"); e(f"s_lshl_b32 s{t0}, s{t0}, 10"); e(f"s_add_u32 s{sO}, s{t0}, {H0}")
    e(f"s_mul_i32 s{t0}, s{sHG}, {SSTR}"); e(f"s_lshl_b32 s{t1}, s{sAT}, 9"); e(f"s_add_u32 s{t0}, s{t0}, s{t1}"); e(f"s_add_u32 s{t0}, s{t0}, {S0}")
    P.append(ATOM(f"s_cmp_eq_u32 s{sW}, 0",f"s_cselect_b32 s{t0}, s{t0}, {OOB}"))
    e(f"v_lshlrev_b32 v{vSt}, 2, v0"); e(f"v_add_u32 v{vSt}, s{t0}, v{vSt}")
    e(f"s_lshl_b32 s{t0}, s{sAT}, 2"); e(f"s_add_u32 s{t0}, s{t0}, s{sHG}"); e(f"s_add_u32 s{t0}, s{t0}, 208"); e(f"s_lshl_b32 s{t0}, s{t0}, 7")
    e("v_min_u32 v238, 1, v0"); e("v_lshlrev_b32 v238, 31, v238"); e(f"v_or_b32 v{vFl}, s{t0}, v238")
    apool=Pool(P[n0:]); del P[n0:]
    U=range(8)
    A=lambda u: 232+u; B=lambda u: 240+u; M=lambda u: 170+u; T=lambda u: 178+u; L=lambda u: 206+u
    SP=lambda u: K(u,1); SO=lambda u: Q(u,1); PQ=lambda u: Q(u,0)
    ZC=(224,225)
    def pk(d,a): return I(f"v_cvt_pk_bf16_f32 v{d}, v{a}, v{a+1}")
    def pack4(d,a,b): return [pk(d,a),pk(d+1,a+2),pk(d+2,b),pk(d+3,b+2)]
    def seq(groups,cap=2):
        f=[]; g=0; room=cap
        for mg,ins in groups:
            for x in ins:
                if g<mg: g=mg; room=cap
                if cost(x)>room: g+=1; room=cap
                f.append((g,x)); room-=cost(x)
        return f
    for k in range(14):
        buf=k%2; mf=[]
        c=lambda d: "0" if k==0 else d
        two=lambda n: [(x,tl) for x in range(n) for tl in range(2)] if k==13 else [(x,tl) for tl in range(2) for x in range(n)]
        for u,tl in two(8): d=vr(Q(u,tl),4); mf.append(mfma(d,ar(WF(buf,0,tl),4),ar(XA(buf,u+1),4),c(d)))
        for t,tl in two(9): d=vr(K(t,tl),4); mf.append(mfma(d,ar(WF(buf,1,tl),4),ar(XA(buf,t),4),c(d)))
        for tl in range(2):
            for t in range(9): d=vr(V(tl,t),4); mf.append(mfma(d,ar(XA(buf,t),4),ar(WF(buf,2,tl),4),c(d)))
        f=[]
        if k<OPT['amid']:
            f+=[(25.9,WAIT(vm=[f"w{k+1}",f"x{(k+1)//2}"])),(25.95,I("s_barrier"))]+spread(reads(k+1),26,47)
        elif k<13: f+=spread(reads(k+1),0,36)
        dm=[]; nd=0
        while nd<OPT['arate']:
            if not acur:
                if aq and aq[0][0]<=k: acur=list(aq.pop(0)[1])
                else: break
            x=acur.pop(0); dm.append(x); nd+=(x.cls=="vm")
            while acur and acur[0].cls=="valu": dm.append(acur.pop(0))
        if k==8:
            dm.append(I("v_mov_b32 v249, 0")); dm.append(I(f"buffer_load_dword v248, v249, {srd(DBG)}, 0 offen sc1","clr"))
        if OPT['apf'] and OPT['apfk']<=k<OPT['apfk']+3:
            kk=k-OPT['apfk']
            if kk==0: dm+=[I(f"buffer_load_dword a{120+j}, v226, {srd(WO)}, {['0','s36'][j]} offen","pf") for j in range(2)]
        if k==OPT['apW']: dm+=[I("v_accvgpr_read_b32 v238, a129"),I(f"buffer_load_dword a138, v238, {srd(WU)}, 0 offen","pf")]
        for base,k0,av in ((130,OPT['apA'],227),(134,OPT['apB'],239)):
            if k0>=0 and k0<=k<k0+2:
                if av==239 and k==k0: dm.append(I("v_accvgpr_read_b32 v239, a128"))
                dm+=[I(f"buffer_load_dword a{base+2*(k-k0)+j}, v{av}, {srd(WD)}, {['0','s37','s38','s39'][2*(k-k0)+j]} offen","pf") for j in range(2)]
        if HELP:
            if k==8:
                assert all(x.tag[0]!="x" for x in dm+acur+flat([g_ for _,g_ in aq]) if x.cls=="vm")
                f+=spread([I(f"v_accvgpr_read_b32 v{r}, a{122+j}") for j,r in enumerate([HD.vW2]+hR[0])],44,51)
            for b in {9:[0],10:[1],11:[2,3,4],12:[5,6,7],13:list(range(8,8+OPT['hp13']))}.get(k,[]):
                assert not acur
                dm+=flat(HD.w2dma(b))
            sb={10:[0],11:[1],12:[2,3]}.get(k,[])
            if sb: f+=spread([WAIT(vm=[f"b{sb[-1]}"])]+flat([hstage(b) for b in sb]),36.5,50)
        pos=0; nd=0
        for x in dm:
            if x.cls=="vm": nd+=1
            pos=max(pos+0.001,4.3*nd-(2 if x.cls=="vm" else (1 if x.cls=="valu" else -1))); f.append((pos,x))
        if k==13:
            assert not apool.q and not aq and not acur
            for u in U:
                mf.append(mfma(vr(SP(u),4),vr(K(u,0),4),vr(Q(u,0),4),"0")); mf.append(mfma(vr(SO(u),4),vr(K(u+1,0),4),vr(Q(u,0),4),"0"))
            G=[(2*u+5,pack4(Q(u,0),Q(u,0),Q(u,1))) for u in U]
            zc=[]
            for h in range(2):
                q=[Q(4*h+x,1) for x in range(4)]
                zc.append([I(f"v_permlane16_swap_b32 v{q[2]}, v{q[3]}"),I(f"v_permlane16_swap_b32 v{q[0]}, v{q[1]}"),I(f"v_permlane32_swap_b32 v{q[1]}, v{q[3]}"),
                           I(f"v_mul_f32 v{ZC[h]}, s{sK}, v{q[3]}"),I(f"v_min_f32 v{ZC[h]}, 0x42c80000, v{ZC[h]}"),I(f"v_exp_f32 v{ZC[h]}, v{ZC[h]}"),I(f"v_add_f32 v{7+h}, 1.0, v{ZC[h]}")])
            zi=[x for pr in zip(*zc) for x in pr]
            for t in range(9):
                G.append((16+2*t+5,pack4(K(t,0),K(t,0),K(t,1))))
                if t in (1,3,5): G.append((0,zi[:2] if t==1 else (zi[2:4] if t==3 else zi[4:6])))
            G.append((0,zi[6:8]))
            for d in range(2):
                for t in range(9):
                    G.append((34+9*d+t+4,[pk(V(d,0)+2*t,V(d,t)),pk(V(d,0)+2*t+1,V(d,t)+2)]))
                    if d==0 and t in (2,4,6): G.append((0,zi[8+(t-2):10+(t-2)]))
            f+=seq(G)
        tl=[]
        if k<13: tl=[WAIT(lgkm=0)] if k+1<OPT['amid'] else [WAIT(vm=[f"w{k+2}",f"x{(k+2)//2}"],lgkm=0),I("s_barrier")]
        n0=len(P)
        if OPT['p2']: P.extend(pack2(mf,f,apool if 11<=k<13 else None,tail=tl,dsend=48))
        else: P.extend(pack(mf,f,apool if 11<=k<13 else None)); P.extend(tl)
        if OPT['est']: print("attn period",k,estimate(P[n0:]))
        if k<13: P.extend(stamp(32+k))
    P.extend(stamp(2))
    sE=f"s[{mE}:{mE+1}]"
    n_in0=len(P)
    for u in U:
        e(f"v_cndmask_b32 v{M(u)}, v{SP(u)+1}, v{SP(u)}, {sE}"); e(f"v_cndmask_b32 v{T(u)}, v{SP(u)+3}, v{SP(u)+2}, {sE}")
        e(f"v_cndmask_b32 v{A(u)}, v{SO(u)+1}, v{SO(u)}, {sE}"); e(f"v_cndmask_b32 v{B(u)}, v{SO(u)+3}, v{SO(u)+2}, {sE}")
        if u==0:
            e(f"v_cndmask_b32 v{M(0)}, v{M(0)}, v{vNeg}, s[{mZ}:{mZ+1}]"); e(f"v_cndmask_b32 v{T(0)}, v{T(0)}, v{vNeg}, s[{mZ}:{mZ+1}]")
        e(f"v_cndmask_b32 v{A(u)}, v{M(u)}, v{A(u)}, s[{mM0}:{mM0+1}]"); e(f"v_cndmask_b32 v{B(u)}, v{T(u)}, v{B(u)}, s[{mM1}:{mM1+1}]")
        e(f"v_max_f32 v{M(u)}, v{A(u)}, v{B(u)}")
    def allred(R,op,mid):
        H=(0,4)
        for h in H: e(f"v_permlane32_swap_b32 v{R(h)}, v{R(h+2)}"); e(f"v_permlane32_swap_b32 v{R(h+1)}, v{R(h+3)}")
        for h in H: e(f"{op} v{R(h)}, v{R(h)}, v{R(h+2)}"); e(f"{op} v{R(h+1)}, v{R(h+1)}, v{R(h+3)}")
        for h in H: e(f"v_permlane16_swap_b32 v{R(h)}, v{R(h+1)}")
        for h in H: e(f"{op} v{R(h)}, v{R(h)}, v{R(h+1)}")
        mid(H)
        for h in H: e(f"v_mov_b32 v{R(h+1)}, v{R(h)}")
        for h in H: e(f"v_permlane16_swap_b32 v{R(h)}, v{R(h+1)}")
        for h in H: e(f"v_mov_b32 v{R(h+2)}, v{R(h)}"); e(f"v_mov_b32 v{R(h+3)}, v{R(h+1)}")
        for h in H: e(f"v_permlane32_swap_b32 v{R(h)}, v{R(h+2)}"); e(f"v_permlane32_swap_b32 v{R(h+1)}, v{R(h+3)}")
    def midM(H):
        for h in H: e(f"v_mul_f32 v{M(h)}, s{sC}, v{M(h)}")
    allred(M,"v_max_f32",midM)
    for u in U:
        e(f"v_fma_f32 v{A(u)}, v{A(u)}, s{sC}, -v{M(u)}"); e(f"v_fma_f32 v{B(u)}, v{B(u)}, s{sC}, -v{M(u)}")
    for u in U:
        e(f"v_exp_f32 v{A(u)}, v{A(u)}"); e(f"v_exp_f32 v{B(u)}, v{B(u)}")
        if u: e(f"v_add_f32 v{L(u-1)}, v{A(u-1)}, v{B(u-1)}")
    e(f"v_add_f32 v{L(7)}, v{A(7)}, v{B(7)}")
    def midL(H):
        for h in H: e(f"v_rcp_f32 v{L(h)}, v{L(h)}")
        for h in H: e(f"v_rcp_f32 v{T(h)}, v{7+h//4}")
        for h in H: e(f"v_mul_f32 v{L(h)}, v{L(h)}, v{ZC[h//4]}")
        e(f"buffer_store_dword v{T(0)}, v{vSt}, {srd(WS)}, 0 offen sc1","st"); e(f"buffer_store_dword v{T(4)}, v{vSt}, {srd(WS)}, 0 offen offset:256 sc1","st")
    allred(L,"v_add_f32",midL)
    if HELP and OPT['hin']:
        assert OPT['hp13']==5
        body=P[n_in0:]; del P[n_in0:]
        S2=[I(f"v_accvgpr_read_b32 v{HD.vWo}, a127")]+[I(f"v_accvgpr_read_b32 v{r}, a{248+j}") for j,r in enumerate((9,10,11,12,14,15,186,187))]
        S2+=[WAIT(vm=["b7"])]+flat([hstage(b) for b in range(4,8)])+[WAIT(lgkm=0)]
        nr=len(S2); S2+=flat([flat(HD.w2dma(b)) for b in range(13,13+OPT['hin'])])
        k0=0; n1=len(body)//3
        for k,x in enumerate(body):
            P.append(x)
            k1=max(k0,nr*(k+1)//n1 if k<n1 else nr+(len(S2)-nr)*(k+1-n1)//(len(body)-n1))
            while 0<k1<len(S2) and (S2[k1].cls=="ds" or (S2[k1-1].cls=="valu" and k1<nr-1)): k1+=1
            P.extend(S2[k0:k1]); k0=k1
    def pre(u):
        return [I(f"v_mul_f32 v{A(u)}, v{A(u)}, v{L(u)}"),I(f"v_mul_f32 v{B(u)}, v{B(u)}, v{L(u)}"),
                I(f"v_cvt_pk_bf16_f32 v{A(u)}, v{A(u)}, v{A(u)}"),I(f"v_cvt_pk_bf16_f32 v{B(u)}, v{B(u)}, v{B(u)}"),
                I(f"v_and_b32 v{PQ(u)}, v{cB0}, v{A(u)}"),I(f"v_and_b32 v{PQ(u)+1}, v{cB1}, v{B(u)}"),
                I(f"v_and_b32 v{PQ(u)+2}, v{cA0}, v{A(u)}"),I(f"v_and_b32 v{PQ(u)+3}, v{cA1}, v{B(u)}")]
    def post(u):
        return pack4(PQ(u),SP(u),SO(u))+[I(f"buffer_store_dwordx4 {vr(PQ(u),4)}, v{vH if u<4 else vH4}, {srd(WS)}, s{sO} offen offset:{(u%4)*1024} sc1","st")]
    P.extend(pre(0))
    for u in range(10):
        if u+1<8: a_=pre(u+1)
        else: a_=[]
        P.extend(a_[:2])
        if u<8: P.append(mfma(vr(SP(u),4),vr(V(0,0)+2*u,4),vr(PQ(u),4),"0"))
        P.extend(a_[2:4])
        if u<8: P.append(mfma(vr(SO(u),4),vr(V(1,0)+2*u,4),vr(PQ(u),4),"0"))
        P.extend(a_[4:])
        if u>=2: P.extend(post(u-2))
        elif u==0: e("v_mov_b32 v13, 1")
    P.extend(stamp(3))
    nb=8+OPT['hp13']
    P.append(WAIT(vm=["clr"])); check_or_spin(249,0,1,DBG,248)
    if HELP:
        if OPT['hin']:
            for j,r in enumerate((9,10,11,12,14,15,186,187)): e(f"v_mov_b32 v{72+j}, v{r}")
            e("L_help:")
            P.append(HD.poll("pollA")); nb+=OPT['hin']
        else:
            e("L_help:")
            e(f"v_accvgpr_read_b32 v{HD.vWo}, a127")
            for j in range(8): e(f"v_accvgpr_read_b32 v{72+j}, a{248+j}")
            P.append(HD.poll("pollA"))
            P.append(WAIT(vm=["b7"])); P.extend(flat([hstage(b) for b in range(4,8)]))
        for b in range(nb,nb+OPT['hwin']): P.extend(flat(HD.w2dma(b)))
        nb+=OPT['hwin']
        if hwin[0]: P.extend([I(f"v_add_u32 v{r}, {(-hwin[0]<<16)&0xffffffff}, v{r}") for r in hR[0]])
        for w in (1,2):
            for q in range(4): e(f"v_add_u32 v{hR[w][q]}, {w<<16}, v{hR[0][q]}")
    P.append(WAIT(vm=["st"],lgkm=0))
    e(f"buffer_atomic_add v13, v{vFl}, {srd(WS)}, 0 offen","sig")
    if HELP:
        P.extend(stamp(4))
        e(f"s_cmp_gt_u32 s{hsN}, 6"); e("s_cbranch_scc1 L_hexit")
        HD.main([(0 if b<17 else 24,it) for b in range(nb,18) for it in HD.w2dma(b)],OPT['hlead'],OPT['hpah'],so=50)
        e("L_hexit:")
    P.extend(stamp(4,True))
    if not HELP and (OPT['l2o'] or OPT['l2b']):
        sA,sB,sWv=40,41,42
        e(f"s_mul_i32 s{t0}, s{sXCD}, 23"); e(f"s_lshr_b32 s{t1}, s{sXCD}, 2"); e(f"s_sub_u32 s{t0}, s{t0}, s{t1}"); e(f"s_add_u32 s{t1}, s{t0}, 22")
        for r,d in ((t0,sA),(t1,sB)): e(f"s_mul_i32 s{r}, s{r}, 9363"); e(f"s_lshr_b32 s{d}, s{r}, 16")
        e(f"s_min_u32 s{sB}, s{sB}, 25")
        e(f"s_sub_u32 s{sWv}, s{sJ}, 1"); e(f"s_lshl_b32 s{sWv}, s{sWv}, 2"); e(f"s_add_u32 s{sWv}, s{sWv}, s{sW}")
        e(f"s_sub_u32 s43, s{sB}, s{sA}"); e("s_add_u32 s43, s43, 1"); e("s_mul_i32 s43, s43, 40"); e("s_sub_u32 s43, s43, 1")
        e(f"s_mul_i32 s44, s{sA}, 5")
        def touch(sKap,first,n,step):
            e(f"s_mul_i32 s{t0}, s{sKap}, {NT}"); e(f"s_add_u32 s{t0}, s{t0}, s44"); e(f"s_lshl_b32 s{t0}, s{t0}, 10"); e(f"s_add_u32 s{t0}, s{t0}, {H0}")
            for k in range(n):
                e(f"v_add_u32 v20, {first}, v0") if isinstance(first,str) and k==0 else e(f"v_add_u32 v20, {step if k else first}, v{20 if k else 0}")
                e("v_min_u32 v21, s43, v20"); e("v_lshlrev_b32 v21, 7, v21"); e(f"buffer_load_dword v{24+k}, v21, {srd(WS)}, s{t0} offen sc1","pf")
        if OPT['l2b']:
            LB=lab("NB")
            e(f"s_cmp_ge_u32 s{sWv}, 28"); e(f"s_cbranch_scc1 {LB}")
            e(f"s_lshr_b32 s45, s{sWv}, 1"); e(f"s_and_b32 s46, s{sWv}, 1"); e("s_cmp_ge_u32 s45, 7"); e("s_cselect_b32 s47, 2, 0"); e("s_add_u32 s47, s47, s46")
            e(f"v_min_u32 v22, 4, v0"); e(f"v_add_u32 v22, s{sA}, v22"); e(f"v_min_u32 v22, s{sB}, v22"); e("v_lshlrev_b32 v22, 3, v22"); e("v_add_u32 v22, s47, v22"); e("v_lshlrev_b32 v22, 7, v22")
            spin(22,512,7,WS,23,nap=OPT['nap'])
            e("s_lshl_b32 s45, s45, 2"); e("s_add_u32 s45, s45, s46"); e("s_add_u32 s45, s45, 2")
            touch(45,0,4,64)
            e(LB+":")
        if OPT['l2o']:
            e(f"s_and_b32 s45, s{sWv}, 15"); e("s_lshr_b32 s46, s45, 2")
            e(f"s_lshr_b32 s47, s44, 3"); e(f"s_mul_i32 s48, s{sB}, 5"); e("s_add_u32 s48, s48, 4"); e("s_lshr_b32 s48, s48, 3"); e("s_min_u32 s48, s48, 15")
            e("v_min_u32 v22, 4, v0"); e("v_add_u32 v22, s47, v22"); e("v_min_u32 v22, s48, v22"); e("v_lshlrev_b32 v22, 2, v22"); e("v_add_u32 v22, s46, v22"); e("v_add_u32 v22, 208, v22"); e("v_lshlrev_b32 v22, 7, v22")
            e("s_waitcnt vmcnt(0)"); spin(22,0,4,WS,23,nap=OPT['napo'])
            e("s_add_u32 s45, s45, 56"); e(f"s_lshr_b32 s46, s{sWv}, 4"); e("s_lshl_b32 s46, s46, 6")
            touch(45,"s46",2,128)
    e("s_endpgm")

OPT_ORDER=[(0,1,2),(0,2,1),(2,0,1)]
def spare():
    KN=NAME+"_kernel"
    e("L_spare:")
    e("s_getpc_b64 s[68:69]")
    e("L_pc:")
    e(f"s_sub_u32 s68, s68, L_pc-{KN}"); e("s_subb_u32 s69, s69, 0")
    e(f"s_lshl_b32 s70, s{sW}, 13"); e("v_lshlrev_b32 v1, 7, v0"); e("v_add_u32 v2, s70, v1")
    e(f"v_min_u32 v3, L_end-{KN}-4, v2")
    e("global_load_dword v10, v3, s[68:69]","pf")
    e("v_add_u32 v2, 32768, v2"); e(f"v_min_u32 v3, L_end-{KN}-4, v2")
    e("global_load_dword v11, v3, s[68:69]","pf")
    e("s_waitcnt lgkmcnt(0)")
    mksrd(WS,60,WSN); mksrd(DBG,58,256)
    e(f"s_or_b32 s70, s2, s{sW}"); e("s_cmp_eq_u32 s70, 0"); e("s_cbranch_scc0 L_noclr")
    e("v_lshlrev_b32 v5, 8, v0"); e("v_mov_b32 v6, 0"); e("v_lshlrev_b32 v7, 7, v0"); e("v_mov_b32 v8, 1")
    for k in range(5):
        e(f"buffer_store_dword v6, v7, {srd(WS)}, 0 offen sc1"); e("v_add_u32 v7, 8192, v7")
    e("s_waitcnt vmcnt(0)")
    e(f"buffer_store_dword v8, v5, {srd(DBG)}, 0 offen sc1")
    e("L_noclr:")
    if OPT['tlb']:
        mksrd(WO,44,401408); mksrd(WD,52,1605632); mksrd(OUT,56,1835008)
        e(f"s_cmp_eq_u32 s{sW}, 1"); e("s_cbranch_scc0 L_notlb")
        e(f"v_mul_u32_u24 v20, {NT*1024}, v0"); e("v_lshlrev_b32 v21, 17, v0"); e(f"s_mov_b32 s70, {H0+129*1024}"); e(f"s_mov_b32 s71, {H0+129*1024+64*NT*1024}")
        e(f"buffer_load_dword v22, v20, {srd(WS)}, s70 offen","pf"); e(f"buffer_load_dword v23, v20, {srd(WS)}, s71 offen","pf")
        e(f"s_mov_b32 s70, {S0-128}"); e(f"buffer_load_dword v27, off, {srd(WS)}, s70","pf")
        for k,sr in enumerate((WD,WO,OUT)): e(f"buffer_load_dword v{24+k}, v21, {srd(sr)}, 0 offen","pf")
        e("s_waitcnt vmcnt(0)")
        e("L_notlb:")
    if OPT['ntt']==5 and OPT['gop']>=0:
        mksrd(WO,44,401408); mksrd(WD,52,1605632)
        e("v_mov_b32 v249, 0"); spin(249,4,1,DBG,248,nap=OPT['nap'])
        e(f"s_mul_i32 s66, s{sW}, 10"); e(f"s_add_u32 s66, s66, s{sI}"); e("s_lshl_b32 s66, s66, 6"); e("v_add_u32 v20, s66, v0")
        n=30
        for part in OPT_ORDER[OPT['sord']]:
            if part<2:
                for k in range(3):
                    e(f"v_add_u32 v21, {2560*k}, v20"); e("v_mul_u32_u24 v22, 9363, v21"); e("v_lshrrev_b32 v22, 22, v22"); e(f"v_add_u32 v22, {part}, v22")
                    e("v_mul_u32_u24 v22, 448, v22"); e("v_add_u32 v22, v22, v21"); e("v_lshlrev_b32 v22, 7, v22")
                    e(f"buffer_load_dword v{n}, v22, {srd(WD)}, 0 offen","pf"); n+=1
            else:
                for k in range(2):
                    e(f"v_add_u32 v21, {2560*k}, v20"); e("v_lshlrev_b32 v22, 7, v21"); e(f"buffer_load_dword v{n}, v22, {srd(WO)}, 0 offen","pf"); n+=1
    if OPT['ntt']==4:
        P.extend(stamp(0))
        e(f"s_min_u32 s{hsN}, s{sJ}, 1")
        helper_setup([HD.vW2,9]+hR[0])
        e("v_accvgpr_write_b32 a127, v9")
        e("v_lshlrev_b32 v231, 4, v0"); e(f"v_mov_b32 v252, {OOB}"); e("v_mov_b32 v13, 1"); e("v_mov_b32 v249, 0"); e("v_mov_b32 v248, 0")
        if OPT['gop']>=0: spin(249,4,1,DBG,248,nap=OPT['nap'])
        if OPT['spf']:
            e(f"s_mul_i32 s66, s{sXCD}, 392"); e(f"s_lshl_b32 s67, s{sW}, 6"); e("s_add_u32 s66, s66, s67"); e("v_add_u32 v14, s66, v0")
            for k in range(13):
                e("v_subrev_u32 v15, 3136, v14"); e("v_min_u32 v15, v15, v14"); e("v_lshlrev_b32 v15, 7, v15")
                e(f"buffer_load_dword v{16+k}, v15, {srd(WO)}, 0 offen","pf"); e("v_add_u32 v14, 256, v14")
                if k<OPT['spf']-1: e("s_waitcnt vmcnt(0)")
        hwin[0]=0
        for b in range(8+OPT['hp13']):
            P.extend(flat(HD.w2dma(b)))
            for sb in {1:[0],4:[1],7:[2,3]}.get(b,[]):
                P.append(WAIT(vm=[f"b{sb}"])); P.extend(hstage(sb)); P.append(WAIT(lgkm=0))
        if OPT['hin']:
            e(f"v_mov_b32 v{HD.vWo}, v9")
            P.append(WAIT(vm=["b7"])); P.extend(flat([hstage(b) for b in range(4,8)])); P.append(WAIT(lgkm=0))
            for b in range(13,13+OPT['hin']): P.extend(flat(HD.w2dma(b)))
        assert hwin[0]==HROW[7 if OPT['hin'] else 3]>>16
        spin(249,0,1,DBG,248)
        spin(HD.vPA,0,7,WS,HD.vPoll,nap=OPT['nap'])
        e("s_branch L_help")
    e("L_exit:")
    e("s_endpgm")
    e("L_end:")

DESC="""; One launch, 256 workgroups (one per CU, 4 waves, 512 registers each), roles by workgroup id:
;                     stream through an LDS ring and are transposed by ds_read_b64_tr_b16); silu(g)*u goes to d_ws in
;    64 attention   : 128 tokens (+16 halo) x 4 heads, one head per wave; q/k/v by MFMA, the 8 dilated taps are picked
; Hand-offs: write-through stores, vmcnt wait, atomic add on a counter in d_ws (zeroed in this launch, announced through
; d_debug); consumers poll the counter and read with L1-bypassing loads.  Workgroup-to-die placement only affects speed.
"""
def main():
    global P
    head=open("cdna_kernels/"+NAME+".s.ref").read().split("; Override launch")[0]
    txt=[]; nops=0
    def ablate(o):
        a=OPT['abl']; r=[]
        for x in o:
            if a&1 and x.cls=="vm" and " lds" in x.text: continue
            if a&2 and x.op.startswith("ds_read"): continue
            if a&4 and x.op.startswith("v_mfma"): continue
            r.append(x)
        return r
    for part in ((common_prologue,ffn),(attn,),(spare,)):
        P.clear()
        if part[0] is not common_prologue:
            pass
        for f in part: f()
        o,n=finalize(list(P),part[-1].__name__); nops+=n
        if OPT['abl']: o=ablate(o)
        txt+=[x.text if x.cls=="label" else "    "+x.text for x in o]
    out=head+DESC+"; @launch grid=(256,1,1) block=(256,1,1) lds=163840\n"
    out+='.amdgcn_target "amdgcn-amd-amdhsa--gfx950"\n.text\n'
    out+=f".globl {NAME}_kernel\n.p2align 8\n.type {NAME}_kernel,@function\n{NAME}_kernel:\n"
    out+="\n".join(txt)+"\n"
    out+=f""".section .rodata,"a"
.p2align 6
.amdhsa_kernel {NAME}_kernel
  .amdhsa_next_free_vgpr 512
  .amdhsa_next_free_sgpr 102
  .amdhsa_accum_offset 256
  .amdhsa_group_segment_fixed_size 0
  .amdhsa_kernarg_size 88
  .amdhsa_user_sgpr_count 2
  .amdhsa_user_sgpr_kernarg_segment_ptr 1
  .amdhsa_system_sgpr_workgroup_id_x 1
.end_amdhsa_kernel
"""
    open(sys.argv[1],"w").write(out)
    print("instructions",len(txt),"auto nops",nops)
main()
```

```python
import sys, math
from isa import *
NAME="gated_mix__sliding_local_dilated__swiglu_ffn__prompt"
OPT=dict(stamp=0, probe=-2, pwg=100, obs=0, abl=0, outpol=0,
         rot=4, arot=7, rate=5, cap=2, capc=3, cp=16, chainA=1, w2p0=13, sAt=1, nin=3, sBs=2, pA=10,
         lead=10, pah=10, nm=3, ntt=5, hlead=9, hpah=9, arate=12, apf=1, spf=1, l2o=0, l2b=1, ech=1, tail2=0, ap1=1, nogate=0, cpf=1, dst=0, paho=10, p2b=0, p2o=0, weave=0, sord=0, napo=24, skipS=0, rateA=5, nA=6, apW=-1, apA=-1, apB=-1, apfk=10, hp13=5, hwin=0, nap=8, amid=4, hin=2, gop=5, p2=1, est=0, tlb=0, stf=0, split0=1, npre=2, pre1=5, early=9, aearly=5)
for a in sys.argv[2:]:
    k,v=a.split("="); OPT[k]=int(v)
H0=0x100000; NT=130; S0=0x80000; SSTR=2176*4; STAMP0=0xC00000; WSN=0x1000000
OOB=0x80000000
X,WA,WU,WD,WO,WS,OUT,DBG,GW=4,8,12,16,20,24,28,32,36
def srd(b): return f"s[{b}:{b+3}]"
def vr(b,n=1): return f"v{b}" if n==1 else f"v[{b}:{b+n-1}]"
def ar(b,n=1): return f"a{b}" if n==1 else f"a[{b}:{b+n-1}]"
P=[]
def e(t,tag=None):
    x=I(t,tag); P.append(x); return x
_l=[0]
def lab(p="L"):
    _l[0]+=1; return f"{p}{_l[0]}"
def mksrd(b,src,n,bias=0):
    if bias:
        e(f"s_sub_u32 s{b}, s{src}, {bias}"); e(f"s_subb_u32 s{b+1}, s{src+1}, 0")
    else:
        e(f"s_mov_b64 s[{b}:{b+1}], s[{src}:{src+1}]")
    e(f"s_mov_b32 s{b+2}, {n+bias}"); e(f"s_mov_b32 s{b+3}, 0x20000")
def mfma(d,a,b,c): return I(f"v_mfma_f32_16x16x32_bf16 {d}, {a}, {b}, {c}")
sW,sXCD,sJ,sI=62,63,64,65
sT=[66,67,68,69,70,71]
sSTB=98
nstamp=[0]
def stamp(idx,last=False):
    if OPT['probe']!=-2:
        o=[]
        if idx==OPT['probe']: o+=[I("s_memrealtime s[94:95]"),I("s_waitcnt lgkmcnt(0)"),I("s_sub_u32 s97, s94, s96")]
        if last:
            L=lab("PR"); D=lab("PD")
            o+=[I(f"s_cmp_eq_u32 s2, {OPT['pwg']}"),I(f"s_cbranch_scc0 {D}"),I("s_add_u32 s97, s97, 4000"),I(L+":"),I("s_memrealtime s[94:95]"),I("s_waitcnt lgkmcnt(0)"),
                I("s_sub_u32 s94, s94, s96"),I("s_cmp_lt_u32 s94, s97"),I(f"s_cbranch_scc1 {L}"),I(D+":")]
        return o
    if not OPT['stamp']: return []
    if OPT['stamp']==2 and idx not in (0,1,2,3,4,5,6,7,8,9,10,11,55,56,57,58,59,61) : return []
    if OPT['stamp']==3 and idx not in (0,9) and not last: return []
    o=[I("s_memrealtime s[94:95]"),I("s_memtime s[96:97]"),I("s_waitcnt lgkmcnt(0)"),
       I(f"v_writelane_b32 v254, s94, {idx}"),I(f"v_writelane_b32 v255, s96, {idx}")]
    if last: o+=[I("v_lshlrev_b32 v253, 3, v0"),I(f"buffer_store_dwordx2 v[254:255], v253, {srd(WS)}, s{sSTB} offen","stamp")]
    return o
def spin(addrv, off, cmpval, srdb, res=12, nap=1):
    L=lab("SP"); D=lab("SD")
    e("s_mov_b32 s92, 0")
    e(L+":")
    e(f"buffer_load_dword v{res}, v{addrv}, {srd(srdb)}, 0 offen offset:{off} sc1","poll")
    e("s_waitcnt vmcnt(0)")
    e(f"v_cmp_ne_u32 vcc, {cmpval}, v{res}")
    e(f"s_cbranch_vccz {D}")
    e("s_add_u32 s92, s92, 1")
    e("s_cmp_lt_u32 s92, 0x40000")
    e(f"s_sleep {nap}")
    e(f"s_cbranch_scc1 {L}")
    e(D+":")
def check_or_spin(addrv, off, cmpval, srdb, res, second=None):
    D=lab("CK")
    e(f"v_cmp_ne_u32 vcc, {cmpval}, v{res}")
    e(f"s_cbranch_vccz {D}")
    if second:
        P.append(WAIT(vm=[second[0]],side=True))
        x=e(f"v_cmp_ne_u32 vcc, {cmpval}, v{second[1]}"); x.rd=set()
        e(f"s_cbranch_vccz {D}")
    n0=len(P)
    spin(addrv,off,cmpval,srdb,res)
    for x in P[n0:]:
        if x.cls=="vm": x.cls="raw"; x.wr=set()
        if x.op=="s_waitcnt": x.op="raw"
    e(D+":")

def codepf():
    KN=NAME+"_kernel"
    e("s_getpc_b64 s[68:69]")
    e("L_pc:")
    e(f"s_sub_u32 s68, s68, L_pc-{KN}"); e("s_subb_u32 s69, s69, 0")
    e("v_lshlrev_b32 v2, 7, v1")
    e("global_load_dword v10, v2, s[68:69]","pf")
    e("v_add_u32 v2, 32768, v2"); e(f"v_min_u32 v2, L_end-{KN}-4, v2")
    e("global_load_dword v11, v2, s[68:69]","pf")
def common_prologue():
    e("s_cmp_ge_u32 s2, 256"); e("s_cbranch_scc1 L_exit")
    if OPT['probe']!=-2:
        e("s_memrealtime s[94:95]"); e("s_waitcnt lgkmcnt(0)"); e("s_mov_b32 s96, s94"); e("s_mov_b32 s97, 0")
    e("s_load_dwordx16 s[40:55], s[0:1], 0")
    e("s_load_dwordx4 s[56:59], s[0:1], 64")
    e("s_load_dwordx2 s[60:61], s[0:1], 80")
    if OPT['cpf']:
        e("s_cmp_ge_u32 s2, 8"); e("s_cbranch_scc1 L_nopf")
        e("v_mov_b32 v1, v0"); n0=len(P); codepf()
        for x in P[n0:]:
            if x.cls=="vm": x.cls="raw"; x.wr=set()
        e("L_nopf:")
    e("v_lshrrev_b32 v1, 6, v0")
    e(f"s_and_b32 s{sXCD}, s2, 7"); e(f"s_lshr_b32 s{sJ}, s2, 3")
    e(f"v_readfirstlane_b32 s{sW}, v1")
    e("v_and_b32 v0, 63, v0")
    if OPT['stamp']:
        e(f"s_lshl_b32 s{sSTB}, s2, 2"); e(f"s_add_u32 s{sSTB}, s{sSTB}, s{sW}"); e(f"s_lshl_b32 s{sSTB}, s{sSTB}, 9")
        e(f"s_add_u32 s{sSTB}, s{sSTB}, {STAMP0}")
        e("v_mov_b32 v254, 0"); e("v_mov_b32 v255, 0")
    e(f"s_mov_b32 s{sI}, s{sXCD}")
    e(f"s_cmp_eq_u32 s{sJ}, 0"); e("s_cbranch_scc1 L_spare")
    e(f"s_cmp_lt_u32 s{sJ}, 9"); e("s_cbranch_scc1 L_attn")

def dma(voff,sr,soff,imm,tag): return I(f"buffer_load_dwordx4 v{voff}, {srd(sr)}, {soff} offen offset:{imm} lds",tag)

flat=lambda L:[x for it in L for x in it]
def mod7(dst,src,tmp,R=7):
    e(f"s_mul_i32 s{tmp}, s{src}, 9363"); e(f"s_lshr_b32 s{tmp}, s{tmp}, 16"); e(f"s_mul_i32 s{tmp}, s{tmp}, 7"); e(f"s_sub_u32 s{dst}, s{src}, s{tmp}")
    if R==1: e(f"s_mov_b32 s{dst}, 0")
    elif R==2: e(f"s_and_b32 s{dst}, s{dst}, 1"); e(f"s_mul_i32 s{dst}, s{dst}, 3")
    elif R==4: e(f"s_and_b32 s{dst}, s{dst}, 3"); e(f"s_lshl_b32 s{dst}, s{dst}, 1")

class Down:
    def __init__(c,**kw): c.__dict__.update(kw)
    def setup_w(c,sF0,sT2,sN,t):
        t0,t1,t2,t3=t; a,b,d=c.vt
        e(f"v_lshrrev_b32 v{a}, 3, v0"); e(f"v_and_b32 v{b}, 6, v{a}"); e(f"v_and_b32 v{d}, 7, v0"); e(f"v_xor_b32 v{b}, v{b}, v{d}")
        e(f"v_mul_u32_u24 v{a}, 896, v{a}"); e(f"v_lshl_add_u32 v{c.vW2}, v{b}, 4, v{a}")
        e(f"s_lshr_b32 s{t0}, s{sW}, 1"); e(f"s_mul_i32 s{t0}, s{t0}, 28"); e(f"s_and_b32 s{t1}, s{sW}, 1"); e(f"s_add_u32 s{t3}, s{t0}, s{t1}")
        e(f"s_lshl_b32 s{t2}, s{sN}, 7"); e(f"v_add_u32 v{c.vW2}, s{t2}, v{c.vW2}")
        e(f"s_add_u32 s{t0}, s{sT2}, s{sN}"); e(f"s_and_b32 s{t0}, s{t0}, 3"); e(f"s_sub_u32 s{c.sWr3}, 3, s{t0}")
        e(f"s_lshl_b32 s{t1}, s{sW}, 2"); e(f"s_add_u32 s{t2}, s{t0}, s{t1}")
        e(f"s_mul_i32 s{t0}, s{t2}, {28*896}"); e(f"v_add_u32 v{c.vWo}, s{t0}, v{c.vW2}")
        e(f"s_add_u32 s{t0}, s{t2}, 56"); e(f"s_mul_i32 s{t0}, s{t0}, {NT}"); e(f"s_add_u32 s{t0}, s{t0}, s{sF0}"); e(f"s_lshl_b32 s{t0}, s{t0}, 10"); e(f"s_add_u32 s{c.sHO}, s{t0}, {H0}")
        e(f"s_mov_b32 s{c.sNWo}, {-3*28*896}"); e(f"s_mov_b32 s{c.sNHo}, {-3*NT*1024}")
        e(f"s_lshl_b32 s{t0}, s{sT2}, 1"); e(f"s_add_u32 s{t0}, s{t0}, s{sN}")
        mod7(t0,t0,t1); e(f"s_sub_u32 s{c.sWr2}, 6, s{t0}"); e(f"s_lshl_b32 s{t0}, s{t0}, 2"); e(f"s_add_u32 s{t3}, s{t3}, s{t0}")
        e(f"s_mul_i32 s{t1}, s{t3}, {32*896}"); e(f"v_add_u32 v{c.vW2}, s{t1}, v{c.vW2}")
        e(f"s_mov_b32 s{c.sNW2}, {-6*114688}"); e(f"s_mov_b32 s{c.sNH}, {-24*NT*1024}")
        e(f"s_mul_i32 s{t0}, s{t3}, {NT}"); e(f"s_add_u32 s{t0}, s{t0}, s{sF0}"); e(f"s_lshl_b32 s{t0}, s{t0}, 10"); e(f"s_add_u32 s{c.sHld}, s{t0}, {H0}")
        for j in range(1,4): e(f"s_mov_b32 s{c.sW2o[j]}, {6144*j}")
    def setup_lane(c,dst,sBases,t):
        t0=t[0]; a,b,d=c.vt
        e(f"v_bfe_u32 v{a}, v0, 4, 1"); e(f"v_bfe_u32 v{b}, v0, 2, 2"); e(f"v_lshl_add_u32 v{a}, v{a}, 2, v{b}")
        e(f"v_lshrrev_b32 v{b}, 5, v0"); e(f"v_lshlrev_b32 v{b}, 10, v{b}"); e(f"v_lshl_add_u32 v{b}, v{a}, 7, v{b}")
        e(f"v_and_b32 v{d}, 3, v0"); e(f"v_lshl_add_u32 v{b}, v{d}, 3, v{b}"); e(f"v_lshrrev_b32 v{a}, 1, v{a}")
        for q in range(4):
            e(f"s_add_u32 s{t0}, s{sW}, {q}"); e(f"s_and_b32 s{t0}, s{t0}, 3")
            e(f"v_xor_b32 v{d}, s{t0}, v{a}"); e(f"v_lshl_add_u32 v{d}, v{d}, 5, v{b}")
            for k,sb in enumerate(sBases): e(f"v_add_u32 v{dst[k][q]}, s{sb}, v{d}")
    def setup_io(c,sF0,sN,t):
        t0,t1,t2,t3=t; a,b,d=c.vt; N=c.NTT
        e(f"v_lshrrev_b32 v{a}, 5, v0")
        e(f"s_add_u32 s{t1}, s{sF0}, {N-1}")
        e(f"s_mul_i32 s{t0}, s{sF0}, 13108"); e(f"s_lshr_b32 s{t0}, s{t0}, 16"); e(f"s_mul_i32 s{t2}, s{t1}, 13108"); e(f"s_lshr_b32 s{t2}, s{t2}, 16")
        e(f"s_sub_u32 s{t2}, s{t2}, s{t0}"); e(f"s_lshl_b32 s{t2}, s{t2}, 10"); e(f"s_lshl_b32 s{t0}, s{t0}, 3"); e(f"s_add_u32 s{t0}, s{t0}, s{sW}"); e(f"s_lshl_b32 s{t0}, s{t0}, 7")
        e(f"v_mul_u32_u24 v{b}, s{t2}, v{a}"); e(f"v_add_u32 v{c.vPA}, s{t0}, v{b}")
        e(f"s_lshr_b32 s{t0}, s{sF0}, 3"); e(f"s_lshr_b32 s{t2}, s{t1}, 3"); e(f"s_min_u32 s{t2}, s{t2}, 15")
        e(f"s_sub_u32 s{t2}, s{t2}, s{t0}"); e(f"s_lshl_b32 s{t2}, s{t2}, 9"); e(f"s_lshl_b32 s{t0}, s{t0}, 2"); e(f"s_add_u32 s{t0}, s{t0}, s{sW}"); e(f"s_add_u32 s{t0}, s{t0}, 208"); e(f"s_lshl_b32 s{t0}, s{t0}, 7")
        e(f"v_mul_u32_u24 v{b}, s{t2}, v{a}"); e(f"v_add_u32 v{c.vPO}, s{t0}, v{b}")
        e(f"s_lshl_b32 s{t0}, s{sF0}, 4"); e(f"v_and_b32 v{a}, 15, v0"); e(f"v_add_u32 v{a}, s{t0}, v{a}")
        e(f"s_mul_i32 s{t1}, s{sW}, {SSTR}"); e(f"s_add_u32 s{t1}, s{t1}, {S0}"); e(f"v_lshlrev_b32 v{c.vSA}, 2, v{a}"); e(f"v_add_u32 v{c.vSA}, s{t1}, v{c.vSA}")
        e(f"v_mul_u32_u24 v{a}, 896, v{a}"); e(f"v_lshrrev_b32 v{b}, 4, v0"); e(f"v_lshl_add_u32 v{a}, v{b}, 3, v{a}")
        e(f"s_lshl_b32 s{t1}, s{sN}, 7"); e(f"s_lshl_b32 s{t2}, s{sW}, 5"); e(f"s_add_u32 s{t1}, s{t1}, s{t2}"); e(f"v_add_u32 v{c.vO}, s{t1}, v{a}")
        base,ws,qs=c.red
        e(f"s_mul_i32 s{t0}, s{sW}, {ws}"); e(f"s_add_u32 s{t0}, s{t0}, {base}"); e(f"v_add_u32 v{c.vRW}, s{t0}, v{c.vH}")
        for q in range(1,4):
            e(f"s_sub_u32 s{t0}, s{sW}, {q}"); e(f"s_and_b32 s{t0}, s{t0}, 3"); e(f"s_mul_i32 s{t0}, s{t0}, {ws}"); e(f"s_add_u32 s{t0}, s{t0}, {base+(q-1)*qs}")
            e(f"v_add_u32 v{c.vRR+q-1}, s{t0}, v{c.vH}")
        for j in range(1,N): e(f"s_mov_b32 s{c.sRow+j-1}, {16*j*896}")
    def w2dma(c,b):
        sg,off=c.m0(b)
        o=[[dma(c.vW2,WD if b<14 else WO,"0" if pi==0 else f"s{c.sW2o[pi]}",pi*1024,f"b{b}")] for pi in range(4)]
        o[0].insert(0,I(f"s_add_u32 m0, s{sg}, {off}"))
        if b==13: o[-1].append(I(f"v_mov_b32 v{c.vW2}, v{c.vWo}"))
        elif b<13:
            o[-1]+=[ATOM(f"s_cmp_eq_u32 s{c.sWr2}, {b%7}",f"s_cselect_b32 s{c.sD}, s{c.sNW2}, 114688"),I(f"v_add_u32 v{c.vW2}, s{c.sD}, v{c.vW2}")]
            if b==6: o[-1].append(I(f"v_add_u32 v{c.vW2}, {64*896}, v{c.vW2}"))
        elif b<17: o[-1]+=[ATOM(f"s_cmp_eq_u32 s{c.sWr3}, {b-14}",f"s_cselect_b32 s{c.sD}, s{c.sNWo}, {28*896}"),I(f"v_add_u32 v{c.vW2}, s{c.sD}, v{c.vW2}")]
        return o
    def AW(c,b,q,a=None):
        r=c.aSt+16*(b%8)+4*q
        return ar(r,4) if a is None else ar(r+2*a,2)
    def treads(c,b,rd=None):
        base,off=(rd or c.rd)(b)
        return [I(f"ds_read_b64_tr_b16 {c.AW(b,q,a)}, v{base[q]} offset:{off+a*2048}") for q in range(4) for a in range(2)]
    def HS(c,b,t):
        k=b%c.NSL; na=c.nAS
        return ar(c.aH+(k*c.NTT+t)*4,4) if k<na else vr(c.vHS+((k-na)*c.NTT+t)*4,4)
    def hload(c,b):
        o=[[I(f"buffer_load_dwordx4 {c.HS(b,t)}, v{c.vH if t<3 else c.vHt[t-3]}, {srd(WS)}, s{c.sHld} offen offset:{(t%4)*1024} sc1",f"h{b}_{t}")] for t in range(c.NTT)]
        if b==13: o[-1].append(I(f"s_mov_b32 s{c.sHld}, s{c.sHO}"))
        elif b<13:
            o[-1]+=[ATOM(f"s_cmp_eq_u32 s{c.sWr2}, {b%7}",f"s_cselect_b32 s{c.sD}, s{c.sNH}, {4*NT*1024}",f"s_add_u32 s{c.sHld}, s{c.sHld}, s{c.sD}")]
            if b==6: o[-1].append(I(f"s_add_u32 s{c.sHld}, s{c.sHld}, {2*NT*1024}"))
        elif b<17: o[-1]+=[ATOM(f"s_cmp_eq_u32 s{c.sWr3}, {b-14}",f"s_cselect_b32 s{c.sD}, s{c.sNHo}, {NT*1024}",f"s_add_u32 s{c.sHld}, s{c.sHld}, s{c.sD}")]
        return o
    def poll(c,tag):
        av,off={"pollA":(c.vPA,0),"pollB":(c.vPA,512),"pollO":(c.vPO,0)}[tag]
        return I(f"buffer_load_dword v{c.vPoll}, v{av}, {srd(WS)}, 0 offen offset:{off} sc1",tag)
    def main(c,WQ,LEAD,PAH,so=0):
        N=c.NTT; GT=18*N
        steps=[[(b,) for b in range(15)]+[(15,16,17)],
               [(0,1),(2,3),(4,5),(6,),(7,8),(9,10),(11,12),(13,),(14,),(15,16,17)],
               [(0,1,2,3),(4,5,6),(7,8,9,10),(11,12,13),(14,15,16,17)],
               [(0,1),(2,3),(4,5,6),(7,8),(9,10),(11,12,13),(14,15),(16,17)],
               [(0,1),(2,3),(4,5,6),(7,8),(9,10),(11,12,13),(14,15,16,17)]][OPT['ech']]
        if not OPT['nogate']&1: P.append(WAIT(vm=["pollA"])); check_or_spin(c.vPA,0,7,WS,c.vPoll)
        P.extend(stamp(so+11))
        def setoff(st):
            o=[]
            for k,b in enumerate(st):
                o.append(I(f"s_mov_b32 s{44+k}, s{c.sHld}")); o+=c.hload(b)[-1][1:]
            return o
        HL=[]; start={}; units=[]
        for n,st in enumerate(steps):
            for b in st: start[b]=len(HL)
            for t in range(N):
                units.append((len(HL),st,t))
                for k,b in enumerate(st):
                    x=c.hload(b)[t][0]; HL.append([I(x.text.replace(f"s{c.sHld} offen",f"s{44+k} offen"),x.tag)])
            if n+1<len(steps): HL[-1]+=setoff(steps[n+1])
        P.extend(setoff(steps[0]))
        for l in range(LEAD): P.extend(HL[l])
        P.extend(stamp(so+5))
        hn=LEAD
        ustart=[u[0] for u in units]
        at=lambda g: max(x for x in ustart if x<=max(g,0))
        gates={at(start[7]-LEAD):("pollB",c.vPA,512,7,6), at(start[14]-LEAD):("pollO",c.vPO,0,4,7)}
        polls={at(g-(PAH if v[0]=='pollB' else OPT['paho'] or PAH)):v[0] for g,v in gates.items()}
        polls2={at(g-OPT[k]):v[0] for g,v in gates.items() for k in (['p2b'] if v[0]=="pollB" else ['p2o']) if OPT[k]}
        RQ={}
        for n,st in enumerate(steps):
            rd=[(x,f"b{b}") for b in st if b>=8 for x in c.treads(b)]
            if not rd: continue
            g1=start[st[0]]
            g0=max([g1-max(N,(len(rd)+1)//2)]+[start[b-8]+N*len([z for z in steps if b-8 in z][0]) for b in st if b>=8])
            assert 3*(g1-g0-1)>=len(rd)
            for k,(x,tg) in enumerate(rd): RQ.setdefault(g0+k*(g1-g0-1)//len(rd),[]).append((x,tg))
        base,ws,qs=c.red
        wr=lambda q,t: I(f"ds_write_b128 v{c.vRW}, {vr(c.ACC(q,t),4)} offset:{(q-1)*qs+t*1024}")
        R=lambda q,t: c.vRT+((q-1)*N+t)*4
        rr=lambda t: [I(f"ds_read_b128 {vr(R(q,t),4)}, v{c.vRR+q-1} offset:{t*1024}") for q in range(1,4)]
        NE=N-2 if OPT['tail2'] else 0
        def uw(u):
            g,st,t=units[u]
            tags=[f"h{b}_{t}" for b in st]+[tg for k in range(len(st)) for _,tg in RQ.get(g+k,[])]
            if g in gates: tags.append(gates[g][0])
            return WAIT(vm=tags,lgkm=0 if t==0 else None)
        P.append(uw(0))
        for u,(g,st,t) in enumerate(units):
            L=len(st)
            mf=[mfma(vr(c.ACC(q,t),4),c.AW(b,q),c.HS(b,t),"0" if b==0 else vr(c.ACC(q,t),4)) for q in range(4) for b in st]
            if g in gates:
                tg,av,off,val,si=gates[g]
                sec=(tg+"2",c.vPoll2) if OPT['p2b' if tg=="pollB" else 'p2o'] else None
                if not OPT['nogate']&(2 if tg=="pollB" else 4): check_or_spin(av,off,val,WS,c.vPoll,sec)
                P.extend(stamp(so+si))
            if t==0 and not so: P.extend(stamp(12+st[0]))
            f=[]
            if g in polls: f.append((2.5,c.poll(polls[g])))
            if g in polls2:
                x=c.poll(polls2[g]); f.append((2.6,I(x.text.replace(f"dword v{c.vPoll},",f"dword v{c.vPoll2},"),x.tag+"2")))
            for k in range(L):
                if hn<GT:
                    it=HL[hn]; hn+=1; f.append((4*k,it[0])); f+=[(4*k+1,x) for x in it[1:]]
                elif g+k+LEAD<GT+N: f+=([(4*k-0.5,I(f"v_or_b32 v{c.vSA}, s{c.sLast}, v{c.vSA}"))] if g+k+LEAD-GT==3 and N==5 else [])+[(4*k,I(f"buffer_load_dword v{c.vS+g+k+LEAD-GT}, v{c.vSA}, {srd(WS)}, 0 offen offset:{(g+k+LEAD-GT)*64} sc1","s"))]
                if WQ and WQ[0][0]<=g+k:
                    seen=False
                    for x in WQ.pop(0)[1]:
                        if x.cls=="vm": seen=True; f.append((4*k+2,x))
                        else: f.append((4*k+(3 if seen else 1.5),x))
                f+=[(4*k+0.2+j,x) for j,(x,_) in enumerate(RQ.get(g+k,[]))]
            if st is steps[-1] and t>0: f+=[(3+(q-1)*(4*L-4)//3,wr(q,t-1)) for q in range(1,4)]
            if NE and u==len(units)-1:
                f=[(k,x) for k,x in enumerate([x for _,x in f if x.cls=="ds"]+flat([rr(tt) for tt in range(NE)]))]+[z for z in f if z[1].cls!="ds"]
            o=pack2(mf,f)
            if NE and u==len(units)-2: o+=[WAIT(lgkm=0),I("s_barrier")]
            if u+1<len(units):
                j=max(i for i,x in enumerate(o) if x.cls=="mfma")
                if any(x.cls in("ds","vm") for x in o[j+1:]): o.append(uw(u+1))
                else: o.insert(j+1,uw(u+1))
            P.extend(o)
        assert not WQ and hn==GT
        for q in range(1,4): P.append(wr(q,N-1))
        P.extend(stamp(so+8))
        def fin(t):
            d=c.ACC(0,t)
            for r in (0,2): e(f"v_pk_add_f32 {vr(R(1,t)+r,2)}, {vr(R(1,t)+r,2)}, {vr(R(2,t)+r,2)}")
            for r in (0,2): e(f"v_pk_add_f32 {vr(d+r,2)}, {vr(d+r,2)}, {vr(R(3,t)+r,2)}")
            for r in (0,2): e(f"v_pk_add_f32 {vr(d+r,2)}, {vr(d+r,2)}, {vr(R(1,t)+r,2)}")
            for r in range(4): e(f"v_mul_f32 v{d+r}, v{c.vS+t}, v{d+r}")
            e(f"v_cvt_pk_bf16_f32 v{d}, v{d}, v{d+1}"); e(f"v_cvt_pk_bf16_f32 v{d+1}, v{d+2}, v{d+3}")
            e(f"buffer_store_dwordx2 {vr(d,2)}, v{c.vO}, {srd(OUT)}, {'0' if t==0 else 's%d'%(c.sRow+t-1)} offen{['',' sc1',' nt'][OPT['outpol']]}","out")
        if NE:
            P.append(WAIT(vm=["s"],lgkm=3))
            for t in range(NE): fin(t)
        P.append(WAIT(vm=["s"],lgkm=0)); e("s_barrier")
        for t in range(NE,N): P.extend(rr(t))
        for t in range(NE,N):
            e(f"s_waitcnt lgkmcnt({3*(N-1-t)})"); fin(t)
        P.extend(stamp(so+9,True))
        e("s_endpgm")

def ffn():
    sSL,sTT,sT2,sN=72,73,74,75
    sSeg1,sSeg2,sXb=76,77,78
    sXo=[None,79,80,81,82]
    sW1o=83
    sHst,sHld,sC=87,88,89
    vX,vW,vXR,vWR,vW2,vH,vH4,vFl,vOne,vPoll,vPA=1,2,(3,4),(5,6),7,8,9,10,11,12,13
    ACC=lambda p,q,t: 16+80*p+(q*5+t)*4
    def XF(i): return vr(176+4*i,4) if i<6 else ar(4*(i-6),4)
    AF=lambda buf,q: 200+16*buf+4*q
    t0,t1,t2_,t3=sT[:4]
    e(f"s_lshr_b32 s{t1}, s{sXCD}, 2"); e(f"s_add_u32 s{sI}, s{t1}, 8")
    e(f"s_and_b32 s{t0}, s{sXCD}, 3"); e(f"s_cmp_eq_u32 s{t0}, 3"); e(f"s_cselect_b32 s{t0}, 10, 9")
    e(f"s_cmp_lt_u32 s{sJ}, s{t0}"); e("s_cbranch_scc1 L_spare")
    e(f"s_sub_u32 s{sI}, s{sJ}, s{t0}")
    e(f"s_mul_i32 s{t0}, s{sXCD}, 23"); e(f"s_add_u32 s{sI}, s{sI}, s{t0}")
    e(f"s_sub_u32 s{sI}, s{sI}, s{t1}")
    e(f"s_mul_i32 s{sT2}, s{sI}, 9363"); e(f"s_lshr_b32 s{sT2}, s{sT2}, 16")
    e(f"s_mul_i32 s{t0}, s{sT2}, 7"); e(f"s_sub_u32 s{sN}, s{sI}, s{t0}")
    e(f"s_sub_u32 s{t0}, s{sI}, 98"); e(f"s_mul_i32 s{t1}, s{t0}, 10923"); e(f"s_lshr_b32 s{t1}, s{t1}, 16")
    e(f"s_mul_i32 s{t2_}, s{t1}, 6"); e(f"s_sub_u32 s{t0}, s{t0}, s{t2_}"); e(f"s_add_u32 s{t0}, s{t0}, 7")
    e(f"s_cmp_lt_u32 s{sI}, 98"); e(f"s_cselect_b32 s{sSL}, s{sT2}, s{t1}"); e(f"s_cselect_b32 s{sTT}, s{sN}, s{t0}")
    e("v_lshrrev_b32 v14, 3, v0")
    e("v_and_b32 v15, 7, v0")
    e(f"s_and_b32 s{t0}, s{sW}, 1"); e(f"s_lshl_b32 s{t1}, s{t0}, 2")
    e("v_lshrrev_b32 v12, 1, v14"); e(f"v_or_b32 v13, s{t1}, v12"); e("v_xor_b32 v13, v13, v15")
    e(f"s_mul_i32 s{t2_}, s{sTT}, 160"); e(f"s_lshl_b32 s{t3}, s{sW}, 3"); e(f"s_add_u32 s{t2_}, s{t2_}, s{t3}")
    e(f"v_add_u32 v{vX}, s{t2_}, v14"); e(f"v_mul_u32_u24 v{vX}, 896, v{vX}"); e(f"v_lshl_add_u32 v{vX}, v13, 4, v{vX}")
    e(f"s_lshl_b32 s{t0}, s{t0}, 2")
    e("v_and_b32 v13, 2, v14"); e(f"v_or_b32 v13, s{t0}, v13"); e("v_xor_b32 v13, v13, v15")
    e(f"v_add_u32 v{vW}, s{t3}, v14"); e(f"v_mul_u32_u24 v{vW}, 3584, v{vW}"); e(f"v_lshl_add_u32 v{vW}, v13, 4, v{vW}")
    e(f"s_lshl_b32 s{t0}, s{sSL}, 8"); e(f"v_add_u32 v{vW}, s{t0}, v{vW}")
    sWr,sD,sNX,sNW,sWr2,sNW2,sNH=90,91,93,99,100,101,3
    e(f"s_lshl_b32 s{t0}, s{sSL}, 1"); e(f"s_add_u32 s{t0}, s{sTT}, s{t0}"); mod7(t0,t0,t1,OPT['rot'])
    e(f"s_sub_u32 s{sWr}, 6, s{t0}"); e(f"s_lshl_b32 s{t1}, s{t0}, 7"); e(f"v_add_u32 v{vX}, s{t1}, v{vX}")
    e(f"s_mul_i32 s{t1}, s{t0}, {64*3584}"); e(f"v_add_u32 v{vW}, s{t1}, v{vW}")
    e(f"s_mov_b32 s{sNX}, -768"); e(f"s_mov_b32 s{sNW}, {-6*64*3584}")
    e(f"s_lshl_b32 s{sSeg2}, s{sW}, 12")
    e(f"s_lshl_b32 s{sXb}, s{sW}, 10"); e(f"s_add_u32 s{sXb}, s{sXb}, 65536")
    for j in range(1,5): e(f"s_mov_b32 s{sXo[j]}, {32*j*896}")
    e(f"s_mov_b32 s{sW1o}, {32*3584-1024}")
    for b,n in ((X,1835008),(WA,1605632),(WU,1605632+2048)):
        e(f"s_mov_b32 s{b+2}, {n}"); e(f"s_mov_b32 s{b+3}, 0x20000")
    e("s_waitcnt lgkmcnt(0)")
    e(f"s_mov_b64 s[{X}:{X+1}], s[40:41]"); e(f"s_mov_b64 s[{WA}:{WA+1}], s[48:49]")
    e(f"s_sub_u32 s{WU}, s50, 2048"); e(f"s_subb_u32 s{WU+1}, s51, 0")
    P.extend(stamp(0))
    def xdma(c):
        o=[]
        for j in range(5):
            o.append([I(f"s_add_u32 m0, s{sXb}, {(c%4)*20480+j*4096}"), dma(vX,X,"0" if j==0 else f"s{sXo[j]}",0,f"x{c}")])
        o[-1]+=[ATOM(f"s_cmp_eq_u32 s{sWr}, {c}",f"s_cselect_b32 s{sD}, s{sNX}, 128"),I(f"v_add_u32 v{vX}, s{sD}, v{vX}")]
        return o
    def wdma(s):
        o=[]
        for j in range(2):
            for m in range(2):
                o.append([dma(vW,WA if m==0 else WU,"0" if j==0 else f"s{sW1o}",(2*m+j)*1024,f"w{s}" if (s or j) else "w0a")])
        o[0].insert(0,I(f"s_add_u32 m0, s{sSeg2}, {(s%4)*16384}"))
        o[-1]+=[ATOM(f"s_cmp_eq_u32 s{sWr}, {s%7}",f"s_cselect_b32 s{sD}, s{sNW}, {64*3584}"),I(f"v_add_u32 v{vW}, s{sD}, v{vW}")]
        if s==6: o[-1].append(I(f"v_add_u32 v{vW}, 128, v{vW}"))
        return o
    NTT=OPT['ntt']; R1=[176,177,178,179]; R2=[180,181,182,183]; sF0=39
    LOC=[((sSeg1,b*4096),13 if b<2 else 17) for b in range(6)]+[((sSeg2,((j+2)%4)*16384),21+2*j) for j in range(4)]
    loc=lambda b: LOC[b%10][0]
    D=Down(NTT=NTT,vt=(196,197,198),vW2=vW2,vWo=248,vH=vH,vHt=(251,252),sLast=52,vPoll=vPoll,vPoll2=14,vPA=vPA,vPO=187,vSA=188,vO=189,vRW=190,vRR=184,vS=192,vRT=96,
           sW2o=[None,84,85,86],sWr2=sWr2,sNW2=sNW2,sNH=sNH,sD=sD,sWr3=38,sNWo=36,sNHo=37,sHld=sHld,sHO=sT[5],sRow=40,
           m0=loc,rd=lambda b:(R1 if loc(b)[0]==sSeg1 else R2,loc(b)[1]),red=(65536,24576,5120),
           ACC=lambda q,t:ACC(0,q,t),AF=AF,aSt=0,aH=128,nAS=128//(4*NTT),NSL=128//(4*NTT)+(4 if NTT==5 else 0),vHS=96)
    pro=flat([xdma(s)+wdma(s) for s in range(OPT['npre'])])
    P.extend(flat(pro[:OPT['early']]))
    P.extend(stamp(51))
    mksrd(WS,60,WSN); mksrd(WD,52,1605632); mksrd(WO,44,401408); mksrd(OUT,56,1835008); mksrd(DBG,58,256)
    e("v_lshrrev_b32 v14, 4, v0")
    e("v_and_b32 v15, 15, v0")
    e("v_lshrrev_b32 v12, 1, v15"); e("v_xor_b32 v12, v12, v14"); e("v_lshlrev_b32 v12, 4, v12")
    e("v_lshl_add_u32 v12, v15, 7, v12")
    e(f"s_lshr_b32 s{t0}, s{sW}, 1"); e(f"s_mul_i32 s{t0}, s{t0}, 10240"); e(f"s_add_u32 s{t0}, s{t0}, 65536")
    e(f"v_add_u32 v{vXR[0]}, s{t0}, v12"); e(f"v_xor_b32 v{vXR[1]}, 64, v{vXR[0]}")
    e("v_bfe_u32 v12, v0, 2, 2")
    e("v_lshrrev_b32 v13, 1, v12"); e("v_and_b32 v15, 1, v14"); e("v_lshlrev_b32 v15, 1, v15"); e("v_or_b32 v13, v13, v15")
    e(f"s_and_b32 s{t0}, s{sW}, 1"); e(f"s_lshl_b32 s{t0}, s{t0}, 1"); e(f"v_xor_b32 v13, s{t0}, v13"); e("v_lshlrev_b32 v13, 5, v13")
    e("v_lshl_add_u32 v13, v14, 12, v13"); e("v_lshl_add_u32 v13, v12, 7, v13")
    e("v_and_b32 v15, 3, v0"); e(f"v_lshl_add_u32 v{vWR[0]}, v15, 3, v13"); e(f"v_xor_b32 v{vWR[1]}, 32, v{vWR[0]}")
    e(f"s_mul_i32 s{sF0}, s{sT2}, {NTT}")
    D.setup_w(sF0,sT2,sN,sT[:4])
    e(f"s_lshl_b32 s{t2_}, s{sTT}, 1"); e(f"s_lshr_b32 s{t1}, s{sW}, 1"); e(f"s_add_u32 s{t2_}, s{t2_}, s{t1}")
    e(f"s_lshl_b32 s{t0}, s{sSL}, 2"); e(f"s_and_b32 s{t3}, s{sW}, 1"); e(f"s_add_u32 s{t0}, s{t0}, s{t3}"); e(f"s_mul_i32 s{t0}, s{t0}, {NT}")
    e(f"s_mul_i32 s{t1}, s{t2_}, 5"); e(f"s_add_u32 s{t0}, s{t0}, s{t1}")
    e(f"s_lshl_b32 s{t0}, s{t0}, 10"); e(f"s_add_u32 s{sHst}, s{t0}, {H0}")
    e(f"s_lshl_b32 s{t0}, s{t2_}, 3"); e(f"s_add_u32 s{t0}, s{t0}, s{t3}"); e(f"s_cmp_ge_u32 s{sSL}, 7"); e(f"s_cselect_b32 s{t1}, 2, 0"); e(f"s_add_u32 s{t0}, s{t0}, s{t1}"); e(f"s_lshl_b32 s{t0}, s{t0}, 7")
    e(f"v_mov_b32 v{vFl}, {OOB}"); e(f"v_mov_b32 v12, s{t0}"); e("v_cmp_eq_u32 vcc, 0, v0")
    e(f"v_lshlrev_b32 v{vH}, 4, v0"); e(f"v_add_u32 v{vH4}, 4096, v{vH}")
    e(f"v_cndmask_b32 v{vFl}, v{vFl}, v12, vcc")
    e(f"s_mul_i32 s{sSeg1}, s{sW}, 24576"); e(f"s_add_u32 s{sSeg1}, s{sSeg1}, 65536")
    e(f"s_mov_b32 s{sC}, 0xbfb8aa3b")
    e(f"v_mov_b32 v{vOne}, 1")
    e("v_mov_b32 v15, 0")
    e(f"s_or_b32 s{t0}, s{sI}, s{sW}"); e(f"v_or_b32 v250, s{t0}, v0"); e("v_lshlrev_b32 v250, 8, v250")
    def reads(Pn):
        p,s,h=Pn//14,Pn//2,Pn%2
        CH=(p==1 or OPT['chainA']) and not (OPT['split0'] and s==0)
        o=[]
        for ks in ((0,1) if CH else (h,)):
            if p==0 and (h==0 or not CH):
                if s==3: o.append(I(f"v_add_u32 v{vXR[ks]}, 61440, v{vXR[ks]}"))
                for t in range(5): o.append(I(f"ds_read_b128 {XF((2*s+ks)*5+t)}, v{vXR[ks]} offset:{(s%4 if s!=3 else 0)*20480+t*2048}"))
                if s==3: o.append(I(f"v_subrev_u32 v{vXR[ks]}, 61440, v{vXR[ks]}"))
        tr=[]
        for j in range(4):
            if CH: m,ks,tl=j>>1,j&1,h
            else: m,ks,tl=j>>1,h,j&1
            for a in range(2):
                tr.append(I(f"ds_read_b64_tr_b16 {vr(AF(h,j)+2*a,2)}, v{vWR[tl]} offset:{(s%4)*16384+(2*m+ks)*1024+a*512}"))
        return tr[:4]+o+tr[4:]
    def epi(p,t):
        T=[232+k for k in range(8)]; O=240+4*(t%2) if (p or not OPT['dst']) else ACC(0,0,t)
        G=[ACC(p,k>>2,t)+(k&3) for k in range(8)]; U=[ACC(p,2+(k>>2),t)+(k&3) for k in range(8)]
        o=[]
        st=I(f"buffer_store_dwordx4 {vr(O,4)}, v{vH if t<4 else vH4}, {srd(WS)}, s{sHst} offen offset:{(t%4)*1024} {['sc1','sc0 sc1','sc1 nt','sc0 sc1 nt',''][OPT['stf']]}",f"st{p}")
        if p==1:
            for k in range(0,8,2): o.append(I(f"v_pk_mul_f32 {vr(T[k],2)}, {vr(G[k],2)}, s[48:49]"))
            for k in range(8):
                o.append(I(f"v_exp_f32 v{T[k]}, v{T[k]}"))
                if k%2==0: o.append(I(f"v_pk_mul_f32 {vr(U[k],2)}, {vr(G[k],2)}, {vr(U[k],2)}"))
            for k in range(0,8,2): o.append(I(f"v_pk_add_f32 {vr(T[k],2)}, {vr(T[k],2)}, s[50:51]"))
            for k in range(8):
                o.append(I(f"v_rcp_f32 v{G[k]}, v{T[k]}"))
                if k>=3 and k%2==1:
                    o.append(I(f"v_pk_mul_f32 {vr(U[k-3],2)}, {vr(G[k-3],2)}, {vr(U[k-3],2)}"))
                    if k>=5: o.append(I(f"v_cvt_pk_bf16_f32 v{O+(k-5)//2}, v{U[k-5]}, v{U[k-4]}"))
            o.append(I(f"v_cvt_pk_bf16_f32 v{O+2}, v{U[4]}, v{U[5]}"))
            o.append(I(f"v_pk_mul_f32 {vr(U[6],2)}, {vr(G[6],2)}, {vr(U[6],2)}"))
            o.append(I(f"v_cvt_pk_bf16_f32 v{O+3}, v{U[6]}, v{U[7]}"))
            return o+[st]
        for k in range(8): o.append(I(f"v_mul_f32 v{T[k]}, s{sC}, v{G[k]}"))
        for k in range(8):
            o.append(I(f"v_exp_f32 v{T[k]}, v{T[k]}")); o.append(I(f"v_mul_f32 v{U[k]}, v{G[k]}, v{U[k]}"))
        for k in range(8): o.append(I(f"v_add_f32 v{T[k]}, 1.0, v{T[k]}"))
        for k in range(8):
            o.append(I(f"v_rcp_f32 v{G[k]}, v{T[k]}"))
            if k>=1: o.append(I(f"v_mul_f32 v{U[k-1]}, v{G[k-1]}, v{U[k-1]}"))
            if k>=3 and k%2==1: o.append(I(f"v_cvt_pk_bf16_f32 v{O+(k-3)//2}, v{U[k-3]}, v{U[k-2]}"))
        o.append(I(f"v_mul_f32 v{U[7]}, v{G[7]}, v{U[7]}"))
        o.append(I(f"v_cvt_pk_bf16_f32 v{O+3}, v{U[6]}, v{U[7]}"))
        o.append(I(f"buffer_store_dwordx4 {vr(O,4)}, v{vH if t<4 else vH4}, {srd(WS)}, s{sHst} offen offset:{(t%4)*1024} {['sc1','sc0 sc1','sc1 nt','sc0 sc1 nt',''][OPT['stf']]}",f"st{p}"))
        return o
    D.setup_lane([R1,R2],[sSeg1,sSeg2],sT[:4]); D.setup_io(sF0,sN,sT[:4])
    e(f"s_cmp_ge_u32 s{sF0}, 125"); e(f"s_cselect_b32 s52, {OOB}, 0"); e(f"v_or_b32 v251, s52, v{vH}"); e(f"v_or_b32 v252, s52, v{vH4}")
    e(f"s_mov_b32 s48, s{sC}"); e(f"s_mov_b32 s49, s{sC}"); e("s_mov_b32 s50, 1.0"); e("s_mov_b32 s51, 1.0")
    e(f"s_add_u32 s{t0}, s{sSeg2}, 147456"); e(f"v_add_u32 v249, s{t0}, v{vH}")
    for q in range(4): e(f"ds_write_b128 v249, {vr(176+4*q,4)} offset:{q*1024}")
    unpark=[I(f"ds_read_b128 {vr(176+4*q,4)}, v249 offset:{q*1024}") for q in range(4)]
    P.extend(stamp(52))
    P.extend(flat(pro[OPT['early']:]))
    P.extend(stamp(53))
    P.append(WAIT(vm=["x0","w0a"]+([] if OPT['split0'] else ["w0"]),lgkm=0)); e("s_barrier")
    P.extend(stamp(1))
    P.extend(reads(0))
    first=[]
    if OPT['npre']==1:
        first=xdma(1)+wdma(1); P.extend(flat(first[:OPT['pre1']])); first=first[OPT['pre1']:]
    P.append(WAIT(lgkm=0))
    eA=[epi(0,t) for t in range(5)]
    held=[(x[-2],x.pop()) for x in eA] if OPT['dst'] else []
    pool=Pool(flat(eA))
    dq=[]
    for s in range(max(2,OPT['npre']),14):
        if s<=6: dq.append((max(0,2*(s-4)+1),xdma(s)))
        dq.append((max(0,2*(s-4)+1),wdma(s)))
        if s==8: dq.append((0,[[I(f"buffer_load_dword v14, v15, {srd(DBG)}, 0 offen sc1","clr")]]))
    w2q=[(max(OPT['w2p0'],LOC[b][1]),D.w2dma(b)) for b in range(10)]
    cur=first
    for Pn in range(28):
        p,s,h=Pn//14,Pn//2,Pn%2
        CH=(p==1 or OPT['chainA']) and not (OPT['split0'] and s==0)
        mf=[]
        for jq in range(2 if CH else 4):
            for t in range(5):
                for ks in ((0,1) if CH else (h,)):
                    q = (2*jq+h) if CH else jq
                    j = (2*jq+ks) if CH else jq
                    d=vr(ACC(p,q,t),4)
                    mf.append(mfma(d,vr(AF(h,j),4),XF((2*(s%7)+ks)*5+t),"0" if (s%7==0 and ks==0) else d))
        f=[]
        if Pn<27:
            rd=reads(Pn+1)
            if Pn==0 and OPT['split0']:
                xs=[x for x in rd if "b128" in x.op]; tr=[x for x in rd if "b128" not in x.op]
                f+=spread(xs,0,5)+[(7.9,WAIT(vm=["w0"])),(7.95,I("s_barrier"))]+spread(tr,8,16)
            else: f+=spread(rd,0,min(12,len(rd)))
        items=[]
        while len(items)<(OPT['rateA'] if Pn<OPT['nA'] else OPT['rate']):
            if not cur:
                if dq and dq[0][0]<=Pn: cur=dq.pop(0)[1]
                elif w2q and w2q[0][0]<=Pn: cur=w2q.pop(0)[1]
                else: break
            items.append(cur.pop(0))
        n=len(items)
        for k,it in enumerate(items):
            pos=1+k*(19 if Pn else 14)/max(n,5)
            for x in it:
                f.append((pos-1 if x.cls=="salu" else (pos+1 if x.cls=="valu" else pos),x))
        if Pn==16: f+=spread(unpark,8,12)
        if Pn==OPT['gop']: f.append((19,I(f"buffer_store_dword v{vOne}, v250, {srd(DBG)}, 0 offen offset:4 sc1","go")))
        if Pn>=OPT['dst'] and not dq and (w2only:=all(x.tag[0]=="b" for it in cur for x in it if x.cls=="vm")):
            for k in range(2):
                if held and all(y is not held[0][0] for y in pool.q[:400]) and not any(y.wr&held[0][1].rd for y in pool.q): f.append((18-8*(1-k)+1,held.pop(0)[1]))
        tl=[]
        if h==0: tl=[WAIT(vm=[f"w{s+1}",f"x{s+1}"],lgkm=0),I("s_barrier")]
        elif Pn<27: tl=[WAIT(lgkm=0)]
        n0=len(P)
        if OPT['p2']:
            P.extend(pack2(mf,f,pool if p==1 else None,(OPT['capc']-2 if Pn<OPT['cp'] and p==1 else 0),lo=(2 if Pn==14 else 0),tail=tl,dsend=16))
        else:
            P.extend(pack(mf,f,pool if p==1 else None,(OPT['capc'] if Pn<OPT['cp'] else OPT['cap']),lo=(2 if Pn==14 else 0))); P.extend(tl)
        if OPT['est']: print("ffn period",Pn,estimate(P[n0:]),"pool",len(pool.q))
        if Pn==13: P.extend(stamp(2))
        if h==0: P.extend(stamp(32+s))
    assert not dq
    print("left: epiA ops",len(pool.q),"w2 items",len(w2q))
    P.extend(stamp(3))
    P.extend(pool.q)
    P.extend([x[1] for x in held])
    P.extend(flat(cur))
    for _,g_ in w2q: P.extend(flat(g_))
    e(f"s_add_u32 s{sHst}, s{sHst}, {2*NT*1024}")
    S=[WAIT(vm=["b0"])]+D.treads(0); WQ=[]
    for j in range(8):
        S+=[WAIT(vm=[f"b{j+1}"])]+D.treads(j+1)+[WAIT(lgkm=8)] if j<7 else [WAIT(lgkm=0)]
        if OPT['pA']==5+j: S.append(D.poll("pollA"))
        if j>=8-OPT['weave']: WQ+=[(0,it) for it in D.w2dma(10+j)]
        else: S+=[x for x in flat(D.w2dma(10+j)) if not (x.cls=="vm" and j>=8-OPT['skipS'])]
        if j+1==OPT['nin']: n_in=len(S)
        if j+1==OPT['sBs']+OPT['nin']:
            S+=[WAIT(vm=["st1"]),I(f"buffer_atomic_add v{vOne}, v{vFl}, {srd(WS)}, 0 offen offset:512","sigB")]+stamp(10)
    E=[]
    for t in range(5):
        E+=epi(1,t)+stamp(46+t)
        if t==OPT['sAt']: E.append("sigA")
    k0=0
    for k,x in enumerate(E):
        if x=="sigA":
            P.append(WAIT(vm=["st0","clr"])); check_or_spin(15,0,1,DBG,14)
            e(f"buffer_atomic_add v{vOne}, v{vFl}, {srd(WS)}, 0 offen","sigA")
        else: P.append(x)
        k1=max(k0,n_in*(k+1)//len(E))
        while 0<k1<len(S) and S[k1-1].cls=="ds" and S[k1].cls=="ds": k1+=1
        P.extend(S[k0:k1]); k0=k1
    P.extend(stamp(4))
    P.extend(S[k0:])
    D.main(WQ,OPT['lead'],OPT['pah'])

HROW=[118784,49152,118784,65536,81920,139264,49152,0,118784,65536,16384,32768,98304,81920,139264,49152,0,118784]
hR=[[1,2,4,5],[64,65,66,67],[68,69,70,71]]; hsN,hsF0,hsQ=58,59,57
HD=Down(NTT=3,vt=(240,241,242),vW2=3,vWo=6,vH=231,vHt=(231,231),sLast=47,vPoll=12,vPoll2=14,vPA=72,vPO=73,vSA=74,vO=75,vRW=76,vRR=77,vS=80,vRT=96,
        sW2o=[None,40,41,42],sWr2=43,sNW2=47,sNH=48,sD=49,sWr3=50,sNWo=51,sNHo=52,sHld=53,sHO=54,sRow=55,
        m0=lambda b:(hsQ,HROW[b]),rd=lambda b:(hR[HROW[b]>>16],HROW[b]&0xffff),red=(0,4096,16384),
        ACC=lambda q,t:16+(q*3+t)*4,AF=lambda buf,q:160+16*buf+4*q,aSt=128,aH=0,nAS=10,NSL=10,vHS=0)
def helper_setup(regs):
    t=sT[:4]; t=[66,67,70,71]
    mksrd(WO,44,401408); mksrd(WD,52,1605632); mksrd(OUT,56,1835008)
    e(f"s_mul_i32 s{hsF0}, s{sXCD}, 3"); e(f"s_add_u32 s{hsF0}, s{hsF0}, 104"); e(f"s_add_u32 s61, s{sXCD}, 26"); e(f"s_lshl_b32 s{hsQ}, s{sW}, 12")
    keep=(HD.vW2,HD.vWo); HD.vW2,HD.vWo=regs[0],regs[1]
    HD.setup_w(hsF0,61,hsN,t)
    e(f"s_cmp_gt_u32 s{hsN}, 6"); e(f"s_cselect_b32 s66, {OOB}, 0"); e(f"v_or_b32 v{regs[0]}, s66, v{regs[0]}"); e(f"v_or_b32 v{regs[1]}, s66, v{regs[1]}")
    HD.vW2,HD.vWo=keep
    HD.setup_lane([regs[2:6]],[hsQ],t)
    e("v_lshlrev_b32 v231, 4, v0")
    HD.setup_io(hsF0,hsN,t)
    for j in range(8): e(f"v_accvgpr_write_b32 a{248+j}, v{72+j}")
hwin=[0]
def hstage(b):
    o=[]; w=HROW[b]>>16
    if w!=hwin[0]: o+=[I(f"v_add_u32 v{r}, {((w-hwin[0])<<16)&0xffffffff}, v{r}") for r in hR[0]]; hwin[0]=w
    return o+HD.treads(b,lambda b_:(hR[0],HROW[b_]&0xffff))

def attn():
    sAT,sHG=72,73
    sXb,sWb=74,75
    sWo={(0,0):76,(0,1):77,(1,0):78,(1,1):79,(2,0):80,(2,1):81}
    sK,sD0,sD1,sO,sC=82,83,84,85,86
    mE,mM0,mM1,mZ=88,90,100,68
    t0,t1=66,67; t2_,t3=70,71
    vX=[1,2,3,4,5]; vW=6; vXR=(7,8); vR0=(9,10); vR1=(11,12); vRq=(13,14); vPad=15
    vA=(224,225)
    TBL=159744; XB=98304
    Q=lambda u,tl: 16+(u*2+tl)*4
    K=lambda t,tl: 80+(t*2+tl)*4
    V=lambda d,t: 152+d*36+t*4
    XA=lambda buf,t: buf*36+4*t
    WF=lambda buf,m,tl: 72+buf*24+(2*m+tl)*4
    e("L_attn:")
    e(f"s_lshr_b32 s{sAT}, s{sXCD}, 2"); e(f"s_lshl_b32 s{sAT}, s{sAT}, 3"); e(f"s_add_u32 s{sAT}, s{sAT}, s{sJ}"); e(f"s_sub_u32 s{sAT}, s{sAT}, 1"); e(f"s_and_b32 s{sHG}, s{sXCD}, 3")
    e("v_lshrrev_b32 v230, 3, v0"); e("v_and_b32 v231, 7, v0")
    e(f"s_and_b32 s{t0}, s{sW}, 1"); e(f"s_lshl_b32 s{t1}, s{t0}, 2")
    e("v_lshrrev_b32 v232, 1, v230"); e(f"v_or_b32 v232, s{t1}, v232"); e("v_xor_b32 v232, v232, v231"); e("v_lshlrev_b32 v232, 4, v232")
    e(f"s_lshl_b32 s{t2_}, s{sAT}, 7"); e(f"s_lshl_b32 s{t3}, s{sW}, 3"); e(f"s_add_u32 s{t2_}, s{t2_}, s{t3}")
    e(f"v_add_u32 v{vX[0]}, s{t2_}, v230"); e(f"v_mul_u32_u24 v{vX[0]}, 896, v{vX[0]}"); e(f"v_add_u32 v{vX[0]}, v{vX[0]}, v232")
    for j in range(1,5): e(f"v_add_u32 v{vX[j]}, {32*j*896}, v{vX[0]}")
    e(f"s_cmp_lt_u32 s{t2_}, 16"); e(f"s_cselect_b32 s{t0}, {OOB}, 0"); e(f"v_or_b32 v{vX[0]}, s{t0}, v{vX[0]}")
    e(f"s_cmp_ge_u32 s{sW}, 2"); e(f"s_cselect_b32 s{t0}, {OOB}, 0"); e(f"v_or_b32 v{vX[4]}, s{t0}, v{vX[4]}")
    e("v_lshrrev_b32 v230, 4, v0"); e("v_and_b32 v231, 15, v0")
    e(f"s_and_b32 s{t0}, s{sW}, 2"); e(f"s_lshl_b32 s{t0}, s{t0}, 1"); e(f"v_or_b32 v232, s{t0}, v230"); e("v_lshlrev_b32 v232, 1, v232"); e("v_xor_b32 v232, v232, v231")
    e(f"s_lshl_b32 s{t0}, s{sW}, 2"); e(f"v_add_u32 v{vW}, s{t0}, v230"); e(f"v_mul_u32_u24 v{vW}, 2688, v{vW}")
    e(f"v_lshl_add_u32 v{vW}, v232, 4, v{vW}"); e(f"s_mul_i32 s{t0}, s{sHG}, 224"); e(f"v_add_u32 v{vW}, s{t0}, v{vW}")
    e(f"v_mov_b32 v233, {OOB}"); e("v_cmp_lt_u32 vcc, 13, v232"); e(f"v_cndmask_b32 v{vW}, v{vW}, v233, vcc")
    sWr,sD,sNW,sKx,sKt=92,93,99,87,3
    e(f"s_lshl_b32 s{t0}, s{sHG}, 1"); e(f"s_add_u32 s{t0}, s{t0}, s{sAT}")
    if OPT['arot']==7:
        e(f"s_mul_i32 s{t1}, s{t0}, 9363"); e(f"s_lshr_b32 s{t1}, s{t1}, 16"); e(f"s_mul_i32 s{t1}, s{t1}, 7"); e(f"s_sub_u32 s{t0}, s{t0}, s{t1}")
    elif OPT['arot']==2: e(f"s_and_b32 s{t0}, s{t0}, 1"); e(f"s_mul_i32 s{t0}, s{t0}, 3")
    elif OPT['arot']==4: e(f"s_and_b32 s{t0}, s{sAT}, 3"); e(f"s_lshl_b32 s{t0}, s{t0}, 1")
    else: e(f"s_mov_b32 s{t0}, 0")
    e(f"s_sub_u32 s{sWr}, 6, s{t0}"); e(f"s_lshl_b32 s{sKx}, s{t0}, 7"); e(f"s_lshl_b32 s{sKt}, s{t0}, 9")
    e(f"s_mul_i32 s{t1}, s{t0}, {64*2688}"); e(f"v_add_u32 v{vW}, s{t1}, v{vW}"); e(f"s_mov_b32 s{sNW}, {-13*32*2688}")
    e(f"s_lshl_b32 s{sXb}, s{sW}, 10"); e(f"s_add_u32 s{sXb}, s{sXb}, {XB}")
    e(f"s_mul_i32 s{sWb}, s{sW}, 6144")
    for (m,j),r in sWo.items():
        imm=((2*m+j)%4)*1024
        e(f"s_mov_b32 s{r}, {4096+m*896+16*j*2688-imm}")
    e(f"s_lshl_b32 s{t0}, s{sW}, 6"); e(f"v_add_u32 v234, s{t0}, v0"); e("v_lshlrev_b32 v235, 2, v234")
    e("s_waitcnt lgkmcnt(0)")
    mksrd(GW,54,896); mksrd(X,40,1835008,14336); mksrd(WA,42,1204224,4096)
    P.extend(stamp(0))
    if OPT['ap1']:
        sV=46
        e(f"s_lshl_b32 s{sV}, s{sAT}, 2"); e(f"s_add_u32 s{sV}, s{sV}, s{sHG}"); e(f"s_lshl_b32 s{sV}, s{sV}, 2"); e(f"s_add_u32 s{sV}, s{sV}, s{sW}")
        e("v_min_u32 v240, 47, v0"); e("v_mul_u32_u24 v241, 21846, v240"); e("v_lshrrev_b32 v241, 16, v241"); e("v_mul_u32_u24 v242, 3, v241"); e("v_sub_u32 v242, v240, v242")
        e(f"s_lshl_b32 s{t0}, s{sV}, 4"); e(f"v_add_u32 v243, s{t0}, v241"); e("v_mul_u32_u24 v243, 896, v243"); e("v_lshl_add_u32 v243, v242, 8, v243"); e("v_add_u32 v243, 128, v243")
        e(f"s_and_b32 s{t0}, s{sV}, 63"); e("v_min_u32 v241, 13, v241"); e("v_lshlrev_b32 v242, 7, v242"); e(f"v_add_u32 v242, s{t0}, v242"); e("v_add_u32 v242, 64, v242")
        e("v_mul_u32_u24 v242, 3584, v242"); e("v_lshl_add_u32 v242, v241, 8, v242")
        e(f"s_cmp_ge_u32 s{sV}, 192"); e(f"s_cselect_b32 s{WU}, s50, s48"); e(f"s_cselect_b32 s{WU+1}, s51, s49")
        e(f"s_cmp_lt_u32 s{sV}, 128"); e(f"s_cselect_b32 s{WU}, s40, s{WU}"); e(f"s_cselect_b32 s{WU+1}, s41, s{WU+1}"); e(f"s_cselect_b64 vcc, -1, 0")
        e(f"s_mov_b32 s{WU+2}, 1605632"); e(f"s_cselect_b32 s{WU+2}, 1835008, s{WU+2}"); e(f"s_mov_b32 s{WU+3}, 0x20000")
        e("v_cndmask_b32 v242, v242, v243, vcc")
        e(f"buffer_load_dword a140, v242, {srd(WU)}, 0 offen","pf")
    e(f"buffer_load_dword v236, v235, {srd(GW)}, 0 offen","gw")
    def xdma(c):
        o=[I(f"s_mov_b32 s{sK}, s{sKx}"),I(f"s_add_u32 s{sKx}, s{sKx}, 128"),ATOM(f"s_cmp_eq_u32 s{sWr}, {c}",f"s_cselect_b32 s{sKx}, 0, s{sKx}")]
        for j in range(5):
            o.append(I(f"s_add_u32 m0, s{sXb}, {(c%3)*20480+j*4096}"))
            o.append(dma(vX[j],X,f"s{sK}",0,f"x{c}"))
        return o
    def wdma(k):
        o=[]
        for m in range(3):
            if m!=1: o.append(I(f"s_add_u32 m0, s{sWb}, {(k%4)*24576+(4096 if m==2 else 0)}"))
            for j in range(2): o.append(dma(vW,WA,f"s{sWo[(m,j)]}",((2*m+j)%4)*1024,f"w{k}"))
        if k%2==1:
            o[-1:-1]=[ATOM(f"s_cmp_eq_u32 s{sWr}, {k//2}",f"s_cselect_b32 s{sD}, s{sNW}, {32*2688}")]
            o.append(I(f"v_add_u32 v{vW}, s{sD}, v{vW}"))
        else: o.append(I(f"v_add_u32 v{vW}, {32*2688}, v{vW}"))
        return o
    pro=xdma(0)+wdma(0)+wdma(1)
    cutp=[k for k,x in enumerate(pro) if x.cls=="vm"][OPT['aearly']-1]+1 if OPT['aearly'] else 0
    P.extend(pro[:cutp])
    aq=[(0,xdma(1)),(0,wdma(2)),(0,wdma(3)),(0,xdma(2))]
    for k in range(4,14):
        aq.append((k-4+(1 if k-4<OPT['amid'] else 0),wdma(k)))
        if k%2==1 and (k+1)//2<=6: aq.append((2*((k+1)//2-3)+1+(1 if 2*((k+1)//2-3)+1<OPT['amid'] else 0),xdma((k+1)//2)))
    acur=[]
    mksrd(WS,60,WSN); mksrd(DBG,58,256)
    HELP=OPT['ntt']==4
    APW=[94,95,96,97] if not (OPT['stamp'] or OPT['probe']!=-2) else [12,13,14,15]
    if OPT['apW']>=0:
        if APW[0]==12: APW=[4+60+0,0,0,0]
    APW=[48,49,50,51]
    if HELP: e(f"s_and_b32 s{t0}, s{sXCD}, 3"); e(f"s_cmp_eq_u32 s{t0}, 3"); e(f"s_cselect_b32 s{t0}, 1, 0"); e(f"s_add_u32 s{hsN}, s{sJ}, s{t0}")
    if HELP:
        helper_setup([232,233,234+9,245,246,247])
        for j,r in enumerate([232,243,245,246,247,233]): e(f"v_accvgpr_write_b32 a{122+j}, v{r}")
    else: mksrd(WO,44,401408); mksrd(WD,52,1605632)
    e(f"s_sub_u32 s{t0}, s{sJ}, 1"); e(f"s_lshl_b32 s{t0}, s{t0}, 2"); e(f"s_add_u32 s{t0}, s{t0}, s{sW}"); e(f"s_lshl_b32 s{t0}, s{t0}, 6")
    e(f"v_add_u32 v227, s{t0}, v0"); e("v_lshlrev_b32 v226, 7, v227"); e(f"s_mov_b32 s36, {2048*128}")
    if OPT['apW']>=0:
        e(f"s_lshl_b32 s{t0}, s{sAT}, 2"); e(f"s_add_u32 s{t0}, s{t0}, s{sHG}"); e(f"s_lshl_b32 s{t0}, s{t0}, 2"); e(f"s_add_u32 s{t0}, s{t0}, s{sW}")
        e(f"s_cmp_ge_u32 s{t0}, 128"); e(f"s_cselect_b32 s{WU}, s{APW[2]}, s{APW[0]}"); e(f"s_cselect_b32 s{WU+1}, s{APW[3]}, s{APW[1]}"); e(f"s_mov_b32 s{WU+2}, 1605632"); e(f"s_mov_b32 s{WU+3}, 0x20000")
        e(f"s_and_b32 s{t0}, s{t0}, 127"); e(f"s_mul_i32 s{t0}, s{t0}, 49"); e("v_min_u32 v238, 48, v0"); e(f"v_add_u32 v238, s{t0}, v238"); e("v_lshlrev_b32 v238, 8, v238"); e("v_add_u32 v238, 128, v238")
        e("v_accvgpr_write_b32 a129, v238")
    if OPT['apA']>=0 or OPT['apB']>=0:
        e("v_mul_u32_u24 v228, 9363, v227"); e("v_lshrrev_b32 v228, 22, v228"); e("v_mul_u32_u24 v228, 448, v228"); e("v_add_u32 v228, v228, v227"); e("v_lshlrev_b32 v228, 7, v228")
        e("v_cmp_lt_u32 vcc, 1791, v227"); e(f"v_mov_b32 v229, {OOB}"); e("v_cndmask_b32 v227, v228, v229, vcc"); e(f"v_add_u32 v239, {448*128}, v227"); e("v_accvgpr_write_b32 a128, v239")
        for j in range(1,4): e(f"s_mov_b32 s{36+j}, {3584*128*j}")
    e("v_lshrrev_b32 v230, 4, v0"); e("v_and_b32 v231, 15, v0")
    e("v_lshrrev_b32 v232, 1, v231"); e("v_xor_b32 v232, v232, v230"); e("v_lshlrev_b32 v232, 4, v232")
    e("v_lshl_add_u32 v232, v231, 7, v232"); e(f"v_add_u32 v{vXR[0]}, {XB}, v232"); e(f"v_xor_b32 v{vXR[1]}, 64, v{vXR[0]}")
    e("v_bfe_u32 v232, v0, 2, 2"); e("v_and_b32 v233, 3, v0")
    e("v_and_b32 v237, 1, v230"); e("v_lshl_add_u32 v238, v237, 2, v232"); e("v_lshlrev_b32 v238, 2, v238")
    e("v_mul_u32_u24 v237, 12288, v237"); e("v_lshrrev_b32 v239, 1, v230"); e("v_lshl_add_u32 v237, v239, 10, v237"); e("v_lshl_add_u32 v237, v232, 8, v237")
    e(f"s_mul_i32 s{t0}, s{sW}, 7")
    e(f"v_add_u32 v239, s{t0}, v233")
    e("v_xor_b32 v240, v239, v238"); e(f"v_lshl_add_u32 v{vR0[0]}, v240, 3, v237")
    e("v_add_u32 v239, 4, v239")
    e("v_and_b32 v240, 3, v239"); e("v_or_b32 v240, 28, v240"); e("v_cmp_eq_u32 vcc, 3, v233"); e("v_cndmask_b32 v239, v239, v240, vcc")
    e("v_xor_b32 v240, v239, v238"); e(f"v_lshl_add_u32 v{vR1[0]}, v240, 3, v237")
    e(f"v_cndmask_b32 v{vPad}, 0, 1, vcc")
    e(f"v_add_u32 v{vR0[1]}, 49152, v{vR0[0]}"); e(f"v_add_u32 v{vR1[1]}, 49152, v{vR1[0]}")
    e("v_lshl_add_u32 v240, v230, 3, v232"); e("v_lshlrev_b32 v240, 3, v240"); e(f"v_add_u32 v240, {TBL}, v240")
    e(f"v_cndmask_b32 v{vRq[0]}, v{vR1[0]}, v240, vcc"); e(f"v_cndmask_b32 v{vRq[1]}, v{vR1[1]}, v240, vcc")
    P.append(WAIT(vm=["gw"]))
    e("v_and_b32 v244, 0xffff, v236"); e("v_mov_b32 v245, 0"); e("v_lshrrev_b32 v246, 16, v236"); e("v_mov_b32 v247, 0")
    e("v_lshlrev_b32 v234, 4, v234"); e(f"v_add_u32 v234, {TBL}, v234")
    e("ds_write_b128 v234, v[244:247]")
    def reads(k):
        sl=k%4; h=sl//2; buf=k%2
        pre=[]; tr=[]
        for a in range(2):
            imm=(sl%2)*24576+a*6144
            pre.append(I(f"s_add_u32 s{(sD0,sD1)[a]}, s{sKt}, {(256*(k%2)+32*a-imm)&0xffffffff}"))
            pre.append(I(f"v_mad_i32_i24 v{vA[a]}, v{vPad}, s{(sD0,sD1)[a]}, v{vRq[h]}"))
        for m in range(3):
            for tl in range(2):
                for a in range(2):
                    ad = vR0[h] if tl==0 else (vA[a] if m==0 else vR1[h])
                    tr.append(I(f"ds_read_b64_tr_b16 {ar(WF(buf,m,tl)+2*a,2)}, v{ad} offset:{(sl%2)*24576+a*6144+m*2048}"))
        xs=[I(f"ds_read_b128 {ar(XA(buf,t),4)}, v{vXR[k%2]} offset:{((k//2)%3)*20480+t*2048}") for t in range(9)]
        if k%2==1: pre+=[I(f"s_add_u32 s{sKt}, s{sKt}, 512"),ATOM(f"s_cmp_eq_u32 s{sWr}, {k//2}",f"s_cselect_b32 s{sKt}, 0, s{sKt}")]
        return pre+tr[:2]+xs+tr[2:]
    P.extend(pro[cutp:])
    P.append(WAIT(vm=["x0","w0"],lgkm=0)); e("s_barrier")
    P.extend(stamp(1))
    P.extend(reads(0))
    if OPT['amid']: P.append(WAIT(lgkm=0))
    else: P.append(WAIT(vm=["w1"],lgkm=0)); e("s_barrier")
    cA0,cB0,cA1,cB1,vNeg,vH,vH4,vSt,vFl=226,227,228,229,230,231,250,251,252
    import struct
    f2u=lambda x: struct.unpack("<I",struct.pack("<f",x))[0]
    n0=len(P)
    e("v_lshrrev_b32 v232, 4, v0"); e("v_and_b32 v233, 15, v0")
    e("v_and_b32 v234, 1, v233"); e(f"v_cmp_eq_u32 s[{mE}:{mE+1}], 0, v234")
    e("v_lshl_add_u32 v235, v232, 2, v234"); e(f"v_cmp_le_u32 s[{mM0}:{mM0+1}], v235, v233")
    e("v_add_u32 v235, 2, v235"); e(f"v_cmp_le_u32 s[{mM1}:{mM1+1}], v235, v233")
    e("v_mov_b32 v236, 0xffff0000"); e("v_mov_b32 v237, 0xffff"); e(f"v_lshlrev_b32 v{vH}, 4, v0"); e(f"v_add_u32 v{vH4}, 4096, v{vH}")
    e(f"v_cndmask_b32 v236, v236, v237, s[{mE}:{mE+1}]")
    e(f"v_cndmask_b32 v{cA0}, 0, v236, s[{mM0}:{mM0+1}]"); e(f"v_xor_b32 v{cB0}, v{cA0}, v236")
    e(f"v_cndmask_b32 v{cA1}, 0, v236, s[{mM1}:{mM1+1}]"); e(f"v_xor_b32 v{cB1}, v{cA1}, v236")
    e(f"v_mov_b32 v{vNeg}, 0xf149f2ca")
    P.append(ATOM(f"s_cmp_eq_u32 s{sAT}, 0",f"s_cselect_b64 s[{mZ}:{mZ+1}], -1, 0"))
    e(f"s_mov_b32 s{sC}, {f2u(28**-0.5*math.log2(math.e)):#x}"); e(f"s_mov_b32 s{sK}, 0x3fb8aa3b")
    e(f"s_lshl_b32 s{t0}, s{sHG}, 2"); e(f"s_add_u32 s{t0}, s{t0}, s{sW}"); e(f"s_add_u32 s{t0}, s{t0}, 56"); e(f"s_mul_i32 s{t0}, s{t0}, {NT}")
    e(f"s_lshl_b32 s{t1}, s{sAT}, 3"); e(f"s_add_u32 s{t0}, s{t0}, s{t1}"); e(f"s_lshl_b32 s{t0}, s{t0}, 10"); e(f"s_add_u32 s{sO}, s{t0}, {H0}")
    e(f"s_mul_i32 s{t0}, s{sHG}, {SSTR}"); e(f"s_lshl_b32 s{t1}, s{sAT}, 9"); e(f"s_add_u32 s{t0}, s{t0}, s{t1}"); e(f"s_add_u32 s{t0}, s{t0}, {S0}")
    P.append(ATOM(f"s_cmp_eq_u32 s{sW}, 0",f"s_cselect_b32 s{t0}, s{t0}, {OOB}"))
    e(f"v_lshlrev_b32 v{vSt}, 2, v0"); e(f"v_add_u32 v{vSt}, s{t0}, v{vSt}")
    e(f"s_lshl_b32 s{t0}, s{sAT}, 2"); e(f"s_add_u32 s{t0}, s{t0}, s{sHG}"); e(f"s_add_u32 s{t0}, s{t0}, 208"); e(f"s_lshl_b32 s{t0}, s{t0}, 7")
    e("v_min_u32 v238, 1, v0"); e("v_lshlrev_b32 v238, 31, v238"); e(f"v_or_b32 v{vFl}, s{t0}, v238")
    apool=Pool(P[n0:]); del P[n0:]
    U=range(8)
    A=lambda u: 232+u; B=lambda u: 240+u; M=lambda u: 170+u; T=lambda u: 178+u; L=lambda u: 206+u
    SP=lambda u: K(u,1); SO=lambda u: Q(u,1); PQ=lambda u: Q(u,0)
    ZC=(224,225)
    def pk(d,a): return I(f"v_cvt_pk_bf16_f32 v{d}, v{a}, v{a+1}")
    def pack4(d,a,b): return [pk(d,a),pk(d+1,a+2),pk(d+2,b),pk(d+3,b+2)]
    def seq(groups,cap=2):
        f=[]; g=0; room=cap
        for mg,ins in groups:
            for x in ins:
                if g<mg: g=mg; room=cap
                if cost(x)>room: g+=1; room=cap
                f.append((g,x)); room-=cost(x)
        return f
    for k in range(14):
        buf=k%2; mf=[]
        c=lambda d: "0" if k==0 else d
        two=lambda n: [(x,tl) for x in range(n) for tl in range(2)] if k==13 else [(x,tl) for tl in range(2) for x in range(n)]
        for u,tl in two(8): d=vr(Q(u,tl),4); mf.append(mfma(d,ar(WF(buf,0,tl),4),ar(XA(buf,u+1),4),c(d)))
        for t,tl in two(9): d=vr(K(t,tl),4); mf.append(mfma(d,ar(WF(buf,1,tl),4),ar(XA(buf,t),4),c(d)))
        for tl in range(2):
            for t in range(9): d=vr(V(tl,t),4); mf.append(mfma(d,ar(XA(buf,t),4),ar(WF(buf,2,tl),4),c(d)))
        f=[]
        if k<OPT['amid']:
            f+=[(25.9,WAIT(vm=[f"w{k+1}",f"x{(k+1)//2}"])),(25.95,I("s_barrier"))]+spread(reads(k+1),26,47)
        elif k<13: f+=spread(reads(k+1),0,36)
        dm=[]; nd=0
        while nd<OPT['arate']:
            if not acur:
                if aq and aq[0][0]<=k: acur=list(aq.pop(0)[1])
                else: break
            x=acur.pop(0); dm.append(x); nd+=(x.cls=="vm")
            while acur and acur[0].cls=="valu": dm.append(acur.pop(0))
        if k==8:
            dm.append(I("v_mov_b32 v249, 0")); dm.append(I(f"buffer_load_dword v248, v249, {srd(DBG)}, 0 offen sc1","clr"))
        if OPT['apf'] and OPT['apfk']<=k<OPT['apfk']+3:
            kk=k-OPT['apfk']
            if kk==0: dm+=[I(f"buffer_load_dword a{120+j}, v226, {srd(WO)}, {['0','s36'][j]} offen","pf") for j in range(2)]
        if k==OPT['apW']: dm+=[I("v_accvgpr_read_b32 v238, a129"),I(f"buffer_load_dword a138, v238, {srd(WU)}, 0 offen","pf")]
        for base,k0,av in ((130,OPT['apA'],227),(134,OPT['apB'],239)):
            if k0>=0 and k0<=k<k0+2:
                if av==239 and k==k0: dm.append(I("v_accvgpr_read_b32 v239, a128"))
                dm+=[I(f"buffer_load_dword a{base+2*(k-k0)+j}, v{av}, {srd(WD)}, {['0','s37','s38','s39'][2*(k-k0)+j]} offen","pf") for j in range(2)]
        if HELP:
            if k==8:
                assert all(x.tag[0]!="x" for x in dm+acur+flat([g_ for _,g_ in aq]) if x.cls=="vm")
                f+=spread([I(f"v_accvgpr_read_b32 v{r}, a{122+j}") for j,r in enumerate([HD.vW2]+hR[0])],44,51)
            for b in {9:[0],10:[1],11:[2,3,4],12:[5,6,7],13:list(range(8,8+OPT['hp13']))}.get(k,[]):
                assert not acur
                dm+=flat(HD.w2dma(b))
            sb={10:[0],11:[1],12:[2,3]}.get(k,[])
            if sb: f+=spread([WAIT(vm=[f"b{sb[-1]}"])]+flat([hstage(b) for b in sb]),36.5,50)
        pos=0; nd=0
        for x in dm:
            if x.cls=="vm": nd+=1
            pos=max(pos+0.001,4.3*nd-(2 if x.cls=="vm" else (1 if x.cls=="valu" else -1))); f.append((pos,x))
        if k==13:
            assert not apool.q and not aq and not acur
            for u in U:
                mf.append(mfma(vr(SP(u),4),vr(K(u,0),4),vr(Q(u,0),4),"0")); mf.append(mfma(vr(SO(u),4),vr(K(u+1,0),4),vr(Q(u,0),4),"0"))
            G=[(2*u+5,pack4(Q(u,0),Q(u,0),Q(u,1))) for u in U]
            zc=[]
            for h in range(2):
                q=[Q(4*h+x,1) for x in range(4)]
                zc.append([I(f"v_permlane16_swap_b32 v{q[2]}, v{q[3]}"),I(f"v_permlane16_swap_b32 v{q[0]}, v{q[1]}"),I(f"v_permlane32_swap_b32 v{q[1]}, v{q[3]}"),
                           I(f"v_mul_f32 v{ZC[h]}, s{sK}, v{q[3]}"),I(f"v_min_f32 v{ZC[h]}, 0x42c80000, v{ZC[h]}"),I(f"v_exp_f32 v{ZC[h]}, v{ZC[h]}"),I(f"v_add_f32 v{7+h}, 1.0, v{ZC[h]}")])
            zi=[x for pr in zip(*zc) for x in pr]
            for t in range(9):
                G.append((16+2*t+5,pack4(K(t,0),K(t,0),K(t,1))))
                if t in (1,3,5): G.append((0,zi[:2] if t==1 else (zi[2:4] if t==3 else zi[4:6])))
            G.append((0,zi[6:8]))
            for d in range(2):
                for t in range(9):
                    G.append((34+9*d+t+4,[pk(V(d,0)+2*t,V(d,t)),pk(V(d,0)+2*t+1,V(d,t)+2)]))
                    if d==0 and t in (2,4,6): G.append((0,zi[8+(t-2):10+(t-2)]))
            f+=seq(G)
        tl=[]
        if k<13: tl=[WAIT(lgkm=0)] if k+1<OPT['amid'] else [WAIT(vm=[f"w{k+2}",f"x{(k+2)//2}"],lgkm=0),I("s_barrier")]
        n0=len(P)
        if OPT['p2']: P.extend(pack2(mf,f,apool if 11<=k<13 else None,tail=tl,dsend=48))
        else: P.extend(pack(mf,f,apool if 11<=k<13 else None)); P.extend(tl)
        if OPT['est']: print("attn period",k,estimate(P[n0:]))
        if k<13: P.extend(stamp(32+k))
    P.extend(stamp(2))
    sE=f"s[{mE}:{mE+1}]"
    n_in0=len(P)
    for u in U:
        e(f"v_cndmask_b32 v{M(u)}, v{SP(u)+1}, v{SP(u)}, {sE}"); e(f"v_cndmask_b32 v{T(u)}, v{SP(u)+3}, v{SP(u)+2}, {sE}")
        e(f"v_cndmask_b32 v{A(u)}, v{SO(u)+1}, v{SO(u)}, {sE}"); e(f"v_cndmask_b32 v{B(u)}, v{SO(u)+3}, v{SO(u)+2}, {sE}")
        if u==0:
            e(f"v_cndmask_b32 v{M(0)}, v{M(0)}, v{vNeg}, s[{mZ}:{mZ+1}]"); e(f"v_cndmask_b32 v{T(0)}, v{T(0)}, v{vNeg}, s[{mZ}:{mZ+1}]")
        e(f"v_cndmask_b32 v{A(u)}, v{M(u)}, v{A(u)}, s[{mM0}:{mM0+1}]"); e(f"v_cndmask_b32 v{B(u)}, v{T(u)}, v{B(u)}, s[{mM1}:{mM1+1}]")
        e(f"v_max_f32 v{M(u)}, v{A(u)}, v{B(u)}")
    def allred(R,op,mid):
        H=(0,4)
        for h in H: e(f"v_permlane32_swap_b32 v{R(h)}, v{R(h+2)}"); e(f"v_permlane32_swap_b32 v{R(h+1)}, v{R(h+3)}")
        for h in H: e(f"{op} v{R(h)}, v{R(h)}, v{R(h+2)}"); e(f"{op} v{R(h+1)}, v{R(h+1)}, v{R(h+3)}")
        for h in H: e(f"v_permlane16_swap_b32 v{R(h)}, v{R(h+1)}")
        for h in H: e(f"{op} v{R(h)}, v{R(h)}, v{R(h+1)}")
        mid(H)
        for h in H: e(f"v_mov_b32 v{R(h+1)}, v{R(h)}")
        for h in H: e(f"v_permlane16_swap_b32 v{R(h)}, v{R(h+1)}")
        for h in H: e(f"v_mov_b32 v{R(h+2)}, v{R(h)}"); e(f"v_mov_b32 v{R(h+3)}, v{R(h+1)}")
        for h in H: e(f"v_permlane32_swap_b32 v{R(h)}, v{R(h+2)}"); e(f"v_permlane32_swap_b32 v{R(h+1)}, v{R(h+3)}")
    def midM(H):
        for h in H: e(f"v_mul_f32 v{M(h)}, s{sC}, v{M(h)}")
    allred(M,"v_max_f32",midM)
    for u in U:
        e(f"v_fma_f32 v{A(u)}, v{A(u)}, s{sC}, -v{M(u)}"); e(f"v_fma_f32 v{B(u)}, v{B(u)}, s{sC}, -v{M(u)}")
    for u in U:
        e(f"v_exp_f32 v{A(u)}, v{A(u)}"); e(f"v_exp_f32 v{B(u)}, v{B(u)}")
        if u: e(f"v_add_f32 v{L(u-1)}, v{A(u-1)}, v{B(u-1)}")
    e(f"v_add_f32 v{L(7)}, v{A(7)}, v{B(7)}")
    def midL(H):
        for h in H: e(f"v_rcp_f32 v{L(h)}, v{L(h)}")
        for h in H: e(f"v_rcp_f32 v{T(h)}, v{7+h//4}")
        for h in H: e(f"v_mul_f32 v{L(h)}, v{L(h)}, v{ZC[h//4]}")
        e(f"buffer_store_dword v{T(0)}, v{vSt}, {srd(WS)}, 0 offen sc1","st"); e(f"buffer_store_dword v{T(4)}, v{vSt}, {srd(WS)}, 0 offen offset:256 sc1","st")
    allred(L,"v_add_f32",midL)
    if HELP and OPT['hin']:
        assert OPT['hp13']==5
        body=P[n_in0:]; del P[n_in0:]
        S2=[I(f"v_accvgpr_read_b32 v{HD.vWo}, a127")]+[I(f"v_accvgpr_read_b32 v{r}, a{248+j}") for j,r in enumerate((9,10,11,12,14,15,186,187))]
        S2+=[WAIT(vm=["b7"])]+flat([hstage(b) for b in range(4,8)])+[WAIT(lgkm=0)]
        nr=len(S2); S2+=flat([flat(HD.w2dma(b)) for b in range(13,13+OPT['hin'])])
        k0=0; n1=len(body)//3
        for k,x in enumerate(body):
            P.append(x)
            k1=max(k0,nr*(k+1)//n1 if k<n1 else nr+(len(S2)-nr)*(k+1-n1)//(len(body)-n1))
            while 0<k1<len(S2) and (S2[k1].cls=="ds" or (S2[k1-1].cls=="valu" and k1<nr-1)): k1+=1
            P.extend(S2[k0:k1]); k0=k1
    def pre(u):
        return [I(f"v_mul_f32 v{A(u)}, v{A(u)}, v{L(u)}"),I(f"v_mul_f32 v{B(u)}, v{B(u)}, v{L(u)}"),
                I(f"v_cvt_pk_bf16_f32 v{A(u)}, v{A(u)}, v{A(u)}"),I(f"v_cvt_pk_bf16_f32 v{B(u)}, v{B(u)}, v{B(u)}"),
                I(f"v_and_b32 v{PQ(u)}, v{cB0}, v{A(u)}"),I(f"v_and_b32 v{PQ(u)+1}, v{cB1}, v{B(u)}"),
                I(f"v_and_b32 v{PQ(u)+2}, v{cA0}, v{A(u)}"),I(f"v_and_b32 v{PQ(u)+3}, v{cA1}, v{B(u)}")]
    def post(u):
        return pack4(PQ(u),SP(u),SO(u))+[I(f"buffer_store_dwordx4 {vr(PQ(u),4)}, v{vH if u<4 else vH4}, {srd(WS)}, s{sO} offen offset:{(u%4)*1024} sc1","st")]
    P.extend(pre(0))
    for u in range(10):
        if u+1<8: a_=pre(u+1)
        else: a_=[]
        P.extend(a_[:2])
        if u<8: P.append(mfma(vr(SP(u),4),vr(V(0,0)+2*u,4),vr(PQ(u),4),"0"))
        P.extend(a_[2:4])
        if u<8: P.append(mfma(vr(SO(u),4),vr(V(1,0)+2*u,4),vr(PQ(u),4),"0"))
        P.extend(a_[4:])
        if u>=2: P.extend(post(u-2))
        elif u==0: e("v_mov_b32 v13, 1")
    P.extend(stamp(3))
    nb=8+OPT['hp13']
    P.append(WAIT(vm=["clr"])); check_or_spin(249,0,1,DBG,248)
    if HELP:
        if OPT['hin']:
            for j,r in enumerate((9,10,11,12,14,15,186,187)): e(f"v_mov_b32 v{72+j}, v{r}")
            e("L_help:")
            P.append(HD.poll("pollA")); nb+=OPT['hin']
        else:
            e("L_help:")
            e(f"v_accvgpr_read_b32 v{HD.vWo}, a127")
            for j in range(8): e(f"v_accvgpr_read_b32 v{72+j}, a{248+j}")
            P.append(HD.poll("pollA"))
            P.append(WAIT(vm=["b7"])); P.extend(flat([hstage(b) for b in range(4,8)]))
        for b in range(nb,nb+OPT['hwin']): P.extend(flat(HD.w2dma(b)))
        nb+=OPT['hwin']
        if hwin[0]: P.extend([I(f"v_add_u32 v{r}, {(-hwin[0]<<16)&0xffffffff}, v{r}") for r in hR[0]])
        for w in (1,2):
            for q in range(4): e(f"v_add_u32 v{hR[w][q]}, {w<<16}, v{hR[0][q]}")
    P.append(WAIT(vm=["st"],lgkm=0))
    e(f"buffer_atomic_add v13, v{vFl}, {srd(WS)}, 0 offen","sig")
    if HELP:
        P.extend(stamp(4))
        e(f"s_cmp_gt_u32 s{hsN}, 6"); e("s_cbranch_scc1 L_hexit")
        HD.main([(0 if b<17 else 24,it) for b in range(nb,18) for it in HD.w2dma(b)],OPT['hlead'],OPT['hpah'],so=50)
        e("L_hexit:")
    P.extend(stamp(4,True))
    if not HELP and (OPT['l2o'] or OPT['l2b']):
        sA,sB,sWv=40,41,42
        e(f"s_mul_i32 s{t0}, s{sXCD}, 23"); e(f"s_lshr_b32 s{t1}, s{sXCD}, 2"); e(f"s_sub_u32 s{t0}, s{t0}, s{t1}"); e(f"s_add_u32 s{t1}, s{t0}, 22")
        for r,d in ((t0,sA),(t1,sB)): e(f"s_mul_i32 s{r}, s{r}, 9363"); e(f"s_lshr_b32 s{d}, s{r}, 16")
        e(f"s_min_u32 s{sB}, s{sB}, 25")
        e(f"s_sub_u32 s{sWv}, s{sJ}, 1"); e(f"s_lshl_b32 s{sWv}, s{sWv}, 2"); e(f"s_add_u32 s{sWv}, s{sWv}, s{sW}")
        e(f"s_sub_u32 s43, s{sB}, s{sA}"); e("s_add_u32 s43, s43, 1"); e("s_mul_i32 s43, s43, 40"); e("s_sub_u32 s43, s43, 1")
        e(f"s_mul_i32 s44, s{sA}, 5")
        def touch(sKap,first,n,step):
            e(f"s_mul_i32 s{t0}, s{sKap}, {NT}"); e(f"s_add_u32 s{t0}, s{t0}, s44"); e(f"s_lshl_b32 s{t0}, s{t0}, 10"); e(f"s_add_u32 s{t0}, s{t0}, {H0}")
            for k in range(n):
                e(f"v_add_u32 v20, {first}, v0") if isinstance(first,str) and k==0 else e(f"v_add_u32 v20, {step if k else first}, v{20 if k else 0}")
                e("v_min_u32 v21, s43, v20"); e("v_lshlrev_b32 v21, 7, v21"); e(f"buffer_load_dword v{24+k}, v21, {srd(WS)}, s{t0} offen sc1","pf")
        if OPT['l2b']:
            LB=lab("NB")
            e(f"s_cmp_ge_u32 s{sWv}, 28"); e(f"s_cbranch_scc1 {LB}")
            e(f"s_lshr_b32 s45, s{sWv}, 1"); e(f"s_and_b32 s46, s{sWv}, 1"); e("s_cmp_ge_u32 s45, 7"); e("s_cselect_b32 s47, 2, 0"); e("s_add_u32 s47, s47, s46")
            e(f"v_min_u32 v22, 4, v0"); e(f"v_add_u32 v22, s{sA}, v22"); e(f"v_min_u32 v22, s{sB}, v22"); e("v_lshlrev_b32 v22, 3, v22"); e("v_add_u32 v22, s47, v22"); e("v_lshlrev_b32 v22, 7, v22")
            spin(22,512,7,WS,23,nap=OPT['nap'])
            e("s_lshl_b32 s45, s45, 2"); e("s_add_u32 s45, s45, s46"); e("s_add_u32 s45, s45, 2")
            touch(45,0,4,64)
            e(LB+":")
        if OPT['l2o']:
            e(f"s_and_b32 s45, s{sWv}, 15"); e("s_lshr_b32 s46, s45, 2")
            e(f"s_lshr_b32 s47, s44, 3"); e(f"s_mul_i32 s48, s{sB}, 5"); e("s_add_u32 s48, s48, 4"); e("s_lshr_b32 s48, s48, 3"); e("s_min_u32 s48, s48, 15")
            e("v_min_u32 v22, 4, v0"); e("v_add_u32 v22, s47, v22"); e("v_min_u32 v22, s48, v22"); e("v_lshlrev_b32 v22, 2, v22"); e("v_add_u32 v22, s46, v22"); e("v_add_u32 v22, 208, v22"); e("v_lshlrev_b32 v22, 7, v22")
            e("s_waitcnt vmcnt(0)"); spin(22,0,4,WS,23,nap=OPT['napo'])
            e("s_add_u32 s45, s45, 56"); e(f"s_lshr_b32 s46, s{sWv}, 4"); e("s_lshl_b32 s46, s46, 6")
            touch(45,"s46",2,128)
    e("s_endpgm")

OPT_ORDER=[(0,1,2),(0,2,1),(2,0,1)]
def spare():
    KN=NAME+"_kernel"
    e("L_spare:")
    if not OPT['cpf']: e(f"s_lshl_b32 s70, s{sW}, 6"); e("v_add_u32 v1, s70, v0"); codepf()
    e("s_waitcnt lgkmcnt(0)")
    mksrd(WS,60,WSN); mksrd(DBG,58,256)
    e(f"s_or_b32 s70, s2, s{sW}"); e("s_cmp_eq_u32 s70, 0"); e("s_cbranch_scc0 L_noclr")
    e("v_lshlrev_b32 v5, 8, v0"); e("v_mov_b32 v6, 0"); e("v_lshlrev_b32 v7, 7, v0"); e("v_mov_b32 v8, 1")
    for k in range(5):
        e(f"buffer_store_dword v6, v7, {srd(WS)}, 0 offen sc1"); e("v_add_u32 v7, 8192, v7")
    e("s_waitcnt vmcnt(0)")
    e(f"buffer_store_dword v8, v5, {srd(DBG)}, 0 offen sc1")
    e("L_noclr:")
    if OPT['tlb']:
        mksrd(WO,44,401408); mksrd(WD,52,1605632); mksrd(OUT,56,1835008)
        e(f"s_cmp_eq_u32 s{sW}, 1"); e("s_cbranch_scc0 L_notlb")
        e(f"v_mul_u32_u24 v20, {NT*1024}, v0"); e("v_lshlrev_b32 v21, 17, v0"); e(f"s_mov_b32 s70, {H0+129*1024}"); e(f"s_mov_b32 s71, {H0+129*1024+64*NT*1024}")
        e(f"buffer_load_dword v22, v20, {srd(WS)}, s70 offen","pf"); e(f"buffer_load_dword v23, v20, {srd(WS)}, s71 offen","pf")
        e(f"s_mov_b32 s70, {S0-128}"); e(f"buffer_load_dword v27, off, {srd(WS)}, s70","pf")
        for k,sr in enumerate((WD,WO,OUT)): e(f"buffer_load_dword v{24+k}, v21, {srd(sr)}, 0 offen","pf")
        e("s_waitcnt vmcnt(0)")
        e("L_notlb:")
    if OPT['gop']>=0:
        mksrd(WO,44,401408); mksrd(WD,52,1605632)
        e("v_mov_b32 v249, 0"); spin(249,4,1,DBG,248,nap=OPT['nap'])
        e(f"s_mul_i32 s66, s{sW}, 10"); e(f"s_add_u32 s66, s66, s{sI}"); e("s_lshl_b32 s66, s66, 6"); e("v_add_u32 v20, s66, v0")
        n=30
        for part in (OPT_ORDER[OPT['sord']] if OPT['ntt']==5 else (0,1)):
            if part<2:
                for k in range(3):
                    e(f"v_add_u32 v21, {2560*k}, v20"); e("v_mul_u32_u24 v22, 9363, v21"); e("v_lshrrev_b32 v22, 22, v22"); e(f"v_add_u32 v22, {part}, v22")
                    e("v_mul_u32_u24 v22, 448, v22"); e("v_add_u32 v22, v22, v21"); e("v_lshlrev_b32 v22, 7, v22")
                    e(f"buffer_load_dword v{n}, v22, {srd(WD)}, 0 offen","pf"); n+=1
            else:
                for k in range(2):
                    e(f"v_add_u32 v21, {2560*k}, v20"); e("v_lshlrev_b32 v22, 7, v21"); e(f"buffer_load_dword v{n}, v22, {srd(WO)}, 0 offen","pf"); n+=1
    if OPT['ntt']==4:
        P.extend(stamp(0))
        e(f"s_min_u32 s{hsN}, s{sJ}, 1")
        helper_setup([HD.vW2,9]+hR[0])
        e("v_accvgpr_write_b32 a127, v9")
        e("v_lshlrev_b32 v231, 4, v0"); e(f"v_mov_b32 v252, {OOB}"); e("v_mov_b32 v13, 1"); e("v_mov_b32 v249, 0"); e("v_mov_b32 v248, 0")
        if OPT['spf']:
            e(f"s_mul_i32 s66, s{sXCD}, 392"); e(f"s_lshl_b32 s67, s{sW}, 6"); e("s_add_u32 s66, s66, s67"); e("v_add_u32 v14, s66, v0")
            for k in range(13):
                e("v_subrev_u32 v15, 3136, v14"); e("v_min_u32 v15, v15, v14"); e("v_lshlrev_b32 v15, 7, v15")
                e(f"buffer_load_dword v{40+k}, v15, {srd(WO)}, 0 offen","pf"); e("v_add_u32 v14, 256, v14")
                if k<OPT['spf']-1: e("s_waitcnt vmcnt(0)")
        hwin[0]=0
        for b in range(8+OPT['hp13']):
            P.extend(flat(HD.w2dma(b)))
            for sb in {1:[0],4:[1],7:[2,3]}.get(b,[]):
                P.append(WAIT(vm=[f"b{sb}"])); P.extend(hstage(sb)); P.append(WAIT(lgkm=0))
        if OPT['hin']:
            e(f"v_mov_b32 v{HD.vWo}, v9")
            P.append(WAIT(vm=["b7"])); P.extend(flat([hstage(b) for b in range(4,8)])); P.append(WAIT(lgkm=0))
            for b in range(13,13+OPT['hin']): P.extend(flat(HD.w2dma(b)))
        assert hwin[0]==HROW[7 if OPT['hin'] else 3]>>16
        spin(249,0,1,DBG,248)
        spin(HD.vPA,0,7,WS,HD.vPoll,nap=24)
        e("s_branch L_help")
    e("L_exit:")
    e("s_endpgm")
    e("L_end:")

DESC="""; One launch, 256 workgroups (one per CU, 4 waves, 512 registers each), roles by workgroup id:
;                     stream through an LDS ring and are transposed by ds_read_b64_tr_b16); silu(g)*u goes to d_ws in
;    64 attention   : 128 tokens (+16 halo) x 4 heads, one head per wave; q/k/v by MFMA, the 8 dilated taps are picked
; Hand-offs: write-through stores, vmcnt wait, atomic add on a counter in d_ws (zeroed in this launch, announced through
; d_debug); consumers poll the counter and read with L1-bypassing loads.  Workgroup-to-die placement only affects speed.
"""
def main():
    global P
    head=open("cdna_kernels/"+NAME+".s.ref").read().split("; Override launch")[0]
    txt=[]; nops=0
    def ablate(o):
        a=OPT['abl']; r=[]
        for x in o:
            if a&1 and x.cls=="vm" and " lds" in x.text: continue
            if a&2 and x.op.startswith("ds_read"): continue
            if a&4 and x.op.startswith("v_mfma"): continue
            r.append(x)
        return r
    for part in ((common_prologue,ffn),(attn,),(spare,)):
        P.clear()
        if part[0] is not common_prologue:
            pass
        for f in part: f()
        o,n=finalize(list(P),part[-1].__name__); nops+=n
        if OPT['abl']: o=ablate(o)
        txt+=[x.text if x.cls=="label" else "    "+x.text for x in o]
    out=head+DESC+"; @launch grid=(256,1,1) block=(256,1,1) lds=163840\n"
    out+='.amdgcn_target "amdgcn-amd-amdhsa--gfx950"\n.text\n'
    out+=f".globl {NAME}_kernel\n.p2align 8\n.type {NAME}_kernel,@function\n{NAME}_kernel:\n"
    out+="\n".join(txt)+"\n"
    out+=f""".section .rodata,"a"
.p2align 6
.amdhsa_kernel {NAME}_kernel
  .amdhsa_next_free_vgpr 512
  .amdhsa_next_free_sgpr 102
  .amdhsa_accum_offset 256
  .amdhsa_group_segment_fixed_size 0
  .amdhsa_kernarg_size 88
  .amdhsa_user_sgpr_count 2
  .amdhsa_user_sgpr_kernarg_segment_ptr 1
  .amdhsa_system_sgpr_workgroup_id_x 1
.end_amdhsa_kernel
"""
    open(sys.argv[1],"w").write(out)
    print("instructions",len(txt),"auto nops",nops)
main()
```

```python
import sys, math
from isa import *
NAME="gated_mix__sliding_local_dilated__swiglu_ffn__prompt"
OPT=dict(stamp=0, probe=-2, pwg=100, obs=0, abl=0, outpol=0,
         rot=4, arot=7, rate=5, cap=2, capc=3, cp=16, chainA=1, w2p0=13, sAt=1, nin=3, sBs=2, pA=10,
         lead=10, pah=10, nm=3, ntt=5, hlead=9, hpah=9, arate=12, apf=1, spf=1, l2o=0, l2b=1, ech=1, tail2=0, ap1=1, nogate=0, cpf=2, kdiag=0, fastp=1, ford=0, lay=1, dst=0, paho=10, p2b=0, p2o=0, weave=0, sord=0, napo=24, skipS=0, rateA=5, nA=6, apW=-1, apA=-1, apB=-1, apfk=10, hp13=5, hwin=0, nap=8, amid=4, hin=2, gop=5, p2=1, est=0, tlb=0, stf=0, split0=1, npre=2, pre1=5, early=9, aearly=5)
for a in sys.argv[2:]:
    k,v=a.split("="); OPT[k]=int(v)
H0=0x100000; NT=130; S0=0x80000; SSTR=2176*4; STAMP0=0xC00000; WSN=0x1000000
OOB=0x80000000
X,WA,WU,WD,WO,WS,OUT,DBG,GW=4,8,12,16,20,24,28,32,36
def srd(b): return f"s[{b}:{b+3}]"
def vr(b,n=1): return f"v{b}" if n==1 else f"v[{b}:{b+n-1}]"
def ar(b,n=1): return f"a{b}" if n==1 else f"a[{b}:{b+n-1}]"
P=[]
def e(t,tag=None):
    x=I(t,tag); P.append(x); return x
_l=[0]
def lab(p="L"):
    _l[0]+=1; return f"{p}{_l[0]}"
def mksrd(b,src,n,bias=0):
    if bias:
        e(f"s_sub_u32 s{b}, s{src}, {bias}"); e(f"s_subb_u32 s{b+1}, s{src+1}, 0")
    else:
        e(f"s_mov_b64 s[{b}:{b+1}], s[{src}:{src+1}]")
    e(f"s_mov_b32 s{b+2}, {n+bias}"); e(f"s_mov_b32 s{b+3}, 0x20000")
def mfma(d,a,b,c): return I(f"v_mfma_f32_16x16x32_bf16 {d}, {a}, {b}, {c}")
sW,sXCD,sJ,sI=62,63,64,65
sT=[66,67,68,69,70,71]
sSTB=98
nstamp=[0]
def stamp(idx,last=False):
    if OPT['probe']!=-2:
        o=[]
        if idx==OPT['probe']: o+=[I("s_memrealtime s[94:95]"),I("s_waitcnt lgkmcnt(0)"),I("s_sub_u32 s97, s94, s96")]
        if last:
            L=lab("PR"); D=lab("PD")
            o+=[I(f"s_cmp_eq_u32 s2, {OPT['pwg']}"),I(f"s_cbranch_scc0 {D}"),I("s_add_u32 s97, s97, 4000"),I(L+":"),I("s_memrealtime s[94:95]"),I("s_waitcnt lgkmcnt(0)"),
                I("s_sub_u32 s94, s94, s96"),I("s_cmp_lt_u32 s94, s97"),I(f"s_cbranch_scc1 {L}"),I(D+":")]
        return o
    if not OPT['stamp']: return []
    if OPT['stamp']==2 and idx not in (0,1,2,3,4,5,6,7,8,9,10,11,55,56,57,58,59,61) : return []
    if OPT['stamp']==3 and idx not in (0,9) and not last: return []
    o=[I("s_memrealtime s[94:95]"),I("s_memtime s[96:97]"),I("s_waitcnt lgkmcnt(0)"),
       I(f"v_writelane_b32 v254, s94, {idx}"),I(f"v_writelane_b32 v255, s96, {idx}")]
    if idx==0: o.append(I("v_writelane_b32 v254, s34, 62"))
    if idx==0 and OPT['kdiag']: o.append(I("v_writelane_b32 v254, s30, 0"))
    if last: o+=[I("v_lshlrev_b32 v253, 3, v0"),I(f"buffer_store_dwordx2 v[254:255], v253, {srd(WS)}, s{sSTB} offen","stamp")]
    return o
def spin(addrv, off, cmpval, srdb, res=12, nap=1):
    L=lab("SP"); D=lab("SD")
    e("s_mov_b32 s92, 0")
    e(L+":")
    e(f"buffer_load_dword v{res}, v{addrv}, {srd(srdb)}, 0 offen offset:{off} sc1","poll")
    e("s_waitcnt vmcnt(0)")
    e(f"v_cmp_ne_u32 vcc, {cmpval}, v{res}")
    e(f"s_cbranch_vccz {D}")
    e("s_add_u32 s92, s92, 1")
    e("s_cmp_lt_u32 s92, 0x40000")
    e(f"s_sleep {nap}")
    e(f"s_cbranch_scc1 {L}")
    e(D+":")
def check_or_spin(addrv, off, cmpval, srdb, res, second=None):
    D=lab("CK")
    e(f"v_cmp_ne_u32 vcc, {cmpval}, v{res}")
    e(f"s_cbranch_vccz {D}")
    if second:
        P.append(WAIT(vm=[second[0]],side=True))
        x=e(f"v_cmp_ne_u32 vcc, {cmpval}, v{second[1]}"); x.rd=set()
        e(f"s_cbranch_vccz {D}")
    n0=len(P)
    spin(addrv,off,cmpval,srdb,res)
    for x in P[n0:]:
        if x.cls=="vm": x.cls="raw"; x.wr=set()
        if x.op=="s_waitcnt": x.op="raw"
    e(D+":")

def codepf():
    KN=NAME+"_kernel"
    e("s_getpc_b64 s[68:69]")
    e("L_pc:")
    e(f"s_sub_u32 s68, s68, L_pc-{KN}"); e("s_subb_u32 s69, s69, 0")
    e("v_lshlrev_b32 v2, 7, v1")
    e("global_load_dword v10, v2, s[68:69]","pf")
    e("v_add_u32 v2, 32768, v2"); e(f"v_min_u32 v2, L_end-{KN}-4, v2")
    e("global_load_dword v11, v2, s[68:69]","pf")
def common_prologue():
    KN=NAME+"_kernel"
    def raw(t,tag=None):
        x=e(t,tag); x.cls="raw"; x.wr=set()
    if OPT['stamp']: e("s_memrealtime s[34:35]")
    if OPT['cpf']==2:
        e("s_cmp_ge_u32 s2, 8"); e("s_cbranch_scc1 L_nopf")
        e("s_getpc_b64 s[68:69]")
        e("L_pc:")
        e("v_lshlrev_b32 v2, 7, v0"); raw("global_load_dword v10, v2, s[68:69]")
        e("L_nopf:")
    else: e("s_cmp_ge_u32 s2, 256"); e("s_cbranch_scc1 L_exit")
    if OPT['probe']!=-2:
        e("s_memrealtime s[94:95]"); e("s_waitcnt lgkmcnt(0)"); e("s_mov_b32 s96, s94"); e("s_mov_b32 s97, 0")
    e("s_load_dwordx16 s[40:55], s[0:1], 0")
    e("s_load_dwordx4 s[56:59], s[0:1], 64")
    e("s_load_dwordx2 s[60:61], s[0:1], 80")
    if OPT['stamp'] and OPT['kdiag']:
        e("s_waitcnt lgkmcnt(0)"); e("s_memrealtime s[30:31]"); e("s_waitcnt lgkmcnt(0)")
    if OPT['cpf']==2:
        e("s_cmp_ge_u32 s2, 256"); e("s_cbranch_scc1 L_exit")
    if OPT['cpf']==1:
        e("s_cmp_ge_u32 s2, 8"); e("s_cbranch_scc1 L_nopf")
        e("v_mov_b32 v1, v0"); n0=len(P); codepf()
        for x in P[n0:]:
            if x.cls=="vm": x.cls="raw"; x.wr=set()
        e("L_nopf:")
    e("v_lshrrev_b32 v1, 6, v0")
    e(f"s_and_b32 s{sXCD}, s2, 7"); e(f"s_lshr_b32 s{sJ}, s2, 3")
    e(f"v_readfirstlane_b32 s{sW}, v1")
    e("v_and_b32 v0, 63, v0")
    if OPT['stamp']:
        e(f"s_lshl_b32 s{sSTB}, s2, 2"); e(f"s_add_u32 s{sSTB}, s{sSTB}, s{sW}"); e(f"s_lshl_b32 s{sSTB}, s{sSTB}, 9")
        e(f"s_add_u32 s{sSTB}, s{sSTB}, {STAMP0}")
        e("v_mov_b32 v254, 0"); e("v_mov_b32 v255, 0")
    e(f"s_mov_b32 s{sI}, s{sXCD}")
    e(f"s_cmp_eq_u32 s{sJ}, 0"); e("s_cbranch_scc1 L_spare")
    if OPT['ford']: e(f"s_cmp_ge_u32 s{sJ}, 24"); e("s_cbranch_scc1 L_attn")
    else: e(f"s_cmp_lt_u32 s{sJ}, 9"); e("s_cbranch_scc1 L_attn")

def dma(voff,sr,soff,imm,tag): return I(f"buffer_load_dwordx4 v{voff}, {srd(sr)}, {soff} offen offset:{imm} lds",tag)

flat=lambda L:[x for it in L for x in it]
def mod7(dst,src,tmp,R=7):
    e(f"s_mul_i32 s{tmp}, s{src}, 9363"); e(f"s_lshr_b32 s{tmp}, s{tmp}, 16"); e(f"s_mul_i32 s{tmp}, s{tmp}, 7"); e(f"s_sub_u32 s{dst}, s{src}, s{tmp}")
    if R==1: e(f"s_mov_b32 s{dst}, 0")
    elif R==2: e(f"s_and_b32 s{dst}, s{dst}, 1"); e(f"s_mul_i32 s{dst}, s{dst}, 3")
    elif R==4: e(f"s_and_b32 s{dst}, s{dst}, 3"); e(f"s_lshl_b32 s{dst}, s{dst}, 1")

class Down:
    def __init__(c,**kw): c.__dict__.update(kw)
    def setup_w(c,sF0,sT2,sN,t):
        t0,t1,t2,t3=t; a,b,d=c.vt
        e(f"v_lshrrev_b32 v{a}, 3, v0"); e(f"v_and_b32 v{b}, 6, v{a}"); e(f"v_and_b32 v{d}, 7, v0"); e(f"v_xor_b32 v{b}, v{b}, v{d}")
        e(f"v_mul_u32_u24 v{a}, 896, v{a}"); e(f"v_lshl_add_u32 v{c.vW2}, v{b}, 4, v{a}")
        e(f"s_lshr_b32 s{t0}, s{sW}, 1"); e(f"s_mul_i32 s{t0}, s{t0}, 28"); e(f"s_and_b32 s{t1}, s{sW}, 1"); e(f"s_add_u32 s{t3}, s{t0}, s{t1}")
        e(f"s_lshl_b32 s{t2}, s{sN}, 7"); e(f"v_add_u32 v{c.vW2}, s{t2}, v{c.vW2}")
        e(f"s_add_u32 s{t0}, s{sT2}, s{sN}"); e(f"s_and_b32 s{t0}, s{t0}, 3"); e(f"s_sub_u32 s{c.sWr3}, 3, s{t0}")
        e(f"s_lshl_b32 s{t1}, s{sW}, 2"); e(f"s_add_u32 s{t2}, s{t0}, s{t1}")
        e(f"s_mul_i32 s{t0}, s{t2}, {28*896}"); e(f"v_add_u32 v{c.vWo}, s{t0}, v{c.vW2}")
        e(f"s_add_u32 s{t0}, s{t2}, 56"); e(f"s_mul_i32 s{t0}, s{t0}, {NT}"); e(f"s_add_u32 s{t0}, s{t0}, s{sF0}"); e(f"s_lshl_b32 s{t0}, s{t0}, 10"); e(f"s_add_u32 s{c.sHO}, s{t0}, {H0}")
        e(f"s_mov_b32 s{c.sNWo}, {-3*28*896}"); e(f"s_mov_b32 s{c.sNHo}, {-3*NT*1024}")
        e(f"s_lshl_b32 s{t0}, s{sT2}, 1"); e(f"s_add_u32 s{t0}, s{t0}, s{sN}")
        mod7(t0,t0,t1); e(f"s_sub_u32 s{c.sWr2}, 6, s{t0}"); e(f"s_lshl_b32 s{t0}, s{t0}, 2"); e(f"s_add_u32 s{t3}, s{t3}, s{t0}")
        e(f"s_mul_i32 s{t1}, s{t3}, {32*896}"); e(f"v_add_u32 v{c.vW2}, s{t1}, v{c.vW2}")
        e(f"s_mov_b32 s{c.sNW2}, {-6*114688}"); e(f"s_mov_b32 s{c.sNH}, {-24*NT*1024}")
        e(f"s_mul_i32 s{t0}, s{t3}, {NT}"); e(f"s_add_u32 s{t0}, s{t0}, s{sF0}"); e(f"s_lshl_b32 s{t0}, s{t0}, 10"); e(f"s_add_u32 s{c.sHld}, s{t0}, {H0}")
        for j in range(1,4): e(f"s_mov_b32 s{c.sW2o[j]}, {6144*j}")
    def setup_lane(c,dst,sBases,t):
        t0=t[0]; a,b,d=c.vt
        e(f"v_bfe_u32 v{a}, v0, 4, 1"); e(f"v_bfe_u32 v{b}, v0, 2, 2"); e(f"v_lshl_add_u32 v{a}, v{a}, 2, v{b}")
        e(f"v_lshrrev_b32 v{b}, 5, v0"); e(f"v_lshlrev_b32 v{b}, 10, v{b}"); e(f"v_lshl_add_u32 v{b}, v{a}, 7, v{b}")
        e(f"v_and_b32 v{d}, 3, v0"); e(f"v_lshl_add_u32 v{b}, v{d}, 3, v{b}"); e(f"v_lshrrev_b32 v{a}, 1, v{a}")
        for q in range(4):
            e(f"s_add_u32 s{t0}, s{sW}, {q}"); e(f"s_and_b32 s{t0}, s{t0}, 3")
            e(f"v_xor_b32 v{d}, s{t0}, v{a}"); e(f"v_lshl_add_u32 v{d}, v{d}, 5, v{b}")
            for k,sb in enumerate(sBases): e(f"v_add_u32 v{dst[k][q]}, s{sb}, v{d}")
    def setup_io(c,sF0,sN,t):
        t0,t1,t2,t3=t; a,b,d=c.vt; N=c.NTT
        e(f"v_lshrrev_b32 v{a}, 5, v0")
        e(f"s_add_u32 s{t1}, s{sF0}, {N-1}")
        e(f"s_mul_i32 s{t0}, s{sF0}, 13108"); e(f"s_lshr_b32 s{t0}, s{t0}, 16"); e(f"s_mul_i32 s{t2}, s{t1}, 13108"); e(f"s_lshr_b32 s{t2}, s{t2}, 16")
        e(f"s_sub_u32 s{t2}, s{t2}, s{t0}"); e(f"s_lshl_b32 s{t2}, s{t2}, 10"); e(f"s_lshl_b32 s{t0}, s{t0}, 3"); e(f"s_add_u32 s{t0}, s{t0}, s{sW}"); e(f"s_lshl_b32 s{t0}, s{t0}, 7")
        e(f"v_mul_u32_u24 v{b}, s{t2}, v{a}"); e(f"v_add_u32 v{c.vPA}, s{t0}, v{b}")
        e(f"s_lshr_b32 s{t0}, s{sF0}, 3"); e(f"s_lshr_b32 s{t2}, s{t1}, 3"); e(f"s_min_u32 s{t2}, s{t2}, 15")
        e(f"s_sub_u32 s{t2}, s{t2}, s{t0}"); e(f"s_lshl_b32 s{t2}, s{t2}, 9"); e(f"s_lshl_b32 s{t0}, s{t0}, 2"); e(f"s_add_u32 s{t0}, s{t0}, s{sW}"); e(f"s_add_u32 s{t0}, s{t0}, 208"); e(f"s_lshl_b32 s{t0}, s{t0}, 7")
        e(f"v_mul_u32_u24 v{b}, s{t2}, v{a}"); e(f"v_add_u32 v{c.vPO}, s{t0}, v{b}")
        e(f"s_lshl_b32 s{t0}, s{sF0}, 4"); e(f"v_and_b32 v{a}, 15, v0"); e(f"v_add_u32 v{a}, s{t0}, v{a}")
        e(f"s_mul_i32 s{t1}, s{sW}, {SSTR}"); e(f"s_add_u32 s{t1}, s{t1}, {S0}"); e(f"v_lshlrev_b32 v{c.vSA}, 2, v{a}"); e(f"v_add_u32 v{c.vSA}, s{t1}, v{c.vSA}")
        e(f"v_mul_u32_u24 v{a}, 896, v{a}"); e(f"v_lshrrev_b32 v{b}, 4, v0"); e(f"v_lshl_add_u32 v{a}, v{b}, 3, v{a}")
        e(f"s_lshl_b32 s{t1}, s{sN}, 7"); e(f"s_lshl_b32 s{t2}, s{sW}, 5"); e(f"s_add_u32 s{t1}, s{t1}, s{t2}"); e(f"v_add_u32 v{c.vO}, s{t1}, v{a}")
        base,ws,qs=c.red
        e(f"s_mul_i32 s{t0}, s{sW}, {ws}"); e(f"s_add_u32 s{t0}, s{t0}, {base}"); e(f"v_add_u32 v{c.vRW}, s{t0}, v{c.vH}")
        for q in range(1,4):
            e(f"s_sub_u32 s{t0}, s{sW}, {q}"); e(f"s_and_b32 s{t0}, s{t0}, 3"); e(f"s_mul_i32 s{t0}, s{t0}, {ws}"); e(f"s_add_u32 s{t0}, s{t0}, {base+(q-1)*qs}")
            e(f"v_add_u32 v{c.vRR+q-1}, s{t0}, v{c.vH}")
        for j in range(1,N): e(f"s_mov_b32 s{c.sRow+j-1}, {16*j*896}")
    def w2dma(c,b):
        sg,off=c.m0(b)
        o=[[dma(c.vW2,WD if b<14 else WO,"0" if pi==0 else f"s{c.sW2o[pi]}",pi*1024,f"b{b}")] for pi in range(4)]
        o[0].insert(0,I(f"s_add_u32 m0, s{sg}, {off}"))
        if b==13: o[-1].append(I(f"v_mov_b32 v{c.vW2}, v{c.vWo}"))
        elif b<13:
            o[-1]+=[ATOM(f"s_cmp_eq_u32 s{c.sWr2}, {b%7}",f"s_cselect_b32 s{c.sD}, s{c.sNW2}, 114688"),I(f"v_add_u32 v{c.vW2}, s{c.sD}, v{c.vW2}")]
            if b==6: o[-1].append(I(f"v_add_u32 v{c.vW2}, {64*896}, v{c.vW2}"))
        elif b<17: o[-1]+=[ATOM(f"s_cmp_eq_u32 s{c.sWr3}, {b-14}",f"s_cselect_b32 s{c.sD}, s{c.sNWo}, {28*896}"),I(f"v_add_u32 v{c.vW2}, s{c.sD}, v{c.vW2}")]
        return o
    def AW(c,b,q,a=None):
        r=c.aSt+16*(b%8)+4*q
        return ar(r,4) if a is None else ar(r+2*a,2)
    def treads(c,b,rd=None):
        base,off=(rd or c.rd)(b)
        return [I(f"ds_read_b64_tr_b16 {c.AW(b,q,a)}, v{base[q]} offset:{off+a*2048}") for q in range(4) for a in range(2)]
    def HS(c,b,t):
        k=b%c.NSL; na=c.nAS
        return ar(c.aH+(k*c.NTT+t)*4,4) if k<na else vr(c.vHS+((k-na)*c.NTT+t)*4,4)
    def hload(c,b):
        o=[[I(f"buffer_load_dwordx4 {c.HS(b,t)}, v{c.vH if t<3 else c.vHt[t-3]}, {srd(WS)}, s{c.sHld} offen offset:{(t%4)*1024} sc1",f"h{b}_{t}")] for t in range(c.NTT)]
        if b==13: o[-1].append(I(f"s_mov_b32 s{c.sHld}, s{c.sHO}"))
        elif b<13:
            o[-1]+=[ATOM(f"s_cmp_eq_u32 s{c.sWr2}, {b%7}",f"s_cselect_b32 s{c.sD}, s{c.sNH}, {4*NT*1024}",f"s_add_u32 s{c.sHld}, s{c.sHld}, s{c.sD}")]
            if b==6: o[-1].append(I(f"s_add_u32 s{c.sHld}, s{c.sHld}, {2*NT*1024}"))
        elif b<17: o[-1]+=[ATOM(f"s_cmp_eq_u32 s{c.sWr3}, {b-14}",f"s_cselect_b32 s{c.sD}, s{c.sNHo}, {NT*1024}",f"s_add_u32 s{c.sHld}, s{c.sHld}, s{c.sD}")]
        return o
    def poll(c,tag):
        av,off={"pollA":(c.vPA,0),"pollB":(c.vPA,512),"pollO":(c.vPO,0)}[tag]
        return I(f"buffer_load_dword v{c.vPoll}, v{av}, {srd(WS)}, 0 offen offset:{off} sc1",tag)
    def main(c,WQ,LEAD,PAH,so=0):
        N=c.NTT; GT=18*N
        steps=[[(b,) for b in range(15)]+[(15,16,17)],
               [(0,1),(2,3),(4,5),(6,),(7,8),(9,10),(11,12),(13,),(14,),(15,16,17)],
               [(0,1,2,3),(4,5,6),(7,8,9,10),(11,12,13),(14,15,16,17)],
               [(0,1),(2,3),(4,5,6),(7,8),(9,10),(11,12,13),(14,15),(16,17)],
               [(0,1),(2,3),(4,5,6),(7,8),(9,10),(11,12,13),(14,15,16,17)]][OPT['ech']]
        if not OPT['nogate']&1: P.append(WAIT(vm=["pollA"])); check_or_spin(c.vPA,0,7,WS,c.vPoll)
        P.extend(stamp(so+11))
        def setoff(st):
            o=[]
            for k,b in enumerate(st):
                o.append(I(f"s_mov_b32 s{44+k}, s{c.sHld}")); o+=c.hload(b)[-1][1:]
            return o
        HL=[]; start={}; units=[]
        for n,st in enumerate(steps):
            for b in st: start[b]=len(HL)
            for t in range(N):
                units.append((len(HL),st,t))
                for k,b in enumerate(st):
                    x=c.hload(b)[t][0]; HL.append([I(x.text.replace(f"s{c.sHld} offen",f"s{44+k} offen"),x.tag)])
            if n+1<len(steps): HL[-1]+=setoff(steps[n+1])
        P.extend(setoff(steps[0]))
        for l in range(LEAD): P.extend(HL[l])
        P.extend(stamp(so+5))
        hn=LEAD
        ustart=[u[0] for u in units]
        at=lambda g: max(x for x in ustart if x<=max(g,0))
        gates={at(start[7]-LEAD):("pollB",c.vPA,512,7,6), at(start[14]-LEAD):("pollO",c.vPO,0,4,7)}
        polls={at(g-(PAH if v[0]=='pollB' else OPT['paho'] or PAH)):v[0] for g,v in gates.items()}
        polls2={at(g-OPT[k]):v[0] for g,v in gates.items() for k in (['p2b'] if v[0]=="pollB" else ['p2o']) if OPT[k]}
        RQ={}
        for n,st in enumerate(steps):
            rd=[(x,f"b{b}") for b in st if b>=8 for x in c.treads(b)]
            if not rd: continue
            g1=start[st[0]]
            g0=max([g1-max(N,(len(rd)+1)//2)]+[start[b-8]+N*len([z for z in steps if b-8 in z][0]) for b in st if b>=8])
            assert 3*(g1-g0-1)>=len(rd)
            for k,(x,tg) in enumerate(rd): RQ.setdefault(g0+k*(g1-g0-1)//len(rd),[]).append((x,tg))
        base,ws,qs=c.red
        wr=lambda q,t: I(f"ds_write_b128 v{c.vRW}, {vr(c.ACC(q,t),4)} offset:{(q-1)*qs+t*1024}")
        R=lambda q,t: c.vRT+((q-1)*N+t)*4
        rr=lambda t: [I(f"ds_read_b128 {vr(R(q,t),4)}, v{c.vRR+q-1} offset:{t*1024}") for q in range(1,4)]
        NE=N-2 if OPT['tail2'] else 0
        def uw(u):
            g,st,t=units[u]
            tags=[f"h{b}_{t}" for b in st]+[tg for k in range(len(st)) for _,tg in RQ.get(g+k,[])]
            if g in gates: tags.append(gates[g][0])
            return WAIT(vm=tags,lgkm=0 if t==0 else None)
        P.append(uw(0))
        for u,(g,st,t) in enumerate(units):
            L=len(st)
            mf=[mfma(vr(c.ACC(q,t),4),c.AW(b,q),c.HS(b,t),"0" if b==0 else vr(c.ACC(q,t),4)) for q in range(4) for b in st]
            if g in gates:
                tg,av,off,val,si=gates[g]
                sec=(tg+"2",c.vPoll2) if OPT['p2b' if tg=="pollB" else 'p2o'] else None
                if not OPT['nogate']&(2 if tg=="pollB" else 4): check_or_spin(av,off,val,WS,c.vPoll,sec)
                P.extend(stamp(so+si))
            if t==0 and not so: P.extend(stamp(12+st[0]))
            f=[]
            if g in polls: f.append((2.5,c.poll(polls[g])))
            if g in polls2:
                x=c.poll(polls2[g]); f.append((2.6,I(x.text.replace(f"dword v{c.vPoll},",f"dword v{c.vPoll2},"),x.tag+"2")))
            for k in range(L):
                if hn<GT:
                    it=HL[hn]; hn+=1; f.append((4*k,it[0])); f+=[(4*k+1,x) for x in it[1:]]
                elif g+k+LEAD<GT+N: f+=([(4*k-0.5,I(f"v_or_b32 v{c.vSA}, s{c.sLast}, v{c.vSA}"))] if g+k+LEAD-GT==3 and N==5 else [])+[(4*k,I(f"buffer_load_dword v{c.vS+g+k+LEAD-GT}, v{c.vSA}, {srd(WS)}, 0 offen offset:{(g+k+LEAD-GT)*64} sc1","s"))]
                if WQ and WQ[0][0]<=g+k:
                    seen=False
                    for x in WQ.pop(0)[1]:
                        if x.cls=="vm": seen=True; f.append((4*k+2,x))
                        else: f.append((4*k+(3 if seen else 1.5),x))
                f+=[(4*k+0.2+j,x) for j,(x,_) in enumerate(RQ.get(g+k,[]))]
            if st is steps[-1] and t>0: f+=[(3+(q-1)*(4*L-4)//3,wr(q,t-1)) for q in range(1,4)]
            if NE and u==len(units)-1:
                f=[(k,x) for k,x in enumerate([x for _,x in f if x.cls=="ds"]+flat([rr(tt) for tt in range(NE)]))]+[z for z in f if z[1].cls!="ds"]
            o=pack2(mf,f)
            if NE and u==len(units)-2: o+=[WAIT(lgkm=0),I("s_barrier")]
            if u+1<len(units):
                j=max(i for i,x in enumerate(o) if x.cls=="mfma")
                if any(x.cls in("ds","vm") for x in o[j+1:]): o.append(uw(u+1))
                else: o.insert(j+1,uw(u+1))
            P.extend(o)
        assert not WQ and hn==GT
        for q in range(1,4): P.append(wr(q,N-1))
        P.extend(stamp(so+8))
        def fin(t):
            d=c.ACC(0,t)
            for r in (0,2): e(f"v_pk_add_f32 {vr(R(1,t)+r,2)}, {vr(R(1,t)+r,2)}, {vr(R(2,t)+r,2)}")
            for r in (0,2): e(f"v_pk_add_f32 {vr(d+r,2)}, {vr(d+r,2)}, {vr(R(3,t)+r,2)}")
            for r in (0,2): e(f"v_pk_add_f32 {vr(d+r,2)}, {vr(d+r,2)}, {vr(R(1,t)+r,2)}")
            for r in range(4): e(f"v_mul_f32 v{d+r}, v{c.vS+t}, v{d+r}")
            e(f"v_cvt_pk_bf16_f32 v{d}, v{d}, v{d+1}"); e(f"v_cvt_pk_bf16_f32 v{d+1}, v{d+2}, v{d+3}")
            e(f"buffer_store_dwordx2 {vr(d,2)}, v{c.vO}, {srd(OUT)}, {'0' if t==0 else 's%d'%(c.sRow+t-1)} offen{['',' sc1',' nt'][OPT['outpol']]}","out")
        if NE:
            P.append(WAIT(vm=["s"],lgkm=3))
            for t in range(NE): fin(t)
        P.append(WAIT(vm=["s"],lgkm=0)); e("s_barrier")
        for t in range(NE,N): P.extend(rr(t))
        for t in range(NE,N):
            e(f"s_waitcnt lgkmcnt({3*(N-1-t)})"); fin(t)
        P.extend(stamp(so+9,True))
        e("s_endpgm")

def ffn():
    sSL,sTT,sT2,sN=72,73,74,75
    sSeg1,sSeg2,sXb=76,77,78
    sXo=[None,79,80,81,82]
    sW1o=83
    sHst,sHld,sC=87,88,89
    vX,vW,vXR,vWR,vW2,vH,vH4,vFl,vOne,vPoll,vPA=1,2,(3,4),(5,6),7,8,9,10,11,12,13
    ACC=lambda p,q,t: 16+80*p+(q*5+t)*4
    def XF(i): return vr(176+4*i,4) if i<6 else ar(4*(i-6),4)
    AF=lambda buf,q: 200+16*buf+4*q
    t0,t1,t2_,t3=sT[:4]
    e(f"s_lshr_b32 s{t1}, s{sXCD}, 2"); e(f"s_add_u32 s{sI}, s{t1}, 8")
    if OPT['ford']:
        e(f"s_or_b32 s{t0}, s2, 4"); e(f"s_cmpk_eq_u32 s{t0}, {23*8+7}"); e("s_cbranch_scc1 L_spare")
        e(f"s_mul_i32 s{t0}, s{sXCD}, 23"); e(f"s_add_u32 s{sI}, s{sJ}, s{t0}"); e(f"s_sub_u32 s{sI}, s{sI}, 1")
    else:
        e(f"s_and_b32 s{t0}, s{sXCD}, 3"); e(f"s_cmp_eq_u32 s{t0}, 3"); e(f"s_cselect_b32 s{t0}, 10, 9")
        e(f"s_cmp_lt_u32 s{sJ}, s{t0}"); e("s_cbranch_scc1 L_spare")
        e(f"s_sub_u32 s{sI}, s{sJ}, s{t0}")
        e(f"s_mul_i32 s{t0}, s{sXCD}, 23"); e(f"s_add_u32 s{sI}, s{sI}, s{t0}")
    e(f"s_sub_u32 s{sI}, s{sI}, s{t1}")
    sWr,sD,sNX,sNW,sWr2,sNW2,sNH=90,91,93,99,100,101,3
    if OPT['fastp']:
        assert OPT['rot']==4 and OPT['early']==9
        e(f"s_mul_i32 s{sT2}, s{sI}, 9363"); e(f"s_lshr_b32 s{sT2}, s{sT2}, 16")
        e(f"s_mul_i32 s{t0}, s{sT2}, 7"); e(f"s_sub_u32 s{sN}, s{sI}, s{t0}")
        e(f"s_mov_b32 s{t0}, s{sI}"); e(f"s_addk_i32 s{t0}, -98"); e(f"s_mul_i32 s{t1}, s{t0}, 43"); e(f"s_lshr_b32 s{t1}, s{t1}, 8")
        e(f"s_mul_i32 s{t2_}, s{t1}, 6"); e(f"s_sub_u32 s{t0}, s{t0}, s{t2_}"); e(f"s_add_u32 s{t0}, s{t0}, 7")
        e(f"s_cmpk_lt_u32 s{sI}, 98"); e(f"s_cselect_b32 s{sSL}, s{sT2}, s{t1}"); e(f"s_cselect_b32 s{sTT}, s{sN}, s{t0}")
        e(f"s_add_u32 s{t3}, s{sTT}, s{sSL}"); e(f"s_and_b32 s{t3}, s{t3}, 3")
        e("v_lshrrev_b32 v14, 3, v0"); e("v_and_b32 v15, 7, v0"); e("v_lshrrev_b32 v12, 1, v14")
        e(f"s_and_b32 s{t2_}, s{sW}, 1"); e(f"s_lshl_b32 s{t2_}, s{t2_}, 2"); e(f"v_xor_b32 v15, s{t2_}, v15"); e("v_xor_b32 v13, v12, v15")
        e("v_mul_u32_u24 v12, 896, v14"); e(f"v_lshl_add_u32 v{vX}, v13, 4, v12")
        e(f"s_mul_i32 s{t0}, s{sTT}, 20"); e(f"s_add_u32 s{t0}, s{t0}, s{sW}"); e(f"s_mul_i32 s{t0}, s{t0}, 28"); e(f"s_add_u32 s{t0}, s{t0}, s{t3}"); e(f"s_lshl_b32 s{t0}, s{t0}, 8")
        e(f"v_add_u32 v{vX}, s{t0}, v{vX}")
        e(f"s_lshl_b32 s{sXb}, s{sW}, 10"); e(f"s_bitset1_b32 s{sXb}, 16"); e(f"s_mov_b32 m0, s{sXb}")
        e(f"s_mov_b32 s{X+2}, 1835008"); e(f"s_mov_b32 s{X+3}, 0x20000"); e(f"s_movk_i32 s{sXo[1]}, 28672")
        e("s_waitcnt lgkmcnt(0)")
        e(f"s_mov_b64 s[{X}:{X+1}], s[40:41]")
        P.extend(stamp(0))
        fill=[[f"s_lshl_b32 s{sXo[2]}, s{sXo[1]}, 1","v_and_b32 v13, 2, v14","v_xor_b32 v13, v13, v15","v_lshlrev_b32 v12, 2, v12"],
              [f"s_add_u32 s{sXo[3]}, s{sXo[1]}, s{sXo[2]}",f"v_lshl_add_u32 v{vW}, v13, 4, v12",f"s_lshl_b32 s{t0}, s{t3}, 4",f"s_add_u32 s{t0}, s{t0}, s{sW}",f"s_mul_i32 s{t0}, s{t0}, s{sXo[1]}"],
              [f"s_lshl_b32 s{sXo[4]}, s{sXo[1]}, 2",f"s_lshl_b32 s{t1}, s{sSL}, 8",f"s_add_u32 s{t0}, s{t0}, s{t1}",f"v_add_u32 v{vW}, s{t0}, v{vW}"],
              [f"s_mov_b64 s[{WA}:{WA+1}], s[48:49]",f"s_mov_b32 s{WA+2}, 1605632",f"s_mov_b32 s{WA+3}, s{X+3}",f"s_lshl_b32 s{sSeg2}, s{sW}, 12"]]
        for j in range(5):
            P.append(dma(vX,X,"0" if j==0 else f"s{sXo[j]}",0,"x0"))
            if j<4:
                e("s_addk_i32 m0, 4096")
                for z in fill[j]: e(z)
        e(f"s_mov_b32 m0, s{sSeg2}"); e(f"s_sub_u32 s{WU}, s50, 2048"); e(f"s_subb_u32 s{WU+1}, s51, 0")
        P.append(dma(vW,WA,"0",0,"w0a"))
        e(f"s_add_u32 s{WU+2}, s{WA+2}, 2048"); e(f"s_mov_b32 s{WU+3}, s{X+3}")
        P.append(dma(vW,WU,"0",2048,"w0a"))
        e(f"s_mov_b32 s{sW1o}, {32*3584-1024}")
        P.append(dma(vW,WA,f"s{sW1o}",1024,"w0")); P.append(dma(vW,WU,f"s{sW1o}",3072,"w0"))
        e(f"s_lshl_b32 s{t3}, s{t3}, 1"); e(f"s_sub_u32 s{sWr}, 6, s{t3}"); e(f"s_movk_i32 s{sNX}, -768"); e(f"s_mov_b32 s{sNW}, {-6*64*3584}")
    else:
        e(f"s_mul_i32 s{sT2}, s{sI}, 9363"); e(f"s_lshr_b32 s{sT2}, s{sT2}, 16")
        e(f"s_mul_i32 s{t0}, s{sT2}, 7"); e(f"s_sub_u32 s{sN}, s{sI}, s{t0}")
        e(f"s_sub_u32 s{t0}, s{sI}, 98"); e(f"s_mul_i32 s{t1}, s{t0}, 10923"); e(f"s_lshr_b32 s{t1}, s{t1}, 16")
        e(f"s_mul_i32 s{t2_}, s{t1}, 6"); e(f"s_sub_u32 s{t0}, s{t0}, s{t2_}"); e(f"s_add_u32 s{t0}, s{t0}, 7")
        e(f"s_cmp_lt_u32 s{sI}, 98"); e(f"s_cselect_b32 s{sSL}, s{sT2}, s{t1}"); e(f"s_cselect_b32 s{sTT}, s{sN}, s{t0}")
        e("v_lshrrev_b32 v14, 3, v0")
        e("v_and_b32 v15, 7, v0")
        e(f"s_and_b32 s{t0}, s{sW}, 1"); e(f"s_lshl_b32 s{t1}, s{t0}, 2")
        e("v_lshrrev_b32 v12, 1, v14"); e(f"v_or_b32 v13, s{t1}, v12"); e("v_xor_b32 v13, v13, v15")
        e(f"s_mul_i32 s{t2_}, s{sTT}, 160"); e(f"s_lshl_b32 s{t3}, s{sW}, 3"); e(f"s_add_u32 s{t2_}, s{t2_}, s{t3}")
        e(f"v_add_u32 v{vX}, s{t2_}, v14"); e(f"v_mul_u32_u24 v{vX}, 896, v{vX}"); e(f"v_lshl_add_u32 v{vX}, v13, 4, v{vX}")
        e(f"s_lshl_b32 s{t0}, s{t0}, 2")
        e("v_and_b32 v13, 2, v14"); e(f"v_or_b32 v13, s{t0}, v13"); e("v_xor_b32 v13, v13, v15")
        e(f"v_add_u32 v{vW}, s{t3}, v14"); e(f"v_mul_u32_u24 v{vW}, 3584, v{vW}"); e(f"v_lshl_add_u32 v{vW}, v13, 4, v{vW}")
        e(f"s_lshl_b32 s{t0}, s{sSL}, 8"); e(f"v_add_u32 v{vW}, s{t0}, v{vW}")
        e(f"s_lshl_b32 s{t0}, s{sSL}, 1"); e(f"s_add_u32 s{t0}, s{sTT}, s{t0}"); mod7(t0,t0,t1,OPT['rot'])
        e(f"s_sub_u32 s{sWr}, 6, s{t0}"); e(f"s_lshl_b32 s{t1}, s{t0}, 7"); e(f"v_add_u32 v{vX}, s{t1}, v{vX}")
        e(f"s_mul_i32 s{t1}, s{t0}, {64*3584}"); e(f"v_add_u32 v{vW}, s{t1}, v{vW}")
        e(f"s_mov_b32 s{sNX}, -768"); e(f"s_mov_b32 s{sNW}, {-6*64*3584}")
        e(f"s_lshl_b32 s{sSeg2}, s{sW}, 12")
        e(f"s_lshl_b32 s{sXb}, s{sW}, 10"); e(f"s_add_u32 s{sXb}, s{sXb}, 65536")
        for j in range(1,5): e(f"s_mov_b32 s{sXo[j]}, {32*j*896}")
        e(f"s_mov_b32 s{sW1o}, {32*3584-1024}")
        for b,n in ((X,1835008),(WA,1605632),(WU,1605632+2048)):
            e(f"s_mov_b32 s{b+2}, {n}"); e(f"s_mov_b32 s{b+3}, 0x20000")
        e("s_waitcnt lgkmcnt(0)")
        e(f"s_mov_b64 s[{X}:{X+1}], s[40:41]"); e(f"s_mov_b64 s[{WA}:{WA+1}], s[48:49]")
        e(f"s_sub_u32 s{WU}, s50, 2048"); e(f"s_subb_u32 s{WU+1}, s51, 0")
        P.extend(stamp(0))
    def xdma(c):
        o=[]
        for j in range(5):
            o.append([I(f"s_add_u32 m0, s{sXb}, {(c%4)*20480+j*4096}"), dma(vX,X,"0" if j==0 else f"s{sXo[j]}",0,f"x{c}")])
        o[-1]+=[ATOM(f"s_cmp_eq_u32 s{sWr}, {c}",f"s_cselect_b32 s{sD}, s{sNX}, 128"),I(f"v_add_u32 v{vX}, s{sD}, v{vX}")]
        return o
    def wdma(s):
        o=[]
        for j in range(2):
            for m in range(2):
                o.append([dma(vW,WA if m==0 else WU,"0" if j==0 else f"s{sW1o}",(2*m+j)*1024,f"w{s}" if (s or j) else "w0a")])
        o[0].insert(0,I(f"s_add_u32 m0, s{sSeg2}, {(s%4)*16384}"))
        o[-1]+=[ATOM(f"s_cmp_eq_u32 s{sWr}, {s%7}",f"s_cselect_b32 s{sD}, s{sNW}, {64*3584}"),I(f"v_add_u32 v{vW}, s{sD}, v{vW}")]
        if s==6: o[-1].append(I(f"v_add_u32 v{vW}, 128, v{vW}"))
        return o
    NTT=OPT['ntt']; R1=[176,177,178,179]; R2=[180,181,182,183]; sF0=39
    LOC=[((sSeg1,b*4096),13 if b<2 else 17) for b in range(6)]+[((sSeg2,((j+2)%4)*16384),21+2*j) for j in range(4)]
    loc=lambda b: LOC[b%10][0]
    D=Down(NTT=NTT,vt=(196,197,198),vW2=vW2,vWo=248,vH=vH,vHt=(251,252),sLast=52,vPoll=vPoll,vPoll2=14,vPA=vPA,vPO=187,vSA=188,vO=189,vRW=190,vRR=184,vS=192,vRT=96,
           sW2o=[None,84,85,86],sWr2=sWr2,sNW2=sNW2,sNH=sNH,sD=sD,sWr3=38,sNWo=36,sNHo=37,sHld=sHld,sHO=sT[5],sRow=40,
           m0=loc,rd=lambda b:(R1 if loc(b)[0]==sSeg1 else R2,loc(b)[1]),red=(65536,24576,5120),
           ACC=lambda q,t:ACC(0,q,t),AF=AF,aSt=0,aH=128,nAS=128//(4*NTT),NSL=128//(4*NTT)+(4 if NTT==5 else 0),vHS=96)
    pro=flat([xdma(s)+wdma(s) for s in range(OPT['npre'])])
    if OPT['fastp']: P.extend(pro[4][2:]+pro[8][1:])
    else: P.extend(flat(pro[:OPT['early']]))
    P.extend(stamp(51))
    mksrd(WS,60,WSN); mksrd(WD,52,1605632); mksrd(WO,44,401408); mksrd(OUT,56,1835008); mksrd(DBG,58,256)
    e("v_lshrrev_b32 v14, 4, v0")
    e("v_and_b32 v15, 15, v0")
    e("v_lshrrev_b32 v12, 1, v15"); e("v_xor_b32 v12, v12, v14"); e("v_lshlrev_b32 v12, 4, v12")
    e("v_lshl_add_u32 v12, v15, 7, v12")
    e(f"s_lshr_b32 s{t0}, s{sW}, 1"); e(f"s_mul_i32 s{t0}, s{t0}, 10240"); e(f"s_add_u32 s{t0}, s{t0}, 65536")
    e(f"v_add_u32 v{vXR[0]}, s{t0}, v12"); e(f"v_xor_b32 v{vXR[1]}, 64, v{vXR[0]}")
    e("v_bfe_u32 v12, v0, 2, 2")
    e("v_lshrrev_b32 v13, 1, v12"); e("v_and_b32 v15, 1, v14"); e("v_lshlrev_b32 v15, 1, v15"); e("v_or_b32 v13, v13, v15")
    e(f"s_and_b32 s{t0}, s{sW}, 1"); e(f"s_lshl_b32 s{t0}, s{t0}, 1"); e(f"v_xor_b32 v13, s{t0}, v13"); e("v_lshlrev_b32 v13, 5, v13")
    e("v_lshl_add_u32 v13, v14, 12, v13"); e("v_lshl_add_u32 v13, v12, 7, v13")
    e("v_and_b32 v15, 3, v0"); e(f"v_lshl_add_u32 v{vWR[0]}, v15, 3, v13"); e(f"v_xor_b32 v{vWR[1]}, 32, v{vWR[0]}")
    e(f"s_mul_i32 s{sF0}, s{sT2}, {NTT}")
    D.setup_w(sF0,sT2,sN,sT[:4])
    e(f"s_lshl_b32 s{t2_}, s{sTT}, 1"); e(f"s_lshr_b32 s{t1}, s{sW}, 1"); e(f"s_add_u32 s{t2_}, s{t2_}, s{t1}")
    e(f"s_lshl_b32 s{t0}, s{sSL}, 2"); e(f"s_and_b32 s{t3}, s{sW}, 1"); e(f"s_add_u32 s{t0}, s{t0}, s{t3}"); e(f"s_mul_i32 s{t0}, s{t0}, {NT}")
    e(f"s_mul_i32 s{t1}, s{t2_}, 5"); e(f"s_add_u32 s{t0}, s{t0}, s{t1}")
    e(f"s_lshl_b32 s{t0}, s{t0}, 10"); e(f"s_add_u32 s{sHst}, s{t0}, {H0}")
    e(f"s_lshl_b32 s{t0}, s{t2_}, 3"); e(f"s_add_u32 s{t0}, s{t0}, s{t3}"); e(f"s_cmp_ge_u32 s{sSL}, 7"); e(f"s_cselect_b32 s{t1}, 2, 0"); e(f"s_add_u32 s{t0}, s{t0}, s{t1}"); e(f"s_lshl_b32 s{t0}, s{t0}, 7")
    e(f"v_mov_b32 v{vFl}, {OOB}"); e(f"v_mov_b32 v12, s{t0}"); e("v_cmp_eq_u32 vcc, 0, v0")
    e(f"v_lshlrev_b32 v{vH}, 4, v0"); e(f"v_add_u32 v{vH4}, 4096, v{vH}")
    e(f"v_cndmask_b32 v{vFl}, v{vFl}, v12, vcc")
    e(f"s_mul_i32 s{sSeg1}, s{sW}, 24576"); e(f"s_add_u32 s{sSeg1}, s{sSeg1}, 65536")
    e(f"s_mov_b32 s{sC}, 0xbfb8aa3b")
    e(f"v_mov_b32 v{vOne}, 1")
    e("v_mov_b32 v15, 0")
    e(f"s_or_b32 s{t0}, s{sI}, s{sW}"); e(f"v_or_b32 v250, s{t0}, v0"); e("v_lshlrev_b32 v250, 8, v250")
    def reads(Pn):
        p,s,h=Pn//14,Pn//2,Pn%2
        CH=(p==1 or OPT['chainA']) and not (OPT['split0'] and s==0)
        o=[]
        for ks in ((0,1) if CH else (h,)):
            if p==0 and (h==0 or not CH):
                if s==3: o.append(I(f"v_add_u32 v{vXR[ks]}, 61440, v{vXR[ks]}"))
                for t in range(5): o.append(I(f"ds_read_b128 {XF((2*s+ks)*5+t)}, v{vXR[ks]} offset:{(s%4 if s!=3 else 0)*20480+t*2048}"))
                if s==3: o.append(I(f"v_subrev_u32 v{vXR[ks]}, 61440, v{vXR[ks]}"))
        tr=[]
        for j in range(4):
            if CH: m,ks,tl=j>>1,j&1,h
            else: m,ks,tl=j>>1,h,j&1
            for a in range(2):
                tr.append(I(f"ds_read_b64_tr_b16 {vr(AF(h,j)+2*a,2)}, v{vWR[tl]} offset:{(s%4)*16384+(2*m+ks)*1024+a*512}"))
        return tr[:4]+o+tr[4:]
    def epi(p,t):
        T=[232+k for k in range(8)]; O=240+4*(t%2) if (p or not OPT['dst']) else ACC(0,0,t)
        G=[ACC(p,k>>2,t)+(k&3) for k in range(8)]; U=[ACC(p,2+(k>>2),t)+(k&3) for k in range(8)]
        o=[]
        st=I(f"buffer_store_dwordx4 {vr(O,4)}, v{vH if t<4 else vH4}, {srd(WS)}, s{sHst} offen offset:{(t%4)*1024} {['sc1','sc0 sc1','sc1 nt','sc0 sc1 nt',''][OPT['stf']]}",f"st{p}")
        if p==1:
            for k in range(0,8,2): o.append(I(f"v_pk_mul_f32 {vr(T[k],2)}, {vr(G[k],2)}, s[48:49]"))
            for k in range(8):
                o.append(I(f"v_exp_f32 v{T[k]}, v{T[k]}"))
                if k%2==0: o.append(I(f"v_pk_mul_f32 {vr(U[k],2)}, {vr(G[k],2)}, {vr(U[k],2)}"))
            for k in range(0,8,2): o.append(I(f"v_pk_add_f32 {vr(T[k],2)}, {vr(T[k],2)}, s[50:51]"))
            for k in range(8):
                o.append(I(f"v_rcp_f32 v{G[k]}, v{T[k]}"))
                if k>=3 and k%2==1:
                    o.append(I(f"v_pk_mul_f32 {vr(U[k-3],2)}, {vr(G[k-3],2)}, {vr(U[k-3],2)}"))
                    if k>=5: o.append(I(f"v_cvt_pk_bf16_f32 v{O+(k-5)//2}, v{U[k-5]}, v{U[k-4]}"))
            o.append(I(f"v_cvt_pk_bf16_f32 v{O+2}, v{U[4]}, v{U[5]}"))
            o.append(I(f"v_pk_mul_f32 {vr(U[6],2)}, {vr(G[6],2)}, {vr(U[6],2)}"))
            o.append(I(f"v_cvt_pk_bf16_f32 v{O+3}, v{U[6]}, v{U[7]}"))
            return o+[st]
        for k in range(8): o.append(I(f"v_mul_f32 v{T[k]}, s{sC}, v{G[k]}"))
        for k in range(8):
            o.append(I(f"v_exp_f32 v{T[k]}, v{T[k]}")); o.append(I(f"v_mul_f32 v{U[k]}, v{G[k]}, v{U[k]}"))
        for k in range(8): o.append(I(f"v_add_f32 v{T[k]}, 1.0, v{T[k]}"))
        for k in range(8):
            o.append(I(f"v_rcp_f32 v{G[k]}, v{T[k]}"))
            if k>=1: o.append(I(f"v_mul_f32 v{U[k-1]}, v{G[k-1]}, v{U[k-1]}"))
            if k>=3 and k%2==1: o.append(I(f"v_cvt_pk_bf16_f32 v{O+(k-3)//2}, v{U[k-3]}, v{U[k-2]}"))
        o.append(I(f"v_mul_f32 v{U[7]}, v{G[7]}, v{U[7]}"))
        o.append(I(f"v_cvt_pk_bf16_f32 v{O+3}, v{U[6]}, v{U[7]}"))
        o.append(I(f"buffer_store_dwordx4 {vr(O,4)}, v{vH if t<4 else vH4}, {srd(WS)}, s{sHst} offen offset:{(t%4)*1024} {['sc1','sc0 sc1','sc1 nt','sc0 sc1 nt',''][OPT['stf']]}",f"st{p}"))
        return o
    D.setup_lane([R1,R2],[sSeg1,sSeg2],sT[:4]); D.setup_io(sF0,sN,sT[:4])
    e(f"s_cmp_ge_u32 s{sF0}, 125"); e(f"s_cselect_b32 s52, {OOB}, 0"); e(f"v_or_b32 v251, s52, v{vH}"); e(f"v_or_b32 v252, s52, v{vH4}")
    e(f"s_mov_b32 s48, s{sC}"); e(f"s_mov_b32 s49, s{sC}"); e("s_mov_b32 s50, 1.0"); e("s_mov_b32 s51, 1.0")
    e(f"s_add_u32 s{t0}, s{sSeg2}, 147456"); e(f"v_add_u32 v249, s{t0}, v{vH}")
    for q in range(4): e(f"ds_write_b128 v249, {vr(176+4*q,4)} offset:{q*1024}")
    unpark=[I(f"ds_read_b128 {vr(176+4*q,4)}, v249 offset:{q*1024}") for q in range(4)]
    P.extend(stamp(52))
    P.extend(flat(pro[OPT['early']:]))
    P.extend(stamp(53))
    P.append(WAIT(vm=["x0","w0a"]+([] if OPT['split0'] else ["w0"]),lgkm=0)); e("s_barrier")
    P.extend(stamp(1))
    P.extend(reads(0))
    first=[]
    if OPT['npre']==1:
        first=xdma(1)+wdma(1); P.extend(flat(first[:OPT['pre1']])); first=first[OPT['pre1']:]
    P.append(WAIT(lgkm=0))
    eA=[epi(0,t) for t in range(5)]
    held=[(x[-2],x.pop()) for x in eA] if OPT['dst'] else []
    pool=Pool(flat(eA))
    dq=[]
    for s in range(max(2,OPT['npre']),14):
        if s<=6: dq.append((max(0,2*(s-4)+1),xdma(s)))
        dq.append((max(0,2*(s-4)+1),wdma(s)))
        if s==8: dq.append((0,[[I(f"buffer_load_dword v14, v15, {srd(DBG)}, 0 offen sc1","clr")]]))
    w2q=[(max(OPT['w2p0'],LOC[b][1]),D.w2dma(b)) for b in range(10)]
    cur=first
    for Pn in range(28):
        p,s,h=Pn//14,Pn//2,Pn%2
        CH=(p==1 or OPT['chainA']) and not (OPT['split0'] and s==0)
        mf=[]
        for jq in range(2 if CH else 4):
            for t in range(5):
                for ks in ((0,1) if CH else (h,)):
                    q = (2*jq+h) if CH else jq
                    j = (2*jq+ks) if CH else jq
                    d=vr(ACC(p,q,t),4)
                    mf.append(mfma(d,vr(AF(h,j),4),XF((2*(s%7)+ks)*5+t),"0" if (s%7==0 and ks==0) else d))
        f=[]
        if Pn<27:
            rd=reads(Pn+1)
            if Pn==0 and OPT['split0']:
                xs=[x for x in rd if "b128" in x.op]; tr=[x for x in rd if "b128" not in x.op]
                f+=spread(xs,0,5)+[(7.9,WAIT(vm=["w0"])),(7.95,I("s_barrier"))]+spread(tr,8,16)
            else: f+=spread(rd,0,min(12,len(rd)))
        items=[]
        while len(items)<(OPT['rateA'] if Pn<OPT['nA'] else OPT['rate']):
            if not cur:
                if dq and dq[0][0]<=Pn: cur=dq.pop(0)[1]
                elif w2q and w2q[0][0]<=Pn: cur=w2q.pop(0)[1]
                else: break
            items.append(cur.pop(0))
        n=len(items)
        for k,it in enumerate(items):
            pos=1+k*(19 if Pn else 14)/max(n,5)
            for x in it:
                f.append((pos-1 if x.cls=="salu" else (pos+1 if x.cls=="valu" else pos),x))
        if Pn==16: f+=spread(unpark,8,12)
        if Pn==OPT['gop']: f.append((19,I(f"buffer_store_dword v{vOne}, v250, {srd(DBG)}, 0 offen offset:4 sc1","go")))
        if Pn>=OPT['dst'] and not dq and (w2only:=all(x.tag[0]=="b" for it in cur for x in it if x.cls=="vm")):
            for k in range(2):
                if held and all(y is not held[0][0] for y in pool.q[:400]) and not any(y.wr&held[0][1].rd for y in pool.q): f.append((18-8*(1-k)+1,held.pop(0)[1]))
        tl=[]
        if h==0: tl=[WAIT(vm=[f"w{s+1}",f"x{s+1}"],lgkm=0),I("s_barrier")]
        elif Pn<27: tl=[WAIT(lgkm=0)]
        n0=len(P)
        if OPT['p2']:
            P.extend(pack2(mf,f,pool if p==1 else None,(OPT['capc']-2 if Pn<OPT['cp'] and p==1 else 0),lo=(2 if Pn==14 else 0),tail=tl,dsend=16))
        else:
            P.extend(pack(mf,f,pool if p==1 else None,(OPT['capc'] if Pn<OPT['cp'] else OPT['cap']),lo=(2 if Pn==14 else 0))); P.extend(tl)
        if OPT['est']: print("ffn period",Pn,estimate(P[n0:]),"pool",len(pool.q))
        if Pn==13: P.extend(stamp(2))
        if h==0: P.extend(stamp(32+s))
    assert not dq
    print("left: epiA ops",len(pool.q),"w2 items",len(w2q))
    P.extend(stamp(3))
    P.extend(pool.q)
    P.extend([x[1] for x in held])
    P.extend(flat(cur))
    for _,g_ in w2q: P.extend(flat(g_))
    e(f"s_add_u32 s{sHst}, s{sHst}, {2*NT*1024}")
    S=[WAIT(vm=["b0"])]+D.treads(0); WQ=[]
    for j in range(8):
        S+=[WAIT(vm=[f"b{j+1}"])]+D.treads(j+1)+[WAIT(lgkm=8)] if j<7 else [WAIT(lgkm=0)]
        if OPT['pA']==5+j: S.append(D.poll("pollA"))
        if j>=8-OPT['weave']: WQ+=[(0,it) for it in D.w2dma(10+j)]
        else: S+=[x for x in flat(D.w2dma(10+j)) if not (x.cls=="vm" and j>=8-OPT['skipS'])]
        if j+1==OPT['nin']: n_in=len(S)
        if j+1==OPT['sBs']+OPT['nin']:
            S+=[WAIT(vm=["st1"]),I(f"buffer_atomic_add v{vOne}, v{vFl}, {srd(WS)}, 0 offen offset:512","sigB")]+stamp(10)
    E=[]
    for t in range(5):
        E+=epi(1,t)+stamp(46+t)
        if t==OPT['sAt']: E.append("sigA")
    k0=0
    for k,x in enumerate(E):
        if x=="sigA":
            P.append(WAIT(vm=["st0","clr"])); check_or_spin(15,0,1,DBG,14)
            e(f"buffer_atomic_add v{vOne}, v{vFl}, {srd(WS)}, 0 offen","sigA")
        else: P.append(x)
        k1=max(k0,n_in*(k+1)//len(E))
        while 0<k1<len(S) and S[k1-1].cls=="ds" and S[k1].cls=="ds": k1+=1
        P.extend(S[k0:k1]); k0=k1
    P.extend(stamp(4))
    P.extend(S[k0:])
    D.main(WQ,OPT['lead'],OPT['pah'])

HROW=[118784,49152,118784,65536,81920,139264,49152,0,118784,65536,16384,32768,98304,81920,139264,49152,0,118784]
hR=[[1,2,4,5],[64,65,66,67],[68,69,70,71]]; hsN,hsF0,hsQ=58,59,57
HD=Down(NTT=3,vt=(240,241,242),vW2=3,vWo=6,vH=231,vHt=(231,231),sLast=47,vPoll=12,vPoll2=14,vPA=72,vPO=73,vSA=74,vO=75,vRW=76,vRR=77,vS=80,vRT=96,
        sW2o=[None,40,41,42],sWr2=43,sNW2=47,sNH=48,sD=49,sWr3=50,sNWo=51,sNHo=52,sHld=53,sHO=54,sRow=55,
        m0=lambda b:(hsQ,HROW[b]),rd=lambda b:(hR[HROW[b]>>16],HROW[b]&0xffff),red=(0,4096,16384),
        ACC=lambda q,t:16+(q*3+t)*4,AF=lambda buf,q:160+16*buf+4*q,aSt=128,aH=0,nAS=10,NSL=10,vHS=0)
def helper_setup(regs):
    t=sT[:4]; t=[66,67,70,71]
    mksrd(WO,44,401408); mksrd(WD,52,1605632); mksrd(OUT,56,1835008)
    e(f"s_mul_i32 s{hsF0}, s{sXCD}, 3"); e(f"s_add_u32 s{hsF0}, s{hsF0}, 104"); e(f"s_add_u32 s61, s{sXCD}, 26"); e(f"s_lshl_b32 s{hsQ}, s{sW}, 12")
    keep=(HD.vW2,HD.vWo); HD.vW2,HD.vWo=regs[0],regs[1]
    HD.setup_w(hsF0,61,hsN,t)
    e(f"s_cmp_gt_u32 s{hsN}, 6"); e(f"s_cselect_b32 s66, {OOB}, 0"); e(f"v_or_b32 v{regs[0]}, s66, v{regs[0]}"); e(f"v_or_b32 v{regs[1]}, s66, v{regs[1]}")
    HD.vW2,HD.vWo=keep
    HD.setup_lane([regs[2:6]],[hsQ],t)
    e("v_lshlrev_b32 v231, 4, v0")
    HD.setup_io(hsF0,hsN,t)
    for j in range(8): e(f"v_accvgpr_write_b32 a{248+j}, v{72+j}")
hwin=[0]
def hstage(b):
    o=[]; w=HROW[b]>>16
    if w!=hwin[0]: o+=[I(f"v_add_u32 v{r}, {((w-hwin[0])<<16)&0xffffffff}, v{r}") for r in hR[0]]; hwin[0]=w
    return o+HD.treads(b,lambda b_:(hR[0],HROW[b_]&0xffff))

def attn():
    sAT,sHG=72,73
    sXb,sWb=74,75
    sWo={(0,0):76,(0,1):77,(1,0):78,(1,1):79,(2,0):80,(2,1):81}
    sK,sD0,sD1,sO,sC=82,83,84,85,86
    mE,mM0,mM1,mZ=88,90,100,68
    t0,t1=66,67; t2_,t3=70,71
    vX=[1,2,3,4,5]; vW=6; vXR=(7,8); vR0=(9,10); vR1=(11,12); vRq=(13,14); vPad=15
    vA=(224,225)
    TBL=159744; XB=98304
    Q=lambda u,tl: 16+(u*2+tl)*4
    K=lambda t,tl: 80+(t*2+tl)*4
    V=lambda d,t: 152+d*36+t*4
    XA=lambda buf,t: buf*36+4*t
    WF=lambda buf,m,tl: 72+buf*24+(2*m+tl)*4
    e("L_attn:")
    if OPT['ford']: e(f"s_sub_u32 s{sJ}, s{sJ}, 23")
    e(f"s_lshr_b32 s{sAT}, s{sXCD}, 2"); e(f"s_lshl_b32 s{sAT}, s{sAT}, 3"); e(f"s_add_u32 s{sAT}, s{sAT}, s{sJ}"); e(f"s_sub_u32 s{sAT}, s{sAT}, 1"); e(f"s_and_b32 s{sHG}, s{sXCD}, 3")
    e("v_lshrrev_b32 v230, 3, v0"); e("v_and_b32 v231, 7, v0")
    e(f"s_and_b32 s{t0}, s{sW}, 1"); e(f"s_lshl_b32 s{t1}, s{t0}, 2")
    e("v_lshrrev_b32 v232, 1, v230"); e(f"v_or_b32 v232, s{t1}, v232"); e("v_xor_b32 v232, v232, v231"); e("v_lshlrev_b32 v232, 4, v232")
    e(f"s_lshl_b32 s{t2_}, s{sAT}, 7"); e(f"s_lshl_b32 s{t3}, s{sW}, 3"); e(f"s_add_u32 s{t2_}, s{t2_}, s{t3}")
    e(f"v_add_u32 v{vX[0]}, s{t2_}, v230"); e(f"v_mul_u32_u24 v{vX[0]}, 896, v{vX[0]}"); e(f"v_add_u32 v{vX[0]}, v{vX[0]}, v232")
    for j in range(1,5): e(f"v_add_u32 v{vX[j]}, {32*j*896}, v{vX[0]}")
    e(f"s_cmp_lt_u32 s{t2_}, 16"); e(f"s_cselect_b32 s{t0}, {OOB}, 0"); e(f"v_or_b32 v{vX[0]}, s{t0}, v{vX[0]}")
    e(f"s_cmp_ge_u32 s{sW}, 2"); e(f"s_cselect_b32 s{t0}, {OOB}, 0"); e(f"v_or_b32 v{vX[4]}, s{t0}, v{vX[4]}")
    e("v_lshrrev_b32 v230, 4, v0"); e("v_and_b32 v231, 15, v0")
    e(f"s_and_b32 s{t0}, s{sW}, 2"); e(f"s_lshl_b32 s{t0}, s{t0}, 1"); e(f"v_or_b32 v232, s{t0}, v230"); e("v_lshlrev_b32 v232, 1, v232"); e("v_xor_b32 v232, v232, v231")
    e(f"s_lshl_b32 s{t0}, s{sW}, 2"); e(f"v_add_u32 v{vW}, s{t0}, v230"); e(f"v_mul_u32_u24 v{vW}, 2688, v{vW}")
    e(f"v_lshl_add_u32 v{vW}, v232, 4, v{vW}"); e(f"s_mul_i32 s{t0}, s{sHG}, 224"); e(f"v_add_u32 v{vW}, s{t0}, v{vW}")
    e(f"v_mov_b32 v233, {OOB}"); e("v_cmp_lt_u32 vcc, 13, v232"); e(f"v_cndmask_b32 v{vW}, v{vW}, v233, vcc")
    sWr,sD,sNW,sKx,sKt=92,93,99,87,3
    e(f"s_lshl_b32 s{t0}, s{sHG}, 1"); e(f"s_add_u32 s{t0}, s{t0}, s{sAT}")
    if OPT['arot']==7:
        e(f"s_mul_i32 s{t1}, s{t0}, 9363"); e(f"s_lshr_b32 s{t1}, s{t1}, 16"); e(f"s_mul_i32 s{t1}, s{t1}, 7"); e(f"s_sub_u32 s{t0}, s{t0}, s{t1}")
    elif OPT['arot']==2: e(f"s_and_b32 s{t0}, s{t0}, 1"); e(f"s_mul_i32 s{t0}, s{t0}, 3")
    elif OPT['arot']==4: e(f"s_and_b32 s{t0}, s{sAT}, 3"); e(f"s_lshl_b32 s{t0}, s{t0}, 1")
    else: e(f"s_mov_b32 s{t0}, 0")
    e(f"s_sub_u32 s{sWr}, 6, s{t0}"); e(f"s_lshl_b32 s{sKx}, s{t0}, 7"); e(f"s_lshl_b32 s{sKt}, s{t0}, 9")
    e(f"s_mul_i32 s{t1}, s{t0}, {64*2688}"); e(f"v_add_u32 v{vW}, s{t1}, v{vW}"); e(f"s_mov_b32 s{sNW}, {-13*32*2688}")
    e(f"s_lshl_b32 s{sXb}, s{sW}, 10"); e(f"s_add_u32 s{sXb}, s{sXb}, {XB}")
    e(f"s_mul_i32 s{sWb}, s{sW}, 6144")
    for (m,j),r in sWo.items():
        imm=((2*m+j)%4)*1024
        e(f"s_mov_b32 s{r}, {4096+m*896+16*j*2688-imm}")
    e(f"s_lshl_b32 s{t0}, s{sW}, 6"); e(f"v_add_u32 v234, s{t0}, v0"); e("v_lshlrev_b32 v235, 2, v234")
    e("s_waitcnt lgkmcnt(0)")
    mksrd(GW,54,896); mksrd(X,40,1835008,14336); mksrd(WA,42,1204224,4096)
    P.extend(stamp(0))
    if OPT['ap1']:
        sV=46
        e(f"s_lshl_b32 s{sV}, s{sAT}, 2"); e(f"s_add_u32 s{sV}, s{sV}, s{sHG}"); e(f"s_lshl_b32 s{sV}, s{sV}, 2"); e(f"s_add_u32 s{sV}, s{sV}, s{sW}")
        e("v_min_u32 v240, 47, v0"); e("v_mul_u32_u24 v241, 21846, v240"); e("v_lshrrev_b32 v241, 16, v241"); e("v_mul_u32_u24 v242, 3, v241"); e("v_sub_u32 v242, v240, v242")
        e(f"s_lshl_b32 s{t0}, s{sV}, 4"); e(f"v_add_u32 v243, s{t0}, v241"); e("v_mul_u32_u24 v243, 896, v243"); e("v_lshl_add_u32 v243, v242, 8, v243"); e("v_add_u32 v243, 128, v243")
        e(f"s_and_b32 s{t0}, s{sV}, 63"); e("v_min_u32 v241, 13, v241"); e("v_lshlrev_b32 v242, 7, v242"); e(f"v_add_u32 v242, s{t0}, v242"); e("v_add_u32 v242, 64, v242")
        e("v_mul_u32_u24 v242, 3584, v242"); e("v_lshl_add_u32 v242, v241, 8, v242")
        e(f"s_cmp_ge_u32 s{sV}, 192"); e(f"s_cselect_b32 s{WU}, s50, s48"); e(f"s_cselect_b32 s{WU+1}, s51, s49")
        e(f"s_cmp_lt_u32 s{sV}, 128"); e(f"s_cselect_b32 s{WU}, s40, s{WU}"); e(f"s_cselect_b32 s{WU+1}, s41, s{WU+1}"); e(f"s_cselect_b64 vcc, -1, 0")
        e(f"s_mov_b32 s{WU+2}, 1605632"); e(f"s_cselect_b32 s{WU+2}, 1835008, s{WU+2}"); e(f"s_mov_b32 s{WU+3}, 0x20000")
        e("v_cndmask_b32 v242, v242, v243, vcc")
        e(f"buffer_load_dword a140, v242, {srd(WU)}, 0 offen","pf")
    e(f"buffer_load_dword v236, v235, {srd(GW)}, 0 offen","gw")
    def xdma(c):
        o=[I(f"s_mov_b32 s{sK}, s{sKx}"),I(f"s_add_u32 s{sKx}, s{sKx}, 128"),ATOM(f"s_cmp_eq_u32 s{sWr}, {c}",f"s_cselect_b32 s{sKx}, 0, s{sKx}")]
        for j in range(5):
            o.append(I(f"s_add_u32 m0, s{sXb}, {(c%3)*20480+j*4096}"))
            o.append(dma(vX[j],X,f"s{sK}",0,f"x{c}"))
        return o
    def wdma(k):
        o=[]
        for m in range(3):
            if m!=1: o.append(I(f"s_add_u32 m0, s{sWb}, {(k%4)*24576+(4096 if m==2 else 0)}"))
            for j in range(2): o.append(dma(vW,WA,f"s{sWo[(m,j)]}",((2*m+j)%4)*1024,f"w{k}"))
        if k%2==1:
            o[-1:-1]=[ATOM(f"s_cmp_eq_u32 s{sWr}, {k//2}",f"s_cselect_b32 s{sD}, s{sNW}, {32*2688}")]
            o.append(I(f"v_add_u32 v{vW}, s{sD}, v{vW}"))
        else: o.append(I(f"v_add_u32 v{vW}, {32*2688}, v{vW}"))
        return o
    pro=xdma(0)+wdma(0)+wdma(1)
    cutp=[k for k,x in enumerate(pro) if x.cls=="vm"][OPT['aearly']-1]+1 if OPT['aearly'] else 0
    P.extend(pro[:cutp])
    aq=[(0,xdma(1)),(0,wdma(2)),(0,wdma(3)),(0,xdma(2))]
    for k in range(4,14):
        aq.append((k-4+(1 if k-4<OPT['amid'] else 0),wdma(k)))
        if k%2==1 and (k+1)//2<=6: aq.append((2*((k+1)//2-3)+1+(1 if 2*((k+1)//2-3)+1<OPT['amid'] else 0),xdma((k+1)//2)))
    acur=[]
    mksrd(WS,60,WSN); mksrd(DBG,58,256)
    HELP=OPT['ntt']==4
    APW=[94,95,96,97] if not (OPT['stamp'] or OPT['probe']!=-2) else [12,13,14,15]
    if OPT['apW']>=0:
        if APW[0]==12: APW=[4+60+0,0,0,0]
    APW=[48,49,50,51]
    if HELP: e(f"s_and_b32 s{t0}, s{sXCD}, 3"); e(f"s_cmp_eq_u32 s{t0}, 3"); e(f"s_cselect_b32 s{t0}, 1, 0"); e(f"s_add_u32 s{hsN}, s{sJ}, s{t0}")
    if HELP:
        helper_setup([232,233,234+9,245,246,247])
        for j,r in enumerate([232,243,245,246,247,233]): e(f"v_accvgpr_write_b32 a{122+j}, v{r}")
    else: mksrd(WO,44,401408); mksrd(WD,52,1605632)
    e(f"s_sub_u32 s{t0}, s{sJ}, 1"); e(f"s_lshl_b32 s{t0}, s{t0}, 2"); e(f"s_add_u32 s{t0}, s{t0}, s{sW}"); e(f"s_lshl_b32 s{t0}, s{t0}, 6")
    e(f"v_add_u32 v227, s{t0}, v0"); e("v_lshlrev_b32 v226, 7, v227"); e(f"s_mov_b32 s36, {2048*128}")
    if OPT['apW']>=0:
        e(f"s_lshl_b32 s{t0}, s{sAT}, 2"); e(f"s_add_u32 s{t0}, s{t0}, s{sHG}"); e(f"s_lshl_b32 s{t0}, s{t0}, 2"); e(f"s_add_u32 s{t0}, s{t0}, s{sW}")
        e(f"s_cmp_ge_u32 s{t0}, 128"); e(f"s_cselect_b32 s{WU}, s{APW[2]}, s{APW[0]}"); e(f"s_cselect_b32 s{WU+1}, s{APW[3]}, s{APW[1]}"); e(f"s_mov_b32 s{WU+2}, 1605632"); e(f"s_mov_b32 s{WU+3}, 0x20000")
        e(f"s_and_b32 s{t0}, s{t0}, 127"); e(f"s_mul_i32 s{t0}, s{t0}, 49"); e("v_min_u32 v238, 48, v0"); e(f"v_add_u32 v238, s{t0}, v238"); e("v_lshlrev_b32 v238, 8, v238"); e("v_add_u32 v238, 128, v238")
        e("v_accvgpr_write_b32 a129, v238")
    if OPT['apA']>=0 or OPT['apB']>=0:
        e("v_mul_u32_u24 v228, 9363, v227"); e("v_lshrrev_b32 v228, 22, v228"); e("v_mul_u32_u24 v228, 448, v228"); e("v_add_u32 v228, v228, v227"); e("v_lshlrev_b32 v228, 7, v228")
        e("v_cmp_lt_u32 vcc, 1791, v227"); e(f"v_mov_b32 v229, {OOB}"); e("v_cndmask_b32 v227, v228, v229, vcc"); e(f"v_add_u32 v239, {448*128}, v227"); e("v_accvgpr_write_b32 a128, v239")
        for j in range(1,4): e(f"s_mov_b32 s{36+j}, {3584*128*j}")
    e("v_lshrrev_b32 v230, 4, v0"); e("v_and_b32 v231, 15, v0")
    e("v_lshrrev_b32 v232, 1, v231"); e("v_xor_b32 v232, v232, v230"); e("v_lshlrev_b32 v232, 4, v232")
    e("v_lshl_add_u32 v232, v231, 7, v232"); e(f"v_add_u32 v{vXR[0]}, {XB}, v232"); e(f"v_xor_b32 v{vXR[1]}, 64, v{vXR[0]}")
    e("v_bfe_u32 v232, v0, 2, 2"); e("v_and_b32 v233, 3, v0")
    e("v_and_b32 v237, 1, v230"); e("v_lshl_add_u32 v238, v237, 2, v232"); e("v_lshlrev_b32 v238, 2, v238")
    e("v_mul_u32_u24 v237, 12288, v237"); e("v_lshrrev_b32 v239, 1, v230"); e("v_lshl_add_u32 v237, v239, 10, v237"); e("v_lshl_add_u32 v237, v232, 8, v237")
    e(f"s_mul_i32 s{t0}, s{sW}, 7")
    e(f"v_add_u32 v239, s{t0}, v233")
    e("v_xor_b32 v240, v239, v238"); e(f"v_lshl_add_u32 v{vR0[0]}, v240, 3, v237")
    e("v_add_u32 v239, 4, v239")
    e("v_and_b32 v240, 3, v239"); e("v_or_b32 v240, 28, v240"); e("v_cmp_eq_u32 vcc, 3, v233"); e("v_cndmask_b32 v239, v239, v240, vcc")
    e("v_xor_b32 v240, v239, v238"); e(f"v_lshl_add_u32 v{vR1[0]}, v240, 3, v237")
    e(f"v_cndmask_b32 v{vPad}, 0, 1, vcc")
    e(f"v_add_u32 v{vR0[1]}, 49152, v{vR0[0]}"); e(f"v_add_u32 v{vR1[1]}, 49152, v{vR1[0]}")
    e("v_lshl_add_u32 v240, v230, 3, v232"); e("v_lshlrev_b32 v240, 3, v240"); e(f"v_add_u32 v240, {TBL}, v240")
    e(f"v_cndmask_b32 v{vRq[0]}, v{vR1[0]}, v240, vcc"); e(f"v_cndmask_b32 v{vRq[1]}, v{vR1[1]}, v240, vcc")
    P.append(WAIT(vm=["gw"]))
    e("v_and_b32 v244, 0xffff, v236"); e("v_mov_b32 v245, 0"); e("v_lshrrev_b32 v246, 16, v236"); e("v_mov_b32 v247, 0")
    e("v_lshlrev_b32 v234, 4, v234"); e(f"v_add_u32 v234, {TBL}, v234")
    e("ds_write_b128 v234, v[244:247]")
    def reads(k):
        sl=k%4; h=sl//2; buf=k%2
        pre=[]; tr=[]
        for a in range(2):
            imm=(sl%2)*24576+a*6144
            pre.append(I(f"s_add_u32 s{(sD0,sD1)[a]}, s{sKt}, {(256*(k%2)+32*a-imm)&0xffffffff}"))
            pre.append(I(f"v_mad_i32_i24 v{vA[a]}, v{vPad}, s{(sD0,sD1)[a]}, v{vRq[h]}"))
        for m in range(3):
            for tl in range(2):
                for a in range(2):
                    ad = vR0[h] if tl==0 else (vA[a] if m==0 else vR1[h])
                    tr.append(I(f"ds_read_b64_tr_b16 {ar(WF(buf,m,tl)+2*a,2)}, v{ad} offset:{(sl%2)*24576+a*6144+m*2048}"))
        xs=[I(f"ds_read_b128 {ar(XA(buf,t),4)}, v{vXR[k%2]} offset:{((k//2)%3)*20480+t*2048}") for t in range(9)]
        if k%2==1: pre+=[I(f"s_add_u32 s{sKt}, s{sKt}, 512"),ATOM(f"s_cmp_eq_u32 s{sWr}, {k//2}",f"s_cselect_b32 s{sKt}, 0, s{sKt}")]
        return pre+tr[:2]+xs+tr[2:]
    P.extend(pro[cutp:])
    P.append(WAIT(vm=["x0","w0"],lgkm=0)); e("s_barrier")
    P.extend(stamp(1))
    P.extend(reads(0))
    if OPT['amid']: P.append(WAIT(lgkm=0))
    else: P.append(WAIT(vm=["w1"],lgkm=0)); e("s_barrier")
    cA0,cB0,cA1,cB1,vNeg,vH,vH4,vSt,vFl=226,227,228,229,230,231,250,251,252
    import struct
    f2u=lambda x: struct.unpack("<I",struct.pack("<f",x))[0]
    n0=len(P)
    e("v_lshrrev_b32 v232, 4, v0"); e("v_and_b32 v233, 15, v0")
    e("v_and_b32 v234, 1, v233"); e(f"v_cmp_eq_u32 s[{mE}:{mE+1}], 0, v234")
    e("v_lshl_add_u32 v235, v232, 2, v234"); e(f"v_cmp_le_u32 s[{mM0}:{mM0+1}], v235, v233")
    e("v_add_u32 v235, 2, v235"); e(f"v_cmp_le_u32 s[{mM1}:{mM1+1}], v235, v233")
    e("v_mov_b32 v236, 0xffff0000"); e("v_mov_b32 v237, 0xffff"); e(f"v_lshlrev_b32 v{vH}, 4, v0"); e(f"v_add_u32 v{vH4}, 4096, v{vH}")
    e(f"v_cndmask_b32 v236, v236, v237, s[{mE}:{mE+1}]")
    e(f"v_cndmask_b32 v{cA0}, 0, v236, s[{mM0}:{mM0+1}]"); e(f"v_xor_b32 v{cB0}, v{cA0}, v236")
    e(f"v_cndmask_b32 v{cA1}, 0, v236, s[{mM1}:{mM1+1}]"); e(f"v_xor_b32 v{cB1}, v{cA1}, v236")
    e(f"v_mov_b32 v{vNeg}, 0xf149f2ca")
    P.append(ATOM(f"s_cmp_eq_u32 s{sAT}, 0",f"s_cselect_b64 s[{mZ}:{mZ+1}], -1, 0"))
    e(f"s_mov_b32 s{sC}, {f2u(28**-0.5*math.log2(math.e)):#x}"); e(f"s_mov_b32 s{sK}, 0x3fb8aa3b")
    e(f"s_lshl_b32 s{t0}, s{sHG}, 2"); e(f"s_add_u32 s{t0}, s{t0}, s{sW}"); e(f"s_add_u32 s{t0}, s{t0}, 56"); e(f"s_mul_i32 s{t0}, s{t0}, {NT}")
    e(f"s_lshl_b32 s{t1}, s{sAT}, 3"); e(f"s_add_u32 s{t0}, s{t0}, s{t1}"); e(f"s_lshl_b32 s{t0}, s{t0}, 10"); e(f"s_add_u32 s{sO}, s{t0}, {H0}")
    e(f"s_mul_i32 s{t0}, s{sHG}, {SSTR}"); e(f"s_lshl_b32 s{t1}, s{sAT}, 9"); e(f"s_add_u32 s{t0}, s{t0}, s{t1}"); e(f"s_add_u32 s{t0}, s{t0}, {S0}")
    P.append(ATOM(f"s_cmp_eq_u32 s{sW}, 0",f"s_cselect_b32 s{t0}, s{t0}, {OOB}"))
    e(f"v_lshlrev_b32 v{vSt}, 2, v0"); e(f"v_add_u32 v{vSt}, s{t0}, v{vSt}")
    e(f"s_lshl_b32 s{t0}, s{sAT}, 2"); e(f"s_add_u32 s{t0}, s{t0}, s{sHG}"); e(f"s_add_u32 s{t0}, s{t0}, 208"); e(f"s_lshl_b32 s{t0}, s{t0}, 7")
    e("v_min_u32 v238, 1, v0"); e("v_lshlrev_b32 v238, 31, v238"); e(f"v_or_b32 v{vFl}, s{t0}, v238")
    apool=Pool(P[n0:]); del P[n0:]
    U=range(8)
    A=lambda u: 232+u; B=lambda u: 240+u; M=lambda u: 170+u; T=lambda u: 178+u; L=lambda u: 206+u
    SP=lambda u: K(u,1); SO=lambda u: Q(u,1); PQ=lambda u: Q(u,0)
    ZC=(224,225)
    def pk(d,a): return I(f"v_cvt_pk_bf16_f32 v{d}, v{a}, v{a+1}")
    def pack4(d,a,b): return [pk(d,a),pk(d+1,a+2),pk(d+2,b),pk(d+3,b+2)]
    def seq(groups,cap=2):
        f=[]; g=0; room=cap
        for mg,ins in groups:
            for x in ins:
                if g<mg: g=mg; room=cap
                if cost(x)>room: g+=1; room=cap
                f.append((g,x)); room-=cost(x)
        return f
    for k in range(14):
        buf=k%2; mf=[]
        c=lambda d: "0" if k==0 else d
        two=lambda n: [(x,tl) for x in range(n) for tl in range(2)] if k==13 else [(x,tl) for tl in range(2) for x in range(n)]
        for u,tl in two(8): d=vr(Q(u,tl),4); mf.append(mfma(d,ar(WF(buf,0,tl),4),ar(XA(buf,u+1),4),c(d)))
        for t,tl in two(9): d=vr(K(t,tl),4); mf.append(mfma(d,ar(WF(buf,1,tl),4),ar(XA(buf,t),4),c(d)))
        for tl in range(2):
            for t in range(9): d=vr(V(tl,t),4); mf.append(mfma(d,ar(XA(buf,t),4),ar(WF(buf,2,tl),4),c(d)))
        f=[]
        if k<OPT['amid']:
            f+=[(25.9,WAIT(vm=[f"w{k+1}",f"x{(k+1)//2}"])),(25.95,I("s_barrier"))]+spread(reads(k+1),26,47)
        elif k<13: f+=spread(reads(k+1),0,36)
        dm=[]; nd=0
        while nd<OPT['arate']:
            if not acur:
                if aq and aq[0][0]<=k: acur=list(aq.pop(0)[1])
                else: break
            x=acur.pop(0); dm.append(x); nd+=(x.cls=="vm")
            while acur and acur[0].cls=="valu": dm.append(acur.pop(0))
        if k==8:
            dm.append(I("v_mov_b32 v249, 0")); dm.append(I(f"buffer_load_dword v248, v249, {srd(DBG)}, 0 offen sc1","clr"))
        if OPT['apf'] and OPT['apfk']<=k<OPT['apfk']+3:
            kk=k-OPT['apfk']
            if kk==0: dm+=[I(f"buffer_load_dword a{120+j}, v226, {srd(WO)}, {['0','s36'][j]} offen","pf") for j in range(2)]
        if k==OPT['apW']: dm+=[I("v_accvgpr_read_b32 v238, a129"),I(f"buffer_load_dword a138, v238, {srd(WU)}, 0 offen","pf")]
        for base,k0,av in ((130,OPT['apA'],227),(134,OPT['apB'],239)):
            if k0>=0 and k0<=k<k0+2:
                if av==239 and k==k0: dm.append(I("v_accvgpr_read_b32 v239, a128"))
                dm+=[I(f"buffer_load_dword a{base+2*(k-k0)+j}, v{av}, {srd(WD)}, {['0','s37','s38','s39'][2*(k-k0)+j]} offen","pf") for j in range(2)]
        if HELP:
            if k==8:
                assert all(x.tag[0]!="x" for x in dm+acur+flat([g_ for _,g_ in aq]) if x.cls=="vm")
                f+=spread([I(f"v_accvgpr_read_b32 v{r}, a{122+j}") for j,r in enumerate([HD.vW2]+hR[0])],44,51)
            for b in {9:[0],10:[1],11:[2,3,4],12:[5,6,7],13:list(range(8,8+OPT['hp13']))}.get(k,[]):
                assert not acur
                dm+=flat(HD.w2dma(b))
            sb={10:[0],11:[1],12:[2,3]}.get(k,[])
            if sb: f+=spread([WAIT(vm=[f"b{sb[-1]}"])]+flat([hstage(b) for b in sb]),36.5,50)
        pos=0; nd=0
        for x in dm:
            if x.cls=="vm": nd+=1
            pos=max(pos+0.001,4.3*nd-(2 if x.cls=="vm" else (1 if x.cls=="valu" else -1))); f.append((pos,x))
        if k==13:
            assert not apool.q and not aq and not acur
            for u in U:
                mf.append(mfma(vr(SP(u),4),vr(K(u,0),4),vr(Q(u,0),4),"0")); mf.append(mfma(vr(SO(u),4),vr(K(u+1,0),4),vr(Q(u,0),4),"0"))
            G=[(2*u+5,pack4(Q(u,0),Q(u,0),Q(u,1))) for u in U]
            zc=[]
            for h in range(2):
                q=[Q(4*h+x,1) for x in range(4)]
                zc.append([I(f"v_permlane16_swap_b32 v{q[2]}, v{q[3]}"),I(f"v_permlane16_swap_b32 v{q[0]}, v{q[1]}"),I(f"v_permlane32_swap_b32 v{q[1]}, v{q[3]}"),
                           I(f"v_mul_f32 v{ZC[h]}, s{sK}, v{q[3]}"),I(f"v_min_f32 v{ZC[h]}, 0x42c80000, v{ZC[h]}"),I(f"v_exp_f32 v{ZC[h]}, v{ZC[h]}"),I(f"v_add_f32 v{7+h}, 1.0, v{ZC[h]}")])
            zi=[x for pr in zip(*zc) for x in pr]
            for t in range(9):
                G.append((16+2*t+5,pack4(K(t,0),K(t,0),K(t,1))))
                if t in (1,3,5): G.append((0,zi[:2] if t==1 else (zi[2:4] if t==3 else zi[4:6])))
            G.append((0,zi[6:8]))
            for d in range(2):
                for t in range(9):
                    G.append((34+9*d+t+4,[pk(V(d,0)+2*t,V(d,t)),pk(V(d,0)+2*t+1,V(d,t)+2)]))
                    if d==0 and t in (2,4,6): G.append((0,zi[8+(t-2):10+(t-2)]))
            f+=seq(G)
        tl=[]
        if k<13: tl=[WAIT(lgkm=0)] if k+1<OPT['amid'] else [WAIT(vm=[f"w{k+2}",f"x{(k+2)//2}"],lgkm=0),I("s_barrier")]
        n0=len(P)
        if OPT['p2']: P.extend(pack2(mf,f,apool if 11<=k<13 else None,tail=tl,dsend=48))
        else: P.extend(pack(mf,f,apool if 11<=k<13 else None)); P.extend(tl)
        if OPT['est']: print("attn period",k,estimate(P[n0:]))
        if k<13: P.extend(stamp(32+k))
    P.extend(stamp(2))
    sE=f"s[{mE}:{mE+1}]"
    n_in0=len(P)
    for u in U:
        e(f"v_cndmask_b32 v{M(u)}, v{SP(u)+1}, v{SP(u)}, {sE}"); e(f"v_cndmask_b32 v{T(u)}, v{SP(u)+3}, v{SP(u)+2}, {sE}")
        e(f"v_cndmask_b32 v{A(u)}, v{SO(u)+1}, v{SO(u)}, {sE}"); e(f"v_cndmask_b32 v{B(u)}, v{SO(u)+3}, v{SO(u)+2}, {sE}")
        if u==0:
            e(f"v_cndmask_b32 v{M(0)}, v{M(0)}, v{vNeg}, s[{mZ}:{mZ+1}]"); e(f"v_cndmask_b32 v{T(0)}, v{T(0)}, v{vNeg}, s[{mZ}:{mZ+1}]")
        e(f"v_cndmask_b32 v{A(u)}, v{M(u)}, v{A(u)}, s[{mM0}:{mM0+1}]"); e(f"v_cndmask_b32 v{B(u)}, v{T(u)}, v{B(u)}, s[{mM1}:{mM1+1}]")
        e(f"v_max_f32 v{M(u)}, v{A(u)}, v{B(u)}")
    def allred(R,op,mid):
        H=(0,4)
        for h in H: e(f"v_permlane32_swap_b32 v{R(h)}, v{R(h+2)}"); e(f"v_permlane32_swap_b32 v{R(h+1)}, v{R(h+3)}")
        for h in H: e(f"{op} v{R(h)}, v{R(h)}, v{R(h+2)}"); e(f"{op} v{R(h+1)}, v{R(h+1)}, v{R(h+3)}")
        for h in H: e(f"v_permlane16_swap_b32 v{R(h)}, v{R(h+1)}")
        for h in H: e(f"{op} v{R(h)}, v{R(h)}, v{R(h+1)}")
        mid(H)
        for h in H: e(f"v_mov_b32 v{R(h+1)}, v{R(h)}")
        for h in H: e(f"v_permlane16_swap_b32 v{R(h)}, v{R(h+1)}")
        for h in H: e(f"v_mov_b32 v{R(h+2)}, v{R(h)}"); e(f"v_mov_b32 v{R(h+3)}, v{R(h+1)}")
        for h in H: e(f"v_permlane32_swap_b32 v{R(h)}, v{R(h+2)}"); e(f"v_permlane32_swap_b32 v{R(h+1)}, v{R(h+3)}")
    def midM(H):
        for h in H: e(f"v_mul_f32 v{M(h)}, s{sC}, v{M(h)}")
    allred(M,"v_max_f32",midM)
    for u in U:
        e(f"v_fma_f32 v{A(u)}, v{A(u)}, s{sC}, -v{M(u)}"); e(f"v_fma_f32 v{B(u)}, v{B(u)}, s{sC}, -v{M(u)}")
    for u in U:
        e(f"v_exp_f32 v{A(u)}, v{A(u)}"); e(f"v_exp_f32 v{B(u)}, v{B(u)}")
        if u: e(f"v_add_f32 v{L(u-1)}, v{A(u-1)}, v{B(u-1)}")
    e(f"v_add_f32 v{L(7)}, v{A(7)}, v{B(7)}")
    def midL(H):
        for h in H: e(f"v_rcp_f32 v{L(h)}, v{L(h)}")
        for h in H: e(f"v_rcp_f32 v{T(h)}, v{7+h//4}")
        for h in H: e(f"v_mul_f32 v{L(h)}, v{L(h)}, v{ZC[h//4]}")
        e(f"buffer_store_dword v{T(0)}, v{vSt}, {srd(WS)}, 0 offen sc1","st"); e(f"buffer_store_dword v{T(4)}, v{vSt}, {srd(WS)}, 0 offen offset:256 sc1","st")
    allred(L,"v_add_f32",midL)
    if HELP and OPT['hin']:
        assert OPT['hp13']==5
        body=P[n_in0:]; del P[n_in0:]
        S2=[I(f"v_accvgpr_read_b32 v{HD.vWo}, a127")]+[I(f"v_accvgpr_read_b32 v{r}, a{248+j}") for j,r in enumerate((9,10,11,12,14,15,186,187))]
        S2+=[WAIT(vm=["b7"])]+flat([hstage(b) for b in range(4,8)])+[WAIT(lgkm=0)]
        nr=len(S2); S2+=flat([flat(HD.w2dma(b)) for b in range(13,13+OPT['hin'])])
        k0=0; n1=len(body)//3
        for k,x in enumerate(body):
            P.append(x)
            k1=max(k0,nr*(k+1)//n1 if k<n1 else nr+(len(S2)-nr)*(k+1-n1)//(len(body)-n1))
            while 0<k1<len(S2) and (S2[k1].cls=="ds" or (S2[k1-1].cls=="valu" and k1<nr-1)): k1+=1
            P.extend(S2[k0:k1]); k0=k1
    def pre(u):
        return [I(f"v_mul_f32 v{A(u)}, v{A(u)}, v{L(u)}"),I(f"v_mul_f32 v{B(u)}, v{B(u)}, v{L(u)}"),
                I(f"v_cvt_pk_bf16_f32 v{A(u)}, v{A(u)}, v{A(u)}"),I(f"v_cvt_pk_bf16_f32 v{B(u)}, v{B(u)}, v{B(u)}"),
                I(f"v_and_b32 v{PQ(u)}, v{cB0}, v{A(u)}"),I(f"v_and_b32 v{PQ(u)+1}, v{cB1}, v{B(u)}"),
                I(f"v_and_b32 v{PQ(u)+2}, v{cA0}, v{A(u)}"),I(f"v_and_b32 v{PQ(u)+3}, v{cA1}, v{B(u)}")]
    def post(u):
        return pack4(PQ(u),SP(u),SO(u))+[I(f"buffer_store_dwordx4 {vr(PQ(u),4)}, v{vH if u<4 else vH4}, {srd(WS)}, s{sO} offen offset:{(u%4)*1024} sc1","st")]
    P.extend(pre(0))
    for u in range(10):
        if u+1<8: a_=pre(u+1)
        else: a_=[]
        P.extend(a_[:2])
        if u<8: P.append(mfma(vr(SP(u),4),vr(V(0,0)+2*u,4),vr(PQ(u),4),"0"))
        P.extend(a_[2:4])
        if u<8: P.append(mfma(vr(SO(u),4),vr(V(1,0)+2*u,4),vr(PQ(u),4),"0"))
        P.extend(a_[4:])
        if u>=2: P.extend(post(u-2))
        elif u==0: e("v_mov_b32 v13, 1")
    P.extend(stamp(3))
    nb=8+OPT['hp13']
    P.append(WAIT(vm=["clr"])); check_or_spin(249,0,1,DBG,248)
    if HELP:
        if OPT['hin']:
            for j,r in enumerate((9,10,11,12,14,15,186,187)): e(f"v_mov_b32 v{72+j}, v{r}")
            e("L_help:")
            P.append(HD.poll("pollA")); nb+=OPT['hin']
        else:
            e("L_help:")
            e(f"v_accvgpr_read_b32 v{HD.vWo}, a127")
            for j in range(8): e(f"v_accvgpr_read_b32 v{72+j}, a{248+j}")
            P.append(HD.poll("pollA"))
            P.append(WAIT(vm=["b7"])); P.extend(flat([hstage(b) for b in range(4,8)]))
        for b in range(nb,nb+OPT['hwin']): P.extend(flat(HD.w2dma(b)))
        nb+=OPT['hwin']
        if hwin[0]: P.extend([I(f"v_add_u32 v{r}, {(-hwin[0]<<16)&0xffffffff}, v{r}") for r in hR[0]])
        for w in (1,2):
            for q in range(4): e(f"v_add_u32 v{hR[w][q]}, {w<<16}, v{hR[0][q]}")
    P.append(WAIT(vm=["st"],lgkm=0))
    e(f"buffer_atomic_add v13, v{vFl}, {srd(WS)}, 0 offen","sig")
    if HELP:
        P.extend(stamp(4))
        e(f"s_cmp_gt_u32 s{hsN}, 6"); e("s_cbranch_scc1 L_hexit")
        HD.main([(0 if b<17 else 24,it) for b in range(nb,18) for it in HD.w2dma(b)],OPT['hlead'],OPT['hpah'],so=50)
        e("L_hexit:")
    P.extend(stamp(4,True))
    if not HELP and (OPT['l2o'] or OPT['l2b']):
        sA,sB,sWv=40,41,42
        e(f"s_mul_i32 s{t0}, s{sXCD}, 23"); e(f"s_lshr_b32 s{t1}, s{sXCD}, 2"); e(f"s_sub_u32 s{t0}, s{t0}, s{t1}"); e(f"s_add_u32 s{t1}, s{t0}, 22")
        for r,d in ((t0,sA),(t1,sB)): e(f"s_mul_i32 s{r}, s{r}, 9363"); e(f"s_lshr_b32 s{d}, s{r}, 16")
        e(f"s_min_u32 s{sB}, s{sB}, 25")
        e(f"s_sub_u32 s{sWv}, s{sJ}, 1"); e(f"s_lshl_b32 s{sWv}, s{sWv}, 2"); e(f"s_add_u32 s{sWv}, s{sWv}, s{sW}")
        e(f"s_sub_u32 s43, s{sB}, s{sA}"); e("s_add_u32 s43, s43, 1"); e("s_mul_i32 s43, s43, 40"); e("s_sub_u32 s43, s43, 1")
        e(f"s_mul_i32 s44, s{sA}, 5")
        def touch(sKap,first,n,step):
            e(f"s_mul_i32 s{t0}, s{sKap}, {NT}"); e(f"s_add_u32 s{t0}, s{t0}, s44"); e(f"s_lshl_b32 s{t0}, s{t0}, 10"); e(f"s_add_u32 s{t0}, s{t0}, {H0}")
            for k in range(n):
                e(f"v_add_u32 v20, {first}, v0") if isinstance(first,str) and k==0 else e(f"v_add_u32 v20, {step if k else first}, v{20 if k else 0}")
                e("v_min_u32 v21, s43, v20"); e("v_lshlrev_b32 v21, 7, v21"); e(f"buffer_load_dword v{24+k}, v21, {srd(WS)}, s{t0} offen sc1","pf")
        if OPT['l2b']:
            LB=lab("NB")
            e(f"s_cmp_ge_u32 s{sWv}, 28"); e(f"s_cbranch_scc1 {LB}")
            e(f"s_lshr_b32 s45, s{sWv}, 1"); e(f"s_and_b32 s46, s{sWv}, 1"); e("s_cmp_ge_u32 s45, 7"); e("s_cselect_b32 s47, 2, 0"); e("s_add_u32 s47, s47, s46")
            e(f"v_min_u32 v22, 4, v0"); e(f"v_add_u32 v22, s{sA}, v22"); e(f"v_min_u32 v22, s{sB}, v22"); e("v_lshlrev_b32 v22, 3, v22"); e("v_add_u32 v22, s47, v22"); e("v_lshlrev_b32 v22, 7, v22")
            spin(22,512,7,WS,23,nap=OPT['nap'])
            e("s_lshl_b32 s45, s45, 2"); e("s_add_u32 s45, s45, s46"); e("s_add_u32 s45, s45, 2")
            touch(45,0,4,64)
            e(LB+":")
        if OPT['l2o']:
            e(f"s_and_b32 s45, s{sWv}, 15"); e("s_lshr_b32 s46, s45, 2")
            e(f"s_lshr_b32 s47, s44, 3"); e(f"s_mul_i32 s48, s{sB}, 5"); e("s_add_u32 s48, s48, 4"); e("s_lshr_b32 s48, s48, 3"); e("s_min_u32 s48, s48, 15")
            e("v_min_u32 v22, 4, v0"); e("v_add_u32 v22, s47, v22"); e("v_min_u32 v22, s48, v22"); e("v_lshlrev_b32 v22, 2, v22"); e("v_add_u32 v22, s46, v22"); e("v_add_u32 v22, 208, v22"); e("v_lshlrev_b32 v22, 7, v22")
            e("s_waitcnt vmcnt(0)"); spin(22,0,4,WS,23,nap=OPT['napo'])
            e("s_add_u32 s45, s45, 56"); e(f"s_lshr_b32 s46, s{sWv}, 4"); e("s_lshl_b32 s46, s46, 6")
            touch(45,"s46",2,128)
    e("s_endpgm")

OPT_ORDER=[(0,1,2),(0,2,1),(2,0,1)]
def spare():
    KN=NAME+"_kernel"
    e("L_spare:")
    if OPT['cpf']==2:
        e("s_cmp_ge_u32 s2, 8"); e("s_cbranch_scc1 L_nopf2"); e("v_add_u32 v2, 32768, v2"); e("v_min_u32 v2, L_end-L_pc-4, v2"); e("global_load_dword v11, v2, s[68:69]","pf"); e("L_nopf2:")
    if not OPT['cpf']: e(f"s_lshl_b32 s70, s{sW}, 6"); e("v_add_u32 v1, s70, v0"); codepf()
    e("s_waitcnt lgkmcnt(0)")
    mksrd(WS,60,WSN); mksrd(DBG,58,256)
    e(f"s_or_b32 s70, s2, s{sW}"); e("s_cmp_eq_u32 s70, 0"); e("s_cbranch_scc0 L_noclr")
    e("v_lshlrev_b32 v5, 8, v0"); e("v_mov_b32 v6, 0"); e("v_lshlrev_b32 v7, 7, v0"); e("v_mov_b32 v8, 1")
    for k in range(5):
        e(f"buffer_store_dword v6, v7, {srd(WS)}, 0 offen sc1"); e("v_add_u32 v7, 8192, v7")
    e("s_waitcnt vmcnt(0)")
    e(f"buffer_store_dword v8, v5, {srd(DBG)}, 0 offen sc1")
    e("L_noclr:")
    if OPT['tlb']:
        mksrd(WO,44,401408); mksrd(WD,52,1605632); mksrd(OUT,56,1835008)
        e(f"s_cmp_eq_u32 s{sW}, 1"); e("s_cbranch_scc0 L_notlb")
        e(f"v_mul_u32_u24 v20, {NT*1024}, v0"); e("v_lshlrev_b32 v21, 17, v0"); e(f"s_mov_b32 s70, {H0+129*1024}"); e(f"s_mov_b32 s71, {H0+129*1024+64*NT*1024}")
        e(f"buffer_load_dword v22, v20, {srd(WS)}, s70 offen","pf"); e(f"buffer_load_dword v23, v20, {srd(WS)}, s71 offen","pf")
        e(f"s_mov_b32 s70, {S0-128}"); e(f"buffer_load_dword v27, off, {srd(WS)}, s70","pf")
        for k,sr in enumerate((WD,WO,OUT)): e(f"buffer_load_dword v{24+k}, v21, {srd(sr)}, 0 offen","pf")
        e("s_waitcnt vmcnt(0)")
        e("L_notlb:")
    if OPT['gop']>=0:
        mksrd(WO,44,401408); mksrd(WD,52,1605632)
        e("v_mov_b32 v249, 0"); spin(249,4,1,DBG,248,nap=OPT['nap'])
        e(f"s_mul_i32 s66, s{sW}, 10"); e(f"s_add_u32 s66, s66, s{sI}"); e("s_lshl_b32 s66, s66, 6"); e("v_add_u32 v20, s66, v0")
        n=30
        for part in (OPT_ORDER[OPT['sord']] if OPT['ntt']==5 else (0,1)):
            if part<2:
                for k in range(3):
                    e(f"v_add_u32 v21, {2560*k}, v20"); e("v_mul_u32_u24 v22, 9363, v21"); e("v_lshrrev_b32 v22, 22, v22"); e(f"v_add_u32 v22, {part}, v22")
                    e("v_mul_u32_u24 v22, 448, v22"); e("v_add_u32 v22, v22, v21"); e("v_lshlrev_b32 v22, 7, v22")
                    e(f"buffer_load_dword v{n}, v22, {srd(WD)}, 0 offen","pf"); n+=1
            else:
                for k in range(2):
                    e(f"v_add_u32 v21, {2560*k}, v20"); e("v_lshlrev_b32 v22, 7, v21"); e(f"buffer_load_dword v{n}, v22, {srd(WO)}, 0 offen","pf"); n+=1
    if OPT['ntt']==4:
        P.extend(stamp(0))
        e(f"s_min_u32 s{hsN}, s{sJ}, 1")
        helper_setup([HD.vW2,9]+hR[0])
        e("v_accvgpr_write_b32 a127, v9")
        e("v_lshlrev_b32 v231, 4, v0"); e(f"v_mov_b32 v252, {OOB}"); e("v_mov_b32 v13, 1"); e("v_mov_b32 v249, 0"); e("v_mov_b32 v248, 0")
        if OPT['spf']:
            e(f"s_mul_i32 s66, s{sXCD}, 392"); e(f"s_lshl_b32 s67, s{sW}, 6"); e("s_add_u32 s66, s66, s67"); e("v_add_u32 v14, s66, v0")
            for k in range(13):
                e("v_subrev_u32 v15, 3136, v14"); e("v_min_u32 v15, v15, v14"); e("v_lshlrev_b32 v15, 7, v15")
                e(f"buffer_load_dword v{40+k}, v15, {srd(WO)}, 0 offen","pf"); e("v_add_u32 v14, 256, v14")
                if k<OPT['spf']-1: e("s_waitcnt vmcnt(0)")
        hwin[0]=0
        for b in range(8+OPT['hp13']):
            P.extend(flat(HD.w2dma(b)))
            for sb in {1:[0],4:[1],7:[2,3]}.get(b,[]):
                P.append(WAIT(vm=[f"b{sb}"])); P.extend(hstage(sb)); P.append(WAIT(lgkm=0))
        if OPT['hin']:
            e(f"v_mov_b32 v{HD.vWo}, v9")
            P.append(WAIT(vm=["b7"])); P.extend(flat([hstage(b) for b in range(4,8)])); P.append(WAIT(lgkm=0))
            for b in range(13,13+OPT['hin']): P.extend(flat(HD.w2dma(b)))
        assert hwin[0]==HROW[7 if OPT['hin'] else 3]>>16
        spin(249,0,1,DBG,248)
        spin(HD.vPA,0,7,WS,HD.vPoll,nap=24)
        e("s_branch L_help")
    e("L_exit:")
    e("s_endpgm")

DESC="""; One launch, 256 workgroups (one per CU, 4 waves, 512 registers each), roles by workgroup id:
;                     stream through an LDS ring and are transposed by ds_read_b64_tr_b16); silu(g)*u goes to d_ws in
;    64 attention   : 128 tokens (+16 halo) x 4 heads, one head per wave; q/k/v by MFMA, the 8 dilated taps are picked
; Hand-offs: write-through stores, vmcnt wait, atomic add on a counter in d_ws (zeroed in this launch, announced through
; d_debug); consumers poll the counter and read with L1-bypassing loads.  Workgroup-to-die placement only affects speed.
"""
def main():
    global P
    head=open("cdna_kernels/"+NAME+".s.ref").read().split("; Override launch")[0]
    txt=[]; nops=0
    def ablate(o):
        a=OPT['abl']; r=[]
        for x in o:
            if a&1 and x.cls=="vm" and " lds" in x.text: continue
            if a&2 and x.op.startswith("ds_read"): continue
            if a&4 and x.op.startswith("v_mfma"): continue
            r.append(x)
        return r
    parts=[(common_prologue,ffn),(attn,),(spare,)]; done={}
    for part in parts:
        P.clear()
        if part[0] is not common_prologue:
            pass
        for f in part: f()
        o,n=finalize(list(P),part[-1].__name__); nops+=n
        if OPT['abl']: o=ablate(o)
        done[part[-1].__name__]=[x.text if x.cls=="label" else "    "+x.text for x in o]
    for nm in (("ffn","spare","attn") if OPT['lay'] else ("ffn","attn","spare")): txt+=done[nm]
    txt.append("L_end:")
    out=head+DESC+"; @launch grid=(256,1,1) block=(256,1,1) lds=163840\n"
    out+='.amdgcn_target "amdgcn-amd-amdhsa--gfx950"\n.text\n'
    out+=f".globl {NAME}_kernel\n.p2align 8\n.type {NAME}_kernel,@function\n{NAME}_kernel:\n"
    out+="\n".join(txt)+"\n"
    out+=f""".section .rodata,"a"
.p2align 6
.amdhsa_kernel {NAME}_kernel
  .amdhsa_next_free_vgpr 512
  .amdhsa_next_free_sgpr 102
  .amdhsa_accum_offset 256
  .amdhsa_group_segment_fixed_size 0
  .amdhsa_kernarg_size 88
  .amdhsa_user_sgpr_count 2
  .amdhsa_user_sgpr_kernarg_segment_ptr 1
  .amdhsa_system_sgpr_workgroup_id_x 1
.end_amdhsa_kernel
"""
    open(sys.argv[1],"w").write(out)
    print("instructions",len(txt),"auto nops",nops)
main()
```

```python
import sys, math
from isa import *
NAME="gated_mix__sliding_local_dilated__swiglu_ffn__prompt"
OPT=dict(stamp=0, probe=-2, pwg=100, obs=0, abl=0, outpol=0,
         rot=4, arot=7, rate=5, cap=2, capc=3, cp=16, chainA=1, w2p0=13, sAt=1, nin=3, sBs=2, pA=10,
         lead=10, pah=10, nm=3, ntt=5, hlead=9, hpah=9, arate=12, apf=1, spf=1, l2o=0, l2b=1, ech=1, tail2=0, ap1=1, nogate=0, cpf=2, kdiag=0, fastp=1, ntw=0, ford=0, lay=1, dst=0, paho=10, p2b=0, p2o=0, weave=0, sord=0, napo=24, skipS=0, rateA=5, nA=6, apW=-1, apA=-1, apB=-1, apfk=10, hp13=5, hwin=0, nap=8, amid=4, hin=2, gop=5, p2=1, est=0, tlb=0, stf=0, split0=1, npre=2, pre1=5, early=9, aearly=5)
for a in sys.argv[2:]:
    k,v=a.split("="); OPT[k]=int(v)
H0=0x100000; NT=130; S0=0x80000; SSTR=2176*4; STAMP0=0xC00000; WSN=0x1000000
OOB=0x80000000
X,WA,WU,WD,WO,WS,OUT,DBG,GW=4,8,12,16,20,24,28,32,36
def srd(b): return f"s[{b}:{b+3}]"
def vr(b,n=1): return f"v{b}" if n==1 else f"v[{b}:{b+n-1}]"
def ar(b,n=1): return f"a{b}" if n==1 else f"a[{b}:{b+n-1}]"
P=[]
def e(t,tag=None):
    x=I(t,tag); P.append(x); return x
_l=[0]
def lab(p="L"):
    _l[0]+=1; return f"{p}{_l[0]}"
def mksrd(b,src,n,bias=0):
    if bias:
        e(f"s_sub_u32 s{b}, s{src}, {bias}"); e(f"s_subb_u32 s{b+1}, s{src+1}, 0")
    else:
        e(f"s_mov_b64 s[{b}:{b+1}], s[{src}:{src+1}]")
    e(f"s_mov_b32 s{b+2}, {n+bias}"); e(f"s_mov_b32 s{b+3}, 0x20000")
def mfma(d,a,b,c): return I(f"v_mfma_f32_16x16x32_bf16 {d}, {a}, {b}, {c}")
sW,sXCD,sJ,sI=62,63,64,65
sT=[66,67,68,69,70,71]
sSTB=98
nstamp=[0]
def stamp(idx,last=False):
    if OPT['probe']!=-2:
        o=[]
        if idx==OPT['probe']: o+=[I("s_memrealtime s[94:95]"),I("s_waitcnt lgkmcnt(0)"),I("s_sub_u32 s97, s94, s96")]
        if last:
            L=lab("PR"); D=lab("PD")
            o+=[I(f"s_cmp_eq_u32 s2, {OPT['pwg']}"),I(f"s_cbranch_scc0 {D}"),I("s_add_u32 s97, s97, 4000"),I(L+":"),I("s_memrealtime s[94:95]"),I("s_waitcnt lgkmcnt(0)"),
                I("s_sub_u32 s94, s94, s96"),I("s_cmp_lt_u32 s94, s97"),I(f"s_cbranch_scc1 {L}"),I(D+":")]
        return o
    if not OPT['stamp']: return []
    if OPT['stamp']==2 and idx not in (0,1,2,3,4,5,6,7,8,9,10,11,55,56,57,58,59,61) : return []
    if OPT['stamp']==3 and idx not in (0,9) and not last: return []
    o=[I("s_memrealtime s[94:95]"),I("s_memtime s[96:97]"),I("s_waitcnt lgkmcnt(0)"),
       I(f"v_writelane_b32 v254, s94, {idx}"),I(f"v_writelane_b32 v255, s96, {idx}")]
    if idx==0: o.append(I("v_writelane_b32 v254, s34, 62"))
    if idx==0 and OPT['kdiag']: o.append(I("v_writelane_b32 v254, s30, 0"))
    if last: o+=[I("v_lshlrev_b32 v253, 3, v0"),I(f"buffer_store_dwordx2 v[254:255], v253, {srd(WS)}, s{sSTB} offen","stamp")]
    return o
def spin(addrv, off, cmpval, srdb, res=12, nap=1):
    L=lab("SP"); D=lab("SD")
    e("s_mov_b32 s92, 0")
    e(L+":")
    e(f"buffer_load_dword v{res}, v{addrv}, {srd(srdb)}, 0 offen offset:{off} sc1","poll")
    e("s_waitcnt vmcnt(0)")
    e(f"v_cmp_ne_u32 vcc, {cmpval}, v{res}")
    e(f"s_cbranch_vccz {D}")
    e("s_add_u32 s92, s92, 1")
    e("s_cmp_lt_u32 s92, 0x40000")
    e(f"s_sleep {nap}")
    e(f"s_cbranch_scc1 {L}")
    e(D+":")
def check_or_spin(addrv, off, cmpval, srdb, res, second=None):
    D=lab("CK")
    e(f"v_cmp_ne_u32 vcc, {cmpval}, v{res}")
    e(f"s_cbranch_vccz {D}")
    if second:
        P.append(WAIT(vm=[second[0]],side=True))
        x=e(f"v_cmp_ne_u32 vcc, {cmpval}, v{second[1]}"); x.rd=set()
        e(f"s_cbranch_vccz {D}")
    n0=len(P)
    spin(addrv,off,cmpval,srdb,res)
    for x in P[n0:]:
        if x.cls=="vm": x.cls="raw"; x.wr=set()
        if x.op=="s_waitcnt": x.op="raw"
    e(D+":")

def codepf():
    KN=NAME+"_kernel"
    e("s_getpc_b64 s[68:69]")
    e("L_pc:")
    e(f"s_sub_u32 s68, s68, L_pc-{KN}"); e("s_subb_u32 s69, s69, 0")
    e("v_lshlrev_b32 v2, 7, v1")
    e("global_load_dword v10, v2, s[68:69]","pf")
    e("v_add_u32 v2, 32768, v2"); e(f"v_min_u32 v2, L_end-{KN}-4, v2")
    e("global_load_dword v11, v2, s[68:69]","pf")
def common_prologue():
    KN=NAME+"_kernel"
    def raw(t,tag=None):
        x=e(t,tag); x.cls="raw"; x.wr=set()
    if OPT['stamp']: e("s_memrealtime s[34:35]")
    if OPT['cpf']==2:
        e("s_cmp_ge_u32 s2, 8"); e("s_cbranch_scc1 L_nopf")
        e("s_getpc_b64 s[68:69]")
        e("L_pc:")
        e("v_lshlrev_b32 v2, 7, v0"); raw("global_load_dword v10, v2, s[68:69]")
        e("L_nopf:")
    else: e("s_cmp_ge_u32 s2, 256"); e("s_cbranch_scc1 L_exit")
    if OPT['probe']!=-2:
        e("s_memrealtime s[94:95]"); e("s_waitcnt lgkmcnt(0)"); e("s_mov_b32 s96, s94"); e("s_mov_b32 s97, 0")
    e("s_load_dwordx16 s[40:55], s[0:1], 0")
    e("s_load_dwordx4 s[56:59], s[0:1], 64")
    e("s_load_dwordx2 s[60:61], s[0:1], 80")
    if OPT['stamp'] and OPT['kdiag']:
        e("s_waitcnt lgkmcnt(0)"); e("s_memrealtime s[30:31]"); e("s_waitcnt lgkmcnt(0)")
    if OPT['cpf']==2:
        e("s_cmp_ge_u32 s2, 256"); e("s_cbranch_scc1 L_exit")
    if OPT['cpf']==1:
        e("s_cmp_ge_u32 s2, 8"); e("s_cbranch_scc1 L_nopf")
        e("v_mov_b32 v1, v0"); n0=len(P); codepf()
        for x in P[n0:]:
            if x.cls=="vm": x.cls="raw"; x.wr=set()
        e("L_nopf:")
    e("v_lshrrev_b32 v1, 6, v0")
    e(f"s_and_b32 s{sXCD}, s2, 7"); e(f"s_lshr_b32 s{sJ}, s2, 3")
    e(f"v_readfirstlane_b32 s{sW}, v1")
    e("v_and_b32 v0, 63, v0")
    if OPT['stamp']:
        e(f"s_lshl_b32 s{sSTB}, s2, 2"); e(f"s_add_u32 s{sSTB}, s{sSTB}, s{sW}"); e(f"s_lshl_b32 s{sSTB}, s{sSTB}, 9")
        e(f"s_add_u32 s{sSTB}, s{sSTB}, {STAMP0}")
        e("v_mov_b32 v254, 0"); e("v_mov_b32 v255, 0")
    e(f"s_mov_b32 s{sI}, s{sXCD}")
    e(f"s_cmp_eq_u32 s{sJ}, 0"); e("s_cbranch_scc1 L_spare")
    if OPT['ford']: e(f"s_cmp_ge_u32 s{sJ}, 24"); e("s_cbranch_scc1 L_attn")
    else: e(f"s_cmp_lt_u32 s{sJ}, 9"); e("s_cbranch_scc1 L_attn")

ROLE=[""]
def dma(voff,sr,soff,imm,tag):
    nt=""
    if tag[0]=="w":
        if ROLE[0]=="attn": nt=" nt" if OPT['ntw']&4 else ""
        else: nt=" nt" if OPT['ntw']&(1 if int(tag[1:].rstrip("a"))<7 else 2) else ""
    if tag[0]=="b" and OPT['ntw']&8: nt=" nt"
    return I(f"buffer_load_dwordx4 v{voff}, {srd(sr)}, {soff} offen offset:{imm}{nt} lds",tag)

flat=lambda L:[x for it in L for x in it]
def mod7(dst,src,tmp,R=7):
    e(f"s_mul_i32 s{tmp}, s{src}, 9363"); e(f"s_lshr_b32 s{tmp}, s{tmp}, 16"); e(f"s_mul_i32 s{tmp}, s{tmp}, 7"); e(f"s_sub_u32 s{dst}, s{src}, s{tmp}")
    if R==1: e(f"s_mov_b32 s{dst}, 0")
    elif R==2: e(f"s_and_b32 s{dst}, s{dst}, 1"); e(f"s_mul_i32 s{dst}, s{dst}, 3")
    elif R==4: e(f"s_and_b32 s{dst}, s{dst}, 3"); e(f"s_lshl_b32 s{dst}, s{dst}, 1")

class Down:
    def __init__(c,**kw): c.__dict__.update(kw)
    def setup_w(c,sF0,sT2,sN,t):
        t0,t1,t2,t3=t; a,b,d=c.vt
        e(f"v_lshrrev_b32 v{a}, 3, v0"); e(f"v_and_b32 v{b}, 6, v{a}"); e(f"v_and_b32 v{d}, 7, v0"); e(f"v_xor_b32 v{b}, v{b}, v{d}")
        e(f"v_mul_u32_u24 v{a}, 896, v{a}"); e(f"v_lshl_add_u32 v{c.vW2}, v{b}, 4, v{a}")
        e(f"s_lshr_b32 s{t0}, s{sW}, 1"); e(f"s_mul_i32 s{t0}, s{t0}, 28"); e(f"s_and_b32 s{t1}, s{sW}, 1"); e(f"s_add_u32 s{t3}, s{t0}, s{t1}")
        e(f"s_lshl_b32 s{t2}, s{sN}, 7"); e(f"v_add_u32 v{c.vW2}, s{t2}, v{c.vW2}")
        e(f"s_add_u32 s{t0}, s{sT2}, s{sN}"); e(f"s_and_b32 s{t0}, s{t0}, 3"); e(f"s_sub_u32 s{c.sWr3}, 3, s{t0}")
        e(f"s_lshl_b32 s{t1}, s{sW}, 2"); e(f"s_add_u32 s{t2}, s{t0}, s{t1}")
        e(f"s_mul_i32 s{t0}, s{t2}, {28*896}"); e(f"v_add_u32 v{c.vWo}, s{t0}, v{c.vW2}")
        e(f"s_add_u32 s{t0}, s{t2}, 56"); e(f"s_mul_i32 s{t0}, s{t0}, {NT}"); e(f"s_add_u32 s{t0}, s{t0}, s{sF0}"); e(f"s_lshl_b32 s{t0}, s{t0}, 10"); e(f"s_add_u32 s{c.sHO}, s{t0}, {H0}")
        e(f"s_mov_b32 s{c.sNWo}, {-3*28*896}"); e(f"s_mov_b32 s{c.sNHo}, {-3*NT*1024}")
        e(f"s_lshl_b32 s{t0}, s{sT2}, 1"); e(f"s_add_u32 s{t0}, s{t0}, s{sN}")
        mod7(t0,t0,t1); e(f"s_sub_u32 s{c.sWr2}, 6, s{t0}"); e(f"s_lshl_b32 s{t0}, s{t0}, 2"); e(f"s_add_u32 s{t3}, s{t3}, s{t0}")
        e(f"s_mul_i32 s{t1}, s{t3}, {32*896}"); e(f"v_add_u32 v{c.vW2}, s{t1}, v{c.vW2}")
        e(f"s_mov_b32 s{c.sNW2}, {-6*114688}"); e(f"s_mov_b32 s{c.sNH}, {-24*NT*1024}")
        e(f"s_mul_i32 s{t0}, s{t3}, {NT}"); e(f"s_add_u32 s{t0}, s{t0}, s{sF0}"); e(f"s_lshl_b32 s{t0}, s{t0}, 10"); e(f"s_add_u32 s{c.sHld}, s{t0}, {H0}")
        for j in range(1,4): e(f"s_mov_b32 s{c.sW2o[j]}, {6144*j}")
    def setup_lane(c,dst,sBases,t):
        t0=t[0]; a,b,d=c.vt
        e(f"v_bfe_u32 v{a}, v0, 4, 1"); e(f"v_bfe_u32 v{b}, v0, 2, 2"); e(f"v_lshl_add_u32 v{a}, v{a}, 2, v{b}")
        e(f"v_lshrrev_b32 v{b}, 5, v0"); e(f"v_lshlrev_b32 v{b}, 10, v{b}"); e(f"v_lshl_add_u32 v{b}, v{a}, 7, v{b}")
        e(f"v_and_b32 v{d}, 3, v0"); e(f"v_lshl_add_u32 v{b}, v{d}, 3, v{b}"); e(f"v_lshrrev_b32 v{a}, 1, v{a}")
        for q in range(4):
            e(f"s_add_u32 s{t0}, s{sW}, {q}"); e(f"s_and_b32 s{t0}, s{t0}, 3")
            e(f"v_xor_b32 v{d}, s{t0}, v{a}"); e(f"v_lshl_add_u32 v{d}, v{d}, 5, v{b}")
            for k,sb in enumerate(sBases): e(f"v_add_u32 v{dst[k][q]}, s{sb}, v{d}")
    def setup_io(c,sF0,sN,t):
        t0,t1,t2,t3=t; a,b,d=c.vt; N=c.NTT
        e(f"v_lshrrev_b32 v{a}, 5, v0")
        e(f"s_add_u32 s{t1}, s{sF0}, {N-1}")
        e(f"s_mul_i32 s{t0}, s{sF0}, 13108"); e(f"s_lshr_b32 s{t0}, s{t0}, 16"); e(f"s_mul_i32 s{t2}, s{t1}, 13108"); e(f"s_lshr_b32 s{t2}, s{t2}, 16")
        e(f"s_sub_u32 s{t2}, s{t2}, s{t0}"); e(f"s_lshl_b32 s{t2}, s{t2}, 10"); e(f"s_lshl_b32 s{t0}, s{t0}, 3"); e(f"s_add_u32 s{t0}, s{t0}, s{sW}"); e(f"s_lshl_b32 s{t0}, s{t0}, 7")
        e(f"v_mul_u32_u24 v{b}, s{t2}, v{a}"); e(f"v_add_u32 v{c.vPA}, s{t0}, v{b}")
        e(f"s_lshr_b32 s{t0}, s{sF0}, 3"); e(f"s_lshr_b32 s{t2}, s{t1}, 3"); e(f"s_min_u32 s{t2}, s{t2}, 15")
        e(f"s_sub_u32 s{t2}, s{t2}, s{t0}"); e(f"s_lshl_b32 s{t2}, s{t2}, 9"); e(f"s_lshl_b32 s{t0}, s{t0}, 2"); e(f"s_add_u32 s{t0}, s{t0}, s{sW}"); e(f"s_add_u32 s{t0}, s{t0}, 208"); e(f"s_lshl_b32 s{t0}, s{t0}, 7")
        e(f"v_mul_u32_u24 v{b}, s{t2}, v{a}"); e(f"v_add_u32 v{c.vPO}, s{t0}, v{b}")
        e(f"s_lshl_b32 s{t0}, s{sF0}, 4"); e(f"v_and_b32 v{a}, 15, v0"); e(f"v_add_u32 v{a}, s{t0}, v{a}")
        e(f"s_mul_i32 s{t1}, s{sW}, {SSTR}"); e(f"s_add_u32 s{t1}, s{t1}, {S0}"); e(f"v_lshlrev_b32 v{c.vSA}, 2, v{a}"); e(f"v_add_u32 v{c.vSA}, s{t1}, v{c.vSA}")
        e(f"v_mul_u32_u24 v{a}, 896, v{a}"); e(f"v_lshrrev_b32 v{b}, 4, v0"); e(f"v_lshl_add_u32 v{a}, v{b}, 3, v{a}")
        e(f"s_lshl_b32 s{t1}, s{sN}, 7"); e(f"s_lshl_b32 s{t2}, s{sW}, 5"); e(f"s_add_u32 s{t1}, s{t1}, s{t2}"); e(f"v_add_u32 v{c.vO}, s{t1}, v{a}")
        base,ws,qs=c.red
        e(f"s_mul_i32 s{t0}, s{sW}, {ws}"); e(f"s_add_u32 s{t0}, s{t0}, {base}"); e(f"v_add_u32 v{c.vRW}, s{t0}, v{c.vH}")
        for q in range(1,4):
            e(f"s_sub_u32 s{t0}, s{sW}, {q}"); e(f"s_and_b32 s{t0}, s{t0}, 3"); e(f"s_mul_i32 s{t0}, s{t0}, {ws}"); e(f"s_add_u32 s{t0}, s{t0}, {base+(q-1)*qs}")
            e(f"v_add_u32 v{c.vRR+q-1}, s{t0}, v{c.vH}")
        for j in range(1,N): e(f"s_mov_b32 s{c.sRow+j-1}, {16*j*896}")
    def w2dma(c,b):
        sg,off=c.m0(b)
        o=[[dma(c.vW2,WD if b<14 else WO,"0" if pi==0 else f"s{c.sW2o[pi]}",pi*1024,f"b{b}")] for pi in range(4)]
        o[0].insert(0,I(f"s_add_u32 m0, s{sg}, {off}"))
        if b==13: o[-1].append(I(f"v_mov_b32 v{c.vW2}, v{c.vWo}"))
        elif b<13:
            o[-1]+=[ATOM(f"s_cmp_eq_u32 s{c.sWr2}, {b%7}",f"s_cselect_b32 s{c.sD}, s{c.sNW2}, 114688"),I(f"v_add_u32 v{c.vW2}, s{c.sD}, v{c.vW2}")]
            if b==6: o[-1].append(I(f"v_add_u32 v{c.vW2}, {64*896}, v{c.vW2}"))
        elif b<17: o[-1]+=[ATOM(f"s_cmp_eq_u32 s{c.sWr3}, {b-14}",f"s_cselect_b32 s{c.sD}, s{c.sNWo}, {28*896}"),I(f"v_add_u32 v{c.vW2}, s{c.sD}, v{c.vW2}")]
        return o
    def AW(c,b,q,a=None):
        r=c.aSt+16*(b%8)+4*q
        return ar(r,4) if a is None else ar(r+2*a,2)
    def treads(c,b,rd=None):
        base,off=(rd or c.rd)(b)
        return [I(f"ds_read_b64_tr_b16 {c.AW(b,q,a)}, v{base[q]} offset:{off+a*2048}") for q in range(4) for a in range(2)]
    def HS(c,b,t):
        k=b%c.NSL; na=c.nAS
        return ar(c.aH+(k*c.NTT+t)*4,4) if k<na else vr(c.vHS+((k-na)*c.NTT+t)*4,4)
    def hload(c,b):
        o=[[I(f"buffer_load_dwordx4 {c.HS(b,t)}, v{c.vH if t<3 else c.vHt[t-3]}, {srd(WS)}, s{c.sHld} offen offset:{(t%4)*1024} sc1",f"h{b}_{t}")] for t in range(c.NTT)]
        if b==13: o[-1].append(I(f"s_mov_b32 s{c.sHld}, s{c.sHO}"))
        elif b<13:
            o[-1]+=[ATOM(f"s_cmp_eq_u32 s{c.sWr2}, {b%7}",f"s_cselect_b32 s{c.sD}, s{c.sNH}, {4*NT*1024}",f"s_add_u32 s{c.sHld}, s{c.sHld}, s{c.sD}")]
            if b==6: o[-1].append(I(f"s_add_u32 s{c.sHld}, s{c.sHld}, {2*NT*1024}"))
        elif b<17: o[-1]+=[ATOM(f"s_cmp_eq_u32 s{c.sWr3}, {b-14}",f"s_cselect_b32 s{c.sD}, s{c.sNHo}, {NT*1024}",f"s_add_u32 s{c.sHld}, s{c.sHld}, s{c.sD}")]
        return o
    def poll(c,tag):
        av,off={"pollA":(c.vPA,0),"pollB":(c.vPA,512),"pollO":(c.vPO,0)}[tag]
        return I(f"buffer_load_dword v{c.vPoll}, v{av}, {srd(WS)}, 0 offen offset:{off} sc1",tag)
    def main(c,WQ,LEAD,PAH,so=0):
        N=c.NTT; GT=18*N
        steps=[[(b,) for b in range(15)]+[(15,16,17)],
               [(0,1),(2,3),(4,5),(6,),(7,8),(9,10),(11,12),(13,),(14,),(15,16,17)],
               [(0,1,2,3),(4,5,6),(7,8,9,10),(11,12,13),(14,15,16,17)],
               [(0,1),(2,3),(4,5,6),(7,8),(9,10),(11,12,13),(14,15),(16,17)],
               [(0,1),(2,3),(4,5,6),(7,8),(9,10),(11,12,13),(14,15,16,17)]][OPT['ech']]
        if not OPT['nogate']&1: P.append(WAIT(vm=["pollA"])); check_or_spin(c.vPA,0,7,WS,c.vPoll)
        P.extend(stamp(so+11))
        def setoff(st):
            o=[]
            for k,b in enumerate(st):
                o.append(I(f"s_mov_b32 s{44+k}, s{c.sHld}")); o+=c.hload(b)[-1][1:]
            return o
        HL=[]; start={}; units=[]
        for n,st in enumerate(steps):
            for b in st: start[b]=len(HL)
            for t in range(N):
                units.append((len(HL),st,t))
                for k,b in enumerate(st):
                    x=c.hload(b)[t][0]; HL.append([I(x.text.replace(f"s{c.sHld} offen",f"s{44+k} offen"),x.tag)])
            if n+1<len(steps): HL[-1]+=setoff(steps[n+1])
        P.extend(setoff(steps[0]))
        for l in range(LEAD): P.extend(HL[l])
        P.extend(stamp(so+5))
        hn=LEAD
        ustart=[u[0] for u in units]
        at=lambda g: max(x for x in ustart if x<=max(g,0))
        gates={at(start[7]-LEAD):("pollB",c.vPA,512,7,6), at(start[14]-LEAD):("pollO",c.vPO,0,4,7)}
        polls={at(g-(PAH if v[0]=='pollB' else OPT['paho'] or PAH)):v[0] for g,v in gates.items()}
        polls2={at(g-OPT[k]):v[0] for g,v in gates.items() for k in (['p2b'] if v[0]=="pollB" else ['p2o']) if OPT[k]}
        RQ={}
        for n,st in enumerate(steps):
            rd=[(x,f"b{b}") for b in st if b>=8 for x in c.treads(b)]
            if not rd: continue
            g1=start[st[0]]
            g0=max([g1-max(N,(len(rd)+1)//2)]+[start[b-8]+N*len([z for z in steps if b-8 in z][0]) for b in st if b>=8])
            assert 3*(g1-g0-1)>=len(rd)
            for k,(x,tg) in enumerate(rd): RQ.setdefault(g0+k*(g1-g0-1)//len(rd),[]).append((x,tg))
        base,ws,qs=c.red
        wr=lambda q,t: I(f"ds_write_b128 v{c.vRW}, {vr(c.ACC(q,t),4)} offset:{(q-1)*qs+t*1024}")
        R=lambda q,t: c.vRT+((q-1)*N+t)*4
        rr=lambda t: [I(f"ds_read_b128 {vr(R(q,t),4)}, v{c.vRR+q-1} offset:{t*1024}") for q in range(1,4)]
        NE=N-2 if OPT['tail2'] else 0
        def uw(u):
            g,st,t=units[u]
            tags=[f"h{b}_{t}" for b in st]+[tg for k in range(len(st)) for _,tg in RQ.get(g+k,[])]
            if g in gates: tags.append(gates[g][0])
            return WAIT(vm=tags,lgkm=0 if t==0 else None)
        P.append(uw(0))
        for u,(g,st,t) in enumerate(units):
            L=len(st)
            mf=[mfma(vr(c.ACC(q,t),4),c.AW(b,q),c.HS(b,t),"0" if b==0 else vr(c.ACC(q,t),4)) for q in range(4) for b in st]
            if g in gates:
                tg,av,off,val,si=gates[g]
                sec=(tg+"2",c.vPoll2) if OPT['p2b' if tg=="pollB" else 'p2o'] else None
                if not OPT['nogate']&(2 if tg=="pollB" else 4): check_or_spin(av,off,val,WS,c.vPoll,sec)
                P.extend(stamp(so+si))
            if t==0 and not so: P.extend(stamp(12+st[0]))
            f=[]
            if g in polls: f.append((2.5,c.poll(polls[g])))
            if g in polls2:
                x=c.poll(polls2[g]); f.append((2.6,I(x.text.replace(f"dword v{c.vPoll},",f"dword v{c.vPoll2},"),x.tag+"2")))
            for k in range(L):
                if hn<GT:
                    it=HL[hn]; hn+=1; f.append((4*k,it[0])); f+=[(4*k+1,x) for x in it[1:]]
                elif g+k+LEAD<GT+N: f+=([(4*k-0.5,I(f"v_or_b32 v{c.vSA}, s{c.sLast}, v{c.vSA}"))] if g+k+LEAD-GT==3 and N==5 else [])+[(4*k,I(f"buffer_load_dword v{c.vS+g+k+LEAD-GT}, v{c.vSA}, {srd(WS)}, 0 offen offset:{(g+k+LEAD-GT)*64} sc1","s"))]
                if WQ and WQ[0][0]<=g+k:
                    seen=False
                    for x in WQ.pop(0)[1]:
                        if x.cls=="vm": seen=True; f.append((4*k+2,x))
                        else: f.append((4*k+(3 if seen else 1.5),x))
                f+=[(4*k+0.2+j,x) for j,(x,_) in enumerate(RQ.get(g+k,[]))]
            if st is steps[-1] and t>0: f+=[(3+(q-1)*(4*L-4)//3,wr(q,t-1)) for q in range(1,4)]
            if NE and u==len(units)-1:
                f=[(k,x) for k,x in enumerate([x for _,x in f if x.cls=="ds"]+flat([rr(tt) for tt in range(NE)]))]+[z for z in f if z[1].cls!="ds"]
            o=pack2(mf,f)
            if NE and u==len(units)-2: o+=[WAIT(lgkm=0),I("s_barrier")]
            if u+1<len(units):
                j=max(i for i,x in enumerate(o) if x.cls=="mfma")
                if any(x.cls in("ds","vm") for x in o[j+1:]): o.append(uw(u+1))
                else: o.insert(j+1,uw(u+1))
            P.extend(o)
        assert not WQ and hn==GT
        for q in range(1,4): P.append(wr(q,N-1))
        P.extend(stamp(so+8))
        def fin(t):
            d=c.ACC(0,t)
            for r in (0,2): e(f"v_pk_add_f32 {vr(R(1,t)+r,2)}, {vr(R(1,t)+r,2)}, {vr(R(2,t)+r,2)}")
            for r in (0,2): e(f"v_pk_add_f32 {vr(d+r,2)}, {vr(d+r,2)}, {vr(R(3,t)+r,2)}")
            for r in (0,2): e(f"v_pk_add_f32 {vr(d+r,2)}, {vr(d+r,2)}, {vr(R(1,t)+r,2)}")
            for r in range(4): e(f"v_mul_f32 v{d+r}, v{c.vS+t}, v{d+r}")
            e(f"v_cvt_pk_bf16_f32 v{d}, v{d}, v{d+1}"); e(f"v_cvt_pk_bf16_f32 v{d+1}, v{d+2}, v{d+3}")
            e(f"buffer_store_dwordx2 {vr(d,2)}, v{c.vO}, {srd(OUT)}, {'0' if t==0 else 's%d'%(c.sRow+t-1)} offen{['',' sc1',' nt'][OPT['outpol']]}","out")
        if NE:
            P.append(WAIT(vm=["s"],lgkm=3))
            for t in range(NE): fin(t)
        P.append(WAIT(vm=["s"],lgkm=0)); e("s_barrier")
        for t in range(NE,N): P.extend(rr(t))
        for t in range(NE,N):
            e(f"s_waitcnt lgkmcnt({3*(N-1-t)})"); fin(t)
        P.extend(stamp(so+9,True))
        e("s_endpgm")

def ffn():
    sSL,sTT,sT2,sN=72,73,74,75
    sSeg1,sSeg2,sXb=76,77,78
    sXo=[None,79,80,81,82]
    sW1o=83
    sHst,sHld,sC=87,88,89
    vX,vW,vXR,vWR,vW2,vH,vH4,vFl,vOne,vPoll,vPA=1,2,(3,4),(5,6),7,8,9,10,11,12,13
    ACC=lambda p,q,t: 16+80*p+(q*5+t)*4
    def XF(i): return vr(176+4*i,4) if i<6 else ar(4*(i-6),4)
    AF=lambda buf,q: 200+16*buf+4*q
    t0,t1,t2_,t3=sT[:4]
    e(f"s_lshr_b32 s{t1}, s{sXCD}, 2"); e(f"s_add_u32 s{sI}, s{t1}, 8")
    if OPT['ford']:
        e(f"s_or_b32 s{t0}, s2, 4"); e(f"s_cmpk_eq_u32 s{t0}, {23*8+7}"); e("s_cbranch_scc1 L_spare")
        e(f"s_mul_i32 s{t0}, s{sXCD}, 23"); e(f"s_add_u32 s{sI}, s{sJ}, s{t0}"); e(f"s_sub_u32 s{sI}, s{sI}, 1")
    else:
        e(f"s_and_b32 s{t0}, s{sXCD}, 3"); e(f"s_cmp_eq_u32 s{t0}, 3"); e(f"s_cselect_b32 s{t0}, 10, 9")
        e(f"s_cmp_lt_u32 s{sJ}, s{t0}"); e("s_cbranch_scc1 L_spare")
        e(f"s_sub_u32 s{sI}, s{sJ}, s{t0}")
        e(f"s_mul_i32 s{t0}, s{sXCD}, 23"); e(f"s_add_u32 s{sI}, s{sI}, s{t0}")
    e(f"s_sub_u32 s{sI}, s{sI}, s{t1}")
    sWr,sD,sNX,sNW,sWr2,sNW2,sNH=90,91,93,99,100,101,3
    if OPT['fastp']:
        assert OPT['rot']==4 and OPT['early']==9
        e(f"s_mul_i32 s{sT2}, s{sI}, 9363"); e(f"s_lshr_b32 s{sT2}, s{sT2}, 16")
        e(f"s_mul_i32 s{t0}, s{sT2}, 7"); e(f"s_sub_u32 s{sN}, s{sI}, s{t0}")
        e(f"s_mov_b32 s{t0}, s{sI}"); e(f"s_addk_i32 s{t0}, -98"); e(f"s_mul_i32 s{t1}, s{t0}, 43"); e(f"s_lshr_b32 s{t1}, s{t1}, 8")
        e(f"s_mul_i32 s{t2_}, s{t1}, 6"); e(f"s_sub_u32 s{t0}, s{t0}, s{t2_}"); e(f"s_add_u32 s{t0}, s{t0}, 7")
        e(f"s_cmpk_lt_u32 s{sI}, 98"); e(f"s_cselect_b32 s{sSL}, s{sT2}, s{t1}"); e(f"s_cselect_b32 s{sTT}, s{sN}, s{t0}")
        e(f"s_add_u32 s{t3}, s{sTT}, s{sSL}"); e(f"s_and_b32 s{t3}, s{t3}, 3")
        e("v_lshrrev_b32 v14, 3, v0"); e("v_and_b32 v15, 7, v0"); e("v_lshrrev_b32 v12, 1, v14")
        e(f"s_and_b32 s{t2_}, s{sW}, 1"); e(f"s_lshl_b32 s{t2_}, s{t2_}, 2"); e(f"v_xor_b32 v15, s{t2_}, v15"); e("v_xor_b32 v13, v12, v15")
        e("v_mul_u32_u24 v12, 896, v14"); e(f"v_lshl_add_u32 v{vX}, v13, 4, v12")
        e(f"s_mul_i32 s{t0}, s{sTT}, 20"); e(f"s_add_u32 s{t0}, s{t0}, s{sW}"); e(f"s_mul_i32 s{t0}, s{t0}, 28"); e(f"s_add_u32 s{t0}, s{t0}, s{t3}"); e(f"s_lshl_b32 s{t0}, s{t0}, 8")
        e(f"v_add_u32 v{vX}, s{t0}, v{vX}")
        e(f"s_lshl_b32 s{sXb}, s{sW}, 10"); e(f"s_bitset1_b32 s{sXb}, 16"); e(f"s_mov_b32 m0, s{sXb}")
        e(f"s_mov_b32 s{X+2}, 1835008"); e(f"s_mov_b32 s{X+3}, 0x20000"); e(f"s_movk_i32 s{sXo[1]}, 28672")
        e("s_waitcnt lgkmcnt(0)")
        e(f"s_mov_b64 s[{X}:{X+1}], s[40:41]")
        P.extend(stamp(0))
        fill=[[f"s_lshl_b32 s{sXo[2]}, s{sXo[1]}, 1","v_and_b32 v13, 2, v14","v_xor_b32 v13, v13, v15","v_lshlrev_b32 v12, 2, v12"],
              [f"s_add_u32 s{sXo[3]}, s{sXo[1]}, s{sXo[2]}",f"v_lshl_add_u32 v{vW}, v13, 4, v12",f"s_lshl_b32 s{t0}, s{t3}, 4",f"s_add_u32 s{t0}, s{t0}, s{sW}",f"s_mul_i32 s{t0}, s{t0}, s{sXo[1]}"],
              [f"s_lshl_b32 s{sXo[4]}, s{sXo[1]}, 2",f"s_lshl_b32 s{t1}, s{sSL}, 8",f"s_add_u32 s{t0}, s{t0}, s{t1}",f"v_add_u32 v{vW}, s{t0}, v{vW}"],
              [f"s_mov_b64 s[{WA}:{WA+1}], s[48:49]",f"s_mov_b32 s{WA+2}, 1605632",f"s_mov_b32 s{WA+3}, s{X+3}",f"s_lshl_b32 s{sSeg2}, s{sW}, 12"]]
        for j in range(5):
            P.append(dma(vX,X,"0" if j==0 else f"s{sXo[j]}",0,"x0"))
            if j<4:
                e("s_addk_i32 m0, 4096")
                for z in fill[j]: e(z)
        e(f"s_mov_b32 m0, s{sSeg2}"); e(f"s_sub_u32 s{WU}, s50, 2048"); e(f"s_subb_u32 s{WU+1}, s51, 0")
        P.append(dma(vW,WA,"0",0,"w0a"))
        e(f"s_add_u32 s{WU+2}, s{WA+2}, 2048"); e(f"s_mov_b32 s{WU+3}, s{X+3}")
        P.append(dma(vW,WU,"0",2048,"w0a"))
        e(f"s_mov_b32 s{sW1o}, {32*3584-1024}")
        P.append(dma(vW,WA,f"s{sW1o}",1024,"w0")); P.append(dma(vW,WU,f"s{sW1o}",3072,"w0"))
        e(f"s_lshl_b32 s{t3}, s{t3}, 1"); e(f"s_sub_u32 s{sWr}, 6, s{t3}"); e(f"s_movk_i32 s{sNX}, -768"); e(f"s_mov_b32 s{sNW}, {-6*64*3584}")
    else:
        e(f"s_mul_i32 s{sT2}, s{sI}, 9363"); e(f"s_lshr_b32 s{sT2}, s{sT2}, 16")
        e(f"s_mul_i32 s{t0}, s{sT2}, 7"); e(f"s_sub_u32 s{sN}, s{sI}, s{t0}")
        e(f"s_sub_u32 s{t0}, s{sI}, 98"); e(f"s_mul_i32 s{t1}, s{t0}, 10923"); e(f"s_lshr_b32 s{t1}, s{t1}, 16")
        e(f"s_mul_i32 s{t2_}, s{t1}, 6"); e(f"s_sub_u32 s{t0}, s{t0}, s{t2_}"); e(f"s_add_u32 s{t0}, s{t0}, 7")
        e(f"s_cmp_lt_u32 s{sI}, 98"); e(f"s_cselect_b32 s{sSL}, s{sT2}, s{t1}"); e(f"s_cselect_b32 s{sTT}, s{sN}, s{t0}")
        e("v_lshrrev_b32 v14, 3, v0")
        e("v_and_b32 v15, 7, v0")
        e(f"s_and_b32 s{t0}, s{sW}, 1"); e(f"s_lshl_b32 s{t1}, s{t0}, 2")
        e("v_lshrrev_b32 v12, 1, v14"); e(f"v_or_b32 v13, s{t1}, v12"); e("v_xor_b32 v13, v13, v15")
        e(f"s_mul_i32 s{t2_}, s{sTT}, 160"); e(f"s_lshl_b32 s{t3}, s{sW}, 3"); e(f"s_add_u32 s{t2_}, s{t2_}, s{t3}")
        e(f"v_add_u32 v{vX}, s{t2_}, v14"); e(f"v_mul_u32_u24 v{vX}, 896, v{vX}"); e(f"v_lshl_add_u32 v{vX}, v13, 4, v{vX}")
        e(f"s_lshl_b32 s{t0}, s{t0}, 2")
        e("v_and_b32 v13, 2, v14"); e(f"v_or_b32 v13, s{t0}, v13"); e("v_xor_b32 v13, v13, v15")
        e(f"v_add_u32 v{vW}, s{t3}, v14"); e(f"v_mul_u32_u24 v{vW}, 3584, v{vW}"); e(f"v_lshl_add_u32 v{vW}, v13, 4, v{vW}")
        e(f"s_lshl_b32 s{t0}, s{sSL}, 8"); e(f"v_add_u32 v{vW}, s{t0}, v{vW}")
        e(f"s_lshl_b32 s{t0}, s{sSL}, 1"); e(f"s_add_u32 s{t0}, s{sTT}, s{t0}"); mod7(t0,t0,t1,OPT['rot'])
        e(f"s_sub_u32 s{sWr}, 6, s{t0}"); e(f"s_lshl_b32 s{t1}, s{t0}, 7"); e(f"v_add_u32 v{vX}, s{t1}, v{vX}")
        e(f"s_mul_i32 s{t1}, s{t0}, {64*3584}"); e(f"v_add_u32 v{vW}, s{t1}, v{vW}")
        e(f"s_mov_b32 s{sNX}, -768"); e(f"s_mov_b32 s{sNW}, {-6*64*3584}")
        e(f"s_lshl_b32 s{sSeg2}, s{sW}, 12")
        e(f"s_lshl_b32 s{sXb}, s{sW}, 10"); e(f"s_add_u32 s{sXb}, s{sXb}, 65536")
        for j in range(1,5): e(f"s_mov_b32 s{sXo[j]}, {32*j*896}")
        e(f"s_mov_b32 s{sW1o}, {32*3584-1024}")
        for b,n in ((X,1835008),(WA,1605632),(WU,1605632+2048)):
            e(f"s_mov_b32 s{b+2}, {n}"); e(f"s_mov_b32 s{b+3}, 0x20000")
        e("s_waitcnt lgkmcnt(0)")
        e(f"s_mov_b64 s[{X}:{X+1}], s[40:41]"); e(f"s_mov_b64 s[{WA}:{WA+1}], s[48:49]")
        e(f"s_sub_u32 s{WU}, s50, 2048"); e(f"s_subb_u32 s{WU+1}, s51, 0")
        P.extend(stamp(0))
    def xdma(c):
        o=[]
        for j in range(5):
            o.append([I(f"s_add_u32 m0, s{sXb}, {(c%4)*20480+j*4096}"), dma(vX,X,"0" if j==0 else f"s{sXo[j]}",0,f"x{c}")])
        o[-1]+=[ATOM(f"s_cmp_eq_u32 s{sWr}, {c}",f"s_cselect_b32 s{sD}, s{sNX}, 128"),I(f"v_add_u32 v{vX}, s{sD}, v{vX}")]
        return o
    def wdma(s):
        o=[]
        for j in range(2):
            for m in range(2):
                o.append([dma(vW,WA if m==0 else WU,"0" if j==0 else f"s{sW1o}",(2*m+j)*1024,f"w{s}" if (s or j) else "w0a")])
        o[0].insert(0,I(f"s_add_u32 m0, s{sSeg2}, {(s%4)*16384}"))
        o[-1]+=[ATOM(f"s_cmp_eq_u32 s{sWr}, {s%7}",f"s_cselect_b32 s{sD}, s{sNW}, {64*3584}"),I(f"v_add_u32 v{vW}, s{sD}, v{vW}")]
        if s==6: o[-1].append(I(f"v_add_u32 v{vW}, 128, v{vW}"))
        return o
    NTT=OPT['ntt']; R1=[176,177,178,179]; R2=[180,181,182,183]; sF0=39
    LOC=[((sSeg1,b*4096),13 if b<2 else 17) for b in range(6)]+[((sSeg2,((j+2)%4)*16384),21+2*j) for j in range(4)]
    loc=lambda b: LOC[b%10][0]
    D=Down(NTT=NTT,vt=(196,197,198),vW2=vW2,vWo=248,vH=vH,vHt=(251,252),sLast=52,vPoll=vPoll,vPoll2=14,vPA=vPA,vPO=187,vSA=188,vO=189,vRW=190,vRR=184,vS=192,vRT=96,
           sW2o=[None,84,85,86],sWr2=sWr2,sNW2=sNW2,sNH=sNH,sD=sD,sWr3=38,sNWo=36,sNHo=37,sHld=sHld,sHO=sT[5],sRow=40,
           m0=loc,rd=lambda b:(R1 if loc(b)[0]==sSeg1 else R2,loc(b)[1]),red=(65536,24576,5120),
           ACC=lambda q,t:ACC(0,q,t),AF=AF,aSt=0,aH=128,nAS=128//(4*NTT),NSL=128//(4*NTT)+(4 if NTT==5 else 0),vHS=96)
    pro=flat([xdma(s)+wdma(s) for s in range(OPT['npre'])])
    if OPT['fastp']: P.extend(pro[4][2:]+pro[8][1:])
    else: P.extend(flat(pro[:OPT['early']]))
    P.extend(stamp(51))
    mksrd(WS,60,WSN); mksrd(WD,52,1605632); mksrd(WO,44,401408); mksrd(OUT,56,1835008); mksrd(DBG,58,256)
    e("v_lshrrev_b32 v14, 4, v0")
    e("v_and_b32 v15, 15, v0")
    e("v_lshrrev_b32 v12, 1, v15"); e("v_xor_b32 v12, v12, v14"); e("v_lshlrev_b32 v12, 4, v12")
    e("v_lshl_add_u32 v12, v15, 7, v12")
    e(f"s_lshr_b32 s{t0}, s{sW}, 1"); e(f"s_mul_i32 s{t0}, s{t0}, 10240"); e(f"s_add_u32 s{t0}, s{t0}, 65536")
    e(f"v_add_u32 v{vXR[0]}, s{t0}, v12"); e(f"v_xor_b32 v{vXR[1]}, 64, v{vXR[0]}")
    e("v_bfe_u32 v12, v0, 2, 2")
    e("v_lshrrev_b32 v13, 1, v12"); e("v_and_b32 v15, 1, v14"); e("v_lshlrev_b32 v15, 1, v15"); e("v_or_b32 v13, v13, v15")
    e(f"s_and_b32 s{t0}, s{sW}, 1"); e(f"s_lshl_b32 s{t0}, s{t0}, 1"); e(f"v_xor_b32 v13, s{t0}, v13"); e("v_lshlrev_b32 v13, 5, v13")
    e("v_lshl_add_u32 v13, v14, 12, v13"); e("v_lshl_add_u32 v13, v12, 7, v13")
    e("v_and_b32 v15, 3, v0"); e(f"v_lshl_add_u32 v{vWR[0]}, v15, 3, v13"); e(f"v_xor_b32 v{vWR[1]}, 32, v{vWR[0]}")
    e(f"s_mul_i32 s{sF0}, s{sT2}, {NTT}")
    D.setup_w(sF0,sT2,sN,sT[:4])
    e(f"s_lshl_b32 s{t2_}, s{sTT}, 1"); e(f"s_lshr_b32 s{t1}, s{sW}, 1"); e(f"s_add_u32 s{t2_}, s{t2_}, s{t1}")
    e(f"s_lshl_b32 s{t0}, s{sSL}, 2"); e(f"s_and_b32 s{t3}, s{sW}, 1"); e(f"s_add_u32 s{t0}, s{t0}, s{t3}"); e(f"s_mul_i32 s{t0}, s{t0}, {NT}")
    e(f"s_mul_i32 s{t1}, s{t2_}, 5"); e(f"s_add_u32 s{t0}, s{t0}, s{t1}")
    e(f"s_lshl_b32 s{t0}, s{t0}, 10"); e(f"s_add_u32 s{sHst}, s{t0}, {H0}")
    e(f"s_lshl_b32 s{t0}, s{t2_}, 3"); e(f"s_add_u32 s{t0}, s{t0}, s{t3}"); e(f"s_cmp_ge_u32 s{sSL}, 7"); e(f"s_cselect_b32 s{t1}, 2, 0"); e(f"s_add_u32 s{t0}, s{t0}, s{t1}"); e(f"s_lshl_b32 s{t0}, s{t0}, 7")
    e(f"v_mov_b32 v{vFl}, {OOB}"); e(f"v_mov_b32 v12, s{t0}"); e("v_cmp_eq_u32 vcc, 0, v0")
    e(f"v_lshlrev_b32 v{vH}, 4, v0"); e(f"v_add_u32 v{vH4}, 4096, v{vH}")
    e(f"v_cndmask_b32 v{vFl}, v{vFl}, v12, vcc")
    e(f"s_mul_i32 s{sSeg1}, s{sW}, 24576"); e(f"s_add_u32 s{sSeg1}, s{sSeg1}, 65536")
    e(f"s_mov_b32 s{sC}, 0xbfb8aa3b")
    e(f"v_mov_b32 v{vOne}, 1")
    e("v_mov_b32 v15, 0")
    e(f"s_or_b32 s{t0}, s{sI}, s{sW}"); e(f"v_or_b32 v250, s{t0}, v0"); e("v_lshlrev_b32 v250, 8, v250")
    def reads(Pn):
        p,s,h=Pn//14,Pn//2,Pn%2
        CH=(p==1 or OPT['chainA']) and not (OPT['split0'] and s==0)
        o=[]
        for ks in ((0,1) if CH else (h,)):
            if p==0 and (h==0 or not CH):
                if s==3: o.append(I(f"v_add_u32 v{vXR[ks]}, 61440, v{vXR[ks]}"))
                for t in range(5): o.append(I(f"ds_read_b128 {XF((2*s+ks)*5+t)}, v{vXR[ks]} offset:{(s%4 if s!=3 else 0)*20480+t*2048}"))
                if s==3: o.append(I(f"v_subrev_u32 v{vXR[ks]}, 61440, v{vXR[ks]}"))
        tr=[]
        for j in range(4):
            if CH: m,ks,tl=j>>1,j&1,h
            else: m,ks,tl=j>>1,h,j&1
            for a in range(2):
                tr.append(I(f"ds_read_b64_tr_b16 {vr(AF(h,j)+2*a,2)}, v{vWR[tl]} offset:{(s%4)*16384+(2*m+ks)*1024+a*512}"))
        return tr[:4]+o+tr[4:]
    def epi(p,t):
        T=[232+k for k in range(8)]; O=240+4*(t%2) if (p or not OPT['dst']) else ACC(0,0,t)
        G=[ACC(p,k>>2,t)+(k&3) for k in range(8)]; U=[ACC(p,2+(k>>2),t)+(k&3) for k in range(8)]
        o=[]
        st=I(f"buffer_store_dwordx4 {vr(O,4)}, v{vH if t<4 else vH4}, {srd(WS)}, s{sHst} offen offset:{(t%4)*1024} {['sc1','sc0 sc1','sc1 nt','sc0 sc1 nt',''][OPT['stf']]}",f"st{p}")
        if p==1:
            for k in range(0,8,2): o.append(I(f"v_pk_mul_f32 {vr(T[k],2)}, {vr(G[k],2)}, s[48:49]"))
            for k in range(8):
                o.append(I(f"v_exp_f32 v{T[k]}, v{T[k]}"))
                if k%2==0: o.append(I(f"v_pk_mul_f32 {vr(U[k],2)}, {vr(G[k],2)}, {vr(U[k],2)}"))
            for k in range(0,8,2): o.append(I(f"v_pk_add_f32 {vr(T[k],2)}, {vr(T[k],2)}, s[50:51]"))
            for k in range(8):
                o.append(I(f"v_rcp_f32 v{G[k]}, v{T[k]}"))
                if k>=3 and k%2==1:
                    o.append(I(f"v_pk_mul_f32 {vr(U[k-3],2)}, {vr(G[k-3],2)}, {vr(U[k-3],2)}"))
                    if k>=5: o.append(I(f"v_cvt_pk_bf16_f32 v{O+(k-5)//2}, v{U[k-5]}, v{U[k-4]}"))
            o.append(I(f"v_cvt_pk_bf16_f32 v{O+2}, v{U[4]}, v{U[5]}"))
            o.append(I(f"v_pk_mul_f32 {vr(U[6],2)}, {vr(G[6],2)}, {vr(U[6],2)}"))
            o.append(I(f"v_cvt_pk_bf16_f32 v{O+3}, v{U[6]}, v{U[7]}"))
            return o+[st]
        for k in range(8): o.append(I(f"v_mul_f32 v{T[k]}, s{sC}, v{G[k]}"))
        for k in range(8):
            o.append(I(f"v_exp_f32 v{T[k]}, v{T[k]}")); o.append(I(f"v_mul_f32 v{U[k]}, v{G[k]}, v{U[k]}"))
        for k in range(8): o.append(I(f"v_add_f32 v{T[k]}, 1.0, v{T[k]}"))
        for k in range(8):
            o.append(I(f"v_rcp_f32 v{G[k]}, v{T[k]}"))
            if k>=1: o.append(I(f"v_mul_f32 v{U[k-1]}, v{G[k-1]}, v{U[k-1]}"))
            if k>=3 and k%2==1: o.append(I(f"v_cvt_pk_bf16_f32 v{O+(k-3)//2}, v{U[k-3]}, v{U[k-2]}"))
        o.append(I(f"v_mul_f32 v{U[7]}, v{G[7]}, v{U[7]}"))
        o.append(I(f"v_cvt_pk_bf16_f32 v{O+3}, v{U[6]}, v{U[7]}"))
        o.append(I(f"buffer_store_dwordx4 {vr(O,4)}, v{vH if t<4 else vH4}, {srd(WS)}, s{sHst} offen offset:{(t%4)*1024} {['sc1','sc0 sc1','sc1 nt','sc0 sc1 nt',''][OPT['stf']]}",f"st{p}"))
        return o
    D.setup_lane([R1,R2],[sSeg1,sSeg2],sT[:4]); D.setup_io(sF0,sN,sT[:4])
    e(f"s_cmp_ge_u32 s{sF0}, 125"); e(f"s_cselect_b32 s52, {OOB}, 0"); e(f"v_or_b32 v251, s52, v{vH}"); e(f"v_or_b32 v252, s52, v{vH4}")
    e(f"s_mov_b32 s48, s{sC}"); e(f"s_mov_b32 s49, s{sC}"); e("s_mov_b32 s50, 1.0"); e("s_mov_b32 s51, 1.0")
    e(f"s_add_u32 s{t0}, s{sSeg2}, 147456"); e(f"v_add_u32 v249, s{t0}, v{vH}")
    for q in range(4): e(f"ds_write_b128 v249, {vr(176+4*q,4)} offset:{q*1024}")
    unpark=[I(f"ds_read_b128 {vr(176+4*q,4)}, v249 offset:{q*1024}") for q in range(4)]
    P.extend(stamp(52))
    P.extend(flat(pro[OPT['early']:]))
    P.extend(stamp(53))
    P.append(WAIT(vm=["x0","w0a"]+([] if OPT['split0'] else ["w0"]),lgkm=0)); e("s_barrier")
    P.extend(stamp(1))
    P.extend(reads(0))
    first=[]
    if OPT['npre']==1:
        first=xdma(1)+wdma(1); P.extend(flat(first[:OPT['pre1']])); first=first[OPT['pre1']:]
    P.append(WAIT(lgkm=0))
    eA=[epi(0,t) for t in range(5)]
    held=[(x[-2],x.pop()) for x in eA] if OPT['dst'] else []
    pool=Pool(flat(eA))
    dq=[]
    for s in range(max(2,OPT['npre']),14):
        if s<=6: dq.append((max(0,2*(s-4)+1),xdma(s)))
        dq.append((max(0,2*(s-4)+1),wdma(s)))
        if s==8: dq.append((0,[[I(f"buffer_load_dword v14, v15, {srd(DBG)}, 0 offen sc1","clr")]]))
    w2q=[(max(OPT['w2p0'],LOC[b][1]),D.w2dma(b)) for b in range(10)]
    cur=first
    for Pn in range(28):
        p,s,h=Pn//14,Pn//2,Pn%2
        CH=(p==1 or OPT['chainA']) and not (OPT['split0'] and s==0)
        mf=[]
        for jq in range(2 if CH else 4):
            for t in range(5):
                for ks in ((0,1) if CH else (h,)):
                    q = (2*jq+h) if CH else jq
                    j = (2*jq+ks) if CH else jq
                    d=vr(ACC(p,q,t),4)
                    mf.append(mfma(d,vr(AF(h,j),4),XF((2*(s%7)+ks)*5+t),"0" if (s%7==0 and ks==0) else d))
        f=[]
        if Pn<27:
            rd=reads(Pn+1)
            if Pn==0 and OPT['split0']:
                xs=[x for x in rd if "b128" in x.op]; tr=[x for x in rd if "b128" not in x.op]
                f+=spread(xs,0,5)+[(7.9,WAIT(vm=["w0"])),(7.95,I("s_barrier"))]+spread(tr,8,16)
            else: f+=spread(rd,0,min(12,len(rd)))
        items=[]
        while len(items)<(OPT['rateA'] if Pn<OPT['nA'] else OPT['rate']):
            if not cur:
                if dq and dq[0][0]<=Pn: cur=dq.pop(0)[1]
                elif w2q and w2q[0][0]<=Pn: cur=w2q.pop(0)[1]
                else: break
            items.append(cur.pop(0))
        n=len(items)
        for k,it in enumerate(items):
            pos=1+k*(19 if Pn else 14)/max(n,5)
            for x in it:
                f.append((pos-1 if x.cls=="salu" else (pos+1 if x.cls=="valu" else pos),x))
        if Pn==16: f+=spread(unpark,8,12)
        if Pn==OPT['gop']: f.append((19,I(f"buffer_store_dword v{vOne}, v250, {srd(DBG)}, 0 offen offset:4 sc1","go")))
        if Pn>=OPT['dst'] and not dq and (w2only:=all(x.tag[0]=="b" for it in cur for x in it if x.cls=="vm")):
            for k in range(2):
                if held and all(y is not held[0][0] for y in pool.q[:400]) and not any(y.wr&held[0][1].rd for y in pool.q): f.append((18-8*(1-k)+1,held.pop(0)[1]))
        tl=[]
        if h==0: tl=[WAIT(vm=[f"w{s+1}",f"x{s+1}"],lgkm=0),I("s_barrier")]
        elif Pn<27: tl=[WAIT(lgkm=0)]
        n0=len(P)
        if OPT['p2']:
            P.extend(pack2(mf,f,pool if p==1 else None,(OPT['capc']-2 if Pn<OPT['cp'] and p==1 else 0),lo=(2 if Pn==14 else 0),tail=tl,dsend=16))
        else:
            P.extend(pack(mf,f,pool if p==1 else None,(OPT['capc'] if Pn<OPT['cp'] else OPT['cap']),lo=(2 if Pn==14 else 0))); P.extend(tl)
        if OPT['est']: print("ffn period",Pn,estimate(P[n0:]),"pool",len(pool.q))
        if Pn==13: P.extend(stamp(2))
        if h==0: P.extend(stamp(32+s))
    assert not dq
    print("left: epiA ops",len(pool.q),"w2 items",len(w2q))
    P.extend(stamp(3))
    P.extend(pool.q)
    P.extend([x[1] for x in held])
    P.extend(flat(cur))
    for _,g_ in w2q: P.extend(flat(g_))
    e(f"s_add_u32 s{sHst}, s{sHst}, {2*NT*1024}")
    S=[WAIT(vm=["b0"])]+D.treads(0); WQ=[]
    for j in range(8):
        S+=[WAIT(vm=[f"b{j+1}"])]+D.treads(j+1)+[WAIT(lgkm=8)] if j<7 else [WAIT(lgkm=0)]
        if OPT['pA']==5+j: S.append(D.poll("pollA"))
        if j>=8-OPT['weave']: WQ+=[(0,it) for it in D.w2dma(10+j)]
        else: S+=[x for x in flat(D.w2dma(10+j)) if not (x.cls=="vm" and j>=8-OPT['skipS'])]
        if j+1==OPT['nin']: n_in=len(S)
        if j+1==OPT['sBs']+OPT['nin']:
            S+=[WAIT(vm=["st1"]),I(f"buffer_atomic_add v{vOne}, v{vFl}, {srd(WS)}, 0 offen offset:512","sigB")]+stamp(10)
    E=[]
    for t in range(5):
        E+=epi(1,t)+stamp(46+t)
        if t==OPT['sAt']: E.append("sigA")
    k0=0
    for k,x in enumerate(E):
        if x=="sigA":
            P.append(WAIT(vm=["st0","clr"])); check_or_spin(15,0,1,DBG,14)
            e(f"buffer_atomic_add v{vOne}, v{vFl}, {srd(WS)}, 0 offen","sigA")
        else: P.append(x)
        k1=max(k0,n_in*(k+1)//len(E))
        while 0<k1<len(S) and S[k1-1].cls=="ds" and S[k1].cls=="ds": k1+=1
        P.extend(S[k0:k1]); k0=k1
    P.extend(stamp(4))
    P.extend(S[k0:])
    D.main(WQ,OPT['lead'],OPT['pah'])

HROW=[118784,49152,118784,65536,81920,139264,49152,0,118784,65536,16384,32768,98304,81920,139264,49152,0,118784]
hR=[[1,2,4,5],[64,65,66,67],[68,69,70,71]]; hsN,hsF0,hsQ=58,59,57
HD=Down(NTT=3,vt=(240,241,242),vW2=3,vWo=6,vH=231,vHt=(231,231),sLast=47,vPoll=12,vPoll2=14,vPA=72,vPO=73,vSA=74,vO=75,vRW=76,vRR=77,vS=80,vRT=96,
        sW2o=[None,40,41,42],sWr2=43,sNW2=47,sNH=48,sD=49,sWr3=50,sNWo=51,sNHo=52,sHld=53,sHO=54,sRow=55,
        m0=lambda b:(hsQ,HROW[b]),rd=lambda b:(hR[HROW[b]>>16],HROW[b]&0xffff),red=(0,4096,16384),
        ACC=lambda q,t:16+(q*3+t)*4,AF=lambda buf,q:160+16*buf+4*q,aSt=128,aH=0,nAS=10,NSL=10,vHS=0)
def helper_setup(regs):
    t=sT[:4]; t=[66,67,70,71]
    mksrd(WO,44,401408); mksrd(WD,52,1605632); mksrd(OUT,56,1835008)
    e(f"s_mul_i32 s{hsF0}, s{sXCD}, 3"); e(f"s_add_u32 s{hsF0}, s{hsF0}, 104"); e(f"s_add_u32 s61, s{sXCD}, 26"); e(f"s_lshl_b32 s{hsQ}, s{sW}, 12")
    keep=(HD.vW2,HD.vWo); HD.vW2,HD.vWo=regs[0],regs[1]
    HD.setup_w(hsF0,61,hsN,t)
    e(f"s_cmp_gt_u32 s{hsN}, 6"); e(f"s_cselect_b32 s66, {OOB}, 0"); e(f"v_or_b32 v{regs[0]}, s66, v{regs[0]}"); e(f"v_or_b32 v{regs[1]}, s66, v{regs[1]}")
    HD.vW2,HD.vWo=keep
    HD.setup_lane([regs[2:6]],[hsQ],t)
    e("v_lshlrev_b32 v231, 4, v0")
    HD.setup_io(hsF0,hsN,t)
    for j in range(8): e(f"v_accvgpr_write_b32 a{248+j}, v{72+j}")
hwin=[0]
def hstage(b):
    o=[]; w=HROW[b]>>16
    if w!=hwin[0]: o+=[I(f"v_add_u32 v{r}, {((w-hwin[0])<<16)&0xffffffff}, v{r}") for r in hR[0]]; hwin[0]=w
    return o+HD.treads(b,lambda b_:(hR[0],HROW[b_]&0xffff))

def attn():
    sAT,sHG=72,73
    sXb,sWb=74,75
    sWo={(0,0):76,(0,1):77,(1,0):78,(1,1):79,(2,0):80,(2,1):81}
    sK,sD0,sD1,sO,sC=82,83,84,85,86
    mE,mM0,mM1,mZ=88,90,100,68
    t0,t1=66,67; t2_,t3=70,71
    vX=[1,2,3,4,5]; vW=6; vXR=(7,8); vR0=(9,10); vR1=(11,12); vRq=(13,14); vPad=15
    vA=(224,225)
    TBL=159744; XB=98304
    Q=lambda u,tl: 16+(u*2+tl)*4
    K=lambda t,tl: 80+(t*2+tl)*4
    V=lambda d,t: 152+d*36+t*4
    XA=lambda buf,t: buf*36+4*t
    WF=lambda buf,m,tl: 72+buf*24+(2*m+tl)*4
    e("L_attn:")
    if OPT['ford']: e(f"s_sub_u32 s{sJ}, s{sJ}, 23")
    e(f"s_lshr_b32 s{sAT}, s{sXCD}, 2"); e(f"s_lshl_b32 s{sAT}, s{sAT}, 3"); e(f"s_add_u32 s{sAT}, s{sAT}, s{sJ}"); e(f"s_sub_u32 s{sAT}, s{sAT}, 1"); e(f"s_and_b32 s{sHG}, s{sXCD}, 3")
    def ap1():
        sV=87 if OPT['ap1']==2 else 46
        e(f"s_lshl_b32 s{sV}, s{sAT}, 2"); e(f"s_add_u32 s{sV}, s{sV}, s{sHG}"); e(f"s_lshl_b32 s{sV}, s{sV}, 2"); e(f"s_add_u32 s{sV}, s{sV}, s{sW}")
        e("v_min_u32 v240, 47, v0"); e("v_mul_u32_u24 v241, 21846, v240"); e("v_lshrrev_b32 v241, 16, v241"); e("v_mul_u32_u24 v242, 3, v241"); e("v_sub_u32 v242, v240, v242")
        e(f"s_lshl_b32 s{t0}, s{sV}, 4"); e(f"v_add_u32 v243, s{t0}, v241"); e("v_mul_u32_u24 v243, 896, v243"); e("v_lshl_add_u32 v243, v242, 8, v243"); e("v_add_u32 v243, 128, v243")
        e(f"s_and_b32 s{t0}, s{sV}, 63"); e("v_min_u32 v241, 13, v241"); e("v_lshlrev_b32 v242, 7, v242"); e(f"v_add_u32 v242, s{t0}, v242"); e("v_add_u32 v242, 64, v242")
        e("v_mul_u32_u24 v242, 3584, v242"); e("v_lshl_add_u32 v242, v241, 8, v242")
        if OPT['ap1']==2: e("s_waitcnt lgkmcnt(0)")
        e(f"s_cmp_ge_u32 s{sV}, 192"); e(f"s_cselect_b32 s{WU}, s50, s48"); e(f"s_cselect_b32 s{WU+1}, s51, s49")
        e(f"s_cmp_lt_u32 s{sV}, 128"); e(f"s_cselect_b32 s{WU}, s40, s{WU}"); e(f"s_cselect_b32 s{WU+1}, s41, s{WU+1}"); e(f"s_cselect_b64 vcc, -1, 0")
        e(f"s_mov_b32 s{WU+2}, 1605632"); e(f"s_cselect_b32 s{WU+2}, 1835008, s{WU+2}"); e(f"s_mov_b32 s{WU+3}, 0x20000")
        e("v_cndmask_b32 v242, v242, v243, vcc")
        e(f"buffer_load_dword a140, v242, {srd(WU)}, 0 offen","pf")
    if OPT['ap1']==2: ap1()
    e("v_lshrrev_b32 v230, 3, v0"); e("v_and_b32 v231, 7, v0")
    e(f"s_and_b32 s{t0}, s{sW}, 1"); e(f"s_lshl_b32 s{t1}, s{t0}, 2")
    e("v_lshrrev_b32 v232, 1, v230"); e(f"v_or_b32 v232, s{t1}, v232"); e("v_xor_b32 v232, v232, v231"); e("v_lshlrev_b32 v232, 4, v232")
    e(f"s_lshl_b32 s{t2_}, s{sAT}, 7"); e(f"s_lshl_b32 s{t3}, s{sW}, 3"); e(f"s_add_u32 s{t2_}, s{t2_}, s{t3}")
    e(f"v_add_u32 v{vX[0]}, s{t2_}, v230"); e(f"v_mul_u32_u24 v{vX[0]}, 896, v{vX[0]}"); e(f"v_add_u32 v{vX[0]}, v{vX[0]}, v232")
    for j in range(1,5): e(f"v_add_u32 v{vX[j]}, {32*j*896}, v{vX[0]}")
    e(f"s_cmp_lt_u32 s{t2_}, 16"); e(f"s_cselect_b32 s{t0}, {OOB}, 0"); e(f"v_or_b32 v{vX[0]}, s{t0}, v{vX[0]}")
    e(f"s_cmp_ge_u32 s{sW}, 2"); e(f"s_cselect_b32 s{t0}, {OOB}, 0"); e(f"v_or_b32 v{vX[4]}, s{t0}, v{vX[4]}")
    e("v_lshrrev_b32 v230, 4, v0"); e("v_and_b32 v231, 15, v0")
    e(f"s_and_b32 s{t0}, s{sW}, 2"); e(f"s_lshl_b32 s{t0}, s{t0}, 1"); e(f"v_or_b32 v232, s{t0}, v230"); e("v_lshlrev_b32 v232, 1, v232"); e("v_xor_b32 v232, v232, v231")
    e(f"s_lshl_b32 s{t0}, s{sW}, 2"); e(f"v_add_u32 v{vW}, s{t0}, v230"); e(f"v_mul_u32_u24 v{vW}, 2688, v{vW}")
    e(f"v_lshl_add_u32 v{vW}, v232, 4, v{vW}"); e(f"s_mul_i32 s{t0}, s{sHG}, 224"); e(f"v_add_u32 v{vW}, s{t0}, v{vW}")
    e(f"v_mov_b32 v233, {OOB}"); e("v_cmp_lt_u32 vcc, 13, v232"); e(f"v_cndmask_b32 v{vW}, v{vW}, v233, vcc")
    sWr,sD,sNW,sKx,sKt=92,93,99,87,3
    e(f"s_lshl_b32 s{t0}, s{sHG}, 1"); e(f"s_add_u32 s{t0}, s{t0}, s{sAT}")
    if OPT['arot']==7:
        e(f"s_mul_i32 s{t1}, s{t0}, 9363"); e(f"s_lshr_b32 s{t1}, s{t1}, 16"); e(f"s_mul_i32 s{t1}, s{t1}, 7"); e(f"s_sub_u32 s{t0}, s{t0}, s{t1}")
    elif OPT['arot']==2: e(f"s_and_b32 s{t0}, s{t0}, 1"); e(f"s_mul_i32 s{t0}, s{t0}, 3")
    elif OPT['arot']==4: e(f"s_and_b32 s{t0}, s{sAT}, 3"); e(f"s_lshl_b32 s{t0}, s{t0}, 1")
    else: e(f"s_mov_b32 s{t0}, 0")
    e(f"s_sub_u32 s{sWr}, 6, s{t0}"); e(f"s_lshl_b32 s{sKx}, s{t0}, 7"); e(f"s_lshl_b32 s{sKt}, s{t0}, 9")
    e(f"s_mul_i32 s{t1}, s{t0}, {64*2688}"); e(f"v_add_u32 v{vW}, s{t1}, v{vW}"); e(f"s_mov_b32 s{sNW}, {-13*32*2688}")
    e(f"s_lshl_b32 s{sXb}, s{sW}, 10"); e(f"s_add_u32 s{sXb}, s{sXb}, {XB}")
    e(f"s_mul_i32 s{sWb}, s{sW}, 6144")
    for (m,j),r in sWo.items():
        imm=((2*m+j)%4)*1024
        e(f"s_mov_b32 s{r}, {4096+m*896+16*j*2688-imm}")
    e(f"s_lshl_b32 s{t0}, s{sW}, 6"); e(f"v_add_u32 v234, s{t0}, v0"); e("v_lshlrev_b32 v235, 2, v234")
    e("s_waitcnt lgkmcnt(0)")
    mksrd(GW,54,896); mksrd(X,40,1835008,14336); mksrd(WA,42,1204224,4096)
    P.extend(stamp(0))
    if OPT['ap1']==1: ap1()
    e(f"buffer_load_dword v236, v235, {srd(GW)}, 0 offen","gw")
    def xdma(c):
        o=[I(f"s_mov_b32 s{sK}, s{sKx}"),I(f"s_add_u32 s{sKx}, s{sKx}, 128"),ATOM(f"s_cmp_eq_u32 s{sWr}, {c}",f"s_cselect_b32 s{sKx}, 0, s{sKx}")]
        for j in range(5):
            o.append(I(f"s_add_u32 m0, s{sXb}, {(c%3)*20480+j*4096}"))
            o.append(dma(vX[j],X,f"s{sK}",0,f"x{c}"))
        return o
    def wdma(k):
        o=[]
        for m in range(3):
            if m!=1: o.append(I(f"s_add_u32 m0, s{sWb}, {(k%4)*24576+(4096 if m==2 else 0)}"))
            for j in range(2): o.append(dma(vW,WA,f"s{sWo[(m,j)]}",((2*m+j)%4)*1024,f"w{k}"))
        if k%2==1:
            o[-1:-1]=[ATOM(f"s_cmp_eq_u32 s{sWr}, {k//2}",f"s_cselect_b32 s{sD}, s{sNW}, {32*2688}")]
            o.append(I(f"v_add_u32 v{vW}, s{sD}, v{vW}"))
        else: o.append(I(f"v_add_u32 v{vW}, {32*2688}, v{vW}"))
        return o
    pro=xdma(0)+wdma(0)+wdma(1)
    cutp=[k for k,x in enumerate(pro) if x.cls=="vm"][OPT['aearly']-1]+1 if OPT['aearly'] else 0
    P.extend(pro[:cutp])
    aq=[(0,xdma(1)),(0,wdma(2)),(0,wdma(3)),(0,xdma(2))]
    for k in range(4,14):
        aq.append((k-4+(1 if k-4<OPT['amid'] else 0),wdma(k)))
        if k%2==1 and (k+1)//2<=6: aq.append((2*((k+1)//2-3)+1+(1 if 2*((k+1)//2-3)+1<OPT['amid'] else 0),xdma((k+1)//2)))
    acur=[]
    mksrd(WS,60,WSN); mksrd(DBG,58,256)
    HELP=OPT['ntt']==4
    APW=[94,95,96,97] if not (OPT['stamp'] or OPT['probe']!=-2) else [12,13,14,15]
    if OPT['apW']>=0:
        if APW[0]==12: APW=[4+60+0,0,0,0]
    APW=[48,49,50,51]
    if HELP: e(f"s_and_b32 s{t0}, s{sXCD}, 3"); e(f"s_cmp_eq_u32 s{t0}, 3"); e(f"s_cselect_b32 s{t0}, 1, 0"); e(f"s_add_u32 s{hsN}, s{sJ}, s{t0}")
    if HELP:
        helper_setup([232,233,234+9,245,246,247])
        for j,r in enumerate([232,243,245,246,247,233]): e(f"v_accvgpr_write_b32 a{122+j}, v{r}")
    else: mksrd(WO,44,401408); mksrd(WD,52,1605632)
    e(f"s_sub_u32 s{t0}, s{sJ}, 1"); e(f"s_lshl_b32 s{t0}, s{t0}, 2"); e(f"s_add_u32 s{t0}, s{t0}, s{sW}"); e(f"s_lshl_b32 s{t0}, s{t0}, 6")
    e(f"v_add_u32 v227, s{t0}, v0"); e("v_lshlrev_b32 v226, 7, v227"); e(f"s_mov_b32 s36, {2048*128}")
    if OPT['apW']>=0:
        e(f"s_lshl_b32 s{t0}, s{sAT}, 2"); e(f"s_add_u32 s{t0}, s{t0}, s{sHG}"); e(f"s_lshl_b32 s{t0}, s{t0}, 2"); e(f"s_add_u32 s{t0}, s{t0}, s{sW}")
        e(f"s_cmp_ge_u32 s{t0}, 128"); e(f"s_cselect_b32 s{WU}, s{APW[2]}, s{APW[0]}"); e(f"s_cselect_b32 s{WU+1}, s{APW[3]}, s{APW[1]}"); e(f"s_mov_b32 s{WU+2}, 1605632"); e(f"s_mov_b32 s{WU+3}, 0x20000")
        e(f"s_and_b32 s{t0}, s{t0}, 127"); e(f"s_mul_i32 s{t0}, s{t0}, 49"); e("v_min_u32 v238, 48, v0"); e(f"v_add_u32 v238, s{t0}, v238"); e("v_lshlrev_b32 v238, 8, v238"); e("v_add_u32 v238, 128, v238")
        e("v_accvgpr_write_b32 a129, v238")
    if OPT['apA']>=0 or OPT['apB']>=0:
        e("v_mul_u32_u24 v228, 9363, v227"); e("v_lshrrev_b32 v228, 22, v228"); e("v_mul_u32_u24 v228, 448, v228"); e("v_add_u32 v228, v228, v227"); e("v_lshlrev_b32 v228, 7, v228")
        e("v_cmp_lt_u32 vcc, 1791, v227"); e(f"v_mov_b32 v229, {OOB}"); e("v_cndmask_b32 v227, v228, v229, vcc"); e(f"v_add_u32 v239, {448*128}, v227"); e("v_accvgpr_write_b32 a128, v239")
        for j in range(1,4): e(f"s_mov_b32 s{36+j}, {3584*128*j}")
    e("v_lshrrev_b32 v230, 4, v0"); e("v_and_b32 v231, 15, v0")
    e("v_lshrrev_b32 v232, 1, v231"); e("v_xor_b32 v232, v232, v230"); e("v_lshlrev_b32 v232, 4, v232")
    e("v_lshl_add_u32 v232, v231, 7, v232"); e(f"v_add_u32 v{vXR[0]}, {XB}, v232"); e(f"v_xor_b32 v{vXR[1]}, 64, v{vXR[0]}")
    e("v_bfe_u32 v232, v0, 2, 2"); e("v_and_b32 v233, 3, v0")
    e("v_and_b32 v237, 1, v230"); e("v_lshl_add_u32 v238, v237, 2, v232"); e("v_lshlrev_b32 v238, 2, v238")
    e("v_mul_u32_u24 v237, 12288, v237"); e("v_lshrrev_b32 v239, 1, v230"); e("v_lshl_add_u32 v237, v239, 10, v237"); e("v_lshl_add_u32 v237, v232, 8, v237")
    e(f"s_mul_i32 s{t0}, s{sW}, 7")
    e(f"v_add_u32 v239, s{t0}, v233")
    e("v_xor_b32 v240, v239, v238"); e(f"v_lshl_add_u32 v{vR0[0]}, v240, 3, v237")
    e("v_add_u32 v239, 4, v239")
    e("v_and_b32 v240, 3, v239"); e("v_or_b32 v240, 28, v240"); e("v_cmp_eq_u32 vcc, 3, v233"); e("v_cndmask_b32 v239, v239, v240, vcc")
    e("v_xor_b32 v240, v239, v238"); e(f"v_lshl_add_u32 v{vR1[0]}, v240, 3, v237")
    e(f"v_cndmask_b32 v{vPad}, 0, 1, vcc")
    e(f"v_add_u32 v{vR0[1]}, 49152, v{vR0[0]}"); e(f"v_add_u32 v{vR1[1]}, 49152, v{vR1[0]}")
    e("v_lshl_add_u32 v240, v230, 3, v232"); e("v_lshlrev_b32 v240, 3, v240"); e(f"v_add_u32 v240, {TBL}, v240")
    e(f"v_cndmask_b32 v{vRq[0]}, v{vR1[0]}, v240, vcc"); e(f"v_cndmask_b32 v{vRq[1]}, v{vR1[1]}, v240, vcc")
    P.append(WAIT(vm=["gw"]))
    e("v_and_b32 v244, 0xffff, v236"); e("v_mov_b32 v245, 0"); e("v_lshrrev_b32 v246, 16, v236"); e("v_mov_b32 v247, 0")
    e("v_lshlrev_b32 v234, 4, v234"); e(f"v_add_u32 v234, {TBL}, v234")
    e("ds_write_b128 v234, v[244:247]")
    def reads(k):
        sl=k%4; h=sl//2; buf=k%2
        pre=[]; tr=[]
        for a in range(2):
            imm=(sl%2)*24576+a*6144
            pre.append(I(f"s_add_u32 s{(sD0,sD1)[a]}, s{sKt}, {(256*(k%2)+32*a-imm)&0xffffffff}"))
            pre.append(I(f"v_mad_i32_i24 v{vA[a]}, v{vPad}, s{(sD0,sD1)[a]}, v{vRq[h]}"))
        for m in range(3):
            for tl in range(2):
                for a in range(2):
                    ad = vR0[h] if tl==0 else (vA[a] if m==0 else vR1[h])
                    tr.append(I(f"ds_read_b64_tr_b16 {ar(WF(buf,m,tl)+2*a,2)}, v{ad} offset:{(sl%2)*24576+a*6144+m*2048}"))
        xs=[I(f"ds_read_b128 {ar(XA(buf,t),4)}, v{vXR[k%2]} offset:{((k//2)%3)*20480+t*2048}") for t in range(9)]
        if k%2==1: pre+=[I(f"s_add_u32 s{sKt}, s{sKt}, 512"),ATOM(f"s_cmp_eq_u32 s{sWr}, {k//2}",f"s_cselect_b32 s{sKt}, 0, s{sKt}")]
        return pre+tr[:2]+xs+tr[2:]
    P.extend(pro[cutp:])
    P.append(WAIT(vm=["x0","w0"],lgkm=0)); e("s_barrier")
    P.extend(stamp(1))
    P.extend(reads(0))
    if OPT['amid']: P.append(WAIT(lgkm=0))
    else: P.append(WAIT(vm=["w1"],lgkm=0)); e("s_barrier")
    cA0,cB0,cA1,cB1,vNeg,vH,vH4,vSt,vFl=226,227,228,229,230,231,250,251,252
    import struct
    f2u=lambda x: struct.unpack("<I",struct.pack("<f",x))[0]
    n0=len(P)
    e("v_lshrrev_b32 v232, 4, v0"); e("v_and_b32 v233, 15, v0")
    e("v_and_b32 v234, 1, v233"); e(f"v_cmp_eq_u32 s[{mE}:{mE+1}], 0, v234")
    e("v_lshl_add_u32 v235, v232, 2, v234"); e(f"v_cmp_le_u32 s[{mM0}:{mM0+1}], v235, v233")
    e("v_add_u32 v235, 2, v235"); e(f"v_cmp_le_u32 s[{mM1}:{mM1+1}], v235, v233")
    e("v_mov_b32 v236, 0xffff0000"); e("v_mov_b32 v237, 0xffff"); e(f"v_lshlrev_b32 v{vH}, 4, v0"); e(f"v_add_u32 v{vH4}, 4096, v{vH}")
    e(f"v_cndmask_b32 v236, v236, v237, s[{mE}:{mE+1}]")
    e(f"v_cndmask_b32 v{cA0}, 0, v236, s[{mM0}:{mM0+1}]"); e(f"v_xor_b32 v{cB0}, v{cA0}, v236")
    e(f"v_cndmask_b32 v{cA1}, 0, v236, s[{mM1}:{mM1+1}]"); e(f"v_xor_b32 v{cB1}, v{cA1}, v236")
    e(f"v_mov_b32 v{vNeg}, 0xf149f2ca")
    P.append(ATOM(f"s_cmp_eq_u32 s{sAT}, 0",f"s_cselect_b64 s[{mZ}:{mZ+1}], -1, 0"))
    e(f"s_mov_b32 s{sC}, {f2u(28**-0.5*math.log2(math.e)):#x}"); e(f"s_mov_b32 s{sK}, 0x3fb8aa3b")
    e(f"s_lshl_b32 s{t0}, s{sHG}, 2"); e(f"s_add_u32 s{t0}, s{t0}, s{sW}"); e(f"s_add_u32 s{t0}, s{t0}, 56"); e(f"s_mul_i32 s{t0}, s{t0}, {NT}")
    e(f"s_lshl_b32 s{t1}, s{sAT}, 3"); e(f"s_add_u32 s{t0}, s{t0}, s{t1}"); e(f"s_lshl_b32 s{t0}, s{t0}, 10"); e(f"s_add_u32 s{sO}, s{t0}, {H0}")
    e(f"s_mul_i32 s{t0}, s{sHG}, {SSTR}"); e(f"s_lshl_b32 s{t1}, s{sAT}, 9"); e(f"s_add_u32 s{t0}, s{t0}, s{t1}"); e(f"s_add_u32 s{t0}, s{t0}, {S0}")
    P.append(ATOM(f"s_cmp_eq_u32 s{sW}, 0",f"s_cselect_b32 s{t0}, s{t0}, {OOB}"))
    e(f"v_lshlrev_b32 v{vSt}, 2, v0"); e(f"v_add_u32 v{vSt}, s{t0}, v{vSt}")
    e(f"s_lshl_b32 s{t0}, s{sAT}, 2"); e(f"s_add_u32 s{t0}, s{t0}, s{sHG}"); e(f"s_add_u32 s{t0}, s{t0}, 208"); e(f"s_lshl_b32 s{t0}, s{t0}, 7")
    e("v_min_u32 v238, 1, v0"); e("v_lshlrev_b32 v238, 31, v238"); e(f"v_or_b32 v{vFl}, s{t0}, v238")
    apool=Pool(P[n0:]); del P[n0:]
    U=range(8)
    A=lambda u: 232+u; B=lambda u: 240+u; M=lambda u: 170+u; T=lambda u: 178+u; L=lambda u: 206+u
    SP=lambda u: K(u,1); SO=lambda u: Q(u,1); PQ=lambda u: Q(u,0)
    ZC=(224,225)
    def pk(d,a): return I(f"v_cvt_pk_bf16_f32 v{d}, v{a}, v{a+1}")
    def pack4(d,a,b): return [pk(d,a),pk(d+1,a+2),pk(d+2,b),pk(d+3,b+2)]
    def seq(groups,cap=2):
        f=[]; g=0; room=cap
        for mg,ins in groups:
            for x in ins:
                if g<mg: g=mg; room=cap
                if cost(x)>room: g+=1; room=cap
                f.append((g,x)); room-=cost(x)
        return f
    for k in range(14):
        buf=k%2; mf=[]
        c=lambda d: "0" if k==0 else d
        two=lambda n: [(x,tl) for x in range(n) for tl in range(2)] if k==13 else [(x,tl) for tl in range(2) for x in range(n)]
        for u,tl in two(8): d=vr(Q(u,tl),4); mf.append(mfma(d,ar(WF(buf,0,tl),4),ar(XA(buf,u+1),4),c(d)))
        for t,tl in two(9): d=vr(K(t,tl),4); mf.append(mfma(d,ar(WF(buf,1,tl),4),ar(XA(buf,t),4),c(d)))
        for tl in range(2):
            for t in range(9): d=vr(V(tl,t),4); mf.append(mfma(d,ar(XA(buf,t),4),ar(WF(buf,2,tl),4),c(d)))
        f=[]
        if k<OPT['amid']:
            f+=[(25.9,WAIT(vm=[f"w{k+1}",f"x{(k+1)//2}"])),(25.95,I("s_barrier"))]+spread(reads(k+1),26,47)
        elif k<13: f+=spread(reads(k+1),0,36)
        dm=[]; nd=0
        while nd<OPT['arate']:
            if not acur:
                if aq and aq[0][0]<=k: acur=list(aq.pop(0)[1])
                else: break
            x=acur.pop(0); dm.append(x); nd+=(x.cls=="vm")
            while acur and acur[0].cls=="valu": dm.append(acur.pop(0))
        if k==8:
            dm.append(I("v_mov_b32 v249, 0")); dm.append(I(f"buffer_load_dword v248, v249, {srd(DBG)}, 0 offen sc1","clr"))
        if OPT['apf'] and OPT['apfk']<=k<OPT['apfk']+3:
            kk=k-OPT['apfk']
            if kk==0: dm+=[I(f"buffer_load_dword a{120+j}, v226, {srd(WO)}, {['0','s36'][j]} offen","pf") for j in range(2)]
        if k==OPT['apW']: dm+=[I("v_accvgpr_read_b32 v238, a129"),I(f"buffer_load_dword a138, v238, {srd(WU)}, 0 offen","pf")]
        for base,k0,av in ((130,OPT['apA'],227),(134,OPT['apB'],239)):
            if k0>=0 and k0<=k<k0+2:
                if av==239 and k==k0: dm.append(I("v_accvgpr_read_b32 v239, a128"))
                dm+=[I(f"buffer_load_dword a{base+2*(k-k0)+j}, v{av}, {srd(WD)}, {['0','s37','s38','s39'][2*(k-k0)+j]} offen","pf") for j in range(2)]
        if HELP:
            if k==8:
                assert all(x.tag[0]!="x" for x in dm+acur+flat([g_ for _,g_ in aq]) if x.cls=="vm")
                f+=spread([I(f"v_accvgpr_read_b32 v{r}, a{122+j}") for j,r in enumerate([HD.vW2]+hR[0])],44,51)
            for b in {9:[0],10:[1],11:[2,3,4],12:[5,6,7],13:list(range(8,8+OPT['hp13']))}.get(k,[]):
                assert not acur
                dm+=flat(HD.w2dma(b))
            sb={10:[0],11:[1],12:[2,3]}.get(k,[])
            if sb: f+=spread([WAIT(vm=[f"b{sb[-1]}"])]+flat([hstage(b) for b in sb]),36.5,50)
        pos=0; nd=0
        for x in dm:
            if x.cls=="vm": nd+=1
            pos=max(pos+0.001,4.3*nd-(2 if x.cls=="vm" else (1 if x.cls=="valu" else -1))); f.append((pos,x))
        if k==13:
            assert not apool.q and not aq and not acur
            for u in U:
                mf.append(mfma(vr(SP(u),4),vr(K(u,0),4),vr(Q(u,0),4),"0")); mf.append(mfma(vr(SO(u),4),vr(K(u+1,0),4),vr(Q(u,0),4),"0"))
            G=[(2*u+5,pack4(Q(u,0),Q(u,0),Q(u,1))) for u in U]
            zc=[]
            for h in range(2):
                q=[Q(4*h+x,1) for x in range(4)]
                zc.append([I(f"v_permlane16_swap_b32 v{q[2]}, v{q[3]}"),I(f"v_permlane16_swap_b32 v{q[0]}, v{q[1]}"),I(f"v_permlane32_swap_b32 v{q[1]}, v{q[3]}"),
                           I(f"v_mul_f32 v{ZC[h]}, s{sK}, v{q[3]}"),I(f"v_min_f32 v{ZC[h]}, 0x42c80000, v{ZC[h]}"),I(f"v_exp_f32 v{ZC[h]}, v{ZC[h]}"),I(f"v_add_f32 v{7+h}, 1.0, v{ZC[h]}")])
            zi=[x for pr in zip(*zc) for x in pr]
            for t in range(9):
                G.append((16+2*t+5,pack4(K(t,0),K(t,0),K(t,1))))
                if t in (1,3,5): G.append((0,zi[:2] if t==1 else (zi[2:4] if t==3 else zi[4:6])))
            G.append((0,zi[6:8]))
            for d in range(2):
                for t in range(9):
                    G.append((34+9*d+t+4,[pk(V(d,0)+2*t,V(d,t)),pk(V(d,0)+2*t+1,V(d,t)+2)]))
                    if d==0 and t in (2,4,6): G.append((0,zi[8+(t-2):10+(t-2)]))
            f+=seq(G)
        tl=[]
        if k<13: tl=[WAIT(lgkm=0)] if k+1<OPT['amid'] else [WAIT(vm=[f"w{k+2}",f"x{(k+2)//2}"],lgkm=0),I("s_barrier")]
        n0=len(P)
        if OPT['p2']: P.extend(pack2(mf,f,apool if 11<=k<13 else None,tail=tl,dsend=48))
        else: P.extend(pack(mf,f,apool if 11<=k<13 else None)); P.extend(tl)
        if OPT['est']: print("attn period",k,estimate(P[n0:]))
        if k<13: P.extend(stamp(32+k))
    P.extend(stamp(2))
    sE=f"s[{mE}:{mE+1}]"
    n_in0=len(P)
    for u in U:
        e(f"v_cndmask_b32 v{M(u)}, v{SP(u)+1}, v{SP(u)}, {sE}"); e(f"v_cndmask_b32 v{T(u)}, v{SP(u)+3}, v{SP(u)+2}, {sE}")
        e(f"v_cndmask_b32 v{A(u)}, v{SO(u)+1}, v{SO(u)}, {sE}"); e(f"v_cndmask_b32 v{B(u)}, v{SO(u)+3}, v{SO(u)+2}, {sE}")
        if u==0:
            e(f"v_cndmask_b32 v{M(0)}, v{M(0)}, v{vNeg}, s[{mZ}:{mZ+1}]"); e(f"v_cndmask_b32 v{T(0)}, v{T(0)}, v{vNeg}, s[{mZ}:{mZ+1}]")
        e(f"v_cndmask_b32 v{A(u)}, v{M(u)}, v{A(u)}, s[{mM0}:{mM0+1}]"); e(f"v_cndmask_b32 v{B(u)}, v{T(u)}, v{B(u)}, s[{mM1}:{mM1+1}]")
        e(f"v_max_f32 v{M(u)}, v{A(u)}, v{B(u)}")
    def allred(R,op,mid):
        H=(0,4)
        for h in H: e(f"v_permlane32_swap_b32 v{R(h)}, v{R(h+2)}"); e(f"v_permlane32_swap_b32 v{R(h+1)}, v{R(h+3)}")
        for h in H: e(f"{op} v{R(h)}, v{R(h)}, v{R(h+2)}"); e(f"{op} v{R(h+1)}, v{R(h+1)}, v{R(h+3)}")
        for h in H: e(f"v_permlane16_swap_b32 v{R(h)}, v{R(h+1)}")
        for h in H: e(f"{op} v{R(h)}, v{R(h)}, v{R(h+1)}")
        mid(H)
        for h in H: e(f"v_mov_b32 v{R(h+1)}, v{R(h)}")
        for h in H: e(f"v_permlane16_swap_b32 v{R(h)}, v{R(h+1)}")
        for h in H: e(f"v_mov_b32 v{R(h+2)}, v{R(h)}"); e(f"v_mov_b32 v{R(h+3)}, v{R(h+1)}")
        for h in H: e(f"v_permlane32_swap_b32 v{R(h)}, v{R(h+2)}"); e(f"v_permlane32_swap_b32 v{R(h+1)}, v{R(h+3)}")
    def midM(H):
        for h in H: e(f"v_mul_f32 v{M(h)}, s{sC}, v{M(h)}")
    allred(M,"v_max_f32",midM)
    for u in U:
        e(f"v_fma_f32 v{A(u)}, v{A(u)}, s{sC}, -v{M(u)}"); e(f"v_fma_f32 v{B(u)}, v{B(u)}, s{sC}, -v{M(u)}")
    for u in U:
        e(f"v_exp_f32 v{A(u)}, v{A(u)}"); e(f"v_exp_f32 v{B(u)}, v{B(u)}")
        if u: e(f"v_add_f32 v{L(u-1)}, v{A(u-1)}, v{B(u-1)}")
    e(f"v_add_f32 v{L(7)}, v{A(7)}, v{B(7)}")
    def midL(H):
        for h in H: e(f"v_rcp_f32 v{L(h)}, v{L(h)}")
        for h in H: e(f"v_rcp_f32 v{T(h)}, v{7+h//4}")
        for h in H: e(f"v_mul_f32 v{L(h)}, v{L(h)}, v{ZC[h//4]}")
        e(f"buffer_store_dword v{T(0)}, v{vSt}, {srd(WS)}, 0 offen sc1","st"); e(f"buffer_store_dword v{T(4)}, v{vSt}, {srd(WS)}, 0 offen offset:256 sc1","st")
    allred(L,"v_add_f32",midL)
    if HELP and OPT['hin']:
        assert OPT['hp13']==5
        body=P[n_in0:]; del P[n_in0:]
        S2=[I(f"v_accvgpr_read_b32 v{HD.vWo}, a127")]+[I(f"v_accvgpr_read_b32 v{r}, a{248+j}") for j,r in enumerate((9,10,11,12,14,15,186,187))]
        S2+=[WAIT(vm=["b7"])]+flat([hstage(b) for b in range(4,8)])+[WAIT(lgkm=0)]
        nr=len(S2); S2+=flat([flat(HD.w2dma(b)) for b in range(13,13+OPT['hin'])])
        k0=0; n1=len(body)//3
        for k,x in enumerate(body):
            P.append(x)
            k1=max(k0,nr*(k+1)//n1 if k<n1 else nr+(len(S2)-nr)*(k+1-n1)//(len(body)-n1))
            while 0<k1<len(S2) and (S2[k1].cls=="ds" or (S2[k1-1].cls=="valu" and k1<nr-1)): k1+=1
            P.extend(S2[k0:k1]); k0=k1
    def pre(u):
        return [I(f"v_mul_f32 v{A(u)}, v{A(u)}, v{L(u)}"),I(f"v_mul_f32 v{B(u)}, v{B(u)}, v{L(u)}"),
                I(f"v_cvt_pk_bf16_f32 v{A(u)}, v{A(u)}, v{A(u)}"),I(f"v_cvt_pk_bf16_f32 v{B(u)}, v{B(u)}, v{B(u)}"),
                I(f"v_and_b32 v{PQ(u)}, v{cB0}, v{A(u)}"),I(f"v_and_b32 v{PQ(u)+1}, v{cB1}, v{B(u)}"),
                I(f"v_and_b32 v{PQ(u)+2}, v{cA0}, v{A(u)}"),I(f"v_and_b32 v{PQ(u)+3}, v{cA1}, v{B(u)}")]
    def post(u):
        return pack4(PQ(u),SP(u),SO(u))+[I(f"buffer_store_dwordx4 {vr(PQ(u),4)}, v{vH if u<4 else vH4}, {srd(WS)}, s{sO} offen offset:{(u%4)*1024} sc1","st")]
    P.extend(pre(0))
    for u in range(10):
        if u+1<8: a_=pre(u+1)
        else: a_=[]
        P.extend(a_[:2])
        if u<8: P.append(mfma(vr(SP(u),4),vr(V(0,0)+2*u,4),vr(PQ(u),4),"0"))
        P.extend(a_[2:4])
        if u<8: P.append(mfma(vr(SO(u),4),vr(V(1,0)+2*u,4),vr(PQ(u),4),"0"))
        P.extend(a_[4:])
        if u>=2: P.extend(post(u-2))
        elif u==0: e("v_mov_b32 v13, 1")
    P.extend(stamp(3))
    nb=8+OPT['hp13']
    P.append(WAIT(vm=["clr"])); check_or_spin(249,0,1,DBG,248)
    if HELP:
        if OPT['hin']:
            for j,r in enumerate((9,10,11,12,14,15,186,187)): e(f"v_mov_b32 v{72+j}, v{r}")
            e("L_help:")
            P.append(HD.poll("pollA")); nb+=OPT['hin']
        else:
            e("L_help:")
            e(f"v_accvgpr_read_b32 v{HD.vWo}, a127")
            for j in range(8): e(f"v_accvgpr_read_b32 v{72+j}, a{248+j}")
            P.append(HD.poll("pollA"))
            P.append(WAIT(vm=["b7"])); P.extend(flat([hstage(b) for b in range(4,8)]))
        for b in range(nb,nb+OPT['hwin']): P.extend(flat(HD.w2dma(b)))
        nb+=OPT['hwin']
        if hwin[0]: P.extend([I(f"v_add_u32 v{r}, {(-hwin[0]<<16)&0xffffffff}, v{r}") for r in hR[0]])
        for w in (1,2):
            for q in range(4): e(f"v_add_u32 v{hR[w][q]}, {w<<16}, v{hR[0][q]}")
    P.append(WAIT(vm=["st"],lgkm=0))
    e(f"buffer_atomic_add v13, v{vFl}, {srd(WS)}, 0 offen","sig")
    if HELP:
        P.extend(stamp(4))
        e(f"s_cmp_gt_u32 s{hsN}, 6"); e("s_cbranch_scc1 L_hexit")
        HD.main([(0 if b<17 else 24,it) for b in range(nb,18) for it in HD.w2dma(b)],OPT['hlead'],OPT['hpah'],so=50)
        e("L_hexit:")
    P.extend(stamp(4,True))
    if not HELP and (OPT['l2o'] or OPT['l2b']):
        sA,sB,sWv=40,41,42
        e(f"s_mul_i32 s{t0}, s{sXCD}, 23"); e(f"s_lshr_b32 s{t1}, s{sXCD}, 2"); e(f"s_sub_u32 s{t0}, s{t0}, s{t1}"); e(f"s_add_u32 s{t1}, s{t0}, 22")
        for r,d in ((t0,sA),(t1,sB)): e(f"s_mul_i32 s{r}, s{r}, 9363"); e(f"s_lshr_b32 s{d}, s{r}, 16")
        e(f"s_min_u32 s{sB}, s{sB}, 25")
        e(f"s_sub_u32 s{sWv}, s{sJ}, 1"); e(f"s_lshl_b32 s{sWv}, s{sWv}, 2"); e(f"s_add_u32 s{sWv}, s{sWv}, s{sW}")
        e(f"s_sub_u32 s43, s{sB}, s{sA}"); e("s_add_u32 s43, s43, 1"); e("s_mul_i32 s43, s43, 40"); e("s_sub_u32 s43, s43, 1")
        e(f"s_mul_i32 s44, s{sA}, 5")
        def touch(sKap,first,n,step):
            e(f"s_mul_i32 s{t0}, s{sKap}, {NT}"); e(f"s_add_u32 s{t0}, s{t0}, s44"); e(f"s_lshl_b32 s{t0}, s{t0}, 10"); e(f"s_add_u32 s{t0}, s{t0}, {H0}")
            for k in range(n):
                e(f"v_add_u32 v20, {first}, v0") if isinstance(first,str) and k==0 else e(f"v_add_u32 v20, {step if k else first}, v{20 if k else 0}")
                e("v_min_u32 v21, s43, v20"); e("v_lshlrev_b32 v21, 7, v21"); e(f"buffer_load_dword v{24+k}, v21, {srd(WS)}, s{t0} offen sc1","pf")
        if OPT['l2b']:
            LB=lab("NB")
            e(f"s_cmp_ge_u32 s{sWv}, 28"); e(f"s_cbranch_scc1 {LB}")
            e(f"s_lshr_b32 s45, s{sWv}, 1"); e(f"s_and_b32 s46, s{sWv}, 1"); e("s_cmp_ge_u32 s45, 7"); e("s_cselect_b32 s47, 2, 0"); e("s_add_u32 s47, s47, s46")
            e(f"v_min_u32 v22, 4, v0"); e(f"v_add_u32 v22, s{sA}, v22"); e(f"v_min_u32 v22, s{sB}, v22"); e("v_lshlrev_b32 v22, 3, v22"); e("v_add_u32 v22, s47, v22"); e("v_lshlrev_b32 v22, 7, v22")
            spin(22,512,7,WS,23,nap=OPT['nap'])
            e("s_lshl_b32 s45, s45, 2"); e("s_add_u32 s45, s45, s46"); e("s_add_u32 s45, s45, 2")
            touch(45,0,4,64)
            e(LB+":")
        if OPT['l2o']:
            e(f"s_and_b32 s45, s{sWv}, 15"); e("s_lshr_b32 s46, s45, 2")
            e(f"s_lshr_b32 s47, s44, 3"); e(f"s_mul_i32 s48, s{sB}, 5"); e("s_add_u32 s48, s48, 4"); e("s_lshr_b32 s48, s48, 3"); e("s_min_u32 s48, s48, 15")
            e("v_min_u32 v22, 4, v0"); e("v_add_u32 v22, s47, v22"); e("v_min_u32 v22, s48, v22"); e("v_lshlrev_b32 v22, 2, v22"); e("v_add_u32 v22, s46, v22"); e("v_add_u32 v22, 208, v22"); e("v_lshlrev_b32 v22, 7, v22")
            e("s_waitcnt vmcnt(0)"); spin(22,0,4,WS,23,nap=OPT['napo'])
            e("s_add_u32 s45, s45, 56"); e(f"s_lshr_b32 s46, s{sWv}, 4"); e("s_lshl_b32 s46, s46, 6")
            touch(45,"s46",2,128)
    e("s_endpgm")

OPT_ORDER=[(0,1,2),(0,2,1),(2,0,1)]
def spare():
    KN=NAME+"_kernel"
    e("L_spare:")
    if OPT['cpf']==2:
        e("s_cmp_ge_u32 s2, 8"); e("s_cbranch_scc1 L_nopf2"); e("v_add_u32 v2, 32768, v2"); e("v_min_u32 v2, L_end-L_pc-4, v2"); e("global_load_dword v11, v2, s[68:69]","pf"); e("L_nopf2:")
    if not OPT['cpf']: e(f"s_lshl_b32 s70, s{sW}, 6"); e("v_add_u32 v1, s70, v0"); codepf()
    e("s_waitcnt lgkmcnt(0)")
    mksrd(WS,60,WSN); mksrd(DBG,58,256)
    e(f"s_or_b32 s70, s2, s{sW}"); e("s_cmp_eq_u32 s70, 0"); e("s_cbranch_scc0 L_noclr")
    e("v_lshlrev_b32 v5, 8, v0"); e("v_mov_b32 v6, 0"); e("v_lshlrev_b32 v7, 7, v0"); e("v_mov_b32 v8, 1")
    for k in range(5):
        e(f"buffer_store_dword v6, v7, {srd(WS)}, 0 offen sc1"); e("v_add_u32 v7, 8192, v7")
    e("s_waitcnt vmcnt(0)")
    e(f"buffer_store_dword v8, v5, {srd(DBG)}, 0 offen sc1")
    e("L_noclr:")
    if OPT['tlb']:
        mksrd(WO,44,401408); mksrd(WD,52,1605632); mksrd(OUT,56,1835008)
        e(f"s_cmp_eq_u32 s{sW}, 1"); e("s_cbranch_scc0 L_notlb")
        e(f"v_mul_u32_u24 v20, {NT*1024}, v0"); e("v_lshlrev_b32 v21, 17, v0"); e(f"s_mov_b32 s70, {H0+129*1024}"); e(f"s_mov_b32 s71, {H0+129*1024+64*NT*1024}")
        e(f"buffer_load_dword v22, v20, {srd(WS)}, s70 offen","pf"); e(f"buffer_load_dword v23, v20, {srd(WS)}, s71 offen","pf")
        e(f"s_mov_b32 s70, {S0-128}"); e(f"buffer_load_dword v27, off, {srd(WS)}, s70","pf")
        for k,sr in enumerate((WD,WO,OUT)): e(f"buffer_load_dword v{24+k}, v21, {srd(sr)}, 0 offen","pf")
        e("s_waitcnt vmcnt(0)")
        e("L_notlb:")
    if OPT['gop']>=0:
        mksrd(WO,44,401408); mksrd(WD,52,1605632)
        e("v_mov_b32 v249, 0"); spin(249,4,1,DBG,248,nap=OPT['nap'])
        e(f"s_mul_i32 s66, s{sW}, 10"); e(f"s_add_u32 s66, s66, s{sI}"); e("s_lshl_b32 s66, s66, 6"); e("v_add_u32 v20, s66, v0")
        n=30
        for part in (OPT_ORDER[OPT['sord']] if OPT['ntt']==5 else (0,1)):
            if part<2:
                for k in range(3):
                    e(f"v_add_u32 v21, {2560*k}, v20"); e("v_mul_u32_u24 v22, 9363, v21"); e("v_lshrrev_b32 v22, 22, v22"); e(f"v_add_u32 v22, {part}, v22")
                    e("v_mul_u32_u24 v22, 448, v22"); e("v_add_u32 v22, v22, v21"); e("v_lshlrev_b32 v22, 7, v22")
                    e(f"buffer_load_dword v{n}, v22, {srd(WD)}, 0 offen","pf"); n+=1
            else:
                for k in range(2):
                    e(f"v_add_u32 v21, {2560*k}, v20"); e("v_lshlrev_b32 v22, 7, v21"); e(f"buffer_load_dword v{n}, v22, {srd(WO)}, 0 offen","pf"); n+=1
    if OPT['ntt']==4:
        P.extend(stamp(0))
        e(f"s_min_u32 s{hsN}, s{sJ}, 1")
        helper_setup([HD.vW2,9]+hR[0])
        e("v_accvgpr_write_b32 a127, v9")
        e("v_lshlrev_b32 v231, 4, v0"); e(f"v_mov_b32 v252, {OOB}"); e("v_mov_b32 v13, 1"); e("v_mov_b32 v249, 0"); e("v_mov_b32 v248, 0")
        if OPT['spf']:
            e(f"s_mul_i32 s66, s{sXCD}, 392"); e(f"s_lshl_b32 s67, s{sW}, 6"); e("s_add_u32 s66, s66, s67"); e("v_add_u32 v14, s66, v0")
            for k in range(13):
                e("v_subrev_u32 v15, 3136, v14"); e("v_min_u32 v15, v15, v14"); e("v_lshlrev_b32 v15, 7, v15")
                e(f"buffer_load_dword v{40+k}, v15, {srd(WO)}, 0 offen","pf"); e("v_add_u32 v14, 256, v14")
                if k<OPT['spf']-1: e("s_waitcnt vmcnt(0)")
        hwin[0]=0
        for b in range(8+OPT['hp13']):
            P.extend(flat(HD.w2dma(b)))
            for sb in {1:[0],4:[1],7:[2,3]}.get(b,[]):
                P.append(WAIT(vm=[f"b{sb}"])); P.extend(hstage(sb)); P.append(WAIT(lgkm=0))
        if OPT['hin']:
            e(f"v_mov_b32 v{HD.vWo}, v9")
            P.append(WAIT(vm=["b7"])); P.extend(flat([hstage(b) for b in range(4,8)])); P.append(WAIT(lgkm=0))
            for b in range(13,13+OPT['hin']): P.extend(flat(HD.w2dma(b)))
        assert hwin[0]==HROW[7 if OPT['hin'] else 3]>>16
        spin(249,0,1,DBG,248)
        spin(HD.vPA,0,7,WS,HD.vPoll,nap=24)
        e("s_branch L_help")
    e("L_exit:")
    e("s_endpgm")

DESC="""; One launch, 256 workgroups (one per CU, 4 waves, 512 registers each), roles by workgroup id:
;                     stream through an LDS ring and are transposed by ds_read_b64_tr_b16); silu(g)*u goes to d_ws in
;    64 attention   : 128 tokens (+16 halo) x 4 heads, one head per wave; q/k/v by MFMA, the 8 dilated taps are picked
; Hand-offs: write-through stores, vmcnt wait, atomic add on a counter in d_ws (zeroed in this launch, announced through
; d_debug); consumers poll the counter and read with L1-bypassing loads.  Workgroup-to-die placement only affects speed.
"""
def main():
    global P
    head=open("cdna_kernels/"+NAME+".s.ref").read().split("; Override launch")[0]
    txt=[]; nops=0
    def ablate(o):
        a=OPT['abl']; r=[]
        for x in o:
            if a&1 and x.cls=="vm" and " lds" in x.text: continue
            if a&2 and x.op.startswith("ds_read"): continue
            if a&4 and x.op.startswith("v_mfma"): continue
            r.append(x)
        return r
    parts=[(common_prologue,ffn),(attn,),(spare,)]; done={}
    for part in parts:
        P.clear()
        if part[0] is not common_prologue:
            pass
        ROLE[0]=part[-1].__name__
        for f in part: f()
        o,n=finalize(list(P),part[-1].__name__); nops+=n
        if OPT['abl']: o=ablate(o)
        done[part[-1].__name__]=[x.text if x.cls=="label" else "    "+x.text for x in o]
    for nm in (("ffn","spare","attn") if OPT['lay'] else ("ffn","attn","spare")): txt+=done[nm]
    txt.append("L_end:")
    out=head+DESC+"; @launch grid=(256,1,1) block=(256,1,1) lds=163840\n"
    out+='.amdgcn_target "amdgcn-amd-amdhsa--gfx950"\n.text\n'
    out+=f".globl {NAME}_kernel\n.p2align 8\n.type {NAME}_kernel,@function\n{NAME}_kernel:\n"
    out+="\n".join(txt)+"\n"
    out+=f""".section .rodata,"a"
.p2align 6
.amdhsa_kernel {NAME}_kernel
  .amdhsa_next_free_vgpr 512
  .amdhsa_next_free_sgpr 102
  .amdhsa_accum_offset 256
  .amdhsa_group_segment_fixed_size 0
  .amdhsa_kernarg_size 88
  .amdhsa_user_sgpr_count 2
  .amdhsa_user_sgpr_kernarg_segment_ptr 1
  .amdhsa_system_sgpr_workgroup_id_x 1
.end_amdhsa_kernel
"""
    open(sys.argv[1],"w").write(out)
    print("instructions",len(txt),"auto nops",nops)
main()
```
